```python
import torch

def _softmax(x, axis=-1):
    return torch.softmax(x, dim=axis)
def _gelu(x):
    return torch.nn.functional.gelu(x, approximate="tanh")
def _silu(x):
    return torch.nn.functional.silu(x)
def _sigmoid(x):
    return torch.sigmoid(x)
def _layernorm(x, axis=-1, eps=1e-5):
    m = x.mean(dim=axis, keepdim=True)
    v = x.var(dim=axis, keepdim=True, unbiased=False)
    return (x - m) / torch.sqrt(v + eps)
def _scatter_add(tgt, idx, src, axis=0):
    return tgt.clone().index_add_(axis, idx, src)
def _segment_sum(src, seg, n):
    out = torch.zeros((n,) + src.shape[1:], dtype=src.dtype)
    return out.index_add_(0, seg, src)
def _pad(x, pw):
    flat = tuple(v for pair in reversed(pw) for v in pair)
    return torch.nn.functional.pad(x, flat)

kernel_name = 'standalone__mha_block_cached__near_ridge'

def setup_inputs():

    _w = (lambda a: (lambda t: t.to(torch.bfloat16) if t.is_floating_point() else t)(torch.as_tensor(a)))
    B, Sq, D = 32, 32, 576
    H, Sk, Dh = 32, 32, 128
    return {
        "x": _w((lambda *s: torch.randn(*s, dtype=torch.bfloat16) * 0.8)(B, Sq, D)),
        "k_cache": _w((lambda *s: torch.randn(*s, dtype=torch.bfloat16) * 0.8)(B, H, Sk, Dh)),
        "v_cache": _w((lambda *s: torch.randn(*s, dtype=torch.bfloat16) * 0.05)(B, H, Sk, Dh)),
        "wq": _w((lambda *s: torch.randn(*s, dtype=torch.bfloat16) * 0.8)(D, H * Dh) * (D ** -0.5)),
        "wo": _w((lambda *s: torch.randn(*s, dtype=torch.bfloat16) * 0.05)(H * Dh, D) * ((H * Dh) ** -0.5)),
    }

def reference(x, k_cache, v_cache, wq, wo):
    B, Sq, D = x.shape
    H, Dh = 32, 128
    q = (lambda x, *d: x.permute(*d))((x @ wq).reshape(B, Sq, H, Dh), 0, 2, 1, 3)
    scores = torch.einsum("bhqd,bhkd->bhqk", q, k_cache) * (Dh ** -0.5)
    p = _softmax(scores, axis=-1)
    o = torch.einsum("bhqk,bhkd->bhqd", p, v_cache)
    return (lambda x, *d: x.permute(*d))(o, 0, 2, 1, 3).reshape(B, Sq, H * Dh) @ wo
```

```python
import sys

class Asm:
    def __init__(self):
        self.l = []
    def __call__(self, s=""):
        for x in s.split("\n"):
            self.l.append("  " + x.strip() if x.strip() and not x.strip().endswith(":") else x.strip())
    def label(self, s):
        self.l.append(s + ":")
    def c(self, s):
        self.l.append("  ; " + s)
    def text(self):
        return "\n".join(self.l) + "\n"

def vr(b, n=1):
    return f"v{b}" if n == 1 else f"v[{b}:{b+n-1}]"
def sr(b, n=1):
    return f"s{b}" if n == 1 else f"s[{b}:{b+n-1}]"

P_X, P_K, P_V, P_WQ, P_WO, P_OUT, P_DBG, P_WS = 16, 18, 20, 22, 24, 26, 28, 30
SZ_X, SZ_KV, SZ_W, SZ_OUT = 1179648, 8388608, 4718592, 1179648
WS_O = 0
WS_P = 8 << 20
WS_STAMP = 32 << 20
SZ_WS_USED = 64 << 20

S_WAVE, S_J, S_GL, S_HO, S_G, S_H = 3, 6, 7, 8, 9, 10

def srd(a, base, ptr, size):
    a(f"s_mov_b32 s{base}, s{ptr}")
    a(f"s_and_b32 s{base+1}, s{ptr+1}, 0xffff")
    a(f"s_mov_b32 s{base+2}, {size}")
    a(f"s_mov_b32 s{base+3}, 0x00020000")

def prologue(a, name, nwg=256):
    a(f".p2align 8")
    a(f".globl {name}")
    a(f".type {name},@function")
    a.label(name)
    a(f"s_cmp_ge_u32 s2, {nwg}")
    a(f"s_cbranch_scc1 L_end_{name}")
    a("s_load_dwordx16 s[16:31], s[0:1], 0")
    a("v_lshrrev_b32 v1, 6, v0")
    a("v_and_b32 v0, 63, v0")
    a("s_and_b32 s4, s2, 7")
    a("s_lshr_b32 s5, s2, 3")
    a(f"v_readfirstlane_b32 s{S_WAVE}, v1")
    a(f"s_and_b32 s{S_J}, s5, 7")
    a(f"s_lshr_b32 s{S_GL}, s5, 3")
    a(f"s_and_b32 s{S_HO}, s4, 3")
    a(f"s_lshr_b32 s{S_G}, s4, 2")
    a(f"s_lshl_b32 s{S_G}, s{S_G}, 2")
    a(f"s_add_u32 s{S_G}, s{S_G}, s{S_GL}")
    a(f"s_lshl_b32 s{S_H}, s{S_HO}, 3")
    a(f"s_add_u32 s{S_H}, s{S_H}, s{S_J}")
    a("s_waitcnt lgkmcnt(0)")

STAMPS = False
def stamp(a, idx, tmp_s=90, tmp_v=250):
    if not STAMPS: return
    a(f"s_memrealtime s[{tmp_s}:{tmp_s+1}]")
    a("s_waitcnt lgkmcnt(0)")
    a(f"v_mov_b32 v{tmp_v}, s{tmp_s}")
    a(f"v_mov_b32 v{tmp_v+1}, s{tmp_s+1}")
    a(f"v_mov_b32 v{tmp_v+2}, 0")
    a(f"buffer_store_dwordx2 v[{tmp_v}:{tmp_v+1}], v{tmp_v+2}, s[92:95], s96 offen offset:{idx*8}")
def stamp_init(a):
    if not STAMPS: return
    a(f"s_add_u32 s92, s{P_WS}, {WS_STAMP}")
    a(f"s_addc_u32 s93, s{P_WS+1}, 0")
    a("s_and_b32 s93, s93, 0xffff")
    a(f"s_mov_b32 s94, {256*8*16*8}")
    a("s_mov_b32 s95, 0x00020000")
    a("s_lshl_b32 s96, s2, 3")
    a(f"s_add_u32 s96, s96, s{S_WAVE}")
    a("s_lshl_b32 s96, s96, 7")

L_WQ = 0
L_X = 65536
L_V = 131072
def L_K(w):
    return (L_WQ + 16384 + w * 8192) if w < 2 else (L_X + 16384 + (w - 2) * 8192)
NCH = 9

def dma(a, voff, srdb, soff, off=0, nt=False):
    a(f"buffer_load_dwordx4 v{voff}, s[{srdb}:{srdb+3}], s{soff} offen" + (f" offset:{off}" if off else "") + (" nt" if nt else "") + " lds")

def loader_ring(a, which):
    SRD = 32; SO = 40
    if which == 'wq':
        srd(a, SRD, P_WQ, SZ_W)
        a("v_lshrrev_b32 v1, 4, v0")
        a("v_and_b32 v2, 15, v0")
        a("v_lshlrev_b32 v3, 2, v1")
        a("v_xor_b32 v3, v3, v2")
        a("v_lshlrev_b32 v3, 4, v3")
        a("v_lshlrev_b32 v4, 13, v1")
        a("v_add_u32 v4, v4, v3")
        a(f"s_lshl_b32 s{SO}, s{S_H}, 8")
        def issue(kc):
            slot = kc % 4
            a(f"s_mov_b32 m0, {L_WQ + slot*16384}")
            for t in range(16):
                if t == 0: a("s_nop 0")
                dma(a, 4, SRD, SO)
                a(f"s_add_u32 s{SO}, s{SO}, 32768")
                if t < 15:
                    a("s_add_u32 m0, m0, 1024")
                    a("s_nop 0")
    else:
        srd(a, SRD, P_X, SZ_X)
        a("v_lshrrev_b32 v1, 3, v0")
        a("v_mul_u32_u24 v1, 1152, v1")
        a("v_and_b32 v2, 7, v0")
        a("v_lshrrev_b32 v3, 4, v0")
        a("v_xor_b32 v2, v2, v3")
        a("v_lshlrev_b32 v4, 4, v2")
        a("v_add_u32 v4, v4, v1")
        a("v_xor_b32 v2, 4, v2")
        a("v_lshlrev_b32 v5, 4, v2")
        a("v_add_u32 v5, v5, v1")
        a(f"s_mul_i32 s{SO+1}, s{S_G}, 147456")
        def issue(kc):
            slot = kc % 4
            a(f"s_mov_b32 m0, {L_X + slot*16384}")
            a(f"s_add_u32 s{SO}, s{SO+1}, {kc*128}")
            for T in range(16):
                dma(a, 4 + (T & 1), SRD, SO)
                if T < 15:
                    a("s_add_u32 m0, m0, 1024")
                    a(f"s_add_u32 s{SO}, s{SO}, 9216")
    issue(0); issue(1); issue(2)
    a("s_waitcnt vmcnt(32)")
    issue(3)
    stamp(a, 1)
    a("s_barrier")
    stamp(a, 2)
    a("s_waitcnt vmcnt(32)")
    a("s_barrier")
    for i in range(2, NCH):
        last_issued = min(i + 1, NCH - 1)
        n_after = (last_issued - i) * 16
        a(f"s_waitcnt vmcnt({n_after})")
        a("s_barrier")
        if i + 2 < NCH:
            issue(i + 2)
    stamp(a, 3)
    a("s_barrier")

def loader_k(a):
    SRD = 32; SRD2 = 36; SRD3 = 44; SO = 40
    srd(a, SRD, P_K, SZ_KV)
    srd(a, SRD2, P_WQ, SZ_W)
    srd(a, SRD3, P_X, SZ_X)
    a("v_lshrrev_b32 v1, 1, v0")
    a("v_and_b32 v2, 1, v0")
    a("v_lshlrev_b32 v1, 13, v1")
    a("v_lshl_add_u32 v1, v2, 7, v1")
    a(f"s_mul_i32 s{SO}, s{S_GL}, {80*8192}")
    a(f"s_lshl_b32 s{SO+1}, s{S_H}, 8")
    a(f"s_add_u32 s{SO}, s{SO}, s{SO+1}")
    a(f"s_add_u32 s{SO}, s{SO}, {256*8192}")
    for t in range(3):
        a(f"buffer_load_dword v10, v1, s[{SRD2}:{SRD2+3}], s{SO} offen")
        if t < 2: a(f"s_add_u32 s{SO}, s{SO}, {32*8192}")
    a("v_lshrrev_b32 v2, 3, v0")
    a("v_mul_u32_u24 v2, 1152, v2")
    a("v_and_b32 v3, 7, v0")
    a("v_min_u32 v3, 4, v3")
    a("v_lshl_add_u32 v2, v3, 7, v2")
    a(f"s_mul_i32 s{SO}, s{S_G}, 147456")
    a(f"s_mul_i32 s{SO+1}, s{S_J}, {16*1152}")
    a(f"s_add_u32 s{SO}, s{SO}, s{SO+1}")
    a(f"s_add_u32 s{SO}, s{SO}, 512")
    a(f"buffer_load_dword v10, v2, s[{SRD3}:{SRD3+3}], s{SO} offen")
    a(f"s_add_u32 s{SO}, s{SO}, {8*1152}")
    a(f"buffer_load_dword v10, v2, s[{SRD3}:{SRD3+3}], s{SO} offen")
    a("v_lshlrev_b32 v3, 7, v0")
    a(f"s_lshl_b32 s{SO}, s{S_G}, 7")
    a(f"s_add_u32 s{SO}, s{SO}, s{S_H}")
    a(f"s_lshl_b32 s{SO}, s{SO}, 13")
    a(f"s_mov_b32 s{SO+2}, s{SO}")
    for w in range(4):
        a(f"buffer_load_dword v10, v3, s[{SRD}:{SRD+3}], s{SO} offen")
        if w < 3: a(f"s_add_u32 s{SO}, s{SO}, {32*8192}")
    a("v_lshrrev_b32 v1, 4, v0")
    a("v_and_b32 v2, 15, v0")
    a("v_xor_b32 v2, v2, v1")
    a("v_lshlrev_b32 v2, 4, v2")
    a("v_lshl_add_u32 v4, v1, 8, v2")
    a("v_xor_b32 v5, 64, v4")
    a("v_xor_b32 v6, 128, v4")
    a("v_xor_b32 v7, 192, v4")
    for i in range(8):
        a("s_barrier")
    a(f"s_mov_b32 s{SO}, s{SO+2}")
    for w in range(4):
        for hf in range(2):
            a(f"s_mov_b32 m0, {L_K(w) + hf*4096}")
            a("s_nop 0")
            for t4 in range(4):
                t = hf * 4 + t4
                dma(a, 4 + (t >> 1), SRD, SO, off=t4 * 1024)
            a(f"s_add_u32 s{SO}, s{SO}, {4096 if hf == 0 else 32*8192 - 4096}")
    a("s_barrier")
    a("s_waitcnt vmcnt(0)")
    stamp(a, 3)
    a("s_barrier")

def loader_v(a):
    SRD = 32; SO = 40
    srd(a, SRD, P_V, SZ_KV)
    a("v_lshrrev_b32 v1, 4, v0")
    a("v_and_b32 v2, 15, v0")
    a("v_lshlrev_b32 v3, 1, v1")
    a("v_xor_b32 v2, v2, v3")
    a("v_lshlrev_b32 v2, 4, v2")
    a("v_lshl_add_u32 v4, v1, 8, v2")
    a("v_xor_b32 v5, 128, v4")
    a(f"s_lshl_b32 s{SO}, s{S_G}, 7")
    a(f"s_add_u32 s{SO}, s{SO}, s{S_H}")
    a(f"s_lshl_b32 s{SO}, s{SO}, 13")
    for w in range(4):
        for hf in range(2):
            a(f"s_mov_b32 m0, {L_V + w*8192 + hf*4096}")
            a("s_nop 0")
            for t4 in range(4):
                t = hf * 4 + t4
                dma(a, 4 + ((t >> 1) & 1), SRD, SO, off=t4 * 1024, nt=True)
            a(f"s_add_u32 s{SO}, s{SO}, {4096 if hf == 0 else 32*8192 - 4096}")
    for i in range(9):
        a("s_barrier")
    a("s_waitcnt vmcnt(0)")
    stamp(a, 3)
    a("s_barrier")

V_XA = 4
V_WA = 8
V_A = [16, 32]
V_B = [48, 52]
V_ACC = 64
V_QF = 128
V_KF = 160
V_S = 192
V_VF = 208
V_PF = 240
V_OF = 128
SC_SCALE = 0.08838834764831845 * 1.4426950408889634

import struct
def f32hex(x):
    return "0x%08x" % struct.unpack("<I", struct.pack("<f", x))[0]

def gemm1_addrs(a):
    a("v_and_b32 v1, 31, v0")
    a("v_lshrrev_b32 v2, 5, v0")
    a("v_bfe_u32 v3, v0, 1, 3")
    a("v_xor_b32 v2, v2, v3")
    a("v_lshlrev_b32 v2, 4, v2")
    a("v_lshl_add_u32 v2, v1, 7, v2")
    a(f"s_lshl_b32 s40, s{S_WAVE}, 12")
    a(f"s_add_u32 s40, s40, {L_X}")
    a("v_add_u32 v2, s40, v2")
    for ks in range(4):
        a(f"v_xor_b32 v{V_XA+ks}, {32*ks}, v2")
    a("v_bfe_u32 v1, v0, 2, 2")
    a("v_lshrrev_b32 v2, 5, v0")
    a("v_lshl_add_u32 v2, v2, 3, v1")
    a("v_lshlrev_b32 v2, 8, v2")
    a("v_and_b32 v3, 1, v0")
    a("v_lshl_add_u32 v2, v3, 5, v2")
    a("v_bfe_u32 v3, v0, 4, 1")
    a("v_lshl_add_u32 v2, v3, 4, v2")
    a("v_bfe_u32 v3, v0, 1, 1")
    a("v_lshl_add_u32 v2, v3, 3, v2")
    a("v_lshl_add_u32 v2, v1, 6, v2")
    for dt in range(4):
        a(f"v_xor_b32 v{V_WA+dt}, {64*dt}, v2")

def g1_reads(n):
    i, ks = divmod(n, 4)
    slot = i % 4
    st = n & 1
    r = [f"ds_read_b128 {vr(V_B[st],4)}, v{V_XA+ks} offset:{slot*16384}"]
    for dt in range(4):
        base = V_A[st] + 4 * dt
        off = L_WQ + slot * 16384 + ks * 4096
        r.append(f"ds_read_b64_tr_b16 {vr(base,2)}, v{V_WA+dt} offset:{off}")
        r.append(f"ds_read_b64_tr_b16 {vr(base+2,2)}, v{V_WA+dt} offset:{off+1024}")
    return r

def gemm1(a):
    NS = NCH * 4
    a("s_barrier")
    stamp(a, 1)
    for r in g1_reads(0): a(r)
    for n in range(NS):
        i, ks = divmod(n, 4)
        st = n & 1
        nxt = g1_reads(n + 1) if n + 1 < NS else []
        waits = [6, 7, 8, 9] if nxt else [6, 4, 2, 0]
        for dt in range(4):
            a(f"s_waitcnt lgkmcnt({waits[dt]})")
            c = "0" if n == 0 else vr(V_ACC + 16 * dt, 16)
            a(f"v_mfma_f32_32x32x16_bf16 {vr(V_ACC+16*dt,16)}, {vr(V_A[st]+4*dt,4)}, {vr(V_B[st],4)}, {c}")
            if dt == 0 and ks == 3 and i + 1 < NCH:
                a("s_barrier")
            if dt < 3:
                for r in nxt[3*dt:3*dt+3]: a(r)

def attention(a):
    a("s_barrier")
    stamp(a, 3)
    for ai in range(2):
        for st in range(4):
            a(f"ds_read_b128 {vr(V_KF+(ai*4+st)*4,4)}, v{12+st} offset:{ai*1024}")
    for dt in range(4):
        for i in range(8):
            a(f"v_cvt_pk_bf16_f32 v{V_QF+8*dt+i}, v{V_ACC+16*dt+2*i}, v{V_ACC+16*dt+2*i+1}")
    a("s_nop 1")
    for dt in range(4):
        for i in range(4):
            a(f"v_permlane16_swap_b32 v{V_QF+8*dt+i}, v{V_QF+8*dt+4+i}")
    a("s_waitcnt lgkmcnt(0)")
    def vreads(T):
        a(f"v_xor_b32 v1, {32*T}, v2") if T else None
        ad = "v1" if T else "v2"
        a(f"ds_read_b64_tr_b16 {vr(V_VF+4*T,2)}, {ad}")
        a(f"ds_read_b64_tr_b16 {vr(V_VF+4*T+2,2)}, {ad} offset:1024")
    for st in range(4):
        for ai in range(2):
            for qt in range(2):
                d = vr(V_S + (ai*2+qt)*4, 4)
                c = "0" if st == 0 else d
                a(f"v_mfma_f32_16x16x32_bf16 {d}, {vr(V_KF+(ai*4+st)*4,4)}, {vr(V_QF+8*st+4*qt,4)}, {c}")
    for T in range(8):
        vreads(T)
        if T == 3: a("s_waitcnt lgkmcnt(0)")
    def S(ai, qt, v): return V_S + (ai*2+qt)*4 + v
    M = [56, 57]; T_ = [58, 59]; SUM = [60, 61]
    a("s_nop 7")
    for qt in range(2):
        a(f"v_max3_f32 v{M[qt]}, v{S(0,qt,0)}, v{S(0,qt,1)}, v{S(0,qt,2)}")
    for qt in range(2):
        a(f"v_max3_f32 v{M[qt]}, v{M[qt]}, v{S(0,qt,3)}, v{S(1,qt,0)}")
    for qt in range(2):
        a(f"v_max3_f32 v{M[qt]}, v{M[qt]}, v{S(1,qt,1)}, v{S(1,qt,2)}")
    for qt in range(2):
        a(f"v_max_f32 v{M[qt]}, v{M[qt]}, v{S(1,qt,3)}")
    def xlane(regs, tmps, op):
        for sw in ("v_permlane16_swap_b32", "v_permlane32_swap_b32"):
            for qt in range(2):
                a(f"v_mov_b32 v{tmps[qt]}, v{regs[qt]}")
            a("s_nop 1")
            for qt in range(2):
                a(f"{sw} v{tmps[qt]}, v{regs[qt]}")
            a("s_nop 1")
            for qt in range(2):
                a(f"{op} v{regs[qt]}, v{regs[qt]}, v{tmps[qt]}")
    xlane(M, T_, "v_max_f32")
    a(f"s_mov_b32 s41, {f32hex(SC_SCALE)}")
    for qt in range(2):
        a(f"v_mul_f32 v{M[qt]}, s41, v{M[qt]}")
    for ai in range(2):
        for v in range(4):
            for qt in range(2):
                a(f"v_fma_f32 v{S(ai,qt,v)}, v{S(ai,qt,v)}, s41, -v{M[qt]}")
    for ai in range(2):
        for v in range(4):
            for qt in range(2):
                a(f"v_exp_f32 v{S(ai,qt,v)}, v{S(ai,qt,v)}")
    a("s_nop 0")
    for qt in range(2):
        a(f"v_add_f32 v{SUM[qt]}, v{S(0,qt,0)}, v{S(0,qt,1)}")
    for (ai, v) in [(0,2),(0,3),(1,0),(1,1),(1,2),(1,3)]:
        for qt in range(2):
            a(f"v_add_f32 v{SUM[qt]}, v{SUM[qt]}, v{S(ai,qt,v)}")
    xlane(SUM, T_, "v_add_f32")
    for qt in range(2):
        a(f"v_rcp_f32 v{SUM[qt]}, v{SUM[qt]}")
    a("s_nop 0")
    for ai in range(2):
        for v in range(4):
            for qt in range(2):
                a(f"v_mul_f32 v{S(ai,qt,v)}, v{S(ai,qt,v)}, v{SUM[qt]}")
    for qt in range(2):
        for ai in range(2):
            for h2 in range(2):
                a(f"v_cvt_pk_bf16_f32 v{V_PF+4*qt+2*ai+h2}, v{S(ai,qt,2*h2)}, v{S(ai,qt,2*h2+1)}")
    a("s_waitcnt lgkmcnt(0)")
    a("s_nop 1")
    for T in range(8):
        for qt in range(2):
            a(f"v_mfma_f32_16x16x32_bf16 {vr(V_ACC+(T*2+qt)*4,4)}, {vr(V_VF+4*T,4)}, {vr(V_PF+4*qt,4)}, 0")
    a("s_nop 7")
    for p in range(4):
        for qt in range(2):
            for e in range(2):
                T = 2*p + e
                for h2 in range(2):
                    src = V_ACC + (T*2+qt)*4 + 2*h2
                    a(f"v_cvt_pk_bf16_f32 v{V_OF+(2*p+qt)*4+2*e+h2}, v{src}, v{src+1}")

def attn_addrs(a):
    a("v_and_b32 v1, 15, v0")
    a("v_lshrrev_b32 v2, 4, v0")
    a("v_xor_b32 v2, v2, v1")
    a("v_lshlrev_b32 v2, 4, v2")
    a("v_lshrrev_b32 v3, 2, v1")
    a("v_lshl_add_u32 v2, v3, 11, v2")
    a("v_and_b32 v3, 3, v1")
    a("v_lshl_add_u32 v2, v3, 8, v2")
    a(f"s_lshl_b32 s40, s{S_WAVE}, 13")
    a(f"s_add_u32 s40, s40, {L_WQ + 16384}")
    a(f"s_cmp_ge_u32 s{S_WAVE}, 2")
    a(f"s_cselect_b32 s42, {L_X + 16384 - 16384 - (L_WQ + 16384)}, 0")
    a("s_add_u32 s40, s40, s42")
    a("v_add_u32 v2, s40, v2")
    for st in range(4):
        a(f"v_xor_b32 v{12+st}, {64*st}, v2")
    a("v_lshrrev_b32 v1, 4, v0")
    a("v_bfe_u32 v3, v0, 2, 2")
    a("v_lshl_add_u32 v2, v1, 3, v3")
    a("v_lshlrev_b32 v2, 8, v2")
    a("v_and_b32 v1, 1, v1")
    a("v_lshl_add_u32 v3, v1, 2, v3")
    a("v_lshl_add_u32 v2, v3, 5, v2")
    a("v_and_b32 v3, 3, v0")
    a("v_lshl_add_u32 v2, v3, 3, v2")
    a(f"s_lshl_b32 s40, s{S_WAVE}, 13")
    a(f"s_add_u32 s40, s40, {L_V}")
    a("v_add_u32 v2, s40, v2")

def kernel1(a):
    name = "mha_p1_kernel"
    prologue(a, name)
    stamp_init(a)
    stamp(a, 0)
    a(f"s_cmp_lt_u32 s{S_WAVE}, 4")
    a("s_cbranch_scc1 L_p1_compute")
    a(f"s_cmp_eq_u32 s{S_WAVE}, 4")
    a("s_cbranch_scc1 L_p1_ldwq")
    a(f"s_cmp_eq_u32 s{S_WAVE}, 5")
    a("s_cbranch_scc1 L_p1_ldx")
    a(f"s_cmp_eq_u32 s{S_WAVE}, 6")
    a("s_cbranch_scc1 L_p1_ldk")
    loader_v(a)
    a("s_endpgm")
    a.label("L_p1_ldk"); loader_k(a); a("s_endpgm")
    a.label("L_p1_ldx"); loader_ring(a, 'x'); a("s_endpgm")
    a.label("L_p1_ldwq"); loader_ring(a, 'wq'); a("s_endpgm")
    a.label("L_p1_compute")
    gemm1_addrs(a)
    attn_addrs(a)
    gemm1(a)
    stamp(a, 2)
    attention(a)
    stamp(a, 4)
    srd(a, 32, P_WS, SZ_WS_USED)
    a(f"s_lshl_b32 s40, s{S_G}, 5")
    a(f"s_add_u32 s40, s40, s{S_H}")
    a("s_lshl_b32 s40, s40, 2")
    a(f"s_add_u32 s40, s40, s{S_WAVE}")
    a("s_lshl_b32 s40, s40, 13")
    a("s_add_u32 s41, s40, 4096")
    a("v_lshlrev_b32 v1, 4, v0")
    for f in range(8):
        a(f"buffer_store_dwordx4 {vr(V_OF+4*f,4)}, v1, s[32:35], s{40 + f//4} offen offset:{(f%4)*1024}")
    a("s_waitcnt vmcnt(0)")
    stamp(a, 5)
    a.label(f"L_end_{name}")
    a("s_endpgm")

W_SLOT = 18432
def p2_wo_voffs(a, vbase):
    for t in range(9):
        a(f"v_add_u32 v1, {64*t}, v0")
        a("v_mul_u32_u24 v2, 7282, v1")
        a("v_lshrrev_b32 v2, 16, v2")
        a("v_mul_u32_u24 v3, 9, v2")
        a("v_sub_u32 v3, v1, v3")
        a("v_lshlrev_b32 v3, 4, v3")
        a("v_and_b32 v20, 32, v2")
        a("v_and_b32 v21, 1, v2")
        a("v_lshl_add_u32 v20, v21, 4, v20")
        a("v_bfe_u32 v21, v2, 3, 2")
        a("v_lshl_add_u32 v20, v21, 2, v20")
        a("v_bfe_u32 v21, v2, 1, 2")
        a("v_add_u32 v20, v20, v21")
        a("v_mul_u32_u24 v20, 1152, v20")
        a(f"v_add_u32 v{vbase+t}, v20, v3")

def p2_loader(a):
    SRD = 32; SO = 40
    srd(a, SRD, P_WO, SZ_W)
    p2_wo_voffs(a, 4)
    a(f"s_sub_u32 s42, s{S_WAVE}, 4")
    a(f"s_mul_i32 s43, s{S_J}, 144")
    for rnd in range(2):
        a(f"s_add_u32 s44, s42, {4*rnd}")
        a(f"s_add_u32 s45, s44, s{S_J}")
        a("s_and_b32 s45, s45, 7")
        a(f"s_lshl_b32 s46, s{S_HO}, 3")
        a("s_add_u32 s45, s45, s46")
        a(f"s_mul_i32 s{SO}, s45, {128*1152}")
        a(f"s_add_u32 s{SO}, s{SO}, s43")
        a(f"s_mul_i32 s47, s44, {W_SLOT}")
        a("s_mov_b32 m0, s47")
        a("s_nop 0")
        for half in range(2):
            for t in range(9):
                dma(a, 4 + t, SRD, SO)
                if not (half == 1 and t == 8):
                    a("s_add_u32 m0, m0, 1024")
                    if t == 8: a(f"s_add_u32 s{SO}, s{SO}, {64*1152}")
                    else: a("s_nop 0")
    a("s_waitcnt vmcnt(18)")
    a("s_barrier")
    a("s_waitcnt vmcnt(0)")
    a("s_barrier")

V2_ACC = 16
V2_A = [56, 76]
V2_B = [96, 128, 160]
V2_AD = [4, 5, 6]

def p2_areads(slot, p, st):
    r = []
    ad = V2_AD[slot // 3]
    for tau in range(5):
        off = (slot % 3) * W_SLOT + p * 4608 + (32 * tau if tau < 4 else 112)
        base = V2_A[st] + 4 * tau
        r.append(f"ds_read_b64_tr_b16 {vr(base,2)}, v{ad} offset:{off}")
        r.append(f"ds_read_b64_tr_b16 {vr(base+2,2)}, v{ad} offset:{off+144}")
    return r

def p2_bloads(a, slot, buf):
    a(f"s_add_u32 s45, s{S_J}, {slot}")
    a("s_and_b32 s45, s45, 7")
    a("s_add_u32 s45, s45, s44")
    a("s_lshl_b32 s45, s45, 2")
    a(f"s_add_u32 s45, s45, s{S_WAVE}")
    a("s_lshl_b32 s46, s45, 13")
    a("s_add_u32 s47, s46, 4096")
    for f in range(8):
        a(f"buffer_load_dwordx4 {vr(V2_B[buf]+4*f,4)}, v1, s[32:35], s{46 + f//4} offen offset:{(f%4)*1024}")

def p2_compute(a):
    srd(a, 32, P_WS, SZ_WS_USED)
    a(f"s_lshl_b32 s44, s{S_G}, 5")
    a(f"s_lshl_b32 s45, s{S_HO}, 3")
    a("s_add_u32 s44, s44, s45")
    a("v_lshrrev_b32 v2, 4, v0")
    a("v_bfe_u32 v3, v0, 2, 2")
    a("v_lshlrev_b32 v2, 3, v2")
    a("v_lshl_add_u32 v2, v3, 1, v2")
    a("v_mul_u32_u24 v2, 144, v2")
    a("v_and_b32 v3, 3, v0")
    a(f"v_lshl_add_u32 v{V2_AD[0]}, v3, 3, v2")
    a(f"v_add_u32 v{V2_AD[1]}, {3*W_SLOT}, v{V2_AD[0]}")
    a(f"v_add_u32 v{V2_AD[2]}, {6*W_SLOT}, v{V2_AD[0]}")
    a("v_lshlrev_b32 v1, 4, v0")
    for s in range(3): p2_bloads(a, s, s)
    a("s_barrier")
    steps = [(s, p) for s in range(8) for p in range(4)]
    for r in p2_areads(0, 0, 0): a(r)
    for n, (s, p) in enumerate(steps):
        st = n & 1
        buf = s % 3
        if p == 0:
            inflight_after = min(2, 7 - s) * 8
            a(f"s_waitcnt vmcnt({inflight_after})")
        nxt = p2_areads(*steps[n+1], (n+1) & 1) if n + 1 < len(steps) else []
        if nxt and steps[n+1] == (4, 0):
            pre_barrier = True
        else:
            pre_barrier = False
        issued = 0
        for tau in range(5):
            remaining_old = 10 - 2 * (tau + 1)
            a(f"s_waitcnt lgkmcnt({remaining_old + issued})")
            for qt in range(2):
                d = vr(V2_ACC + (tau*2+qt)*4, 4)
                c = "0" if n == 0 else d
                a(f"v_mfma_f32_16x16x32_bf16 {d}, {vr(V2_A[st]+4*tau,4)}, {vr(V2_B[buf]+(2*p+qt)*4,4)}, {c}")
            if tau == 0 and pre_barrier:
                a("s_barrier")
            if nxt:
                k = [2, 2, 2, 2, 2][tau]
                for r in nxt[issued:issued+k]: a(r)
                issued += k
        if p == 3 and s + 3 < 8:
            p2_bloads(a, s + 3, buf)
    a("s_nop 7")
    a(f"s_lshl_b32 s45, s{S_HO}, 3")
    a(f"s_add_u32 s45, s45, s{S_G}")
    a("s_lshl_b32 s45, s45, 3")
    a(f"s_add_u32 s45, s45, s{S_J}")
    a("s_lshl_b32 s45, s45, 2")
    a(f"s_add_u32 s45, s45, s{S_WAVE}")
    a("s_mul_i32 s45, s45, 10240")
    a(f"s_add_u32 s45, s45, {WS_P}")
    for u in range(10):
        if u in (4, 8): a("s_add_u32 s45, s45, 4096")
        a(f"buffer_store_dwordx4 {vr(V2_ACC+4*u,4)}, v1, s[32:35], s45 offen offset:{(u%4)*1024}")

def kernel2(a):
    name = "mha_p2_kernel"
    prologue(a, name)
    a(f"s_cmp_lt_u32 s{S_WAVE}, 4")
    a("s_cbranch_scc1 L_p2_compute")
    p2_loader(a)
    a("s_endpgm")
    a.label("L_p2_compute")
    p2_compute(a)
    a.label(f"L_end_{name}")
    a("s_endpgm")

def kernel3(a):
    name = "mha_p3_kernel"
    prologue(a, name)
    srd(a, 32, P_WS, SZ_WS_USED)
    srd(a, 36, P_OUT, SZ_OUT)
    a("v_lshlrev_b32 v1, 4, v0")
    a(f"s_lshl_b32 s45, s{S_G}, 3")
    a(f"s_add_u32 s45, s45, s{S_J}")
    a("s_lshl_b32 s45, s45, 2")
    a(f"s_add_u32 s45, s45, s{S_WAVE}")
    a("s_mul_i32 s45, s45, 10240")
    a(f"s_add_u32 s45, s45, {WS_P}")
    a("v_and_b32 v2, 15, v0")
    a("v_mul_u32_u24 v2, 1152, v2")
    a("v_lshrrev_b32 v3, 4, v0")
    a("v_lshl_add_u32 v2, v3, 3, v2")
    a(f"s_lshl_b32 s46, s{S_G}, 2")
    a(f"s_add_u32 s46, s46, s{S_WAVE}")
    a(f"s_mul_i32 s46, s46, {32*1152}")
    a(f"s_mul_i32 s47, s{S_J}, 144")
    a("s_add_u32 s46, s46, s47")
    for k in range(3):
        lab = f"L_p3_skip{k}"
        a(f"s_add_u32 s48, s{S_HO}, {4*k}")
        if k == 2:
            a("s_cmp_ge_u32 s48, 10")
            a(f"s_cbranch_scc1 {lab}")
        a("s_lshl_b32 s49, s48, 10")
        a("s_add_u32 s49, s49, s45")
        for pr in range(4):
            a(f"buffer_load_dwordx4 {vr(8+4*pr,4)}, v1, s[32:35], s49 offen")
            if pr < 3: a(f"s_add_u32 s49, s49, {8*8*4*10240}")
        a("s_and_b32 s50, s48, 1")
        a(f"s_mul_i32 s50, s50, {16*1152}")
        a("s_lshr_b32 s51, s48, 1")
        a("s_lshl_b32 s52, s51, 5")
        a("s_cmp_eq_u32 s51, 4")
        a("s_cselect_b32 s52, 112, s52")
        a("s_add_u32 s50, s50, s52")
        a("s_add_u32 s50, s50, s46")
        a("s_waitcnt vmcnt(0)")
        for v in range(4):
            a(f"v_add_f32 v{8+v}, v{8+v}, v{12+v}")
            a(f"v_add_f32 v{16+v}, v{16+v}, v{20+v}")
        for v in range(4):
            a(f"v_add_f32 v{8+v}, v{8+v}, v{16+v}")
        a("v_cvt_pk_bf16_f32 v8, v8, v9")
        a("v_cvt_pk_bf16_f32 v9, v10, v11")
        a(f"buffer_store_dwordx2 v[8:9], v2, s[36:39], s50 offen")
        a.label(lab)
    a.label(f"L_end_{name}")
    a("s_endpgm")

def descriptor(a, name, vgpr, sgpr=102):
    a(f".amdhsa_kernel {name}")
    a(f".amdhsa_next_free_vgpr {vgpr}")
    a(f".amdhsa_next_free_sgpr {sgpr}")
    a(f".amdhsa_accum_offset {vgpr}")
    a(".amdhsa_group_segment_fixed_size 0")
    a(".amdhsa_kernarg_size 64")
    a(".amdhsa_user_sgpr_count 2")
    a(".amdhsa_user_sgpr_kernarg_segment_ptr 1")
    a(".amdhsa_system_sgpr_workgroup_id_x 1")
    a(".end_amdhsa_kernel")

HEADER = """; Kernarg layout (64 bytes): x, k_cache, v_cache, wq, wo, out, debug, ws
"""
def main():
    global STAMPS
    out = sys.argv[1]
    STAMPS = "--stamps" in sys.argv
    a = Asm()
    hdr = HEADER
    hdr += "; @launch kernel=mha_p1_kernel grid=(256,1,1) block=(512,1,1) lds=163840\n"
    hdr += "; @launch kernel=mha_p2_kernel grid=(256,1,1) block=(512,1,1) lds=147456\n"
    hdr += "; @launch kernel=mha_p3_kernel grid=(256,1,1) block=(256,1,1) lds=0\n"
    a('.amdgcn_target "amdgcn-amd-amdhsa--gfx950"')
    a(".text")
    kernel1(a); kernel2(a); kernel3(a)
    a('.section .rodata,"a"')
    a(".p2align 6")
    descriptor(a, "mha_p1_kernel", 256)
    a(".p2align 6")
    descriptor(a, "mha_p2_kernel", 256)
    a(".p2align 6")
    descriptor(a, "mha_p3_kernel", 64)
    open(out, "w").write(hdr + a.text())

if __name__ == "__main__":
    main()
```

```python
import sys

class Asm:
    def __init__(self):
        self.l = []
    def __call__(self, s=""):
        for x in s.split("\n"):
            self.l.append("  " + x.strip() if x.strip() and not x.strip().endswith(":") else x.strip())
    def label(self, s):
        self.l.append(s + ":")
    def c(self, s):
        self.l.append("  ; " + s)
    def text(self):
        return "\n".join(self.l) + "\n"

def vr(b, n=1):
    return f"v{b}" if n == 1 else f"v[{b}:{b+n-1}]"
def sr(b, n=1):
    return f"s{b}" if n == 1 else f"s[{b}:{b+n-1}]"

P_X, P_K, P_V, P_WQ, P_WO, P_OUT, P_DBG, P_WS = 16, 18, 20, 22, 24, 26, 28, 30
SZ_X, SZ_KV, SZ_W, SZ_OUT = 1179648, 8388608, 4718592, 1179648
WS_O = 0
WS_P = 8 << 20
WS_STAMP = 32 << 20
SZ_WS_USED = 64 << 20

S_WAVE, S_J, S_GL, S_HO, S_G, S_H = 3, 6, 7, 8, 9, 10

def srd(a, base, ptr, size):
    a(f"s_mov_b32 s{base}, s{ptr}")
    a(f"s_and_b32 s{base+1}, s{ptr+1}, 0xffff")
    a(f"s_mov_b32 s{base+2}, {size}")
    a(f"s_mov_b32 s{base+3}, 0x00020000")

def prologue(a, name, nwg=256):
    a(f".p2align 8")
    a(f".globl {name}")
    a(f".type {name},@function")
    a.label(name)
    a(f"s_cmp_ge_u32 s2, {nwg}")
    a(f"s_cbranch_scc1 L_end_{name}")
    a("s_load_dwordx16 s[16:31], s[0:1], 0")
    a("v_lshrrev_b32 v1, 6, v0")
    a("v_and_b32 v0, 63, v0")
    a("s_and_b32 s4, s2, 7")
    a("s_lshr_b32 s5, s2, 3")
    a(f"v_readfirstlane_b32 s{S_WAVE}, v1")
    a(f"s_and_b32 s{S_J}, s5, 7")
    a(f"s_lshr_b32 s{S_GL}, s5, 3")
    a(f"s_and_b32 s{S_HO}, s4, 3")
    a(f"s_lshr_b32 s{S_G}, s4, 2")
    a(f"s_lshl_b32 s{S_G}, s{S_G}, 2")
    a(f"s_add_u32 s{S_G}, s{S_G}, s{S_GL}")
    a(f"s_lshl_b32 s{S_H}, s{S_HO}, 3")
    a(f"s_add_u32 s{S_H}, s{S_H}, s{S_J}")
    a("s_waitcnt lgkmcnt(0)")

STAMPS = False
def stamp(a, idx):
    if not STAMPS: return
    a(f"s_memrealtime s[{60+2*idx}:{61+2*idx}]")
    a("s_waitcnt lgkmcnt(0)")
def cstamp(a, idx):
    if not STAMPS: return
    a(f"s_memtime s[{60+2*idx}:{61+2*idx}]")
    a("s_waitcnt lgkmcnt(0)")
def stamp_init(a):
    if not STAMPS: return
    for i in range(16): a(f"s_mov_b64 s[{60+2*i}:{61+2*i}], 0")
KIDX = 0
def stamp_flush(a):
    if not STAMPS: return
    a(f"s_add_u32 s92, s{P_WS}, {WS_STAMP + KIDX*256*8*16*8}")
    a(f"s_addc_u32 s93, s{P_WS+1}, 0")
    a("s_and_b32 s93, s93, 0xffff")
    a(f"s_mov_b32 s94, {256*8*16*8}")
    a("s_mov_b32 s95, 0x00020000")
    a("s_lshl_b32 s96, s2, 3")
    a(f"s_add_u32 s96, s96, s{S_WAVE}")
    a("s_lshl_b32 s96, s96, 7")
    a("v_mov_b32 v252, 0")
    for i in range(16):
        a(f"v_mov_b32 v250, s{60+2*i}")
        a(f"v_mov_b32 v251, s{61+2*i}")
        a(f"buffer_store_dwordx2 v[250:251], v252, s[92:95], s96 offen offset:{i*8}")
        a("s_nop 1")
    a("s_waitcnt vmcnt(0)")

L_WQ = 0
L_X = 65536
L_V = 131072
def L_K(w):
    return (L_WQ + 16384 + w * 8192) if w < 2 else (L_X + 16384 + (w - 2) * 8192)
NCH = 9

def dma(a, voff, srdb, soff, off=0, nt=False):
    a(f"buffer_load_dwordx4 v{voff}, s[{srdb}:{srdb+3}], s{soff} offen" + (f" offset:{off}" if off else "") + (" nt" if nt else "") + " lds")

def loader_ring(a, which):
    SRD = 32; SO = 40
    if which == 'wq':
        srd(a, SRD, P_WQ, SZ_W)
        a("v_lshrrev_b32 v1, 4, v0")
        a("v_and_b32 v2, 15, v0")
        a("v_lshlrev_b32 v3, 2, v1")
        a("v_xor_b32 v3, v3, v2")
        a("v_lshlrev_b32 v3, 4, v3")
        a("v_lshlrev_b32 v4, 13, v1")
        a("v_add_u32 v4, v4, v3")
        a(f"s_lshl_b32 s{SO}, s{S_H}, 8")
        def issue(kc):
            slot = kc % 4
            a(f"s_mov_b32 m0, {L_WQ + slot*16384}")
            for t in range(16):
                if t == 0: a("s_nop 0")
                dma(a, 4, SRD, SO)
                if kc == 0 and t in (0,1,3,7): stamp(a, {0:8,1:9,3:10,7:11}[t])
                a(f"s_add_u32 s{SO}, s{SO}, 32768")
                if t < 15:
                    a("s_add_u32 m0, m0, 1024")
                    a("s_nop 0")
    else:
        srd(a, SRD, P_X, SZ_X)
        a("v_lshrrev_b32 v1, 3, v0")
        a("v_mul_u32_u24 v1, 1152, v1")
        a("v_and_b32 v2, 7, v0")
        a("v_lshrrev_b32 v3, 4, v0")
        a("v_xor_b32 v2, v2, v3")
        a("v_lshlrev_b32 v4, 4, v2")
        a("v_add_u32 v4, v4, v1")
        a("v_xor_b32 v2, 4, v2")
        a("v_lshlrev_b32 v5, 4, v2")
        a("v_add_u32 v5, v5, v1")
        a(f"s_mul_i32 s{SO+1}, s{S_G}, 147456")
        def issue(kc):
            slot = kc % 4
            a(f"s_mov_b32 m0, {L_X + slot*16384}")
            a(f"s_add_u32 s{SO}, s{SO+1}, {kc*128}")
            for T in range(16):
                dma(a, 4 + (T & 1), SRD, SO)
                if kc == 0 and T in (0,1,3,7): stamp(a, {0:8,1:9,3:10,7:11}[T])
                if T < 15:
                    a("s_add_u32 m0, m0, 1024")
                    a(f"s_add_u32 s{SO}, s{SO}, 9216")
    stamp(a, 4)
    issue(0); stamp(a, 5); issue(1); issue(2)
    stamp(a, 6)
    a("s_waitcnt vmcnt(32)")
    stamp(a, 7)
    issue(3)
    stamp(a, 1)
    a("s_barrier")
    stamp(a, 2)
    a("s_waitcnt vmcnt(32)")
    a("s_barrier")
    for i in range(2, NCH):
        last_issued = min(i + 1, NCH - 1)
        n_after = (last_issued - i) * 16
        a(f"s_waitcnt vmcnt({n_after})")
        a("s_barrier")
        if i + 2 < NCH:
            issue(i + 2)
    stamp(a, 3)
    a("s_barrier")

def loader_k(a):
    SRD = 32; SRD2 = 36; SRD3 = 44; SO = 40
    srd(a, SRD, P_K, SZ_KV)
    srd(a, SRD2, P_WQ, SZ_W)
    srd(a, SRD3, P_X, SZ_X)
    a("v_lshrrev_b32 v1, 1, v0")
    a("v_and_b32 v2, 1, v0")
    a("v_lshlrev_b32 v1, 13, v1")
    a("v_lshl_add_u32 v1, v2, 7, v1")
    a(f"s_mul_i32 s{SO}, s{S_GL}, {80*8192}")
    a(f"s_lshl_b32 s{SO+1}, s{S_H}, 8")
    a(f"s_add_u32 s{SO}, s{SO}, s{SO+1}")
    a(f"s_add_u32 s{SO}, s{SO}, {256*8192}")
    for t in range(3):
        a(f"buffer_load_dword v10, v1, s[{SRD2}:{SRD2+3}], s{SO} offen")
        if t < 2: a(f"s_add_u32 s{SO}, s{SO}, {32*8192}")
    stamp(a, 4)
    a("v_lshrrev_b32 v2, 3, v0")
    a("v_mul_u32_u24 v2, 1152, v2")
    a("v_and_b32 v3, 7, v0")
    a("v_min_u32 v3, 4, v3")
    a("v_lshl_add_u32 v2, v3, 7, v2")
    a(f"s_mul_i32 s{SO}, s{S_G}, 147456")
    a(f"s_mul_i32 s{SO+1}, s{S_J}, {16*1152}")
    a(f"s_add_u32 s{SO}, s{SO}, s{SO+1}")
    a(f"s_add_u32 s{SO}, s{SO}, 512")
    a(f"buffer_load_dword v10, v2, s[{SRD3}:{SRD3+3}], s{SO} offen")
    a(f"s_add_u32 s{SO}, s{SO}, {8*1152}")
    a(f"buffer_load_dword v10, v2, s[{SRD3}:{SRD3+3}], s{SO} offen")
    stamp(a, 5)
    a("v_lshlrev_b32 v3, 7, v0")
    a(f"s_lshl_b32 s{SO}, s{S_G}, 7")
    a(f"s_add_u32 s{SO}, s{SO}, s{S_H}")
    a(f"s_lshl_b32 s{SO}, s{SO}, 13")
    a(f"s_mov_b32 s{SO+2}, s{SO}")
    for w in range(4):
        a(f"buffer_load_dword v10, v3, s[{SRD}:{SRD+3}], s{SO} offen")
        if w < 3: a(f"s_add_u32 s{SO}, s{SO}, {32*8192}")
    stamp(a, 6)
    a("v_lshrrev_b32 v1, 4, v0")
    a("v_and_b32 v2, 15, v0")
    a("v_xor_b32 v2, v2, v1")
    a("v_lshlrev_b32 v2, 4, v2")
    a("v_lshl_add_u32 v4, v1, 8, v2")
    a("v_xor_b32 v5, 64, v4")
    a("v_xor_b32 v6, 128, v4")
    a("v_xor_b32 v7, 192, v4")
    for i in range(8):
        a("s_barrier")
    a(f"s_mov_b32 s{SO}, s{SO+2}")
    for w in range(4):
        for hf in range(2):
            a(f"s_mov_b32 m0, {L_K(w) + hf*4096}")
            a("s_nop 0")
            for t4 in range(4):
                t = hf * 4 + t4
                dma(a, 4 + (t >> 1), SRD, SO, off=t4 * 1024)
            a(f"s_add_u32 s{SO}, s{SO}, {4096 if hf == 0 else 32*8192 - 4096}")
    a("s_barrier")
    a("s_waitcnt vmcnt(0)")
    stamp(a, 3)
    a("s_barrier")

def loader_v(a):
    SRD = 32; SO = 40
    srd(a, SRD, P_V, SZ_KV)
    a("v_lshrrev_b32 v1, 4, v0")
    a("v_and_b32 v2, 15, v0")
    a("v_lshlrev_b32 v3, 1, v1")
    a("v_xor_b32 v2, v2, v3")
    a("v_lshlrev_b32 v2, 4, v2")
    a("v_lshl_add_u32 v4, v1, 8, v2")
    a("v_xor_b32 v5, 128, v4")
    a(f"s_lshl_b32 s{SO}, s{S_G}, 7")
    a(f"s_add_u32 s{SO}, s{SO}, s{S_H}")
    a(f"s_lshl_b32 s{SO}, s{SO}, 13")
    for w in range(4):
        for hf in range(2):
            a(f"s_mov_b32 m0, {L_V + w*8192 + hf*4096}")
            a("s_nop 0")
            for t4 in range(4):
                t = hf * 4 + t4
                dma(a, 4 + ((t >> 1) & 1), SRD, SO, off=t4 * 1024, nt=True)
                if w == 0 and hf == 0 and t4 == 0: stamp(a, 4)
            if hf == 1: stamp(a, 5 + w)
            a(f"s_add_u32 s{SO}, s{SO}, {4096 if hf == 0 else 32*8192 - 4096}")
    for i in range(9):
        a("s_barrier")
    a("s_waitcnt vmcnt(0)")
    stamp(a, 3)
    a("s_barrier")

V_XA = 4
V_WA = 8
V_A = [16, 32]
V_B = [48, 52]
V_ACC = 64
V_QF = 128
V_KF = 160
V_S = 192
V_VF = 208
V_PF = 240
V_OF = 128
SC_SCALE = 0.08838834764831845 * 1.4426950408889634

import struct
def f32hex(x):
    return "0x%08x" % struct.unpack("<I", struct.pack("<f", x))[0]

def gemm1_addrs(a):
    a("v_and_b32 v1, 31, v0")
    a("v_lshrrev_b32 v2, 5, v0")
    a("v_bfe_u32 v3, v0, 1, 3")
    a("v_xor_b32 v2, v2, v3")
    a("v_lshlrev_b32 v2, 4, v2")
    a("v_lshl_add_u32 v2, v1, 7, v2")
    a(f"s_lshl_b32 s40, s{S_WAVE}, 12")
    a(f"s_add_u32 s40, s40, {L_X}")
    a("v_add_u32 v2, s40, v2")
    for ks in range(4):
        a(f"v_xor_b32 v{V_XA+ks}, {32*ks}, v2")
    a("v_bfe_u32 v1, v0, 2, 2")
    a("v_lshrrev_b32 v2, 5, v0")
    a("v_lshl_add_u32 v2, v2, 3, v1")
    a("v_lshlrev_b32 v2, 8, v2")
    a("v_and_b32 v3, 1, v0")
    a("v_lshl_add_u32 v2, v3, 5, v2")
    a("v_bfe_u32 v3, v0, 4, 1")
    a("v_lshl_add_u32 v2, v3, 4, v2")
    a("v_bfe_u32 v3, v0, 1, 1")
    a("v_lshl_add_u32 v2, v3, 3, v2")
    a("v_lshl_add_u32 v2, v1, 6, v2")
    for dt in range(4):
        a(f"v_xor_b32 v{V_WA+dt}, {64*dt}, v2")

def g1_reads(n):
    i, ks = divmod(n, 4)
    slot = i % 4
    st = n & 1
    r = [f"ds_read_b128 {vr(V_B[st],4)}, v{V_XA+ks} offset:{slot*16384}"]
    for dt in range(4):
        base = V_A[st] + 4 * dt
        off = L_WQ + slot * 16384 + ks * 4096
        r.append(f"ds_read_b64_tr_b16 {vr(base,2)}, v{V_WA+dt} offset:{off}")
        r.append(f"ds_read_b64_tr_b16 {vr(base+2,2)}, v{V_WA+dt} offset:{off+1024}")
    return r

def gemm1(a):
    NS = NCH * 4
    a("s_barrier")
    stamp(a, 1)
    for r in g1_reads(0): a(r)
    for n in range(NS):
        i, ks = divmod(n, 4)
        st = n & 1
        nxt = g1_reads(n + 1) if n + 1 < NS else []
        waits = [6, 7, 8, 9] if nxt else [6, 4, 2, 0]
        for dt in range(4):
            a(f"s_waitcnt lgkmcnt({waits[dt]})")
            c = "0" if n == 0 else vr(V_ACC + 16 * dt, 16)
            a(f"v_mfma_f32_32x32x16_bf16 {vr(V_ACC+16*dt,16)}, {vr(V_A[st]+4*dt,4)}, {vr(V_B[st],4)}, {c}")
            if dt == 0 and ks == 3 and i + 1 < NCH:
                a("s_barrier")
            if dt < 3:
                for r in nxt[3*dt:3*dt+3]: a(r)

def attention(a):
    a("s_barrier")
    stamp(a, 3)
    for ai in range(2):
        for st in range(4):
            a(f"ds_read_b128 {vr(V_KF+(ai*4+st)*4,4)}, v{12+st} offset:{ai*1024}")
    for dt in range(4):
        for i in range(8):
            a(f"v_cvt_pk_bf16_f32 v{V_QF+8*dt+i}, v{V_ACC+16*dt+2*i}, v{V_ACC+16*dt+2*i+1}")
    a("s_nop 1")
    for dt in range(4):
        for i in range(4):
            a(f"v_permlane16_swap_b32 v{V_QF+8*dt+i}, v{V_QF+8*dt+4+i}")
    a("s_waitcnt lgkmcnt(0)")
    def vreads(T):
        a(f"v_xor_b32 v1, {32*T}, v2") if T else None
        ad = "v1" if T else "v2"
        a(f"ds_read_b64_tr_b16 {vr(V_VF+4*T,2)}, {ad}")
        a(f"ds_read_b64_tr_b16 {vr(V_VF+4*T+2,2)}, {ad} offset:1024")
    for st in range(4):
        for ai in range(2):
            for qt in range(2):
                d = vr(V_S + (ai*2+qt)*4, 4)
                c = "0" if st == 0 else d
                a(f"v_mfma_f32_16x16x32_bf16 {d}, {vr(V_KF+(ai*4+st)*4,4)}, {vr(V_QF+8*st+4*qt,4)}, {c}")
    for T in range(8):
        vreads(T)
        if T == 3: a("s_waitcnt lgkmcnt(0)")
    def S(ai, qt, v): return V_S + (ai*2+qt)*4 + v
    M = [56, 57]; T_ = [58, 59]; SUM = [60, 61]
    a("s_nop 7")
    for qt in range(2):
        a(f"v_max3_f32 v{M[qt]}, v{S(0,qt,0)}, v{S(0,qt,1)}, v{S(0,qt,2)}")
    for qt in range(2):
        a(f"v_max3_f32 v{M[qt]}, v{M[qt]}, v{S(0,qt,3)}, v{S(1,qt,0)}")
    for qt in range(2):
        a(f"v_max3_f32 v{M[qt]}, v{M[qt]}, v{S(1,qt,1)}, v{S(1,qt,2)}")
    for qt in range(2):
        a(f"v_max_f32 v{M[qt]}, v{M[qt]}, v{S(1,qt,3)}")
    def xlane(regs, tmps, op):
        for sw in ("v_permlane16_swap_b32", "v_permlane32_swap_b32"):
            for qt in range(2):
                a(f"v_mov_b32 v{tmps[qt]}, v{regs[qt]}")
            a("s_nop 1")
            for qt in range(2):
                a(f"{sw} v{tmps[qt]}, v{regs[qt]}")
            a("s_nop 1")
            for qt in range(2):
                a(f"{op} v{regs[qt]}, v{regs[qt]}, v{tmps[qt]}")
    xlane(M, T_, "v_max_f32")
    a(f"s_mov_b32 s41, {f32hex(SC_SCALE)}")
    for qt in range(2):
        a(f"v_mul_f32 v{M[qt]}, s41, v{M[qt]}")
    for ai in range(2):
        for v in range(4):
            for qt in range(2):
                a(f"v_fma_f32 v{S(ai,qt,v)}, v{S(ai,qt,v)}, s41, -v{M[qt]}")
    for ai in range(2):
        for v in range(4):
            for qt in range(2):
                a(f"v_exp_f32 v{S(ai,qt,v)}, v{S(ai,qt,v)}")
    a("s_nop 0")
    for qt in range(2):
        a(f"v_add_f32 v{SUM[qt]}, v{S(0,qt,0)}, v{S(0,qt,1)}")
    for (ai, v) in [(0,2),(0,3),(1,0),(1,1),(1,2),(1,3)]:
        for qt in range(2):
            a(f"v_add_f32 v{SUM[qt]}, v{SUM[qt]}, v{S(ai,qt,v)}")
    xlane(SUM, T_, "v_add_f32")
    for qt in range(2):
        a(f"v_rcp_f32 v{SUM[qt]}, v{SUM[qt]}")
    a("s_nop 0")
    for ai in range(2):
        for v in range(4):
            for qt in range(2):
                a(f"v_mul_f32 v{S(ai,qt,v)}, v{S(ai,qt,v)}, v{SUM[qt]}")
    for qt in range(2):
        for ai in range(2):
            for h2 in range(2):
                a(f"v_cvt_pk_bf16_f32 v{V_PF+4*qt+2*ai+h2}, v{S(ai,qt,2*h2)}, v{S(ai,qt,2*h2+1)}")
    a("s_waitcnt lgkmcnt(0)")
    a("s_nop 1")
    for T in range(8):
        for qt in range(2):
            a(f"v_mfma_f32_16x16x32_bf16 {vr(V_ACC+(T*2+qt)*4,4)}, {vr(V_VF+4*T,4)}, {vr(V_PF+4*qt,4)}, 0")
    a("s_nop 7")
    for p in range(4):
        for qt in range(2):
            for e in range(2):
                T = 2*p + e
                for h2 in range(2):
                    src = V_ACC + (T*2+qt)*4 + 2*h2
                    a(f"v_cvt_pk_bf16_f32 v{V_OF+(2*p+qt)*4+2*e+h2}, v{src}, v{src+1}")

def attn_addrs(a):
    a("v_and_b32 v1, 15, v0")
    a("v_lshrrev_b32 v2, 4, v0")
    a("v_xor_b32 v2, v2, v1")
    a("v_lshlrev_b32 v2, 4, v2")
    a("v_lshrrev_b32 v3, 2, v1")
    a("v_lshl_add_u32 v2, v3, 11, v2")
    a("v_and_b32 v3, 3, v1")
    a("v_lshl_add_u32 v2, v3, 8, v2")
    a(f"s_lshl_b32 s40, s{S_WAVE}, 13")
    a(f"s_add_u32 s40, s40, {L_WQ + 16384}")
    a(f"s_cmp_ge_u32 s{S_WAVE}, 2")
    a(f"s_cselect_b32 s42, {L_X + 16384 - 16384 - (L_WQ + 16384)}, 0")
    a("s_add_u32 s40, s40, s42")
    a("v_add_u32 v2, s40, v2")
    for st in range(4):
        a(f"v_xor_b32 v{12+st}, {64*st}, v2")
    a("v_lshrrev_b32 v1, 4, v0")
    a("v_bfe_u32 v3, v0, 2, 2")
    a("v_lshl_add_u32 v2, v1, 3, v3")
    a("v_lshlrev_b32 v2, 8, v2")
    a("v_and_b32 v1, 1, v1")
    a("v_lshl_add_u32 v3, v1, 2, v3")
    a("v_lshl_add_u32 v2, v3, 5, v2")
    a("v_and_b32 v3, 3, v0")
    a("v_lshl_add_u32 v2, v3, 3, v2")
    a(f"s_lshl_b32 s40, s{S_WAVE}, 13")
    a(f"s_add_u32 s40, s40, {L_V}")
    a("v_add_u32 v2, s40, v2")

def kernel1(a):
    name = "mha_p1_kernel"
    prologue(a, name)
    stamp_init(a)
    stamp(a, 0)
    cstamp(a, 14)
    a(f"s_cmp_lt_u32 s{S_WAVE}, 4")
    a("s_cbranch_scc1 L_p1_compute")
    a(f"s_cmp_eq_u32 s{S_WAVE}, 4")
    a("s_cbranch_scc1 L_p1_ldwq")
    a(f"s_cmp_eq_u32 s{S_WAVE}, 5")
    a("s_cbranch_scc1 L_p1_ldx")
    a(f"s_cmp_eq_u32 s{S_WAVE}, 6")
    a("s_cbranch_scc1 L_p1_ldk")
    loader_v(a)
    stamp_flush(a); a("s_endpgm")
    a.label("L_p1_ldk"); loader_k(a); stamp_flush(a); a("s_endpgm")
    a.label("L_p1_ldx"); loader_ring(a, 'x'); stamp_flush(a); a("s_endpgm")
    a.label("L_p1_ldwq"); loader_ring(a, 'wq'); stamp_flush(a); a("s_endpgm")
    a.label("L_p1_compute")
    gemm1_addrs(a)
    attn_addrs(a)
    gemm1(a)
    stamp(a, 2)
    attention(a)
    stamp(a, 4)
    srd(a, 32, P_WS, SZ_WS_USED)
    a(f"s_lshl_b32 s40, s{S_G}, 5")
    a(f"s_add_u32 s40, s40, s{S_H}")
    a("s_lshl_b32 s40, s40, 2")
    a(f"s_add_u32 s40, s40, s{S_WAVE}")
    a("s_lshl_b32 s40, s40, 13")
    a("s_add_u32 s41, s40, 4096")
    a("v_lshlrev_b32 v1, 4, v0")
    for f in range(8):
        a(f"buffer_store_dwordx4 {vr(V_OF+4*f,4)}, v1, s[32:35], s{40 + f//4} offen offset:{(f%4)*1024}")
    a("s_waitcnt vmcnt(0)")
    stamp(a, 5)
    cstamp(a, 15)
    stamp_flush(a)
    a.label(f"L_end_{name}")
    a("s_endpgm")

W_SLOT = 18432
def p2_wo_voffs(a, vbase):
    for t in range(9):
        a(f"v_add_u32 v1, {64*t}, v0")
        a("v_mul_u32_u24 v2, 7282, v1")
        a("v_lshrrev_b32 v2, 16, v2")
        a("v_mul_u32_u24 v3, 9, v2")
        a("v_sub_u32 v3, v1, v3")
        a("v_lshlrev_b32 v3, 4, v3")
        a("v_and_b32 v20, 32, v2")
        a("v_and_b32 v21, 1, v2")
        a("v_lshl_add_u32 v20, v21, 4, v20")
        a("v_bfe_u32 v21, v2, 3, 2")
        a("v_lshl_add_u32 v20, v21, 2, v20")
        a("v_bfe_u32 v21, v2, 1, 2")
        a("v_add_u32 v20, v20, v21")
        a("v_mul_u32_u24 v20, 1152, v20")
        a(f"v_add_u32 v{vbase+t}, v20, v3")

def p2_loader(a):
    SRD = 32; SO = 40
    srd(a, SRD, P_WO, SZ_W)
    p2_wo_voffs(a, 4)
    a(f"s_sub_u32 s42, s{S_WAVE}, 4")
    a(f"s_mul_i32 s43, s{S_J}, 144")
    for rnd in range(2):
        a(f"s_add_u32 s44, s42, {4*rnd}")
        a(f"s_add_u32 s45, s44, s{S_J}")
        a("s_and_b32 s45, s45, 7")
        a(f"s_lshl_b32 s46, s{S_HO}, 3")
        a("s_add_u32 s45, s45, s46")
        a(f"s_mul_i32 s{SO}, s45, {128*1152}")
        a(f"s_add_u32 s{SO}, s{SO}, s43")
        a(f"s_mul_i32 s47, s44, {W_SLOT}")
        a("s_mov_b32 m0, s47")
        a("s_nop 0")
        for half in range(2):
            for t in range(9):
                dma(a, 4 + t, SRD, SO)
                if not (half == 1 and t == 8):
                    a("s_add_u32 m0, m0, 1024")
                    if t == 8: a(f"s_add_u32 s{SO}, s{SO}, {64*1152}")
                    else: a("s_nop 0")
    stamp(a, 1)
    a("s_waitcnt vmcnt(18)")
    stamp(a, 2)
    a("s_barrier")
    a("s_waitcnt vmcnt(0)")
    stamp(a, 3)
    a("s_barrier")

V2_ACC = 16
V2_A = [56, 76]
V2_B = [96, 128, 160]
V2_AD = [4, 5, 6]

def p2_areads(slot, p, st):
    r = []
    ad = V2_AD[slot // 3]
    for tau in range(5):
        off = (slot % 3) * W_SLOT + p * 4608 + (32 * tau if tau < 4 else 112)
        base = V2_A[st] + 4 * tau
        r.append(f"ds_read_b64_tr_b16 {vr(base,2)}, v{ad} offset:{off}")
        r.append(f"ds_read_b64_tr_b16 {vr(base+2,2)}, v{ad} offset:{off+144}")
    return r

def p2_bloads(a, slot, buf):
    a(f"s_add_u32 s45, s{S_J}, {slot}")
    a("s_and_b32 s45, s45, 7")
    a("s_add_u32 s45, s45, s44")
    a("s_lshl_b32 s45, s45, 2")
    a(f"s_add_u32 s45, s45, s{S_WAVE}")
    a("s_lshl_b32 s46, s45, 13")
    a("s_add_u32 s47, s46, 4096")
    for f in range(8):
        a(f"buffer_load_dwordx4 {vr(V2_B[buf]+4*f,4)}, v1, s[32:35], s{46 + f//4} offen offset:{(f%4)*1024}")

def p2_compute(a):
    srd(a, 32, P_WS, SZ_WS_USED)
    a(f"s_lshl_b32 s44, s{S_G}, 5")
    a(f"s_lshl_b32 s45, s{S_HO}, 3")
    a("s_add_u32 s44, s44, s45")
    a("v_lshrrev_b32 v2, 4, v0")
    a("v_bfe_u32 v3, v0, 2, 2")
    a("v_lshlrev_b32 v2, 3, v2")
    a("v_lshl_add_u32 v2, v3, 1, v2")
    a("v_mul_u32_u24 v2, 144, v2")
    a("v_and_b32 v3, 3, v0")
    a(f"v_lshl_add_u32 v{V2_AD[0]}, v3, 3, v2")
    a(f"v_add_u32 v{V2_AD[1]}, {3*W_SLOT}, v{V2_AD[0]}")
    a(f"v_add_u32 v{V2_AD[2]}, {6*W_SLOT}, v{V2_AD[0]}")
    a("v_lshlrev_b32 v1, 4, v0")
    for s in range(3): p2_bloads(a, s, s)
    stamp(a, 1)
    a("s_barrier")
    stamp(a, 2)
    steps = [(s, p) for s in range(8) for p in range(4)]
    for r in p2_areads(0, 0, 0): a(r)
    for n, (s, p) in enumerate(steps):
        st = n & 1
        buf = s % 3
        if p == 0:
            inflight_after = min(2, 7 - s) * 8
            a(f"s_waitcnt vmcnt({inflight_after})")
        nxt = p2_areads(*steps[n+1], (n+1) & 1) if n + 1 < len(steps) else []
        if nxt and steps[n+1] == (4, 0):
            pre_barrier = True
        else:
            pre_barrier = False
        issued = 0
        for tau in range(5):
            remaining_old = 10 - 2 * (tau + 1)
            a(f"s_waitcnt lgkmcnt({remaining_old + issued})")
            for qt in range(2):
                d = vr(V2_ACC + (tau*2+qt)*4, 4)
                c = "0" if n == 0 else d
                a(f"v_mfma_f32_16x16x32_bf16 {d}, {vr(V2_A[st]+4*tau,4)}, {vr(V2_B[buf]+(2*p+qt)*4,4)}, {c}")
            if tau == 0 and pre_barrier:
                a("s_barrier")
            if nxt:
                k = [2, 2, 2, 2, 2][tau]
                for r in nxt[issued:issued+k]: a(r)
                issued += k
        if p == 3 and s + 3 < 8:
            p2_bloads(a, s + 3, buf)
    stamp(a, 3)
    a("s_nop 7")
    a(f"s_lshl_b32 s45, s{S_HO}, 3")
    a(f"s_add_u32 s45, s45, s{S_G}")
    a("s_lshl_b32 s45, s45, 3")
    a(f"s_add_u32 s45, s45, s{S_J}")
    a("s_lshl_b32 s45, s45, 2")
    a(f"s_add_u32 s45, s45, s{S_WAVE}")
    a("s_mul_i32 s45, s45, 10240")
    a(f"s_add_u32 s45, s45, {WS_P}")
    for u in range(10):
        if u in (4, 8): a("s_add_u32 s45, s45, 4096")
        a(f"buffer_store_dwordx4 {vr(V2_ACC+4*u,4)}, v1, s[32:35], s45 offen offset:{(u%4)*1024}")

def kernel2(a):
    global KIDX
    KIDX = 1
    name = "mha_p2_kernel"
    prologue(a, name)
    stamp_init(a); stamp(a, 0); cstamp(a, 14)
    a(f"s_cmp_lt_u32 s{S_WAVE}, 4")
    a("s_cbranch_scc1 L_p2_compute")
    p2_loader(a)
    stamp_flush(a)
    a("s_endpgm")
    a.label("L_p2_compute")
    p2_compute(a)
    stamp(a, 4)
    if STAMPS: a("s_waitcnt vmcnt(0)")
    stamp(a, 5); cstamp(a, 15)
    stamp_flush(a)
    a.label(f"L_end_{name}")
    a("s_endpgm")

def kernel3(a):
    global KIDX
    KIDX = 2
    name = "mha_p3_kernel"
    prologue(a, name)
    stamp_init(a); stamp(a, 0); cstamp(a, 14)
    srd(a, 32, P_WS, SZ_WS_USED)
    srd(a, 36, P_OUT, SZ_OUT)
    a("v_lshlrev_b32 v1, 4, v0")
    a(f"s_lshl_b32 s45, s{S_G}, 3")
    a(f"s_add_u32 s45, s45, s{S_J}")
    a("s_lshl_b32 s45, s45, 2")
    a(f"s_add_u32 s45, s45, s{S_WAVE}")
    a("s_mul_i32 s45, s45, 10240")
    a(f"s_add_u32 s45, s45, {WS_P}")
    a("v_and_b32 v2, 15, v0")
    a("v_mul_u32_u24 v2, 1152, v2")
    a("v_lshrrev_b32 v3, 4, v0")
    a("v_lshl_add_u32 v2, v3, 3, v2")
    a(f"s_lshl_b32 s46, s{S_G}, 2")
    a(f"s_add_u32 s46, s46, s{S_WAVE}")
    a(f"s_mul_i32 s46, s46, {32*1152}")
    a(f"s_mul_i32 s47, s{S_J}, 144")
    a("s_add_u32 s46, s46, s47")
    for k in range(3):
        lab = f"L_p3_skip{k}"
        a(f"s_add_u32 s48, s{S_HO}, {4*k}")
        if k == 2:
            a("s_cmp_ge_u32 s48, 10")
            a(f"s_cbranch_scc1 {lab}")
        a("s_lshl_b32 s49, s48, 10")
        a("s_add_u32 s49, s49, s45")
        for pr in range(4):
            a(f"buffer_load_dwordx4 {vr(8+4*pr,4)}, v1, s[32:35], s49 offen")
            if pr < 3: a(f"s_add_u32 s49, s49, {8*8*4*10240}")
        a("s_and_b32 s50, s48, 1")
        a(f"s_mul_i32 s50, s50, {16*1152}")
        a("s_lshr_b32 s51, s48, 1")
        a("s_lshl_b32 s52, s51, 5")
        a("s_cmp_eq_u32 s51, 4")
        a("s_cselect_b32 s52, 112, s52")
        a("s_add_u32 s50, s50, s52")
        a("s_add_u32 s50, s50, s46")
        a("s_waitcnt vmcnt(0)")
        for v in range(4):
            a(f"v_add_f32 v{8+v}, v{8+v}, v{12+v}")
            a(f"v_add_f32 v{16+v}, v{16+v}, v{20+v}")
        for v in range(4):
            a(f"v_add_f32 v{8+v}, v{8+v}, v{16+v}")
        a("v_cvt_pk_bf16_f32 v8, v8, v9")
        a("v_cvt_pk_bf16_f32 v9, v10, v11")
        a(f"buffer_store_dwordx2 v[8:9], v2, s[36:39], s50 offen")
        a.label(lab)
    if STAMPS: a("s_waitcnt vmcnt(0)")
    stamp(a, 5); cstamp(a, 15)
    stamp_flush(a)
    a.label(f"L_end_{name}")
    a("s_endpgm")

def descriptor(a, name, vgpr, sgpr=102):
    a(f".amdhsa_kernel {name}")
    a(f".amdhsa_next_free_vgpr {vgpr}")
    a(f".amdhsa_next_free_sgpr {sgpr}")
    a(f".amdhsa_accum_offset {vgpr}")
    a(".amdhsa_group_segment_fixed_size 0")
    a(".amdhsa_kernarg_size 64")
    a(".amdhsa_user_sgpr_count 2")
    a(".amdhsa_user_sgpr_kernarg_segment_ptr 1")
    a(".amdhsa_system_sgpr_workgroup_id_x 1")
    a(".end_amdhsa_kernel")

HEADER = """; Kernarg layout (64 bytes): x, k_cache, v_cache, wq, wo, out, debug, ws
"""
def main():
    global STAMPS
    out = sys.argv[1]
    STAMPS = "--stamps" in sys.argv
    a = Asm()
    hdr = HEADER
    hdr += "; @launch kernel=mha_p1_kernel grid=(256,1,1) block=(512,1,1) lds=163840\n"
    hdr += "; @launch kernel=mha_p2_kernel grid=(256,1,1) block=(512,1,1) lds=147456\n"
    hdr += "; @launch kernel=mha_p3_kernel grid=(256,1,1) block=(256,1,1) lds=0\n"
    a('.amdgcn_target "amdgcn-amd-amdhsa--gfx950"')
    a(".text")
    kernel1(a); kernel2(a); kernel3(a)
    a('.section .rodata,"a"')
    a(".p2align 6")
    descriptor(a, "mha_p1_kernel", 256)
    a(".p2align 6")
    descriptor(a, "mha_p2_kernel", 256)
    a(".p2align 6")
    descriptor(a, "mha_p3_kernel", 256 if STAMPS else 64)
    open(out, "w").write(hdr + a.text())

if __name__ == "__main__":
    main()
```

```python
import sys, struct

class Asm:
    def __init__(self): self.l = []
    def __call__(self, s=""):
        for x in s.split("\n"):
            x = x.strip()
            self.l.append(x if (x.endswith(":") or x.startswith(".")) else "  " + x)
    def label(self, s): self.l.append(s + ":")
    def text(self): return "\n".join(self.l) + "\n"

def vr(b, n=1): return f"v{b}" if n == 1 else f"v[{b}:{b+n-1}]"
def f32hex(x): return "0x%08x" % struct.unpack("<I", struct.pack("<f", x))[0]

P_X, P_K, P_V, P_WQ, P_WO, P_OUT, P_DBG, P_WS = 16, 18, 20, 22, 24, 26, 28, 30
SZ_X, SZ_KV, SZ_W, SZ_OUT = 1179648, 8388608, 4718592, 1179648
WS_O = 0
WS_P = 8 << 20
WS_F = 28 << 20
WS_STAMP = 32 << 20
SZ_WS_USED = 64 << 20
S_WAVE, S_X, S_R, S_J, S_G, S_H = 3, 4, 5, 6, 9, 10

OPT = dict(stamps=False, o_sc1=1, spin_max=2000000, kvmode=1, k_nt=1, v_nt=1, wot_pos=7, pbf16=0)

def srd(a, base, ptr, size, add=0):
    if add:
        a(f"s_add_u32 s{base}, s{ptr}, {add}"); a(f"s_addc_u32 s{base+1}, s{ptr+1}, 0")
        a(f"s_and_b32 s{base+1}, s{base+1}, 0xffff")
    else:
        a(f"s_mov_b32 s{base}, s{ptr}"); a(f"s_and_b32 s{base+1}, s{ptr+1}, 0xffff")
    a(f"s_mov_b32 s{base+2}, {size}"); a(f"s_mov_b32 s{base+3}, 0x00020000")

def prologue(a, name, nwg=256):
    a(".p2align 8"); a(f".globl {name}"); a(f".type {name},@function"); a.label(name)
    a(f"s_cmp_ge_u32 s2, {nwg}"); a(f"s_cbranch_scc1 L_end_{name}")
    a("s_load_dwordx16 s[16:31], s[0:1], 0")
    a("v_lshrrev_b32 v1, 6, v0"); a("v_and_b32 v0, 63, v0")
    a(f"s_and_b32 s{S_X}, s2, 7"); a(f"s_lshr_b32 s{S_R}, s2, 3")
    a(f"v_readfirstlane_b32 s{S_WAVE}, v1")
    a(f"s_and_b32 s{S_J}, s{S_R}, 3"); a(f"s_lshr_b32 s{S_G}, s{S_R}, 2")
    a(f"s_lshl_b32 s{S_H}, s{S_X}, 2"); a(f"s_add_u32 s{S_H}, s{S_H}, s{S_J}")
    a("s_waitcnt lgkmcnt(0)")

KIDX = 0
def stamp(a, idx):
    if not OPT['stamps']: return
    a(f"s_memrealtime s[{60+2*idx}:{61+2*idx}]"); a("s_waitcnt lgkmcnt(0)")
def cstamp(a, idx):
    if not OPT['stamps']: return
    a(f"s_memtime s[{60+2*idx}:{61+2*idx}]"); a("s_waitcnt lgkmcnt(0)")
def stamp_init(a):
    if not OPT['stamps']: return
    for i in range(16): a(f"s_mov_b64 s[{60+2*i}:{61+2*i}], 0")
def stamp_flush(a, vb=250):
    if not OPT['stamps']: return
    srd(a, 92, P_WS, 256*16*16*8, add=WS_STAMP + KIDX*256*8*16*8)
    a("s_lshl_b32 s96, s2, 3"); a(f"s_add_u32 s96, s96, s{S_WAVE}"); a("s_lshl_b32 s96, s96, 7")
    a(f"v_mov_b32 v{vb+2}, 0")
    for i in range(16):
        a(f"v_mov_b32 v{vb}, s{60+2*i}"); a(f"v_mov_b32 v{vb+1}, s{61+2*i}")
        a(f"buffer_store_dwordx2 v[{vb}:{vb+1}], v{vb+2}, s[92:95], s96 offen offset:{i*8}")
        a("s_nop 1")
    a("s_waitcnt vmcnt(0)")

L_K = 98304; L_V = 131072; NCH = 9
W_SLOT = 36864

def dma(a, voff, srdb, soff, off=0, nt=False):
    a(f"buffer_load_dwordx4 v{voff}, s[{srdb}:{srdb+3}], s{soff} offen" + (f" offset:{off}" if off else "") + (" nt" if nt else "") + " lds")

V_WOV = 16
def wo_prep(a):
    srd(a, 52, P_WO, SZ_W)
    for t in range(9):
        a(f"v_add_u32 v1, {64*t}, v0")
        a("v_mul_u32_u24 v2, 3641, v1")
        a("v_lshrrev_b32 v2, 16, v2")
        a("v_mul_u32_u24 v3, 18, v2")
        a("v_sub_u32 v3, v1, v3")
        a("v_lshlrev_b32 v3, 4, v3")
        a("v_mul_u32_u24 v2, 1152, v2")
        a(f"v_add_u32 v{V_WOV+t}, v2, v3")
    a(f"s_mul_i32 s56, s{S_J}, 288")
def wo_issue(a, slot):
    a(f"s_add_u32 s57, s{S_J}, {slot}"); a("s_and_b32 s57, s57, 3")
    a(f"s_lshl_b32 s58, s{S_X}, 2"); a("s_add_u32 s57, s57, s58")
    a(f"s_mul_i32 s57, s57, {128*1152}"); a("s_add_u32 s57, s57, s56")
    a(f"s_mov_b32 m0, {slot*W_SLOT}"); a("s_nop 0")
    for blk in range(4):
        for t in range(9):
            dma(a, V_WOV + t, 52, 57)
            if not (blk == 3 and t == 8):
                a("s_add_u32 m0, m0, 1024")
                if t == 8: a(f"s_add_u32 s57, s57, {32*1152}")
                else: a("s_nop 0")

def loader_tail(a, slot, early, wait_before_b11=None):
    a("s_barrier")
    stamp(a, 8)
    if early: wo_issue(a, slot)
    if wait_before_b11 is not None: a(f"s_waitcnt vmcnt({wait_before_b11})")
    stamp(a, 9)
    a("s_barrier")
    a("s_barrier")
    if not early: wo_issue(a, slot)
    stamp(a, 10)
    if early: a("s_waitcnt vmcnt(0)")
    a("s_barrier")
    a("s_waitcnt vmcnt(0)")
    stamp(a, 11)
    a("s_barrier")

def loader_ring(a, which):
    SRD = 32; SO = 40
    if which == 'wq':
        srd(a, SRD, P_WQ, SZ_W)
        a("v_lshrrev_b32 v1, 4, v0"); a("v_and_b32 v2, 15, v0")
        a("v_lshlrev_b32 v3, 2, v1"); a("v_xor_b32 v3, v3, v2"); a("v_lshlrev_b32 v3, 4, v3")
        a("v_lshlrev_b32 v4, 13, v1"); a("v_add_u32 v4, v4, v3")
        a(f"s_lshl_b32 s{SO}, s{S_H}, 8")
        def issue(kc):
            a(f"s_mov_b32 m0, {(kc%3)*32768}")
            for t in range(16):
                if t == 0: a("s_nop 0")
                dma(a, 4, SRD, SO)
                a(f"s_add_u32 s{SO}, s{SO}, 32768")
                if t < 15:
                    a("s_add_u32 m0, m0, 1024"); a("s_nop 0")
    else:
        srd(a, SRD, P_X, SZ_X)
        a("v_lshrrev_b32 v1, 3, v0"); a("v_mul_u32_u24 v1, 1152, v1")
        a("v_and_b32 v2, 7, v0"); a("v_lshrrev_b32 v3, 4, v0"); a("v_xor_b32 v2, v2, v3")
        a("v_lshlrev_b32 v4, 4, v2"); a("v_add_u32 v4, v4, v1")
        a("v_xor_b32 v2, 4, v2"); a("v_lshlrev_b32 v5, 4, v2"); a("v_add_u32 v5, v5, v1")
        a(f"s_mul_i32 s{SO+1}, s{S_G}, 147456")
        def issue(kc):
            a(f"s_mov_b32 m0, {(kc%3)*32768 + 16384}")
            a(f"s_add_u32 s{SO}, s{SO+1}, {kc*128}")
            for T in range(16):
                dma(a, 4 + (T & 1), SRD, SO)
                if T < 15:
                    a("s_add_u32 m0, m0, 1024"); a(f"s_add_u32 s{SO}, s{SO}, 9216")
    if OPT.get('ring_after_touch', 1):
        a("s_barrier")
    issue(0); stamp(a, 1); issue(1); issue(2)
    stamp(a, 2)
    wo_prep(a)
    a("s_waitcnt vmcnt(32)")
    stamp(a, 3)
    a("s_barrier")
    for i in range(1, NCH):
        last_issued = min(i + 1, NCH - 1)
        a(f"s_waitcnt vmcnt({(last_issued - i) * 16})")
        a("s_barrier")
        if which == 'wq' and i in (1,2,3,4): stamp(a, {1:4,2:5,3:6,4:12}[i])
        if which == 'x' and i in (5,6,7,8): stamp(a, {5:4,6:5,7:6,8:12}[i])
        if i + 2 < NCH: issue(i + 2)
    stamp(a, 7)
    loader_tail(a, 0 if which == 'wq' else 1, True)

def kv_pos(a, sdst, which):
    m = OPT['kvmode']
    if m == 0:
        a(f"s_mov_b32 s{sdst}, 0")
    elif m == 1:
        a(f"s_lshl_b32 s{sdst}, s{S_J}, 1")
        if which == 'v': a(f"s_add_u32 s{sdst}, s{sdst}, 1")
    elif m == 2:
        a(f"s_mov_b32 s{sdst}, {6 if which == 'k' else 8}")
    elif m == 3:
        a(f"s_mov_b32 s{sdst}, s{S_G}")
        if which == 'v': a(f"s_add_u32 s{sdst}, s{sdst}, 1")
    elif m == 4:
        a(f"s_and_b32 s{sdst}, s{S_J}, 1"); a(f"s_lshl_b32 s{sdst}, s{sdst}, 2")
        if which == 'v': a(f"s_add_u32 s{sdst}, s{sdst}, 2")
    elif m == 5:
        a(f"s_lshl_b32 s{sdst}, s{S_J}, 1"); a(f"s_add_u32 s{sdst}, s{sdst}, {1 if which == 'k' else 2}")

def kv_loop(a, tag, issue_fn, extra_fn=None, extra_pos=None):
    a("s_mov_b32 s59, 0")
    a.label(f"L_{tag}_loop")
    a("s_cmp_lg_u32 s59, s43"); a(f"s_cbranch_scc1 L_{tag}_skip")
    stamp(a, 3)
    issue_fn()
    stamp(a, 4)
    a.label(f"L_{tag}_skip")
    if extra_fn is not None:
        a(f"s_cmp_lg_u32 s59, {extra_pos}"); a(f"s_cbranch_scc1 L_{tag}_skip2")
        extra_fn()
        a.label(f"L_{tag}_skip2")
    a("s_cmp_eq_u32 s59, 9"); a(f"s_cbranch_scc1 L_{tag}_done")
    a("s_barrier")
    a("s_add_u32 s59, s59, 1")
    a(f"s_branch L_{tag}_loop")
    a.label(f"L_{tag}_done")

def loader_k(a):
    SRD = 32; SRD2 = 36; SO = 40
    srd(a, SRD2, P_WQ, SZ_W); srd(a, SRD, P_K, SZ_KV)
    a("v_lshrrev_b32 v1, 1, v0"); a("v_and_b32 v2, 1, v0")
    a("v_lshlrev_b32 v1, 13, v1"); a("v_lshl_add_u32 v1, v2, 7, v1")
    a(f"s_lshl_b32 s{SO}, s{S_G}, {5+13}"); a(f"s_lshl_b32 s{SO+1}, s{S_H}, 8")
    a(f"s_add_u32 s{SO}, s{SO}, s{SO+1}")
    a(f"buffer_load_dword v10, v1, s[{SRD2}:{SRD2+3}], s{SO} offen")
    a(f"s_add_u32 s{SO}, s{SO}, {256*8192}")
    a(f"buffer_load_dword v10, v1, s[{SRD2}:{SRD2+3}], s{SO} offen")
    a(f"s_lshl_b32 s{SO}, s{S_G}, {3+13}"); a(f"s_add_u32 s{SO}, s{SO}, s{SO+1}")
    a(f"s_add_u32 s{SO}, s{SO}, {512*8192}")
    a("s_mov_b64 exec, 0xffff")
    a(f"buffer_load_dword v10, v1, s[{SRD2}:{SRD2+3}], s{SO} offen")
    a("s_mov_b64 exec, -1")
    if OPT.get('ring_after_touch', 1): a("s_barrier")
    stamp(a, 1)
    a("v_lshrrev_b32 v1, 4, v0"); a("v_and_b32 v2, 15, v0"); a("v_xor_b32 v2, v2, v1")
    a("v_lshlrev_b32 v2, 4, v2"); a("v_lshl_add_u32 v4, v1, 8, v2")
    a("v_xor_b32 v5, 64, v4"); a("v_xor_b32 v6, 128, v4"); a("v_xor_b32 v7, 192, v4")
    wo_prep(a)
    a("v_and_b32 v8, 15, v0"); a("v_mul_u32_u24 v8, 1152, v8")
    a("v_lshrrev_b32 v9, 4, v0"); a("v_lshl_add_u32 v9, v9, 7, v8")
    kv_pos(a, 43, 'k')
    def issue():
        a(f"s_lshl_b32 s{SO}, s{S_G}, 7"); a(f"s_add_u32 s{SO}, s{SO}, s{S_H}"); a(f"s_lshl_b32 s{SO}, s{SO}, 13")
        for w in range(4):
            for hf in range(2):
                a(f"s_mov_b32 m0, {L_K + w*8192 + hf*4096}"); a("s_nop 0")
                for t4 in range(4):
                    t = hf * 4 + t4
                    dma(a, 4 + (t >> 1), SRD, SO, off=t4 * 1024, nt=bool(OPT['k_nt']))
                a(f"s_add_u32 s{SO}, s{SO}, {4096 if hf == 0 else 32*8192 - 4096}")
    def wotouch():
        a(f"s_lshl_b32 s{SO}, s{S_X}, 5"); a(f"s_add_u32 s{SO}, s{SO}, s{S_R}")
        a(f"s_mul_i32 s{SO}, s{SO}, {16*1152}")
        a(f"buffer_load_dword v10, v9, s[52:55], s{SO} offen")
        a(f"buffer_load_dword v10, v9, s[52:55], s{SO} offen offset:512")
        a("s_mov_b64 exec, 0xffff")
        a(f"buffer_load_dword v10, v8, s[52:55], s{SO} offen offset:1024")
        a("s_mov_b64 exec, -1")
    kv_loop(a, "k", issue, wotouch, OPT['wot_pos'])
    a("s_waitcnt vmcnt(0)")
    stamp(a, 7)
    loader_tail(a, 2, False)

def loader_v(a):
    SRD = 32; SRD3 = 44; SO = 40
    srd(a, SRD3, P_X, SZ_X); srd(a, SRD, P_V, SZ_KV)
    a("v_and_b32 v1, 31, v0"); a("v_mul_u32_u24 v1, 1152, v1")
    a("v_lshrrev_b32 v2, 5, v0"); a("v_lshl_add_u32 v2, v2, 7, v1")
    a(f"s_mul_i32 s{SO}, s{S_G}, 147456"); a(f"s_mul_i32 s{SO+1}, s{S_J}, {32*1152}")
    a(f"s_add_u32 s{SO}, s{SO}, s{SO+1}")
    for t in range(4):
        a(f"buffer_load_dword v10, v2, s[{SRD3}:{SRD3+3}], s{SO} offen offset:{256*t}")
    a("s_mov_b64 exec, 0xffffffff")
    a(f"buffer_load_dword v10, v1, s[{SRD3}:{SRD3+3}], s{SO} offen offset:1024")
    a("s_mov_b64 exec, -1")
    if OPT.get('ring_after_touch', 1): a("s_barrier")
    stamp(a, 1)
    a("s_cmp_lg_u32 s2, 0"); a("s_cbranch_scc1 L_nononce")
    srd(a, 48, P_DBG, 256)
    a("s_memrealtime s[42:43]"); a("s_waitcnt lgkmcnt(0)")
    a("s_or_b32 s42, s42, 1")
    a("v_mov_b32 v8, s42"); a("v_mov_b32 v9, s43"); a("v_mov_b32 v1, 0")
    a("s_mov_b64 exec, 1")
    a("buffer_store_dwordx2 v[8:9], v1, s[48:51], 0 offen sc1")
    a("s_mov_b64 exec, -1")
    a.label("L_nononce")
    a("v_lshrrev_b32 v1, 4, v0"); a("v_and_b32 v2, 15, v0"); a("v_lshlrev_b32 v3, 1, v1")
    a("v_xor_b32 v2, v2, v3"); a("v_lshlrev_b32 v2, 4, v2"); a("v_lshl_add_u32 v4, v1, 8, v2")
    a("v_xor_b32 v5, 128, v4")
    wo_prep(a)
    kv_pos(a, 43, 'v')
    def issue():
        a(f"s_lshl_b32 s{SO}, s{S_G}, 7"); a(f"s_add_u32 s{SO}, s{SO}, s{S_H}"); a(f"s_lshl_b32 s{SO}, s{SO}, 13")
        for w in range(4):
            for hf in range(2):
                a(f"s_mov_b32 m0, {L_V + w*8192 + hf*4096}"); a("s_nop 0")
                for t4 in range(4):
                    t = hf * 4 + t4
                    dma(a, 4 + ((t >> 1) & 1), SRD, SO, off=t4 * 1024, nt=bool(OPT['v_nt']))
                a(f"s_add_u32 s{SO}, s{SO}, {4096 if hf == 0 else 32*8192 - 4096}")
    kv_loop(a, "v", issue)
    stamp(a, 7)
    loader_tail(a, 3, False, wait_before_b11=0)

V_XA = [4, 8]; V_WA = [12, 248]
V_A = [16, 32]; V_B = [48, 52]; V_ACC = 64
V_QF = 128; V_KF = 160; V_S = 192; V_VF = 208; V_PF = 240; V_OF = 128
V_KA = 56; V_VA = 60; V_NONCE = 62
SC_SCALE = 0.08838834764831845 * 1.4426950408889634

def gemm1_addrs(a):
    a("v_and_b32 v1, 31, v0"); a("v_lshrrev_b32 v2, 5, v0"); a("v_bfe_u32 v3, v0, 1, 3")
    a("v_xor_b32 v2, v2, v3"); a("v_lshlrev_b32 v2, 4, v2"); a("v_lshl_add_u32 v2, v1, 7, v2")
    a(f"s_lshl_b32 s40, s{S_WAVE}, 12"); a("s_add_u32 s40, s40, 16384")
    a("v_add_u32 v2, s40, v2")
    for ks in range(4):
        a(f"v_xor_b32 v{V_XA[0]+ks}, {32*ks}, v2"); a(f"v_add_u32 v{V_XA[1]+ks}, 65536, v{V_XA[0]+ks}")
    a("v_bfe_u32 v1, v0, 2, 2"); a("v_lshrrev_b32 v2, 5, v0"); a("v_lshl_add_u32 v2, v2, 3, v1")
    a("v_lshlrev_b32 v2, 8, v2"); a("v_and_b32 v3, 1, v0"); a("v_lshl_add_u32 v2, v3, 5, v2")
    a("v_bfe_u32 v3, v0, 4, 1"); a("v_lshl_add_u32 v2, v3, 4, v2")
    a("v_bfe_u32 v3, v0, 1, 1"); a("v_lshl_add_u32 v2, v3, 3, v2")
    a("v_lshl_add_u32 v2, v1, 6, v2")
    for dt in range(4):
        a(f"v_xor_b32 v{V_WA[0]+dt}, {64*dt}, v2"); a(f"v_add_u32 v{V_WA[1]+dt}, 65536, v{V_WA[0]+dt}")

def attn_addrs(a):
    a("v_and_b32 v1, 15, v0"); a("v_lshrrev_b32 v2, 4, v0"); a("v_xor_b32 v2, v2, v1")
    a("v_lshlrev_b32 v2, 4, v2"); a("v_lshrrev_b32 v3, 2, v1"); a("v_lshl_add_u32 v2, v3, 11, v2")
    a("v_and_b32 v3, 3, v1"); a("v_lshl_add_u32 v2, v3, 8, v2")
    a(f"s_lshl_b32 s40, s{S_WAVE}, 13"); a(f"s_add_u32 s40, s40, {L_K}")
    a("v_add_u32 v2, s40, v2")
    for st in range(4): a(f"v_xor_b32 v{V_KA+st}, {64*st}, v2")
    a("v_lshrrev_b32 v1, 4, v0"); a("v_bfe_u32 v3, v0, 2, 2"); a("v_lshl_add_u32 v2, v1, 3, v3")
    a("v_lshlrev_b32 v2, 8, v2"); a("v_and_b32 v1, 1, v1"); a("v_lshl_add_u32 v3, v1, 2, v3")
    a("v_lshl_add_u32 v2, v3, 5, v2"); a("v_and_b32 v3, 3, v0"); a("v_lshl_add_u32 v2, v3, 3, v2")
    a(f"s_lshl_b32 s40, s{S_WAVE}, 13"); a(f"s_add_u32 s40, s40, {L_V}")
    a(f"v_add_u32 v{V_VA}, s40, v2")

def g1_reads(n):
    i, ks = divmod(n, 4)
    slot = i % 3; st = n & 1; hs = 1 if slot == 2 else 0; so = (slot & 1) * 32768 if slot < 2 else 0
    r = [f"ds_read_b128 {vr(V_B[st],4)}, v{V_XA[hs]+ks} offset:{so}"]
    for dt in range(4):
        base = V_A[st] + 4 * dt
        off = so + ks * 4096
        r.append(f"ds_read_b64_tr_b16 {vr(base,2)}, v{V_WA[hs]+dt} offset:{off}")
        r.append(f"ds_read_b64_tr_b16 {vr(base+2,2)}, v{V_WA[hs]+dt} offset:{off+1024}")
    return r

def gemm1(a):
    NS = NCH * 4
    if OPT.get('ring_after_touch', 1): a("s_barrier")
    a("s_barrier")
    stamp(a, 1)
    for r in g1_reads(0): a(r)
    for n in range(NS):
        i, ks = divmod(n, 4); st = n & 1
        nxt = g1_reads(n + 1) if n + 1 < NS else []
        def mf(dt):
            c = "0" if n == 0 else vr(V_ACC + 16 * dt, 16)
            a(f"v_mfma_f32_32x32x16_bf16 {vr(V_ACC+16*dt,16)}, {vr(V_A[st]+4*dt,4)}, {vr(V_B[st],4)}, {c}")
        if ks == 3:
            for dt in range(4):
                a(f"s_waitcnt lgkmcnt({[6,4,2,0][dt]})")
                if dt == 3 and nxt:
                    a("s_barrier")
                    for r in nxt[:5]: a(r)
                mf(dt)
            for r in nxt[5:]: a(r)
        else:
            first_after_boundary = (ks == 0 and n > 0)
            for dt in range(4):
                a(f"s_waitcnt lgkmcnt({[6,7,8,9][dt]})")
                mf(dt)
                if dt < 3:
                    for r in nxt[3*dt:3*dt+3]: a(r)
        if n == 20:
            a(f"buffer_load_dwordx2 {vr(V_NONCE,2)}, v1, s[36:39], 0 offen sc1")

def attention(a):
    a("s_barrier")
    stamp(a, 3)
    for ai in range(2):
        for st in range(4):
            a(f"ds_read_b128 {vr(V_KF+(ai*4+st)*4,4)}, v{V_KA+st} offset:{ai*1024}")
    for dt in range(4):
        for i in range(8):
            a(f"v_cvt_pk_bf16_f32 v{V_QF+8*dt+i}, v{V_ACC+16*dt+2*i}, v{V_ACC+16*dt+2*i+1}")
    a("s_nop 1")
    for dt in range(4):
        for i in range(4):
            a(f"v_permlane16_swap_b32 v{V_QF+8*dt+i}, v{V_QF+8*dt+4+i}")
    a("s_waitcnt lgkmcnt(0)")
    for st in range(4):
        for ai in range(2):
            for qt in range(2):
                d = vr(V_S + (ai*2+qt)*4, 4)
                c = "0" if st == 0 else d
                a(f"v_mfma_f32_16x16x32_bf16 {d}, {vr(V_KF+(ai*4+st)*4,4)}, {vr(V_QF+8*st+4*qt,4)}, {c}")
    def S(ai, qt, v): return V_S + (ai*2+qt)*4 + v
    M = [48, 49]; T_ = [50, 51]; SUM = [52, 53]
    a("s_nop 7")
    for qt in range(2): a(f"v_max3_f32 v{M[qt]}, v{S(0,qt,0)}, v{S(0,qt,1)}, v{S(0,qt,2)}")
    for qt in range(2): a(f"v_max3_f32 v{M[qt]}, v{M[qt]}, v{S(0,qt,3)}, v{S(1,qt,0)}")
    for qt in range(2): a(f"v_max3_f32 v{M[qt]}, v{M[qt]}, v{S(1,qt,1)}, v{S(1,qt,2)}")
    for qt in range(2): a(f"v_max_f32 v{M[qt]}, v{M[qt]}, v{S(1,qt,3)}")
    def xlane(regs, tmps, op):
        for sw in ("v_permlane16_swap_b32", "v_permlane32_swap_b32"):
            for qt in range(2): a(f"v_mov_b32 v{tmps[qt]}, v{regs[qt]}")
            a("s_nop 1")
            for qt in range(2): a(f"{sw} v{tmps[qt]}, v{regs[qt]}")
            a("s_nop 1")
            for qt in range(2): a(f"{op} v{regs[qt]}, v{regs[qt]}, v{tmps[qt]}")
    xlane(M, T_, "v_max_f32")
    a(f"s_mov_b32 s41, {f32hex(SC_SCALE)}")
    for qt in range(2): a(f"v_mul_f32 v{M[qt]}, s41, v{M[qt]}")
    for ai in range(2):
        for v in range(4):
            for qt in range(2): a(f"v_fma_f32 v{S(ai,qt,v)}, v{S(ai,qt,v)}, s41, -v{M[qt]}")
    for ai in range(2):
        for v in range(4):
            for qt in range(2): a(f"v_exp_f32 v{S(ai,qt,v)}, v{S(ai,qt,v)}")
    a("s_nop 0")
    for qt in range(2): a(f"v_add_f32 v{SUM[qt]}, v{S(0,qt,0)}, v{S(0,qt,1)}")
    for (ai, v) in [(0,2),(0,3),(1,0),(1,1),(1,2),(1,3)]:
        for qt in range(2): a(f"v_add_f32 v{SUM[qt]}, v{SUM[qt]}, v{S(ai,qt,v)}")
    xlane(SUM, T_, "v_add_f32")
    for qt in range(2): a(f"v_rcp_f32 v{SUM[qt]}, v{SUM[qt]}")
    a("s_nop 0")
    for ai in range(2):
        for v in range(4):
            for qt in range(2): a(f"v_mul_f32 v{S(ai,qt,v)}, v{S(ai,qt,v)}, v{SUM[qt]}")
    for qt in range(2):
        for ai in range(2):
            for h2 in range(2):
                a(f"v_cvt_pk_bf16_f32 v{V_PF+4*qt+2*ai+h2}, v{S(ai,qt,2*h2)}, v{S(ai,qt,2*h2+1)}")
    stamp(a, 4)
    a("s_barrier")
    for T in range(8):
        if T: a(f"v_xor_b32 v1, {32*T}, v{V_VA}")
        ad = "v1" if T else f"v{V_VA}"
        a(f"ds_read_b64_tr_b16 {vr(V_VF+4*T,2)}, {ad}")
        a(f"ds_read_b64_tr_b16 {vr(V_VF+4*T+2,2)}, {ad} offset:1024")
        if T == 5: a("s_waitcnt lgkmcnt(4)")
    a("s_waitcnt lgkmcnt(0)")
    a("s_barrier")
    for T in range(8):
        for qt in range(2):
            a(f"v_mfma_f32_16x16x32_bf16 {vr(V_ACC+(T*2+qt)*4,4)}, {vr(V_VF+4*T,4)}, {vr(V_PF+4*qt,4)}, 0")
    a("s_nop 7")
    for p in range(4):
        for qt in range(2):
            for e in range(2):
                T = 2*p + e
                for h2 in range(2):
                    src = V_ACC + (T*2+qt)*4 + 2*h2
                    a(f"v_cvt_pk_bf16_f32 v{V_OF+(2*p+qt)*4+2*e+h2}, v{src}, v{src+1}")

V2_ACC = 16
V2_A = [88, 108]
V2_AD = [4, 5, 6, 12]
BUF = [160, 192, 224]

def p2_areads(slot, p, half):
    r = []
    ad = V2_AD[slot]
    taus = range(0, 5) if half == 0 else range(5, 9)
    for k, tau in enumerate(taus):
        off = p * 32 * 288 + 32 * tau
        base = V2_A[half] + 4 * k
        r.append(f"ds_read_b64_tr_b16 {vr(base,2)}, v{ad} offset:{off}")
        r.append(f"ds_read_b64_tr_b16 {vr(base+2,2)}, v{ad} offset:{off+16*288}")
    return r

def p2_bloads(a, slot, breg):
    a(f"s_add_u32 s45, s{S_J}, {slot}"); a("s_and_b32 s45, s45, 3"); a("s_add_u32 s45, s45, s44")
    a("s_lshl_b32 s45, s45, 2"); a(f"s_add_u32 s45, s45, s{S_WAVE}")
    a("s_lshl_b32 s46, s45, 13"); a("s_add_u32 s47, s46, 4096")
    sc = " sc1" if OPT['o_sc1'] else ""
    for f in range(8):
        a(f"buffer_load_dwordx4 {vr(breg+4*f,4)}, v7, s[32:35], s{46 + f//4} offen offset:{(f%4)*1024}{sc}")

def exchange(a):
    srd(a, 32, P_WS, SZ_WS_USED)
    a("v_lshlrev_b32 v7, 4, v0")
    a(f"s_lshl_b32 s40, s{S_G}, 5"); a(f"s_add_u32 s40, s40, s{S_H}"); a("s_lshl_b32 s40, s40, 2")
    a(f"s_add_u32 s40, s40, s{S_WAVE}"); a("s_lshl_b32 s40, s40, 13"); a("s_add_u32 s41, s40, 4096")
    sc = " sc1" if OPT['o_sc1'] else ""
    for f in range(8):
        a(f"buffer_store_dwordx4 {vr(V_OF+4*f,4)}, v7, s[32:35], s{40 + f//4} offen offset:{(f%4)*1024}{sc}")
    a("v_lshrrev_b32 v2, 4, v0"); a("v_bfe_u32 v3, v0, 2, 2"); a("v_lshl_add_u32 v2, v2, 2, v3")
    a("v_mul_u32_u24 v2, 288, v2"); a("v_and_b32 v3, 3, v0")
    a(f"v_lshl_add_u32 v{V2_AD[0]}, v3, 3, v2")
    for sl in range(1, 4): a(f"v_add_u32 v{V2_AD[sl]}, {sl*W_SLOT}, v{V2_AD[0]}")
    a(f"s_lshl_b32 s44, s{S_G}, 5"); a(f"s_lshl_b32 s45, s{S_X}, 2"); a("s_add_u32 s44, s44, s45")
    a(f"s_lshl_b32 s48, s{S_G}, 3"); a(f"s_add_u32 s48, s48, s{S_X}"); a("s_lshl_b32 s48, s48, 2")
    a(f"s_add_u32 s48, s48, s{S_WAVE}"); a("s_lshl_b32 s48, s48, 7"); a(f"s_add_u32 s48, s48, {WS_F}")
    a(f"s_lshl_b32 s49, s{S_J}, 3"); a("s_add_u32 s49, s49, s48")
    a("v_and_b32 v8, 3, v0"); a("v_lshlrev_b32 v8, 3, v8")
    a("v_mov_b32 v9, 0")
    a("s_waitcnt vmcnt(0)")
    stamp(a, 6)
    a("s_mov_b32 s50, 0")
    a.label("L_nonce_chk")
    a(f"v_readfirstlane_b32 s51, v{V_NONCE}"); a("s_nop 0")
    a("s_cmp_lg_u32 s51, 0"); a("s_cbranch_scc1 L_nonce_ok")
    a(f"buffer_load_dwordx2 {vr(V_NONCE,2)}, v9, s[36:39], 0 offen sc1")
    a("s_add_u32 s50, s50, 1"); a("s_waitcnt vmcnt(0)")
    a(f"s_cmp_lt_u32 s50, {OPT['spin_max']}"); a("s_cbranch_scc1 L_nonce_chk")
    a.label("L_nonce_ok")
    a("s_mov_b64 exec, 1")
    a(f"buffer_store_dwordx2 {vr(V_NONCE,2)}, v9, s[32:35], s49 offen{sc}")
    a("s_mov_b64 exec, -1")
    a("s_mov_b32 s50, 0")
    a.label("L_poll")
    a("buffer_load_dwordx2 v[10:11], v8, s[32:35], s48 offen sc1")
    a("s_add_u32 s50, s50, 1"); a("s_waitcnt vmcnt(0)")
    a(f"v_cmp_eq_u64 vcc, v[10:11], {vr(V_NONCE,2)}")
    a(f"s_cmp_ge_u32 s50, {OPT['spin_max']}"); a("s_cbranch_scc1 L_poll_done")
    a("s_cmp_eq_u64 vcc, -1"); a("s_cbranch_scc0 L_poll")
    a.label("L_poll_done")
    stamp(a, 7)
    for s in (1, 2, 3): p2_bloads(a, s, BUF[s - 1])

def phase2(a):
    a("s_barrier")
    stamp(a, 8)
    hs = [(s, p, hf) for s in range(4) for p in range(4) for hf in range(2)]
    for r in p2_areads(*hs[0]): a(r)
    for n, (s, p, hf) in enumerate(hs):
        breg = V_OF if s == 0 else BUF[s - 1]
        if p == 0 and hf == 0 and s >= 1: a(f"s_waitcnt vmcnt({(3 - s) * 8})")
        nxt = p2_areads(*hs[n+1]) if n + 1 < len(hs) else []
        pre_barrier = bool(nxt) and hs[n+1] == (2, 0, 0)
        taus = list(range(0, 5)) if hf == 0 else list(range(5, 9))
        nown = 2 * len(taus)
        plan = [2, 2, 2, 2, 0] if hf == 0 else [3, 3, 2, 2]
        issued = 0
        for k, tau in enumerate(taus):
            a(f"s_waitcnt lgkmcnt({nown - 2 * (k + 1) + issued})")
            for qt in range(2):
                d = vr(V2_ACC + (tau*2+qt)*4, 4)
                c = "0" if (s == 0 and p == 0) else d
                a(f"v_mfma_f32_16x16x32_bf16 {d}, {vr(V2_A[hf]+4*k,4)}, {vr(breg+(2*p+qt)*4,4)}, {c}")
            if k == 0 and pre_barrier: a("s_barrier")
            if nxt:
                for r in nxt[issued:issued+plan[k]]: a(r)
                issued = min(len(nxt), issued + plan[k])
    stamp(a, 9)
    a("s_nop 7")
    a(f"s_lshl_b32 s45, s{S_X}, 3"); a(f"s_add_u32 s45, s45, s{S_G}"); a("s_lshl_b32 s45, s45, 2")
    a(f"s_add_u32 s45, s45, s{S_J}"); a("s_lshl_b32 s45, s45, 2"); a(f"s_add_u32 s45, s45, s{S_WAVE}")
    a(f"s_mul_i32 s45, s45, {18*1024}"); a(f"s_add_u32 s45, s45, {WS_P}")
    for u in range(18):
        if u and u % 4 == 0: a("s_add_u32 s45, s45, 4096")
        a(f"buffer_store_dwordx4 {vr(V2_ACC+4*u,4)}, v7, s[32:35], s45 offen offset:{(u%4)*1024}")

def kernelA(a):
    global KIDX
    KIDX = 0
    name = "mha_a_kernel"
    prologue(a, name)
    stamp_init(a); stamp(a, 0); cstamp(a, 14)
    a(f"s_cmp_lt_u32 s{S_WAVE}, 4"); a("s_cbranch_scc1 L_a_compute")
    a(f"s_cmp_eq_u32 s{S_WAVE}, 6"); a("s_cbranch_scc1 L_a_ldk")
    a(f"s_cmp_eq_u32 s{S_WAVE}, 4"); a("s_cbranch_scc1 L_a_ldwq")
    a(f"s_cmp_eq_u32 s{S_WAVE}, 5"); a("s_cbranch_scc1 L_a_ldx")
    loader_v(a); stamp_flush(a); a("s_endpgm")
    a.label("L_a_ldk"); loader_k(a); stamp_flush(a); a("s_endpgm")
    a.label("L_a_ldwq"); loader_ring(a, 'wq'); stamp_flush(a); a("s_endpgm")
    a.label("L_a_ldx"); loader_ring(a, 'x'); stamp_flush(a); a("s_endpgm")
    a.label("L_a_compute")
    srd(a, 36, P_DBG, 256)
    gemm1_addrs(a); attn_addrs(a)
    a("v_mov_b32 v1, 0")
    gemm1(a); stamp(a, 2)
    attention(a); stamp(a, 5)
    exchange(a)
    phase2(a)
    if OPT['stamps']: a("s_waitcnt vmcnt(0)")
    stamp(a, 10); cstamp(a, 15); stamp_flush(a)
    a.label(f"L_end_{name}")
    a("s_endpgm")

def kernel3(a):
    global KIDX
    KIDX = 1
    name = "mha_p3_kernel"
    a(".p2align 8"); a(f".globl {name}"); a(f".type {name},@function"); a.label(name)
    a("s_cmp_ge_u32 s2, 256"); a(f"s_cbranch_scc1 L_end_{name}")
    a("s_load_dwordx16 s[16:31], s[0:1], 0")
    a("v_lshrrev_b32 v1, 6, v0"); a("v_and_b32 v0, 63, v0")
    a("s_lshr_b32 s5, s2, 1")
    a("s_and_b32 s6, s2, 1")
    a(f"v_readfirstlane_b32 s{S_WAVE}, v1")
    a("s_mul_i32 s6, s6, 9")
    a("s_waitcnt lgkmcnt(0)")
    stamp_init(a); stamp(a, 0); cstamp(a, 14)
    a(f"s_add_u32 s6, s6, s{S_WAVE}")
    srd(a, 32, P_WS, SZ_WS_USED); srd(a, 36, P_OUT, SZ_OUT)
    a("v_lshlrev_b32 v1, 4, v0")
    a("s_mul_i32 s45, s5, 18"); a("s_add_u32 s45, s45, s6"); a("s_lshl_b32 s45, s45, 10")
    a(f"s_add_u32 s45, s45, {WS_P}")
    for x in range(8):
        a(f"buffer_load_dwordx4 {vr(8+4*x,4)}, v1, s[32:35], s45 offen")
        if x < 7: a(f"s_add_u32 s45, s45, {128*18*1024}")
    a("v_and_b32 v2, 15, v0"); a("v_mul_u32_u24 v2, 1152, v2"); a("v_lshrrev_b32 v3, 4, v0")
    a("v_lshl_add_u32 v2, v3, 3, v2")
    a("s_lshr_b32 s46, s5, 4"); a("s_lshl_b32 s46, s46, 2"); a("s_and_b32 s47, s5, 3"); a("s_add_u32 s46, s46, s47")
    a(f"s_mul_i32 s46, s46, {32*1152}")
    a("s_lshr_b32 s47, s5, 2"); a("s_and_b32 s47, s47, 3"); a("s_mul_i32 s47, s47, 288"); a("s_add_u32 s46, s46, s47")
    a("s_and_b32 s47, s6, 1"); a(f"s_mul_i32 s47, s47, {16*1152}"); a("s_add_u32 s46, s46, s47")
    a("s_lshr_b32 s47, s6, 1"); a("s_lshl_b32 s47, s47, 5"); a("s_add_u32 s46, s46, s47")
    a("s_waitcnt vmcnt(0)")
    for v in range(4):
        for x in range(0, 8, 2): a(f"v_add_f32 v{8+4*x+v}, v{8+4*x+v}, v{12+4*x+v}")
    for v in range(4):
        a(f"v_add_f32 v{8+v}, v{8+v}, v{16+v}"); a(f"v_add_f32 v{24+v}, v{24+v}, v{32+v}")
    for v in range(4): a(f"v_add_f32 v{8+v}, v{8+v}, v{24+v}")
    a("v_cvt_pk_bf16_f32 v8, v8, v9"); a("v_cvt_pk_bf16_f32 v9, v10, v11")
    a("buffer_store_dwordx2 v[8:9], v2, s[36:39], s46 offen")
    if OPT['stamps']:
        a("s_waitcnt vmcnt(0)")
        stamp(a, 10); cstamp(a, 15)
        a(f"s_cmp_ge_u32 s{S_WAVE}, 8"); a("s_cbranch_scc1 L_end_mha_p3_kernel")
        stamp_flush(a, 44)
    a.label(f"L_end_{name}")
    a("s_endpgm")

def descriptor(a, name, vgpr, sgpr=102):
    a(f".amdhsa_kernel {name}")
    a(f".amdhsa_next_free_vgpr {vgpr}"); a(f".amdhsa_next_free_sgpr {sgpr}"); a(f".amdhsa_accum_offset {vgpr}")
    a(".amdhsa_group_segment_fixed_size 0"); a(".amdhsa_kernarg_size 64")
    a(".amdhsa_user_sgpr_count 2"); a(".amdhsa_user_sgpr_kernarg_segment_ptr 1")
    a(".amdhsa_system_sgpr_workgroup_id_x 1"); a(".end_amdhsa_kernel")

def main():
    out = sys.argv[1]
    for arg in sys.argv[2:]:
        if arg == "--stamps": OPT['stamps'] = True
        elif "=" in arg:
            k, v = arg.lstrip("-").split("="); OPT[k] = int(v)
    a = Asm()
    hdr = "; MHA block (Q-proj + attention + out-proj), generated by gen3.py\n"
    hdr += "; @launch kernel=mha_a_kernel grid=(256,1,1) block=(512,1,1) lds=163840\n"
    hdr += "; @launch kernel=mha_p3_kernel grid=(256,1,1) block=(576,1,1) lds=0\n"
    a('.amdgcn_target "amdgcn-amd-amdhsa--gfx950"'); a(".text")
    kernelA(a); kernel3(a)
    a('.section .rodata,"a"'); a(".p2align 6"); descriptor(a, "mha_a_kernel", 256)
    a(".p2align 6"); descriptor(a, "mha_p3_kernel", 48)
    open(out, "w").write(hdr + a.text())

if __name__ == "__main__": main()
```

```python
import sys, struct

class Asm:
    def __init__(self): self.l = []
    def __call__(self, s=""):
        for x in s.split("\n"):
            x = x.strip()
            self.l.append(x if (x.endswith(":") or x.startswith(".")) else "  " + x)
    def label(self, s): self.l.append(s + ":")
    def text(self): return "\n".join(self.l) + "\n"

def vr(b, n=1): return f"v{b}" if n == 1 else f"v[{b}:{b+n-1}]"
def f32hex(x): return "0x%08x" % struct.unpack("<I", struct.pack("<f", x))[0]

P_X, P_K, P_V, P_WQ, P_WO, P_OUT, P_DBG, P_WS = 16, 18, 20, 22, 24, 26, 28, 30
SZ_X, SZ_KV, SZ_W, SZ_OUT = 1179648, 8388608, 4718592, 1179648
WS_O = 0
WS_P = 8 << 20
WS_F = 28 << 20
WS_F2 = (28 << 20) + (1 << 19)
WS_D = 8 << 20
WS_STAMP = 32 << 20
SZ_WS_USED = 64 << 20
S_WAVE, S_X, S_R, S_J, S_G, S_H = 3, 4, 5, 6, 9, 10

OPT = dict(stamps=False, fast=1, spin_max=2000000, kvmode=2, k_nt=1, v_nt=1, wot_pos=7, dk=1)

def srd(a, base, ptr, size, add=0):
    if add:
        a(f"s_add_u32 s{base}, s{ptr}, {add}"); a(f"s_addc_u32 s{base+1}, s{ptr+1}, 0")
        a(f"s_and_b32 s{base+1}, s{base+1}, 0xffff")
    else:
        a(f"s_mov_b32 s{base}, s{ptr}"); a(f"s_and_b32 s{base+1}, s{ptr+1}, 0xffff")
    a(f"s_mov_b32 s{base+2}, {size}"); a(f"s_mov_b32 s{base+3}, 0x00020000")

def prologue(a, name, nwg=256):
    a(".p2align 8"); a(f".globl {name}"); a(f".type {name},@function"); a.label(name)
    a(f"s_cmp_ge_u32 s2, {nwg}"); a(f"s_cbranch_scc1 L_end_{name}")
    a("s_load_dwordx16 s[16:31], s[0:1], 0")
    a("v_lshrrev_b32 v1, 6, v0"); a("v_and_b32 v0, 63, v0")
    a(f"s_and_b32 s{S_X}, s2, 7"); a(f"s_lshr_b32 s{S_R}, s2, 3")
    a(f"v_readfirstlane_b32 s{S_WAVE}, v1")
    a(f"s_and_b32 s{S_J}, s{S_R}, 3"); a(f"s_lshr_b32 s{S_G}, s{S_R}, 2")
    a(f"s_lshl_b32 s{S_H}, s{S_X}, 2"); a(f"s_add_u32 s{S_H}, s{S_H}, s{S_J}")
    a("s_waitcnt lgkmcnt(0)")

KIDX = 0
CUR = {}
def tstamp(a, idx):
    if OPT.get('tailstamps', 0): stamp(a, idx, force=True)
def stamp(a, idx, force=False):
    if not OPT['stamps']: return
    if OPT.get('tailstamps', 0) and not force and idx in (1,2,3,4,13) and CUR.get('compute'): return
    a(f"s_memrealtime s[{60+2*idx}:{61+2*idx}]"); a("s_waitcnt lgkmcnt(0)")
def cstamp(a, idx):
    if not OPT['stamps']: return
    a(f"s_memtime s[{60+2*idx}:{61+2*idx}]"); a("s_waitcnt lgkmcnt(0)")
def stamp_init(a):
    if not OPT['stamps']: return
    for i in range(16): a(f"s_mov_b64 s[{60+2*i}:{61+2*i}], 0")
def stamp_flush(a, vb=250):
    if not OPT['stamps']: return
    srd(a, 92, P_WS, 256*16*16*8, add=WS_STAMP + KIDX*256*8*16*8)
    a("s_lshl_b32 s96, s2, 3"); a(f"s_add_u32 s96, s96, s{S_WAVE}"); a("s_lshl_b32 s96, s96, 7")
    a(f"v_mov_b32 v{vb+2}, 0")
    for i in range(16):
        a(f"v_mov_b32 v{vb}, s{60+2*i}"); a(f"v_mov_b32 v{vb+1}, s{61+2*i}")
        a(f"buffer_store_dwordx2 v[{vb}:{vb+1}], v{vb+2}, s[92:95], s96 offen offset:{i*8}")
        a("s_nop 1")
    a("s_waitcnt vmcnt(0)")

L_K = 98304; L_V = 131072; NCH = 9
W_SLOT = 36864

def dma(a, voff, srdb, soff, off=0, nt=False):
    a(f"buffer_load_dwordx4 v{voff}, s[{srdb}:{srdb+3}], s{soff} offen" + (f" offset:{off}" if off else "") + (" nt" if nt else "") + " lds")

V_WOV = 16
def wo_prep(a):
    srd(a, 52, P_WO, SZ_W)
    for t in range(9):
        a(f"v_add_u32 v1, {64*t}, v0")
        a("v_mul_u32_u24 v2, 3641, v1")
        a("v_lshrrev_b32 v2, 16, v2")
        a("v_mul_u32_u24 v3, 18, v2")
        a("v_sub_u32 v3, v1, v3")
        a("v_lshlrev_b32 v3, 4, v3")
        a("v_mul_u32_u24 v2, 1152, v2")
        a(f"v_add_u32 v{V_WOV+t}, v2, v3")
    a(f"s_mul_i32 s56, s{S_J}, 288")
def wo_issue(a, slot, half):
    a(f"s_add_u32 s57, s{S_J}, {slot}"); a("s_and_b32 s57, s57, 3")
    a(f"s_lshl_b32 s58, s{S_X}, 2"); a("s_add_u32 s57, s57, s58")
    a(f"s_mul_i32 s57, s57, {128*1152}"); a("s_add_u32 s57, s57, s56")
    if half: a(f"s_add_u32 s57, s57, {64*1152}")
    a(f"s_mov_b32 m0, {slot*W_SLOT + half*64*288}"); a("s_nop 0")
    for blk in range(2):
        for t in range(9):
            dma(a, V_WOV + t, 52, 57)
            if not (blk == 1 and t == 8):
                a("s_add_u32 m0, m0, 1024")
                if t == 8: a(f"s_add_u32 s57, s57, {32*1152}")
                else: a("s_nop 0")

def loader_tail(a, role):
    a("s_barrier")
    stamp(a, 8)
    if role < 2:
        wo_issue(a, 0, role); wo_issue(a, 1, role)
    if role == 3: a("s_waitcnt vmcnt(0)")
    stamp(a, 9)
    a("s_barrier")
    if role < 2: a("s_waitcnt vmcnt(18)")
    a("s_barrier")
    if role < 2: wo_issue(a, 2, role)
    else: wo_issue(a, 3, role - 2)
    stamp(a, 10)
    if role < 2: a("s_waitcnt vmcnt(18)")
    a("s_barrier")
    a("s_waitcnt vmcnt(0)")
    stamp(a, 11)
    a("s_barrier")

def loader_ring(a, which):
    SRD = 32; SO = 40
    if which == 'wq':
        srd(a, SRD, P_WQ, SZ_W)
        a("v_lshrrev_b32 v1, 4, v0"); a("v_and_b32 v2, 15, v0")
        a("v_lshlrev_b32 v3, 2, v1"); a("v_xor_b32 v3, v3, v2"); a("v_lshlrev_b32 v3, 4, v3")
        a("v_lshlrev_b32 v4, 13, v1"); a("v_add_u32 v4, v4, v3")
        a(f"s_lshl_b32 s{SO}, s{S_H}, 8")
        def issue(kc):
            a(f"s_mov_b32 m0, {(kc%3)*32768}")
            for t in range(16):
                if t == 0: a("s_nop 0")
                dma(a, 4, SRD, SO)
                a(f"s_add_u32 s{SO}, s{SO}, 32768")
                if t < 15:
                    a("s_add_u32 m0, m0, 1024"); a("s_nop 0")
    else:
        srd(a, SRD, P_X, SZ_X)
        a("v_lshrrev_b32 v1, 3, v0"); a("v_mul_u32_u24 v1, 1152, v1")
        a("v_and_b32 v2, 7, v0"); a("v_lshrrev_b32 v3, 4, v0"); a("v_xor_b32 v2, v2, v3")
        a("v_lshlrev_b32 v4, 4, v2"); a("v_add_u32 v4, v4, v1")
        a("v_xor_b32 v2, 4, v2"); a("v_lshlrev_b32 v5, 4, v2"); a("v_add_u32 v5, v5, v1")
        a(f"s_mul_i32 s{SO+1}, s{S_G}, 147456")
        def issue(kc):
            a(f"s_mov_b32 m0, {(kc%3)*32768 + 16384}")
            a(f"s_add_u32 s{SO}, s{SO+1}, {kc*128}")
            for T in range(16):
                dma(a, 4 + (T & 1), SRD, SO)
                if T < 15:
                    a("s_add_u32 m0, m0, 1024"); a(f"s_add_u32 s{SO}, s{SO}, 9216")
    if OPT.get('ring_after_touch', 1):
        a("s_barrier")
    issue(0); stamp(a, 1); issue(1); issue(2)
    stamp(a, 2)
    a("s_waitcnt vmcnt(32)")
    stamp(a, 3)
    a("s_barrier")
    for i in range(1, NCH):
        last_issued = min(i + 1, NCH - 1)
        a(f"s_waitcnt vmcnt({(last_issued - i) * 16})")
        a("s_barrier")
        if which == 'wq' and i in (1,2,3,4): stamp(a, {1:4,2:5,3:6,4:12}[i])
        if which == 'x' and i in (5,6,7,8): stamp(a, {5:4,6:5,7:6,8:12}[i])
        if i + 2 < NCH: issue(i + 2)
        if i == 7: wo_prep(a)
    stamp(a, 7)
    loader_tail(a, 0 if which == 'wq' else 1)

def kv_pos(a, sdst, which):
    m = OPT['kvmode']
    if m == 0:
        a(f"s_mov_b32 s{sdst}, 0")
    elif m == 1:
        a(f"s_lshl_b32 s{sdst}, s{S_J}, 1")
        if which == 'v': a(f"s_add_u32 s{sdst}, s{sdst}, 1")
    elif m == 2:
        a(f"s_mov_b32 s{sdst}, {6 if which == 'k' else 8}")
    elif m == 3:
        a(f"s_mov_b32 s{sdst}, s{S_G}")
        if which == 'v': a(f"s_add_u32 s{sdst}, s{sdst}, 1")
    elif m == 4:
        a(f"s_and_b32 s{sdst}, s{S_J}, 1"); a(f"s_lshl_b32 s{sdst}, s{sdst}, 2")
        if which == 'v': a(f"s_add_u32 s{sdst}, s{sdst}, 2")
    elif m == 5:
        a(f"s_lshl_b32 s{sdst}, s{S_J}, 1"); a(f"s_add_u32 s{sdst}, s{sdst}, {1 if which == 'k' else 2}")

def kv_loop(a, tag, issue_fn, extra_fn=None, extra_pos=None):
    a("s_mov_b32 s59, 0")
    a.label(f"L_{tag}_loop")
    a("s_cmp_lg_u32 s59, s43"); a(f"s_cbranch_scc1 L_{tag}_skip")
    stamp(a, 3)
    issue_fn()
    stamp(a, 4)
    a.label(f"L_{tag}_skip")
    if extra_fn is not None:
        a(f"s_cmp_lg_u32 s59, {extra_pos}"); a(f"s_cbranch_scc1 L_{tag}_skip2")
        extra_fn()
        a.label(f"L_{tag}_skip2")
    a("s_cmp_eq_u32 s59, 9"); a(f"s_cbranch_scc1 L_{tag}_done")
    a("s_barrier")
    a("s_add_u32 s59, s59, 1")
    a(f"s_branch L_{tag}_loop")
    a.label(f"L_{tag}_done")

def loader_k(a):
    SRD = 32; SRD2 = 36; SO = 40
    srd(a, SRD2, P_WQ, SZ_W); srd(a, SRD, P_K, SZ_KV)
    a("v_lshrrev_b32 v1, 1, v0"); a("v_and_b32 v2, 1, v0")
    a("v_lshlrev_b32 v1, 13, v1"); a("v_lshl_add_u32 v1, v2, 7, v1")
    a(f"s_lshl_b32 s{SO}, s{S_G}, {5+13}"); a(f"s_lshl_b32 s{SO+1}, s{S_H}, 8")
    a(f"s_add_u32 s{SO}, s{SO}, s{SO+1}")
    a(f"buffer_load_dword v10, v1, s[{SRD2}:{SRD2+3}], s{SO} offen")
    a(f"s_add_u32 s{SO}, s{SO}, {256*8192}")
    a(f"buffer_load_dword v10, v1, s[{SRD2}:{SRD2+3}], s{SO} offen")
    a(f"s_lshl_b32 s{SO}, s{S_G}, {3+13}"); a(f"s_add_u32 s{SO}, s{SO}, s{SO+1}")
    a(f"s_add_u32 s{SO}, s{SO}, {512*8192}")
    a("s_mov_b64 exec, 0xffff")
    a(f"buffer_load_dword v10, v1, s[{SRD2}:{SRD2+3}], s{SO} offen")
    a("s_mov_b64 exec, -1")
    if OPT.get('ring_after_touch', 1): a("s_barrier")
    stamp(a, 1)
    a("v_lshrrev_b32 v1, 4, v0"); a("v_and_b32 v2, 15, v0"); a("v_xor_b32 v2, v2, v1")
    a("v_lshlrev_b32 v2, 4, v2"); a("v_lshl_add_u32 v4, v1, 8, v2")
    a("v_xor_b32 v5, 64, v4"); a("v_xor_b32 v6, 128, v4"); a("v_xor_b32 v7, 192, v4")
    wo_prep(a)
    a("v_and_b32 v8, 15, v0"); a("v_mul_u32_u24 v8, 1152, v8")
    a("v_lshrrev_b32 v9, 4, v0"); a("v_lshl_add_u32 v9, v9, 7, v8")
    kv_pos(a, 43, 'k')
    def issue():
        a(f"s_lshl_b32 s{SO}, s{S_G}, 7"); a(f"s_add_u32 s{SO}, s{SO}, s{S_H}"); a(f"s_lshl_b32 s{SO}, s{SO}, 13")
        for w in range(4):
            for hf in range(2):
                a(f"s_mov_b32 m0, {L_K + w*8192 + hf*4096}"); a("s_nop 0")
                for t4 in range(4):
                    t = hf * 4 + t4
                    dma(a, 4 + (t >> 1), SRD, SO, off=t4 * 1024, nt=bool(OPT['k_nt']))
                a(f"s_add_u32 s{SO}, s{SO}, {4096 if hf == 0 else 32*8192 - 4096}")
    def wotouch():
        a(f"s_lshl_b32 s{SO}, s{S_X}, 5"); a(f"s_add_u32 s{SO}, s{SO}, s{S_R}")
        a(f"s_mul_i32 s{SO}, s{SO}, {16*1152}")
        a(f"buffer_load_dword v10, v9, s[52:55], s{SO} offen")
        a(f"buffer_load_dword v10, v9, s[52:55], s{SO} offen offset:512")
        a("s_mov_b64 exec, 0xffff")
        a(f"buffer_load_dword v10, v8, s[52:55], s{SO} offen offset:1024")
        a("s_mov_b64 exec, -1")
    kv_loop(a, "k", issue, wotouch, OPT['wot_pos'])
    a("s_waitcnt vmcnt(0)")
    stamp(a, 7)
    loader_tail(a, 2)

def loader_v(a):
    SRD = 32; SRD3 = 44; SO = 40
    srd(a, SRD3, P_X, SZ_X); srd(a, SRD, P_V, SZ_KV)
    a("v_and_b32 v1, 31, v0"); a("v_mul_u32_u24 v1, 1152, v1")
    a("v_lshrrev_b32 v2, 5, v0"); a("v_lshl_add_u32 v2, v2, 7, v1")
    a(f"s_mul_i32 s{SO}, s{S_G}, 147456"); a(f"s_mul_i32 s{SO+1}, s{S_J}, {32*1152}")
    a(f"s_add_u32 s{SO}, s{SO}, s{SO+1}")
    for t in range(4):
        a(f"buffer_load_dword v10, v2, s[{SRD3}:{SRD3+3}], s{SO} offen offset:{256*t}")
    a("s_mov_b64 exec, 0xffffffff")
    a(f"buffer_load_dword v10, v1, s[{SRD3}:{SRD3+3}], s{SO} offen offset:1024")
    a("s_mov_b64 exec, -1")
    if OPT.get('ring_after_touch', 1): a("s_barrier")
    stamp(a, 1)
    a("s_cmp_lg_u32 s2, 0"); a("s_cbranch_scc1 L_nononce")
    srd(a, 48, P_DBG, 256)
    a("s_memrealtime s[42:43]"); a("s_waitcnt lgkmcnt(0)")
    a("s_or_b32 s42, s42, 1")
    a("v_mov_b32 v8, s42"); a("v_mov_b32 v9, s43"); a("v_mov_b32 v1, 0")
    a("s_mov_b64 exec, 1")
    a("buffer_store_dwordx2 v[8:9], v1, s[48:51], 0 offen sc1")
    a("s_mov_b64 exec, -1")
    a.label("L_nononce")
    if OPT['fast']:
        srd(a, 48, P_DBG, 256)
        a("s_getreg_b32 s42, hwreg(HW_REG_XCC_ID)")
        a("s_and_b32 s42, s42, 15")
        a("s_cmp_ge_u32 s42, 8"); a("s_cbranch_scc1 L_noxcc")
        a("s_mul_i32 s43, s42, s42"); a("s_lshl_b32 s43, s43, 5"); a("s_add_u32 s42, s42, s43")
        a("s_add_u32 s42, s42, 0x2000")
        a(f"s_lshl_b32 s43, s{S_G}, 3"); a(f"s_add_u32 s43, s43, s{S_X}")
        a("s_and_b32 s41, s43, 1"); a("s_lshl_b32 s41, s41, 4"); a("s_lshl_b32 s42, s42, s41")
        a("s_lshr_b32 s43, s43, 1"); a("s_lshl_b32 s43, s43, 2"); a("s_add_u32 s43, s43, 128")
        a("v_mov_b32 v8, s42"); a("v_mov_b32 v1, 0")
        a("s_mov_b64 exec, 1")
        a("buffer_atomic_add v8, v1, s[48:51], s43 offen")
        a("s_mov_b64 exec, -1")
        a.label("L_noxcc")
    a("v_lshrrev_b32 v1, 4, v0"); a("v_and_b32 v2, 15, v0"); a("v_lshlrev_b32 v3, 1, v1")
    a("v_xor_b32 v2, v2, v3"); a("v_lshlrev_b32 v2, 4, v2"); a("v_lshl_add_u32 v4, v1, 8, v2")
    a("v_xor_b32 v5, 128, v4")
    wo_prep(a)
    kv_pos(a, 43, 'v')
    def issue():
        a(f"s_lshl_b32 s{SO}, s{S_G}, 7"); a(f"s_add_u32 s{SO}, s{SO}, s{S_H}"); a(f"s_lshl_b32 s{SO}, s{SO}, 13")
        for w in range(4):
            for hf in range(2):
                a(f"s_mov_b32 m0, {L_V + w*8192 + hf*4096}"); a("s_nop 0")
                for t4 in range(4):
                    t = hf * 4 + t4
                    dma(a, 4 + ((t >> 1) & 1), SRD, SO, off=t4 * 1024, nt=bool(OPT['v_nt']))
                a(f"s_add_u32 s{SO}, s{SO}, {4096 if hf == 0 else 32*8192 - 4096}")
    kv_loop(a, "v", issue)
    stamp(a, 7)
    loader_tail(a, 3)

V_XA = [4, 8]; V_WA = [12, 248]
V_A = [16, 32]; V_B = [48, 52]; V_ACC = 64
V_QF = 128; V_KF = 160; V_S = 192; V_VF = 208; V_PF = 240; V_OF = 128
V_KA = 56; V_VA = 60; V_CLW = 61; V_NONCE = 62
SC_SCALE = 0.08838834764831845 * 1.4426950408889634

def gemm1_addrs(a):
    a("v_and_b32 v1, 31, v0"); a("v_lshrrev_b32 v2, 5, v0"); a("v_bfe_u32 v3, v0, 1, 3")
    a("v_xor_b32 v2, v2, v3"); a("v_lshlrev_b32 v2, 4, v2"); a("v_lshl_add_u32 v2, v1, 7, v2")
    a(f"s_lshl_b32 s40, s{S_WAVE}, 12"); a("s_add_u32 s40, s40, 16384")
    a("v_add_u32 v2, s40, v2")
    for ks in range(4):
        a(f"v_xor_b32 v{V_XA[0]+ks}, {32*ks}, v2"); a(f"v_add_u32 v{V_XA[1]+ks}, 65536, v{V_XA[0]+ks}")
    a("v_bfe_u32 v1, v0, 2, 2"); a("v_lshrrev_b32 v2, 5, v0"); a("v_lshl_add_u32 v2, v2, 3, v1")
    a("v_lshlrev_b32 v2, 8, v2"); a("v_and_b32 v3, 1, v0"); a("v_lshl_add_u32 v2, v3, 5, v2")
    a("v_bfe_u32 v3, v0, 4, 1"); a("v_lshl_add_u32 v2, v3, 4, v2")
    a("v_bfe_u32 v3, v0, 1, 1"); a("v_lshl_add_u32 v2, v3, 3, v2")
    a("v_lshl_add_u32 v2, v1, 6, v2")
    for dt in range(4):
        a(f"v_xor_b32 v{V_WA[0]+dt}, {64*dt}, v2"); a(f"v_add_u32 v{V_WA[1]+dt}, 65536, v{V_WA[0]+dt}")

def attn_addrs(a):
    a("v_and_b32 v1, 15, v0"); a("v_lshrrev_b32 v2, 4, v0"); a("v_xor_b32 v2, v2, v1")
    a("v_lshlrev_b32 v2, 4, v2"); a("v_lshrrev_b32 v3, 2, v1"); a("v_lshl_add_u32 v2, v3, 11, v2")
    a("v_and_b32 v3, 3, v1"); a("v_lshl_add_u32 v2, v3, 8, v2")
    a(f"s_lshl_b32 s40, s{S_WAVE}, 13"); a(f"s_add_u32 s40, s40, {L_K}")
    a("v_add_u32 v2, s40, v2")
    for st in range(4): a(f"v_xor_b32 v{V_KA+st}, {64*st}, v2")
    a("v_lshrrev_b32 v1, 4, v0"); a("v_bfe_u32 v3, v0, 2, 2"); a("v_lshl_add_u32 v2, v1, 3, v3")
    a("v_lshlrev_b32 v2, 8, v2"); a("v_and_b32 v1, 1, v1"); a("v_lshl_add_u32 v3, v1, 2, v3")
    a("v_lshl_add_u32 v2, v3, 5, v2"); a("v_and_b32 v3, 3, v0"); a("v_lshl_add_u32 v2, v3, 3, v2")
    a(f"s_lshl_b32 s40, s{S_WAVE}, 13"); a(f"s_add_u32 s40, s40, {L_V}")
    a(f"v_add_u32 v{V_VA}, s40, v2")

def g1_reads(n):
    i, ks = divmod(n, 4)
    slot = i % 3; st = n & 1; hs = 1 if slot == 2 else 0; so = (slot & 1) * 32768 if slot < 2 else 0
    r = [f"ds_read_b128 {vr(V_B[st],4)}, v{V_XA[hs]+ks} offset:{so}"]
    for dt in range(4):
        base = V_A[st] + 4 * dt
        off = so + ks * 4096
        r.append(f"ds_read_b64_tr_b16 {vr(base,2)}, v{V_WA[hs]+dt} offset:{off}")
        r.append(f"ds_read_b64_tr_b16 {vr(base+2,2)}, v{V_WA[hs]+dt} offset:{off+1024}")
    return r

def gemm1(a):
    NS = NCH * 4
    if OPT.get('ring_after_touch', 1): a("s_barrier")
    a("s_barrier")
    stamp(a, 1)
    for r in g1_reads(0): a(r)
    for n in range(NS):
        i, ks = divmod(n, 4); st = n & 1
        nxt = g1_reads(n + 1) if n + 1 < NS else []
        def mf(dt):
            c = "0" if n == 0 else vr(V_ACC + 16 * dt, 16)
            a(f"v_mfma_f32_32x32x16_bf16 {vr(V_ACC+16*dt,16)}, {vr(V_A[st]+4*dt,4)}, {vr(V_B[st],4)}, {c}")
        if ks == 3:
            for dt in range(4):
                a(f"s_waitcnt lgkmcnt({[6,4,2,0][dt]})")
                if dt == 3 and nxt:
                    a("s_barrier")
                    for r in nxt[:5]: a(r)
                mf(dt)
            for r in nxt[5:]: a(r)
        else:
            first_after_boundary = (ks == 0 and n > 0)
            for dt in range(4):
                a(f"s_waitcnt lgkmcnt({[6,7,8,9][dt]})")
                mf(dt)
                if dt < 3:
                    for r in nxt[3*dt:3*dt+3]: a(r)
        if n == 24:
            a(f"buffer_load_dwordx2 {vr(V_NONCE,2)}, v1, s[36:39], 0 offen sc1")
            if OPT['fast']: a(f"buffer_load_dword v{V_CLW}, v1, s[36:39], s40 offen sc1")

def attention(a):
    a("s_barrier")
    stamp(a, 3)
    for ai in range(2):
        for st in range(4):
            a(f"ds_read_b128 {vr(V_KF+(ai*4+st)*4,4)}, v{V_KA+st} offset:{ai*1024}")
    for dt in range(4):
        for i in range(8):
            a(f"v_cvt_pk_bf16_f32 v{V_QF+8*dt+i}, v{V_ACC+16*dt+2*i}, v{V_ACC+16*dt+2*i+1}")
    a("s_nop 1")
    for dt in range(4):
        for i in range(4):
            a(f"v_permlane16_swap_b32 v{V_QF+8*dt+i}, v{V_QF+8*dt+4+i}")
    a("s_waitcnt lgkmcnt(0)")
    for st in range(4):
        for ai in range(2):
            for qt in range(2):
                d = vr(V_S + (ai*2+qt)*4, 4)
                c = "0" if st == 0 else d
                a(f"v_mfma_f32_16x16x32_bf16 {d}, {vr(V_KF+(ai*4+st)*4,4)}, {vr(V_QF+8*st+4*qt,4)}, {c}")
    def S(ai, qt, v): return V_S + (ai*2+qt)*4 + v
    M = [48, 49]; T_ = [50, 51]; SUM = [52, 53]
    a("s_nop 7")
    for qt in range(2): a(f"v_max3_f32 v{M[qt]}, v{S(0,qt,0)}, v{S(0,qt,1)}, v{S(0,qt,2)}")
    for qt in range(2): a(f"v_max3_f32 v{M[qt]}, v{M[qt]}, v{S(0,qt,3)}, v{S(1,qt,0)}")
    for qt in range(2): a(f"v_max3_f32 v{M[qt]}, v{M[qt]}, v{S(1,qt,1)}, v{S(1,qt,2)}")
    for qt in range(2): a(f"v_max_f32 v{M[qt]}, v{M[qt]}, v{S(1,qt,3)}")
    def xlane(regs, tmps, op):
        for sw in ("v_permlane16_swap_b32", "v_permlane32_swap_b32"):
            for qt in range(2): a(f"v_mov_b32 v{tmps[qt]}, v{regs[qt]}")
            a("s_nop 1")
            for qt in range(2): a(f"{sw} v{tmps[qt]}, v{regs[qt]}")
            a("s_nop 1")
            for qt in range(2): a(f"{op} v{regs[qt]}, v{regs[qt]}, v{tmps[qt]}")
    xlane(M, T_, "v_max_f32")
    a(f"s_mov_b32 s41, {f32hex(SC_SCALE)}")
    for qt in range(2): a(f"v_mul_f32 v{M[qt]}, s41, v{M[qt]}")
    for ai in range(2):
        for v in range(4):
            for qt in range(2): a(f"v_fma_f32 v{S(ai,qt,v)}, v{S(ai,qt,v)}, s41, -v{M[qt]}")
    for ai in range(2):
        for v in range(4):
            for qt in range(2): a(f"v_exp_f32 v{S(ai,qt,v)}, v{S(ai,qt,v)}")
    a("s_nop 0")
    for qt in range(2): a(f"v_add_f32 v{SUM[qt]}, v{S(0,qt,0)}, v{S(0,qt,1)}")
    for (ai, v) in [(0,2),(0,3),(1,0),(1,1),(1,2),(1,3)]:
        for qt in range(2): a(f"v_add_f32 v{SUM[qt]}, v{SUM[qt]}, v{S(ai,qt,v)}")
    xlane(SUM, T_, "v_add_f32")
    for qt in range(2): a(f"v_rcp_f32 v{SUM[qt]}, v{SUM[qt]}")
    a("s_nop 0")
    for ai in range(2):
        for v in range(4):
            for qt in range(2): a(f"v_mul_f32 v{S(ai,qt,v)}, v{S(ai,qt,v)}, v{SUM[qt]}")
    for qt in range(2):
        for ai in range(2):
            for h2 in range(2):
                a(f"v_cvt_pk_bf16_f32 v{V_PF+4*qt+2*ai+h2}, v{S(ai,qt,2*h2)}, v{S(ai,qt,2*h2+1)}")
    stamp(a, 4)
    a("s_barrier")
    for T in range(8):
        if T: a(f"v_xor_b32 v1, {32*T}, v{V_VA}")
        ad = "v1" if T else f"v{V_VA}"
        a(f"ds_read_b64_tr_b16 {vr(V_VF+4*T,2)}, {ad}")
        a(f"ds_read_b64_tr_b16 {vr(V_VF+4*T+2,2)}, {ad} offset:1024")
        if T == 5: a("s_waitcnt lgkmcnt(4)")
    a("s_waitcnt lgkmcnt(0)")
    a("s_barrier")
    for T in range(8):
        for qt in range(2):
            a(f"v_mfma_f32_16x16x32_bf16 {vr(V_ACC+(T*2+qt)*4,4)}, {vr(V_VF+4*T,4)}, {vr(V_PF+4*qt,4)}, 0")
    a("s_nop 7")
    for p in range(4):
        for qt in range(2):
            for e in range(2):
                T = 2*p + e
                for h2 in range(2):
                    src = V_ACC + (T*2+qt)*4 + 2*h2
                    a(f"v_cvt_pk_bf16_f32 v{V_OF+(2*p+qt)*4+2*e+h2}, v{src}, v{src+1}")

V2_ACC = 16
V2_A = [88, 108]
V2_AD = [4, 5, 6, 12]
BUF = [160, 192, 224]

def p2_areads(slot, p, half):
    r = []
    ad = V2_AD[slot]
    taus = range(0, 5) if half == 0 else range(5, 9)
    for k, tau in enumerate(taus):
        off = p * 32 * 288 + 32 * tau
        base = V2_A[half] + 4 * k
        r.append(f"ds_read_b64_tr_b16 {vr(base,2)}, v{ad} offset:{off}")
        r.append(f"ds_read_b64_tr_b16 {vr(base+2,2)}, v{ad} offset:{off+16*288}")
    return r

def p2_bloads(a, slot, breg):
    a(f"s_add_u32 s45, s{S_J}, {slot}"); a("s_and_b32 s45, s45, 3"); a("s_add_u32 s45, s45, s44")
    a("s_lshl_b32 s45, s45, 2"); a(f"s_add_u32 s45, s45, s{S_WAVE}")
    a("s_lshl_b32 s46, s45, 13"); a("s_add_u32 s47, s46, 4096")
    for f in range(8):
        a(f"buffer_load_dwordx4 {vr(breg+4*f,4)}, v7, s[32:35], s{46 + f//4} offen offset:{(f%4)*1024} sc1")

S_NON = 52
S_FAST = 54

def get_nonce(a):
    a("s_waitcnt vmcnt(0)")
    a("v_mov_b32 v9, 0")
    a("s_mov_b32 s50, 0")
    a.label("L_nonce_chk")
    a(f"v_readfirstlane_b32 s{S_NON}, v{V_NONCE}"); a(f"v_readfirstlane_b32 s{S_NON+1}, v{V_NONCE+1}")
    a("s_nop 0")
    a(f"s_cmp_lg_u32 s{S_NON}, 0"); a("s_cbranch_scc1 L_nonce_ok")
    a(f"buffer_load_dwordx2 {vr(V_NONCE,2)}, v9, s[36:39], 0 offen sc1")
    a("s_add_u32 s50, s50, 1"); a("s_waitcnt vmcnt(0)")
    a(f"s_cmp_lt_u32 s50, {OPT['spin_max']}"); a("s_cbranch_scc1 L_nonce_chk")
    a.label("L_nonce_ok")
    a(f"s_mov_b32 s{S_FAST}, 0")
    if OPT['fast']:
        a(f"v_readfirstlane_b32 s55, v{V_CLW}")
        a(f"s_and_b32 s56, s{S_X}, 1"); a("s_lshl_b32 s56, s56, 4"); a("s_lshr_b32 s55, s55, s56")
        a("s_and_b32 s56, s55, 31")
        a("s_bfe_u32 s57, s55, 0x80005")
        a("s_bfe_u32 s55, s55, 0x3000d")
        a("s_mul_i32 s56, s56, s56"); a("s_lshl_b32 s57, s57, 2")
        a("s_cmp_eq_u32 s56, s57"); a(f"s_cselect_b32 s{S_FAST}, 1, 0")
        a("s_cmp_eq_u32 s55, 4"); a(f"s_cselect_b32 s{S_FAST}, s{S_FAST}, 0")
        if OPT['fast'] == 2: a(f"s_mov_b32 s{S_FAST}, 0")

def poll(a, tag, voff, soff):
    a("s_mov_b32 s50, 0")
    a.label(f"L_poll_{tag}")
    a(f"buffer_load_dwordx2 v[10:11], v{voff}, s[32:35], s{soff} offen sc1")
    a("s_add_u32 s50, s50, 1"); a("s_waitcnt vmcnt(0)")
    a(f"v_cmp_eq_u64 vcc, v[10:11], s[{S_NON}:{S_NON+1}]")
    a(f"s_cmp_ge_u32 s50, {OPT['spin_max']}"); a(f"s_cbranch_scc1 L_poll_{tag}_done")
    a("s_cmp_eq_u64 vcc, -1"); a(f"s_cbranch_scc0 L_poll_{tag}")
    a.label(f"L_poll_{tag}_done")

def flag_store(a, soff, mode):
    a(f"v_mov_b32 v10, s{S_NON}"); a(f"v_mov_b32 v11, s{S_NON+1}")
    a("s_mov_b64 exec, 1")
    if mode == 'dyn':
        a(f"s_cmp_eq_u32 s{S_FAST}, 0"); a("s_cbranch_scc1 L_flag_slow")
        a(f"buffer_store_dwordx2 v[10:11], v9, s[32:35], s{soff} offen")
        a("s_branch L_flag_join")
        a.label("L_flag_slow")
        a(f"buffer_store_dwordx2 v[10:11], v9, s[32:35], s{soff} offen sc1")
        a.label("L_flag_join")
    else:
        a(f"buffer_store_dwordx2 v[10:11], v9, s[32:35], s{soff} offen sc1")
    a("s_mov_b64 exec, -1")

def o_store(a):
    srd(a, 32, P_WS, SZ_WS_USED)
    a("v_lshlrev_b32 v7, 4, v0")
    a(f"s_lshl_b32 s40, s{S_G}, 5"); a(f"s_add_u32 s40, s40, s{S_H}"); a("s_lshl_b32 s40, s40, 2")
    a(f"s_add_u32 s40, s40, s{S_WAVE}"); a("s_lshl_b32 s40, s40, 13"); a("s_add_u32 s41, s40, 4096")
    a(f"s_cmp_eq_u32 s{S_FAST}, 0"); a("s_cbranch_scc1 L_ost_slow")
    for f in range(8):
        a(f"buffer_store_dwordx4 {vr(V_OF+4*f,4)}, v7, s[32:35], s{40 + f//4} offen offset:{(f%4)*1024}")
    a("s_branch L_ost_join")
    a.label("L_ost_slow")
    for f in range(8):
        a(f"buffer_store_dwordx4 {vr(V_OF+4*f,4)}, v7, s[32:35], s{40 + f//4} offen offset:{(f%4)*1024} sc1")
    a.label("L_ost_join")
    a("v_lshrrev_b32 v2, 4, v0"); a("v_bfe_u32 v3, v0, 2, 2"); a("v_lshl_add_u32 v2, v2, 2, v3")
    a("v_mul_u32_u24 v2, 288, v2"); a("v_and_b32 v3, 3, v0")
    a(f"v_lshl_add_u32 v{V2_AD[0]}, v3, 3, v2")
    for sl in range(1, 4): a(f"v_add_u32 v{V2_AD[sl]}, {sl*W_SLOT}, v{V2_AD[0]}")
    a(f"s_lshl_b32 s44, s{S_G}, 5"); a(f"s_lshl_b32 s45, s{S_X}, 2"); a("s_add_u32 s44, s44, s45")
    a(f"s_lshl_b32 s48, s{S_G}, 3"); a(f"s_add_u32 s48, s48, s{S_X}"); a("s_lshl_b32 s48, s48, 2")
    a(f"s_add_u32 s48, s48, s{S_WAVE}"); a("s_lshl_b32 s48, s48, 7"); a(f"s_add_u32 s48, s48, {WS_F}")
    a(f"s_lshl_b32 s49, s{S_J}, 3"); a("s_add_u32 s49, s49, s48")
    a("v_and_b32 v8, 3, v0"); a("v_lshlrev_b32 v8, 3, v8")

def p2_head(a, s, hs, start):
    for n in range(start, start + 8):
        (s_, p, hf) = hs[n]
        breg = V_OF if s == 0 else BUF[s - 1]
        nxt = p2_areads(*hs[n+1]) if (n + 1 < len(hs) and hs[n+1][0] == s) else []
        taus = list(range(0, 5)) if hf == 0 else list(range(5, 9))
        nown = 2 * len(taus)
        plan = [2, 2, 2, 2, 0] if hf == 0 else [3, 3, 2, 2]
        issued = 0
        for k, tau in enumerate(taus):
            a(f"s_waitcnt lgkmcnt({nown - 2 * (k + 1) + issued})")
            for qt in range(2):
                d = vr(V2_ACC + (tau*2+qt)*4, 4)
                c = "0" if (s == 0 and p == 0) else d
                a(f"v_mfma_f32_16x16x32_bf16 {d}, {vr(V2_A[hf]+4*k,4)}, {vr(breg+(2*p+qt)*4,4)}, {c}")
            if nxt:
                for r in nxt[issued:issued+plan[k]]: a(r)
                issued = min(len(nxt), issued + plan[k])

def tail(a):
    hs = [(s, p, hf) for s in range(4) for p in range(4) for hf in range(2)]
    get_nonce(a)
    o_store(a)
    stamp(a, 6)
    for r in p2_areads(*hs[0]): a(r)
    p2_head(a, 0, hs, 0)
    a("s_waitcnt vmcnt(0)")
    flag_store(a, 49, 'dyn')
    stamp(a, 7)
    poll(a, "o", 8, 48)
    stamp(a, 8)
    for s in (1, 2, 3): p2_bloads(a, s, BUF[s - 1])
    tstamp(a, 1)
    a("s_barrier")
    if OPT.get('tailstamps', 0): a("s_waitcnt vmcnt(16)")
    tstamp(a, 2)
    for r in p2_areads(*hs[8]): a(r)
    a("s_waitcnt vmcnt(16)")
    p2_head(a, 1, hs, 8)
    tstamp(a, 3)
    a("s_barrier")
    if OPT.get('tailstamps', 0): a("s_waitcnt vmcnt(8)")
    tstamp(a, 4)
    for r in p2_areads(*hs[16]): a(r)
    a("s_waitcnt vmcnt(8)")
    p2_head(a, 2, hs, 16)
    tstamp(a, 13)
    for r in p2_areads(*hs[24]): a(r)
    a("s_waitcnt vmcnt(0)")
    p2_head(a, 3, hs, 24)
    stamp(a, 9)
    if OPT['dk']: reduce_inkernel(a)
    else: store_partials_f32(a)

def store_partials_f32(a):
    a("s_nop 7")
    a(f"s_lshl_b32 s45, s{S_X}, 3"); a(f"s_add_u32 s45, s45, s{S_G}"); a("s_lshl_b32 s45, s45, 2")
    a(f"s_add_u32 s45, s45, s{S_J}"); a("s_lshl_b32 s45, s45, 2"); a(f"s_add_u32 s45, s45, s{S_WAVE}")
    a(f"s_mul_i32 s45, s45, {18*1024}"); a(f"s_add_u32 s45, s45, {WS_P}")
    for u in range(18):
        if u and u % 4 == 0: a("s_add_u32 s45, s45, 4096")
        a(f"buffer_store_dwordx4 {vr(V2_ACC+4*u,4)}, v7, s[32:35], s45 offen offset:{(u%4)*1024}")

def reduce_inkernel(a):
    G = 160
    R1 = 196
    R2 = 88
    a("v_bfe_u32 v13, v0, 1, 3"); a("v_mul_u32_u24 v13, 9216, v13")
    a("v_lshrrev_b32 v14, 4, v0"); a("v_lshlrev_b32 v14, 1, v14"); a("v_and_b32 v15, 1, v0")
    a("v_add_u32 v14, v14, v15"); a("v_lshl_add_u32 v13, v14, 4, v13")
    a(f"s_lshl_b32 s44, s{S_G}, 2"); a(f"s_add_u32 s44, s44, s{S_J}"); a("s_lshl_b32 s44, s44, 2")
    a(f"s_add_u32 s44, s44, s{S_WAVE}")
    a("s_mul_i32 s45, s44, 73728"); a(f"s_add_u32 s45, s45, {WS_D}")
    a(f"s_mul_i32 s46, s{S_X}, 1152"); a("s_add_u32 s46, s46, s45")
    a("s_lshl_b32 s48, s44, 7"); a(f"s_add_u32 s48, s48, {WS_F2}")
    a(f"s_lshl_b32 s49, s{S_X}, 3"); a("s_add_u32 s49, s49, s48")
    a("v_and_b32 v8, 7, v0"); a("v_lshlrev_b32 v8, 3, v8")
    a("s_nop 3")
    for tau in range(9):
        for qt in range(2):
            for h2 in range(2):
                src = V2_ACC + (tau*2+qt)*4 + 2*h2
                a(f"v_cvt_pk_bf16_f32 v{G+4*tau+2*qt+h2}, v{src}, v{src+1}")
        a(f"buffer_store_dwordx4 {vr(G+4*tau,4)}, v13, s[32:35], s46 offen offset:{128*tau} sc1")
    a("v_and_b32 v14, 1, v0"); a("v_mul_u32_u24 v14, 1152, v14")
    a("v_bfe_u32 v15, v0, 1, 2"); a("v_lshl_add_u32 v14, v15, 3, v14")
    a("v_add_u32 v15, 256, v14")
    a("v_lshrrev_b32 v13, 3, v0"); a("v_lshl_add_u32 v14, v13, 5, v14")
    srd(a, 36, P_OUT, SZ_OUT)
    a(f"s_lshl_b32 s56, s{S_G}, 2"); a(f"s_add_u32 s56, s56, s{S_WAVE}"); a("s_lshl_b32 s56, s56, 5")
    a(f"s_lshl_b32 s57, s{S_X}, 1"); a("s_add_u32 s56, s56, s57"); a("s_mul_i32 s56, s56, 1152")
    a(f"s_mul_i32 s57, s{S_J}, 288"); a("s_add_u32 s56, s56, s57")
    a(f"s_add_u32 s57, s56, {16*1152}")
    a(f"s_mul_i32 s47, s{S_X}, 9216"); a("s_add_u32 s47, s47, s45")
    a("s_waitcnt vmcnt(0)")
    flag_store(a, 49, 'sc1')
    stamp(a, 10)
    poll(a, "d", 8, 48)
    stamp(a, 11)
    for sx in range(8):
        a(f"buffer_load_dwordx4 {vr(R1+4*sx,4)}, v7, s[32:35], s47 offen sc1")
        a("s_mov_b64 exec, 0xff")
        a(f"buffer_load_dwordx4 {vr(R2+4*sx,4)}, v7, s[32:35], s47 offen offset:1024 sc1")
        a("s_mov_b64 exec, -1")
        if sx < 7: a("s_add_u32 s47, s47, 1152")
    A1 = 16; A2 = 24
    def summ(R, A, waitbase):
        for sx in range(8):
            if waitbase is not None: a(f"s_waitcnt vmcnt({waitbase - 2*sx})")
            for d in range(4):
                src = R + 4*sx + d
                if sx == 0:
                    a(f"v_lshlrev_b32 v{A+2*d}, 16, v{src}"); a(f"v_and_b32 v{A+2*d+1}, 0xffff0000, v{src}")
                else:
                    a(f"v_lshlrev_b32 v32, 16, v{src}"); a(f"v_and_b32 v33, 0xffff0000, v{src}")
                    a(f"v_add_f32 v{A+2*d}, v{A+2*d}, v32"); a(f"v_add_f32 v{A+2*d+1}, v{A+2*d+1}, v33")
    summ(R1, A1, 14)
    summ(R2, A2, None)
    for A, voff, ex in ((A1, 14, None), (A2, 15, "0xff")):
        for d in range(4): a(f"v_cvt_pk_bf16_f32 v{34+d}, v{A+2*d}, v{A+2*d+1}")
        if ex: a(f"s_mov_b64 exec, {ex}")
        a(f"buffer_store_dwordx2 v[34:35], v{voff}, s[36:39], s56 offen")
        a(f"buffer_store_dwordx2 v[36:37], v{voff}, s[36:39], s57 offen")
        if ex: a("s_mov_b64 exec, -1")
        a("s_nop 1")

def KNAME():
    return "standalone__mha_block_cached__near_ridge_kernel" if OPT['dk'] else "mha_a_kernel"

def kernelA(a):
    global KIDX
    KIDX = 0
    name = KNAME()
    prologue(a, name)
    stamp_init(a); stamp(a, 0); cstamp(a, 14)
    a(f"s_cmp_lt_u32 s{S_WAVE}, 4"); a("s_cbranch_scc1 L_a_compute")
    a(f"s_cmp_eq_u32 s{S_WAVE}, 6"); a("s_cbranch_scc1 L_a_ldk")
    a(f"s_cmp_eq_u32 s{S_WAVE}, 4"); a("s_cbranch_scc1 L_a_ldwq")
    a(f"s_cmp_eq_u32 s{S_WAVE}, 5"); a("s_cbranch_scc1 L_a_ldx")
    loader_v(a); stamp_flush(a); a("s_endpgm")
    a.label("L_a_ldk"); loader_k(a); stamp_flush(a); a("s_endpgm")
    a.label("L_a_ldwq"); loader_ring(a, 'wq'); stamp_flush(a); a("s_endpgm")
    a.label("L_a_ldx"); loader_ring(a, 'x'); stamp_flush(a); a("s_endpgm")
    a.label("L_a_compute")
    CUR['compute'] = True
    srd(a, 36, P_DBG, 256)
    gemm1_addrs(a); attn_addrs(a)
    a("v_mov_b32 v1, 0")
    a(f"s_lshl_b32 s40, s{S_G}, 3"); a(f"s_add_u32 s40, s40, s{S_X}"); a("s_lshr_b32 s40, s40, 1")
    a("s_lshl_b32 s40, s40, 2"); a("s_add_u32 s40, s40, 128")
    gemm1(a); stamp(a, 2)
    attention(a); stamp(a, 5)
    tail(a)
    if OPT['stamps']: a("s_waitcnt vmcnt(0)")
    stamp(a, 12); cstamp(a, 15); stamp_flush(a)
    a.label(f"L_end_{name}")
    a("s_endpgm")

def kernel3(a):
    global KIDX
    KIDX = 1
    name = "mha_p3_kernel"
    a(".p2align 8"); a(f".globl {name}"); a(f".type {name},@function"); a.label(name)
    a("s_cmp_ge_u32 s2, 256"); a(f"s_cbranch_scc1 L_end_{name}")
    a("s_load_dwordx16 s[16:31], s[0:1], 0")
    a("v_lshrrev_b32 v1, 6, v0"); a("v_and_b32 v0, 63, v0")
    a("s_lshr_b32 s5, s2, 1")
    a("s_and_b32 s6, s2, 1")
    a(f"v_readfirstlane_b32 s{S_WAVE}, v1")
    a("s_mul_i32 s6, s6, 9")
    a("s_waitcnt lgkmcnt(0)")
    stamp_init(a); stamp(a, 0); cstamp(a, 14)
    a(f"s_add_u32 s6, s6, s{S_WAVE}")
    srd(a, 32, P_WS, SZ_WS_USED); srd(a, 36, P_OUT, SZ_OUT)
    a("v_lshlrev_b32 v1, 4, v0")
    a("s_mul_i32 s45, s5, 18"); a("s_add_u32 s45, s45, s6"); a("s_lshl_b32 s45, s45, 10")
    a(f"s_add_u32 s45, s45, {WS_P}")
    for x in range(8):
        a(f"buffer_load_dwordx4 {vr(8+4*x,4)}, v1, s[32:35], s45 offen")
        if x < 7: a(f"s_add_u32 s45, s45, {128*18*1024}")
    a("v_and_b32 v2, 15, v0"); a("v_mul_u32_u24 v2, 1152, v2"); a("v_lshrrev_b32 v3, 4, v0")
    a("v_lshl_add_u32 v2, v3, 3, v2")
    a("s_lshr_b32 s46, s5, 4"); a("s_lshl_b32 s46, s46, 2"); a("s_and_b32 s47, s5, 3"); a("s_add_u32 s46, s46, s47")
    a(f"s_mul_i32 s46, s46, {32*1152}")
    a("s_lshr_b32 s47, s5, 2"); a("s_and_b32 s47, s47, 3"); a("s_mul_i32 s47, s47, 288"); a("s_add_u32 s46, s46, s47")
    a("s_and_b32 s47, s6, 1"); a(f"s_mul_i32 s47, s47, {16*1152}"); a("s_add_u32 s46, s46, s47")
    a("s_lshr_b32 s47, s6, 1"); a("s_lshl_b32 s47, s47, 5"); a("s_add_u32 s46, s46, s47")
    a("s_waitcnt vmcnt(0)")
    for v in range(4):
        for x in range(0, 8, 2): a(f"v_add_f32 v{8+4*x+v}, v{8+4*x+v}, v{12+4*x+v}")
    for v in range(4):
        a(f"v_add_f32 v{8+v}, v{8+v}, v{16+v}"); a(f"v_add_f32 v{24+v}, v{24+v}, v{32+v}")
    for v in range(4): a(f"v_add_f32 v{8+v}, v{8+v}, v{24+v}")
    a("v_cvt_pk_bf16_f32 v8, v8, v9"); a("v_cvt_pk_bf16_f32 v9, v10, v11")
    a("buffer_store_dwordx2 v[8:9], v2, s[36:39], s46 offen")
    if OPT['stamps']:
        a("s_waitcnt vmcnt(0)")
        stamp(a, 10); cstamp(a, 15)
        a(f"s_cmp_ge_u32 s{S_WAVE}, 8"); a("s_cbranch_scc1 L_end_mha_p3_kernel")
        stamp_flush(a, 44)
    a.label(f"L_end_{name}")
    a("s_endpgm")

def descriptor(a, name, vgpr, sgpr=102):
    a(f".amdhsa_kernel {name}")
    a(f".amdhsa_next_free_vgpr {vgpr}"); a(f".amdhsa_next_free_sgpr {sgpr}"); a(f".amdhsa_accum_offset {vgpr}")
    a(".amdhsa_group_segment_fixed_size 0"); a(".amdhsa_kernarg_size 64")
    a(".amdhsa_user_sgpr_count 2"); a(".amdhsa_user_sgpr_kernarg_segment_ptr 1")
    a(".amdhsa_system_sgpr_workgroup_id_x 1"); a(".end_amdhsa_kernel")

def main():
    out = sys.argv[1]
    for arg in sys.argv[2:]:
        if arg == "--stamps": OPT['stamps'] = True
        elif "=" in arg:
            k, v = arg.lstrip("-").split("="); OPT[k] = int(v)
    a = Asm()
    hdr = "; MHA block (Q-proj + attention + out-proj), generated by gen3.py\n"
    if OPT['dk']:
        hdr += "; @launch grid=(256,1,1) block=(512,1,1) lds=163840\n"
    else:
        hdr += "; @launch kernel=mha_a_kernel grid=(256,1,1) block=(512,1,1) lds=163840\n"
        hdr += "; @launch kernel=mha_p3_kernel grid=(256,1,1) block=(576,1,1) lds=0\n"
    a('.amdgcn_target "amdgcn-amd-amdhsa--gfx950"'); a(".text")
    kernelA(a)
    if not OPT['dk']: kernel3(a)
    a('.section .rodata,"a"'); a(".p2align 6"); descriptor(a, KNAME(), 256)
    if not OPT['dk']:
        a(".p2align 6"); descriptor(a, "mha_p3_kernel", 48)
    open(out, "w").write(hdr + a.text())

if __name__ == "__main__": main()
```

```python
import sys, struct

class Asm:
    def __init__(self): self.l = []
    def __call__(self, s=""):
        for x in s.split("\n"):
            x = x.strip()
            self.l.append(x if (x.endswith(":") or x.startswith(".")) else "  " + x)
    def label(self, s): self.l.append(s + ":")
    def text(self): return "\n".join(self.l) + "\n"

def vr(b, n=1): return f"v{b}" if n == 1 else f"v[{b}:{b+n-1}]"
def f32hex(x): return "0x%08x" % struct.unpack("<I", struct.pack("<f", x))[0]

P_X, P_K, P_V, P_WQ, P_WO, P_OUT, P_DBG, P_WS = 16, 18, 20, 22, 24, 26, 28, 30
SZ_X, SZ_KV, SZ_W, SZ_OUT = 1179648, 8388608, 4718592, 1179648
WS_O = 0
WS_P = 8 << 20
WS_F = 28 << 20
WS_F2 = (28 << 20) + (1 << 19)
WS_D = 8 << 20
WS_STAMP = 32 << 20
SZ_WS_USED = 64 << 20
S_WAVE, S_X, S_R, S_J, S_G, S_H = 3, 4, 5, 6, 9, 10

OPT = dict(stamps=False, fast=1, spin_max=2000000, kvmode=20, k_nt=1, v_nt=1, wot_pos=8, dk=1)

def srd(a, base, ptr, size, add=0):
    if add:
        a(f"s_add_u32 s{base}, s{ptr}, {add}"); a(f"s_addc_u32 s{base+1}, s{ptr+1}, 0")
        a(f"s_and_b32 s{base+1}, s{base+1}, 0xffff")
    else:
        a(f"s_mov_b32 s{base}, s{ptr}"); a(f"s_and_b32 s{base+1}, s{ptr+1}, 0xffff")
    a(f"s_mov_b32 s{base+2}, {size}"); a(f"s_mov_b32 s{base+3}, 0x00020000")

def prologue(a, name, nwg=256):
    a(".p2align 8"); a(f".globl {name}"); a(f".type {name},@function"); a.label(name)
    a(f"s_cmp_ge_u32 s2, {nwg}"); a(f"s_cbranch_scc1 L_end_{name}")
    a("s_load_dwordx16 s[16:31], s[0:1], 0")
    a("v_lshrrev_b32 v1, 6, v0"); a("v_and_b32 v0, 63, v0")
    a(f"s_and_b32 s{S_X}, s2, 7"); a(f"s_lshr_b32 s{S_R}, s2, 3")
    a(f"v_readfirstlane_b32 s{S_WAVE}, v1")
    a(f"s_and_b32 s{S_J}, s{S_R}, 3"); a(f"s_lshr_b32 s{S_G}, s{S_R}, 2")
    a(f"s_lshl_b32 s{S_H}, s{S_X}, 2"); a(f"s_add_u32 s{S_H}, s{S_H}, s{S_J}")
    a("s_waitcnt lgkmcnt(0)")

KIDX = 0
CUR = {}
def tstamp(a, idx):
    if OPT.get('tailstamps', 0): stamp(a, idx, force=True)
def stamp(a, idx, force=False):
    if not OPT['stamps']: return
    if OPT.get('tailstamps', 0) and not force and idx in (1,2,3,4,13) and CUR.get('compute'): return
    a(f"s_memrealtime s[{60+2*idx}:{61+2*idx}]"); a("s_waitcnt lgkmcnt(0)")
def cstamp(a, idx):
    if not OPT['stamps']: return
    a(f"s_memtime s[{60+2*idx}:{61+2*idx}]"); a("s_waitcnt lgkmcnt(0)")
def stamp_init(a):
    if not OPT['stamps']: return
    for i in range(16): a(f"s_mov_b64 s[{60+2*i}:{61+2*i}], 0")
def stamp_flush(a, vb=250):
    if not OPT['stamps']: return
    srd(a, 92, P_WS, 256*16*16*8, add=WS_STAMP + KIDX*256*8*16*8)
    a("s_lshl_b32 s96, s2, 3"); a(f"s_add_u32 s96, s96, s{S_WAVE}"); a("s_lshl_b32 s96, s96, 7")
    a(f"v_mov_b32 v{vb+2}, 0")
    for i in range(16):
        a(f"v_mov_b32 v{vb}, s{60+2*i}"); a(f"v_mov_b32 v{vb+1}, s{61+2*i}")
        a(f"buffer_store_dwordx2 v[{vb}:{vb+1}], v{vb+2}, s[92:95], s96 offen offset:{i*8}")
        a("s_nop 1")
    a("s_waitcnt vmcnt(0)")

L_K = 98304; L_V = 131072; NCH = 9
W_SLOT = 36864

def dma(a, voff, srdb, soff, off=0, nt=False):
    a(f"buffer_load_dwordx4 v{voff}, s[{srdb}:{srdb+3}], s{soff} offen" + (f" offset:{off}" if off else "") + (" nt" if nt else "") + " lds")

V_WOV = 16
def wo_prep(a):
    srd(a, 52, P_WO, SZ_W)
    for t in range(9):
        a(f"v_add_u32 v1, {64*t}, v0")
        a("v_mul_u32_u24 v2, 3641, v1")
        a("v_lshrrev_b32 v2, 16, v2")
        a("v_mul_u32_u24 v3, 18, v2")
        a("v_sub_u32 v3, v1, v3")
        a("v_lshlrev_b32 v3, 4, v3")
        a("v_mul_u32_u24 v2, 1152, v2")
        a(f"v_add_u32 v{V_WOV+t}, v2, v3")
    a(f"s_mul_i32 s56, s{S_J}, 288")
def wo_issue(a, slot, q0, nq):
    a(f"s_add_u32 s57, s{S_J}, {slot}"); a("s_and_b32 s57, s57, 3")
    a(f"s_lshl_b32 s58, s{S_X}, 2"); a("s_add_u32 s57, s57, s58")
    a(f"s_mul_i32 s57, s57, {128*1152}"); a("s_add_u32 s57, s57, s56")
    if q0: a(f"s_add_u32 s57, s57, {q0*32*1152}")
    a(f"s_mov_b32 m0, {slot*W_SLOT + q0*32*288}"); a("s_nop 0")
    for blk in range(nq):
        for t in range(9):
            dma(a, V_WOV + t, 52, 57)
            if not (blk == nq - 1 and t == 8):
                a("s_add_u32 m0, m0, 1024")
                if t == 8: a(f"s_add_u32 s57, s57, {32*1152}")
                else: a("s_nop 0")

def loader_tail(a, role):
    a("s_barrier")
    stamp(a, 8)
    if role < 2:
        wo_issue(a, 0, 2 * role, 2); wo_issue(a, 1, 2 * role, 2)
    if role == 3: a("s_waitcnt vmcnt(0)")
    stamp(a, 9)
    a("s_barrier")
    if role < 2: a("s_waitcnt vmcnt(18)")
    a("s_barrier")
    a("s_barrier")
    wo_issue(a, 2, role, 1)
    stamp(a, 10)
    if role < 2: a("s_waitcnt vmcnt(9)")
    a("s_barrier")
    wo_issue(a, 3, role, 1)
    a("s_waitcnt vmcnt(9)")
    a("s_barrier")
    a("s_waitcnt vmcnt(0)")
    stamp(a, 11)
    a("s_barrier")

def loader_ring(a, which):
    SRD = 32; SO = 40
    if which == 'wq':
        srd(a, SRD, P_WQ, SZ_W)
        a("v_lshrrev_b32 v1, 4, v0"); a("v_and_b32 v2, 15, v0")
        a("v_lshlrev_b32 v3, 2, v1"); a("v_xor_b32 v3, v3, v2"); a("v_lshlrev_b32 v3, 4, v3")
        a("v_lshlrev_b32 v4, 13, v1"); a("v_add_u32 v4, v4, v3")
        a(f"s_lshl_b32 s{SO}, s{S_H}, 8")
        def issue(kc):
            a(f"s_mov_b32 m0, {(kc%3)*32768}")
            for t in range(16):
                if t == 0: a("s_nop 0")
                dma(a, 4, SRD, SO)
                a(f"s_add_u32 s{SO}, s{SO}, 32768")
                if t < 15:
                    a("s_add_u32 m0, m0, 1024"); a("s_nop 0")
    else:
        srd(a, SRD, P_X, SZ_X)
        a("v_lshrrev_b32 v1, 3, v0"); a("v_mul_u32_u24 v1, 1152, v1")
        a("v_and_b32 v2, 7, v0"); a("v_lshrrev_b32 v3, 4, v0"); a("v_xor_b32 v2, v2, v3")
        a("v_lshlrev_b32 v4, 4, v2"); a("v_add_u32 v4, v4, v1")
        a("v_xor_b32 v2, 4, v2"); a("v_lshlrev_b32 v5, 4, v2"); a("v_add_u32 v5, v5, v1")
        a(f"s_mul_i32 s{SO+1}, s{S_G}, 147456")
        def issue(kc):
            a(f"s_mov_b32 m0, {(kc%3)*32768 + 16384}")
            a(f"s_add_u32 s{SO}, s{SO+1}, {kc*128}")
            for T in range(16):
                dma(a, 4 + (T & 1), SRD, SO)
                if T < 15:
                    a("s_add_u32 m0, m0, 1024"); a(f"s_add_u32 s{SO}, s{SO}, 9216")
    kv_pos(a, 43, 'k')
    if which == 'wq':
        a("v_lshrrev_b32 v8, 1, v0"); a("v_and_b32 v9, 1, v0")
        a("v_lshlrev_b32 v8, 13, v8"); a("v_lshl_add_u32 v8, v9, 7, v8")
        a(f"s_lshl_b32 s46, s{S_G}, {5+13}"); a(f"s_lshl_b32 s47, s{S_H}, 8"); a("s_add_u32 s46, s46, s47")
        def touch(part):
            if part == 0:
                a(f"buffer_load_dword v10, v8, s[{SRD}:{SRD+3}], s46 offen")
            else:
                a(f"s_add_u32 s46, s46, {256*8192}")
                a(f"buffer_load_dword v10, v8, s[{SRD}:{SRD+3}], s46 offen")
                a(f"s_lshl_b32 s46, s{S_G}, {3+13}"); a("s_add_u32 s46, s46, s47"); a(f"s_add_u32 s46, s46, {512*8192}")
                a("s_mov_b64 exec, 0xffff")
                a(f"buffer_load_dword v10, v8, s[{SRD}:{SRD+3}], s46 offen")
                a("s_mov_b64 exec, -1")
        NT1 = 2
    else:
        a("v_and_b32 v9, 31, v0"); a("v_mul_u32_u24 v9, 1152, v9")
        a("v_lshrrev_b32 v8, 5, v0"); a("v_lshl_add_u32 v8, v8, 7, v9")
        a(f"s_mul_i32 s46, s{S_G}, 147456"); a(f"s_mul_i32 s47, s{S_J}, {32*1152}"); a("s_add_u32 s46, s46, s47")
        def touch(part):
            if part == 0:
                a(f"buffer_load_dword v10, v8, s[{SRD}:{SRD+3}], s46 offen")
            else:
                for t in range(1, 4):
                    a(f"buffer_load_dword v10, v8, s[{SRD}:{SRD+3}], s46 offen offset:{256*t}")
                a("s_mov_b64 exec, 0xffffffff")
                a(f"buffer_load_dword v10, v9, s[{SRD}:{SRD+3}], s46 offen offset:1024")
                a("s_mov_b64 exec, -1")
        NT1 = 4
    touch(0)
    issue(0); stamp(a, 1)
    touch(1)
    a("s_barrier")
    bx(a, -1, "r" + which)
    issue(1)
    stamp(a, 2)
    a(f"s_waitcnt vmcnt({16 + NT1})")
    stamp(a, 3)
    a("s_barrier")
    bx(a, 0, "r" + which)
    issue(2)
    for i in range(1, NCH):
        last_issued = min(i + 1, NCH - 1)
        a(f"s_waitcnt vmcnt({(last_issued - i) * 16})")
        a("s_barrier")
        if which == 'wq' and i in (1,2,3,4): stamp(a, {1:4,2:5,3:6,4:12}[i])
        if which == 'x' and i in (5,6,7,8): stamp(a, {5:4,6:5,7:6,8:12}[i])
        if i < 8: bx(a, i, "r" + which)
        if i + 2 < NCH: issue(i + 2)
        if i == 7: wo_prep(a)
    stamp(a, 7)
    loader_tail(a, 0 if which == 'wq' else 1)

def kv_pos(a, sdst, which):
    m = OPT['kvmode']
    if m == 10:
        tab = [-1, 2, 4, 7]
    elif m == 11: tab = [7, 7, 7, 7]
    elif m == 12: tab = [-1, -1, -1, -1]
    elif m == 13: tab = [1, 1, 6, 6]
    elif m == 14: tab = [-1, 1, 4, 7]
    elif m == 15: tab = [0, 3, 5, 7]
    elif m == 16: tab = [2, 7, 2, 7]
    elif m == 17: tab = [3, 5, 7, 7]
    elif m == 20: tab = [-1, 1, 3, 5]
    elif m == 21: tab = [-1, 2, 4, 6]
    elif m == 22: tab = [-1, -1, 3, 3]
    elif m == 23: tab = [-1, 0, 2, 4]
    elif m == 24: tab = [0, 2, 4, 6]
    elif m == 25: tab = [-1, -1, -1, -1]
    packed = sum(((p + 1) & 15) << (4 * k) for k, p in enumerate(tab))
    a(f"s_and_b32 s{sdst}, s{S_G}, 3"); a(f"s_lshl_b32 s{sdst}, s{sdst}, 2")
    a(f"s_lshr_b32 s{sdst}, {packed}, s{sdst}"); a(f"s_and_b32 s{sdst}, s{sdst}, 15")

def bx(a, p, tag):
    if p >= 6: return
    a(f"s_cmp_lg_u32 s43, {p+1}"); a(f"s_cbranch_scc1 L_bx_{tag}_{p+1}")
    a("s_barrier")
    a.label(f"L_bx_{tag}_{p+1}")

def kv_loop(a, tag, issue_fn, extra_fn=None, extra_pos=None):
    a("s_mov_b32 s59, 0")
    a.label(f"L_{tag}_loop")
    a("s_cmp_lg_u32 s59, s43"); a(f"s_cbranch_scc1 L_{tag}_skip")
    stamp(a, 3)
    issue_fn()
    stamp(a, 4)
    a(f"s_cmp_ge_u32 s59, 7"); a(f"s_cbranch_scc1 L_{tag}_skip")
    a("s_barrier")
    a.label(f"L_{tag}_skip")
    if extra_fn is not None:
        a(f"s_cmp_lg_u32 s59, {extra_pos}"); a(f"s_cbranch_scc1 L_{tag}_skip2")
        extra_fn()
        a.label(f"L_{tag}_skip2")
    a("s_barrier")
    a("s_add_u32 s59, s59, 1")
    a("s_cmp_le_u32 s59, 8"); a(f"s_cbranch_scc1 L_{tag}_loop")

def loader_k(a):
    SRD = 32; SRD2 = 36; SO = 40
    srd(a, SRD2, P_WQ, SZ_W); srd(a, SRD, P_K, SZ_KV)
    a("v_lshrrev_b32 v1, 4, v0"); a("v_and_b32 v2, 15, v0"); a("v_xor_b32 v2, v2, v1")
    a("v_lshlrev_b32 v2, 4, v2"); a("v_lshl_add_u32 v4, v1, 8, v2")
    a("v_xor_b32 v5, 64, v4"); a("v_xor_b32 v6, 128, v4"); a("v_xor_b32 v7, 192, v4")
    wo_prep(a)
    a("v_and_b32 v8, 15, v0"); a("v_mul_u32_u24 v8, 1152, v8")
    a("v_lshrrev_b32 v9, 4, v0"); a("v_lshl_add_u32 v9, v9, 7, v8")
    kv_pos(a, 43, 'k')
    a("s_barrier")
    stamp(a, 1)
    def issue():
        a(f"s_lshl_b32 s{SO}, s{S_G}, 7"); a(f"s_add_u32 s{SO}, s{SO}, s{S_H}"); a(f"s_lshl_b32 s{SO}, s{SO}, 13")
        for w in range(4):
            for hf in range(2):
                a(f"s_mov_b32 m0, {L_K + w*8192 + hf*4096}"); a("s_nop 0")
                for t4 in range(4):
                    t = hf * 4 + t4
                    dma(a, 4 + (t >> 1), SRD, SO, off=t4 * 1024, nt=bool(OPT['k_nt']))
                a(f"s_add_u32 s{SO}, s{SO}, {4096 if hf == 0 else 32*8192 - 4096}")
    def wotouch():
        a(f"s_lshl_b32 s{SO}, s{S_X}, 5"); a(f"s_add_u32 s{SO}, s{SO}, s{S_R}")
        a(f"s_mul_i32 s{SO}, s{SO}, {16*1152}")
        a(f"buffer_load_dword v10, v9, s[52:55], s{SO} offen")
        a(f"buffer_load_dword v10, v9, s[52:55], s{SO} offen offset:512")
        a("s_mov_b64 exec, 0xffff")
        a(f"buffer_load_dword v10, v8, s[52:55], s{SO} offen offset:1024")
        a("s_mov_b64 exec, -1")
    kv_loop(a, "k", issue, wotouch, OPT['wot_pos'])
    a("s_waitcnt vmcnt(3)")
    stamp(a, 7)
    loader_tail(a, 2)

def loader_v(a):
    SRD = 32; SRD3 = 44; SO = 40
    srd(a, SRD3, P_X, SZ_X); srd(a, SRD, P_V, SZ_KV)
    a("s_cmp_lg_u32 s2, 0"); a("s_cbranch_scc1 L_nononce")
    srd(a, 48, P_DBG, 256)
    a("s_memrealtime s[42:43]"); a("s_waitcnt lgkmcnt(0)")
    a("s_or_b32 s42, s42, 1")
    a("v_mov_b32 v8, s42"); a("v_mov_b32 v9, s43"); a("v_mov_b32 v1, 0")
    a("s_mov_b64 exec, 1")
    a("buffer_store_dwordx2 v[8:9], v1, s[48:51], 0 offen sc1")
    a("s_mov_b64 exec, -1")
    a.label("L_nononce")
    if OPT['fast']:
        srd(a, 48, P_DBG, 256)
        a("s_getreg_b32 s42, hwreg(HW_REG_XCC_ID)")
        a("s_and_b32 s42, s42, 15")
        a("s_cmp_ge_u32 s42, 8"); a("s_cbranch_scc1 L_noxcc")
        a("s_mul_i32 s43, s42, s42"); a("s_lshl_b32 s43, s43, 5"); a("s_add_u32 s42, s42, s43")
        a("s_add_u32 s42, s42, 0x2000")
        a(f"s_lshl_b32 s43, s{S_G}, 3"); a(f"s_add_u32 s43, s43, s{S_X}")
        a("s_and_b32 s41, s43, 1"); a("s_lshl_b32 s41, s41, 4"); a("s_lshl_b32 s42, s42, s41")
        a("s_lshr_b32 s43, s43, 1"); a("s_lshl_b32 s43, s43, 2"); a("s_add_u32 s43, s43, 128")
        a("v_mov_b32 v8, s42"); a("v_mov_b32 v1, 0")
        a("s_mov_b64 exec, 1")
        a("buffer_atomic_add v8, v1, s[48:51], s43 offen")
        a("s_mov_b64 exec, -1")
        a.label("L_noxcc")
    a("v_lshrrev_b32 v1, 4, v0"); a("v_and_b32 v2, 15, v0"); a("v_lshlrev_b32 v3, 1, v1")
    a("v_xor_b32 v2, v2, v3"); a("v_lshlrev_b32 v2, 4, v2"); a("v_lshl_add_u32 v4, v1, 8, v2")
    a("v_xor_b32 v5, 128, v4")
    wo_prep(a)
    kv_pos(a, 43, 'v')
    a("s_barrier")
    stamp(a, 1)
    def issue():
        a(f"s_lshl_b32 s{SO}, s{S_G}, 7"); a(f"s_add_u32 s{SO}, s{SO}, s{S_H}"); a(f"s_lshl_b32 s{SO}, s{SO}, 13")
        for w in range(4):
            for hf in range(2):
                a(f"s_mov_b32 m0, {L_V + w*8192 + hf*4096}"); a("s_nop 0")
                for t4 in range(4):
                    t = hf * 4 + t4
                    dma(a, 4 + ((t >> 1) & 1), SRD, SO, off=t4 * 1024, nt=bool(OPT['v_nt']))
                a(f"s_add_u32 s{SO}, s{SO}, {4096 if hf == 0 else 32*8192 - 4096}")
    kv_loop(a, "v", issue)
    stamp(a, 7)
    loader_tail(a, 3)

V_XA = [4, 8]; V_WA = [12, 248]
V_A = [16, 32]; V_B = [48, 52]; V_ACC = 64
V_QF = 128; V_KF = 160; V_S = 192; V_VF = 208; V_PF = 240; V_OF = 128
V_KA = 56; V_VA = 60; V_CLW = 61; V_NONCE = 62
SC_SCALE = 0.08838834764831845 * 1.4426950408889634

def gemm1_addrs(a):
    a("v_and_b32 v1, 31, v0"); a("v_lshrrev_b32 v2, 5, v0"); a("v_bfe_u32 v3, v0, 1, 3")
    a("v_xor_b32 v2, v2, v3"); a("v_lshlrev_b32 v2, 4, v2"); a("v_lshl_add_u32 v2, v1, 7, v2")
    a(f"s_lshl_b32 s40, s{S_WAVE}, 12"); a("s_add_u32 s40, s40, 16384")
    a("v_add_u32 v2, s40, v2")
    for ks in range(4):
        a(f"v_xor_b32 v{V_XA[0]+ks}, {32*ks}, v2"); a(f"v_add_u32 v{V_XA[1]+ks}, 65536, v{V_XA[0]+ks}")
    a("v_bfe_u32 v1, v0, 2, 2"); a("v_lshrrev_b32 v2, 5, v0"); a("v_lshl_add_u32 v2, v2, 3, v1")
    a("v_lshlrev_b32 v2, 8, v2"); a("v_and_b32 v3, 1, v0"); a("v_lshl_add_u32 v2, v3, 5, v2")
    a("v_bfe_u32 v3, v0, 4, 1"); a("v_lshl_add_u32 v2, v3, 4, v2")
    a("v_bfe_u32 v3, v0, 1, 1"); a("v_lshl_add_u32 v2, v3, 3, v2")
    a("v_lshl_add_u32 v2, v1, 6, v2")
    for dt in range(4):
        a(f"v_xor_b32 v{V_WA[0]+dt}, {64*dt}, v2"); a(f"v_add_u32 v{V_WA[1]+dt}, 65536, v{V_WA[0]+dt}")

def attn_addrs(a):
    a("v_and_b32 v1, 15, v0"); a("v_lshrrev_b32 v2, 4, v0"); a("v_xor_b32 v2, v2, v1")
    a("v_lshlrev_b32 v2, 4, v2"); a("v_lshrrev_b32 v3, 2, v1"); a("v_lshl_add_u32 v2, v3, 11, v2")
    a("v_and_b32 v3, 3, v1"); a("v_lshl_add_u32 v2, v3, 8, v2")
    a(f"s_lshl_b32 s40, s{S_WAVE}, 13"); a(f"s_add_u32 s40, s40, {L_K}")
    a("v_add_u32 v2, s40, v2")
    for st in range(4): a(f"v_xor_b32 v{V_KA+st}, {64*st}, v2")
    a("v_lshrrev_b32 v1, 4, v0"); a("v_bfe_u32 v3, v0, 2, 2"); a("v_lshl_add_u32 v2, v1, 3, v3")
    a("v_lshlrev_b32 v2, 8, v2"); a("v_and_b32 v1, 1, v1"); a("v_lshl_add_u32 v3, v1, 2, v3")
    a("v_lshl_add_u32 v2, v3, 5, v2"); a("v_and_b32 v3, 3, v0"); a("v_lshl_add_u32 v2, v3, 3, v2")
    a(f"s_lshl_b32 s40, s{S_WAVE}, 13"); a(f"s_add_u32 s40, s40, {L_V}")
    a(f"v_add_u32 v{V_VA}, s40, v2")

def g1_reads(n):
    i, ks = divmod(n, 4)
    slot = i % 3; st = n & 1; hs = 1 if slot == 2 else 0; so = (slot & 1) * 32768 if slot < 2 else 0
    r = [f"ds_read_b128 {vr(V_B[st],4)}, v{V_XA[hs]+ks} offset:{so}"]
    for dt in range(4):
        base = V_A[st] + 4 * dt
        off = so + ks * 4096
        r.append(f"ds_read_b64_tr_b16 {vr(base,2)}, v{V_WA[hs]+dt} offset:{off}")
        r.append(f"ds_read_b64_tr_b16 {vr(base+2,2)}, v{V_WA[hs]+dt} offset:{off+1024}")
    return r

def gemm1(a):
    NS = NCH * 4
    kv_pos(a, 43, 'k')
    a("s_barrier")
    bx(a, -1, "c")
    a("s_barrier")
    stamp(a, 1)
    for r in g1_reads(0): a(r)
    for n in range(NS):
        i, ks = divmod(n, 4); st = n & 1
        nxt = g1_reads(n + 1) if n + 1 < NS else []
        def mf(dt):
            c = "0" if n == 0 else vr(V_ACC + 16 * dt, 16)
            a(f"v_mfma_f32_32x32x16_bf16 {vr(V_ACC+16*dt,16)}, {vr(V_A[st]+4*dt,4)}, {vr(V_B[st],4)}, {c}")
        if ks == 3:
            for dt in range(4):
                a(f"s_waitcnt lgkmcnt({[6,4,2,0][dt]})")
                if dt == 3 and nxt:
                    bx(a, i, "c")
                    a("s_barrier")
                    for r in nxt[:5]: a(r)
                mf(dt)
            for r in nxt[5:]: a(r)
        else:
            first_after_boundary = (ks == 0 and n > 0)
            for dt in range(4):
                a(f"s_waitcnt lgkmcnt({[6,7,8,9][dt]})")
                mf(dt)
                if dt < 3:
                    for r in nxt[3*dt:3*dt+3]: a(r)
        if n == 24:
            a(f"buffer_load_dwordx2 {vr(V_NONCE,2)}, v1, s[36:39], 0 offen sc1")
            if OPT['fast']:
                a(f"buffer_load_dword v{V_CLW}, v1, s[36:39], s40 offen sc1")
                a(f"buffer_load_dword v2, v1, s[44:47], s42 offen sc1")

def attention(a):
    a("s_barrier")
    stamp(a, 3)
    for ai in range(2):
        for st in range(4):
            a(f"ds_read_b128 {vr(V_KF+(ai*4+st)*4,4)}, v{V_KA+st} offset:{ai*1024}")
    for dt in range(4):
        for i in range(8):
            a(f"v_cvt_pk_bf16_f32 v{V_QF+8*dt+i}, v{V_ACC+16*dt+2*i}, v{V_ACC+16*dt+2*i+1}")
    a("s_nop 1")
    for dt in range(4):
        for i in range(4):
            a(f"v_permlane16_swap_b32 v{V_QF+8*dt+i}, v{V_QF+8*dt+4+i}")
    a("s_waitcnt lgkmcnt(0)")
    for st in range(4):
        for ai in range(2):
            for qt in range(2):
                d = vr(V_S + (ai*2+qt)*4, 4)
                c = "0" if st == 0 else d
                a(f"v_mfma_f32_16x16x32_bf16 {d}, {vr(V_KF+(ai*4+st)*4,4)}, {vr(V_QF+8*st+4*qt,4)}, {c}")
    def S(ai, qt, v): return V_S + (ai*2+qt)*4 + v
    M = [48, 49]; T_ = [50, 51]; SUM = [52, 53]
    a("s_nop 7")
    for qt in range(2): a(f"v_max3_f32 v{M[qt]}, v{S(0,qt,0)}, v{S(0,qt,1)}, v{S(0,qt,2)}")
    for qt in range(2): a(f"v_max3_f32 v{M[qt]}, v{M[qt]}, v{S(0,qt,3)}, v{S(1,qt,0)}")
    for qt in range(2): a(f"v_max3_f32 v{M[qt]}, v{M[qt]}, v{S(1,qt,1)}, v{S(1,qt,2)}")
    for qt in range(2): a(f"v_max_f32 v{M[qt]}, v{M[qt]}, v{S(1,qt,3)}")
    def xlane(regs, tmps, op):
        for sw in ("v_permlane16_swap_b32", "v_permlane32_swap_b32"):
            for qt in range(2): a(f"v_mov_b32 v{tmps[qt]}, v{regs[qt]}")
            a("s_nop 1")
            for qt in range(2): a(f"{sw} v{tmps[qt]}, v{regs[qt]}")
            a("s_nop 1")
            for qt in range(2): a(f"{op} v{regs[qt]}, v{regs[qt]}, v{tmps[qt]}")
    xlane(M, T_, "v_max_f32")
    a(f"s_mov_b32 s41, {f32hex(SC_SCALE)}")
    for qt in range(2): a(f"v_mul_f32 v{M[qt]}, s41, v{M[qt]}")
    for ai in range(2):
        for v in range(4):
            for qt in range(2): a(f"v_fma_f32 v{S(ai,qt,v)}, v{S(ai,qt,v)}, s41, -v{M[qt]}")
    for ai in range(2):
        for v in range(4):
            for qt in range(2): a(f"v_exp_f32 v{S(ai,qt,v)}, v{S(ai,qt,v)}")
    a("s_nop 0")
    for qt in range(2): a(f"v_add_f32 v{SUM[qt]}, v{S(0,qt,0)}, v{S(0,qt,1)}")
    for (ai, v) in [(0,2),(0,3),(1,0),(1,1),(1,2),(1,3)]:
        for qt in range(2): a(f"v_add_f32 v{SUM[qt]}, v{SUM[qt]}, v{S(ai,qt,v)}")
    xlane(SUM, T_, "v_add_f32")
    for qt in range(2): a(f"v_rcp_f32 v{SUM[qt]}, v{SUM[qt]}")
    a("s_nop 0")
    for ai in range(2):
        for v in range(4):
            for qt in range(2): a(f"v_mul_f32 v{S(ai,qt,v)}, v{S(ai,qt,v)}, v{SUM[qt]}")
    for qt in range(2):
        for ai in range(2):
            for h2 in range(2):
                a(f"v_cvt_pk_bf16_f32 v{V_PF+4*qt+2*ai+h2}, v{S(ai,qt,2*h2)}, v{S(ai,qt,2*h2+1)}")
    stamp(a, 4)
    a("s_barrier")
    for T in range(8):
        if T: a(f"v_xor_b32 v1, {32*T}, v{V_VA}")
        ad = "v1" if T else f"v{V_VA}"
        a(f"ds_read_b64_tr_b16 {vr(V_VF+4*T,2)}, {ad}")
        a(f"ds_read_b64_tr_b16 {vr(V_VF+4*T+2,2)}, {ad} offset:1024")
        if T == 5: a("s_waitcnt lgkmcnt(4)")
    a("s_waitcnt lgkmcnt(0)")
    a("s_barrier")
    for T in range(8):
        for qt in range(2):
            a(f"v_mfma_f32_16x16x32_bf16 {vr(V_ACC+(T*2+qt)*4,4)}, {vr(V_VF+4*T,4)}, {vr(V_PF+4*qt,4)}, 0")
    a("s_nop 7")
    for p in range(4):
        for qt in range(2):
            for e in range(2):
                T = 2*p + e
                for h2 in range(2):
                    src = V_ACC + (T*2+qt)*4 + 2*h2
                    a(f"v_cvt_pk_bf16_f32 v{V_OF+(2*p+qt)*4+2*e+h2}, v{src}, v{src+1}")

V2_ACC = 16
V2_A = [88, 108]
V2_AD = [4, 5, 6, 12]
BUF = [160, 192, 224]

def p2_areads(slot, p, half):
    r = []
    ad = V2_AD[slot]
    taus = range(0, 5) if half == 0 else range(5, 9)
    for k, tau in enumerate(taus):
        off = p * 32 * 288 + 32 * tau
        base = V2_A[half] + 4 * k
        r.append(f"ds_read_b64_tr_b16 {vr(base,2)}, v{ad} offset:{off}")
        r.append(f"ds_read_b64_tr_b16 {vr(base+2,2)}, v{ad} offset:{off+16*288}")
    return r

def p2_bloads(a, slot, breg):
    a(f"s_add_u32 s45, s{S_J}, {slot}"); a("s_and_b32 s45, s45, 3"); a("s_add_u32 s45, s45, s44")
    a("s_lshl_b32 s45, s45, 2"); a(f"s_add_u32 s45, s45, s{S_WAVE}")
    a("s_lshl_b32 s46, s45, 13"); a("s_add_u32 s47, s46, 4096")
    for f in range(8):
        a(f"buffer_load_dwordx4 {vr(breg+4*f,4)}, v7, s[32:35], s{46 + f//4} offen offset:{(f%4)*1024} sc1")

S_NON = 52
S_FAST = 54

def get_nonce(a):
    a("s_waitcnt vmcnt(0)")
    a("v_mov_b32 v9, 0")
    a("s_mov_b32 s50, 0")
    a.label("L_nonce_chk")
    a(f"v_readfirstlane_b32 s{S_NON}, v{V_NONCE}"); a(f"v_readfirstlane_b32 s{S_NON+1}, v{V_NONCE+1}")
    a("s_nop 0")
    a(f"s_cmp_lg_u32 s{S_NON}, 0"); a("s_cbranch_scc1 L_nonce_ok")
    a(f"buffer_load_dwordx2 {vr(V_NONCE,2)}, v9, s[36:39], 0 offen sc1")
    a("s_add_u32 s50, s50, 1"); a("s_waitcnt vmcnt(0)")
    a(f"s_cmp_lt_u32 s50, {OPT['spin_max']}"); a("s_cbranch_scc1 L_nonce_chk")
    a.label("L_nonce_ok")
    a(f"s_mov_b32 s{S_FAST}, 0")
    if OPT['fast']:
        a(f"v_readfirstlane_b32 s55, v{V_CLW}")
        a(f"s_and_b32 s56, s{S_X}, 1"); a("s_lshl_b32 s56, s56, 4"); a("s_lshr_b32 s55, s55, s56")
        a("s_and_b32 s56, s55, 31")
        a("s_bfe_u32 s57, s55, 0x80005")
        a("s_bfe_u32 s55, s55, 0x3000d")
        a("s_mul_i32 s56, s56, s56"); a("s_lshl_b32 s57, s57, 2")
        a("s_cmp_eq_u32 s56, s57"); a(f"s_cselect_b32 s{S_FAST}, 1, 0")
        a("s_cmp_eq_u32 s55, 4"); a(f"s_cselect_b32 s{S_FAST}, s{S_FAST}, 0")
        if OPT['fast'] == 2: a(f"s_mov_b32 s{S_FAST}, 0")

def poll(a, tag, voff, soff):
    a("s_mov_b32 s50, 0")
    a.label(f"L_poll_{tag}")
    a(f"buffer_load_dwordx2 v[10:11], v{voff}, s[32:35], s{soff} offen sc1")
    a("s_add_u32 s50, s50, 1"); a("s_waitcnt vmcnt(0)")
    a(f"v_cmp_eq_u64 vcc, v[10:11], s[{S_NON}:{S_NON+1}]")
    a(f"s_cmp_ge_u32 s50, {OPT['spin_max']}"); a(f"s_cbranch_scc1 L_poll_{tag}_done")
    a("s_cmp_eq_u64 vcc, -1"); a(f"s_cbranch_scc0 L_poll_{tag}")
    a.label(f"L_poll_{tag}_done")

def flag_store(a, soff, mode):
    a(f"v_mov_b32 v10, s{S_NON}"); a(f"v_mov_b32 v11, s{S_NON+1}")
    a("s_mov_b64 exec, 1")
    if mode == 'dyn':
        a(f"s_cmp_eq_u32 s{S_FAST}, 0"); a("s_cbranch_scc1 L_flag_slow")
        a(f"buffer_store_dwordx2 v[10:11], v9, s[32:35], s{soff} offen")
        a("s_branch L_flag_join")
        a.label("L_flag_slow")
        a(f"buffer_store_dwordx2 v[10:11], v9, s[32:35], s{soff} offen sc1")
        a.label("L_flag_join")
    else:
        a(f"buffer_store_dwordx2 v[10:11], v9, s[32:35], s{soff} offen sc1")
    a("s_mov_b64 exec, -1")

def o_store(a):
    srd(a, 32, P_WS, SZ_WS_USED)
    a("v_lshlrev_b32 v7, 4, v0")
    a(f"s_lshl_b32 s40, s{S_G}, 5"); a(f"s_add_u32 s40, s40, s{S_H}"); a("s_lshl_b32 s40, s40, 2")
    a(f"s_add_u32 s40, s40, s{S_WAVE}"); a("s_lshl_b32 s40, s40, 13"); a("s_add_u32 s41, s40, 4096")
    for f in range(8):
        a(f"buffer_store_dwordx4 {vr(V_OF+4*f,4)}, v7, s[32:35], s{40 + f//4} offen offset:{(f%4)*1024} sc1")
    a("v_lshrrev_b32 v2, 4, v0"); a("v_bfe_u32 v3, v0, 2, 2"); a("v_lshl_add_u32 v2, v2, 2, v3")
    a("v_mul_u32_u24 v2, 288, v2"); a("v_and_b32 v3, 3, v0")
    a(f"v_lshl_add_u32 v{V2_AD[0]}, v3, 3, v2")
    for sl in range(1, 4): a(f"v_add_u32 v{V2_AD[sl]}, {sl*W_SLOT}, v{V2_AD[0]}")
    a(f"s_lshl_b32 s44, s{S_G}, 5"); a(f"s_lshl_b32 s45, s{S_X}, 2"); a("s_add_u32 s44, s44, s45")
    a(f"s_lshl_b32 s48, s{S_G}, 3"); a(f"s_add_u32 s48, s48, s{S_X}"); a("s_lshl_b32 s48, s48, 2")
    a(f"s_add_u32 s48, s48, s{S_WAVE}"); a("s_lshl_b32 s48, s48, 7"); a(f"s_add_u32 s48, s48, {WS_F}")
    a(f"s_lshl_b32 s49, s{S_J}, 3"); a("s_add_u32 s49, s49, s48")
    a("v_and_b32 v8, 3, v0"); a("v_lshlrev_b32 v8, 3, v8")

def bload_list(slot, breg):
    setup = [f"s_add_u32 s45, s{S_J}, {slot}", "s_and_b32 s45, s45, 3", "s_add_u32 s45, s45, s44",
             "s_lshl_b32 s45, s45, 2", f"s_add_u32 s45, s45, s{S_WAVE}",
             "s_lshl_b32 s46, s45, 13", "s_add_u32 s47, s46, 4096"]
    loads = [f"buffer_load_dwordx4 {vr(breg+4*f,4)}, v7, s[32:35], s{46 + f//4} offen offset:{(f%4)*1024} sc1" for f in range(8)]
    return setup, loads

def p2_head(a, s, hs, start, prefetch=None):
    pl = []
    if prefetch:
        setup, pl = bload_list(*prefetch)
        for x in setup: a(x)
    for n in range(start, start + 8):
        (s_, p, hf) = hs[n]
        breg = V_OF if s == 0 else BUF[s - 1]
        nxt = p2_areads(*hs[n+1]) if (n + 1 < len(hs) and hs[n+1][0] == s) else []
        taus = list(range(0, 5)) if hf == 0 else list(range(5, 9))
        nown = 2 * len(taus)
        plan = [1,1,1,1,1,1,1,1,0,0] if hf == 0 else [2,1,1,1,2,1,1,1]
        issued = 0; m = 0
        inj = pl[2*(n-start):2*(n-start)+2] if (n - start) < 4 else []
        for k, tau in enumerate(taus):
            a(f"s_waitcnt lgkmcnt({nown - 2 * (k + 1) + issued})")
            for qt in range(2):
                d = vr(V2_ACC + (tau*2+qt)*4, 4)
                c = "0" if (s == 0 and p == 0) else d
                a(f"v_mfma_f32_16x16x32_bf16 {d}, {vr(V2_A[hf]+4*k,4)}, {vr(breg+(2*p+qt)*4,4)}, {c}")
                if nxt:
                    for r in nxt[issued:issued+plan[m]]: a(r)
                    issued = min(len(nxt), issued + plan[m])
                m += 1
                if k == len(taus) - 1 and inj: a(inj.pop(0))

def tail(a):
    hs = [(s, p, hf) for s in range(4) for p in range(4) for hf in range(2)]
    o_store(a)
    a("s_barrier")
    stamp(a, 6)
    for r in p2_areads(*hs[0]): a(r)
    p2_head(a, 0, hs, 0)
    a("s_waitcnt vmcnt(0)")
    flag_store(a, 49, 'dyn')
    stamp(a, 7)
    poll(a, "o", 8, 48)
    stamp(a, 8)
    p2_bloads(a, 1, BUF[0])
    a("s_barrier")
    tstamp(a, 1)
    for r in p2_areads(*hs[8]): a(r)
    a("s_waitcnt vmcnt(0)")
    tstamp(a, 2)
    p2_head(a, 1, hs, 8, prefetch=(2, BUF[1]))
    tstamp(a, 3)
    a("s_barrier")
    tstamp(a, 4)
    for r in p2_areads(*hs[16]): a(r)
    a("s_waitcnt vmcnt(0)")
    p2_head(a, 2, hs, 16, prefetch=(3, BUF[2]))
    tstamp(a, 13)
    a("s_barrier")
    for r in p2_areads(*hs[24]): a(r)
    a("s_waitcnt vmcnt(0)")
    p2_head(a, 3, hs, 24)
    stamp(a, 9)
    if OPT['dk']: reduce_inkernel(a)
    else: store_partials_f32(a)

def store_partials_f32(a):
    a("s_nop 7")
    a(f"s_lshl_b32 s45, s{S_X}, 3"); a(f"s_add_u32 s45, s45, s{S_G}"); a("s_lshl_b32 s45, s45, 2")
    a(f"s_add_u32 s45, s45, s{S_J}"); a("s_lshl_b32 s45, s45, 2"); a(f"s_add_u32 s45, s45, s{S_WAVE}")
    a(f"s_mul_i32 s45, s45, {18*1024}"); a(f"s_add_u32 s45, s45, {WS_P}")
    for u in range(18):
        if u and u % 4 == 0: a("s_add_u32 s45, s45, 4096")
        a(f"buffer_store_dwordx4 {vr(V2_ACC+4*u,4)}, v7, s[32:35], s45 offen offset:{(u%4)*1024}")

def reduce_inkernel(a):
    G = 160
    R1 = 196
    R2 = 88
    a("v_bfe_u32 v13, v0, 1, 3"); a("v_mul_u32_u24 v13, 9216, v13")
    a("v_lshrrev_b32 v14, 4, v0"); a("v_lshlrev_b32 v14, 1, v14"); a("v_and_b32 v15, 1, v0")
    a("v_add_u32 v14, v14, v15"); a("v_lshl_add_u32 v13, v14, 4, v13")
    a(f"s_lshl_b32 s44, s{S_G}, 2"); a(f"s_add_u32 s44, s44, s{S_J}"); a("s_lshl_b32 s44, s44, 2")
    a(f"s_add_u32 s44, s44, s{S_WAVE}")
    a("s_mul_i32 s45, s44, 73728"); a(f"s_add_u32 s45, s45, {WS_D}")
    a(f"s_mul_i32 s46, s{S_X}, 1152"); a("s_add_u32 s46, s46, s45")
    a("s_lshl_b32 s48, s44, 7"); a(f"s_add_u32 s48, s48, {WS_F2}")
    a(f"s_lshl_b32 s49, s{S_X}, 3"); a("s_add_u32 s49, s49, s48")
    a("v_and_b32 v8, 7, v0"); a("v_lshlrev_b32 v8, 3, v8")
    a("s_nop 3")
    for tau in range(9):
        for qt in range(2):
            for h2 in range(2):
                src = V2_ACC + (tau*2+qt)*4 + 2*h2
                a(f"v_cvt_pk_bf16_f32 v{G+4*tau+2*qt+h2}, v{src}, v{src+1}")
        a(f"buffer_store_dwordx4 {vr(G+4*tau,4)}, v13, s[32:35], s46 offen offset:{128*tau} sc1")
    a("v_and_b32 v14, 1, v0"); a("v_mul_u32_u24 v14, 1152, v14")
    a("v_bfe_u32 v15, v0, 1, 2"); a("v_lshl_add_u32 v14, v15, 3, v14")
    a("v_add_u32 v15, 256, v14")
    a("v_lshrrev_b32 v13, 3, v0"); a("v_lshl_add_u32 v14, v13, 5, v14")
    srd(a, 36, P_OUT, SZ_OUT)
    a(f"s_lshl_b32 s56, s{S_G}, 2"); a(f"s_add_u32 s56, s56, s{S_WAVE}"); a("s_lshl_b32 s56, s56, 5")
    a(f"s_lshl_b32 s57, s{S_X}, 1"); a("s_add_u32 s56, s56, s57"); a("s_mul_i32 s56, s56, 1152")
    a(f"s_mul_i32 s57, s{S_J}, 288"); a("s_add_u32 s56, s56, s57")
    a(f"s_add_u32 s57, s56, {16*1152}")
    a(f"s_mul_i32 s47, s{S_X}, 9216"); a("s_add_u32 s47, s47, s45")
    a("s_waitcnt vmcnt(0)")
    flag_store(a, 49, 'sc1')
    stamp(a, 10)
    poll(a, "d", 8, 48)
    stamp(a, 11)
    for sx in range(8):
        a(f"buffer_load_dwordx4 {vr(R1+4*sx,4)}, v7, s[32:35], s47 offen sc1")
        a("s_mov_b64 exec, 0xff")
        a(f"buffer_load_dwordx4 {vr(R2+4*sx,4)}, v7, s[32:35], s47 offen offset:1024 sc1")
        a("s_mov_b64 exec, -1")
        if sx < 7: a("s_add_u32 s47, s47, 1152")
    A1 = 16; A2 = 24
    def summ(R, A, waitbase):
        for sx in range(8):
            if waitbase is not None: a(f"s_waitcnt vmcnt({waitbase - 2*sx})")
            for d in range(4):
                src = R + 4*sx + d
                if sx == 0:
                    a(f"v_lshlrev_b32 v{A+2*d}, 16, v{src}"); a(f"v_and_b32 v{A+2*d+1}, 0xffff0000, v{src}")
                else:
                    a(f"v_lshlrev_b32 v32, 16, v{src}"); a(f"v_and_b32 v33, 0xffff0000, v{src}")
                    a(f"v_add_f32 v{A+2*d}, v{A+2*d}, v32"); a(f"v_add_f32 v{A+2*d+1}, v{A+2*d+1}, v33")
    summ(R1, A1, 14)
    summ(R2, A2, None)
    for A, voff, ex in ((A1, 14, None), (A2, 15, "0xff")):
        for d in range(4): a(f"v_cvt_pk_bf16_f32 v{34+d}, v{A+2*d}, v{A+2*d+1}")
        if ex: a(f"s_mov_b64 exec, {ex}")
        a(f"buffer_store_dwordx2 v[34:35], v{voff}, s[36:39], s56 offen")
        a(f"buffer_store_dwordx2 v[36:37], v{voff}, s[36:39], s57 offen")
        if ex: a("s_mov_b64 exec, -1")
        a("s_nop 1")

def KNAME():
    return "standalone__mha_block_cached__near_ridge_kernel" if OPT['dk'] else "mha_a_kernel"

def kernelA(a):
    global KIDX
    KIDX = 0
    name = KNAME()
    prologue(a, name)
    stamp_init(a); stamp(a, 0); cstamp(a, 14)
    a(f"s_cmp_lt_u32 s{S_WAVE}, 4"); a("s_cbranch_scc1 L_a_compute")
    a(f"s_cmp_eq_u32 s{S_WAVE}, 6"); a("s_cbranch_scc1 L_a_ldk")
    a(f"s_cmp_eq_u32 s{S_WAVE}, 4"); a("s_cbranch_scc1 L_a_ldwq")
    a(f"s_cmp_eq_u32 s{S_WAVE}, 5"); a("s_cbranch_scc1 L_a_ldx")
    loader_v(a); stamp_flush(a); a("s_endpgm")
    a.label("L_a_ldk"); loader_k(a); stamp_flush(a); a("s_endpgm")
    a.label("L_a_ldwq"); loader_ring(a, 'wq'); stamp_flush(a); a("s_endpgm")
    a.label("L_a_ldx"); loader_ring(a, 'x'); stamp_flush(a); a("s_endpgm")
    a.label("L_a_compute")
    CUR['compute'] = True
    srd(a, 36, P_DBG, 256)
    gemm1_addrs(a); attn_addrs(a)
    a("v_mov_b32 v1, 0")
    a(f"s_lshl_b32 s40, s{S_G}, 3"); a(f"s_add_u32 s40, s40, s{S_X}"); a("s_lshr_b32 s40, s40, 1")
    a("s_lshl_b32 s40, s40, 2"); a("s_add_u32 s40, s40, 128")
    srd(a, 44, P_WS, SZ_WS_USED)
    a(f"s_lshl_b32 s42, s{S_G}, 3"); a(f"s_add_u32 s42, s42, s{S_X}"); a("s_lshl_b32 s42, s42, 2")
    a(f"s_add_u32 s42, s42, s{S_WAVE}"); a("s_lshl_b32 s42, s42, 7"); a(f"s_add_u32 s42, s42, {WS_F}")
    gemm1(a); get_nonce(a); stamp(a, 2)
    attention(a); stamp(a, 5)
    tail(a)
    if OPT['stamps']: a("s_waitcnt vmcnt(0)")
    stamp(a, 12); cstamp(a, 15); stamp_flush(a)
    a.label(f"L_end_{name}")
    a("s_endpgm")

def kernel3(a):
    global KIDX
    KIDX = 1
    name = "mha_p3_kernel"
    a(".p2align 8"); a(f".globl {name}"); a(f".type {name},@function"); a.label(name)
    a("s_cmp_ge_u32 s2, 256"); a(f"s_cbranch_scc1 L_end_{name}")
    a("s_load_dwordx16 s[16:31], s[0:1], 0")
    a("v_lshrrev_b32 v1, 6, v0"); a("v_and_b32 v0, 63, v0")
    a("s_lshr_b32 s5, s2, 1")
    a("s_and_b32 s6, s2, 1")
    a(f"v_readfirstlane_b32 s{S_WAVE}, v1")
    a("s_mul_i32 s6, s6, 9")
    a("s_waitcnt lgkmcnt(0)")
    stamp_init(a); stamp(a, 0); cstamp(a, 14)
    a(f"s_add_u32 s6, s6, s{S_WAVE}")
    srd(a, 32, P_WS, SZ_WS_USED); srd(a, 36, P_OUT, SZ_OUT)
    a("v_lshlrev_b32 v1, 4, v0")
    a("s_mul_i32 s45, s5, 18"); a("s_add_u32 s45, s45, s6"); a("s_lshl_b32 s45, s45, 10")
    a(f"s_add_u32 s45, s45, {WS_P}")
    for x in range(8):
        a(f"buffer_load_dwordx4 {vr(8+4*x,4)}, v1, s[32:35], s45 offen")
        if x < 7: a(f"s_add_u32 s45, s45, {128*18*1024}")
    a("v_and_b32 v2, 15, v0"); a("v_mul_u32_u24 v2, 1152, v2"); a("v_lshrrev_b32 v3, 4, v0")
    a("v_lshl_add_u32 v2, v3, 3, v2")
    a("s_lshr_b32 s46, s5, 4"); a("s_lshl_b32 s46, s46, 2"); a("s_and_b32 s47, s5, 3"); a("s_add_u32 s46, s46, s47")
    a(f"s_mul_i32 s46, s46, {32*1152}")
    a("s_lshr_b32 s47, s5, 2"); a("s_and_b32 s47, s47, 3"); a("s_mul_i32 s47, s47, 288"); a("s_add_u32 s46, s46, s47")
    a("s_and_b32 s47, s6, 1"); a(f"s_mul_i32 s47, s47, {16*1152}"); a("s_add_u32 s46, s46, s47")
    a("s_lshr_b32 s47, s6, 1"); a("s_lshl_b32 s47, s47, 5"); a("s_add_u32 s46, s46, s47")
    a("s_waitcnt vmcnt(0)")
    for v in range(4):
        for x in range(0, 8, 2): a(f"v_add_f32 v{8+4*x+v}, v{8+4*x+v}, v{12+4*x+v}")
    for v in range(4):
        a(f"v_add_f32 v{8+v}, v{8+v}, v{16+v}"); a(f"v_add_f32 v{24+v}, v{24+v}, v{32+v}")
    for v in range(4): a(f"v_add_f32 v{8+v}, v{8+v}, v{24+v}")
    a("v_cvt_pk_bf16_f32 v8, v8, v9"); a("v_cvt_pk_bf16_f32 v9, v10, v11")
    a("buffer_store_dwordx2 v[8:9], v2, s[36:39], s46 offen")
    if OPT['stamps']:
        a("s_waitcnt vmcnt(0)")
        stamp(a, 10); cstamp(a, 15)
        a(f"s_cmp_ge_u32 s{S_WAVE}, 8"); a("s_cbranch_scc1 L_end_mha_p3_kernel")
        stamp_flush(a, 44)
    a.label(f"L_end_{name}")
    a("s_endpgm")

def descriptor(a, name, vgpr, sgpr=102):
    a(f".amdhsa_kernel {name}")
    a(f".amdhsa_next_free_vgpr {vgpr}"); a(f".amdhsa_next_free_sgpr {sgpr}"); a(f".amdhsa_accum_offset {vgpr}")
    a(".amdhsa_group_segment_fixed_size 0"); a(".amdhsa_kernarg_size 64")
    a(".amdhsa_user_sgpr_count 2"); a(".amdhsa_user_sgpr_kernarg_segment_ptr 1")
    a(".amdhsa_system_sgpr_workgroup_id_x 1"); a(".end_amdhsa_kernel")

def main():
    out = sys.argv[1]
    for arg in sys.argv[2:]:
        if arg == "--stamps": OPT['stamps'] = True
        elif "=" in arg:
            k, v = arg.lstrip("-").split("="); OPT[k] = int(v)
    a = Asm()
    hdr = "; MHA block (Q-proj + attention + out-proj), generated by gen3.py\n"
    if OPT['dk']:
        hdr += "; @launch grid=(256,1,1) block=(512,1,1) lds=163840\n"
    else:
        hdr += "; @launch kernel=mha_a_kernel grid=(256,1,1) block=(512,1,1) lds=163840\n"
        hdr += "; @launch kernel=mha_p3_kernel grid=(256,1,1) block=(576,1,1) lds=0\n"
    a('.amdgcn_target "amdgcn-amd-amdhsa--gfx950"'); a(".text")
    kernelA(a)
    if not OPT['dk']: kernel3(a)
    a('.section .rodata,"a"'); a(".p2align 6"); descriptor(a, KNAME(), 256)
    if not OPT['dk']:
        a(".p2align 6"); descriptor(a, "mha_p3_kernel", 48)
    open(out, "w").write(hdr + a.text())

if __name__ == "__main__": main()
```

```python
import sys, struct

class Asm:
    def __init__(self): self.l = []
    def __call__(self, s=""):
        for x in s.split("\n"):
            x = x.strip()
            self.l.append(x if (x.endswith(":") or x.startswith(".")) else "  " + x)
    def label(self, s): self.l.append(s + ":")
    def text(self): return "\n".join(self.l) + "\n"

def vr(b, n=1): return f"v{b}" if n == 1 else f"v[{b}:{b+n-1}]"
def f32hex(x): return "0x%08x" % struct.unpack("<I", struct.pack("<f", x))[0]

P_X, P_K, P_V, P_WQ, P_WO, P_OUT, P_DBG, P_WS = 16, 18, 20, 22, 24, 26, 28, 30
SZ_X, SZ_KV, SZ_W, SZ_OUT = 1179648, 8388608, 4718592, 1179648
WS_O = 0
WS_P = 8 << 20
WS_F = 28 << 20
WS_F2 = (28 << 20) + (1 << 19)
WS_D = 8 << 20
WS_STAMP = 32 << 20
SZ_WS_USED = 64 << 20
S_WAVE, S_X, S_R, S_J, S_G, S_H = 3, 4, 5, 6, 9, 10

OPT = dict(stamps=False, fast=1, spin_max=2000000, kvmode=20, k_nt=1, v_nt=1, wot_pos=8, dk=1)

def srd(a, base, ptr, size, add=0):
    if add:
        a(f"s_add_u32 s{base}, s{ptr}, {add}"); a(f"s_addc_u32 s{base+1}, s{ptr+1}, 0")
        a(f"s_and_b32 s{base+1}, s{base+1}, 0xffff")
    else:
        a(f"s_mov_b32 s{base}, s{ptr}"); a(f"s_and_b32 s{base+1}, s{ptr+1}, 0xffff")
    a(f"s_mov_b32 s{base+2}, {size}"); a(f"s_mov_b32 s{base+3}, 0x00020000")

def prologue(a, name, nwg=256):
    a(".p2align 8"); a(f".globl {name}"); a(f".type {name},@function"); a.label(name)
    a(f"s_cmp_ge_u32 s2, {nwg}"); a(f"s_cbranch_scc1 L_end_{name}")
    a("s_load_dwordx16 s[16:31], s[0:1], 0")
    a("v_lshrrev_b32 v1, 6, v0"); a("v_and_b32 v0, 63, v0")
    a(f"s_and_b32 s{S_X}, s2, 7"); a(f"s_lshr_b32 s{S_R}, s2, 3")
    a(f"v_readfirstlane_b32 s{S_WAVE}, v1")
    a(f"s_and_b32 s{S_J}, s{S_R}, 3"); a(f"s_lshr_b32 s{S_G}, s{S_R}, 2")
    a(f"s_lshl_b32 s{S_H}, s{S_X}, 2"); a(f"s_add_u32 s{S_H}, s{S_H}, s{S_J}")
    a("s_waitcnt lgkmcnt(0)")

KIDX = 0
CUR = {}
def tstamp(a, idx):
    if OPT.get('tailstamps', 0): stamp(a, idx, force=True)
def stamp(a, idx, force=False):
    if OPT.get('probe', -1) == idx and CUR.get('compute') and (force or not (OPT.get('tailstamps', 0) and idx in (1,2,3,4,13))):
        a("s_memrealtime s[60:61]"); a("s_waitcnt lgkmcnt(0)")
        return
    if not OPT['stamps']: return
    if OPT.get('tailstamps', 0) and not force and idx in (1,2,3,4,13) and CUR.get('compute'): return
    a(f"s_memrealtime s[{60+2*idx}:{61+2*idx}]"); a("s_waitcnt lgkmcnt(0)")
def cstamp(a, idx):
    if not OPT['stamps']: return
    a(f"s_memtime s[{60+2*idx}:{61+2*idx}]"); a("s_waitcnt lgkmcnt(0)")
def stamp_init(a):
    if not OPT['stamps']: return
    for i in range(16): a(f"s_mov_b64 s[{60+2*i}:{61+2*i}], 0")
def stamp_flush(a, vb=250):
    if not OPT['stamps']: return
    srd(a, 92, P_WS, 256*16*16*8, add=WS_STAMP + KIDX*256*8*16*8)
    a("s_lshl_b32 s96, s2, 3"); a(f"s_add_u32 s96, s96, s{S_WAVE}"); a("s_lshl_b32 s96, s96, 7")
    a(f"v_mov_b32 v{vb+2}, 0")
    for i in range(16):
        a(f"v_mov_b32 v{vb}, s{60+2*i}"); a(f"v_mov_b32 v{vb+1}, s{61+2*i}")
        a(f"buffer_store_dwordx2 v[{vb}:{vb+1}], v{vb+2}, s[92:95], s96 offen offset:{i*8}")
        a("s_nop 1")
    a("s_waitcnt vmcnt(0)")

L_K = 98304; L_V = 131072; NCH = 9
W_SLOT = 36864

def dma(a, voff, srdb, soff, off=0, nt=False):
    a(f"buffer_load_dwordx4 v{voff}, s[{srdb}:{srdb+3}], s{soff} offen" + (f" offset:{off}" if off else "") + (" nt" if nt else "") + " lds")

V_WOV = 16
def wo_prep(a):
    srd(a, 52, P_WO, SZ_W)
    for t in range(9):
        a(f"v_add_u32 v1, {64*t}, v0")
        a("v_mul_u32_u24 v2, 3641, v1")
        a("v_lshrrev_b32 v2, 16, v2")
        a("v_mul_u32_u24 v3, 18, v2")
        a("v_sub_u32 v3, v1, v3")
        a("v_lshlrev_b32 v3, 4, v3")
        a("v_mul_u32_u24 v2, 1152, v2")
        a(f"v_add_u32 v{V_WOV+t}, v2, v3")
    a(f"s_mul_i32 s56, s{S_J}, 288")
def wo_issue(a, slot, q0, nq):
    a(f"s_add_u32 s57, s{S_J}, {slot}"); a("s_and_b32 s57, s57, 3")
    a(f"s_lshl_b32 s58, s{S_X}, 2"); a("s_add_u32 s57, s57, s58")
    a(f"s_mul_i32 s57, s57, {128*1152}"); a("s_add_u32 s57, s57, s56")
    if q0: a(f"s_add_u32 s57, s57, {q0*32*1152}")
    a(f"s_mov_b32 m0, {slot*W_SLOT + q0*32*288}"); a("s_nop 0")
    for blk in range(nq):
        for t in range(9):
            dma(a, V_WOV + t, 52, 57)
            if not (blk == nq - 1 and t == 8):
                a("s_add_u32 m0, m0, 1024")
                if t == 8: a(f"s_add_u32 s57, s57, {32*1152}")
                else: a("s_nop 0")

def loader_tail(a, role):
    a("s_barrier")
    stamp(a, 8)
    if role < 2:
        wo_issue(a, 0, 2 * role, 2); wo_issue(a, 1, 2 * role, 2)
    if role == 3: a("s_waitcnt vmcnt(0)")
    stamp(a, 9)
    a("s_barrier")
    if role < 2: a("s_waitcnt vmcnt(18)")
    a("s_barrier")
    a("s_barrier")
    wo_issue(a, 2, role, 1)
    stamp(a, 10)
    if role < 2: a("s_waitcnt vmcnt(9)")
    a("s_barrier")
    wo_issue(a, 3, role, 1)
    a("s_waitcnt vmcnt(9)")
    a("s_barrier")
    a("s_waitcnt vmcnt(0)")
    stamp(a, 11)
    a("s_barrier")

def loader_ring(a, which):
    SRD = 32; SO = 40
    if which == 'wq':
        srd(a, SRD, P_WQ, SZ_W)
        a("v_lshrrev_b32 v1, 4, v0"); a("v_and_b32 v2, 15, v0")
        a("v_lshlrev_b32 v3, 2, v1"); a("v_xor_b32 v3, v3, v2"); a("v_lshlrev_b32 v3, 4, v3")
        a("v_lshlrev_b32 v4, 13, v1"); a("v_add_u32 v4, v4, v3")
        a(f"s_lshl_b32 s{SO}, s{S_H}, 8")
        def issue(kc):
            a(f"s_mov_b32 m0, {(kc%3)*32768}")
            for t in range(16):
                if t == 0: a("s_nop 0")
                dma(a, 4, SRD, SO)
                a(f"s_add_u32 s{SO}, s{SO}, 32768")
                if t < 15:
                    a("s_add_u32 m0, m0, 1024"); a("s_nop 0")
    else:
        srd(a, SRD, P_X, SZ_X)
        a("v_lshrrev_b32 v1, 3, v0"); a("v_mul_u32_u24 v1, 1152, v1")
        a("v_and_b32 v2, 7, v0"); a("v_lshrrev_b32 v3, 4, v0"); a("v_xor_b32 v2, v2, v3")
        a("v_lshlrev_b32 v4, 4, v2"); a("v_add_u32 v4, v4, v1")
        a("v_xor_b32 v2, 4, v2"); a("v_lshlrev_b32 v5, 4, v2"); a("v_add_u32 v5, v5, v1")
        a(f"s_mul_i32 s{SO+1}, s{S_G}, 147456")
        def issue(kc):
            a(f"s_mov_b32 m0, {(kc%3)*32768 + 16384}")
            a(f"s_add_u32 s{SO}, s{SO+1}, {kc*128}")
            for T in range(16):
                dma(a, 4 + (T & 1), SRD, SO)
                if T < 15:
                    a("s_add_u32 m0, m0, 1024"); a(f"s_add_u32 s{SO}, s{SO}, 9216")
    kv_pos(a, 43, 'k')
    if which == 'wq':
        a("v_lshrrev_b32 v8, 1, v0"); a("v_and_b32 v9, 1, v0")
        a("v_lshlrev_b32 v8, 13, v8"); a("v_lshl_add_u32 v8, v9, 7, v8")
        a(f"s_lshl_b32 s46, s{S_G}, {5+13}"); a(f"s_lshl_b32 s47, s{S_H}, 8"); a("s_add_u32 s46, s46, s47")
        def touch(part):
            if part == 0:
                a(f"buffer_load_dword v10, v8, s[{SRD}:{SRD+3}], s46 offen")
            else:
                a(f"s_add_u32 s46, s46, {256*8192}")
                a(f"buffer_load_dword v10, v8, s[{SRD}:{SRD+3}], s46 offen")
                a(f"s_lshl_b32 s46, s{S_G}, {3+13}"); a("s_add_u32 s46, s46, s47"); a(f"s_add_u32 s46, s46, {512*8192}")
                a("s_mov_b64 exec, 0xffff")
                a(f"buffer_load_dword v10, v8, s[{SRD}:{SRD+3}], s46 offen")
                a("s_mov_b64 exec, -1")
        NT1 = 2
    else:
        a("v_and_b32 v9, 31, v0"); a("v_mul_u32_u24 v9, 1152, v9")
        a("v_lshrrev_b32 v8, 5, v0"); a("v_lshl_add_u32 v8, v8, 7, v9")
        a(f"s_mul_i32 s46, s{S_G}, 147456"); a(f"s_mul_i32 s47, s{S_J}, {32*1152}"); a("s_add_u32 s46, s46, s47")
        def touch(part):
            if part == 0:
                a(f"buffer_load_dword v10, v8, s[{SRD}:{SRD+3}], s46 offen")
            else:
                for t in range(1, 4):
                    a(f"buffer_load_dword v10, v8, s[{SRD}:{SRD+3}], s46 offen offset:{256*t}")
                a("s_mov_b64 exec, 0xffffffff")
                a(f"buffer_load_dword v10, v9, s[{SRD}:{SRD+3}], s46 offen offset:1024")
                a("s_mov_b64 exec, -1")
        NT1 = 4
    touch(0)
    issue(0); stamp(a, 1)
    touch(1)
    a("s_barrier")
    bx(a, -1, "r" + which)
    issue(1)
    stamp(a, 2)
    a(f"s_waitcnt vmcnt({16 + NT1})")
    stamp(a, 3)
    a("s_barrier")
    bx(a, 0, "r" + which)
    issue(2)
    for i in range(1, NCH):
        last_issued = min(i + 1, NCH - 1)
        a(f"s_waitcnt vmcnt({(last_issued - i) * 16})")
        a("s_barrier")
        if which == 'wq' and i in (1,2,3,4): stamp(a, {1:4,2:5,3:6,4:12}[i])
        if which == 'x' and i in (5,6,7,8): stamp(a, {5:4,6:5,7:6,8:12}[i])
        if i < 8: bx(a, i, "r" + which)
        if i + 2 < NCH: issue(i + 2)
        if i == 7: wo_prep(a)
    stamp(a, 7)
    loader_tail(a, 0 if which == 'wq' else 1)

def kv_pos(a, sdst, which):
    m = OPT['kvmode']
    if m == 10:
        tab = [-1, 2, 4, 7]
    elif m == 11: tab = [7, 7, 7, 7]
    elif m == 12: tab = [-1, -1, -1, -1]
    elif m == 13: tab = [1, 1, 6, 6]
    elif m == 14: tab = [-1, 1, 4, 7]
    elif m == 15: tab = [0, 3, 5, 7]
    elif m == 16: tab = [2, 7, 2, 7]
    elif m == 17: tab = [3, 5, 7, 7]
    elif m == 20: tab = [-1, 1, 3, 5]
    elif m == 21: tab = [-1, 2, 4, 6]
    elif m == 22: tab = [-1, -1, 3, 3]
    elif m == 23: tab = [-1, 0, 2, 4]
    elif m == 24: tab = [0, 2, 4, 6]
    elif m == 25: tab = [-1, -1, -1, -1]
    packed = sum(((p + 1) & 15) << (4 * k) for k, p in enumerate(tab))
    a(f"s_and_b32 s{sdst}, s{S_G}, 3"); a(f"s_lshl_b32 s{sdst}, s{sdst}, 2")
    a(f"s_lshr_b32 s{sdst}, {packed}, s{sdst}"); a(f"s_and_b32 s{sdst}, s{sdst}, 15")

def bx(a, p, tag):
    if p >= 6: return
    a(f"s_cmp_lg_u32 s43, {p+1}"); a(f"s_cbranch_scc1 L_bx_{tag}_{p+1}")
    a("s_barrier")
    a.label(f"L_bx_{tag}_{p+1}")

def kv_loop(a, tag, issue_fn, extra_fn=None, extra_pos=None):
    a("s_mov_b32 s59, 0")
    a.label(f"L_{tag}_loop")
    a("s_cmp_lg_u32 s59, s43"); a(f"s_cbranch_scc1 L_{tag}_skip")
    stamp(a, 3)
    issue_fn()
    stamp(a, 4)
    a(f"s_cmp_ge_u32 s59, 7"); a(f"s_cbranch_scc1 L_{tag}_skip")
    a("s_barrier")
    a.label(f"L_{tag}_skip")
    if extra_fn is not None:
        a(f"s_cmp_lg_u32 s59, {extra_pos}"); a(f"s_cbranch_scc1 L_{tag}_skip2")
        extra_fn()
        a.label(f"L_{tag}_skip2")
    a("s_barrier")
    a("s_add_u32 s59, s59, 1")
    a("s_cmp_le_u32 s59, 8"); a(f"s_cbranch_scc1 L_{tag}_loop")

def loader_k(a):
    SRD = 32; SRD2 = 36; SO = 40
    srd(a, SRD2, P_WQ, SZ_W); srd(a, SRD, P_K, SZ_KV)
    a("v_lshrrev_b32 v1, 4, v0"); a("v_and_b32 v2, 15, v0"); a("v_xor_b32 v2, v2, v1")
    a("v_lshlrev_b32 v2, 4, v2"); a("v_lshl_add_u32 v4, v1, 8, v2")
    a("v_xor_b32 v5, 64, v4"); a("v_xor_b32 v6, 128, v4"); a("v_xor_b32 v7, 192, v4")
    wo_prep(a)
    a("v_and_b32 v8, 15, v0"); a("v_mul_u32_u24 v8, 1152, v8")
    a("v_lshrrev_b32 v9, 4, v0"); a("v_lshl_add_u32 v9, v9, 7, v8")
    kv_pos(a, 43, 'k')
    a("s_barrier")
    stamp(a, 1)
    def issue():
        a(f"s_lshl_b32 s{SO}, s{S_G}, 7"); a(f"s_add_u32 s{SO}, s{SO}, s{S_H}"); a(f"s_lshl_b32 s{SO}, s{SO}, 13")
        for w in range(4):
            for hf in range(2):
                a(f"s_mov_b32 m0, {L_K + w*8192 + hf*4096}"); a("s_nop 0")
                for t4 in range(4):
                    t = hf * 4 + t4
                    dma(a, 4 + (t >> 1), SRD, SO, off=t4 * 1024, nt=bool(OPT['k_nt']))
                a(f"s_add_u32 s{SO}, s{SO}, {4096 if hf == 0 else 32*8192 - 4096}")
    def wotouch():
        a(f"s_lshl_b32 s{SO}, s{S_X}, 5"); a(f"s_add_u32 s{SO}, s{SO}, s{S_R}")
        a(f"s_mul_i32 s{SO}, s{SO}, {16*1152}")
        a(f"buffer_load_dword v10, v9, s[52:55], s{SO} offen")
        a(f"buffer_load_dword v10, v9, s[52:55], s{SO} offen offset:512")
        a("s_mov_b64 exec, 0xffff")
        a(f"buffer_load_dword v10, v8, s[52:55], s{SO} offen offset:1024")
        a("s_mov_b64 exec, -1")
    kv_loop(a, "k", issue, wotouch, OPT['wot_pos'])
    a("s_waitcnt vmcnt(3)")
    stamp(a, 7)
    loader_tail(a, 2)

def loader_v(a):
    SRD = 32; SRD3 = 44; SO = 40
    srd(a, SRD3, P_X, SZ_X); srd(a, SRD, P_V, SZ_KV)
    a("s_cmp_lg_u32 s2, 0"); a("s_cbranch_scc1 L_nononce")
    srd(a, 48, P_DBG, 256)
    a("s_memrealtime s[42:43]"); a("s_waitcnt lgkmcnt(0)")
    a("s_or_b32 s42, s42, 1")
    a("v_mov_b32 v8, s42"); a("v_mov_b32 v9, s43"); a("v_mov_b32 v1, 0")
    a("s_mov_b64 exec, 1")
    a("buffer_store_dwordx2 v[8:9], v1, s[48:51], 0 offen sc1")
    a("s_mov_b64 exec, -1")
    a.label("L_nononce")
    if OPT['fast']:
        srd(a, 48, P_DBG, 256)
        a("s_getreg_b32 s42, hwreg(HW_REG_XCC_ID)")
        a("s_and_b32 s42, s42, 15")
        a("s_cmp_ge_u32 s42, 8"); a("s_cbranch_scc1 L_noxcc")
        a("s_mul_i32 s43, s42, s42"); a("s_lshl_b32 s43, s43, 5"); a("s_add_u32 s42, s42, s43")
        a("s_add_u32 s42, s42, 0x2000")
        a(f"s_lshl_b32 s43, s{S_G}, 3"); a(f"s_add_u32 s43, s43, s{S_X}")
        a("s_and_b32 s41, s43, 1"); a("s_lshl_b32 s41, s41, 4"); a("s_lshl_b32 s42, s42, s41")
        a("s_lshr_b32 s43, s43, 1"); a("s_lshl_b32 s43, s43, 2"); a("s_add_u32 s43, s43, 128")
        a("v_mov_b32 v8, s42"); a("v_mov_b32 v1, 0")
        a("s_mov_b64 exec, 1")
        a("buffer_atomic_add v8, v1, s[48:51], s43 offen")
        a("s_mov_b64 exec, -1")
        a.label("L_noxcc")
    a("v_lshrrev_b32 v1, 4, v0"); a("v_and_b32 v2, 15, v0"); a("v_lshlrev_b32 v3, 1, v1")
    a("v_xor_b32 v2, v2, v3"); a("v_lshlrev_b32 v2, 4, v2"); a("v_lshl_add_u32 v4, v1, 8, v2")
    a("v_xor_b32 v5, 128, v4")
    wo_prep(a)
    kv_pos(a, 43, 'v')
    a("s_barrier")
    stamp(a, 1)
    def issue():
        a(f"s_lshl_b32 s{SO}, s{S_G}, 7"); a(f"s_add_u32 s{SO}, s{SO}, s{S_H}"); a(f"s_lshl_b32 s{SO}, s{SO}, 13")
        for w in range(4):
            for hf in range(2):
                a(f"s_mov_b32 m0, {L_V + w*8192 + hf*4096}"); a("s_nop 0")
                for t4 in range(4):
                    t = hf * 4 + t4
                    dma(a, 4 + ((t >> 1) & 1), SRD, SO, off=t4 * 1024, nt=bool(OPT['v_nt']))
                a(f"s_add_u32 s{SO}, s{SO}, {4096 if hf == 0 else 32*8192 - 4096}")
    kv_loop(a, "v", issue)
    stamp(a, 7)
    loader_tail(a, 3)

V_XA = [4, 8]; V_WA = [12, 248]
V_A = [16, 32]; V_B = [48, 52]; V_ACC = 64
V_QF = 128; V_KF = 160; V_S = 192; V_VF = 208; V_PF = 240; V_OF = 128
V_KA = 56; V_VA = 60; V_CLW = 61; V_NONCE = 62
SC_SCALE = 0.08838834764831845 * 1.4426950408889634

def gemm1_addrs(a):
    a("v_and_b32 v1, 31, v0"); a("v_lshrrev_b32 v2, 5, v0"); a("v_bfe_u32 v3, v0, 1, 3")
    a("v_xor_b32 v2, v2, v3"); a("v_lshlrev_b32 v2, 4, v2"); a("v_lshl_add_u32 v2, v1, 7, v2")
    a(f"s_lshl_b32 s40, s{S_WAVE}, 12"); a("s_add_u32 s40, s40, 16384")
    a("v_add_u32 v2, s40, v2")
    for ks in range(4):
        a(f"v_xor_b32 v{V_XA[0]+ks}, {32*ks}, v2"); a(f"v_add_u32 v{V_XA[1]+ks}, 65536, v{V_XA[0]+ks}")
    a("v_bfe_u32 v1, v0, 2, 2"); a("v_lshrrev_b32 v2, 5, v0"); a("v_lshl_add_u32 v2, v2, 3, v1")
    a("v_lshlrev_b32 v2, 8, v2"); a("v_and_b32 v3, 1, v0"); a("v_lshl_add_u32 v2, v3, 5, v2")
    a("v_bfe_u32 v3, v0, 4, 1"); a("v_lshl_add_u32 v2, v3, 4, v2")
    a("v_bfe_u32 v3, v0, 1, 1"); a("v_lshl_add_u32 v2, v3, 3, v2")
    a("v_lshl_add_u32 v2, v1, 6, v2")
    for dt in range(4):
        a(f"v_xor_b32 v{V_WA[0]+dt}, {64*dt}, v2"); a(f"v_add_u32 v{V_WA[1]+dt}, 65536, v{V_WA[0]+dt}")

def attn_addrs(a):
    a("v_and_b32 v1, 15, v0"); a("v_lshrrev_b32 v2, 4, v0"); a("v_xor_b32 v2, v2, v1")
    a("v_lshlrev_b32 v2, 4, v2"); a("v_lshrrev_b32 v3, 2, v1"); a("v_lshl_add_u32 v2, v3, 11, v2")
    a("v_and_b32 v3, 3, v1"); a("v_lshl_add_u32 v2, v3, 8, v2")
    a(f"s_lshl_b32 s40, s{S_WAVE}, 13"); a(f"s_add_u32 s40, s40, {L_K}")
    a("v_add_u32 v2, s40, v2")
    for st in range(4): a(f"v_xor_b32 v{V_KA+st}, {64*st}, v2")
    a("v_lshrrev_b32 v1, 4, v0"); a("v_bfe_u32 v3, v0, 2, 2"); a("v_lshl_add_u32 v2, v1, 3, v3")
    a("v_lshlrev_b32 v2, 8, v2"); a("v_and_b32 v1, 1, v1"); a("v_lshl_add_u32 v3, v1, 2, v3")
    a("v_lshl_add_u32 v2, v3, 5, v2"); a("v_and_b32 v3, 3, v0"); a("v_lshl_add_u32 v2, v3, 3, v2")
    a(f"s_lshl_b32 s40, s{S_WAVE}, 13"); a(f"s_add_u32 s40, s40, {L_V}")
    a(f"v_add_u32 v{V_VA}, s40, v2")

def g1_reads(n):
    i, ks = divmod(n, 4)
    slot = i % 3; st = n & 1; hs = 1 if slot == 2 else 0; so = (slot & 1) * 32768 if slot < 2 else 0
    r = [f"ds_read_b128 {vr(V_B[st],4)}, v{V_XA[hs]+ks} offset:{so}"]
    for dt in range(4):
        base = V_A[st] + 4 * dt
        off = so + ks * 4096
        r.append(f"ds_read_b64_tr_b16 {vr(base,2)}, v{V_WA[hs]+dt} offset:{off}")
        r.append(f"ds_read_b64_tr_b16 {vr(base+2,2)}, v{V_WA[hs]+dt} offset:{off+1024}")
    return r

def gemm1(a):
    NS = NCH * 4
    kv_pos(a, 43, 'k')
    a("s_barrier")
    bx(a, -1, "c")
    a("s_barrier")
    stamp(a, 1)
    for r in g1_reads(0): a(r)
    for n in range(NS):
        i, ks = divmod(n, 4); st = n & 1
        nxt = g1_reads(n + 1) if n + 1 < NS else []
        def mf(dt):
            c = "0" if n == 0 else vr(V_ACC + 16 * dt, 16)
            a(f"v_mfma_f32_32x32x16_bf16 {vr(V_ACC+16*dt,16)}, {vr(V_A[st]+4*dt,4)}, {vr(V_B[st],4)}, {c}")
        if ks == 3:
            for dt in range(4):
                a(f"s_waitcnt lgkmcnt({[6,4,2,0][dt]})")
                if dt == 3 and nxt:
                    bx(a, i, "c")
                    a("s_barrier")
                    for r in nxt[:5]: a(r)
                mf(dt)
            for r in nxt[5:]: a(r)
        else:
            first_after_boundary = (ks == 0 and n > 0)
            for dt in range(4):
                a(f"s_waitcnt lgkmcnt({[6,7,8,9][dt]})")
                mf(dt)
                if dt < 3:
                    for r in nxt[3*dt:3*dt+3]: a(r)
        if n == 24:
            a(f"buffer_load_dwordx2 {vr(V_NONCE,2)}, v1, s[36:39], 0 offen sc1")
            if OPT['fast']:
                a(f"buffer_load_dword v{V_CLW}, v1, s[36:39], s40 offen sc1")
                a(f"buffer_load_dword v2, v1, s[44:47], s42 offen sc1")

def attention(a):
    a("s_barrier")
    stamp(a, 3)
    for ai in range(2):
        for st in range(4):
            a(f"ds_read_b128 {vr(V_KF+(ai*4+st)*4,4)}, v{V_KA+st} offset:{ai*1024}")
    for dt in range(4):
        for i in range(8):
            a(f"v_cvt_pk_bf16_f32 v{V_QF+8*dt+i}, v{V_ACC+16*dt+2*i}, v{V_ACC+16*dt+2*i+1}")
    a("s_nop 1")
    for dt in range(4):
        for i in range(4):
            a(f"v_permlane16_swap_b32 v{V_QF+8*dt+i}, v{V_QF+8*dt+4+i}")
    a("s_waitcnt lgkmcnt(0)")
    for st in range(4):
        for ai in range(2):
            for qt in range(2):
                d = vr(V_S + (ai*2+qt)*4, 4)
                c = "0" if st == 0 else d
                a(f"v_mfma_f32_16x16x32_bf16 {d}, {vr(V_KF+(ai*4+st)*4,4)}, {vr(V_QF+8*st+4*qt,4)}, {c}")
    def S(ai, qt, v): return V_S + (ai*2+qt)*4 + v
    M = [48, 49]; T_ = [50, 51]; SUM = [52, 53]
    a("s_nop 7")
    for qt in range(2): a(f"v_max3_f32 v{M[qt]}, v{S(0,qt,0)}, v{S(0,qt,1)}, v{S(0,qt,2)}")
    for qt in range(2): a(f"v_max3_f32 v{M[qt]}, v{M[qt]}, v{S(0,qt,3)}, v{S(1,qt,0)}")
    for qt in range(2): a(f"v_max3_f32 v{M[qt]}, v{M[qt]}, v{S(1,qt,1)}, v{S(1,qt,2)}")
    for qt in range(2): a(f"v_max_f32 v{M[qt]}, v{M[qt]}, v{S(1,qt,3)}")
    def xlane(regs, tmps, op):
        for sw in ("v_permlane16_swap_b32", "v_permlane32_swap_b32"):
            for qt in range(2): a(f"v_mov_b32 v{tmps[qt]}, v{regs[qt]}")
            a("s_nop 1")
            for qt in range(2): a(f"{sw} v{tmps[qt]}, v{regs[qt]}")
            a("s_nop 1")
            for qt in range(2): a(f"{op} v{regs[qt]}, v{regs[qt]}, v{tmps[qt]}")
    xlane(M, T_, "v_max_f32")
    a(f"s_mov_b32 s41, {f32hex(SC_SCALE)}")
    for qt in range(2): a(f"v_mul_f32 v{M[qt]}, s41, v{M[qt]}")
    for ai in range(2):
        for v in range(4):
            for qt in range(2): a(f"v_fma_f32 v{S(ai,qt,v)}, v{S(ai,qt,v)}, s41, -v{M[qt]}")
    for ai in range(2):
        for v in range(4):
            for qt in range(2): a(f"v_exp_f32 v{S(ai,qt,v)}, v{S(ai,qt,v)}")
    a("s_nop 0")
    for qt in range(2): a(f"v_add_f32 v{SUM[qt]}, v{S(0,qt,0)}, v{S(0,qt,1)}")
    for (ai, v) in [(0,2),(0,3),(1,0),(1,1),(1,2),(1,3)]:
        for qt in range(2): a(f"v_add_f32 v{SUM[qt]}, v{SUM[qt]}, v{S(ai,qt,v)}")
    xlane(SUM, T_, "v_add_f32")
    for qt in range(2): a(f"v_rcp_f32 v{SUM[qt]}, v{SUM[qt]}")
    a("s_nop 0")
    for ai in range(2):
        for v in range(4):
            for qt in range(2): a(f"v_mul_f32 v{S(ai,qt,v)}, v{S(ai,qt,v)}, v{SUM[qt]}")
    for qt in range(2):
        for ai in range(2):
            for h2 in range(2):
                a(f"v_cvt_pk_bf16_f32 v{V_PF+4*qt+2*ai+h2}, v{S(ai,qt,2*h2)}, v{S(ai,qt,2*h2+1)}")
    stamp(a, 4)
    a("s_barrier")
    for T in range(8):
        if T: a(f"v_xor_b32 v1, {32*T}, v{V_VA}")
        ad = "v1" if T else f"v{V_VA}"
        a(f"ds_read_b64_tr_b16 {vr(V_VF+4*T,2)}, {ad}")
        a(f"ds_read_b64_tr_b16 {vr(V_VF+4*T+2,2)}, {ad} offset:1024")
        if T == 5: a("s_waitcnt lgkmcnt(4)")
    a("s_waitcnt lgkmcnt(0)")
    a("s_barrier")
    for T in range(8):
        for qt in range(2):
            a(f"v_mfma_f32_16x16x32_bf16 {vr(V_ACC+(T*2+qt)*4,4)}, {vr(V_VF+4*T,4)}, {vr(V_PF+4*qt,4)}, 0")
    a("s_nop 7")
    for p in range(4):
        for qt in range(2):
            for e in range(2):
                T = 2*p + e
                for h2 in range(2):
                    src = V_ACC + (T*2+qt)*4 + 2*h2
                    a(f"v_cvt_pk_bf16_f32 v{V_OF+(2*p+qt)*4+2*e+h2}, v{src}, v{src+1}")

V2_ACC = 16
V2_A = [88, 108]
V2_AD = [4, 5, 6, 12]
BUF = [160, 192, 224]

def p2_areads(slot, p, half):
    r = []
    ad = V2_AD[slot]
    taus = range(0, 5) if half == 0 else range(5, 9)
    for k, tau in enumerate(taus):
        off = p * 32 * 288 + 32 * tau
        base = V2_A[half] + 4 * k
        r.append(f"ds_read_b64_tr_b16 {vr(base,2)}, v{ad} offset:{off}")
        r.append(f"ds_read_b64_tr_b16 {vr(base+2,2)}, v{ad} offset:{off+16*288}")
    return r

def p2_bloads(a, slot, breg):
    a(f"s_add_u32 s45, s{S_J}, {slot}"); a("s_and_b32 s45, s45, 3"); a("s_add_u32 s45, s45, s44")
    a("s_lshl_b32 s45, s45, 2"); a(f"s_add_u32 s45, s45, s{S_WAVE}")
    a("s_lshl_b32 s46, s45, 13"); a("s_add_u32 s47, s46, 4096")
    for f in range(8):
        a(f"buffer_load_dwordx4 {vr(breg+4*f,4)}, v7, s[32:35], s{46 + f//4} offen offset:{(f%4)*1024} sc1")

S_NON = 52
S_FAST = 54

def get_nonce(a):
    a("s_waitcnt vmcnt(0)")
    a("v_mov_b32 v9, 0")
    a("s_mov_b32 s50, 0")
    a.label("L_nonce_chk")
    a(f"v_readfirstlane_b32 s{S_NON}, v{V_NONCE}"); a(f"v_readfirstlane_b32 s{S_NON+1}, v{V_NONCE+1}")
    a("s_nop 0")
    a(f"s_cmp_lg_u32 s{S_NON}, 0"); a("s_cbranch_scc1 L_nonce_ok")
    a(f"buffer_load_dwordx2 {vr(V_NONCE,2)}, v9, s[36:39], 0 offen sc1")
    a("s_add_u32 s50, s50, 1"); a("s_waitcnt vmcnt(0)")
    a(f"s_cmp_lt_u32 s50, {OPT['spin_max']}"); a("s_cbranch_scc1 L_nonce_chk")
    a.label("L_nonce_ok")
    a(f"s_mov_b32 s{S_FAST}, 0")
    if OPT['fast']:
        a(f"v_readfirstlane_b32 s55, v{V_CLW}")
        a(f"s_and_b32 s56, s{S_X}, 1"); a("s_lshl_b32 s56, s56, 4"); a("s_lshr_b32 s55, s55, s56")
        a("s_and_b32 s56, s55, 31")
        a("s_bfe_u32 s57, s55, 0x80005")
        a("s_bfe_u32 s55, s55, 0x3000d")
        a("s_mul_i32 s56, s56, s56"); a("s_lshl_b32 s57, s57, 2")
        a("s_cmp_eq_u32 s56, s57"); a(f"s_cselect_b32 s{S_FAST}, 1, 0")
        a("s_cmp_eq_u32 s55, 4"); a(f"s_cselect_b32 s{S_FAST}, s{S_FAST}, 0")
        if OPT['fast'] == 2: a(f"s_mov_b32 s{S_FAST}, 0")

def poll(a, tag, voff, soff):
    a("s_mov_b32 s50, 0")
    a.label(f"L_poll_{tag}")
    a(f"buffer_load_dwordx2 v[10:11], v{voff}, s[32:35], s{soff} offen sc1")
    a("s_add_u32 s50, s50, 1"); a("s_waitcnt vmcnt(0)")
    a(f"v_cmp_eq_u64 vcc, v[10:11], s[{S_NON}:{S_NON+1}]")
    a(f"s_cmp_ge_u32 s50, {OPT['spin_max']}"); a(f"s_cbranch_scc1 L_poll_{tag}_done")
    a("s_cmp_eq_u64 vcc, -1"); a(f"s_cbranch_scc0 L_poll_{tag}")
    a.label(f"L_poll_{tag}_done")

def flag_store(a, soff, mode):
    a(f"v_mov_b32 v10, s{S_NON}"); a(f"v_mov_b32 v11, s{S_NON+1}")
    a("s_mov_b64 exec, 1")
    if mode == 'dyn':
        a(f"s_cmp_eq_u32 s{S_FAST}, 0"); a("s_cbranch_scc1 L_flag_slow")
        a(f"buffer_store_dwordx2 v[10:11], v9, s[32:35], s{soff} offen")
        a("s_branch L_flag_join")
        a.label("L_flag_slow")
        a(f"buffer_store_dwordx2 v[10:11], v9, s[32:35], s{soff} offen sc1")
        a.label("L_flag_join")
    else:
        a(f"buffer_store_dwordx2 v[10:11], v9, s[32:35], s{soff} offen sc1")
    a("s_mov_b64 exec, -1")

def o_store(a):
    srd(a, 32, P_WS, SZ_WS_USED)
    a("v_lshlrev_b32 v7, 4, v0")
    a(f"s_lshl_b32 s40, s{S_G}, 5"); a(f"s_add_u32 s40, s40, s{S_H}"); a("s_lshl_b32 s40, s40, 2")
    a(f"s_add_u32 s40, s40, s{S_WAVE}"); a("s_lshl_b32 s40, s40, 13"); a("s_add_u32 s41, s40, 4096")
    for f in range(8):
        a(f"buffer_store_dwordx4 {vr(V_OF+4*f,4)}, v7, s[32:35], s{40 + f//4} offen offset:{(f%4)*1024} sc1")
    a("v_lshrrev_b32 v2, 4, v0"); a("v_bfe_u32 v3, v0, 2, 2"); a("v_lshl_add_u32 v2, v2, 2, v3")
    a("v_mul_u32_u24 v2, 288, v2"); a("v_and_b32 v3, 3, v0")
    a(f"v_lshl_add_u32 v{V2_AD[0]}, v3, 3, v2")
    for sl in range(1, 4): a(f"v_add_u32 v{V2_AD[sl]}, {sl*W_SLOT}, v{V2_AD[0]}")
    a(f"s_lshl_b32 s44, s{S_G}, 5"); a(f"s_lshl_b32 s45, s{S_X}, 2"); a("s_add_u32 s44, s44, s45")
    a(f"s_lshl_b32 s48, s{S_G}, 3"); a(f"s_add_u32 s48, s48, s{S_X}"); a("s_lshl_b32 s48, s48, 2")
    a(f"s_add_u32 s48, s48, s{S_WAVE}"); a("s_lshl_b32 s48, s48, 7"); a(f"s_add_u32 s48, s48, {WS_F}")
    a(f"s_lshl_b32 s49, s{S_J}, 3"); a("s_add_u32 s49, s49, s48")
    a("v_and_b32 v8, 3, v0"); a("v_lshlrev_b32 v8, 3, v8")

def bload_list(slot, breg):
    setup = [f"s_add_u32 s45, s{S_J}, {slot}", "s_and_b32 s45, s45, 3", "s_add_u32 s45, s45, s44",
             "s_lshl_b32 s45, s45, 2", f"s_add_u32 s45, s45, s{S_WAVE}",
             "s_lshl_b32 s46, s45, 13", "s_add_u32 s47, s46, 4096"]
    loads = [f"buffer_load_dwordx4 {vr(breg+4*f,4)}, v7, s[32:35], s{46 + f//4} offen offset:{(f%4)*1024} sc1" for f in range(8)]
    return setup, loads

def p2_head(a, s, hs, start, prefetch=None):
    pl = []
    if prefetch:
        setup, pl = bload_list(*prefetch)
        for x in setup: a(x)
    for n in range(start, start + 8):
        (s_, p, hf) = hs[n]
        breg = V_OF if s == 0 else BUF[s - 1]
        nxt = p2_areads(*hs[n+1]) if (n + 1 < len(hs) and hs[n+1][0] == s) else []
        taus = list(range(0, 5)) if hf == 0 else list(range(5, 9))
        nown = 2 * len(taus)
        plan = [1,1,1,1,1,1,1,1,0,0] if hf == 0 else [2,1,1,1,2,1,1,1]
        issued = 0; m = 0
        inj = pl[2*(n-start):2*(n-start)+2] if (n - start) < 4 else []
        for k, tau in enumerate(taus):
            a(f"s_waitcnt lgkmcnt({nown - 2 * (k + 1) + issued})")
            for qt in range(2):
                d = vr(V2_ACC + (tau*2+qt)*4, 4)
                c = "0" if (s == 0 and p == 0) else d
                a(f"v_mfma_f32_16x16x32_bf16 {d}, {vr(V2_A[hf]+4*k,4)}, {vr(breg+(2*p+qt)*4,4)}, {c}")
                if nxt:
                    for r in nxt[issued:issued+plan[m]]: a(r)
                    issued = min(len(nxt), issued + plan[m])
                m += 1
                if k == len(taus) - 1 and inj: a(inj.pop(0))

def tail(a):
    hs = [(s, p, hf) for s in range(4) for p in range(4) for hf in range(2)]
    o_store(a)
    a("s_barrier")
    stamp(a, 6)
    for r in p2_areads(*hs[0]): a(r)
    p2_head(a, 0, hs, 0)
    a("s_waitcnt vmcnt(0)")
    flag_store(a, 49, 'dyn')
    stamp(a, 7)
    poll(a, "o", 8, 48)
    stamp(a, 8)
    p2_bloads(a, 1, BUF[0])
    a("s_barrier")
    tstamp(a, 1)
    for r in p2_areads(*hs[8]): a(r)
    a("s_waitcnt vmcnt(0)")
    tstamp(a, 2)
    p2_head(a, 1, hs, 8, prefetch=(2, BUF[1]))
    tstamp(a, 3)
    a("s_barrier")
    tstamp(a, 4)
    for r in p2_areads(*hs[16]): a(r)
    a("s_waitcnt vmcnt(0)")
    p2_head(a, 2, hs, 16, prefetch=(3, BUF[2]))
    tstamp(a, 13)
    a("s_barrier")
    for r in p2_areads(*hs[24]): a(r)
    a("s_waitcnt vmcnt(0)")
    p2_head(a, 3, hs, 24)
    stamp(a, 9)
    if OPT['dk']: reduce_inkernel(a)
    else: store_partials_f32(a)

def store_partials_f32(a):
    a("s_nop 7")
    a(f"s_lshl_b32 s45, s{S_X}, 3"); a(f"s_add_u32 s45, s45, s{S_G}"); a("s_lshl_b32 s45, s45, 2")
    a(f"s_add_u32 s45, s45, s{S_J}"); a("s_lshl_b32 s45, s45, 2"); a(f"s_add_u32 s45, s45, s{S_WAVE}")
    a(f"s_mul_i32 s45, s45, {18*1024}"); a(f"s_add_u32 s45, s45, {WS_P}")
    for u in range(18):
        if u and u % 4 == 0: a("s_add_u32 s45, s45, 4096")
        a(f"buffer_store_dwordx4 {vr(V2_ACC+4*u,4)}, v7, s[32:35], s45 offen offset:{(u%4)*1024}")

def reduce_inkernel(a):
    G = 160
    R1 = 196
    R2 = 88
    a("v_bfe_u32 v13, v0, 1, 3"); a("v_mul_u32_u24 v13, 9216, v13")
    a("v_lshrrev_b32 v14, 4, v0"); a("v_lshlrev_b32 v14, 1, v14"); a("v_and_b32 v15, 1, v0")
    a("v_add_u32 v14, v14, v15"); a("v_lshl_add_u32 v13, v14, 4, v13")
    a(f"s_lshl_b32 s44, s{S_G}, 2"); a(f"s_add_u32 s44, s44, s{S_J}"); a("s_lshl_b32 s44, s44, 2")
    a(f"s_add_u32 s44, s44, s{S_WAVE}")
    a("s_mul_i32 s45, s44, 73728"); a(f"s_add_u32 s45, s45, {WS_D}")
    a(f"s_mul_i32 s46, s{S_X}, 1152"); a("s_add_u32 s46, s46, s45")
    a("s_lshl_b32 s48, s44, 7"); a(f"s_add_u32 s48, s48, {WS_F2}")
    a(f"s_lshl_b32 s49, s{S_X}, 3"); a("s_add_u32 s49, s49, s48")
    a("v_and_b32 v8, 7, v0"); a("v_lshlrev_b32 v8, 3, v8")
    a("s_nop 3")
    for tau in range(9):
        for qt in range(2):
            for h2 in range(2):
                src = V2_ACC + (tau*2+qt)*4 + 2*h2
                a(f"v_cvt_pk_bf16_f32 v{G+4*tau+2*qt+h2}, v{src}, v{src+1}")
        a(f"buffer_store_dwordx4 {vr(G+4*tau,4)}, v13, s[32:35], s46 offen offset:{128*tau} sc1")
    a("v_and_b32 v14, 1, v0"); a("v_mul_u32_u24 v14, 1152, v14")
    a("v_bfe_u32 v15, v0, 1, 2"); a("v_lshl_add_u32 v14, v15, 3, v14")
    a("v_add_u32 v15, 256, v14")
    a("v_lshrrev_b32 v13, 3, v0"); a("v_lshl_add_u32 v14, v13, 5, v14")
    srd(a, 36, P_OUT, SZ_OUT)
    a(f"s_lshl_b32 s56, s{S_G}, 2"); a(f"s_add_u32 s56, s56, s{S_WAVE}"); a("s_lshl_b32 s56, s56, 5")
    a(f"s_lshl_b32 s57, s{S_X}, 1"); a("s_add_u32 s56, s56, s57"); a("s_mul_i32 s56, s56, 1152")
    a(f"s_mul_i32 s57, s{S_J}, 288"); a("s_add_u32 s56, s56, s57")
    a(f"s_add_u32 s57, s56, {16*1152}")
    a(f"s_mul_i32 s47, s{S_X}, 9216"); a("s_add_u32 s47, s47, s45")
    a("s_waitcnt vmcnt(0)")
    flag_store(a, 49, 'sc1')
    stamp(a, 10)
    poll(a, "d", 8, 48)
    stamp(a, 11)
    for sx in range(8):
        a(f"buffer_load_dwordx4 {vr(R1+4*sx,4)}, v7, s[32:35], s47 offen sc1")
        a("s_mov_b64 exec, 0xff")
        a(f"buffer_load_dwordx4 {vr(R2+4*sx,4)}, v7, s[32:35], s47 offen offset:1024 sc1")
        a("s_mov_b64 exec, -1")
        if sx < 7: a("s_add_u32 s47, s47, 1152")
    A1 = 16; A2 = 24
    def summ(R, A, waitbase):
        for sx in range(8):
            if waitbase is not None: a(f"s_waitcnt vmcnt({waitbase - 2*sx})")
            for d in range(4):
                src = R + 4*sx + d
                if sx == 0:
                    a(f"v_lshlrev_b32 v{A+2*d}, 16, v{src}"); a(f"v_and_b32 v{A+2*d+1}, 0xffff0000, v{src}")
                else:
                    a(f"v_lshlrev_b32 v32, 16, v{src}"); a(f"v_and_b32 v33, 0xffff0000, v{src}")
                    a(f"v_add_f32 v{A+2*d}, v{A+2*d}, v32"); a(f"v_add_f32 v{A+2*d+1}, v{A+2*d+1}, v33")
    summ(R1, A1, 14)
    summ(R2, A2, None)
    for A, voff, ex in ((A1, 14, None), (A2, 15, "0xff")):
        for d in range(4): a(f"v_cvt_pk_bf16_f32 v{34+d}, v{A+2*d}, v{A+2*d+1}")
        if ex: a(f"s_mov_b64 exec, {ex}")
        a(f"buffer_store_dwordx2 v[34:35], v{voff}, s[36:39], s56 offen")
        a(f"buffer_store_dwordx2 v[36:37], v{voff}, s[36:39], s57 offen")
        if ex: a("s_mov_b64 exec, -1")
        a("s_nop 1")

def KNAME():
    return "standalone__mha_block_cached__near_ridge_kernel" if OPT['dk'] else "mha_a_kernel"

def kernelA(a):
    global KIDX
    KIDX = 0
    name = KNAME()
    prologue(a, name)
    stamp_init(a); stamp(a, 0); cstamp(a, 14)
    a(f"s_cmp_lt_u32 s{S_WAVE}, 4"); a("s_cbranch_scc1 L_a_compute")
    a(f"s_cmp_eq_u32 s{S_WAVE}, 6"); a("s_cbranch_scc1 L_a_ldk")
    a(f"s_cmp_eq_u32 s{S_WAVE}, 4"); a("s_cbranch_scc1 L_a_ldwq")
    a(f"s_cmp_eq_u32 s{S_WAVE}, 5"); a("s_cbranch_scc1 L_a_ldx")
    loader_v(a); stamp_flush(a); a("s_endpgm")
    a.label("L_a_ldk"); loader_k(a); stamp_flush(a); a("s_endpgm")
    a.label("L_a_ldwq"); loader_ring(a, 'wq'); stamp_flush(a); a("s_endpgm")
    a.label("L_a_ldx"); loader_ring(a, 'x'); stamp_flush(a); a("s_endpgm")
    a.label("L_a_compute")
    CUR['compute'] = True
    srd(a, 36, P_DBG, 256)
    gemm1_addrs(a); attn_addrs(a)
    a("v_mov_b32 v1, 0")
    a(f"s_lshl_b32 s40, s{S_G}, 3"); a(f"s_add_u32 s40, s40, s{S_X}"); a("s_lshr_b32 s40, s40, 1")
    a("s_lshl_b32 s40, s40, 2"); a("s_add_u32 s40, s40, 128")
    srd(a, 44, P_WS, SZ_WS_USED)
    a(f"s_lshl_b32 s42, s{S_G}, 3"); a(f"s_add_u32 s42, s42, s{S_X}"); a("s_lshl_b32 s42, s42, 2")
    a(f"s_add_u32 s42, s42, s{S_WAVE}"); a("s_lshl_b32 s42, s42, 7"); a(f"s_add_u32 s42, s42, {WS_F}")
    gemm1(a); get_nonce(a); stamp(a, 2)
    attention(a); stamp(a, 5)
    tail(a)
    if OPT['stamps']: a("s_waitcnt vmcnt(0)")
    stamp(a, 12); cstamp(a, 15); stamp_flush(a)
    if OPT.get('probe', -1) >= 0:
        a("s_waitcnt vmcnt(0)")
        a(f"s_sub_u32 s62, s60, s{S_NON}"); a(f"s_mul_i32 s62, s62, {OPT.get('probek', 8)}")
        a("s_memrealtime s[64:65]"); a("s_waitcnt lgkmcnt(0)")
        a("s_add_u32 s62, s62, s64")
        a("s_mov_b32 s63, 0")
        a.label("L_probe_spin")
        a("s_memrealtime s[64:65]"); a("s_waitcnt lgkmcnt(0)")
        a("s_add_u32 s63, s63, 1"); a("s_cmp_gt_u32 s63, 100000"); a("s_cbranch_scc1 L_probe_done")
        a("s_sub_u32 s66, s62, s64"); a("s_cmp_gt_i32 s66, 0"); a("s_cbranch_scc1 L_probe_spin")
        a.label("L_probe_done")
    a.label(f"L_end_{name}")
    a("s_endpgm")

def kernel3(a):
    global KIDX
    KIDX = 1
    name = "mha_p3_kernel"
    a(".p2align 8"); a(f".globl {name}"); a(f".type {name},@function"); a.label(name)
    a("s_cmp_ge_u32 s2, 256"); a(f"s_cbranch_scc1 L_end_{name}")
    a("s_load_dwordx16 s[16:31], s[0:1], 0")
    a("v_lshrrev_b32 v1, 6, v0"); a("v_and_b32 v0, 63, v0")
    a("s_lshr_b32 s5, s2, 1")
    a("s_and_b32 s6, s2, 1")
    a(f"v_readfirstlane_b32 s{S_WAVE}, v1")
    a("s_mul_i32 s6, s6, 9")
    a("s_waitcnt lgkmcnt(0)")
    stamp_init(a); stamp(a, 0); cstamp(a, 14)
    a(f"s_add_u32 s6, s6, s{S_WAVE}")
    srd(a, 32, P_WS, SZ_WS_USED); srd(a, 36, P_OUT, SZ_OUT)
    a("v_lshlrev_b32 v1, 4, v0")
    a("s_mul_i32 s45, s5, 18"); a("s_add_u32 s45, s45, s6"); a("s_lshl_b32 s45, s45, 10")
    a(f"s_add_u32 s45, s45, {WS_P}")
    for x in range(8):
        a(f"buffer_load_dwordx4 {vr(8+4*x,4)}, v1, s[32:35], s45 offen")
        if x < 7: a(f"s_add_u32 s45, s45, {128*18*1024}")
    a("v_and_b32 v2, 15, v0"); a("v_mul_u32_u24 v2, 1152, v2"); a("v_lshrrev_b32 v3, 4, v0")
    a("v_lshl_add_u32 v2, v3, 3, v2")
    a("s_lshr_b32 s46, s5, 4"); a("s_lshl_b32 s46, s46, 2"); a("s_and_b32 s47, s5, 3"); a("s_add_u32 s46, s46, s47")
    a(f"s_mul_i32 s46, s46, {32*1152}")
    a("s_lshr_b32 s47, s5, 2"); a("s_and_b32 s47, s47, 3"); a("s_mul_i32 s47, s47, 288"); a("s_add_u32 s46, s46, s47")
    a("s_and_b32 s47, s6, 1"); a(f"s_mul_i32 s47, s47, {16*1152}"); a("s_add_u32 s46, s46, s47")
    a("s_lshr_b32 s47, s6, 1"); a("s_lshl_b32 s47, s47, 5"); a("s_add_u32 s46, s46, s47")
    a("s_waitcnt vmcnt(0)")
    for v in range(4):
        for x in range(0, 8, 2): a(f"v_add_f32 v{8+4*x+v}, v{8+4*x+v}, v{12+4*x+v}")
    for v in range(4):
        a(f"v_add_f32 v{8+v}, v{8+v}, v{16+v}"); a(f"v_add_f32 v{24+v}, v{24+v}, v{32+v}")
    for v in range(4): a(f"v_add_f32 v{8+v}, v{8+v}, v{24+v}")
    a("v_cvt_pk_bf16_f32 v8, v8, v9"); a("v_cvt_pk_bf16_f32 v9, v10, v11")
    a("buffer_store_dwordx2 v[8:9], v2, s[36:39], s46 offen")
    if OPT['stamps']:
        a("s_waitcnt vmcnt(0)")
        stamp(a, 10); cstamp(a, 15)
        a(f"s_cmp_ge_u32 s{S_WAVE}, 8"); a("s_cbranch_scc1 L_end_mha_p3_kernel")
        stamp_flush(a, 44)
    a.label(f"L_end_{name}")
    a("s_endpgm")

def descriptor(a, name, vgpr, sgpr=102):
    a(f".amdhsa_kernel {name}")
    a(f".amdhsa_next_free_vgpr {vgpr}"); a(f".amdhsa_next_free_sgpr {sgpr}"); a(f".amdhsa_accum_offset {vgpr}")
    a(".amdhsa_group_segment_fixed_size 0"); a(".amdhsa_kernarg_size 64")
    a(".amdhsa_user_sgpr_count 2"); a(".amdhsa_user_sgpr_kernarg_segment_ptr 1")
    a(".amdhsa_system_sgpr_workgroup_id_x 1"); a(".end_amdhsa_kernel")

def main():
    out = sys.argv[1]
    for arg in sys.argv[2:]:
        if arg == "--stamps": OPT['stamps'] = True
        elif "=" in arg:
            k, v = arg.lstrip("-").split("="); OPT[k] = int(v)
    a = Asm()
    hdr = "; MHA block (Q-proj + attention + out-proj), generated by gen3.py\n"
    if OPT['dk']:
        hdr += "; @launch grid=(256,1,1) block=(512,1,1) lds=163840\n"
    else:
        hdr += "; @launch kernel=mha_a_kernel grid=(256,1,1) block=(512,1,1) lds=163840\n"
        hdr += "; @launch kernel=mha_p3_kernel grid=(256,1,1) block=(576,1,1) lds=0\n"
    a('.amdgcn_target "amdgcn-amd-amdhsa--gfx950"'); a(".text")
    kernelA(a)
    if not OPT['dk']: kernel3(a)
    a('.section .rodata,"a"'); a(".p2align 6"); descriptor(a, KNAME(), 256)
    if not OPT['dk']:
        a(".p2align 6"); descriptor(a, "mha_p3_kernel", 48)
    open(out, "w").write(hdr + a.text())

if __name__ == "__main__": main()
```

```python
import sys, struct

class Asm:
    def __init__(self): self.l = []
    def __call__(self, s=""):
        for x in s.split("\n"):
            x = x.strip()
            self.l.append(x if (x.endswith(":") or x.startswith(".")) else "  " + x)
    def label(self, s): self.l.append(s + ":")
    def text(self): return "\n".join(self.l) + "\n"

def vr(b, n=1): return f"v{b}" if n == 1 else f"v[{b}:{b+n-1}]"
def f32hex(x): return "0x%08x" % struct.unpack("<I", struct.pack("<f", x))[0]

P_X, P_K, P_V, P_WQ, P_WO, P_OUT, P_DBG, P_WS = 16, 18, 20, 22, 24, 26, 28, 30
SZ_X, SZ_KV, SZ_W, SZ_OUT = 1179648, 8388608, 4718592, 1179648
WS_O = 0
WS_P = 8 << 20
WS_F = 28 << 20
WS_F2 = (28 << 20) + (1 << 19)
WS_D = 8 << 20
WS_STAMP = 32 << 20
SZ_WS_USED = 64 << 20
S_WAVE, S_X, S_R, S_J, S_G, S_H = 3, 4, 5, 6, 9, 10

OPT = dict(stamps=False, fast=1, spin_max=2000000, kvmode=20, k_nt=1, v_nt=1, wot_pos=8, dk=1)

def srd(a, base, ptr, size, add=0):
    if add:
        a(f"s_add_u32 s{base}, s{ptr}, {add}"); a(f"s_addc_u32 s{base+1}, s{ptr+1}, 0")
        a(f"s_and_b32 s{base+1}, s{base+1}, 0xffff")
    else:
        a(f"s_mov_b32 s{base}, s{ptr}"); a(f"s_and_b32 s{base+1}, s{ptr+1}, 0xffff")
    a(f"s_mov_b32 s{base+2}, {size}"); a(f"s_mov_b32 s{base+3}, 0x00020000")

def prologue(a, name, nwg=256):
    a(".p2align 8"); a(f".globl {name}"); a(f".type {name},@function"); a.label(name)
    a(f"s_cmp_ge_u32 s2, {nwg}"); a(f"s_cbranch_scc1 L_end_{name}")
    a("s_load_dwordx16 s[16:31], s[0:1], 0")
    a("v_lshrrev_b32 v1, 6, v0"); a("v_and_b32 v0, 63, v0")
    a(f"s_and_b32 s{S_X}, s2, 7"); a(f"s_lshr_b32 s{S_R}, s2, 3")
    a(f"v_readfirstlane_b32 s{S_WAVE}, v1")
    a(f"s_and_b32 s{S_J}, s{S_R}, 3"); a(f"s_lshr_b32 s{S_G}, s{S_R}, 2")
    a(f"s_lshl_b32 s{S_H}, s{S_X}, 2"); a(f"s_add_u32 s{S_H}, s{S_H}, s{S_J}")
    a("s_waitcnt lgkmcnt(0)")

KIDX = 0
CUR = {}
def tstamp(a, idx):
    if OPT.get('tailstamps', 0): stamp(a, idx, force=True)
def stamp(a, idx, force=False):
    if OPT.get('probe', -1) == idx and CUR.get('compute') and (force or not (OPT.get('tailstamps', 0) and idx in (1,2,3,4,13))):
        a("s_memrealtime s[60:61]"); a("s_waitcnt lgkmcnt(0)")
        return
    if not OPT['stamps']: return
    if OPT.get('tailstamps', 0) and not force and idx in (1,2,3,4,13) and CUR.get('compute'): return
    a(f"s_memrealtime s[{60+2*idx}:{61+2*idx}]"); a("s_waitcnt lgkmcnt(0)")
def cstamp(a, idx):
    if not OPT['stamps']: return
    a(f"s_memtime s[{60+2*idx}:{61+2*idx}]"); a("s_waitcnt lgkmcnt(0)")
def stamp_init(a):
    if not OPT['stamps']: return
    for i in range(16): a(f"s_mov_b64 s[{60+2*i}:{61+2*i}], 0")
def stamp_flush(a, vb=250):
    if not OPT['stamps']: return
    srd(a, 92, P_WS, 256*16*16*8, add=WS_STAMP + KIDX*256*8*16*8)
    a("s_lshl_b32 s96, s2, 3"); a(f"s_add_u32 s96, s96, s{S_WAVE}"); a("s_lshl_b32 s96, s96, 7")
    a(f"v_mov_b32 v{vb+2}, 0")
    for i in range(16):
        a(f"v_mov_b32 v{vb}, s{60+2*i}"); a(f"v_mov_b32 v{vb+1}, s{61+2*i}")
        a(f"buffer_store_dwordx2 v[{vb}:{vb+1}], v{vb+2}, s[92:95], s96 offen offset:{i*8}")
        a("s_nop 1")
    a("s_waitcnt vmcnt(0)")

L_K = 98304; L_V = 131072; NCH = 9
W_SLOT = 36864

def dma(a, voff, srdb, soff, off=0, nt=False):
    a(f"buffer_load_dwordx4 v{voff}, s[{srdb}:{srdb+3}], s{soff} offen" + (f" offset:{off}" if off else "") + (" nt" if nt else "") + " lds")

V_WOV = 16
def wo_prep(a):
    srd(a, 52, P_WO, SZ_W)
    for t in range(9):
        a(f"v_add_u32 v1, {64*t}, v0")
        a("v_mul_u32_u24 v2, 3641, v1")
        a("v_lshrrev_b32 v2, 16, v2")
        a("v_mul_u32_u24 v3, 18, v2")
        a("v_sub_u32 v3, v1, v3")
        a("v_lshlrev_b32 v3, 4, v3")
        a("v_mul_u32_u24 v2, 1152, v2")
        a(f"v_add_u32 v{V_WOV+t}, v2, v3")
    a(f"s_mul_i32 s56, s{S_J}, 288")
def wo_issue(a, slot, q0, nq):
    a(f"s_add_u32 s57, s{S_J}, {slot}"); a("s_and_b32 s57, s57, 3")
    a(f"s_lshl_b32 s58, s{S_X}, 2"); a("s_add_u32 s57, s57, s58")
    a(f"s_mul_i32 s57, s57, {128*1152}"); a("s_add_u32 s57, s57, s56")
    if q0: a(f"s_add_u32 s57, s57, {q0*32*1152}")
    a(f"s_mov_b32 m0, {slot*W_SLOT + q0*32*288}"); a("s_nop 0")
    for blk in range(nq):
        for t in range(9):
            dma(a, V_WOV + t, 52, 57)
            if not (blk == nq - 1 and t == 8):
                a("s_add_u32 m0, m0, 1024")
                if t == 8: a(f"s_add_u32 s57, s57, {32*1152}")
                else: a("s_nop 0")

def loader_tail(a, role):
    a("s_barrier")
    stamp(a, 8)
    if role < 2:
        wo_issue(a, 0, 2 * role, 2); wo_issue(a, 1, 2 * role, 2)
    if role == 3: a("s_waitcnt vmcnt(0)")
    stamp(a, 9)
    a("s_barrier")
    if role < 2: a("s_waitcnt vmcnt(18)")
    a("s_barrier")
    a("s_barrier")
    wo_issue(a, 2, role, 1)
    stamp(a, 10)
    if role < 2: a("s_waitcnt vmcnt(9)")
    a("s_barrier")
    wo_issue(a, 3, role, 1)
    a("s_waitcnt vmcnt(9)")
    a("s_barrier")
    a("s_waitcnt vmcnt(0)")
    stamp(a, 11)
    a("s_barrier")

def loader_ring(a, which):
    SRD = 32; SO = 40
    if which == 'wq':
        srd(a, SRD, P_WQ, SZ_W)
        a("v_lshrrev_b32 v1, 4, v0"); a("v_and_b32 v2, 15, v0")
        a("v_lshlrev_b32 v3, 2, v1"); a("v_xor_b32 v3, v3, v2"); a("v_lshlrev_b32 v3, 4, v3")
        a("v_lshlrev_b32 v4, 13, v1"); a("v_add_u32 v4, v4, v3")
        a(f"s_lshl_b32 s{SO}, s{S_H}, 8")
        def issue(kc):
            a(f"s_mov_b32 m0, {(kc%3)*32768}")
            for t in range(16):
                if t == 0: a("s_nop 0")
                dma(a, 4, SRD, SO)
                a(f"s_add_u32 s{SO}, s{SO}, 32768")
                if t < 15:
                    a("s_add_u32 m0, m0, 1024"); a("s_nop 0")
    else:
        srd(a, SRD, P_X, SZ_X)
        a("v_lshrrev_b32 v1, 3, v0"); a("v_mul_u32_u24 v1, 1152, v1")
        a("v_and_b32 v2, 7, v0"); a("v_lshrrev_b32 v3, 4, v0"); a("v_xor_b32 v2, v2, v3")
        a("v_lshlrev_b32 v4, 4, v2"); a("v_add_u32 v4, v4, v1")
        a("v_xor_b32 v2, 4, v2"); a("v_lshlrev_b32 v5, 4, v2"); a("v_add_u32 v5, v5, v1")
        a(f"s_mul_i32 s{SO+1}, s{S_G}, 147456")
        def issue(kc):
            a(f"s_mov_b32 m0, {(kc%3)*32768 + 16384}")
            a(f"s_add_u32 s{SO}, s{SO+1}, {kc*128}")
            for T in range(16):
                dma(a, 4 + (T & 1), SRD, SO)
                if T < 15:
                    a("s_add_u32 m0, m0, 1024"); a(f"s_add_u32 s{SO}, s{SO}, 9216")
    kv_pos(a, 43, 'k')
    if which == 'wq':
        a("v_lshrrev_b32 v8, 1, v0"); a("v_and_b32 v9, 1, v0")
        a("v_lshlrev_b32 v8, 13, v8"); a("v_lshl_add_u32 v8, v9, 7, v8")
        a(f"s_lshl_b32 s46, s{S_G}, {5+13}"); a(f"s_lshl_b32 s47, s{S_H}, 8"); a("s_add_u32 s46, s46, s47")
        def touch(part):
            if part == 0:
                a(f"buffer_load_dword v10, v8, s[{SRD}:{SRD+3}], s46 offen")
            else:
                a(f"s_add_u32 s46, s46, {256*8192}")
                a(f"buffer_load_dword v10, v8, s[{SRD}:{SRD+3}], s46 offen")
                a(f"s_lshl_b32 s46, s{S_G}, {3+13}"); a("s_add_u32 s46, s46, s47"); a(f"s_add_u32 s46, s46, {512*8192}")
                a("s_mov_b64 exec, 0xffff")
                a(f"buffer_load_dword v10, v8, s[{SRD}:{SRD+3}], s46 offen")
                a("s_mov_b64 exec, -1")
        NT1 = 2
    else:
        a("v_and_b32 v9, 31, v0"); a("v_mul_u32_u24 v9, 1152, v9")
        a("v_lshrrev_b32 v8, 5, v0"); a("v_lshl_add_u32 v8, v8, 7, v9")
        a(f"s_mul_i32 s46, s{S_G}, 147456"); a(f"s_mul_i32 s47, s{S_J}, {32*1152}"); a("s_add_u32 s46, s46, s47")
        def touch(part):
            if part == 0:
                a(f"buffer_load_dword v10, v8, s[{SRD}:{SRD+3}], s46 offen")
            else:
                for t in range(1, 4):
                    a(f"buffer_load_dword v10, v8, s[{SRD}:{SRD+3}], s46 offen offset:{256*t}")
                a("s_mov_b64 exec, 0xffffffff")
                a(f"buffer_load_dword v10, v9, s[{SRD}:{SRD+3}], s46 offen offset:1024")
                a("s_mov_b64 exec, -1")
        NT1 = 4
    touch(0)
    issue(0); stamp(a, 1)
    touch(1)
    a("s_barrier")
    bx(a, -1, "r" + which)
    issue(1)
    stamp(a, 2)
    a(f"s_waitcnt vmcnt({16 + NT1})")
    stamp(a, 3)
    a("s_barrier")
    bx(a, 0, "r" + which)
    issue(2)
    for i in range(1, NCH):
        last_issued = min(i + 1, NCH - 1)
        a(f"s_waitcnt vmcnt({(last_issued - i) * 16})")
        a("s_barrier")
        if which == 'wq' and i in (1,2,3,4): stamp(a, {1:4,2:5,3:6,4:12}[i])
        if which == 'x' and i in (5,6,7,8): stamp(a, {5:4,6:5,7:6,8:12}[i])
        if i < 8: bx(a, i, "r" + which)
        if i + 2 < NCH: issue(i + 2)
        if i == 7: wo_prep(a)
    stamp(a, 7)
    loader_tail(a, 0 if which == 'wq' else 1)

def kv_pos(a, sdst, which):
    m = OPT['kvmode']
    if m == 10:
        tab = [-1, 2, 4, 7]
    elif m == 11: tab = [7, 7, 7, 7]
    elif m == 12: tab = [-1, -1, -1, -1]
    elif m == 13: tab = [1, 1, 6, 6]
    elif m == 14: tab = [-1, 1, 4, 7]
    elif m == 15: tab = [0, 3, 5, 7]
    elif m == 16: tab = [2, 7, 2, 7]
    elif m == 17: tab = [3, 5, 7, 7]
    elif m == 20: tab = [-1, 1, 3, 5]
    elif m == 21: tab = [-1, 2, 4, 6]
    elif m == 22: tab = [-1, -1, 3, 3]
    elif m == 23: tab = [-1, 0, 2, 4]
    elif m == 24: tab = [0, 2, 4, 6]
    elif m == 25: tab = [-1, -1, -1, -1]
    packed = sum(((p + 1) & 15) << (4 * k) for k, p in enumerate(tab))
    a(f"s_and_b32 s{sdst}, s{S_G}, 3"); a(f"s_lshl_b32 s{sdst}, s{sdst}, 2")
    a(f"s_lshr_b32 s{sdst}, {packed}, s{sdst}"); a(f"s_and_b32 s{sdst}, s{sdst}, 15")

def bx(a, p, tag):
    if p >= 6: return
    a(f"s_cmp_lg_u32 s43, {p+1}"); a(f"s_cbranch_scc1 L_bx_{tag}_{p+1}")
    a("s_barrier")
    a.label(f"L_bx_{tag}_{p+1}")

def kv_loop(a, tag, issue_fn, extra_fn=None, extra_pos=None):
    a("s_mov_b32 s59, 0")
    a.label(f"L_{tag}_loop")
    a("s_cmp_lg_u32 s59, s43"); a(f"s_cbranch_scc1 L_{tag}_skip")
    stamp(a, 3)
    issue_fn()
    stamp(a, 4)
    a(f"s_cmp_ge_u32 s59, 7"); a(f"s_cbranch_scc1 L_{tag}_skip")
    a("s_barrier")
    a.label(f"L_{tag}_skip")
    if extra_fn is not None:
        a(f"s_cmp_lg_u32 s59, {extra_pos}"); a(f"s_cbranch_scc1 L_{tag}_skip2")
        extra_fn()
        a.label(f"L_{tag}_skip2")
    a("s_barrier")
    a("s_add_u32 s59, s59, 1")
    a("s_cmp_le_u32 s59, 8"); a(f"s_cbranch_scc1 L_{tag}_loop")

def loader_k(a):
    SRD = 32; SRD2 = 36; SO = 40
    srd(a, SRD2, P_WQ, SZ_W); srd(a, SRD, P_K, SZ_KV)
    a("v_lshrrev_b32 v1, 4, v0"); a("v_and_b32 v2, 15, v0"); a("v_xor_b32 v2, v2, v1")
    a("v_lshlrev_b32 v2, 4, v2"); a("v_lshl_add_u32 v4, v1, 8, v2")
    a("v_xor_b32 v5, 64, v4"); a("v_xor_b32 v6, 128, v4"); a("v_xor_b32 v7, 192, v4")
    wo_prep(a)
    a("v_and_b32 v8, 15, v0"); a("v_mul_u32_u24 v8, 1152, v8")
    a("v_lshrrev_b32 v9, 4, v0"); a("v_lshl_add_u32 v9, v9, 7, v8")
    kv_pos(a, 43, 'k')
    a("s_barrier")
    stamp(a, 1)
    def issue():
        a(f"s_lshl_b32 s{SO}, s{S_G}, 7"); a(f"s_add_u32 s{SO}, s{SO}, s{S_H}"); a(f"s_lshl_b32 s{SO}, s{SO}, 13")
        for w in range(4):
            for hf in range(2):
                a(f"s_mov_b32 m0, {L_K + w*8192 + hf*4096}"); a("s_nop 0")
                for t4 in range(4):
                    t = hf * 4 + t4
                    dma(a, 4 + (t >> 1), SRD, SO, off=t4 * 1024, nt=bool(OPT['k_nt']))
                a(f"s_add_u32 s{SO}, s{SO}, {4096 if hf == 0 else 32*8192 - 4096}")
    def wotouch():
        a(f"s_lshl_b32 s{SO}, s{S_X}, 5"); a(f"s_add_u32 s{SO}, s{SO}, s{S_R}")
        a(f"s_mul_i32 s{SO}, s{SO}, {16*1152}")
        a(f"buffer_load_dword v10, v9, s[52:55], s{SO} offen")
        a(f"buffer_load_dword v10, v9, s[52:55], s{SO} offen offset:512")
        a("s_mov_b64 exec, 0xffff")
        a(f"buffer_load_dword v10, v8, s[52:55], s{SO} offen offset:1024")
        a("s_mov_b64 exec, -1")
    kv_loop(a, "k", issue, wotouch, OPT['wot_pos'])
    a("s_waitcnt vmcnt(3)")
    stamp(a, 7)
    loader_tail(a, 2)

def loader_v(a):
    SRD = 32; SRD3 = 44; SO = 40
    srd(a, SRD3, P_X, SZ_X); srd(a, SRD, P_V, SZ_KV)
    a("s_cmp_lg_u32 s2, 0"); a("s_cbranch_scc1 L_nononce")
    srd(a, 48, P_DBG, 256)
    a("s_memrealtime s[42:43]"); a("s_waitcnt lgkmcnt(0)")
    a("s_or_b32 s42, s42, 1")
    a("v_mov_b32 v8, s42"); a("v_mov_b32 v9, s43"); a("v_mov_b32 v1, 0")
    a("s_mov_b64 exec, 1")
    a("buffer_store_dwordx2 v[8:9], v1, s[48:51], 0 offen sc1")
    a("s_mov_b64 exec, -1")
    a.label("L_nononce")
    if OPT['fast']:
        srd(a, 48, P_DBG, 256)
        a("s_getreg_b32 s42, hwreg(HW_REG_XCC_ID)")
        a("s_and_b32 s42, s42, 15")
        a("s_cmp_ge_u32 s42, 8"); a("s_cbranch_scc1 L_noxcc")
        a("s_mul_i32 s43, s42, s42"); a("s_lshl_b32 s43, s43, 5"); a("s_add_u32 s42, s42, s43")
        a("s_add_u32 s42, s42, 0x2000")
        a(f"s_lshl_b32 s43, s{S_G}, 3"); a(f"s_add_u32 s43, s43, s{S_X}")
        a("s_and_b32 s41, s43, 1"); a("s_lshl_b32 s41, s41, 4"); a("s_lshl_b32 s42, s42, s41")
        a("s_lshr_b32 s43, s43, 1"); a("s_lshl_b32 s43, s43, 2"); a("s_add_u32 s43, s43, 128")
        a("v_mov_b32 v8, s42"); a("v_mov_b32 v1, 0")
        a("s_mov_b64 exec, 1")
        a("buffer_atomic_add v8, v1, s[48:51], s43 offen")
        a("s_mov_b64 exec, -1")
        a.label("L_noxcc")
    a("v_lshrrev_b32 v1, 4, v0"); a("v_and_b32 v2, 15, v0"); a("v_lshlrev_b32 v3, 1, v1")
    a("v_xor_b32 v2, v2, v3"); a("v_lshlrev_b32 v2, 4, v2"); a("v_lshl_add_u32 v4, v1, 8, v2")
    a("v_xor_b32 v5, 128, v4")
    wo_prep(a)
    kv_pos(a, 43, 'v')
    a("s_barrier")
    stamp(a, 1)
    def issue():
        a(f"s_lshl_b32 s{SO}, s{S_G}, 7"); a(f"s_add_u32 s{SO}, s{SO}, s{S_H}"); a(f"s_lshl_b32 s{SO}, s{SO}, 13")
        for w in range(4):
            for hf in range(2):
                a(f"s_mov_b32 m0, {L_V + w*8192 + hf*4096}"); a("s_nop 0")
                for t4 in range(4):
                    t = hf * 4 + t4
                    dma(a, 4 + ((t >> 1) & 1), SRD, SO, off=t4 * 1024, nt=bool(OPT['v_nt']))
                a(f"s_add_u32 s{SO}, s{SO}, {4096 if hf == 0 else 32*8192 - 4096}")
    kv_loop(a, "v", issue)
    stamp(a, 7)
    loader_tail(a, 3)

V_XA = [4, 8]; V_WA = [12, 248]
V_A = [16, 32]; V_B = [48, 52]; V_ACC = 64
V_QF = 128; V_KF = 160; V_S = 192; V_VF = 208; V_PF = 240; V_OF = 128
V_KA = 56; V_VA = 60; V_CLW = 61; V_NONCE = 62
SC_SCALE = 0.08838834764831845 * 1.4426950408889634

def gemm1_addrs(a):
    a("v_and_b32 v1, 31, v0"); a("v_lshrrev_b32 v2, 5, v0"); a("v_bfe_u32 v3, v0, 1, 3")
    a("v_xor_b32 v2, v2, v3"); a("v_lshlrev_b32 v2, 4, v2"); a("v_lshl_add_u32 v2, v1, 7, v2")
    a(f"s_lshl_b32 s40, s{S_WAVE}, 12"); a("s_add_u32 s40, s40, 16384")
    a("v_add_u32 v2, s40, v2")
    for ks in range(4):
        a(f"v_xor_b32 v{V_XA[0]+ks}, {32*ks}, v2"); a(f"v_add_u32 v{V_XA[1]+ks}, 65536, v{V_XA[0]+ks}")
    a("v_bfe_u32 v1, v0, 2, 2"); a("v_lshrrev_b32 v2, 5, v0"); a("v_lshl_add_u32 v2, v2, 3, v1")
    a("v_lshlrev_b32 v2, 8, v2"); a("v_and_b32 v3, 1, v0"); a("v_lshl_add_u32 v2, v3, 5, v2")
    a("v_bfe_u32 v3, v0, 4, 1"); a("v_lshl_add_u32 v2, v3, 4, v2")
    a("v_bfe_u32 v3, v0, 1, 1"); a("v_lshl_add_u32 v2, v3, 3, v2")
    a("v_lshl_add_u32 v2, v1, 6, v2")
    for dt in range(4):
        a(f"v_xor_b32 v{V_WA[0]+dt}, {64*dt}, v2"); a(f"v_add_u32 v{V_WA[1]+dt}, 65536, v{V_WA[0]+dt}")

def attn_addrs(a):
    a("v_and_b32 v1, 15, v0"); a("v_lshrrev_b32 v2, 4, v0"); a("v_xor_b32 v2, v2, v1")
    a("v_lshlrev_b32 v2, 4, v2"); a("v_lshrrev_b32 v3, 2, v1"); a("v_lshl_add_u32 v2, v3, 11, v2")
    a("v_and_b32 v3, 3, v1"); a("v_lshl_add_u32 v2, v3, 8, v2")
    a(f"s_lshl_b32 s40, s{S_WAVE}, 13"); a(f"s_add_u32 s40, s40, {L_K}")
    a("v_add_u32 v2, s40, v2")
    for st in range(4): a(f"v_xor_b32 v{V_KA+st}, {64*st}, v2")
    a("v_lshrrev_b32 v1, 4, v0"); a("v_bfe_u32 v3, v0, 2, 2"); a("v_lshl_add_u32 v2, v1, 3, v3")
    a("v_lshlrev_b32 v2, 8, v2"); a("v_and_b32 v1, 1, v1"); a("v_lshl_add_u32 v3, v1, 2, v3")
    a("v_lshl_add_u32 v2, v3, 5, v2"); a("v_and_b32 v3, 3, v0"); a("v_lshl_add_u32 v2, v3, 3, v2")
    a(f"s_lshl_b32 s40, s{S_WAVE}, 13"); a(f"s_add_u32 s40, s40, {L_V}")
    a(f"v_add_u32 v{V_VA}, s40, v2")

def g1_reads(n):
    i, ks = divmod(n, 4)
    slot = i % 3; st = n & 1; hs = 1 if slot == 2 else 0; so = (slot & 1) * 32768 if slot < 2 else 0
    r = [f"ds_read_b128 {vr(V_B[st],4)}, v{V_XA[hs]+ks} offset:{so}"]
    for dt in range(4):
        base = V_A[st] + 4 * dt
        off = so + ks * 4096
        r.append(f"ds_read_b64_tr_b16 {vr(base,2)}, v{V_WA[hs]+dt} offset:{off}")
        r.append(f"ds_read_b64_tr_b16 {vr(base+2,2)}, v{V_WA[hs]+dt} offset:{off+1024}")
    return r

def gemm1(a):
    NS = NCH * 4
    kv_pos(a, 43, 'k')
    a("s_barrier")
    bx(a, -1, "c")
    a("s_barrier")
    stamp(a, 1)
    for r in g1_reads(0): a(r)
    for n in range(NS):
        i, ks = divmod(n, 4); st = n & 1
        nxt = g1_reads(n + 1) if n + 1 < NS else []
        def mf(dt):
            c = "0" if n == 0 else vr(V_ACC + 16 * dt, 16)
            a(f"v_mfma_f32_32x32x16_bf16 {vr(V_ACC+16*dt,16)}, {vr(V_A[st]+4*dt,4)}, {vr(V_B[st],4)}, {c}")
        if ks == 3:
            for dt in range(4):
                a(f"s_waitcnt lgkmcnt({[6,4,2,0][dt]})")
                if dt == 3 and nxt:
                    bx(a, i, "c")
                    a("s_barrier")
                    for r in nxt[:5]: a(r)
                mf(dt)
            for r in nxt[5:]: a(r)
        else:
            first_after_boundary = (ks == 0 and n > 0)
            for dt in range(4):
                a(f"s_waitcnt lgkmcnt({[6,7,8,9][dt]})")
                mf(dt)
                if dt < 3:
                    for r in nxt[3*dt:3*dt+3]: a(r)
        if n == 24:
            a(f"buffer_load_dwordx2 {vr(V_NONCE,2)}, v1, s[36:39], 0 offen sc1")
            if OPT['fast']:
                a(f"buffer_load_dword v{V_CLW}, v1, s[36:39], s40 offen sc1")
                a(f"buffer_load_dword v2, v1, s[44:47], s42 offen sc1")

def attention(a):
    a("s_barrier")
    stamp(a, 3)
    for ai in range(2):
        for st in range(4):
            a(f"ds_read_b128 {vr(V_KF+(ai*4+st)*4,4)}, v{V_KA+st} offset:{ai*1024}")
    for dt in range(4):
        for i in range(8):
            a(f"v_cvt_pk_bf16_f32 v{V_QF+8*dt+i}, v{V_ACC+16*dt+2*i}, v{V_ACC+16*dt+2*i+1}")
    a("s_nop 1")
    for dt in range(4):
        for i in range(4):
            a(f"v_permlane16_swap_b32 v{V_QF+8*dt+i}, v{V_QF+8*dt+4+i}")
    a("s_waitcnt lgkmcnt(0)")
    for st in range(4):
        for ai in range(2):
            for qt in range(2):
                d = vr(V_S + (ai*2+qt)*4, 4)
                c = "0" if st == 0 else d
                a(f"v_mfma_f32_16x16x32_bf16 {d}, {vr(V_KF+(ai*4+st)*4,4)}, {vr(V_QF+8*st+4*qt,4)}, {c}")
    def S(ai, qt, v): return V_S + (ai*2+qt)*4 + v
    M = [48, 49]; T_ = [50, 51]; SUM = [52, 53]
    a("s_nop 7")
    for qt in range(2): a(f"v_max3_f32 v{M[qt]}, v{S(0,qt,0)}, v{S(0,qt,1)}, v{S(0,qt,2)}")
    for qt in range(2): a(f"v_max3_f32 v{M[qt]}, v{M[qt]}, v{S(0,qt,3)}, v{S(1,qt,0)}")
    for qt in range(2): a(f"v_max3_f32 v{M[qt]}, v{M[qt]}, v{S(1,qt,1)}, v{S(1,qt,2)}")
    for qt in range(2): a(f"v_max_f32 v{M[qt]}, v{M[qt]}, v{S(1,qt,3)}")
    def xlane(regs, tmps, op):
        for sw in ("v_permlane16_swap_b32", "v_permlane32_swap_b32"):
            for qt in range(2): a(f"v_mov_b32 v{tmps[qt]}, v{regs[qt]}")
            a("s_nop 1")
            for qt in range(2): a(f"{sw} v{tmps[qt]}, v{regs[qt]}")
            a("s_nop 1")
            for qt in range(2): a(f"{op} v{regs[qt]}, v{regs[qt]}, v{tmps[qt]}")
    xlane(M, T_, "v_max_f32")
    a(f"s_mov_b32 s41, {f32hex(SC_SCALE)}")
    for qt in range(2): a(f"v_mul_f32 v{M[qt]}, s41, v{M[qt]}")
    for ai in range(2):
        for v in range(4):
            for qt in range(2): a(f"v_fma_f32 v{S(ai,qt,v)}, v{S(ai,qt,v)}, s41, -v{M[qt]}")
    for ai in range(2):
        for v in range(4):
            for qt in range(2): a(f"v_exp_f32 v{S(ai,qt,v)}, v{S(ai,qt,v)}")
    a("s_nop 0")
    for qt in range(2): a(f"v_add_f32 v{SUM[qt]}, v{S(0,qt,0)}, v{S(0,qt,1)}")
    for (ai, v) in [(0,2),(0,3),(1,0),(1,1),(1,2),(1,3)]:
        for qt in range(2): a(f"v_add_f32 v{SUM[qt]}, v{SUM[qt]}, v{S(ai,qt,v)}")
    xlane(SUM, T_, "v_add_f32")
    for qt in range(2): a(f"v_rcp_f32 v{SUM[qt]}, v{SUM[qt]}")
    a("s_nop 0")
    for ai in range(2):
        for v in range(4):
            for qt in range(2): a(f"v_mul_f32 v{S(ai,qt,v)}, v{S(ai,qt,v)}, v{SUM[qt]}")
    for qt in range(2):
        for ai in range(2):
            for h2 in range(2):
                a(f"v_cvt_pk_bf16_f32 v{V_PF+4*qt+2*ai+h2}, v{S(ai,qt,2*h2)}, v{S(ai,qt,2*h2+1)}")
    stamp(a, 4)
    a("s_barrier")
    for T in range(8):
        if T: a(f"v_xor_b32 v1, {32*T}, v{V_VA}")
        ad = "v1" if T else f"v{V_VA}"
        a(f"ds_read_b64_tr_b16 {vr(V_VF+4*T,2)}, {ad}")
        a(f"ds_read_b64_tr_b16 {vr(V_VF+4*T+2,2)}, {ad} offset:1024")
        if T == 5: a("s_waitcnt lgkmcnt(4)")
    a("s_waitcnt lgkmcnt(0)")
    a("s_barrier")
    for T in range(8):
        for qt in range(2):
            a(f"v_mfma_f32_16x16x32_bf16 {vr(V_ACC+(T*2+qt)*4,4)}, {vr(V_VF+4*T,4)}, {vr(V_PF+4*qt,4)}, 0")
    a("s_nop 7")
    for p in range(4):
        for qt in range(2):
            for e in range(2):
                T = 2*p + e
                for h2 in range(2):
                    src = V_ACC + (T*2+qt)*4 + 2*h2
                    a(f"v_cvt_pk_bf16_f32 v{V_OF+(2*p+qt)*4+2*e+h2}, v{src}, v{src+1}")

V2_ACC = 16
V2_A = [88, 108]
V2_AD = [4, 5, 6, 12]
BUF = [160, 192, 224]

def p2_areads(slot, p, half):
    r = []
    ad = V2_AD[slot]
    taus = range(0, 5) if half == 0 else range(5, 9)
    for k, tau in enumerate(taus):
        off = p * 32 * 288 + 32 * tau
        base = V2_A[half] + 4 * k
        r.append(f"ds_read_b64_tr_b16 {vr(base,2)}, v{ad} offset:{off}")
        r.append(f"ds_read_b64_tr_b16 {vr(base+2,2)}, v{ad} offset:{off+16*288}")
    return r

def p2_bloads(a, slot, breg):
    a(f"s_add_u32 s45, s{S_J}, {slot}"); a("s_and_b32 s45, s45, 3"); a("s_add_u32 s45, s45, s44")
    a("s_lshl_b32 s45, s45, 2"); a(f"s_add_u32 s45, s45, s{S_WAVE}")
    a("s_lshl_b32 s46, s45, 13"); a("s_add_u32 s47, s46, 4096")
    for f in range(8):
        a(f"buffer_load_dwordx4 {vr(breg+4*f,4)}, v7, s[32:35], s{46 + f//4} offen offset:{(f%4)*1024} sc1")

S_NON = 52
S_FAST = 54

def get_nonce(a):
    a("s_waitcnt vmcnt(0)")
    a("v_mov_b32 v9, 0")
    a("s_mov_b32 s50, 0")
    a.label("L_nonce_chk")
    a(f"v_readfirstlane_b32 s{S_NON}, v{V_NONCE}"); a(f"v_readfirstlane_b32 s{S_NON+1}, v{V_NONCE+1}")
    a("s_nop 0")
    a(f"s_cmp_lg_u32 s{S_NON}, 0"); a("s_cbranch_scc1 L_nonce_ok")
    a(f"buffer_load_dwordx2 {vr(V_NONCE,2)}, v9, s[36:39], 0 offen sc1")
    a("s_add_u32 s50, s50, 1"); a("s_waitcnt vmcnt(0)")
    a(f"s_cmp_lt_u32 s50, {OPT['spin_max']}"); a("s_cbranch_scc1 L_nonce_chk")
    a.label("L_nonce_ok")
    a(f"s_mov_b32 s{S_FAST}, 0")
    if OPT['fast']:
        a(f"v_readfirstlane_b32 s55, v{V_CLW}")
        a(f"s_and_b32 s56, s{S_X}, 1"); a("s_lshl_b32 s56, s56, 4"); a("s_lshr_b32 s55, s55, s56")
        a("s_and_b32 s56, s55, 31")
        a("s_bfe_u32 s57, s55, 0x80005")
        a("s_bfe_u32 s55, s55, 0x3000d")
        a("s_mul_i32 s56, s56, s56"); a("s_lshl_b32 s57, s57, 2")
        a("s_cmp_eq_u32 s56, s57"); a(f"s_cselect_b32 s{S_FAST}, 1, 0")
        a("s_cmp_eq_u32 s55, 4"); a(f"s_cselect_b32 s{S_FAST}, s{S_FAST}, 0")
        if OPT['fast'] == 2: a(f"s_mov_b32 s{S_FAST}, 0")

def poll(a, tag, voff, soff, sleep=0):
    a("s_mov_b32 s50, 0")
    a.label(f"L_poll_{tag}")
    if sleep: a(f"s_sleep {sleep}")
    a(f"buffer_load_dwordx2 v[10:11], v{voff}, s[32:35], s{soff} offen sc1")
    a("s_add_u32 s50, s50, 1"); a("s_waitcnt vmcnt(0)")
    a(f"v_cmp_eq_u64 vcc, v[10:11], s[{S_NON}:{S_NON+1}]")
    a(f"s_cmp_ge_u32 s50, {OPT['spin_max']}"); a(f"s_cbranch_scc1 L_poll_{tag}_done")
    a("s_cmp_eq_u64 vcc, -1"); a(f"s_cbranch_scc0 L_poll_{tag}")
    a.label(f"L_poll_{tag}_done")

def flag_store(a, soff, mode):
    a(f"v_mov_b32 v10, s{S_NON}"); a(f"v_mov_b32 v11, s{S_NON+1}")
    a("s_mov_b64 exec, 1")
    if mode == 'dyn':
        a(f"s_cmp_eq_u32 s{S_FAST}, 0"); a("s_cbranch_scc1 L_flag_slow")
        a(f"buffer_store_dwordx2 v[10:11], v9, s[32:35], s{soff} offen")
        a("s_branch L_flag_join")
        a.label("L_flag_slow")
        a(f"buffer_store_dwordx2 v[10:11], v9, s[32:35], s{soff} offen sc1")
        a.label("L_flag_join")
    else:
        a(f"buffer_store_dwordx2 v[10:11], v9, s[32:35], s{soff} offen sc1")
    a("s_mov_b64 exec, -1")

def o_store(a):
    srd(a, 32, P_WS, SZ_WS_USED)
    a("v_lshlrev_b32 v7, 4, v0")
    a(f"s_lshl_b32 s40, s{S_G}, 5"); a(f"s_add_u32 s40, s40, s{S_H}"); a("s_lshl_b32 s40, s40, 2")
    a(f"s_add_u32 s40, s40, s{S_WAVE}"); a("s_lshl_b32 s40, s40, 13"); a("s_add_u32 s41, s40, 4096")
    for f in range(8):
        a(f"buffer_store_dwordx4 {vr(V_OF+4*f,4)}, v7, s[32:35], s{40 + f//4} offen offset:{(f%4)*1024} sc1")
    a("v_lshrrev_b32 v2, 4, v0"); a("v_bfe_u32 v3, v0, 2, 2"); a("v_lshl_add_u32 v2, v2, 2, v3")
    a("v_mul_u32_u24 v2, 288, v2"); a("v_and_b32 v3, 3, v0")
    a(f"v_lshl_add_u32 v{V2_AD[0]}, v3, 3, v2")
    for sl in range(1, 4): a(f"v_add_u32 v{V2_AD[sl]}, {sl*W_SLOT}, v{V2_AD[0]}")
    a(f"s_lshl_b32 s44, s{S_G}, 5"); a(f"s_lshl_b32 s45, s{S_X}, 2"); a("s_add_u32 s44, s44, s45")
    a(f"s_lshl_b32 s48, s{S_G}, 3"); a(f"s_add_u32 s48, s48, s{S_X}"); a("s_lshl_b32 s48, s48, 2")
    a(f"s_add_u32 s48, s48, s{S_WAVE}"); a("s_lshl_b32 s48, s48, 7"); a(f"s_add_u32 s48, s48, {WS_F}")
    a(f"s_lshl_b32 s49, s{S_J}, 3"); a("s_add_u32 s49, s49, s48")
    a("v_and_b32 v8, 3, v0"); a("v_lshlrev_b32 v8, 3, v8")

def bload_list(slot, breg):
    setup = [f"s_add_u32 s45, s{S_J}, {slot}", "s_and_b32 s45, s45, 3", "s_add_u32 s45, s45, s44",
             "s_lshl_b32 s45, s45, 2", f"s_add_u32 s45, s45, s{S_WAVE}",
             "s_lshl_b32 s46, s45, 13", "s_add_u32 s47, s46, 4096"]
    loads = [f"buffer_load_dwordx4 {vr(breg+4*f,4)}, v7, s[32:35], s{46 + f//4} offen offset:{(f%4)*1024} sc1" for f in range(8)]
    return setup, loads

def p2_head(a, s, hs, start, prefetch=None):
    pl = []
    if prefetch:
        setup, pl = bload_list(*prefetch)
        for x in setup: a(x)
    for n in range(start, start + 8):
        (s_, p, hf) = hs[n]
        breg = V_OF if s == 0 else BUF[s - 1]
        nxt = p2_areads(*hs[n+1]) if (n + 1 < len(hs) and hs[n+1][0] == s) else []
        taus = list(range(0, 5)) if hf == 0 else list(range(5, 9))
        nown = 2 * len(taus)
        plan = [1,1,1,1,1,1,1,1,0,0] if hf == 0 else [2,1,1,1,2,1,1,1]
        issued = 0; m = 0
        inj = pl[2*(n-start):2*(n-start)+2] if (n - start) < 4 else []
        for k, tau in enumerate(taus):
            a(f"s_waitcnt lgkmcnt({nown - 2 * (k + 1) + issued})")
            for qt in range(2):
                d = vr(V2_ACC + (tau*2+qt)*4, 4)
                c = "0" if (s == 0 and p == 0) else d
                a(f"v_mfma_f32_16x16x32_bf16 {d}, {vr(V2_A[hf]+4*k,4)}, {vr(breg+(2*p+qt)*4,4)}, {c}")
                if nxt:
                    for r in nxt[issued:issued+plan[m]]: a(r)
                    issued = min(len(nxt), issued + plan[m])
                m += 1
                if k == len(taus) - 1 and inj: a(inj.pop(0))

def tail(a):
    hs = [(s, p, hf) for s in range(4) for p in range(4) for hf in range(2)]
    o_store(a)
    a("s_barrier")
    stamp(a, 6)
    for r in p2_areads(*hs[0]): a(r)
    p2_head(a, 0, hs, 0)
    a("s_waitcnt vmcnt(0)")
    flag_store(a, 49, 'dyn')
    stamp(a, 7)
    poll(a, "o", 8, 48, sleep=OPT.get('o_sleep', 0))
    stamp(a, 8)
    p2_bloads(a, 1, BUF[0])
    a("s_barrier")
    tstamp(a, 1)
    for r in p2_areads(*hs[8]): a(r)
    a("s_waitcnt vmcnt(0)")
    tstamp(a, 2)
    p2_head(a, 1, hs, 8, prefetch=(2, BUF[1]))
    tstamp(a, 3)
    a("s_barrier")
    tstamp(a, 4)
    for r in p2_areads(*hs[16]): a(r)
    a("s_waitcnt vmcnt(0)")
    p2_head(a, 2, hs, 16, prefetch=(3, BUF[2]))
    tstamp(a, 13)
    a("s_barrier")
    for r in p2_areads(*hs[24]): a(r)
    a("s_waitcnt vmcnt(0)")
    p2_head(a, 3, hs, 24)
    stamp(a, 9)
    if OPT['dk']: reduce_inkernel(a)
    elif OPT.get('k3bf', 0): store_partials_bf16(a)
    else: store_partials_f32(a)

def store_partials_f32(a):
    a("s_nop 7")
    a(f"s_lshl_b32 s45, s{S_X}, 3"); a(f"s_add_u32 s45, s45, s{S_G}"); a("s_lshl_b32 s45, s45, 2")
    a(f"s_add_u32 s45, s45, s{S_J}"); a("s_lshl_b32 s45, s45, 2"); a(f"s_add_u32 s45, s45, s{S_WAVE}")
    a(f"s_mul_i32 s45, s45, {18*1024}"); a(f"s_add_u32 s45, s45, {WS_P}")
    for u in range(18):
        if u and u % 4 == 0: a("s_add_u32 s45, s45, 4096")
        a(f"buffer_store_dwordx4 {vr(V2_ACC+4*u,4)}, v7, s[32:35], s45 offen offset:{(u%4)*1024}")

def store_partials_bf16(a):
    G = 160
    a(f"s_lshl_b32 s44, s{S_G}, 2"); a(f"s_add_u32 s44, s44, s{S_J}"); a("s_lshl_b32 s44, s44, 2")
    a(f"s_add_u32 s44, s44, s{S_WAVE}")
    a(f"s_lshl_b32 s45, s{S_X}, 7"); a("s_add_u32 s45, s45, s44"); a("s_mul_i32 s45, s45, 9216")
    a(f"s_add_u32 s45, s45, {WS_P}"); a("s_add_u32 s46, s45, 4096"); a("s_add_u32 s47, s45, 8192")
    sc = " sc1" if OPT.get('psc1', 1) else ""
    for tau in range(9):
        for qt in range(2):
            for h2 in range(2):
                src = V2_ACC + (tau*2+qt)*4 + 2*h2
                a(f"v_cvt_pk_bf16_f32 v{G+4*tau+2*qt+h2}, v{src}, v{src+1}")
        a(f"buffer_store_dwordx4 {vr(G+4*tau,4)}, v7, s[32:35], s{45 + tau//4} offen offset:{(tau%4)*1024}{sc}")

def kernel3b(a):
    name = "mha_p3_kernel"
    a(".p2align 8"); a(f".globl {name}"); a(f".type {name},@function"); a.label(name)
    a("s_cmp_ge_u32 s2, 288"); a(f"s_cbranch_scc1 L_end_{name}")
    a("s_load_dwordx2 s[26:27], s[0:1], 40"); a("s_load_dwordx2 s[30:31], s[0:1], 56")
    a("v_lshrrev_b32 v1, 6, v0"); a("v_and_b32 v0, 63, v0")
    a("s_lshl_b32 s5, s2, 2")
    a(f"v_readfirstlane_b32 s{S_WAVE}, v1")
    a("v_lshlrev_b32 v1, 4, v0")
    a(f"s_add_u32 s5, s5, s{S_WAVE}")
    a("s_mul_i32 s45, s5, 1024"); a(f"s_add_u32 s45, s45, {WS_P}")
    a("s_mul_hi_u32 s6, s5, 477218589")
    a("s_mul_i32 s7, s6, 9"); a("s_sub_u32 s7, s5, s7")
    a("s_waitcnt lgkmcnt(0)")
    srd(a, 32, P_WS, SZ_WS_USED); srd(a, 36, P_OUT, SZ_OUT)
    for x in range(8):
        a(f"buffer_load_dwordx4 {vr(8+4*x,4)}, v1, s[32:35], s45 offen")
        if x < 7: a(f"s_add_u32 s45, s45, {128*9216}")
    a("v_and_b32 v2, 15, v0"); a("v_mul_u32_u24 v2, 1152, v2"); a("v_lshrrev_b32 v3, 4, v0")
    a("v_lshl_add_u32 v2, v3, 3, v2")
    a("s_lshr_b32 s46, s6, 4"); a("s_lshl_b32 s46, s46, 2"); a("s_and_b32 s47, s6, 3"); a("s_add_u32 s46, s46, s47")
    a(f"s_mul_i32 s46, s46, {32*1152}")
    a("s_lshr_b32 s47, s6, 2"); a("s_and_b32 s47, s47, 3"); a("s_mul_i32 s47, s47, 288"); a("s_add_u32 s46, s46, s47")
    a("s_lshl_b32 s47, s7, 5"); a("s_add_u32 s46, s46, s47"); a(f"s_add_u32 s47, s46, {16*1152}")
    for x in range(8):
        a(f"s_waitcnt vmcnt({7-x})")
        for d in range(4):
            src = 8 + 4*x + d
            if x == 0:
                a(f"v_lshlrev_b32 v{40+2*d}, 16, v{src}"); a(f"v_and_b32 v{40+2*d+1}, 0xffff0000, v{src}")
            else:
                a(f"v_lshlrev_b32 v48, 16, v{src}"); a(f"v_and_b32 v49, 0xffff0000, v{src}")
                a(f"v_pk_add_f32 v[{40+2*d}:{40+2*d+1}], v[{40+2*d}:{40+2*d+1}], v[48:49]")
    for d in range(4): a(f"v_cvt_pk_bf16_f32 v{50+d}, v{40+2*d}, v{40+2*d+1}")
    a("buffer_store_dwordx2 v[50:51], v2, s[36:39], s46 offen")
    a("buffer_store_dwordx2 v[52:53], v2, s[36:39], s47 offen")
    a.label(f"L_end_{name}")
    a("s_endpgm")

def reduce_inkernel(a):
    G = 160
    R1 = 196
    R2 = 88
    if OPT.get('d_coal', 0):
        a("v_lshrrev_b32 v13, 3, v0"); a("v_mul_u32_u24 v13, 9216, v13")
        a("v_and_b32 v14, 7, v0"); a("v_lshl_add_u32 v13, v14, 4, v13")
    else:
        a("v_bfe_u32 v13, v0, 1, 3"); a("v_mul_u32_u24 v13, 9216, v13")
        a("v_lshrrev_b32 v14, 4, v0"); a("v_lshlrev_b32 v14, 1, v14"); a("v_and_b32 v15, 1, v0")
        a("v_add_u32 v14, v14, v15"); a("v_lshl_add_u32 v13, v14, 4, v13")
    a(f"s_lshl_b32 s44, s{S_G}, 2"); a(f"s_add_u32 s44, s44, s{S_J}"); a("s_lshl_b32 s44, s44, 2")
    a(f"s_add_u32 s44, s44, s{S_WAVE}")
    a("s_mul_i32 s45, s44, 73728"); a(f"s_add_u32 s45, s45, {WS_D}")
    a(f"s_mul_i32 s46, s{S_X}, 1152"); a("s_add_u32 s46, s46, s45")
    if OPT.get('d_sep', 0):
        a("s_lshl_b32 s48, s44, 10"); a(f"s_add_u32 s48, s48, {WS_F2}")
        a(f"s_lshl_b32 s49, s{S_X}, 7"); a("s_add_u32 s49, s49, s48")
        a("v_and_b32 v8, 7, v0"); a("v_lshlrev_b32 v8, 7, v8")
    else:
        a("s_lshl_b32 s48, s44, 7"); a(f"s_add_u32 s48, s48, {WS_F2}")
        a(f"s_lshl_b32 s49, s{S_X}, 3"); a("s_add_u32 s49, s49, s48")
        a("v_and_b32 v8, 7, v0"); a("v_lshlrev_b32 v8, 3, v8")
    a("s_nop 3")
    for tau in range(9):
        for qt in range(2):
            for h2 in range(2):
                src = V2_ACC + (tau*2+qt)*4 + 2*h2
                a(f"v_cvt_pk_bf16_f32 v{G+4*tau+2*qt+h2}, v{src}, v{src+1}")
        a(f"buffer_store_dwordx4 {vr(G+4*tau,4)}, v13, s[32:35], s46 offen offset:{128*tau} sc1")
    if OPT.get('d_coal', 0):
        a("v_and_b32 v14, 7, v0"); a("v_mul_u32_u24 v14, 1152, v14")
        a("v_add_u32 v15, 256, v14")
        a("v_lshrrev_b32 v13, 3, v0"); a("v_lshl_add_u32 v14, v13, 5, v14")
        srd(a, 36, P_OUT, SZ_OUT)
        a(f"s_lshl_b32 s56, s{S_G}, 2"); a(f"s_add_u32 s56, s56, s{S_WAVE}"); a("s_lshl_b32 s56, s56, 5")
        a(f"s_and_b32 s57, s{S_X}, 1"); a("s_lshl_b32 s57, s57, 3"); a("s_add_u32 s56, s56, s57"); a("s_mul_i32 s56, s56, 1152")
        a(f"s_lshr_b32 s57, s{S_X}, 1"); a("s_lshl_b32 s57, s57, 3"); a("s_add_u32 s56, s56, s57")
    else:
        a("v_and_b32 v14, 1, v0"); a("v_mul_u32_u24 v14, 1152, v14")
        a("v_bfe_u32 v15, v0, 1, 2"); a("v_lshl_add_u32 v14, v15, 3, v14")
        a("v_add_u32 v15, 256, v14")
        a("v_lshrrev_b32 v13, 3, v0"); a("v_lshl_add_u32 v14, v13, 5, v14")
        srd(a, 36, P_OUT, SZ_OUT)
        a(f"s_lshl_b32 s56, s{S_G}, 2"); a(f"s_add_u32 s56, s56, s{S_WAVE}"); a("s_lshl_b32 s56, s56, 5")
        a(f"s_lshl_b32 s57, s{S_X}, 1"); a("s_add_u32 s56, s56, s57"); a("s_mul_i32 s56, s56, 1152")
    a(f"s_mul_i32 s57, s{S_J}, 288"); a("s_add_u32 s56, s56, s57")
    a(f"s_add_u32 s57, s56, {16*1152}")
    a(f"s_mul_i32 s47, s{S_X}, 9216"); a("s_add_u32 s47, s47, s45")
    a("s_waitcnt vmcnt(0)")
    flag_store(a, 49, 'sc1')
    stamp(a, 10)
    poll(a, "d", 8, 48, sleep=OPT.get('d_sleep', 0))
    stamp(a, 11)
    for sx in range(8):
        a(f"buffer_load_dwordx4 {vr(R1+4*sx,4)}, v7, s[32:35], s47 offen sc1")
        a("s_mov_b64 exec, 0xff")
        a(f"buffer_load_dwordx4 {vr(R2+4*sx,4)}, v7, s[32:35], s47 offen offset:1024 sc1")
        a("s_mov_b64 exec, -1")
        if sx < 7: a("s_add_u32 s47, s47, 1152")
    A1 = 16; A2 = 24
    def summ(R, A, waitbase):
        for sx in range(8):
            if waitbase is not None: a(f"s_waitcnt vmcnt({waitbase - 2*sx})")
            for d in range(4):
                src = R + 4*sx + d
                if sx == 0:
                    a(f"v_lshlrev_b32 v{A+2*d}, 16, v{src}"); a(f"v_and_b32 v{A+2*d+1}, 0xffff0000, v{src}")
                else:
                    a(f"v_lshlrev_b32 v32, 16, v{src}"); a(f"v_and_b32 v33, 0xffff0000, v{src}")
                    a(f"v_add_f32 v{A+2*d}, v{A+2*d}, v32"); a(f"v_add_f32 v{A+2*d+1}, v{A+2*d+1}, v33")
    summ(R1, A1, 14)
    summ(R2, A2, None)
    for A, voff, ex in ((A1, 14, None), (A2, 15, "0xff")):
        for d in range(4): a(f"v_cvt_pk_bf16_f32 v{34+d}, v{A+2*d}, v{A+2*d+1}")
        if ex: a(f"s_mov_b64 exec, {ex}")
        a(f"buffer_store_dwordx2 v[34:35], v{voff}, s[36:39], s56 offen")
        a(f"buffer_store_dwordx2 v[36:37], v{voff}, s[36:39], s57 offen")
        if ex: a("s_mov_b64 exec, -1")
        a("s_nop 1")

def KNAME():
    return "standalone__mha_block_cached__near_ridge_kernel" if OPT['dk'] else "mha_a_kernel"

def kernelA(a):
    global KIDX
    KIDX = 0
    name = KNAME()
    prologue(a, name)
    stamp_init(a); stamp(a, 0); cstamp(a, 14)
    a(f"s_cmp_lt_u32 s{S_WAVE}, 4"); a("s_cbranch_scc1 L_a_compute")
    a(f"s_cmp_eq_u32 s{S_WAVE}, 6"); a("s_cbranch_scc1 L_a_ldk")
    a(f"s_cmp_eq_u32 s{S_WAVE}, 4"); a("s_cbranch_scc1 L_a_ldwq")
    a(f"s_cmp_eq_u32 s{S_WAVE}, 5"); a("s_cbranch_scc1 L_a_ldx")
    loader_v(a); stamp_flush(a); a("s_endpgm")
    a.label("L_a_ldk"); loader_k(a); stamp_flush(a); a("s_endpgm")
    a.label("L_a_ldwq"); loader_ring(a, 'wq'); stamp_flush(a); a("s_endpgm")
    a.label("L_a_ldx"); loader_ring(a, 'x'); stamp_flush(a); a("s_endpgm")
    a.label("L_a_compute")
    CUR['compute'] = True
    srd(a, 36, P_DBG, 256)
    gemm1_addrs(a); attn_addrs(a)
    a("v_mov_b32 v1, 0")
    a(f"s_lshl_b32 s40, s{S_G}, 3"); a(f"s_add_u32 s40, s40, s{S_X}"); a("s_lshr_b32 s40, s40, 1")
    a("s_lshl_b32 s40, s40, 2"); a("s_add_u32 s40, s40, 128")
    srd(a, 44, P_WS, SZ_WS_USED)
    a(f"s_lshl_b32 s42, s{S_G}, 3"); a(f"s_add_u32 s42, s42, s{S_X}"); a("s_lshl_b32 s42, s42, 2")
    a(f"s_add_u32 s42, s42, s{S_WAVE}"); a("s_lshl_b32 s42, s42, 7"); a(f"s_add_u32 s42, s42, {WS_F}")
    gemm1(a); get_nonce(a); stamp(a, 2)
    attention(a); stamp(a, 5)
    tail(a)
    if OPT['stamps']: a("s_waitcnt vmcnt(0)")
    stamp(a, 12); cstamp(a, 15); stamp_flush(a)
    if OPT.get('probe', -1) >= 0:
        a("s_waitcnt vmcnt(0)")
        a(f"s_sub_u32 s62, s60, s{S_NON}"); a(f"s_mul_i32 s62, s62, {OPT.get('probek', 8)}")
        a("s_memrealtime s[64:65]"); a("s_waitcnt lgkmcnt(0)")
        a("s_add_u32 s62, s62, s64")
        a("s_mov_b32 s63, 0")
        a.label("L_probe_spin")
        a("s_memrealtime s[64:65]"); a("s_waitcnt lgkmcnt(0)")
        a("s_add_u32 s63, s63, 1"); a("s_cmp_gt_u32 s63, 100000"); a("s_cbranch_scc1 L_probe_done")
        a("s_sub_u32 s66, s62, s64"); a("s_cmp_gt_i32 s66, 0"); a("s_cbranch_scc1 L_probe_spin")
        a.label("L_probe_done")
    a.label(f"L_end_{name}")
    a("s_endpgm")

def kernel3(a):
    global KIDX
    KIDX = 1
    name = "mha_p3_kernel"
    a(".p2align 8"); a(f".globl {name}"); a(f".type {name},@function"); a.label(name)
    a("s_cmp_ge_u32 s2, 256"); a(f"s_cbranch_scc1 L_end_{name}")
    a("s_load_dwordx16 s[16:31], s[0:1], 0")
    a("v_lshrrev_b32 v1, 6, v0"); a("v_and_b32 v0, 63, v0")
    a("s_lshr_b32 s5, s2, 1")
    a("s_and_b32 s6, s2, 1")
    a(f"v_readfirstlane_b32 s{S_WAVE}, v1")
    a("s_mul_i32 s6, s6, 9")
    a("s_waitcnt lgkmcnt(0)")
    stamp_init(a); stamp(a, 0); cstamp(a, 14)
    a(f"s_add_u32 s6, s6, s{S_WAVE}")
    srd(a, 32, P_WS, SZ_WS_USED); srd(a, 36, P_OUT, SZ_OUT)
    a("v_lshlrev_b32 v1, 4, v0")
    a("s_mul_i32 s45, s5, 18"); a("s_add_u32 s45, s45, s6"); a("s_lshl_b32 s45, s45, 10")
    a(f"s_add_u32 s45, s45, {WS_P}")
    for x in range(8):
        a(f"buffer_load_dwordx4 {vr(8+4*x,4)}, v1, s[32:35], s45 offen")
        if x < 7: a(f"s_add_u32 s45, s45, {128*18*1024}")
    a("v_and_b32 v2, 15, v0"); a("v_mul_u32_u24 v2, 1152, v2"); a("v_lshrrev_b32 v3, 4, v0")
    a("v_lshl_add_u32 v2, v3, 3, v2")
    a("s_lshr_b32 s46, s5, 4"); a("s_lshl_b32 s46, s46, 2"); a("s_and_b32 s47, s5, 3"); a("s_add_u32 s46, s46, s47")
    a(f"s_mul_i32 s46, s46, {32*1152}")
    a("s_lshr_b32 s47, s5, 2"); a("s_and_b32 s47, s47, 3"); a("s_mul_i32 s47, s47, 288"); a("s_add_u32 s46, s46, s47")
    a("s_and_b32 s47, s6, 1"); a(f"s_mul_i32 s47, s47, {16*1152}"); a("s_add_u32 s46, s46, s47")
    a("s_lshr_b32 s47, s6, 1"); a("s_lshl_b32 s47, s47, 5"); a("s_add_u32 s46, s46, s47")
    a("s_waitcnt vmcnt(0)")
    for v in range(4):
        for x in range(0, 8, 2): a(f"v_add_f32 v{8+4*x+v}, v{8+4*x+v}, v{12+4*x+v}")
    for v in range(4):
        a(f"v_add_f32 v{8+v}, v{8+v}, v{16+v}"); a(f"v_add_f32 v{24+v}, v{24+v}, v{32+v}")
    for v in range(4): a(f"v_add_f32 v{8+v}, v{8+v}, v{24+v}")
    a("v_cvt_pk_bf16_f32 v8, v8, v9"); a("v_cvt_pk_bf16_f32 v9, v10, v11")
    a("buffer_store_dwordx2 v[8:9], v2, s[36:39], s46 offen")
    if OPT['stamps']:
        a("s_waitcnt vmcnt(0)")
        stamp(a, 10); cstamp(a, 15)
        a(f"s_cmp_ge_u32 s{S_WAVE}, 8"); a("s_cbranch_scc1 L_end_mha_p3_kernel")
        stamp_flush(a, 44)
    a.label(f"L_end_{name}")
    a("s_endpgm")

def descriptor(a, name, vgpr, sgpr=102):
    a(f".amdhsa_kernel {name}")
    a(f".amdhsa_next_free_vgpr {vgpr}"); a(f".amdhsa_next_free_sgpr {sgpr}"); a(f".amdhsa_accum_offset {vgpr}")
    a(".amdhsa_group_segment_fixed_size 0"); a(".amdhsa_kernarg_size 64")
    a(".amdhsa_user_sgpr_count 2"); a(".amdhsa_user_sgpr_kernarg_segment_ptr 1")
    a(".amdhsa_system_sgpr_workgroup_id_x 1"); a(".end_amdhsa_kernel")

def main():
    out = sys.argv[1]
    for arg in sys.argv[2:]:
        if arg == "--stamps": OPT['stamps'] = True
        elif "=" in arg:
            k, v = arg.lstrip("-").split("="); OPT[k] = int(v)
    a = Asm()
    hdr = "; MHA block (Q-proj + attention + out-proj), generated by gen3.py\n"
    if OPT['dk']:
        hdr += "; @launch grid=(256,1,1) block=(512,1,1) lds=163840\n"
    else:
        hdr += "; @launch kernel=mha_a_kernel grid=(256,1,1) block=(512,1,1) lds=163840\n"
        if OPT.get('k3bf', 0): hdr += "; @launch kernel=mha_p3_kernel grid=(288,1,1) block=(256,1,1) lds=0\n"
        else: hdr += "; @launch kernel=mha_p3_kernel grid=(256,1,1) block=(576,1,1) lds=0\n"
    a('.amdgcn_target "amdgcn-amd-amdhsa--gfx950"'); a(".text")
    kernelA(a)
    if not OPT['dk']:
        if OPT.get('k3bf', 0): kernel3b(a)
        else: kernel3(a)
    a('.section .rodata,"a"'); a(".p2align 6"); descriptor(a, KNAME(), 256)
    if not OPT['dk']:
        a(".p2align 6"); descriptor(a, "mha_p3_kernel", 56)
    open(out, "w").write(hdr + a.text())

if __name__ == "__main__": main()
```

```python
import sys, struct

class Asm:
    def __init__(self): self.l = []
    def __call__(self, s=""):
        for x in s.split("\n"):
            x = x.strip()
            self.l.append(x if (x.endswith(":") or x.startswith(".")) else "  " + x)
    def label(self, s): self.l.append(s + ":")
    def text(self): return "\n".join(self.l) + "\n"

def vr(b, n=1): return f"v{b}" if n == 1 else f"v[{b}:{b+n-1}]"
def f32hex(x): return "0x%08x" % struct.unpack("<I", struct.pack("<f", x))[0]

P_X, P_K, P_V, P_WQ, P_WO, P_OUT, P_DBG, P_WS = 16, 18, 20, 22, 24, 26, 28, 30
SZ_X, SZ_KV, SZ_W, SZ_OUT = 1179648, 8388608, 4718592, 1179648
WS_O = 0
WS_P = 8 << 20
WS_F = 28 << 20
WS_F2 = (28 << 20) + (1 << 19)
WS_D = 8 << 20
WS_STAMP = 32 << 20
SZ_WS_USED = 64 << 20
S_WAVE, S_X, S_R, S_J, S_G, S_H = 3, 4, 5, 6, 9, 10

OPT = dict(stamps=False, fast=1, spin_max=2000000, kvmode=20, d_sleep=3, o_sleep=1, k_nt=1, v_nt=1, wot_pos=8, dk=1)

def srd(a, base, ptr, size, add=0):
    if add:
        a(f"s_add_u32 s{base}, s{ptr}, {add}"); a(f"s_addc_u32 s{base+1}, s{ptr+1}, 0")
        a(f"s_and_b32 s{base+1}, s{base+1}, 0xffff")
    else:
        a(f"s_mov_b32 s{base}, s{ptr}"); a(f"s_and_b32 s{base+1}, s{ptr+1}, 0xffff")
    a(f"s_mov_b32 s{base+2}, {size}"); a(f"s_mov_b32 s{base+3}, 0x00020000")

def prologue(a, name, nwg=256):
    a(".p2align 8"); a(f".globl {name}"); a(f".type {name},@function"); a.label(name)
    a(f"s_cmp_ge_u32 s2, {nwg}"); a(f"s_cbranch_scc1 L_end_{name}")
    a("s_load_dwordx16 s[16:31], s[0:1], 0")
    a("v_lshrrev_b32 v1, 6, v0"); a("v_and_b32 v0, 63, v0")
    a(f"s_and_b32 s{S_X}, s2, 7"); a(f"s_lshr_b32 s{S_R}, s2, 3")
    a(f"v_readfirstlane_b32 s{S_WAVE}, v1")
    a(f"s_and_b32 s{S_J}, s{S_R}, 3"); a(f"s_lshr_b32 s{S_G}, s{S_R}, 2")
    a(f"s_lshl_b32 s{S_H}, s{S_X}, 2"); a(f"s_add_u32 s{S_H}, s{S_H}, s{S_J}")
    a("s_waitcnt lgkmcnt(0)")

KIDX = 0
CUR = {}
def tstamp(a, idx):
    if OPT.get('tailstamps', 0): stamp(a, idx, force=True)
def stamp(a, idx, force=False):
    if OPT.get('probe', -1) == idx and CUR.get('compute') and (force or not (OPT.get('tailstamps', 0) and idx in (1,2,3,4,13))):
        a("s_memrealtime s[60:61]"); a("s_waitcnt lgkmcnt(0)")
        return
    if not OPT['stamps']: return
    if OPT.get('tailstamps', 0) and not force and idx in (1,2,3,4,13) and CUR.get('compute'): return
    a(f"s_memrealtime s[{60+2*idx}:{61+2*idx}]"); a("s_waitcnt lgkmcnt(0)")
def cstamp(a, idx):
    if not OPT['stamps']: return
    a(f"s_memtime s[{60+2*idx}:{61+2*idx}]"); a("s_waitcnt lgkmcnt(0)")
def stamp_init(a):
    if not OPT['stamps']: return
    for i in range(16): a(f"s_mov_b64 s[{60+2*i}:{61+2*i}], 0")
def stamp_flush(a, vb=250):
    if not OPT['stamps']: return
    srd(a, 92, P_WS, 256*16*16*8, add=WS_STAMP + KIDX*256*8*16*8)
    a("s_lshl_b32 s96, s2, 3"); a(f"s_add_u32 s96, s96, s{S_WAVE}"); a("s_lshl_b32 s96, s96, 7")
    a(f"v_mov_b32 v{vb+2}, 0")
    for i in range(16):
        a(f"v_mov_b32 v{vb}, s{60+2*i}"); a(f"v_mov_b32 v{vb+1}, s{61+2*i}")
        a(f"buffer_store_dwordx2 v[{vb}:{vb+1}], v{vb+2}, s[92:95], s96 offen offset:{i*8}")
        a("s_nop 1")
    a("s_waitcnt vmcnt(0)")

L_K = 98304; L_V = 131072; NCH = 9
W_SLOT = 36864

def dma(a, voff, srdb, soff, off=0, nt=False):
    a(f"buffer_load_dwordx4 v{voff}, s[{srdb}:{srdb+3}], s{soff} offen" + (f" offset:{off}" if off else "") + (" nt" if nt else "") + " lds")

V_WOV = 16
def wo_prep(a):
    srd(a, 52, P_WO, SZ_W)
    for t in range(9):
        a(f"v_add_u32 v1, {64*t}, v0")
        a("v_mul_u32_u24 v2, 3641, v1")
        a("v_lshrrev_b32 v2, 16, v2")
        a("v_mul_u32_u24 v3, 18, v2")
        a("v_sub_u32 v3, v1, v3")
        a("v_lshlrev_b32 v3, 4, v3")
        a("v_mul_u32_u24 v2, 1152, v2")
        a(f"v_add_u32 v{V_WOV+t}, v2, v3")
    a(f"s_mul_i32 s56, s{S_J}, 288")
def wo_issue(a, slot, q0, nq):
    a(f"s_add_u32 s57, s{S_J}, {slot}"); a("s_and_b32 s57, s57, 3")
    a(f"s_lshl_b32 s58, s{S_X}, 2"); a("s_add_u32 s57, s57, s58")
    a(f"s_mul_i32 s57, s57, {128*1152}"); a("s_add_u32 s57, s57, s56")
    if q0: a(f"s_add_u32 s57, s57, {q0*32*1152}")
    a(f"s_mov_b32 m0, {slot*W_SLOT + q0*32*288}"); a("s_nop 0")
    for blk in range(nq):
        for t in range(9):
            dma(a, V_WOV + t, 52, 57)
            if not (blk == nq - 1 and t == 8):
                a("s_add_u32 m0, m0, 1024")
                if t == 8: a(f"s_add_u32 s57, s57, {32*1152}")
                else: a("s_nop 0")

def loader_tail(a, role):
    a("s_barrier")
    stamp(a, 8)
    if role < 2:
        wo_issue(a, 0, 2 * role, 2); wo_issue(a, 1, 2 * role, 2)
    if role == 3: a("s_waitcnt vmcnt(0)")
    stamp(a, 9)
    a("s_barrier")
    if role < 2: a("s_waitcnt vmcnt(18)")
    a("s_barrier")
    a("s_barrier")
    wo_issue(a, 2, role, 1)
    stamp(a, 10)
    if role < 2: a("s_waitcnt vmcnt(9)")
    a("s_barrier")
    wo_issue(a, 3, role, 1)
    a("s_waitcnt vmcnt(9)")
    a("s_barrier")
    a("s_waitcnt vmcnt(0)")
    stamp(a, 11)
    a("s_barrier")

def loader_ring(a, which):
    SRD = 32; SO = 40
    if which == 'wq':
        srd(a, SRD, P_WQ, SZ_W)
        a("v_lshrrev_b32 v1, 4, v0"); a("v_and_b32 v2, 15, v0")
        a("v_lshlrev_b32 v3, 2, v1"); a("v_xor_b32 v3, v3, v2"); a("v_lshlrev_b32 v3, 4, v3")
        a("v_lshlrev_b32 v4, 13, v1"); a("v_add_u32 v4, v4, v3")
        a(f"s_lshl_b32 s{SO}, s{S_H}, 8")
        def issue(kc):
            a(f"s_mov_b32 m0, {(kc%3)*32768}")
            for t in range(16):
                if t == 0: a("s_nop 0")
                dma(a, 4, SRD, SO)
                a(f"s_add_u32 s{SO}, s{SO}, 32768")
                if t < 15:
                    a("s_add_u32 m0, m0, 1024"); a("s_nop 0")
    else:
        srd(a, SRD, P_X, SZ_X)
        a("v_lshrrev_b32 v1, 3, v0"); a("v_mul_u32_u24 v1, 1152, v1")
        a("v_and_b32 v2, 7, v0"); a("v_lshrrev_b32 v3, 4, v0"); a("v_xor_b32 v2, v2, v3")
        a("v_lshlrev_b32 v4, 4, v2"); a("v_add_u32 v4, v4, v1")
        a("v_xor_b32 v2, 4, v2"); a("v_lshlrev_b32 v5, 4, v2"); a("v_add_u32 v5, v5, v1")
        a(f"s_mul_i32 s{SO+1}, s{S_G}, 147456")
        def issue(kc):
            a(f"s_mov_b32 m0, {(kc%3)*32768 + 16384}")
            a(f"s_add_u32 s{SO}, s{SO+1}, {kc*128}")
            for T in range(16):
                dma(a, 4 + (T & 1), SRD, SO)
                if T < 15:
                    a("s_add_u32 m0, m0, 1024"); a(f"s_add_u32 s{SO}, s{SO}, 9216")
    kv_pos(a, 43, 'k')
    if which == 'wq':
        a("v_lshrrev_b32 v8, 1, v0"); a("v_and_b32 v9, 1, v0")
        a("v_lshlrev_b32 v8, 13, v8"); a("v_lshl_add_u32 v8, v9, 7, v8")
        a(f"s_lshl_b32 s46, s{S_G}, {5+13}"); a(f"s_lshl_b32 s47, s{S_H}, 8"); a("s_add_u32 s46, s46, s47")
        def touch(part):
            if part == 0:
                a(f"buffer_load_dword v10, v8, s[{SRD}:{SRD+3}], s46 offen")
            else:
                a(f"s_add_u32 s46, s46, {256*8192}")
                a(f"buffer_load_dword v10, v8, s[{SRD}:{SRD+3}], s46 offen")
                a(f"s_lshl_b32 s46, s{S_G}, {3+13}"); a("s_add_u32 s46, s46, s47"); a(f"s_add_u32 s46, s46, {512*8192}")
                a("s_mov_b64 exec, 0xffff")
                a(f"buffer_load_dword v10, v8, s[{SRD}:{SRD+3}], s46 offen")
                a("s_mov_b64 exec, -1")
        NT1 = 2
    else:
        a("v_and_b32 v9, 31, v0"); a("v_mul_u32_u24 v9, 1152, v9")
        a("v_lshrrev_b32 v8, 5, v0"); a("v_lshl_add_u32 v8, v8, 7, v9")
        a(f"s_mul_i32 s46, s{S_G}, 147456"); a(f"s_mul_i32 s47, s{S_J}, {32*1152}"); a("s_add_u32 s46, s46, s47")
        def touch(part):
            if part == 0:
                a(f"buffer_load_dword v10, v8, s[{SRD}:{SRD+3}], s46 offen")
            else:
                for t in range(1, 4):
                    a(f"buffer_load_dword v10, v8, s[{SRD}:{SRD+3}], s46 offen offset:{256*t}")
                a("s_mov_b64 exec, 0xffffffff")
                a(f"buffer_load_dword v10, v9, s[{SRD}:{SRD+3}], s46 offen offset:1024")
                a("s_mov_b64 exec, -1")
        NT1 = 4
    touch(0)
    issue(0); stamp(a, 1)
    touch(1)
    a("s_barrier")
    bx(a, -1, "r" + which)
    issue(1)
    stamp(a, 2)
    a(f"s_waitcnt vmcnt({16 + NT1})")
    stamp(a, 3)
    a("s_barrier")
    bx(a, 0, "r" + which)
    issue(2)
    for i in range(1, NCH):
        last_issued = min(i + 1, NCH - 1)
        a(f"s_waitcnt vmcnt({(last_issued - i) * 16})")
        a("s_barrier")
        if which == 'wq' and i in (1,2,3,4): stamp(a, {1:4,2:5,3:6,4:12}[i])
        if which == 'x' and i in (5,6,7,8): stamp(a, {5:4,6:5,7:6,8:12}[i])
        if i < 8: bx(a, i, "r" + which)
        if i + 2 < NCH: issue(i + 2)
        if i == 7: wo_prep(a)
    stamp(a, 7)
    loader_tail(a, 0 if which == 'wq' else 1)

def kv_pos(a, sdst, which):
    m = OPT['kvmode']
    if m == 10:
        tab = [-1, 2, 4, 7]
    elif m == 11: tab = [7, 7, 7, 7]
    elif m == 12: tab = [-1, -1, -1, -1]
    elif m == 13: tab = [1, 1, 6, 6]
    elif m == 14: tab = [-1, 1, 4, 7]
    elif m == 15: tab = [0, 3, 5, 7]
    elif m == 16: tab = [2, 7, 2, 7]
    elif m == 17: tab = [3, 5, 7, 7]
    elif m == 20: tab = [-1, 1, 3, 5]
    elif m == 21: tab = [-1, 2, 4, 6]
    elif m == 22: tab = [-1, -1, 3, 3]
    elif m == 23: tab = [-1, 0, 2, 4]
    elif m == 24: tab = [0, 2, 4, 6]
    elif m == 25: tab = [-1, -1, -1, -1]
    packed = sum(((p + 1) & 15) << (4 * k) for k, p in enumerate(tab))
    a(f"s_and_b32 s{sdst}, s{S_G}, 3"); a(f"s_lshl_b32 s{sdst}, s{sdst}, 2")
    a(f"s_lshr_b32 s{sdst}, {packed}, s{sdst}"); a(f"s_and_b32 s{sdst}, s{sdst}, 15")

def bx(a, p, tag):
    if p >= 6: return
    a(f"s_cmp_lg_u32 s43, {p+1}"); a(f"s_cbranch_scc1 L_bx_{tag}_{p+1}")
    a("s_barrier")
    a.label(f"L_bx_{tag}_{p+1}")

def kv_loop(a, tag, issue_fn, extra_fn=None, extra_pos=None):
    a("s_mov_b32 s59, 0")
    a.label(f"L_{tag}_loop")
    a("s_cmp_lg_u32 s59, s43"); a(f"s_cbranch_scc1 L_{tag}_skip")
    stamp(a, 3)
    issue_fn()
    stamp(a, 4)
    a(f"s_cmp_ge_u32 s59, 7"); a(f"s_cbranch_scc1 L_{tag}_skip")
    a("s_barrier")
    a.label(f"L_{tag}_skip")
    if extra_fn is not None:
        a(f"s_cmp_lg_u32 s59, {extra_pos}"); a(f"s_cbranch_scc1 L_{tag}_skip2")
        extra_fn()
        a.label(f"L_{tag}_skip2")
    a("s_barrier")
    a("s_add_u32 s59, s59, 1")
    a("s_cmp_le_u32 s59, 8"); a(f"s_cbranch_scc1 L_{tag}_loop")

def loader_k(a):
    SRD = 32; SRD2 = 36; SO = 40
    srd(a, SRD2, P_WQ, SZ_W); srd(a, SRD, P_K, SZ_KV)
    a("v_lshrrev_b32 v1, 4, v0"); a("v_and_b32 v2, 15, v0"); a("v_xor_b32 v2, v2, v1")
    a("v_lshlrev_b32 v2, 4, v2"); a("v_lshl_add_u32 v4, v1, 8, v2")
    a("v_xor_b32 v5, 64, v4"); a("v_xor_b32 v6, 128, v4"); a("v_xor_b32 v7, 192, v4")
    wo_prep(a)
    a("v_and_b32 v8, 15, v0"); a("v_mul_u32_u24 v8, 1152, v8")
    a("v_lshrrev_b32 v9, 4, v0"); a("v_lshl_add_u32 v9, v9, 7, v8")
    kv_pos(a, 43, 'k')
    a("s_barrier")
    stamp(a, 1)
    def issue():
        a(f"s_lshl_b32 s{SO}, s{S_G}, 7"); a(f"s_add_u32 s{SO}, s{SO}, s{S_H}"); a(f"s_lshl_b32 s{SO}, s{SO}, 13")
        for w in range(4):
            for hf in range(2):
                a(f"s_mov_b32 m0, {L_K + w*8192 + hf*4096}"); a("s_nop 0")
                for t4 in range(4):
                    t = hf * 4 + t4
                    dma(a, 4 + (t >> 1), SRD, SO, off=t4 * 1024, nt=bool(OPT['k_nt']))
                a(f"s_add_u32 s{SO}, s{SO}, {4096 if hf == 0 else 32*8192 - 4096}")
    def wotouch():
        a(f"s_lshl_b32 s{SO}, s{S_X}, 5"); a(f"s_add_u32 s{SO}, s{SO}, s{S_R}")
        a(f"s_mul_i32 s{SO}, s{SO}, {16*1152}")
        a(f"buffer_load_dword v10, v9, s[52:55], s{SO} offen")
        a(f"buffer_load_dword v10, v9, s[52:55], s{SO} offen offset:512")
        a("s_mov_b64 exec, 0xffff")
        a(f"buffer_load_dword v10, v8, s[52:55], s{SO} offen offset:1024")
        a("s_mov_b64 exec, -1")
    kv_loop(a, "k", issue, wotouch, OPT['wot_pos'])
    a("s_waitcnt vmcnt(3)")
    stamp(a, 7)
    loader_tail(a, 2)

def loader_v(a):
    SRD = 32; SRD3 = 44; SO = 40
    srd(a, SRD3, P_X, SZ_X); srd(a, SRD, P_V, SZ_KV)
    a("s_cmp_lg_u32 s2, 0"); a("s_cbranch_scc1 L_nononce")
    srd(a, 48, P_DBG, 256)
    a("s_memrealtime s[42:43]"); a("s_waitcnt lgkmcnt(0)")
    a("s_or_b32 s42, s42, 1")
    a("v_mov_b32 v8, s42"); a("v_mov_b32 v9, s43"); a("v_mov_b32 v1, 0")
    a("s_mov_b64 exec, 1")
    a("buffer_store_dwordx2 v[8:9], v1, s[48:51], 0 offen sc1")
    a("s_mov_b64 exec, -1")
    a.label("L_nononce")
    if OPT['fast']:
        srd(a, 48, P_DBG, 256)
        a("s_getreg_b32 s42, hwreg(HW_REG_XCC_ID)")
        a("s_and_b32 s42, s42, 15")
        a("s_cmp_ge_u32 s42, 8"); a("s_cbranch_scc1 L_noxcc")
        a("s_mul_i32 s43, s42, s42"); a("s_lshl_b32 s43, s43, 5"); a("s_add_u32 s42, s42, s43")
        a("s_add_u32 s42, s42, 0x2000")
        a(f"s_lshl_b32 s43, s{S_G}, 3"); a(f"s_add_u32 s43, s43, s{S_X}")
        a("s_and_b32 s41, s43, 1"); a("s_lshl_b32 s41, s41, 4"); a("s_lshl_b32 s42, s42, s41")
        a("s_lshr_b32 s43, s43, 1"); a("s_lshl_b32 s43, s43, 2"); a("s_add_u32 s43, s43, 128")
        a("v_mov_b32 v8, s42"); a("v_mov_b32 v1, 0")
        a("s_mov_b64 exec, 1")
        a("buffer_atomic_add v8, v1, s[48:51], s43 offen")
        a("s_mov_b64 exec, -1")
        a.label("L_noxcc")
    a("v_lshrrev_b32 v1, 4, v0"); a("v_and_b32 v2, 15, v0"); a("v_lshlrev_b32 v3, 1, v1")
    a("v_xor_b32 v2, v2, v3"); a("v_lshlrev_b32 v2, 4, v2"); a("v_lshl_add_u32 v4, v1, 8, v2")
    a("v_xor_b32 v5, 128, v4")
    wo_prep(a)
    kv_pos(a, 43, 'v')
    a("s_barrier")
    stamp(a, 1)
    def issue():
        a(f"s_lshl_b32 s{SO}, s{S_G}, 7"); a(f"s_add_u32 s{SO}, s{SO}, s{S_H}"); a(f"s_lshl_b32 s{SO}, s{SO}, 13")
        for w in range(4):
            for hf in range(2):
                a(f"s_mov_b32 m0, {L_V + w*8192 + hf*4096}"); a("s_nop 0")
                for t4 in range(4):
                    t = hf * 4 + t4
                    dma(a, 4 + ((t >> 1) & 1), SRD, SO, off=t4 * 1024, nt=bool(OPT['v_nt']))
                a(f"s_add_u32 s{SO}, s{SO}, {4096 if hf == 0 else 32*8192 - 4096}")
    kv_loop(a, "v", issue)
    stamp(a, 7)
    loader_tail(a, 3)

V_XA = [4, 8]; V_WA = [12, 248]
V_A = [16, 32]; V_B = [48, 52]; V_ACC = 64
V_QF = 128; V_KF = 160; V_S = 192; V_VF = 208; V_PF = 240; V_OF = 128
V_KA = 56; V_VA = 60; V_CLW = 61; V_NONCE = 62
SC_SCALE = 0.08838834764831845 * 1.4426950408889634

def gemm1_addrs(a):
    a("v_and_b32 v1, 31, v0"); a("v_lshrrev_b32 v2, 5, v0"); a("v_bfe_u32 v3, v0, 1, 3")
    a("v_xor_b32 v2, v2, v3"); a("v_lshlrev_b32 v2, 4, v2"); a("v_lshl_add_u32 v2, v1, 7, v2")
    a(f"s_lshl_b32 s40, s{S_WAVE}, 12"); a("s_add_u32 s40, s40, 16384")
    a("v_add_u32 v2, s40, v2")
    for ks in range(4):
        a(f"v_xor_b32 v{V_XA[0]+ks}, {32*ks}, v2"); a(f"v_add_u32 v{V_XA[1]+ks}, 65536, v{V_XA[0]+ks}")
    a("v_bfe_u32 v1, v0, 2, 2"); a("v_lshrrev_b32 v2, 5, v0"); a("v_lshl_add_u32 v2, v2, 3, v1")
    a("v_lshlrev_b32 v2, 8, v2"); a("v_and_b32 v3, 1, v0"); a("v_lshl_add_u32 v2, v3, 5, v2")
    a("v_bfe_u32 v3, v0, 4, 1"); a("v_lshl_add_u32 v2, v3, 4, v2")
    a("v_bfe_u32 v3, v0, 1, 1"); a("v_lshl_add_u32 v2, v3, 3, v2")
    a("v_lshl_add_u32 v2, v1, 6, v2")
    for dt in range(4):
        a(f"v_xor_b32 v{V_WA[0]+dt}, {64*dt}, v2"); a(f"v_add_u32 v{V_WA[1]+dt}, 65536, v{V_WA[0]+dt}")

def attn_addrs(a):
    a("v_and_b32 v1, 15, v0"); a("v_lshrrev_b32 v2, 4, v0"); a("v_xor_b32 v2, v2, v1")
    a("v_lshlrev_b32 v2, 4, v2"); a("v_lshrrev_b32 v3, 2, v1"); a("v_lshl_add_u32 v2, v3, 11, v2")
    a("v_and_b32 v3, 3, v1"); a("v_lshl_add_u32 v2, v3, 8, v2")
    a(f"s_lshl_b32 s40, s{S_WAVE}, 13"); a(f"s_add_u32 s40, s40, {L_K}")
    a("v_add_u32 v2, s40, v2")
    for st in range(4): a(f"v_xor_b32 v{V_KA+st}, {64*st}, v2")
    a("v_lshrrev_b32 v1, 4, v0"); a("v_bfe_u32 v3, v0, 2, 2"); a("v_lshl_add_u32 v2, v1, 3, v3")
    a("v_lshlrev_b32 v2, 8, v2"); a("v_and_b32 v1, 1, v1"); a("v_lshl_add_u32 v3, v1, 2, v3")
    a("v_lshl_add_u32 v2, v3, 5, v2"); a("v_and_b32 v3, 3, v0"); a("v_lshl_add_u32 v2, v3, 3, v2")
    a(f"s_lshl_b32 s40, s{S_WAVE}, 13"); a(f"s_add_u32 s40, s40, {L_V}")
    a(f"v_add_u32 v{V_VA}, s40, v2")

def g1_reads(n):
    i, ks = divmod(n, 4)
    slot = i % 3; st = n & 1; hs = 1 if slot == 2 else 0; so = (slot & 1) * 32768 if slot < 2 else 0
    r = [f"ds_read_b128 {vr(V_B[st],4)}, v{V_XA[hs]+ks} offset:{so}"]
    for dt in range(4):
        base = V_A[st] + 4 * dt
        off = so + ks * 4096
        r.append(f"ds_read_b64_tr_b16 {vr(base,2)}, v{V_WA[hs]+dt} offset:{off}")
        r.append(f"ds_read_b64_tr_b16 {vr(base+2,2)}, v{V_WA[hs]+dt} offset:{off+1024}")
    return r

def gemm1(a):
    NS = NCH * 4
    kv_pos(a, 43, 'k')
    a("s_barrier")
    bx(a, -1, "c")
    a("s_barrier")
    stamp(a, 1)
    for r in g1_reads(0): a(r)
    for n in range(NS):
        i, ks = divmod(n, 4); st = n & 1
        nxt = g1_reads(n + 1) if n + 1 < NS else []
        def mf(dt):
            c = "0" if n == 0 else vr(V_ACC + 16 * dt, 16)
            a(f"v_mfma_f32_32x32x16_bf16 {vr(V_ACC+16*dt,16)}, {vr(V_A[st]+4*dt,4)}, {vr(V_B[st],4)}, {c}")
        if ks == 3:
            for dt in range(4):
                a(f"s_waitcnt lgkmcnt({[6,4,2,0][dt]})")
                if dt == 3 and nxt:
                    bx(a, i, "c")
                    a("s_barrier")
                    for r in nxt[:5]: a(r)
                mf(dt)
            for r in nxt[5:]: a(r)
        else:
            first_after_boundary = (ks == 0 and n > 0)
            for dt in range(4):
                a(f"s_waitcnt lgkmcnt({[6,7,8,9][dt]})")
                mf(dt)
                if dt < 3:
                    for r in nxt[3*dt:3*dt+3]: a(r)
        if n == 24:
            a(f"buffer_load_dwordx2 {vr(V_NONCE,2)}, v1, s[36:39], 0 offen sc1")
            if OPT['fast']:
                a(f"buffer_load_dword v{V_CLW}, v1, s[36:39], s40 offen sc1")
                a(f"buffer_load_dword v2, v1, s[44:47], s42 offen sc1")

def attention(a):
    a("s_barrier")
    stamp(a, 3)
    for ai in range(2):
        for st in range(4):
            a(f"ds_read_b128 {vr(V_KF+(ai*4+st)*4,4)}, v{V_KA+st} offset:{ai*1024}")
    for dt in range(4):
        for i in range(8):
            a(f"v_cvt_pk_bf16_f32 v{V_QF+8*dt+i}, v{V_ACC+16*dt+2*i}, v{V_ACC+16*dt+2*i+1}")
    a("s_nop 1")
    for dt in range(4):
        for i in range(4):
            a(f"v_permlane16_swap_b32 v{V_QF+8*dt+i}, v{V_QF+8*dt+4+i}")
    a("s_waitcnt lgkmcnt(0)")
    for st in range(4):
        for ai in range(2):
            for qt in range(2):
                d = vr(V_S + (ai*2+qt)*4, 4)
                c = "0" if st == 0 else d
                a(f"v_mfma_f32_16x16x32_bf16 {d}, {vr(V_KF+(ai*4+st)*4,4)}, {vr(V_QF+8*st+4*qt,4)}, {c}")
    def S(ai, qt, v): return V_S + (ai*2+qt)*4 + v
    M = [48, 49]; T_ = [50, 51]; SUM = [52, 53]
    a("s_nop 7")
    for qt in range(2): a(f"v_max3_f32 v{M[qt]}, v{S(0,qt,0)}, v{S(0,qt,1)}, v{S(0,qt,2)}")
    for qt in range(2): a(f"v_max3_f32 v{M[qt]}, v{M[qt]}, v{S(0,qt,3)}, v{S(1,qt,0)}")
    for qt in range(2): a(f"v_max3_f32 v{M[qt]}, v{M[qt]}, v{S(1,qt,1)}, v{S(1,qt,2)}")
    for qt in range(2): a(f"v_max_f32 v{M[qt]}, v{M[qt]}, v{S(1,qt,3)}")
    def xlane(regs, tmps, op):
        for sw in ("v_permlane16_swap_b32", "v_permlane32_swap_b32"):
            for qt in range(2): a(f"v_mov_b32 v{tmps[qt]}, v{regs[qt]}")
            a("s_nop 1")
            for qt in range(2): a(f"{sw} v{tmps[qt]}, v{regs[qt]}")
            a("s_nop 1")
            for qt in range(2): a(f"{op} v{regs[qt]}, v{regs[qt]}, v{tmps[qt]}")
    xlane(M, T_, "v_max_f32")
    a(f"s_mov_b32 s41, {f32hex(SC_SCALE)}")
    for qt in range(2): a(f"v_mul_f32 v{M[qt]}, s41, v{M[qt]}")
    for ai in range(2):
        for v in range(4):
            for qt in range(2): a(f"v_fma_f32 v{S(ai,qt,v)}, v{S(ai,qt,v)}, s41, -v{M[qt]}")
    for ai in range(2):
        for v in range(4):
            for qt in range(2): a(f"v_exp_f32 v{S(ai,qt,v)}, v{S(ai,qt,v)}")
    a("s_nop 0")
    for qt in range(2): a(f"v_add_f32 v{SUM[qt]}, v{S(0,qt,0)}, v{S(0,qt,1)}")
    for (ai, v) in [(0,2),(0,3),(1,0),(1,1),(1,2),(1,3)]:
        for qt in range(2): a(f"v_add_f32 v{SUM[qt]}, v{SUM[qt]}, v{S(ai,qt,v)}")
    xlane(SUM, T_, "v_add_f32")
    for qt in range(2): a(f"v_rcp_f32 v{SUM[qt]}, v{SUM[qt]}")
    a("s_nop 0")
    for ai in range(2):
        for v in range(4):
            for qt in range(2): a(f"v_mul_f32 v{S(ai,qt,v)}, v{S(ai,qt,v)}, v{SUM[qt]}")
    for qt in range(2):
        for ai in range(2):
            for h2 in range(2):
                a(f"v_cvt_pk_bf16_f32 v{V_PF+4*qt+2*ai+h2}, v{S(ai,qt,2*h2)}, v{S(ai,qt,2*h2+1)}")
    stamp(a, 4)
    a("s_barrier")
    for T in range(8):
        if T: a(f"v_xor_b32 v1, {32*T}, v{V_VA}")
        ad = "v1" if T else f"v{V_VA}"
        a(f"ds_read_b64_tr_b16 {vr(V_VF+4*T,2)}, {ad}")
        a(f"ds_read_b64_tr_b16 {vr(V_VF+4*T+2,2)}, {ad} offset:1024")
        if T == 5: a("s_waitcnt lgkmcnt(4)")
    a("s_waitcnt lgkmcnt(0)")
    a("s_barrier")
    for T in range(8):
        for qt in range(2):
            a(f"v_mfma_f32_16x16x32_bf16 {vr(V_ACC+(T*2+qt)*4,4)}, {vr(V_VF+4*T,4)}, {vr(V_PF+4*qt,4)}, 0")
    a("s_nop 7")
    for p in range(4):
        for qt in range(2):
            for e in range(2):
                T = 2*p + e
                for h2 in range(2):
                    src = V_ACC + (T*2+qt)*4 + 2*h2
                    a(f"v_cvt_pk_bf16_f32 v{V_OF+(2*p+qt)*4+2*e+h2}, v{src}, v{src+1}")

V2_ACC = 16
V2_A = [88, 108]
V2_AD = [4, 5, 6, 12]
BUF = [160, 192, 224]

def p2_areads(slot, p, half):
    r = []
    ad = V2_AD[slot]
    taus = range(0, 5) if half == 0 else range(5, 9)
    for k, tau in enumerate(taus):
        off = p * 32 * 288 + 32 * tau
        base = V2_A[half] + 4 * k
        r.append(f"ds_read_b64_tr_b16 {vr(base,2)}, v{ad} offset:{off}")
        r.append(f"ds_read_b64_tr_b16 {vr(base+2,2)}, v{ad} offset:{off+16*288}")
    return r

def p2_bloads(a, slot, breg):
    a(f"s_add_u32 s45, s{S_J}, {slot}"); a("s_and_b32 s45, s45, 3"); a("s_add_u32 s45, s45, s44")
    a("s_lshl_b32 s45, s45, 2"); a(f"s_add_u32 s45, s45, s{S_WAVE}")
    a("s_lshl_b32 s46, s45, 13"); a("s_add_u32 s47, s46, 4096")
    for f in range(8):
        a(f"buffer_load_dwordx4 {vr(breg+4*f,4)}, v7, s[32:35], s{46 + f//4} offen offset:{(f%4)*1024} sc1")

S_NON = 52
S_FAST = 54

def get_nonce(a):
    a("s_waitcnt vmcnt(0)")
    a("v_mov_b32 v9, 0")
    a("s_mov_b32 s50, 0")
    a.label("L_nonce_chk")
    a(f"v_readfirstlane_b32 s{S_NON}, v{V_NONCE}"); a(f"v_readfirstlane_b32 s{S_NON+1}, v{V_NONCE+1}")
    a("s_nop 0")
    a(f"s_cmp_lg_u32 s{S_NON}, 0"); a("s_cbranch_scc1 L_nonce_ok")
    a(f"buffer_load_dwordx2 {vr(V_NONCE,2)}, v9, s[36:39], 0 offen sc1")
    a("s_add_u32 s50, s50, 1"); a("s_waitcnt vmcnt(0)")
    a(f"s_cmp_lt_u32 s50, {OPT['spin_max']}"); a("s_cbranch_scc1 L_nonce_chk")
    a.label("L_nonce_ok")
    a(f"s_mov_b32 s{S_FAST}, 0")
    if OPT['fast']:
        a(f"v_readfirstlane_b32 s55, v{V_CLW}")
        a(f"s_and_b32 s56, s{S_X}, 1"); a("s_lshl_b32 s56, s56, 4"); a("s_lshr_b32 s55, s55, s56")
        a("s_and_b32 s56, s55, 31")
        a("s_bfe_u32 s57, s55, 0x80005")
        a("s_bfe_u32 s55, s55, 0x3000d")
        a("s_mul_i32 s56, s56, s56"); a("s_lshl_b32 s57, s57, 2")
        a("s_cmp_eq_u32 s56, s57"); a(f"s_cselect_b32 s{S_FAST}, 1, 0")
        a("s_cmp_eq_u32 s55, 4"); a(f"s_cselect_b32 s{S_FAST}, s{S_FAST}, 0")
        if OPT['fast'] == 2: a(f"s_mov_b32 s{S_FAST}, 0")

def poll(a, tag, voff, soff, sleep=0):
    a("s_mov_b32 s50, 0")
    a.label(f"L_poll_{tag}")
    if sleep: a(f"s_sleep {sleep}")
    a(f"buffer_load_dwordx2 v[10:11], v{voff}, s[32:35], s{soff} offen sc1")
    a("s_add_u32 s50, s50, 1"); a("s_waitcnt vmcnt(0)")
    a(f"v_cmp_eq_u64 vcc, v[10:11], s[{S_NON}:{S_NON+1}]")
    a(f"s_cmp_ge_u32 s50, {OPT['spin_max']}"); a(f"s_cbranch_scc1 L_poll_{tag}_done")
    a("s_cmp_eq_u64 vcc, -1"); a(f"s_cbranch_scc0 L_poll_{tag}")
    a.label(f"L_poll_{tag}_done")

def flag_store(a, soff, mode):
    a(f"v_mov_b32 v10, s{S_NON}"); a(f"v_mov_b32 v11, s{S_NON+1}")
    a("s_mov_b64 exec, 1")
    if mode == 'dyn':
        a(f"s_cmp_eq_u32 s{S_FAST}, 0"); a("s_cbranch_scc1 L_flag_slow")
        a(f"buffer_store_dwordx2 v[10:11], v9, s[32:35], s{soff} offen")
        a("s_branch L_flag_join")
        a.label("L_flag_slow")
        a(f"buffer_store_dwordx2 v[10:11], v9, s[32:35], s{soff} offen sc1")
        a.label("L_flag_join")
    else:
        a(f"buffer_store_dwordx2 v[10:11], v9, s[32:35], s{soff} offen sc1")
    a("s_mov_b64 exec, -1")

def o_store(a):
    srd(a, 32, P_WS, SZ_WS_USED)
    a("v_lshlrev_b32 v7, 4, v0")
    a(f"s_lshl_b32 s40, s{S_G}, 5"); a(f"s_add_u32 s40, s40, s{S_H}"); a("s_lshl_b32 s40, s40, 2")
    a(f"s_add_u32 s40, s40, s{S_WAVE}"); a("s_lshl_b32 s40, s40, 13"); a("s_add_u32 s41, s40, 4096")
    global OSTORES
    OSTORES = [f"buffer_store_dwordx4 {vr(V_OF+4*f,4)}, v7, s[32:35], s{40 + f//4} offen offset:{(f%4)*1024} sc1" for f in range(8)]
    a("v_lshrrev_b32 v2, 4, v0"); a("v_bfe_u32 v3, v0, 2, 2"); a("v_lshl_add_u32 v2, v2, 2, v3")
    a("v_mul_u32_u24 v2, 288, v2"); a("v_and_b32 v3, 3, v0")
    a(f"v_lshl_add_u32 v{V2_AD[0]}, v3, 3, v2")
    for sl in range(1, 4): a(f"v_add_u32 v{V2_AD[sl]}, {sl*W_SLOT}, v{V2_AD[0]}")
    a(f"s_lshl_b32 s44, s{S_G}, 5"); a(f"s_lshl_b32 s45, s{S_X}, 2"); a("s_add_u32 s44, s44, s45")
    a(f"s_lshl_b32 s48, s{S_G}, 3"); a(f"s_add_u32 s48, s48, s{S_X}"); a("s_lshl_b32 s48, s48, 2")
    a(f"s_add_u32 s48, s48, s{S_WAVE}"); a("s_lshl_b32 s48, s48, 7"); a(f"s_add_u32 s48, s48, {WS_F}")
    a(f"s_lshl_b32 s49, s{S_J}, 3"); a("s_add_u32 s49, s49, s48")
    a("v_and_b32 v8, 3, v0"); a("v_lshlrev_b32 v8, 3, v8")

def bload_list(slot, breg):
    setup = [f"s_add_u32 s45, s{S_J}, {slot}", "s_and_b32 s45, s45, 3", "s_add_u32 s45, s45, s44",
             "s_lshl_b32 s45, s45, 2", f"s_add_u32 s45, s45, s{S_WAVE}",
             "s_lshl_b32 s46, s45, 13", "s_add_u32 s47, s46, 4096"]
    loads = [f"buffer_load_dwordx4 {vr(breg+4*f,4)}, v7, s[32:35], s{46 + f//4} offen offset:{(f%4)*1024} sc1" for f in range(8)]
    return setup, loads

def p2_run(a, hs, n0, n1, hooks_pre=None, hooks_mid=None, inject=None, cont=True):
    hooks_pre = hooks_pre or {}; hooks_mid = hooks_mid or {}; inject = inject or {}
    for n in range(n0, n1):
        (s, p, hf) = hs[n]
        breg = V_OF if s == 0 else BUF[s - 1]
        nxt = p2_areads(*hs[n+1]) if n + 1 < n1 else []
        taus = list(range(0, 5)) if hf == 0 else list(range(5, 9))
        nown = 2 * len(taus)
        plan = [1,1,1,1,1,1,1,1,0,0] if hf == 0 else [2,1,1,1,2,1,1,1]
        issued = 0; m = 0
        inj = list(inject.get(n, []))
        if n in hooks_pre: hooks_pre[n]()
        for k, tau in enumerate(taus):
            a(f"s_waitcnt lgkmcnt({nown - 2 * (k + 1) + issued})")
            for qt in range(2):
                d = vr(V2_ACC + (tau*2+qt)*4, 4)
                c = "0" if (s == 0 and p == 0) else d
                a(f"v_mfma_f32_16x16x32_bf16 {d}, {vr(V2_A[hf]+4*k,4)}, {vr(breg+(2*p+qt)*4,4)}, {c}")
                if m == 0 and n in hooks_mid: hooks_mid[n]()
                if nxt:
                    for r in nxt[issued:issued+plan[m]]: a(r)
                    issued = min(len(nxt), issued + plan[m])
                m += 1
                if k >= len(taus) - 1 and inj: a(inj.pop(0))
        while inj: a(inj.pop(0))

def tail(a):
    hs = [(s, p, hf) for s in range(4) for p in range(4) for hf in range(2)]
    o_store(a)
    stamp(a, 6)
    if OPT.get('ostfirst', 1):
        for x in OSTORES: a(x)
        for r in p2_areads(*hs[0]): a(r)
        def early_flag():
            a("s_waitcnt vmcnt(0)")
            flag_store(a, 49, 'dyn')
            a("s_nop 3")
        p2_run(a, hs, 0, 8, hooks_pre={OPT.get('flagpos', 5): early_flag})
        a("s_barrier")
    else:
        for r in p2_areads(*hs[0]): a(r)
        p2_run(a, hs, 0, 8, inject={n: [OSTORES[n]] for n in range(8)})
    if not OPT.get('ostfirst', 1):
        a("s_barrier")
        a("s_waitcnt vmcnt(0)")
        flag_store(a, 49, 'dyn')
    stamp(a, 7)
    poll(a, "o", 8, 48, sleep=OPT.get('o_sleep', 0))
    stamp(a, 8)
    p2_bloads(a, 1, BUF[0])
    a("s_barrier")
    tstamp(a, 1)
    for r in p2_areads(*hs[8]): a(r)
    su2, l2 = bload_list(2, BUF[1]); su3, l3 = bload_list(3, BUF[2])
    for x in su2: a(x)
    inj = {}
    for t in range(4):
        inj[8 + t] = l2[2*t:2*t+2]
        inj[16 + t] = l3[2*t:2*t+2]
    inj[15] = su3
    a("s_waitcnt vmcnt(0)")
    tstamp(a, 2)
    if OPT.get('cyc', 0): cstamp(a, 3)
    p2_run(a, hs, 8, 32,
           hooks_pre={16: lambda: a("s_waitcnt vmcnt(0)"), 24: lambda: a("s_waitcnt vmcnt(0)")},
           hooks_mid={15: lambda: a("s_barrier"), 23: lambda: a("s_barrier")},
           inject=inj)
    if OPT.get('cyc', 0): cstamp(a, 4)
    stamp(a, 9)
    if OPT['dk']: reduce_inkernel(a)
    elif OPT.get('k3bf', 0): store_partials_bf16(a)
    else: store_partials_f32(a)

def store_partials_f32(a):
    a("s_nop 7")
    a(f"s_lshl_b32 s45, s{S_X}, 3"); a(f"s_add_u32 s45, s45, s{S_G}"); a("s_lshl_b32 s45, s45, 2")
    a(f"s_add_u32 s45, s45, s{S_J}"); a("s_lshl_b32 s45, s45, 2"); a(f"s_add_u32 s45, s45, s{S_WAVE}")
    a(f"s_mul_i32 s45, s45, {18*1024}"); a(f"s_add_u32 s45, s45, {WS_P}")
    for u in range(18):
        if u and u % 4 == 0: a("s_add_u32 s45, s45, 4096")
        a(f"buffer_store_dwordx4 {vr(V2_ACC+4*u,4)}, v7, s[32:35], s45 offen offset:{(u%4)*1024}")

def store_partials_bf16(a):
    G = 160
    a(f"s_lshl_b32 s44, s{S_G}, 2"); a(f"s_add_u32 s44, s44, s{S_J}"); a("s_lshl_b32 s44, s44, 2")
    a(f"s_add_u32 s44, s44, s{S_WAVE}")
    a(f"s_lshl_b32 s45, s{S_X}, 7"); a("s_add_u32 s45, s45, s44"); a("s_mul_i32 s45, s45, 9216")
    a(f"s_add_u32 s45, s45, {WS_P}"); a("s_add_u32 s46, s45, 4096"); a("s_add_u32 s47, s45, 8192")
    sc = " sc1" if OPT.get('psc1', 1) else ""
    for tau in range(9):
        for qt in range(2):
            for h2 in range(2):
                src = V2_ACC + (tau*2+qt)*4 + 2*h2
                a(f"v_cvt_pk_bf16_f32 v{G+4*tau+2*qt+h2}, v{src}, v{src+1}")
        a(f"buffer_store_dwordx4 {vr(G+4*tau,4)}, v7, s[32:35], s{45 + tau//4} offen offset:{(tau%4)*1024}{sc}")

def kernel3b(a):
    name = "mha_p3_kernel"
    a(".p2align 8"); a(f".globl {name}"); a(f".type {name},@function"); a.label(name)
    a("s_cmp_ge_u32 s2, 288"); a(f"s_cbranch_scc1 L_end_{name}")
    a("s_load_dwordx2 s[26:27], s[0:1], 40"); a("s_load_dwordx2 s[30:31], s[0:1], 56")
    a("v_lshrrev_b32 v1, 6, v0"); a("v_and_b32 v0, 63, v0")
    a("s_lshl_b32 s5, s2, 2")
    a(f"v_readfirstlane_b32 s{S_WAVE}, v1")
    a("v_lshlrev_b32 v1, 4, v0")
    a(f"s_add_u32 s5, s5, s{S_WAVE}")
    a("s_mul_i32 s45, s5, 1024"); a(f"s_add_u32 s45, s45, {WS_P}")
    a("s_mul_hi_u32 s6, s5, 477218589")
    a("s_mul_i32 s7, s6, 9"); a("s_sub_u32 s7, s5, s7")
    a("s_waitcnt lgkmcnt(0)")
    srd(a, 32, P_WS, SZ_WS_USED); srd(a, 36, P_OUT, SZ_OUT)
    for x in range(8):
        a(f"buffer_load_dwordx4 {vr(8+4*x,4)}, v1, s[32:35], s45 offen")
        if x < 7: a(f"s_add_u32 s45, s45, {128*9216}")
    a("v_and_b32 v2, 15, v0"); a("v_mul_u32_u24 v2, 1152, v2"); a("v_lshrrev_b32 v3, 4, v0")
    a("v_lshl_add_u32 v2, v3, 3, v2")
    a("s_lshr_b32 s46, s6, 4"); a("s_lshl_b32 s46, s46, 2"); a("s_and_b32 s47, s6, 3"); a("s_add_u32 s46, s46, s47")
    a(f"s_mul_i32 s46, s46, {32*1152}")
    a("s_lshr_b32 s47, s6, 2"); a("s_and_b32 s47, s47, 3"); a("s_mul_i32 s47, s47, 288"); a("s_add_u32 s46, s46, s47")
    a("s_lshl_b32 s47, s7, 5"); a("s_add_u32 s46, s46, s47"); a(f"s_add_u32 s47, s46, {16*1152}")
    for x in range(8):
        a(f"s_waitcnt vmcnt({7-x})")
        for d in range(4):
            src = 8 + 4*x + d
            if x == 0:
                a(f"v_lshlrev_b32 v{40+2*d}, 16, v{src}"); a(f"v_and_b32 v{40+2*d+1}, 0xffff0000, v{src}")
            else:
                a(f"v_lshlrev_b32 v48, 16, v{src}"); a(f"v_and_b32 v49, 0xffff0000, v{src}")
                a(f"v_pk_add_f32 v[{40+2*d}:{40+2*d+1}], v[{40+2*d}:{40+2*d+1}], v[48:49]")
    for d in range(4): a(f"v_cvt_pk_bf16_f32 v{50+d}, v{40+2*d}, v{40+2*d+1}")
    a("buffer_store_dwordx2 v[50:51], v2, s[36:39], s46 offen")
    a("buffer_store_dwordx2 v[52:53], v2, s[36:39], s47 offen")
    a.label(f"L_end_{name}")
    a("s_endpgm")

def reduce_inkernel(a):
    G = 160
    R1 = 196
    R2 = 88
    if OPT.get('d_coal', 0):
        a("v_lshrrev_b32 v13, 3, v0"); a("v_mul_u32_u24 v13, 9216, v13")
        a("v_and_b32 v14, 7, v0"); a("v_lshl_add_u32 v13, v14, 4, v13")
    else:
        a("v_bfe_u32 v13, v0, 1, 3"); a("v_mul_u32_u24 v13, 9216, v13")
        a("v_lshrrev_b32 v14, 4, v0"); a("v_lshlrev_b32 v14, 1, v14"); a("v_and_b32 v15, 1, v0")
        a("v_add_u32 v14, v14, v15"); a("v_lshl_add_u32 v13, v14, 4, v13")
    a(f"s_lshl_b32 s44, s{S_G}, 2"); a(f"s_add_u32 s44, s44, s{S_J}"); a("s_lshl_b32 s44, s44, 2")
    a(f"s_add_u32 s44, s44, s{S_WAVE}")
    a("s_mul_i32 s45, s44, 73728"); a(f"s_add_u32 s45, s45, {WS_D}")
    a(f"s_mul_i32 s46, s{S_X}, 1152"); a("s_add_u32 s46, s46, s45")
    if OPT.get('d_sep', 0):
        a("s_lshl_b32 s48, s44, 10"); a(f"s_add_u32 s48, s48, {WS_F2}")
        a(f"s_lshl_b32 s49, s{S_X}, 7"); a("s_add_u32 s49, s49, s48")
        a("v_and_b32 v8, 7, v0"); a("v_lshlrev_b32 v8, 7, v8")
    else:
        a("s_lshl_b32 s48, s44, 7"); a(f"s_add_u32 s48, s48, {WS_F2}")
        a(f"s_lshl_b32 s49, s{S_X}, 3"); a("s_add_u32 s49, s49, s48")
        a("v_and_b32 v8, 7, v0"); a("v_lshlrev_b32 v8, 3, v8")
    a("s_nop 3")
    for tau in range(9):
        for qt in range(2):
            for h2 in range(2):
                src = V2_ACC + (tau*2+qt)*4 + 2*h2
                a(f"v_cvt_pk_bf16_f32 v{G+4*tau+2*qt+h2}, v{src}, v{src+1}")
        a(f"buffer_store_dwordx4 {vr(G+4*tau,4)}, v13, s[32:35], s46 offen offset:{128*tau} sc1")
    if OPT.get('d_coal', 0):
        a("v_and_b32 v14, 7, v0"); a("v_mul_u32_u24 v14, 1152, v14")
        a("v_add_u32 v15, 256, v14")
        a("v_lshrrev_b32 v13, 3, v0"); a("v_lshl_add_u32 v14, v13, 5, v14")
        srd(a, 36, P_OUT, SZ_OUT)
        a(f"s_lshl_b32 s56, s{S_G}, 2"); a(f"s_add_u32 s56, s56, s{S_WAVE}"); a("s_lshl_b32 s56, s56, 5")
        a(f"s_and_b32 s57, s{S_X}, 1"); a("s_lshl_b32 s57, s57, 3"); a("s_add_u32 s56, s56, s57"); a("s_mul_i32 s56, s56, 1152")
        a(f"s_lshr_b32 s57, s{S_X}, 1"); a("s_lshl_b32 s57, s57, 3"); a("s_add_u32 s56, s56, s57")
    else:
        a("v_and_b32 v14, 1, v0"); a("v_mul_u32_u24 v14, 1152, v14")
        a("v_bfe_u32 v15, v0, 1, 2"); a("v_lshl_add_u32 v14, v15, 3, v14")
        a("v_add_u32 v15, 256, v14")
        a("v_lshrrev_b32 v13, 3, v0"); a("v_lshl_add_u32 v14, v13, 5, v14")
        srd(a, 36, P_OUT, SZ_OUT)
        a(f"s_lshl_b32 s56, s{S_G}, 2"); a(f"s_add_u32 s56, s56, s{S_WAVE}"); a("s_lshl_b32 s56, s56, 5")
        a(f"s_lshl_b32 s57, s{S_X}, 1"); a("s_add_u32 s56, s56, s57"); a("s_mul_i32 s56, s56, 1152")
    a(f"s_mul_i32 s57, s{S_J}, 288"); a("s_add_u32 s56, s56, s57")
    a(f"s_add_u32 s57, s56, {16*1152}")
    a(f"s_mul_i32 s47, s{S_X}, 9216"); a("s_add_u32 s47, s47, s45")
    a("s_waitcnt vmcnt(0)")
    flag_store(a, 49, 'sc1')
    stamp(a, 10)
    poll(a, "d", 8, 48, sleep=OPT.get('d_sleep', 0))
    stamp(a, 11)
    for sx in range(8):
        a(f"buffer_load_dwordx4 {vr(R1+4*sx,4)}, v7, s[32:35], s47 offen sc1")
        a("s_mov_b64 exec, 0xff")
        a(f"buffer_load_dwordx4 {vr(R2+4*sx,4)}, v7, s[32:35], s47 offen offset:1024 sc1")
        a("s_mov_b64 exec, -1")
        if sx < 7: a("s_add_u32 s47, s47, 1152")
    A1 = 16; A2 = 24
    def summ(R, A, waitbase):
        for sx in range(8):
            if waitbase is not None: a(f"s_waitcnt vmcnt({waitbase - 2*sx})")
            for d in range(4):
                src = R + 4*sx + d
                if sx == 0:
                    a(f"v_lshlrev_b32 v{A+2*d}, 16, v{src}"); a(f"v_and_b32 v{A+2*d+1}, 0xffff0000, v{src}")
                else:
                    a(f"v_lshlrev_b32 v32, 16, v{src}"); a(f"v_and_b32 v33, 0xffff0000, v{src}")
                    a(f"v_add_f32 v{A+2*d}, v{A+2*d}, v32"); a(f"v_add_f32 v{A+2*d+1}, v{A+2*d+1}, v33")
    summ(R1, A1, 14)
    summ(R2, A2, None)
    for A, voff, ex in ((A1, 14, None), (A2, 15, "0xff")):
        for d in range(4): a(f"v_cvt_pk_bf16_f32 v{34+d}, v{A+2*d}, v{A+2*d+1}")
        if ex: a(f"s_mov_b64 exec, {ex}")
        fl = {0: "", 1: " sc1", 2: " nt", 3: " sc0 sc1"}[OPT.get('outfl', 0)]
        a(f"buffer_store_dwordx2 v[34:35], v{voff}, s[36:39], s56 offen{fl}")
        a(f"buffer_store_dwordx2 v[36:37], v{voff}, s[36:39], s57 offen{fl}")
        if ex: a("s_mov_b64 exec, -1")
        a("s_nop 1")

def KNAME():
    return "standalone__mha_block_cached__near_ridge_kernel" if OPT['dk'] else "mha_a_kernel"

def kernelA(a):
    global KIDX
    KIDX = 0
    name = KNAME()
    prologue(a, name)
    stamp_init(a); stamp(a, 0); cstamp(a, 14)
    a(f"s_cmp_lt_u32 s{S_WAVE}, 4"); a("s_cbranch_scc1 L_a_compute")
    a(f"s_cmp_eq_u32 s{S_WAVE}, 6"); a("s_cbranch_scc1 L_a_ldk")
    a(f"s_cmp_eq_u32 s{S_WAVE}, 4"); a("s_cbranch_scc1 L_a_ldwq")
    a(f"s_cmp_eq_u32 s{S_WAVE}, 5"); a("s_cbranch_scc1 L_a_ldx")
    loader_v(a); stamp_flush(a); a("s_endpgm")
    a.label("L_a_ldk"); loader_k(a); stamp_flush(a); a("s_endpgm")
    a.label("L_a_ldwq"); loader_ring(a, 'wq'); stamp_flush(a); a("s_endpgm")
    a.label("L_a_ldx"); loader_ring(a, 'x'); stamp_flush(a); a("s_endpgm")
    a.label("L_a_compute")
    CUR['compute'] = True
    srd(a, 36, P_DBG, 256)
    gemm1_addrs(a); attn_addrs(a)
    a("v_mov_b32 v1, 0")
    a(f"s_lshl_b32 s40, s{S_G}, 3"); a(f"s_add_u32 s40, s40, s{S_X}"); a("s_lshr_b32 s40, s40, 1")
    a("s_lshl_b32 s40, s40, 2"); a("s_add_u32 s40, s40, 128")
    srd(a, 44, P_WS, SZ_WS_USED)
    a(f"s_lshl_b32 s42, s{S_G}, 3"); a(f"s_add_u32 s42, s42, s{S_X}"); a("s_lshl_b32 s42, s42, 2")
    a(f"s_add_u32 s42, s42, s{S_WAVE}"); a("s_lshl_b32 s42, s42, 7"); a(f"s_add_u32 s42, s42, {WS_F}")
    gemm1(a); get_nonce(a); stamp(a, 2)
    attention(a); stamp(a, 5)
    tail(a)
    if OPT['stamps']: a("s_waitcnt vmcnt(0)")
    stamp(a, 12); cstamp(a, 15); stamp_flush(a)
    if OPT.get('probe', -1) >= 0:
        a("s_waitcnt vmcnt(0)")
        a(f"s_sub_u32 s62, s60, s{S_NON}"); a(f"s_mul_i32 s62, s62, {OPT.get('probek', 8)}")
        a("s_memrealtime s[64:65]"); a("s_waitcnt lgkmcnt(0)")
        a("s_add_u32 s62, s62, s64")
        a("s_mov_b32 s63, 0")
        a.label("L_probe_spin")
        a("s_memrealtime s[64:65]"); a("s_waitcnt lgkmcnt(0)")
        a("s_add_u32 s63, s63, 1"); a("s_cmp_gt_u32 s63, 100000"); a("s_cbranch_scc1 L_probe_done")
        a("s_sub_u32 s66, s62, s64"); a("s_cmp_gt_i32 s66, 0"); a("s_cbranch_scc1 L_probe_spin")
        a.label("L_probe_done")
    a.label(f"L_end_{name}")
    a("s_endpgm")

def kernel3(a):
    global KIDX
    KIDX = 1
    name = "mha_p3_kernel"
    a(".p2align 8"); a(f".globl {name}"); a(f".type {name},@function"); a.label(name)
    a("s_cmp_ge_u32 s2, 256"); a(f"s_cbranch_scc1 L_end_{name}")
    a("s_load_dwordx16 s[16:31], s[0:1], 0")
    a("v_lshrrev_b32 v1, 6, v0"); a("v_and_b32 v0, 63, v0")
    a("s_lshr_b32 s5, s2, 1")
    a("s_and_b32 s6, s2, 1")
    a(f"v_readfirstlane_b32 s{S_WAVE}, v1")
    a("s_mul_i32 s6, s6, 9")
    a("s_waitcnt lgkmcnt(0)")
    stamp_init(a); stamp(a, 0); cstamp(a, 14)
    a(f"s_add_u32 s6, s6, s{S_WAVE}")
    srd(a, 32, P_WS, SZ_WS_USED); srd(a, 36, P_OUT, SZ_OUT)
    a("v_lshlrev_b32 v1, 4, v0")
    a("s_mul_i32 s45, s5, 18"); a("s_add_u32 s45, s45, s6"); a("s_lshl_b32 s45, s45, 10")
    a(f"s_add_u32 s45, s45, {WS_P}")
    for x in range(8):
        a(f"buffer_load_dwordx4 {vr(8+4*x,4)}, v1, s[32:35], s45 offen")
        if x < 7: a(f"s_add_u32 s45, s45, {128*18*1024}")
    a("v_and_b32 v2, 15, v0"); a("v_mul_u32_u24 v2, 1152, v2"); a("v_lshrrev_b32 v3, 4, v0")
    a("v_lshl_add_u32 v2, v3, 3, v2")
    a("s_lshr_b32 s46, s5, 4"); a("s_lshl_b32 s46, s46, 2"); a("s_and_b32 s47, s5, 3"); a("s_add_u32 s46, s46, s47")
    a(f"s_mul_i32 s46, s46, {32*1152}")
    a("s_lshr_b32 s47, s5, 2"); a("s_and_b32 s47, s47, 3"); a("s_mul_i32 s47, s47, 288"); a("s_add_u32 s46, s46, s47")
    a("s_and_b32 s47, s6, 1"); a(f"s_mul_i32 s47, s47, {16*1152}"); a("s_add_u32 s46, s46, s47")
    a("s_lshr_b32 s47, s6, 1"); a("s_lshl_b32 s47, s47, 5"); a("s_add_u32 s46, s46, s47")
    a("s_waitcnt vmcnt(0)")
    for v in range(4):
        for x in range(0, 8, 2): a(f"v_add_f32 v{8+4*x+v}, v{8+4*x+v}, v{12+4*x+v}")
    for v in range(4):
        a(f"v_add_f32 v{8+v}, v{8+v}, v{16+v}"); a(f"v_add_f32 v{24+v}, v{24+v}, v{32+v}")
    for v in range(4): a(f"v_add_f32 v{8+v}, v{8+v}, v{24+v}")
    a("v_cvt_pk_bf16_f32 v8, v8, v9"); a("v_cvt_pk_bf16_f32 v9, v10, v11")
    a("buffer_store_dwordx2 v[8:9], v2, s[36:39], s46 offen")
    if OPT['stamps']:
        a("s_waitcnt vmcnt(0)")
        stamp(a, 10); cstamp(a, 15)
        a(f"s_cmp_ge_u32 s{S_WAVE}, 8"); a("s_cbranch_scc1 L_end_mha_p3_kernel")
        stamp_flush(a, 44)
    a.label(f"L_end_{name}")
    a("s_endpgm")

def descriptor(a, name, vgpr, sgpr=102):
    a(f".amdhsa_kernel {name}")
    a(f".amdhsa_next_free_vgpr {vgpr}"); a(f".amdhsa_next_free_sgpr {sgpr}"); a(f".amdhsa_accum_offset {vgpr}")
    a(".amdhsa_group_segment_fixed_size 0"); a(".amdhsa_kernarg_size 64")
    a(".amdhsa_user_sgpr_count 2"); a(".amdhsa_user_sgpr_kernarg_segment_ptr 1")
    a(".amdhsa_system_sgpr_workgroup_id_x 1"); a(".end_amdhsa_kernel")

def main():
    out = sys.argv[1]
    for arg in sys.argv[2:]:
        if arg == "--stamps": OPT['stamps'] = True
        elif "=" in arg:
            k, v = arg.lstrip("-").split("="); OPT[k] = int(v)
    a = Asm()
    hdr = "; MHA block (Q-proj + attention + out-proj), generated by gen3.py\n"
    if OPT['dk']:
        hdr += "; @launch grid=(256,1,1) block=(512,1,1) lds=163840\n"
    else:
        hdr += "; @launch kernel=mha_a_kernel grid=(256,1,1) block=(512,1,1) lds=163840\n"
        if OPT.get('k3bf', 0): hdr += "; @launch kernel=mha_p3_kernel grid=(288,1,1) block=(256,1,1) lds=0\n"
        else: hdr += "; @launch kernel=mha_p3_kernel grid=(256,1,1) block=(576,1,1) lds=0\n"
    a('.amdgcn_target "amdgcn-amd-amdhsa--gfx950"'); a(".text")
    kernelA(a)
    if not OPT['dk']:
        if OPT.get('k3bf', 0): kernel3b(a)
        else: kernel3(a)
    a('.section .rodata,"a"'); a(".p2align 6"); descriptor(a, KNAME(), 256)
    if not OPT['dk']:
        a(".p2align 6"); descriptor(a, "mha_p3_kernel", 56)
    open(out, "w").write(hdr + a.text())

if __name__ == "__main__": main()
```

```python
import sys, struct

class Asm:
    def __init__(self): self.l = []
    def __call__(self, s=""):
        for x in s.split("\n"):
            x = x.strip()
            self.l.append(x if (x.endswith(":") or x.startswith(".")) else "  " + x)
    def label(self, s): self.l.append(s + ":")
    def text(self): return "\n".join(self.l) + "\n"

def vr(b, n=1): return f"v{b}" if n == 1 else f"v[{b}:{b+n-1}]"
def f32hex(x): return "0x%08x" % struct.unpack("<I", struct.pack("<f", x))[0]

P_X, P_K, P_V, P_WQ, P_WO, P_OUT, P_DBG, P_WS = 16, 18, 20, 22, 24, 26, 28, 30
SZ_X, SZ_KV, SZ_W, SZ_OUT = 1179648, 8388608, 4718592, 1179648
WS_O = 0
WS_P = 8 << 20
WS_F = 28 << 20
WS_F2 = (28 << 20) + (1 << 19)
WS_D = 8 << 20
WS_STAMP = 32 << 20
SZ_WS_USED = 64 << 20
S_WAVE, S_X, S_R, S_J, S_G, S_H = 3, 4, 5, 6, 9, 10

OPT = dict(stamps=False, fast=1, spin_max=2000000, kvmode=20, flagpos=4, d_sleep=3, o_sleep=1, k_nt=1, v_nt=1, wot_pos=8, dk=1)

def srd(a, base, ptr, size, add=0):
    if add:
        a(f"s_add_u32 s{base}, s{ptr}, {add}"); a(f"s_addc_u32 s{base+1}, s{ptr+1}, 0")
        a(f"s_and_b32 s{base+1}, s{base+1}, 0xffff")
    else:
        a(f"s_mov_b32 s{base}, s{ptr}"); a(f"s_and_b32 s{base+1}, s{ptr+1}, 0xffff")
    a(f"s_mov_b32 s{base+2}, {size}"); a(f"s_mov_b32 s{base+3}, 0x00020000")

def prologue(a, name, nwg=256):
    a(".p2align 8"); a(f".globl {name}"); a(f".type {name},@function"); a.label(name)
    a(f"s_cmp_ge_u32 s2, {nwg}"); a(f"s_cbranch_scc1 L_end_{name}")
    a("s_load_dwordx16 s[16:31], s[0:1], 0")
    a("v_lshrrev_b32 v1, 6, v0"); a("v_and_b32 v0, 63, v0")
    a(f"s_and_b32 s{S_X}, s2, 7"); a(f"s_lshr_b32 s{S_R}, s2, 3")
    a(f"v_readfirstlane_b32 s{S_WAVE}, v1")
    a(f"s_and_b32 s{S_J}, s{S_R}, 3"); a(f"s_lshr_b32 s{S_G}, s{S_R}, 2")
    a(f"s_lshl_b32 s{S_H}, s{S_X}, 2"); a(f"s_add_u32 s{S_H}, s{S_H}, s{S_J}")
    a("s_waitcnt lgkmcnt(0)")

KIDX = 0
CUR = {}
def tstamp(a, idx):
    if OPT.get('tailstamps', 0): stamp(a, idx, force=True)
def stamp(a, idx, force=False):
    if OPT.get('probe', -1) == idx and CUR.get('compute') and (force or not (OPT.get('tailstamps', 0) and idx in (1,2,3,4,13))):
        a("s_memrealtime s[60:61]"); a("s_waitcnt lgkmcnt(0)")
        return
    if not OPT['stamps']: return
    if OPT.get('tailstamps', 0) and not force and idx in (1,2,3,4,13) and CUR.get('compute'): return
    a(f"s_memrealtime s[{60+2*idx}:{61+2*idx}]"); a("s_waitcnt lgkmcnt(0)")
def cstamp(a, idx):
    if not OPT['stamps']: return
    a(f"s_memtime s[{60+2*idx}:{61+2*idx}]"); a("s_waitcnt lgkmcnt(0)")
def stamp_init(a):
    if not OPT['stamps']: return
    for i in range(16): a(f"s_mov_b64 s[{60+2*i}:{61+2*i}], 0")
def stamp_flush(a, vb=250):
    if not OPT['stamps']: return
    srd(a, 92, P_WS, 256*16*16*8, add=WS_STAMP + KIDX*256*8*16*8)
    a("s_lshl_b32 s96, s2, 3"); a(f"s_add_u32 s96, s96, s{S_WAVE}"); a("s_lshl_b32 s96, s96, 7")
    a(f"v_mov_b32 v{vb+2}, 0")
    for i in range(16):
        a(f"v_mov_b32 v{vb}, s{60+2*i}"); a(f"v_mov_b32 v{vb+1}, s{61+2*i}")
        a(f"buffer_store_dwordx2 v[{vb}:{vb+1}], v{vb+2}, s[92:95], s96 offen offset:{i*8}")
        a("s_nop 1")
    a("s_waitcnt vmcnt(0)")

L_K = 98304; L_V = 131072; NCH = 9
W_SLOT = 36864

def dma(a, voff, srdb, soff, off=0, nt=False):
    a(f"buffer_load_dwordx4 v{voff}, s[{srdb}:{srdb+3}], s{soff} offen" + (f" offset:{off}" if off else "") + (" nt" if nt else "") + " lds")

V_WOV = 16
def wo_prep(a):
    srd(a, 52, P_WO, SZ_W)
    for t in range(9):
        a(f"v_add_u32 v1, {64*t}, v0")
        a("v_mul_u32_u24 v2, 3641, v1")
        a("v_lshrrev_b32 v2, 16, v2")
        a("v_mul_u32_u24 v3, 18, v2")
        a("v_sub_u32 v3, v1, v3")
        a("v_lshlrev_b32 v3, 4, v3")
        a("v_mul_u32_u24 v2, 1152, v2")
        a(f"v_add_u32 v{V_WOV+t}, v2, v3")
    a(f"s_mul_i32 s56, s{S_J}, 288")
def wo_issue(a, slot, q0, nq):
    a(f"s_add_u32 s57, s{S_J}, {slot}"); a("s_and_b32 s57, s57, 3")
    a(f"s_lshl_b32 s58, s{S_X}, 2"); a("s_add_u32 s57, s57, s58")
    a(f"s_mul_i32 s57, s57, {128*1152}"); a("s_add_u32 s57, s57, s56")
    if q0: a(f"s_add_u32 s57, s57, {q0*32*1152}")
    a(f"s_mov_b32 m0, {slot*W_SLOT + q0*32*288}"); a("s_nop 0")
    for blk in range(nq):
        for t in range(9):
            dma(a, V_WOV + t, 52, 57)
            if not (blk == nq - 1 and t == 8):
                a("s_add_u32 m0, m0, 1024")
                if t == 8: a(f"s_add_u32 s57, s57, {32*1152}")
                else: a("s_nop 0")

def loader_tail(a, role):
    a("s_barrier")
    stamp(a, 8)
    if role < 2:
        wo_issue(a, 0, 2 * role, 2); wo_issue(a, 1, 2 * role, 2)
    if role == 3: a("s_waitcnt vmcnt(0)")
    stamp(a, 9)
    a("s_barrier")
    if role < 2: a("s_waitcnt vmcnt(18)")
    a("s_barrier")
    a("s_barrier")
    wo_issue(a, 2, role, 1)
    stamp(a, 10)
    if role < 2: a("s_waitcnt vmcnt(9)")
    a("s_barrier")
    wo_issue(a, 3, role, 1)
    a("s_waitcnt vmcnt(9)")
    a("s_barrier")
    a("s_waitcnt vmcnt(0)")
    stamp(a, 11)
    a("s_barrier")

def loader_ring(a, which):
    SRD = 32; SO = 40
    if which == 'wq':
        srd(a, SRD, P_WQ, SZ_W)
        a("v_lshrrev_b32 v1, 4, v0"); a("v_and_b32 v2, 15, v0")
        a("v_lshlrev_b32 v3, 2, v1"); a("v_xor_b32 v3, v3, v2"); a("v_lshlrev_b32 v3, 4, v3")
        a("v_lshlrev_b32 v4, 13, v1"); a("v_add_u32 v4, v4, v3")
        a(f"s_lshl_b32 s{SO}, s{S_H}, 8")
        def issue(kc):
            a(f"s_mov_b32 m0, {(kc%3)*32768}")
            for t in range(16):
                if t == 0: a("s_nop 0")
                dma(a, 4, SRD, SO)
                a(f"s_add_u32 s{SO}, s{SO}, 32768")
                if t < 15:
                    a("s_add_u32 m0, m0, 1024"); a("s_nop 0")
    else:
        srd(a, SRD, P_X, SZ_X)
        a("v_lshrrev_b32 v1, 3, v0"); a("v_mul_u32_u24 v1, 1152, v1")
        a("v_and_b32 v2, 7, v0"); a("v_lshrrev_b32 v3, 4, v0"); a("v_xor_b32 v2, v2, v3")
        a("v_lshlrev_b32 v4, 4, v2"); a("v_add_u32 v4, v4, v1")
        a("v_xor_b32 v2, 4, v2"); a("v_lshlrev_b32 v5, 4, v2"); a("v_add_u32 v5, v5, v1")
        a(f"s_mul_i32 s{SO+1}, s{S_G}, 147456")
        def issue(kc):
            a(f"s_mov_b32 m0, {(kc%3)*32768 + 16384}")
            a(f"s_add_u32 s{SO}, s{SO+1}, {kc*128}")
            for T in range(16):
                dma(a, 4 + (T & 1), SRD, SO)
                if T < 15:
                    a("s_add_u32 m0, m0, 1024"); a(f"s_add_u32 s{SO}, s{SO}, 9216")
    kv_pos(a, 43, 'k')
    if which == 'wq':
        a("v_lshrrev_b32 v8, 1, v0"); a("v_and_b32 v9, 1, v0")
        a("v_lshlrev_b32 v8, 13, v8"); a("v_lshl_add_u32 v8, v9, 7, v8")
        a(f"s_lshl_b32 s46, s{S_G}, {5+13}"); a(f"s_lshl_b32 s47, s{S_H}, 8"); a("s_add_u32 s46, s46, s47")
        def touch(part):
            if part == 0:
                a(f"buffer_load_dword v10, v8, s[{SRD}:{SRD+3}], s46 offen")
            else:
                a(f"s_add_u32 s46, s46, {256*8192}")
                a(f"buffer_load_dword v10, v8, s[{SRD}:{SRD+3}], s46 offen")
                a(f"s_lshl_b32 s46, s{S_G}, {3+13}"); a("s_add_u32 s46, s46, s47"); a(f"s_add_u32 s46, s46, {512*8192}")
                a("s_mov_b64 exec, 0xffff")
                a(f"buffer_load_dword v10, v8, s[{SRD}:{SRD+3}], s46 offen")
                a("s_mov_b64 exec, -1")
        NT1 = 2
    else:
        a("v_and_b32 v9, 31, v0"); a("v_mul_u32_u24 v9, 1152, v9")
        a("v_lshrrev_b32 v8, 5, v0"); a("v_lshl_add_u32 v8, v8, 7, v9")
        a(f"s_mul_i32 s46, s{S_G}, 147456"); a(f"s_mul_i32 s47, s{S_J}, {32*1152}"); a("s_add_u32 s46, s46, s47")
        def touch(part):
            if part == 0:
                a(f"buffer_load_dword v10, v8, s[{SRD}:{SRD+3}], s46 offen")
            else:
                for t in range(1, 4):
                    a(f"buffer_load_dword v10, v8, s[{SRD}:{SRD+3}], s46 offen offset:{256*t}")
                a("s_mov_b64 exec, 0xffffffff")
                a(f"buffer_load_dword v10, v9, s[{SRD}:{SRD+3}], s46 offen offset:1024")
                a("s_mov_b64 exec, -1")
        NT1 = 4
    touch(0)
    issue(0); stamp(a, 1)
    touch(1)
    a("s_barrier")
    bx(a, -1, "r" + which)
    issue(1)
    stamp(a, 2)
    a(f"s_waitcnt vmcnt({16 + NT1})")
    stamp(a, 3)
    a("s_barrier")
    bx(a, 0, "r" + which)
    issue(2)
    for i in range(1, NCH):
        last_issued = min(i + 1, NCH - 1)
        a(f"s_waitcnt vmcnt({(last_issued - i) * 16})")
        a("s_barrier")
        if which == 'wq' and i in (1,2,3,4): stamp(a, {1:4,2:5,3:6,4:12}[i])
        if which == 'x' and i in (5,6,7,8): stamp(a, {5:4,6:5,7:6,8:12}[i])
        if i < 8: bx(a, i, "r" + which)
        if i + 2 < NCH: issue(i + 2)
        if i == 7: wo_prep(a)
    stamp(a, 7)
    loader_tail(a, 0 if which == 'wq' else 1)

def kv_pos(a, sdst, which):
    m = OPT['kvmode']
    if m == 10:
        tab = [-1, 2, 4, 7]
    elif m == 11: tab = [7, 7, 7, 7]
    elif m == 12: tab = [-1, -1, -1, -1]
    elif m == 13: tab = [1, 1, 6, 6]
    elif m == 14: tab = [-1, 1, 4, 7]
    elif m == 15: tab = [0, 3, 5, 7]
    elif m == 16: tab = [2, 7, 2, 7]
    elif m == 17: tab = [3, 5, 7, 7]
    elif m == 20: tab = [-1, 1, 3, 5]
    elif m == 21: tab = [-1, 2, 4, 6]
    elif m == 22: tab = [-1, -1, 3, 3]
    elif m == 23: tab = [-1, 0, 2, 4]
    elif m == 24: tab = [0, 2, 4, 6]
    elif m == 25: tab = [-1, -1, -1, -1]
    packed = sum(((p + 1) & 15) << (4 * k) for k, p in enumerate(tab))
    a(f"s_and_b32 s{sdst}, s{S_G}, 3"); a(f"s_lshl_b32 s{sdst}, s{sdst}, 2")
    a(f"s_lshr_b32 s{sdst}, {packed}, s{sdst}"); a(f"s_and_b32 s{sdst}, s{sdst}, 15")

def bx(a, p, tag):
    if p >= 6: return
    a(f"s_cmp_lg_u32 s43, {p+1}"); a(f"s_cbranch_scc1 L_bx_{tag}_{p+1}")
    a("s_barrier")
    a.label(f"L_bx_{tag}_{p+1}")

def kv_loop(a, tag, issue_fn, extra_fn=None, extra_pos=None):
    a("s_mov_b32 s59, 0")
    a.label(f"L_{tag}_loop")
    a("s_cmp_lg_u32 s59, s43"); a(f"s_cbranch_scc1 L_{tag}_skip")
    stamp(a, 3)
    issue_fn()
    stamp(a, 4)
    a(f"s_cmp_ge_u32 s59, 7"); a(f"s_cbranch_scc1 L_{tag}_skip")
    a("s_barrier")
    a.label(f"L_{tag}_skip")
    if extra_fn is not None:
        a(f"s_cmp_lg_u32 s59, {extra_pos}"); a(f"s_cbranch_scc1 L_{tag}_skip2")
        extra_fn()
        a.label(f"L_{tag}_skip2")
    a("s_barrier")
    a("s_add_u32 s59, s59, 1")
    a("s_cmp_le_u32 s59, 8"); a(f"s_cbranch_scc1 L_{tag}_loop")

def loader_k(a):
    SRD = 32; SRD2 = 36; SO = 40
    srd(a, SRD2, P_WQ, SZ_W); srd(a, SRD, P_K, SZ_KV)
    a("v_lshrrev_b32 v1, 4, v0"); a("v_and_b32 v2, 15, v0"); a("v_xor_b32 v2, v2, v1")
    a("v_lshlrev_b32 v2, 4, v2"); a("v_lshl_add_u32 v4, v1, 8, v2")
    a("v_xor_b32 v5, 64, v4"); a("v_xor_b32 v6, 128, v4"); a("v_xor_b32 v7, 192, v4")
    wo_prep(a)
    a("v_and_b32 v8, 15, v0"); a("v_mul_u32_u24 v8, 1152, v8")
    a("v_lshrrev_b32 v9, 4, v0"); a("v_lshl_add_u32 v9, v9, 7, v8")
    kv_pos(a, 43, 'k')
    a("s_barrier")
    stamp(a, 1)
    def issue():
        a(f"s_lshl_b32 s{SO}, s{S_G}, 7"); a(f"s_add_u32 s{SO}, s{SO}, s{S_H}"); a(f"s_lshl_b32 s{SO}, s{SO}, 13")
        for w in range(4):
            for hf in range(2):
                a(f"s_mov_b32 m0, {L_K + w*8192 + hf*4096}"); a("s_nop 0")
                for t4 in range(4):
                    t = hf * 4 + t4
                    dma(a, 4 + (t >> 1), SRD, SO, off=t4 * 1024, nt=bool(OPT['k_nt']))
                a(f"s_add_u32 s{SO}, s{SO}, {4096 if hf == 0 else 32*8192 - 4096}")
    def wotouch():
        a(f"s_lshl_b32 s{SO}, s{S_X}, 5"); a(f"s_add_u32 s{SO}, s{SO}, s{S_R}")
        a(f"s_mul_i32 s{SO}, s{SO}, {16*1152}")
        a(f"buffer_load_dword v10, v9, s[52:55], s{SO} offen")
        a(f"buffer_load_dword v10, v9, s[52:55], s{SO} offen offset:512")
        a("s_mov_b64 exec, 0xffff")
        a(f"buffer_load_dword v10, v8, s[52:55], s{SO} offen offset:1024")
        a("s_mov_b64 exec, -1")
    kv_loop(a, "k", issue, wotouch, OPT['wot_pos'])
    a("s_waitcnt vmcnt(3)")
    stamp(a, 7)
    loader_tail(a, 2)

def loader_v(a):
    SRD = 32; SRD3 = 44; SO = 40
    srd(a, SRD3, P_X, SZ_X); srd(a, SRD, P_V, SZ_KV)
    a("s_cmp_lg_u32 s2, 0"); a("s_cbranch_scc1 L_nononce")
    srd(a, 48, P_DBG, 256)
    a("s_memrealtime s[42:43]"); a("s_waitcnt lgkmcnt(0)")
    a("s_or_b32 s42, s42, 1")
    a("v_mov_b32 v8, s42"); a("v_mov_b32 v9, s43"); a("v_mov_b32 v1, 0")
    a("s_mov_b64 exec, 1")
    a("buffer_store_dwordx2 v[8:9], v1, s[48:51], 0 offen sc1")
    a("s_mov_b64 exec, -1")
    a.label("L_nononce")
    if OPT['fast']:
        srd(a, 48, P_DBG, 256)
        a("s_getreg_b32 s42, hwreg(HW_REG_XCC_ID)")
        a("s_and_b32 s42, s42, 15")
        a("s_cmp_ge_u32 s42, 8"); a("s_cbranch_scc1 L_noxcc")
        a("s_mul_i32 s43, s42, s42"); a("s_lshl_b32 s43, s43, 5"); a("s_add_u32 s42, s42, s43")
        a("s_add_u32 s42, s42, 0x2000")
        a(f"s_lshl_b32 s43, s{S_G}, 3"); a(f"s_add_u32 s43, s43, s{S_X}")
        a("s_and_b32 s41, s43, 1"); a("s_lshl_b32 s41, s41, 4"); a("s_lshl_b32 s42, s42, s41")
        a("s_lshr_b32 s43, s43, 1"); a("s_lshl_b32 s43, s43, 2"); a("s_add_u32 s43, s43, 128")
        a("v_mov_b32 v8, s42"); a("v_mov_b32 v1, 0")
        a("s_mov_b64 exec, 1")
        a("buffer_atomic_add v8, v1, s[48:51], s43 offen")
        a("s_mov_b64 exec, -1")
        a.label("L_noxcc")
    a("v_lshrrev_b32 v1, 4, v0"); a("v_and_b32 v2, 15, v0"); a("v_lshlrev_b32 v3, 1, v1")
    a("v_xor_b32 v2, v2, v3"); a("v_lshlrev_b32 v2, 4, v2"); a("v_lshl_add_u32 v4, v1, 8, v2")
    a("v_xor_b32 v5, 128, v4")
    wo_prep(a)
    kv_pos(a, 43, 'v')
    a("s_barrier")
    stamp(a, 1)
    def issue():
        a(f"s_lshl_b32 s{SO}, s{S_G}, 7"); a(f"s_add_u32 s{SO}, s{SO}, s{S_H}"); a(f"s_lshl_b32 s{SO}, s{SO}, 13")
        for w in range(4):
            for hf in range(2):
                a(f"s_mov_b32 m0, {L_V + w*8192 + hf*4096}"); a("s_nop 0")
                for t4 in range(4):
                    t = hf * 4 + t4
                    dma(a, 4 + ((t >> 1) & 1), SRD, SO, off=t4 * 1024, nt=bool(OPT['v_nt']))
                a(f"s_add_u32 s{SO}, s{SO}, {4096 if hf == 0 else 32*8192 - 4096}")
    kv_loop(a, "v", issue)
    stamp(a, 7)
    loader_tail(a, 3)

V_XA = [4, 8]; V_WA = [12, 248]
V_A = [16, 32]; V_B = [48, 52]; V_ACC = 64
V_QF = 128; V_KF = 160; V_S = 192; V_VF = 208; V_PF = 240; V_OF = 128
V_KA = 56; V_VA = 60; V_CLW = 61; V_NONCE = 62
SC_SCALE = 0.08838834764831845 * 1.4426950408889634

def gemm1_addrs(a):
    a("v_and_b32 v1, 31, v0"); a("v_lshrrev_b32 v2, 5, v0"); a("v_bfe_u32 v3, v0, 1, 3")
    a("v_xor_b32 v2, v2, v3"); a("v_lshlrev_b32 v2, 4, v2"); a("v_lshl_add_u32 v2, v1, 7, v2")
    a(f"s_lshl_b32 s40, s{S_WAVE}, 12"); a("s_add_u32 s40, s40, 16384")
    a("v_add_u32 v2, s40, v2")
    for ks in range(4):
        a(f"v_xor_b32 v{V_XA[0]+ks}, {32*ks}, v2"); a(f"v_add_u32 v{V_XA[1]+ks}, 65536, v{V_XA[0]+ks}")
    a("v_bfe_u32 v1, v0, 2, 2"); a("v_lshrrev_b32 v2, 5, v0"); a("v_lshl_add_u32 v2, v2, 3, v1")
    a("v_lshlrev_b32 v2, 8, v2"); a("v_and_b32 v3, 1, v0"); a("v_lshl_add_u32 v2, v3, 5, v2")
    a("v_bfe_u32 v3, v0, 4, 1"); a("v_lshl_add_u32 v2, v3, 4, v2")
    a("v_bfe_u32 v3, v0, 1, 1"); a("v_lshl_add_u32 v2, v3, 3, v2")
    a("v_lshl_add_u32 v2, v1, 6, v2")
    for dt in range(4):
        a(f"v_xor_b32 v{V_WA[0]+dt}, {64*dt}, v2"); a(f"v_add_u32 v{V_WA[1]+dt}, 65536, v{V_WA[0]+dt}")

def attn_addrs(a):
    a("v_and_b32 v1, 15, v0"); a("v_lshrrev_b32 v2, 4, v0"); a("v_xor_b32 v2, v2, v1")
    a("v_lshlrev_b32 v2, 4, v2"); a("v_lshrrev_b32 v3, 2, v1"); a("v_lshl_add_u32 v2, v3, 11, v2")
    a("v_and_b32 v3, 3, v1"); a("v_lshl_add_u32 v2, v3, 8, v2")
    a(f"s_lshl_b32 s40, s{S_WAVE}, 13"); a(f"s_add_u32 s40, s40, {L_K}")
    a("v_add_u32 v2, s40, v2")
    for st in range(4): a(f"v_xor_b32 v{V_KA+st}, {64*st}, v2")
    a("v_lshrrev_b32 v1, 4, v0"); a("v_bfe_u32 v3, v0, 2, 2"); a("v_lshl_add_u32 v2, v1, 3, v3")
    a("v_lshlrev_b32 v2, 8, v2"); a("v_and_b32 v1, 1, v1"); a("v_lshl_add_u32 v3, v1, 2, v3")
    a("v_lshl_add_u32 v2, v3, 5, v2"); a("v_and_b32 v3, 3, v0"); a("v_lshl_add_u32 v2, v3, 3, v2")
    a(f"s_lshl_b32 s40, s{S_WAVE}, 13"); a(f"s_add_u32 s40, s40, {L_V}")
    a(f"v_add_u32 v{V_VA}, s40, v2")

def g1_reads(n):
    i, ks = divmod(n, 4)
    slot = i % 3; st = n & 1; hs = 1 if slot == 2 else 0; so = (slot & 1) * 32768 if slot < 2 else 0
    r = [f"ds_read_b128 {vr(V_B[st],4)}, v{V_XA[hs]+ks} offset:{so}"]
    for dt in range(4):
        base = V_A[st] + 4 * dt
        off = so + ks * 4096
        r.append(f"ds_read_b64_tr_b16 {vr(base,2)}, v{V_WA[hs]+dt} offset:{off}")
        r.append(f"ds_read_b64_tr_b16 {vr(base+2,2)}, v{V_WA[hs]+dt} offset:{off+1024}")
    return r

def gemm1(a):
    NS = NCH * 4
    kv_pos(a, 43, 'k')
    a("s_barrier")
    bx(a, -1, "c")
    a("s_barrier")
    stamp(a, 1)
    for r in g1_reads(0): a(r)
    for n in range(NS):
        i, ks = divmod(n, 4); st = n & 1
        nxt = g1_reads(n + 1) if n + 1 < NS else []
        def mf(dt):
            c = "0" if n == 0 else vr(V_ACC + 16 * dt, 16)
            a(f"v_mfma_f32_32x32x16_bf16 {vr(V_ACC+16*dt,16)}, {vr(V_A[st]+4*dt,4)}, {vr(V_B[st],4)}, {c}")
        if ks == 3:
            for dt in range(4):
                a(f"s_waitcnt lgkmcnt({[6,4,2,0][dt]})")
                if dt == 3 and nxt:
                    bx(a, i, "c")
                    a("s_barrier")
                    for r in nxt[:5]: a(r)
                mf(dt)
            for r in nxt[5:]: a(r)
        else:
            first_after_boundary = (ks == 0 and n > 0)
            for dt in range(4):
                a(f"s_waitcnt lgkmcnt({[6,7,8,9][dt]})")
                mf(dt)
                if dt < 3:
                    for r in nxt[3*dt:3*dt+3]: a(r)
        if n == 24:
            a(f"buffer_load_dwordx2 {vr(V_NONCE,2)}, v1, s[36:39], 0 offen sc1")
            if OPT['fast']:
                a(f"buffer_load_dword v{V_CLW}, v1, s[36:39], s40 offen sc1")
                a(f"buffer_load_dword v2, v1, s[44:47], s42 offen sc1")

def attention(a):
    a("s_barrier")
    stamp(a, 3)
    for ai in range(2):
        for st in range(4):
            a(f"ds_read_b128 {vr(V_KF+(ai*4+st)*4,4)}, v{V_KA+st} offset:{ai*1024}")
    for dt in range(4):
        for i in range(8):
            a(f"v_cvt_pk_bf16_f32 v{V_QF+8*dt+i}, v{V_ACC+16*dt+2*i}, v{V_ACC+16*dt+2*i+1}")
    a("s_nop 1")
    for dt in range(4):
        for i in range(4):
            a(f"v_permlane16_swap_b32 v{V_QF+8*dt+i}, v{V_QF+8*dt+4+i}")
    a("s_waitcnt lgkmcnt(0)")
    for st in range(4):
        for ai in range(2):
            for qt in range(2):
                d = vr(V_S + (ai*2+qt)*4, 4)
                c = "0" if st == 0 else d
                a(f"v_mfma_f32_16x16x32_bf16 {d}, {vr(V_KF+(ai*4+st)*4,4)}, {vr(V_QF+8*st+4*qt,4)}, {c}")
    def S(ai, qt, v): return V_S + (ai*2+qt)*4 + v
    M = [48, 49]; T_ = [50, 51]; SUM = [52, 53]
    a("s_nop 7")
    for qt in range(2): a(f"v_max3_f32 v{M[qt]}, v{S(0,qt,0)}, v{S(0,qt,1)}, v{S(0,qt,2)}")
    for qt in range(2): a(f"v_max3_f32 v{M[qt]}, v{M[qt]}, v{S(0,qt,3)}, v{S(1,qt,0)}")
    for qt in range(2): a(f"v_max3_f32 v{M[qt]}, v{M[qt]}, v{S(1,qt,1)}, v{S(1,qt,2)}")
    for qt in range(2): a(f"v_max_f32 v{M[qt]}, v{M[qt]}, v{S(1,qt,3)}")
    def xlane(regs, tmps, op):
        for sw in ("v_permlane16_swap_b32", "v_permlane32_swap_b32"):
            for qt in range(2): a(f"v_mov_b32 v{tmps[qt]}, v{regs[qt]}")
            a("s_nop 1")
            for qt in range(2): a(f"{sw} v{tmps[qt]}, v{regs[qt]}")
            a("s_nop 1")
            for qt in range(2): a(f"{op} v{regs[qt]}, v{regs[qt]}, v{tmps[qt]}")
    xlane(M, T_, "v_max_f32")
    a(f"s_mov_b32 s41, {f32hex(SC_SCALE)}")
    for qt in range(2): a(f"v_mul_f32 v{M[qt]}, s41, v{M[qt]}")
    for ai in range(2):
        for v in range(4):
            for qt in range(2): a(f"v_fma_f32 v{S(ai,qt,v)}, v{S(ai,qt,v)}, s41, -v{M[qt]}")
    for ai in range(2):
        for v in range(4):
            for qt in range(2): a(f"v_exp_f32 v{S(ai,qt,v)}, v{S(ai,qt,v)}")
    a("s_nop 0")
    for qt in range(2): a(f"v_add_f32 v{SUM[qt]}, v{S(0,qt,0)}, v{S(0,qt,1)}")
    for (ai, v) in [(0,2),(0,3),(1,0),(1,1),(1,2),(1,3)]:
        for qt in range(2): a(f"v_add_f32 v{SUM[qt]}, v{SUM[qt]}, v{S(ai,qt,v)}")
    xlane(SUM, T_, "v_add_f32")
    for qt in range(2): a(f"v_rcp_f32 v{SUM[qt]}, v{SUM[qt]}")
    a("s_nop 0")
    for ai in range(2):
        for v in range(4):
            for qt in range(2): a(f"v_mul_f32 v{S(ai,qt,v)}, v{S(ai,qt,v)}, v{SUM[qt]}")
    for qt in range(2):
        for ai in range(2):
            for h2 in range(2):
                a(f"v_cvt_pk_bf16_f32 v{V_PF+4*qt+2*ai+h2}, v{S(ai,qt,2*h2)}, v{S(ai,qt,2*h2+1)}")
    stamp(a, 4)
    a("s_barrier")
    for T in range(8):
        if T: a(f"v_xor_b32 v1, {32*T}, v{V_VA}")
        ad = "v1" if T else f"v{V_VA}"
        a(f"ds_read_b64_tr_b16 {vr(V_VF+4*T,2)}, {ad}")
        a(f"ds_read_b64_tr_b16 {vr(V_VF+4*T+2,2)}, {ad} offset:1024")
        if T == 5: a("s_waitcnt lgkmcnt(4)")
    a("s_waitcnt lgkmcnt(0)")
    a("s_barrier")
    for T in range(8):
        for qt in range(2):
            a(f"v_mfma_f32_16x16x32_bf16 {vr(V_ACC+(T*2+qt)*4,4)}, {vr(V_VF+4*T,4)}, {vr(V_PF+4*qt,4)}, 0")
    a("s_nop 7")
    for p in range(4):
        for qt in range(2):
            for e in range(2):
                T = 2*p + e
                for h2 in range(2):
                    src = V_ACC + (T*2+qt)*4 + 2*h2
                    a(f"v_cvt_pk_bf16_f32 v{V_OF+(2*p+qt)*4+2*e+h2}, v{src}, v{src+1}")

V2_ACC = 16
V2_A = [88, 108]
V2_AD = [4, 5, 6, 12]
BUF = [160, 192, 224]

def p2_areads(slot, p, half):
    r = []
    ad = V2_AD[slot]
    taus = range(0, 5) if half == 0 else range(5, 9)
    for k, tau in enumerate(taus):
        off = p * 32 * 288 + 32 * tau
        base = V2_A[half] + 4 * k
        r.append(f"ds_read_b64_tr_b16 {vr(base,2)}, v{ad} offset:{off}")
        r.append(f"ds_read_b64_tr_b16 {vr(base+2,2)}, v{ad} offset:{off+16*288}")
    return r

def p2_bloads(a, slot, breg):
    a(f"s_add_u32 s45, s{S_J}, {slot}"); a("s_and_b32 s45, s45, 3"); a("s_add_u32 s45, s45, s44")
    a("s_lshl_b32 s45, s45, 2"); a(f"s_add_u32 s45, s45, s{S_WAVE}")
    a("s_lshl_b32 s46, s45, 13"); a("s_add_u32 s47, s46, 4096")
    for f in range(8):
        a(f"buffer_load_dwordx4 {vr(breg+4*f,4)}, v7, s[32:35], s{46 + f//4} offen offset:{(f%4)*1024} sc1")

S_NON = 52
S_FAST = 54

def get_nonce(a):
    a("s_waitcnt vmcnt(0)")
    a("v_mov_b32 v9, 0")
    a("s_mov_b32 s50, 0")
    a.label("L_nonce_chk")
    a(f"v_readfirstlane_b32 s{S_NON}, v{V_NONCE}"); a(f"v_readfirstlane_b32 s{S_NON+1}, v{V_NONCE+1}")
    a("s_nop 0")
    a(f"s_cmp_lg_u32 s{S_NON}, 0"); a("s_cbranch_scc1 L_nonce_ok")
    a(f"buffer_load_dwordx2 {vr(V_NONCE,2)}, v9, s[36:39], 0 offen sc1")
    a("s_add_u32 s50, s50, 1"); a("s_waitcnt vmcnt(0)")
    a(f"s_cmp_lt_u32 s50, {OPT['spin_max']}"); a("s_cbranch_scc1 L_nonce_chk")
    a.label("L_nonce_ok")
    a(f"s_mov_b32 s{S_FAST}, 0")
    if OPT['fast']:
        a(f"v_readfirstlane_b32 s55, v{V_CLW}")
        a(f"s_and_b32 s56, s{S_X}, 1"); a("s_lshl_b32 s56, s56, 4"); a("s_lshr_b32 s55, s55, s56")
        a("s_and_b32 s56, s55, 31")
        a("s_bfe_u32 s57, s55, 0x80005")
        a("s_bfe_u32 s55, s55, 0x3000d")
        a("s_mul_i32 s56, s56, s56"); a("s_lshl_b32 s57, s57, 2")
        a("s_cmp_eq_u32 s56, s57"); a(f"s_cselect_b32 s{S_FAST}, 1, 0")
        a("s_cmp_eq_u32 s55, 4"); a(f"s_cselect_b32 s{S_FAST}, s{S_FAST}, 0")
        if OPT['fast'] == 2: a(f"s_mov_b32 s{S_FAST}, 0")

def poll(a, tag, voff, soff, sleep=0):
    a("s_mov_b32 s50, 0")
    a.label(f"L_poll_{tag}")
    if sleep: a(f"s_sleep {sleep}")
    a(f"buffer_load_dwordx2 v[10:11], v{voff}, s[32:35], s{soff} offen sc1")
    a("s_add_u32 s50, s50, 1"); a("s_waitcnt vmcnt(0)")
    a(f"v_cmp_eq_u64 vcc, v[10:11], s[{S_NON}:{S_NON+1}]")
    a(f"s_cmp_ge_u32 s50, {OPT['spin_max']}"); a(f"s_cbranch_scc1 L_poll_{tag}_done")
    a("s_cmp_eq_u64 vcc, -1"); a(f"s_cbranch_scc0 L_poll_{tag}")
    a.label(f"L_poll_{tag}_done")

def flag_store(a, soff, mode):
    a(f"v_mov_b32 v10, s{S_NON}"); a(f"v_mov_b32 v11, s{S_NON+1}")
    a("s_mov_b64 exec, 1")
    if mode == 'dyn':
        a(f"s_cmp_eq_u32 s{S_FAST}, 0"); a("s_cbranch_scc1 L_flag_slow")
        a(f"buffer_store_dwordx2 v[10:11], v9, s[32:35], s{soff} offen")
        a("s_branch L_flag_join")
        a.label("L_flag_slow")
        a(f"buffer_store_dwordx2 v[10:11], v9, s[32:35], s{soff} offen sc1")
        a.label("L_flag_join")
    else:
        a(f"buffer_store_dwordx2 v[10:11], v9, s[32:35], s{soff} offen sc1")
    a("s_mov_b64 exec, -1")

def o_store(a):
    srd(a, 32, P_WS, SZ_WS_USED)
    a("v_lshlrev_b32 v7, 4, v0")
    a(f"s_lshl_b32 s40, s{S_G}, 5"); a(f"s_add_u32 s40, s40, s{S_H}"); a("s_lshl_b32 s40, s40, 2")
    a(f"s_add_u32 s40, s40, s{S_WAVE}"); a("s_lshl_b32 s40, s40, 13"); a("s_add_u32 s41, s40, 4096")
    global OSTORES
    OSTORES = [f"buffer_store_dwordx4 {vr(V_OF+4*f,4)}, v7, s[32:35], s{40 + f//4} offen offset:{(f%4)*1024} sc1" for f in range(8)]
    a("v_lshrrev_b32 v2, 4, v0"); a("v_bfe_u32 v3, v0, 2, 2"); a("v_lshl_add_u32 v2, v2, 2, v3")
    a("v_mul_u32_u24 v2, 288, v2"); a("v_and_b32 v3, 3, v0")
    a(f"v_lshl_add_u32 v{V2_AD[0]}, v3, 3, v2")
    for sl in range(1, 4): a(f"v_add_u32 v{V2_AD[sl]}, {sl*W_SLOT}, v{V2_AD[0]}")
    a(f"s_lshl_b32 s44, s{S_G}, 5"); a(f"s_lshl_b32 s45, s{S_X}, 2"); a("s_add_u32 s44, s44, s45")
    a(f"s_lshl_b32 s48, s{S_G}, 3"); a(f"s_add_u32 s48, s48, s{S_X}"); a("s_lshl_b32 s48, s48, 2")
    a(f"s_add_u32 s48, s48, s{S_WAVE}"); a("s_lshl_b32 s48, s48, 7"); a(f"s_add_u32 s48, s48, {WS_F}")
    a(f"s_lshl_b32 s49, s{S_J}, 3"); a("s_add_u32 s49, s49, s48")
    a("v_and_b32 v8, 3, v0"); a("v_lshlrev_b32 v8, 3, v8")

def bload_list(slot, breg):
    setup = [f"s_add_u32 s45, s{S_J}, {slot}", "s_and_b32 s45, s45, 3", "s_add_u32 s45, s45, s44",
             "s_lshl_b32 s45, s45, 2", f"s_add_u32 s45, s45, s{S_WAVE}",
             "s_lshl_b32 s46, s45, 13", "s_add_u32 s47, s46, 4096"]
    loads = [f"buffer_load_dwordx4 {vr(breg+4*f,4)}, v7, s[32:35], s{46 + f//4} offen offset:{(f%4)*1024} sc1" for f in range(8)]
    return setup, loads

def p2_run(a, hs, n0, n1, hooks_pre=None, hooks_mid=None, inject=None, cont=True):
    hooks_pre = hooks_pre or {}; hooks_mid = hooks_mid or {}; inject = inject or {}
    for n in range(n0, n1):
        (s, p, hf) = hs[n]
        breg = V_OF if s == 0 else BUF[s - 1]
        nxt = p2_areads(*hs[n+1]) if n + 1 < n1 else []
        taus = list(range(0, 5)) if hf == 0 else list(range(5, 9))
        nown = 2 * len(taus)
        plan = [1,1,1,1,1,1,1,1,0,0] if hf == 0 else [2,1,1,1,2,1,1,1]
        issued = 0; m = 0
        inj = list(inject.get(n, []))
        if n in hooks_pre: hooks_pre[n]()
        for k, tau in enumerate(taus):
            a(f"s_waitcnt lgkmcnt({nown - 2 * (k + 1) + issued})")
            for qt in range(2):
                d = vr(V2_ACC + (tau*2+qt)*4, 4)
                c = "0" if (s == 0 and p == 0) else d
                a(f"v_mfma_f32_16x16x32_bf16 {d}, {vr(V2_A[hf]+4*k,4)}, {vr(breg+(2*p+qt)*4,4)}, {c}")
                if m == 0 and n in hooks_mid: hooks_mid[n]()
                if nxt:
                    for r in nxt[issued:issued+plan[m]]: a(r)
                    issued = min(len(nxt), issued + plan[m])
                m += 1
                if k >= len(taus) - 1 and inj: a(inj.pop(0))
        while inj: a(inj.pop(0))

def tail(a):
    hs = [(s, p, hf) for s in range(4) for p in range(4) for hf in range(2)]
    o_store(a)
    stamp(a, 6)
    if OPT.get('ostfirst', 1):
        for x in OSTORES: a(x)
        for r in p2_areads(*hs[0]): a(r)
        def early_flag():
            a("s_waitcnt vmcnt(0)")
            flag_store(a, 49, 'dyn')
            a("s_nop 3")
        p2_run(a, hs, 0, 8, hooks_pre={OPT.get('flagpos', 5): early_flag})
        a("s_barrier")
    else:
        for r in p2_areads(*hs[0]): a(r)
        p2_run(a, hs, 0, 8, inject={n: [OSTORES[n]] for n in range(8)})
    if not OPT.get('ostfirst', 1):
        a("s_barrier")
        a("s_waitcnt vmcnt(0)")
        flag_store(a, 49, 'dyn')
    stamp(a, 7)
    poll(a, "o", 8, 48, sleep=OPT.get('o_sleep', 0))
    stamp(a, 8)
    p2_bloads(a, 1, BUF[0])
    a("s_barrier")
    tstamp(a, 1)
    for r in p2_areads(*hs[8]): a(r)
    su2, l2 = bload_list(2, BUF[1]); su3, l3 = bload_list(3, BUF[2])
    for x in su2: a(x)
    inj = {}
    for t in range(4):
        inj[8 + t] = l2[2*t:2*t+2]
        inj[16 + t] = l3[2*t:2*t+2]
    inj[15] = su3
    a("s_waitcnt vmcnt(0)")
    tstamp(a, 2)
    if OPT.get('cyc', 0): cstamp(a, 3)
    p2_run(a, hs, 8, 32,
           hooks_pre={16: lambda: a("s_waitcnt vmcnt(0)"), 24: lambda: a("s_waitcnt vmcnt(0)")},
           hooks_mid={15: lambda: a("s_barrier"), 23: lambda: a("s_barrier")},
           inject=inj)
    if OPT.get('cyc', 0): cstamp(a, 4)
    stamp(a, 9)
    if OPT['dk']: reduce_inkernel(a)
    elif OPT.get('k3bf', 0): store_partials_bf16(a)
    else: store_partials_f32(a)

def store_partials_f32(a):
    a("s_nop 7")
    a(f"s_lshl_b32 s45, s{S_X}, 3"); a(f"s_add_u32 s45, s45, s{S_G}"); a("s_lshl_b32 s45, s45, 2")
    a(f"s_add_u32 s45, s45, s{S_J}"); a("s_lshl_b32 s45, s45, 2"); a(f"s_add_u32 s45, s45, s{S_WAVE}")
    a(f"s_mul_i32 s45, s45, {18*1024}"); a(f"s_add_u32 s45, s45, {WS_P}")
    for u in range(18):
        if u and u % 4 == 0: a("s_add_u32 s45, s45, 4096")
        a(f"buffer_store_dwordx4 {vr(V2_ACC+4*u,4)}, v7, s[32:35], s45 offen offset:{(u%4)*1024}")

def store_partials_bf16(a):
    G = 160
    a(f"s_lshl_b32 s44, s{S_G}, 2"); a(f"s_add_u32 s44, s44, s{S_J}"); a("s_lshl_b32 s44, s44, 2")
    a(f"s_add_u32 s44, s44, s{S_WAVE}")
    a(f"s_lshl_b32 s45, s{S_X}, 7"); a("s_add_u32 s45, s45, s44"); a("s_mul_i32 s45, s45, 9216")
    a(f"s_add_u32 s45, s45, {WS_P}"); a("s_add_u32 s46, s45, 4096"); a("s_add_u32 s47, s45, 8192")
    sc = " sc1" if OPT.get('psc1', 1) else ""
    for tau in range(9):
        for qt in range(2):
            for h2 in range(2):
                src = V2_ACC + (tau*2+qt)*4 + 2*h2
                a(f"v_cvt_pk_bf16_f32 v{G+4*tau+2*qt+h2}, v{src}, v{src+1}")
        a(f"buffer_store_dwordx4 {vr(G+4*tau,4)}, v7, s[32:35], s{45 + tau//4} offen offset:{(tau%4)*1024}{sc}")

def kernel3b(a):
    name = "mha_p3_kernel"
    a(".p2align 8"); a(f".globl {name}"); a(f".type {name},@function"); a.label(name)
    a("s_cmp_ge_u32 s2, 288"); a(f"s_cbranch_scc1 L_end_{name}")
    a("s_load_dwordx2 s[26:27], s[0:1], 40"); a("s_load_dwordx2 s[30:31], s[0:1], 56")
    a("v_lshrrev_b32 v1, 6, v0"); a("v_and_b32 v0, 63, v0")
    a("s_lshl_b32 s5, s2, 2")
    a(f"v_readfirstlane_b32 s{S_WAVE}, v1")
    a("v_lshlrev_b32 v1, 4, v0")
    a(f"s_add_u32 s5, s5, s{S_WAVE}")
    a("s_mul_i32 s45, s5, 1024"); a(f"s_add_u32 s45, s45, {WS_P}")
    a("s_mul_hi_u32 s6, s5, 477218589")
    a("s_mul_i32 s7, s6, 9"); a("s_sub_u32 s7, s5, s7")
    a("s_waitcnt lgkmcnt(0)")
    srd(a, 32, P_WS, SZ_WS_USED); srd(a, 36, P_OUT, SZ_OUT)
    for x in range(8):
        a(f"buffer_load_dwordx4 {vr(8+4*x,4)}, v1, s[32:35], s45 offen")
        if x < 7: a(f"s_add_u32 s45, s45, {128*9216}")
    a("v_and_b32 v2, 15, v0"); a("v_mul_u32_u24 v2, 1152, v2"); a("v_lshrrev_b32 v3, 4, v0")
    a("v_lshl_add_u32 v2, v3, 3, v2")
    a("s_lshr_b32 s46, s6, 4"); a("s_lshl_b32 s46, s46, 2"); a("s_and_b32 s47, s6, 3"); a("s_add_u32 s46, s46, s47")
    a(f"s_mul_i32 s46, s46, {32*1152}")
    a("s_lshr_b32 s47, s6, 2"); a("s_and_b32 s47, s47, 3"); a("s_mul_i32 s47, s47, 288"); a("s_add_u32 s46, s46, s47")
    a("s_lshl_b32 s47, s7, 5"); a("s_add_u32 s46, s46, s47"); a(f"s_add_u32 s47, s46, {16*1152}")
    for x in range(8):
        a(f"s_waitcnt vmcnt({7-x})")
        for d in range(4):
            src = 8 + 4*x + d
            if x == 0:
                a(f"v_lshlrev_b32 v{40+2*d}, 16, v{src}"); a(f"v_and_b32 v{40+2*d+1}, 0xffff0000, v{src}")
            else:
                a(f"v_lshlrev_b32 v48, 16, v{src}"); a(f"v_and_b32 v49, 0xffff0000, v{src}")
                a(f"v_pk_add_f32 v[{40+2*d}:{40+2*d+1}], v[{40+2*d}:{40+2*d+1}], v[48:49]")
    for d in range(4): a(f"v_cvt_pk_bf16_f32 v{50+d}, v{40+2*d}, v{40+2*d+1}")
    a("buffer_store_dwordx2 v[50:51], v2, s[36:39], s46 offen")
    a("buffer_store_dwordx2 v[52:53], v2, s[36:39], s47 offen")
    a.label(f"L_end_{name}")
    a("s_endpgm")

def reduce_inkernel(a):
    G = 160
    R1 = 196
    R2 = 88
    if OPT.get('d_coal', 0):
        a("v_lshrrev_b32 v13, 3, v0"); a("v_mul_u32_u24 v13, 9216, v13")
        a("v_and_b32 v14, 7, v0"); a("v_lshl_add_u32 v13, v14, 4, v13")
    else:
        a("v_bfe_u32 v13, v0, 1, 3"); a("v_mul_u32_u24 v13, 9216, v13")
        a("v_lshrrev_b32 v14, 4, v0"); a("v_lshlrev_b32 v14, 1, v14"); a("v_and_b32 v15, 1, v0")
        a("v_add_u32 v14, v14, v15"); a("v_lshl_add_u32 v13, v14, 4, v13")
    a(f"s_lshl_b32 s44, s{S_G}, 2"); a(f"s_add_u32 s44, s44, s{S_J}"); a("s_lshl_b32 s44, s44, 2")
    a(f"s_add_u32 s44, s44, s{S_WAVE}")
    a("s_mul_i32 s45, s44, 73728"); a(f"s_add_u32 s45, s45, {WS_D}")
    a(f"s_mul_i32 s46, s{S_X}, 1152"); a("s_add_u32 s46, s46, s45")
    if OPT.get('d_sep', 0):
        a("s_lshl_b32 s48, s44, 10"); a(f"s_add_u32 s48, s48, {WS_F2}")
        a(f"s_lshl_b32 s49, s{S_X}, 7"); a("s_add_u32 s49, s49, s48")
        a("v_and_b32 v8, 7, v0"); a("v_lshlrev_b32 v8, 7, v8")
    else:
        a("s_lshl_b32 s48, s44, 7"); a(f"s_add_u32 s48, s48, {WS_F2}")
        a(f"s_lshl_b32 s49, s{S_X}, 3"); a("s_add_u32 s49, s49, s48")
        a("v_and_b32 v8, 7, v0"); a("v_lshlrev_b32 v8, 3, v8")
    a("s_nop 3")
    for tau in range(9):
        for qt in range(2):
            for h2 in range(2):
                src = V2_ACC + (tau*2+qt)*4 + 2*h2
                a(f"v_cvt_pk_bf16_f32 v{G+4*tau+2*qt+h2}, v{src}, v{src+1}")
        a(f"buffer_store_dwordx4 {vr(G+4*tau,4)}, v13, s[32:35], s46 offen offset:{128*tau} sc1")
    if OPT.get('d_coal', 0):
        a("v_and_b32 v14, 7, v0"); a("v_mul_u32_u24 v14, 1152, v14")
        a("v_add_u32 v15, 256, v14")
        a("v_lshrrev_b32 v13, 3, v0"); a("v_lshl_add_u32 v14, v13, 5, v14")
        srd(a, 36, P_OUT, SZ_OUT)
        a(f"s_lshl_b32 s56, s{S_G}, 2"); a(f"s_add_u32 s56, s56, s{S_WAVE}"); a("s_lshl_b32 s56, s56, 5")
        a(f"s_and_b32 s57, s{S_X}, 1"); a("s_lshl_b32 s57, s57, 3"); a("s_add_u32 s56, s56, s57"); a("s_mul_i32 s56, s56, 1152")
        a(f"s_lshr_b32 s57, s{S_X}, 1"); a("s_lshl_b32 s57, s57, 3"); a("s_add_u32 s56, s56, s57")
    else:
        a("v_and_b32 v14, 1, v0"); a("v_mul_u32_u24 v14, 1152, v14")
        a("v_bfe_u32 v15, v0, 1, 2"); a("v_lshl_add_u32 v14, v15, 3, v14")
        a("v_add_u32 v15, 256, v14")
        a("v_lshrrev_b32 v13, 3, v0"); a("v_lshl_add_u32 v14, v13, 5, v14")
        srd(a, 36, P_OUT, SZ_OUT)
        a(f"s_lshl_b32 s56, s{S_G}, 2"); a(f"s_add_u32 s56, s56, s{S_WAVE}"); a("s_lshl_b32 s56, s56, 5")
        a(f"s_lshl_b32 s57, s{S_X}, 1"); a("s_add_u32 s56, s56, s57"); a("s_mul_i32 s56, s56, 1152")
    a(f"s_mul_i32 s57, s{S_J}, 288"); a("s_add_u32 s56, s56, s57")
    a(f"s_add_u32 s57, s56, {16*1152}")
    a(f"s_mul_i32 s47, s{S_X}, 9216"); a("s_add_u32 s47, s47, s45")
    a("s_waitcnt vmcnt(0)")
    flag_store(a, 49, 'sc1')
    stamp(a, 10)
    poll(a, "d", 8, 48, sleep=OPT.get('d_sleep', 0))
    stamp(a, 11)
    for sx in range(8):
        a(f"buffer_load_dwordx4 {vr(R1+4*sx,4)}, v7, s[32:35], s47 offen sc1")
        a("s_mov_b64 exec, 0xff")
        a(f"buffer_load_dwordx4 {vr(R2+4*sx,4)}, v7, s[32:35], s47 offen offset:1024 sc1")
        a("s_mov_b64 exec, -1")
        if sx < 7: a("s_add_u32 s47, s47, 1152")
    A1 = 16; A2 = 24
    def summ(R, A, waitbase):
        for sx in range(8):
            if waitbase is not None: a(f"s_waitcnt vmcnt({waitbase - 2*sx})")
            for d in range(4):
                src = R + 4*sx + d
                if sx == 0:
                    a(f"v_lshlrev_b32 v{A+2*d}, 16, v{src}"); a(f"v_and_b32 v{A+2*d+1}, 0xffff0000, v{src}")
                else:
                    a(f"v_lshlrev_b32 v32, 16, v{src}"); a(f"v_and_b32 v33, 0xffff0000, v{src}")
                    a(f"v_add_f32 v{A+2*d}, v{A+2*d}, v32"); a(f"v_add_f32 v{A+2*d+1}, v{A+2*d+1}, v33")
    summ(R1, A1, 14)
    summ(R2, A2, None)
    for A, voff, ex in ((A1, 14, None), (A2, 15, "0xff")):
        for d in range(4): a(f"v_cvt_pk_bf16_f32 v{34+d}, v{A+2*d}, v{A+2*d+1}")
        if ex: a(f"s_mov_b64 exec, {ex}")
        fl = {0: "", 1: " sc1", 2: " nt", 3: " sc0 sc1"}[OPT.get('outfl', 0)]
        a(f"buffer_store_dwordx2 v[34:35], v{voff}, s[36:39], s56 offen{fl}")
        a(f"buffer_store_dwordx2 v[36:37], v{voff}, s[36:39], s57 offen{fl}")
        if ex: a("s_mov_b64 exec, -1")
        a("s_nop 1")

def KNAME():
    return "standalone__mha_block_cached__near_ridge_kernel" if OPT['dk'] else "mha_a_kernel"

def kernelA(a):
    global KIDX
    KIDX = 0
    name = KNAME()
    prologue(a, name)
    stamp_init(a); stamp(a, 0); cstamp(a, 14)
    a(f"s_cmp_lt_u32 s{S_WAVE}, 4"); a("s_cbranch_scc1 L_a_compute")
    a(f"s_cmp_eq_u32 s{S_WAVE}, 6"); a("s_cbranch_scc1 L_a_ldk")
    a(f"s_cmp_eq_u32 s{S_WAVE}, 4"); a("s_cbranch_scc1 L_a_ldwq")
    a(f"s_cmp_eq_u32 s{S_WAVE}, 5"); a("s_cbranch_scc1 L_a_ldx")
    loader_v(a); stamp_flush(a); a("s_endpgm")
    a.label("L_a_ldk"); loader_k(a); stamp_flush(a); a("s_endpgm")
    a.label("L_a_ldwq"); loader_ring(a, 'wq'); stamp_flush(a); a("s_endpgm")
    a.label("L_a_ldx"); loader_ring(a, 'x'); stamp_flush(a); a("s_endpgm")
    a.label("L_a_compute")
    CUR['compute'] = True
    srd(a, 36, P_DBG, 256)
    gemm1_addrs(a); attn_addrs(a)
    a("v_mov_b32 v1, 0")
    a(f"s_lshl_b32 s40, s{S_G}, 3"); a(f"s_add_u32 s40, s40, s{S_X}"); a("s_lshr_b32 s40, s40, 1")
    a("s_lshl_b32 s40, s40, 2"); a("s_add_u32 s40, s40, 128")
    srd(a, 44, P_WS, SZ_WS_USED)
    a(f"s_lshl_b32 s42, s{S_G}, 3"); a(f"s_add_u32 s42, s42, s{S_X}"); a("s_lshl_b32 s42, s42, 2")
    a(f"s_add_u32 s42, s42, s{S_WAVE}"); a("s_lshl_b32 s42, s42, 7"); a(f"s_add_u32 s42, s42, {WS_F}")
    gemm1(a); get_nonce(a); stamp(a, 2)
    attention(a); stamp(a, 5)
    tail(a)
    if OPT['stamps']: a("s_waitcnt vmcnt(0)")
    stamp(a, 12); cstamp(a, 15); stamp_flush(a)
    if OPT.get('waitx', 0):
        a("s_waitcnt vmcnt(0)")
        a(f"s_add_u32 s62, s{S_NON}, {OPT['waitx']}")
        a("s_mov_b32 s63, 0")
        a.label("L_wx_spin")
        a("s_memrealtime s[64:65]"); a("s_waitcnt lgkmcnt(0)")
        a("s_add_u32 s63, s63, 1"); a("s_cmp_gt_u32 s63, 100000"); a("s_cbranch_scc1 L_wx_done")
        a("s_sub_u32 s66, s62, s64"); a("s_cmp_gt_i32 s66, 0"); a("s_cbranch_scc1 L_wx_spin")
        a.label("L_wx_done")
    if OPT.get('probe', -1) >= 0:
        a("s_waitcnt vmcnt(0)")
        a(f"s_sub_u32 s62, s60, s{S_NON}"); a(f"s_mul_i32 s62, s62, {OPT.get('probek', 8)}")
        a("s_memrealtime s[64:65]"); a("s_waitcnt lgkmcnt(0)")
        a("s_add_u32 s62, s62, s64")
        a("s_mov_b32 s63, 0")
        a.label("L_probe_spin")
        a("s_memrealtime s[64:65]"); a("s_waitcnt lgkmcnt(0)")
        a("s_add_u32 s63, s63, 1"); a("s_cmp_gt_u32 s63, 100000"); a("s_cbranch_scc1 L_probe_done")
        a("s_sub_u32 s66, s62, s64"); a("s_cmp_gt_i32 s66, 0"); a("s_cbranch_scc1 L_probe_spin")
        a.label("L_probe_done")
    a.label(f"L_end_{name}")
    a("s_endpgm")

def kernel3(a):
    global KIDX
    KIDX = 1
    name = "mha_p3_kernel"
    a(".p2align 8"); a(f".globl {name}"); a(f".type {name},@function"); a.label(name)
    a("s_cmp_ge_u32 s2, 256"); a(f"s_cbranch_scc1 L_end_{name}")
    a("s_load_dwordx16 s[16:31], s[0:1], 0")
    a("v_lshrrev_b32 v1, 6, v0"); a("v_and_b32 v0, 63, v0")
    a("s_lshr_b32 s5, s2, 1")
    a("s_and_b32 s6, s2, 1")
    a(f"v_readfirstlane_b32 s{S_WAVE}, v1")
    a("s_mul_i32 s6, s6, 9")
    a("s_waitcnt lgkmcnt(0)")
    stamp_init(a); stamp(a, 0); cstamp(a, 14)
    a(f"s_add_u32 s6, s6, s{S_WAVE}")
    srd(a, 32, P_WS, SZ_WS_USED); srd(a, 36, P_OUT, SZ_OUT)
    a("v_lshlrev_b32 v1, 4, v0")
    a("s_mul_i32 s45, s5, 18"); a("s_add_u32 s45, s45, s6"); a("s_lshl_b32 s45, s45, 10")
    a(f"s_add_u32 s45, s45, {WS_P}")
    for x in range(8):
        a(f"buffer_load_dwordx4 {vr(8+4*x,4)}, v1, s[32:35], s45 offen")
        if x < 7: a(f"s_add_u32 s45, s45, {128*18*1024}")
    a("v_and_b32 v2, 15, v0"); a("v_mul_u32_u24 v2, 1152, v2"); a("v_lshrrev_b32 v3, 4, v0")
    a("v_lshl_add_u32 v2, v3, 3, v2")
    a("s_lshr_b32 s46, s5, 4"); a("s_lshl_b32 s46, s46, 2"); a("s_and_b32 s47, s5, 3"); a("s_add_u32 s46, s46, s47")
    a(f"s_mul_i32 s46, s46, {32*1152}")
    a("s_lshr_b32 s47, s5, 2"); a("s_and_b32 s47, s47, 3"); a("s_mul_i32 s47, s47, 288"); a("s_add_u32 s46, s46, s47")
    a("s_and_b32 s47, s6, 1"); a(f"s_mul_i32 s47, s47, {16*1152}"); a("s_add_u32 s46, s46, s47")
    a("s_lshr_b32 s47, s6, 1"); a("s_lshl_b32 s47, s47, 5"); a("s_add_u32 s46, s46, s47")
    a("s_waitcnt vmcnt(0)")
    for v in range(4):
        for x in range(0, 8, 2): a(f"v_add_f32 v{8+4*x+v}, v{8+4*x+v}, v{12+4*x+v}")
    for v in range(4):
        a(f"v_add_f32 v{8+v}, v{8+v}, v{16+v}"); a(f"v_add_f32 v{24+v}, v{24+v}, v{32+v}")
    for v in range(4): a(f"v_add_f32 v{8+v}, v{8+v}, v{24+v}")
    a("v_cvt_pk_bf16_f32 v8, v8, v9"); a("v_cvt_pk_bf16_f32 v9, v10, v11")
    a("buffer_store_dwordx2 v[8:9], v2, s[36:39], s46 offen")
    if OPT['stamps']:
        a("s_waitcnt vmcnt(0)")
        stamp(a, 10); cstamp(a, 15)
        a(f"s_cmp_ge_u32 s{S_WAVE}, 8"); a("s_cbranch_scc1 L_end_mha_p3_kernel")
        stamp_flush(a, 44)
    a.label(f"L_end_{name}")
    a("s_endpgm")

def descriptor(a, name, vgpr, sgpr=102):
    a(f".amdhsa_kernel {name}")
    a(f".amdhsa_next_free_vgpr {vgpr}"); a(f".amdhsa_next_free_sgpr {sgpr}"); a(f".amdhsa_accum_offset {vgpr}")
    a(".amdhsa_group_segment_fixed_size 0"); a(".amdhsa_kernarg_size 64")
    a(".amdhsa_user_sgpr_count 2"); a(".amdhsa_user_sgpr_kernarg_segment_ptr 1")
    a(".amdhsa_system_sgpr_workgroup_id_x 1"); a(".end_amdhsa_kernel")

def main():
    out = sys.argv[1]
    for arg in sys.argv[2:]:
        if arg == "--stamps": OPT['stamps'] = True
        elif "=" in arg:
            k, v = arg.lstrip("-").split("="); OPT[k] = int(v)
    a = Asm()
    hdr = "; MHA block (Q-proj + attention + out-proj), generated by gen3.py\n"
    if OPT['dk']:
        hdr += "; @launch grid=(256,1,1) block=(512,1,1) lds=163840\n"
    else:
        hdr += "; @launch kernel=mha_a_kernel grid=(256,1,1) block=(512,1,1) lds=163840\n"
        if OPT.get('k3bf', 0): hdr += "; @launch kernel=mha_p3_kernel grid=(288,1,1) block=(256,1,1) lds=0\n"
        else: hdr += "; @launch kernel=mha_p3_kernel grid=(256,1,1) block=(576,1,1) lds=0\n"
    a('.amdgcn_target "amdgcn-amd-amdhsa--gfx950"'); a(".text")
    kernelA(a)
    if not OPT['dk']:
        if OPT.get('k3bf', 0): kernel3b(a)
        else: kernel3(a)
    a('.section .rodata,"a"'); a(".p2align 6"); descriptor(a, KNAME(), 256)
    if not OPT['dk']:
        a(".p2align 6"); descriptor(a, "mha_p3_kernel", 56)
    open(out, "w").write(hdr + a.text())

if __name__ == "__main__": main()
```

```python
import sys, struct

class Asm:
    def __init__(self): self.l = []
    def __call__(self, s=""):
        for x in s.split("\n"):
            x = x.strip()
            self.l.append(x if (x.endswith(":") or x.startswith(".")) else "  " + x)
    def label(self, s): self.l.append(s + ":")
    def text(self): return "\n".join(self.l) + "\n"

def vr(b, n=1): return f"v{b}" if n == 1 else f"v[{b}:{b+n-1}]"
def f32hex(x): return "0x%08x" % struct.unpack("<I", struct.pack("<f", x))[0]

P_X, P_K, P_V, P_WQ, P_WO, P_OUT, P_DBG, P_WS = 16, 18, 20, 22, 24, 26, 28, 30
SZ_X, SZ_KV, SZ_W, SZ_OUT = 1179648, 8388608, 4718592, 1179648
WS_O = 0
WS_P = 8 << 20
WS_F = 28 << 20
WS_F2 = (28 << 20) + (1 << 19)
WS_D = 8 << 20
WS_STAMP = 32 << 20
SZ_WS_USED = 64 << 20
S_WAVE, S_X, S_R, S_J, S_G, S_H = 3, 4, 5, 6, 9, 10

OPT = dict(stamps=False, fast=1, spin_max=2000000, kvmode=20, flagpos=3, d_sleep=3, o_sleep=1, k_nt=1, v_nt=1, wot_pos=8, dk=1)

def srd(a, base, ptr, size, add=0):
    if add:
        a(f"s_add_u32 s{base}, s{ptr}, {add}"); a(f"s_addc_u32 s{base+1}, s{ptr+1}, 0")
        a(f"s_and_b32 s{base+1}, s{base+1}, 0xffff")
    else:
        a(f"s_mov_b32 s{base}, s{ptr}"); a(f"s_and_b32 s{base+1}, s{ptr+1}, 0xffff")
    a(f"s_mov_b32 s{base+2}, {size}"); a(f"s_mov_b32 s{base+3}, 0x00020000")

def prologue(a, name, nwg=256):
    a(".p2align 8"); a(f".globl {name}"); a(f".type {name},@function"); a.label(name)
    a(f"s_cmp_ge_u32 s2, {nwg}"); a(f"s_cbranch_scc1 L_end_{name}")
    a("s_load_dwordx16 s[16:31], s[0:1], 0")
    a("v_lshrrev_b32 v1, 6, v0"); a("v_and_b32 v0, 63, v0")
    a(f"s_and_b32 s{S_X}, s2, 7"); a(f"s_lshr_b32 s{S_R}, s2, 3")
    a(f"v_readfirstlane_b32 s{S_WAVE}, v1")
    a(f"s_and_b32 s{S_J}, s{S_R}, 3"); a(f"s_lshr_b32 s{S_G}, s{S_R}, 2")
    a(f"s_lshl_b32 s{S_H}, s{S_X}, 2"); a(f"s_add_u32 s{S_H}, s{S_H}, s{S_J}")
    a("s_waitcnt lgkmcnt(0)")

KIDX = 0
CUR = {}
def tstamp(a, idx):
    if OPT.get('tailstamps', 0): stamp(a, idx, force=True)
def stamp(a, idx, force=False):
    if OPT.get('probe', -1) == idx and CUR.get('compute') and (force or not (OPT.get('tailstamps', 0) and idx in (1,2,3,4,13))):
        a("s_memrealtime s[60:61]"); a("s_waitcnt lgkmcnt(0)")
        return
    if not OPT['stamps']: return
    if OPT.get('tailstamps', 0) and not force and idx in (1,2,3,4,13) and CUR.get('compute'): return
    a(f"s_memrealtime s[{60+2*idx}:{61+2*idx}]"); a("s_waitcnt lgkmcnt(0)")
def cstamp(a, idx):
    if not OPT['stamps']: return
    a(f"s_memtime s[{60+2*idx}:{61+2*idx}]"); a("s_waitcnt lgkmcnt(0)")
def stamp_init(a):
    if not OPT['stamps']: return
    for i in range(16): a(f"s_mov_b64 s[{60+2*i}:{61+2*i}], 0")
def stamp_flush(a, vb=250):
    if not OPT['stamps']: return
    srd(a, 92, P_WS, 256*16*16*8, add=WS_STAMP + KIDX*256*8*16*8)
    a("s_lshl_b32 s96, s2, 3"); a(f"s_add_u32 s96, s96, s{S_WAVE}"); a("s_lshl_b32 s96, s96, 7")
    a(f"v_mov_b32 v{vb+2}, 0")
    for i in range(16):
        a(f"v_mov_b32 v{vb}, s{60+2*i}"); a(f"v_mov_b32 v{vb+1}, s{61+2*i}")
        a(f"buffer_store_dwordx2 v[{vb}:{vb+1}], v{vb+2}, s[92:95], s96 offen offset:{i*8}")
        a("s_nop 1")
    a("s_waitcnt vmcnt(0)")

L_K = 98304; L_V = 131072; NCH = 9
W_SLOT = 36864

def dma(a, voff, srdb, soff, off=0, nt=False):
    a(f"buffer_load_dwordx4 v{voff}, s[{srdb}:{srdb+3}], s{soff} offen" + (f" offset:{off}" if off else "") + (" nt" if nt else "") + " lds")

V_WOV = 16
def wo_prep(a):
    srd(a, 52, P_WO, SZ_W)
    for t in range(9):
        a(f"v_add_u32 v1, {64*t}, v0")
        a("v_mul_u32_u24 v2, 3641, v1")
        a("v_lshrrev_b32 v2, 16, v2")
        a("v_mul_u32_u24 v3, 18, v2")
        a("v_sub_u32 v3, v1, v3")
        a("v_lshlrev_b32 v3, 4, v3")
        a("v_mul_u32_u24 v2, 1152, v2")
        a(f"v_add_u32 v{V_WOV+t}, v2, v3")
    a(f"s_mul_i32 s56, s{S_J}, 288")
def wo_issue(a, slot, q0, nq):
    a(f"s_add_u32 s57, s{S_J}, {slot}"); a("s_and_b32 s57, s57, 3")
    a(f"s_lshl_b32 s58, s{S_X}, 2"); a("s_add_u32 s57, s57, s58")
    a(f"s_mul_i32 s57, s57, {128*1152}"); a("s_add_u32 s57, s57, s56")
    if q0: a(f"s_add_u32 s57, s57, {q0*32*1152}")
    a(f"s_mov_b32 m0, {slot*W_SLOT + q0*32*288}"); a("s_nop 0")
    for blk in range(nq):
        for t in range(9):
            dma(a, V_WOV + t, 52, 57)
            if not (blk == nq - 1 and t == 8):
                a("s_add_u32 m0, m0, 1024")
                if t == 8: a(f"s_add_u32 s57, s57, {32*1152}")
                else: a("s_nop 0")

def loader_tail(a, role):
    a("s_barrier")
    stamp(a, 8)
    if role < 2:
        wo_issue(a, 0, 2 * role, 2); wo_issue(a, 1, 2 * role, 2)
    if role == 3: a("s_waitcnt vmcnt(0)")
    stamp(a, 9)
    a("s_barrier")
    if role < 2: a("s_waitcnt vmcnt(18)")
    a("s_barrier")
    if role < 2: a("s_waitcnt vmcnt(0)")
    a("s_barrier")
    wo_issue(a, 2, role, 1)
    wo_issue(a, 3, role, 1)
    stamp(a, 10)
    a("s_waitcnt vmcnt(9)")
    a("s_barrier")
    a("s_waitcnt vmcnt(0)")
    stamp(a, 11)
    a("s_barrier")

def loader_ring(a, which):
    SRD = 32; SO = 40
    if which == 'wq':
        srd(a, SRD, P_WQ, SZ_W)
        a("v_lshrrev_b32 v1, 4, v0"); a("v_and_b32 v2, 15, v0")
        a("v_lshlrev_b32 v3, 2, v1"); a("v_xor_b32 v3, v3, v2"); a("v_lshlrev_b32 v3, 4, v3")
        a("v_lshlrev_b32 v4, 13, v1"); a("v_add_u32 v4, v4, v3")
        a(f"s_lshl_b32 s{SO}, s{S_H}, 8")
        def issue(kc):
            a(f"s_mov_b32 m0, {(kc%3)*32768}")
            for t in range(16):
                if t == 0: a("s_nop 0")
                dma(a, 4, SRD, SO)
                a(f"s_add_u32 s{SO}, s{SO}, 32768")
                if t < 15:
                    a("s_add_u32 m0, m0, 1024"); a("s_nop 0")
    else:
        srd(a, SRD, P_X, SZ_X)
        a("v_lshrrev_b32 v1, 3, v0"); a("v_mul_u32_u24 v1, 1152, v1")
        a("v_and_b32 v2, 7, v0"); a("v_lshrrev_b32 v3, 4, v0"); a("v_xor_b32 v2, v2, v3")
        a("v_lshlrev_b32 v4, 4, v2"); a("v_add_u32 v4, v4, v1")
        a("v_xor_b32 v2, 4, v2"); a("v_lshlrev_b32 v5, 4, v2"); a("v_add_u32 v5, v5, v1")
        a(f"s_mul_i32 s{SO+1}, s{S_G}, 147456")
        def issue(kc):
            a(f"s_mov_b32 m0, {(kc%3)*32768 + 16384}")
            a(f"s_add_u32 s{SO}, s{SO+1}, {kc*128}")
            for T in range(16):
                dma(a, 4 + (T & 1), SRD, SO)
                if T < 15:
                    a("s_add_u32 m0, m0, 1024"); a(f"s_add_u32 s{SO}, s{SO}, 9216")
    kv_pos(a, 43, 'k')
    if which == 'wq':
        a("v_lshrrev_b32 v8, 1, v0"); a("v_and_b32 v9, 1, v0")
        a("v_lshlrev_b32 v8, 13, v8"); a("v_lshl_add_u32 v8, v9, 7, v8")
        a(f"s_lshl_b32 s46, s{S_G}, {5+13}"); a(f"s_lshl_b32 s47, s{S_H}, 8"); a("s_add_u32 s46, s46, s47")
        def touch(part):
            if part == 0:
                a(f"buffer_load_dword v10, v8, s[{SRD}:{SRD+3}], s46 offen")
            else:
                a(f"s_add_u32 s46, s46, {256*8192}")
                a(f"buffer_load_dword v10, v8, s[{SRD}:{SRD+3}], s46 offen")
                a(f"s_lshl_b32 s46, s{S_G}, {3+13}"); a("s_add_u32 s46, s46, s47"); a(f"s_add_u32 s46, s46, {512*8192}")
                a("s_mov_b64 exec, 0xffff")
                a(f"buffer_load_dword v10, v8, s[{SRD}:{SRD+3}], s46 offen")
                a("s_mov_b64 exec, -1")
        NT1 = 2
    else:
        a("v_and_b32 v9, 31, v0"); a("v_mul_u32_u24 v9, 1152, v9")
        a("v_lshrrev_b32 v8, 5, v0"); a("v_lshl_add_u32 v8, v8, 7, v9")
        a(f"s_mul_i32 s46, s{S_G}, 147456"); a(f"s_mul_i32 s47, s{S_J}, {32*1152}"); a("s_add_u32 s46, s46, s47")
        def touch(part):
            if part == 0:
                a(f"buffer_load_dword v10, v8, s[{SRD}:{SRD+3}], s46 offen")
            else:
                for t in range(1, 4):
                    a(f"buffer_load_dword v10, v8, s[{SRD}:{SRD+3}], s46 offen offset:{256*t}")
                a("s_mov_b64 exec, 0xffffffff")
                a(f"buffer_load_dword v10, v9, s[{SRD}:{SRD+3}], s46 offen offset:1024")
                a("s_mov_b64 exec, -1")
        NT1 = 4
    touch(0)
    issue(0); stamp(a, 1)
    touch(1)
    a("s_barrier")
    bx(a, -1, "r" + which)
    issue(1)
    stamp(a, 2)
    a(f"s_waitcnt vmcnt({16 + NT1})")
    stamp(a, 3)
    a("s_barrier")
    bx(a, 0, "r" + which)
    issue(2)
    for i in range(1, NCH):
        last_issued = min(i + 1, NCH - 1)
        a(f"s_waitcnt vmcnt({(last_issued - i) * 16})")
        a("s_barrier")
        if which == 'wq' and i in (1,2,3,4): stamp(a, {1:4,2:5,3:6,4:12}[i])
        if which == 'x' and i in (5,6,7,8): stamp(a, {5:4,6:5,7:6,8:12}[i])
        if i < 8: bx(a, i, "r" + which)
        if i + 2 < NCH: issue(i + 2)
        if i == 7: wo_prep(a)
    stamp(a, 7)
    loader_tail(a, 0 if which == 'wq' else 1)

def kv_pos(a, sdst, which):
    m = OPT['kvmode']
    if m == 10:
        tab = [-1, 2, 4, 7]
    elif m == 11: tab = [7, 7, 7, 7]
    elif m == 12: tab = [-1, -1, -1, -1]
    elif m == 13: tab = [1, 1, 6, 6]
    elif m == 14: tab = [-1, 1, 4, 7]
    elif m == 15: tab = [0, 3, 5, 7]
    elif m == 16: tab = [2, 7, 2, 7]
    elif m == 17: tab = [3, 5, 7, 7]
    elif m == 20: tab = [-1, 1, 3, 5]
    elif m == 21: tab = [-1, 2, 4, 6]
    elif m == 22: tab = [-1, -1, 3, 3]
    elif m == 23: tab = [-1, 0, 2, 4]
    elif m == 24: tab = [0, 2, 4, 6]
    elif m == 25: tab = [-1, -1, -1, -1]
    packed = sum(((p + 1) & 15) << (4 * k) for k, p in enumerate(tab))
    a(f"s_and_b32 s{sdst}, s{S_G}, 3"); a(f"s_lshl_b32 s{sdst}, s{sdst}, 2")
    a(f"s_lshr_b32 s{sdst}, {packed}, s{sdst}"); a(f"s_and_b32 s{sdst}, s{sdst}, 15")

def bx(a, p, tag):
    if p >= 6: return
    a(f"s_cmp_lg_u32 s43, {p+1}"); a(f"s_cbranch_scc1 L_bx_{tag}_{p+1}")
    a("s_barrier")
    a.label(f"L_bx_{tag}_{p+1}")

def kv_loop(a, tag, issue_fn, extra_fn=None, extra_pos=None):
    a("s_mov_b32 s59, 0")
    a.label(f"L_{tag}_loop")
    a("s_cmp_lg_u32 s59, s43"); a(f"s_cbranch_scc1 L_{tag}_skip")
    stamp(a, 3)
    issue_fn()
    stamp(a, 4)
    a(f"s_cmp_ge_u32 s59, 7"); a(f"s_cbranch_scc1 L_{tag}_skip")
    a("s_barrier")
    a.label(f"L_{tag}_skip")
    if extra_fn is not None:
        a(f"s_cmp_lg_u32 s59, {extra_pos}"); a(f"s_cbranch_scc1 L_{tag}_skip2")
        extra_fn()
        a.label(f"L_{tag}_skip2")
    a("s_barrier")
    a("s_add_u32 s59, s59, 1")
    a("s_cmp_le_u32 s59, 8"); a(f"s_cbranch_scc1 L_{tag}_loop")

def loader_k(a):
    SRD = 32; SRD2 = 36; SO = 40
    srd(a, SRD2, P_WQ, SZ_W); srd(a, SRD, P_K, SZ_KV)
    a("v_lshrrev_b32 v1, 4, v0"); a("v_and_b32 v2, 15, v0"); a("v_xor_b32 v2, v2, v1")
    a("v_lshlrev_b32 v2, 4, v2"); a("v_lshl_add_u32 v4, v1, 8, v2")
    a("v_xor_b32 v5, 64, v4"); a("v_xor_b32 v6, 128, v4"); a("v_xor_b32 v7, 192, v4")
    wo_prep(a)
    a("v_and_b32 v8, 15, v0"); a("v_mul_u32_u24 v8, 1152, v8")
    a("v_lshrrev_b32 v9, 4, v0"); a("v_lshl_add_u32 v9, v9, 7, v8")
    kv_pos(a, 43, 'k')
    a("s_barrier")
    stamp(a, 1)
    def issue():
        a(f"s_lshl_b32 s{SO}, s{S_G}, 7"); a(f"s_add_u32 s{SO}, s{SO}, s{S_H}"); a(f"s_lshl_b32 s{SO}, s{SO}, 13")
        for w in range(4):
            for hf in range(2):
                a(f"s_mov_b32 m0, {L_K + w*8192 + hf*4096}"); a("s_nop 0")
                for t4 in range(4):
                    t = hf * 4 + t4
                    dma(a, 4 + (t >> 1), SRD, SO, off=t4 * 1024, nt=bool(OPT['k_nt']))
                a(f"s_add_u32 s{SO}, s{SO}, {4096 if hf == 0 else 32*8192 - 4096}")
    def wotouch():
        a(f"s_lshl_b32 s{SO}, s{S_X}, 5"); a(f"s_add_u32 s{SO}, s{SO}, s{S_R}")
        a(f"s_mul_i32 s{SO}, s{SO}, {16*1152}")
        a(f"buffer_load_dword v10, v9, s[52:55], s{SO} offen")
        a(f"buffer_load_dword v10, v9, s[52:55], s{SO} offen offset:512")
        a("s_mov_b64 exec, 0xffff")
        a(f"buffer_load_dword v10, v8, s[52:55], s{SO} offen offset:1024")
        a("s_mov_b64 exec, -1")
    kv_loop(a, "k", issue, wotouch, OPT['wot_pos'])
    a("s_waitcnt vmcnt(3)")
    stamp(a, 7)
    loader_tail(a, 2)

def loader_v(a):
    SRD = 32; SRD3 = 44; SO = 40
    srd(a, SRD3, P_X, SZ_X); srd(a, SRD, P_V, SZ_KV)
    a("s_cmp_lg_u32 s2, 0"); a("s_cbranch_scc1 L_nononce")
    srd(a, 48, P_DBG, 256)
    a("s_memrealtime s[42:43]"); a("s_waitcnt lgkmcnt(0)")
    a("s_or_b32 s42, s42, 1")
    a("v_mov_b32 v8, s42"); a("v_mov_b32 v9, s43"); a("v_mov_b32 v1, 0")
    a("s_mov_b64 exec, 1")
    a("buffer_store_dwordx2 v[8:9], v1, s[48:51], 0 offen sc1")
    a("s_mov_b64 exec, -1")
    a.label("L_nononce")
    if OPT['fast']:
        srd(a, 48, P_DBG, 256)
        a("s_getreg_b32 s42, hwreg(HW_REG_XCC_ID)")
        a("s_and_b32 s42, s42, 15")
        a("s_cmp_ge_u32 s42, 8"); a("s_cbranch_scc1 L_noxcc")
        a("s_mul_i32 s43, s42, s42"); a("s_lshl_b32 s43, s43, 5"); a("s_add_u32 s42, s42, s43")
        a("s_add_u32 s42, s42, 0x2000")
        a(f"s_lshl_b32 s43, s{S_G}, 3"); a(f"s_add_u32 s43, s43, s{S_X}")
        a("s_and_b32 s41, s43, 1"); a("s_lshl_b32 s41, s41, 4"); a("s_lshl_b32 s42, s42, s41")
        a("s_lshr_b32 s43, s43, 1"); a("s_lshl_b32 s43, s43, 2"); a("s_add_u32 s43, s43, 128")
        a("v_mov_b32 v8, s42"); a("v_mov_b32 v1, 0")
        a("s_mov_b64 exec, 1")
        a("buffer_atomic_add v8, v1, s[48:51], s43 offen")
        a("s_mov_b64 exec, -1")
        a.label("L_noxcc")
    a("v_lshrrev_b32 v1, 4, v0"); a("v_and_b32 v2, 15, v0"); a("v_lshlrev_b32 v3, 1, v1")
    a("v_xor_b32 v2, v2, v3"); a("v_lshlrev_b32 v2, 4, v2"); a("v_lshl_add_u32 v4, v1, 8, v2")
    a("v_xor_b32 v5, 128, v4")
    wo_prep(a)
    kv_pos(a, 43, 'v')
    a("s_barrier")
    stamp(a, 1)
    def issue():
        a(f"s_lshl_b32 s{SO}, s{S_G}, 7"); a(f"s_add_u32 s{SO}, s{SO}, s{S_H}"); a(f"s_lshl_b32 s{SO}, s{SO}, 13")
        for w in range(4):
            for hf in range(2):
                a(f"s_mov_b32 m0, {L_V + w*8192 + hf*4096}"); a("s_nop 0")
                for t4 in range(4):
                    t = hf * 4 + t4
                    dma(a, 4 + ((t >> 1) & 1), SRD, SO, off=t4 * 1024, nt=bool(OPT['v_nt']))
                a(f"s_add_u32 s{SO}, s{SO}, {4096 if hf == 0 else 32*8192 - 4096}")
    kv_loop(a, "v", issue)
    stamp(a, 7)
    loader_tail(a, 3)

V_XA = [4, 8]; V_WA = [12, 248]
V_A = [16, 32]; V_B = [48, 52]; V_ACC = 64
V_QF = 128; V_KF = 160; V_S = 192; V_VF = 208; V_PF = 240; V_OF = 128
V_KA = 56; V_VA = 60; V_CLW = 61; V_NONCE = 62
SC_SCALE = 0.08838834764831845 * 1.4426950408889634

def gemm1_addrs(a):
    a("v_and_b32 v1, 31, v0"); a("v_lshrrev_b32 v2, 5, v0"); a("v_bfe_u32 v3, v0, 1, 3")
    a("v_xor_b32 v2, v2, v3"); a("v_lshlrev_b32 v2, 4, v2"); a("v_lshl_add_u32 v2, v1, 7, v2")
    a(f"s_lshl_b32 s40, s{S_WAVE}, 12"); a("s_add_u32 s40, s40, 16384")
    a("v_add_u32 v2, s40, v2")
    for ks in range(4):
        a(f"v_xor_b32 v{V_XA[0]+ks}, {32*ks}, v2"); a(f"v_add_u32 v{V_XA[1]+ks}, 65536, v{V_XA[0]+ks}")
    a("v_bfe_u32 v1, v0, 2, 2"); a("v_lshrrev_b32 v2, 5, v0"); a("v_lshl_add_u32 v2, v2, 3, v1")
    a("v_lshlrev_b32 v2, 8, v2"); a("v_and_b32 v3, 1, v0"); a("v_lshl_add_u32 v2, v3, 5, v2")
    a("v_bfe_u32 v3, v0, 4, 1"); a("v_lshl_add_u32 v2, v3, 4, v2")
    a("v_bfe_u32 v3, v0, 1, 1"); a("v_lshl_add_u32 v2, v3, 3, v2")
    a("v_lshl_add_u32 v2, v1, 6, v2")
    for dt in range(4):
        a(f"v_xor_b32 v{V_WA[0]+dt}, {64*dt}, v2"); a(f"v_add_u32 v{V_WA[1]+dt}, 65536, v{V_WA[0]+dt}")

def attn_addrs(a):
    a("v_and_b32 v1, 15, v0"); a("v_lshrrev_b32 v2, 4, v0"); a("v_xor_b32 v2, v2, v1")
    a("v_lshlrev_b32 v2, 4, v2"); a("v_lshrrev_b32 v3, 2, v1"); a("v_lshl_add_u32 v2, v3, 11, v2")
    a("v_and_b32 v3, 3, v1"); a("v_lshl_add_u32 v2, v3, 8, v2")
    a(f"s_lshl_b32 s40, s{S_WAVE}, 13"); a(f"s_add_u32 s40, s40, {L_K}")
    a("v_add_u32 v2, s40, v2")
    for st in range(4): a(f"v_xor_b32 v{V_KA+st}, {64*st}, v2")
    a("v_lshrrev_b32 v1, 4, v0"); a("v_bfe_u32 v3, v0, 2, 2"); a("v_lshl_add_u32 v2, v1, 3, v3")
    a("v_lshlrev_b32 v2, 8, v2"); a("v_and_b32 v1, 1, v1"); a("v_lshl_add_u32 v3, v1, 2, v3")
    a("v_lshl_add_u32 v2, v3, 5, v2"); a("v_and_b32 v3, 3, v0"); a("v_lshl_add_u32 v2, v3, 3, v2")
    a(f"s_lshl_b32 s40, s{S_WAVE}, 13"); a(f"s_add_u32 s40, s40, {L_V}")
    a(f"v_add_u32 v{V_VA}, s40, v2")

def g1_reads(n):
    i, ks = divmod(n, 4)
    slot = i % 3; st = n & 1; hs = 1 if slot == 2 else 0; so = (slot & 1) * 32768 if slot < 2 else 0
    r = [f"ds_read_b128 {vr(V_B[st],4)}, v{V_XA[hs]+ks} offset:{so}"]
    for dt in range(4):
        base = V_A[st] + 4 * dt
        off = so + ks * 4096
        r.append(f"ds_read_b64_tr_b16 {vr(base,2)}, v{V_WA[hs]+dt} offset:{off}")
        r.append(f"ds_read_b64_tr_b16 {vr(base+2,2)}, v{V_WA[hs]+dt} offset:{off+1024}")
    return r

def gemm1(a):
    NS = NCH * 4
    kv_pos(a, 43, 'k')
    a("s_barrier")
    bx(a, -1, "c")
    a("s_barrier")
    stamp(a, 1)
    for r in g1_reads(0): a(r)
    for n in range(NS):
        i, ks = divmod(n, 4); st = n & 1
        nxt = g1_reads(n + 1) if n + 1 < NS else []
        def mf(dt):
            c = "0" if n == 0 else vr(V_ACC + 16 * dt, 16)
            a(f"v_mfma_f32_32x32x16_bf16 {vr(V_ACC+16*dt,16)}, {vr(V_A[st]+4*dt,4)}, {vr(V_B[st],4)}, {c}")
        if ks == 3:
            for dt in range(4):
                a(f"s_waitcnt lgkmcnt({[6,4,2,0][dt]})")
                if dt == 3 and nxt:
                    bx(a, i, "c")
                    a("s_barrier")
                    for r in nxt[:5]: a(r)
                mf(dt)
            for r in nxt[5:]: a(r)
        else:
            first_after_boundary = (ks == 0 and n > 0)
            for dt in range(4):
                a(f"s_waitcnt lgkmcnt({[6,7,8,9][dt]})")
                mf(dt)
                if dt < 3:
                    for r in nxt[3*dt:3*dt+3]: a(r)
        if n == 24:
            a(f"buffer_load_dwordx2 {vr(V_NONCE,2)}, v1, s[36:39], 0 offen sc1")
            if OPT['fast']:
                a(f"buffer_load_dword v{V_CLW}, v1, s[36:39], s40 offen sc1")
                a(f"buffer_load_dword v2, v1, s[44:47], s42 offen sc1")

def attention(a):
    a("s_barrier")
    stamp(a, 3)
    for ai in range(2):
        for st in range(4):
            a(f"ds_read_b128 {vr(V_KF+(ai*4+st)*4,4)}, v{V_KA+st} offset:{ai*1024}")
    for dt in range(4):
        for i in range(8):
            a(f"v_cvt_pk_bf16_f32 v{V_QF+8*dt+i}, v{V_ACC+16*dt+2*i}, v{V_ACC+16*dt+2*i+1}")
    a("s_nop 1")
    for dt in range(4):
        for i in range(4):
            a(f"v_permlane16_swap_b32 v{V_QF+8*dt+i}, v{V_QF+8*dt+4+i}")
    a("s_waitcnt lgkmcnt(0)")
    for st in range(4):
        for ai in range(2):
            for qt in range(2):
                d = vr(V_S + (ai*2+qt)*4, 4)
                c = "0" if st == 0 else d
                a(f"v_mfma_f32_16x16x32_bf16 {d}, {vr(V_KF+(ai*4+st)*4,4)}, {vr(V_QF+8*st+4*qt,4)}, {c}")
    def S(ai, qt, v): return V_S + (ai*2+qt)*4 + v
    M = [48, 49]; T_ = [50, 51]; SUM = [52, 53]
    a("s_nop 7")
    for qt in range(2): a(f"v_max3_f32 v{M[qt]}, v{S(0,qt,0)}, v{S(0,qt,1)}, v{S(0,qt,2)}")
    for qt in range(2): a(f"v_max3_f32 v{M[qt]}, v{M[qt]}, v{S(0,qt,3)}, v{S(1,qt,0)}")
    for qt in range(2): a(f"v_max3_f32 v{M[qt]}, v{M[qt]}, v{S(1,qt,1)}, v{S(1,qt,2)}")
    for qt in range(2): a(f"v_max_f32 v{M[qt]}, v{M[qt]}, v{S(1,qt,3)}")
    def xlane(regs, tmps, op):
        for sw in ("v_permlane16_swap_b32", "v_permlane32_swap_b32"):
            for qt in range(2): a(f"v_mov_b32 v{tmps[qt]}, v{regs[qt]}")
            a("s_nop 1")
            for qt in range(2): a(f"{sw} v{tmps[qt]}, v{regs[qt]}")
            a("s_nop 1")
            for qt in range(2): a(f"{op} v{regs[qt]}, v{regs[qt]}, v{tmps[qt]}")
    xlane(M, T_, "v_max_f32")
    a(f"s_mov_b32 s41, {f32hex(SC_SCALE)}")
    for qt in range(2): a(f"v_mul_f32 v{M[qt]}, s41, v{M[qt]}")
    for ai in range(2):
        for v in range(4):
            for qt in range(2): a(f"v_fma_f32 v{S(ai,qt,v)}, v{S(ai,qt,v)}, s41, -v{M[qt]}")
    for ai in range(2):
        for v in range(4):
            for qt in range(2): a(f"v_exp_f32 v{S(ai,qt,v)}, v{S(ai,qt,v)}")
    a("s_nop 0")
    for qt in range(2): a(f"v_add_f32 v{SUM[qt]}, v{S(0,qt,0)}, v{S(0,qt,1)}")
    for (ai, v) in [(0,2),(0,3),(1,0),(1,1),(1,2),(1,3)]:
        for qt in range(2): a(f"v_add_f32 v{SUM[qt]}, v{SUM[qt]}, v{S(ai,qt,v)}")
    xlane(SUM, T_, "v_add_f32")
    for qt in range(2): a(f"v_rcp_f32 v{SUM[qt]}, v{SUM[qt]}")
    a("s_nop 0")
    for ai in range(2):
        for v in range(4):
            for qt in range(2): a(f"v_mul_f32 v{S(ai,qt,v)}, v{S(ai,qt,v)}, v{SUM[qt]}")
    for qt in range(2):
        for ai in range(2):
            for h2 in range(2):
                a(f"v_cvt_pk_bf16_f32 v{V_PF+4*qt+2*ai+h2}, v{S(ai,qt,2*h2)}, v{S(ai,qt,2*h2+1)}")
    stamp(a, 4)
    a("s_barrier")
    for T in range(8):
        if T: a(f"v_xor_b32 v1, {32*T}, v{V_VA}")
        ad = "v1" if T else f"v{V_VA}"
        a(f"ds_read_b64_tr_b16 {vr(V_VF+4*T,2)}, {ad}")
        a(f"ds_read_b64_tr_b16 {vr(V_VF+4*T+2,2)}, {ad} offset:1024")
        if T == 5: a("s_waitcnt lgkmcnt(4)")
    a("s_waitcnt lgkmcnt(0)")
    a("s_barrier")
    for T in range(8):
        for qt in range(2):
            a(f"v_mfma_f32_16x16x32_bf16 {vr(V_ACC+(T*2+qt)*4,4)}, {vr(V_VF+4*T,4)}, {vr(V_PF+4*qt,4)}, 0")
    a("s_nop 7")
    for p in range(4):
        for qt in range(2):
            for e in range(2):
                T = 2*p + e
                for h2 in range(2):
                    src = V_ACC + (T*2+qt)*4 + 2*h2
                    a(f"v_cvt_pk_bf16_f32 v{V_OF+(2*p+qt)*4+2*e+h2}, v{src}, v{src+1}")

V2_ACC = 16
V2_A = [88, 108]
V2_AD = [4, 5, 6, 12]
BUF = [160, 192, 224]

def p2_areads(slot, p, half, buf=None):
    r = []
    ad = V2_AD[slot]
    taus = range(0, 5) if half == 0 else range(5, 9)
    if buf is None: buf = half
    for k, tau in enumerate(taus):
        off = p * 32 * 288 + 32 * tau
        base = V2_A[buf] + 4 * k
        r.append(f"ds_read_b64_tr_b16 {vr(base,2)}, v{ad} offset:{off}")
        r.append(f"ds_read_b64_tr_b16 {vr(base+2,2)}, v{ad} offset:{off+16*288}")
    return r

def p2_bloads(a, slot, breg):
    a(f"s_add_u32 s45, s{S_J}, {slot}"); a("s_and_b32 s45, s45, 3"); a("s_add_u32 s45, s45, s44")
    a("s_lshl_b32 s45, s45, 2"); a(f"s_add_u32 s45, s45, s{S_WAVE}")
    a("s_lshl_b32 s46, s45, 13"); a("s_add_u32 s47, s46, 4096")
    for f in range(8):
        a(f"buffer_load_dwordx4 {vr(breg+4*f,4)}, v7, s[32:35], s{46 + f//4} offen offset:{(f%4)*1024} sc1")

S_NON = 52
S_FAST = 54

def get_nonce(a):
    a("s_waitcnt vmcnt(0)")
    a("v_mov_b32 v9, 0")
    a("s_mov_b32 s50, 0")
    a.label("L_nonce_chk")
    a(f"v_readfirstlane_b32 s{S_NON}, v{V_NONCE}"); a(f"v_readfirstlane_b32 s{S_NON+1}, v{V_NONCE+1}")
    a("s_nop 0")
    a(f"s_cmp_lg_u32 s{S_NON}, 0"); a("s_cbranch_scc1 L_nonce_ok")
    a(f"buffer_load_dwordx2 {vr(V_NONCE,2)}, v9, s[36:39], 0 offen sc1")
    a("s_add_u32 s50, s50, 1"); a("s_waitcnt vmcnt(0)")
    a(f"s_cmp_lt_u32 s50, {OPT['spin_max']}"); a("s_cbranch_scc1 L_nonce_chk")
    a.label("L_nonce_ok")
    a(f"s_mov_b32 s{S_FAST}, 0")
    if OPT['fast']:
        a(f"v_readfirstlane_b32 s55, v{V_CLW}")
        a(f"s_and_b32 s56, s{S_X}, 1"); a("s_lshl_b32 s56, s56, 4"); a("s_lshr_b32 s55, s55, s56")
        a("s_and_b32 s56, s55, 31")
        a("s_bfe_u32 s57, s55, 0x80005")
        a("s_bfe_u32 s55, s55, 0x3000d")
        a("s_mul_i32 s56, s56, s56"); a("s_lshl_b32 s57, s57, 2")
        a("s_cmp_eq_u32 s56, s57"); a(f"s_cselect_b32 s{S_FAST}, 1, 0")
        a("s_cmp_eq_u32 s55, 4"); a(f"s_cselect_b32 s{S_FAST}, s{S_FAST}, 0")
        if OPT['fast'] == 2: a(f"s_mov_b32 s{S_FAST}, 0")

def poll(a, tag, voff, soff, sleep=0):
    a("s_mov_b32 s50, 0")
    a.label(f"L_poll_{tag}")
    if sleep: a(f"s_sleep {sleep}")
    a(f"buffer_load_dwordx2 v[10:11], v{voff}, s[32:35], s{soff} offen sc1")
    a("s_add_u32 s50, s50, 1"); a("s_waitcnt vmcnt(0)")
    a(f"v_cmp_eq_u64 vcc, v[10:11], s[{S_NON}:{S_NON+1}]")
    a(f"s_cmp_ge_u32 s50, {OPT['spin_max']}"); a(f"s_cbranch_scc1 L_poll_{tag}_done")
    a("s_cmp_eq_u64 vcc, -1"); a(f"s_cbranch_scc0 L_poll_{tag}")
    a.label(f"L_poll_{tag}_done")

def flag_store(a, soff, mode):
    a(f"v_mov_b32 v10, s{S_NON}"); a(f"v_mov_b32 v11, s{S_NON+1}")
    a("s_mov_b64 exec, 1")
    if mode == 'dyn':
        a(f"s_cmp_eq_u32 s{S_FAST}, 0"); a("s_cbranch_scc1 L_flag_slow")
        a(f"buffer_store_dwordx2 v[10:11], v9, s[32:35], s{soff} offen")
        a("s_branch L_flag_join")
        a.label("L_flag_slow")
        a(f"buffer_store_dwordx2 v[10:11], v9, s[32:35], s{soff} offen sc1")
        a.label("L_flag_join")
    else:
        a(f"buffer_store_dwordx2 v[10:11], v9, s[32:35], s{soff} offen sc1")
    a("s_mov_b64 exec, -1")

def o_store(a):
    srd(a, 32, P_WS, SZ_WS_USED)
    a("v_lshlrev_b32 v7, 4, v0")
    a(f"s_lshl_b32 s40, s{S_G}, 5"); a(f"s_add_u32 s40, s40, s{S_H}"); a("s_lshl_b32 s40, s40, 2")
    a(f"s_add_u32 s40, s40, s{S_WAVE}"); a("s_lshl_b32 s40, s40, 13"); a("s_add_u32 s41, s40, 4096")
    global OSTORES
    OSTORES = [f"buffer_store_dwordx4 {vr(V_OF+4*f,4)}, v7, s[32:35], s{40 + f//4} offen offset:{(f%4)*1024} sc1" for f in range(8)]
    a("v_lshrrev_b32 v2, 4, v0"); a("v_bfe_u32 v3, v0, 2, 2"); a("v_lshl_add_u32 v2, v2, 2, v3")
    a("v_mul_u32_u24 v2, 288, v2"); a("v_and_b32 v3, 3, v0")
    a(f"v_lshl_add_u32 v{V2_AD[0]}, v3, 3, v2")
    for sl in range(1, 4): a(f"v_add_u32 v{V2_AD[sl]}, {sl*W_SLOT}, v{V2_AD[0]}")
    a(f"s_lshl_b32 s44, s{S_G}, 5"); a(f"s_lshl_b32 s45, s{S_X}, 2"); a("s_add_u32 s44, s44, s45")
    a(f"s_lshl_b32 s48, s{S_G}, 3"); a(f"s_add_u32 s48, s48, s{S_X}"); a("s_lshl_b32 s48, s48, 2")
    a(f"s_add_u32 s48, s48, s{S_WAVE}"); a("s_lshl_b32 s48, s48, 7"); a(f"s_add_u32 s48, s48, {WS_F}")
    a(f"s_lshl_b32 s49, s{S_J}, 3"); a("s_add_u32 s49, s49, s48")
    a("v_and_b32 v8, 3, v0"); a("v_lshlrev_b32 v8, 3, v8")

def bload_list(slot, breg):
    setup = [f"s_add_u32 s45, s{S_J}, {slot}", "s_and_b32 s45, s45, 3", "s_add_u32 s45, s45, s44",
             "s_lshl_b32 s45, s45, 2", f"s_add_u32 s45, s45, s{S_WAVE}",
             "s_lshl_b32 s46, s45, 13", "s_add_u32 s47, s46, 4096"]
    loads = [f"buffer_load_dwordx4 {vr(breg+4*f,4)}, v7, s[32:35], s{46 + f//4} offen offset:{(f%4)*1024} sc1" for f in range(8)]
    return setup, loads

def p2_run(a, hs, n0, n1, hooks_pre=None, hooks_mid=None, inject=None, spread=None):
    hooks_pre = hooks_pre or {}; hooks_mid = hooks_mid or {}; inject = inject or {}; spread = spread or {}
    for n in range(n0, n1):
        (s, p, hf) = hs[n]
        breg = V_OF if s == 0 else BUF[s - 1]
        nxt = p2_areads(*hs[n+1], buf=(n+1) & 1) if n + 1 < n1 else []
        taus = list(range(0, 5)) if hf == 0 else list(range(5, 9))
        nown = 2 * len(taus)
        nm = nown
        plan = [0] * nm
        for t in range(len(nxt)): plan[t % nm] += 1
        issued = 0; m = 0
        inj = list(inject.get(n, []))
        spr = list(spread.get(n, []))
        per = -(-len(spr) // nm) if spr else 0
        if n in hooks_pre: hooks_pre[n]()
        for k, tau in enumerate(taus):
            a(f"s_waitcnt lgkmcnt({nown - 2 * (k + 1) + issued})")
            for qt in range(2):
                d = vr(V2_ACC + (tau*2+qt)*4, 4)
                c = "0" if (s == 0 and p == 0) else d
                a(f"v_mfma_f32_16x16x32_bf16 {d}, {vr(V2_A[n & 1]+4*k,4)}, {vr(breg+(2*p+qt)*4,4)}, {c}")
                if m == 0 and n in hooks_mid: hooks_mid[n]()
                if nxt:
                    for r in nxt[issued:issued+plan[m]]: a(r)
                    issued = min(len(nxt), issued + plan[m])
                for _ in range(per):
                    if spr: a(spr.pop(0))
                m += 1
                if k >= len(taus) - 1 and inj: a(inj.pop(0))
        while inj: a(inj.pop(0))
        while spr: a(spr.pop(0))

def d_prep(a):
    a("v_bfe_u32 v13, v0, 1, 3"); a("v_mul_u32_u24 v13, 9216, v13")
    a("v_lshrrev_b32 v14, 4, v0"); a("v_lshlrev_b32 v14, 1, v14"); a("v_and_b32 v15, 1, v0")
    a("v_add_u32 v14, v14, v15"); a("v_lshl_add_u32 v13, v14, 4, v13")
    a(f"s_lshl_b32 s58, s{S_G}, 2"); a(f"s_add_u32 s58, s58, s{S_J}"); a("s_lshl_b32 s58, s58, 2")
    a(f"s_add_u32 s58, s58, s{S_WAVE}")
    a("s_mul_i32 s59, s58, 73728"); a(f"s_add_u32 s59, s59, {WS_D}")
    a(f"s_mul_i32 s40, s{S_X}, 1152"); a("s_add_u32 s40, s40, s59")

def d_pack_store(tau, G=160):
    r = []
    for qt in range(2):
        for h2 in range(2):
            src = V2_ACC + (tau*2+qt)*4 + 2*h2
            r.append(f"v_cvt_pk_bf16_f32 v{G+4*tau+2*qt+h2}, v{src}, v{src+1}")
    r.append(f"buffer_store_dwordx4 {vr(G+4*tau,4)}, v13, s[32:35], s40 offen offset:{128*tau} sc1")
    return r

def tail(a):
    hs = [(s, p, hf) for s in range(3) for p in range(4) for hf in range(2)]
    hs += [(3, p, 0) for p in range(4)] + [(3, p, 1) for p in range(4)]
    o_store(a)
    stamp(a, 6)
    for x in OSTORES: a(x)
    for r in p2_areads(*hs[0], buf=0): a(r)
    def exch():
        a("s_waitcnt vmcnt(0)")
        flag_store(a, 49, 'dyn')
        stamp(a, 7)
        if OPT.get('pollin', 1):
            poll(a, "o", 8, 48, sleep=OPT.get('o_sleep', 0))
            stamp(a, 8)
            p2_bloads(a, 1, BUF[0])
        a("s_nop 3")
    p2_run(a, hs, 0, 8, hooks_pre={OPT.get('flagpos', 4): exch})
    if not OPT.get('pollin', 1):
        poll(a, "o", 8, 48, sleep=OPT.get('o_sleep', 0))
        stamp(a, 8)
        p2_bloads(a, 1, BUF[0])
    a("s_barrier")
    tstamp(a, 1)
    for r in p2_areads(*hs[8], buf=0): a(r)
    su2, l2 = bload_list(2, BUF[1]); su3, l3 = bload_list(3, BUF[2])
    for x in su2: a(x)
    d_prep(a)
    inj = {}
    for t in range(4):
        inj[8 + t] = l2[2*t:2*t+2]
        inj[16 + t] = l3[2*t:2*t+2]
    inj[15] = su3
    a("s_waitcnt vmcnt(0)")
    tstamp(a, 2)
    spr = {29: d_pack_store(0) + d_pack_store(1), 30: d_pack_store(2) + d_pack_store(3), 31: d_pack_store(4)}
    p2_run(a, hs, 8, 32,
           hooks_pre={16: lambda: a("s_waitcnt vmcnt(0)"), 24: lambda: a("s_waitcnt vmcnt(0)")},
           hooks_mid={15: lambda: a("s_barrier"), 23: lambda: a("s_barrier")},
           inject=inj, spread=spr)
    stamp(a, 9)
    reduce_inkernel(a)

def store_partials_f32(a):
    a("s_nop 7")
    a(f"s_lshl_b32 s45, s{S_X}, 3"); a(f"s_add_u32 s45, s45, s{S_G}"); a("s_lshl_b32 s45, s45, 2")
    a(f"s_add_u32 s45, s45, s{S_J}"); a("s_lshl_b32 s45, s45, 2"); a(f"s_add_u32 s45, s45, s{S_WAVE}")
    a(f"s_mul_i32 s45, s45, {18*1024}"); a(f"s_add_u32 s45, s45, {WS_P}")
    for u in range(18):
        if u and u % 4 == 0: a("s_add_u32 s45, s45, 4096")
        a(f"buffer_store_dwordx4 {vr(V2_ACC+4*u,4)}, v7, s[32:35], s45 offen offset:{(u%4)*1024}")

def store_partials_bf16(a):
    G = 160
    a(f"s_lshl_b32 s44, s{S_G}, 2"); a(f"s_add_u32 s44, s44, s{S_J}"); a("s_lshl_b32 s44, s44, 2")
    a(f"s_add_u32 s44, s44, s{S_WAVE}")
    a(f"s_lshl_b32 s45, s{S_X}, 7"); a("s_add_u32 s45, s45, s44"); a("s_mul_i32 s45, s45, 9216")
    a(f"s_add_u32 s45, s45, {WS_P}"); a("s_add_u32 s46, s45, 4096"); a("s_add_u32 s47, s45, 8192")
    sc = " sc1" if OPT.get('psc1', 1) else ""
    for tau in range(9):
        for qt in range(2):
            for h2 in range(2):
                src = V2_ACC + (tau*2+qt)*4 + 2*h2
                a(f"v_cvt_pk_bf16_f32 v{G+4*tau+2*qt+h2}, v{src}, v{src+1}")
        a(f"buffer_store_dwordx4 {vr(G+4*tau,4)}, v7, s[32:35], s{45 + tau//4} offen offset:{(tau%4)*1024}{sc}")

def kernel3b(a):
    name = "mha_p3_kernel"
    a(".p2align 8"); a(f".globl {name}"); a(f".type {name},@function"); a.label(name)
    a("s_cmp_ge_u32 s2, 288"); a(f"s_cbranch_scc1 L_end_{name}")
    a("s_load_dwordx2 s[26:27], s[0:1], 40"); a("s_load_dwordx2 s[30:31], s[0:1], 56")
    a("v_lshrrev_b32 v1, 6, v0"); a("v_and_b32 v0, 63, v0")
    a("s_lshl_b32 s5, s2, 2")
    a(f"v_readfirstlane_b32 s{S_WAVE}, v1")
    a("v_lshlrev_b32 v1, 4, v0")
    a(f"s_add_u32 s5, s5, s{S_WAVE}")
    a("s_mul_i32 s45, s5, 1024"); a(f"s_add_u32 s45, s45, {WS_P}")
    a("s_mul_hi_u32 s6, s5, 477218589")
    a("s_mul_i32 s7, s6, 9"); a("s_sub_u32 s7, s5, s7")
    a("s_waitcnt lgkmcnt(0)")
    srd(a, 32, P_WS, SZ_WS_USED); srd(a, 36, P_OUT, SZ_OUT)
    for x in range(8):
        a(f"buffer_load_dwordx4 {vr(8+4*x,4)}, v1, s[32:35], s45 offen")
        if x < 7: a(f"s_add_u32 s45, s45, {128*9216}")
    a("v_and_b32 v2, 15, v0"); a("v_mul_u32_u24 v2, 1152, v2"); a("v_lshrrev_b32 v3, 4, v0")
    a("v_lshl_add_u32 v2, v3, 3, v2")
    a("s_lshr_b32 s46, s6, 4"); a("s_lshl_b32 s46, s46, 2"); a("s_and_b32 s47, s6, 3"); a("s_add_u32 s46, s46, s47")
    a(f"s_mul_i32 s46, s46, {32*1152}")
    a("s_lshr_b32 s47, s6, 2"); a("s_and_b32 s47, s47, 3"); a("s_mul_i32 s47, s47, 288"); a("s_add_u32 s46, s46, s47")
    a("s_lshl_b32 s47, s7, 5"); a("s_add_u32 s46, s46, s47"); a(f"s_add_u32 s47, s46, {16*1152}")
    for x in range(8):
        a(f"s_waitcnt vmcnt({7-x})")
        for d in range(4):
            src = 8 + 4*x + d
            if x == 0:
                a(f"v_lshlrev_b32 v{40+2*d}, 16, v{src}"); a(f"v_and_b32 v{40+2*d+1}, 0xffff0000, v{src}")
            else:
                a(f"v_lshlrev_b32 v48, 16, v{src}"); a(f"v_and_b32 v49, 0xffff0000, v{src}")
                a(f"v_pk_add_f32 v[{40+2*d}:{40+2*d+1}], v[{40+2*d}:{40+2*d+1}], v[48:49]")
    for d in range(4): a(f"v_cvt_pk_bf16_f32 v{50+d}, v{40+2*d}, v{40+2*d+1}")
    a("buffer_store_dwordx2 v[50:51], v2, s[36:39], s46 offen")
    a("buffer_store_dwordx2 v[52:53], v2, s[36:39], s47 offen")
    a.label(f"L_end_{name}")
    a("s_endpgm")

def reduce_inkernel(a):
    G = 160; R1 = 196; R2 = 88
    a("s_nop 7")
    for tau in range(5, 9):
        for x in d_pack_store(tau): a(x)
    a("s_lshl_b32 s48, s58, 7"); a(f"s_add_u32 s48, s48, {WS_F2}")
    a(f"s_lshl_b32 s49, s{S_X}, 3"); a("s_add_u32 s49, s49, s48")
    a("v_and_b32 v8, 7, v0"); a("v_lshlrev_b32 v8, 3, v8")
    a("v_and_b32 v14, 1, v0"); a("v_mul_u32_u24 v14, 1152, v14")
    a("v_bfe_u32 v15, v0, 1, 2"); a("v_lshl_add_u32 v14, v15, 3, v14")
    a("v_add_u32 v15, 256, v14")
    a("v_lshrrev_b32 v12, 3, v0"); a("v_lshl_add_u32 v14, v12, 5, v14")
    srd(a, 36, P_OUT, SZ_OUT)
    a(f"s_lshl_b32 s56, s{S_G}, 2"); a(f"s_add_u32 s56, s56, s{S_WAVE}"); a("s_lshl_b32 s56, s56, 5")
    a(f"s_lshl_b32 s57, s{S_X}, 1"); a("s_add_u32 s56, s56, s57"); a("s_mul_i32 s56, s56, 1152")
    a(f"s_mul_i32 s57, s{S_J}, 288"); a("s_add_u32 s56, s56, s57")
    a(f"s_add_u32 s57, s56, {16*1152}")
    a(f"s_mul_i32 s47, s{S_X}, 9216"); a("s_add_u32 s47, s47, s59")
    a("s_waitcnt vmcnt(0)")
    flag_store(a, 49, 'sc1')
    stamp(a, 10)
    poll(a, "d", 8, 48, sleep=OPT.get('d_sleep', 0))
    stamp(a, 11)
    for sx in range(8):
        a(f"buffer_load_dwordx4 {vr(R1+4*sx,4)}, v7, s[32:35], s47 offen sc1")
        if sx < 7: a("s_add_u32 s47, s47, 1152")
    a(f"s_sub_u32 s47, s47, {7*1152}")
    a("s_mov_b64 exec, 0xff")
    for sx in range(8):
        a(f"buffer_load_dwordx4 {vr(R2+4*sx,4)}, v7, s[32:35], s47 offen offset:1024 sc1")
        if sx < 7: a("s_add_u32 s47, s47, 1152")
    a("s_mov_b64 exec, -1")
    A1 = 16; A2 = 24; T = 32
    def summ(R, A, waitbase):
        for sx in range(8):
            a(f"s_waitcnt vmcnt({waitbase - sx})")
            for d in range(4):
                src = R + 4*sx + d
                if sx == 0:
                    a(f"v_lshlrev_b32 v{A+2*d}, 16, v{src}"); a(f"v_and_b32 v{A+2*d+1}, 0xffff0000, v{src}")
                else:
                    t = T + 2 * (d & 1)
                    a(f"v_lshlrev_b32 v{t}, 16, v{src}"); a(f"v_and_b32 v{t+1}, 0xffff0000, v{src}")
                    a(f"v_pk_add_f32 v[{A+2*d}:{A+2*d+1}], v[{A+2*d}:{A+2*d+1}], v[{t}:{t+1}]")
    fl = {0: "", 1: " sc1", 2: " nt", 3: " sc0 sc1"}[OPT.get('outfl', 0)]
    summ(R1, A1, 15)
    for d in range(4): a(f"v_cvt_pk_bf16_f32 v{36+d}, v{A1+2*d}, v{A1+2*d+1}")
    summ(R2, A2, 7)
    a(f"buffer_store_dwordx2 v[36:37], v14, s[36:39], s56 offen{fl}")
    a(f"buffer_store_dwordx2 v[38:39], v14, s[36:39], s57 offen{fl}")
    for d in range(4): a(f"v_cvt_pk_bf16_f32 v{40+d}, v{A2+2*d}, v{A2+2*d+1}")
    a("s_mov_b64 exec, 0xff")
    a(f"buffer_store_dwordx2 v[40:41], v15, s[36:39], s56 offen{fl}")
    a(f"buffer_store_dwordx2 v[42:43], v15, s[36:39], s57 offen{fl}")
    a("s_mov_b64 exec, -1")

def KNAME():
    return "standalone__mha_block_cached__near_ridge_kernel" if OPT['dk'] else "mha_a_kernel"

def kernelA(a):
    global KIDX
    KIDX = 0
    name = KNAME()
    prologue(a, name)
    stamp_init(a); stamp(a, 0); cstamp(a, 14)
    a(f"s_cmp_lt_u32 s{S_WAVE}, 4"); a("s_cbranch_scc1 L_a_compute")
    a(f"s_cmp_eq_u32 s{S_WAVE}, 6"); a("s_cbranch_scc1 L_a_ldk")
    a(f"s_cmp_eq_u32 s{S_WAVE}, 4"); a("s_cbranch_scc1 L_a_ldwq")
    a(f"s_cmp_eq_u32 s{S_WAVE}, 5"); a("s_cbranch_scc1 L_a_ldx")
    loader_v(a); stamp_flush(a); a("s_endpgm")
    a.label("L_a_ldk"); loader_k(a); stamp_flush(a); a("s_endpgm")
    a.label("L_a_ldwq"); loader_ring(a, 'wq'); stamp_flush(a); a("s_endpgm")
    a.label("L_a_ldx"); loader_ring(a, 'x'); stamp_flush(a); a("s_endpgm")
    a.label("L_a_compute")
    CUR['compute'] = True
    srd(a, 36, P_DBG, 256)
    gemm1_addrs(a); attn_addrs(a)
    a("v_mov_b32 v1, 0")
    a(f"s_lshl_b32 s40, s{S_G}, 3"); a(f"s_add_u32 s40, s40, s{S_X}"); a("s_lshr_b32 s40, s40, 1")
    a("s_lshl_b32 s40, s40, 2"); a("s_add_u32 s40, s40, 128")
    srd(a, 44, P_WS, SZ_WS_USED)
    a(f"s_lshl_b32 s42, s{S_G}, 3"); a(f"s_add_u32 s42, s42, s{S_X}"); a("s_lshl_b32 s42, s42, 2")
    a(f"s_add_u32 s42, s42, s{S_WAVE}"); a("s_lshl_b32 s42, s42, 7"); a(f"s_add_u32 s42, s42, {WS_F}")
    gemm1(a); get_nonce(a); stamp(a, 2)
    attention(a); stamp(a, 5)
    tail(a)
    if OPT['stamps']: a("s_waitcnt vmcnt(0)")
    stamp(a, 12); cstamp(a, 15); stamp_flush(a)
    if OPT.get('waitx', 0):
        a("s_waitcnt vmcnt(0)")
        a(f"s_add_u32 s62, s{S_NON}, {OPT['waitx']}")
        a("s_mov_b32 s63, 0")
        a.label("L_wx_spin")
        a("s_memrealtime s[64:65]"); a("s_waitcnt lgkmcnt(0)")
        a("s_add_u32 s63, s63, 1"); a("s_cmp_gt_u32 s63, 100000"); a("s_cbranch_scc1 L_wx_done")
        a("s_sub_u32 s66, s62, s64"); a("s_cmp_gt_i32 s66, 0"); a("s_cbranch_scc1 L_wx_spin")
        a.label("L_wx_done")
    if OPT.get('probe', -1) >= 0:
        a("s_waitcnt vmcnt(0)")
        a(f"s_sub_u32 s62, s60, s{S_NON}"); a(f"s_mul_i32 s62, s62, {OPT.get('probek', 8)}")
        a("s_memrealtime s[64:65]"); a("s_waitcnt lgkmcnt(0)")
        a("s_add_u32 s62, s62, s64")
        a("s_mov_b32 s63, 0")
        a.label("L_probe_spin")
        a("s_memrealtime s[64:65]"); a("s_waitcnt lgkmcnt(0)")
        a("s_add_u32 s63, s63, 1"); a("s_cmp_gt_u32 s63, 100000"); a("s_cbranch_scc1 L_probe_done")
        a("s_sub_u32 s66, s62, s64"); a("s_cmp_gt_i32 s66, 0"); a("s_cbranch_scc1 L_probe_spin")
        a.label("L_probe_done")
    a.label(f"L_end_{name}")
    a("s_endpgm")

def kernel3(a):
    global KIDX
    KIDX = 1
    name = "mha_p3_kernel"
    a(".p2align 8"); a(f".globl {name}"); a(f".type {name},@function"); a.label(name)
    a("s_cmp_ge_u32 s2, 256"); a(f"s_cbranch_scc1 L_end_{name}")
    a("s_load_dwordx16 s[16:31], s[0:1], 0")
    a("v_lshrrev_b32 v1, 6, v0"); a("v_and_b32 v0, 63, v0")
    a("s_lshr_b32 s5, s2, 1")
    a("s_and_b32 s6, s2, 1")
    a(f"v_readfirstlane_b32 s{S_WAVE}, v1")
    a("s_mul_i32 s6, s6, 9")
    a("s_waitcnt lgkmcnt(0)")
    stamp_init(a); stamp(a, 0); cstamp(a, 14)
    a(f"s_add_u32 s6, s6, s{S_WAVE}")
    srd(a, 32, P_WS, SZ_WS_USED); srd(a, 36, P_OUT, SZ_OUT)
    a("v_lshlrev_b32 v1, 4, v0")
    a("s_mul_i32 s45, s5, 18"); a("s_add_u32 s45, s45, s6"); a("s_lshl_b32 s45, s45, 10")
    a(f"s_add_u32 s45, s45, {WS_P}")
    for x in range(8):
        a(f"buffer_load_dwordx4 {vr(8+4*x,4)}, v1, s[32:35], s45 offen")
        if x < 7: a(f"s_add_u32 s45, s45, {128*18*1024}")
    a("v_and_b32 v2, 15, v0"); a("v_mul_u32_u24 v2, 1152, v2"); a("v_lshrrev_b32 v3, 4, v0")
    a("v_lshl_add_u32 v2, v3, 3, v2")
    a("s_lshr_b32 s46, s5, 4"); a("s_lshl_b32 s46, s46, 2"); a("s_and_b32 s47, s5, 3"); a("s_add_u32 s46, s46, s47")
    a(f"s_mul_i32 s46, s46, {32*1152}")
    a("s_lshr_b32 s47, s5, 2"); a("s_and_b32 s47, s47, 3"); a("s_mul_i32 s47, s47, 288"); a("s_add_u32 s46, s46, s47")
    a("s_and_b32 s47, s6, 1"); a(f"s_mul_i32 s47, s47, {16*1152}"); a("s_add_u32 s46, s46, s47")
    a("s_lshr_b32 s47, s6, 1"); a("s_lshl_b32 s47, s47, 5"); a("s_add_u32 s46, s46, s47")
    a("s_waitcnt vmcnt(0)")
    for v in range(4):
        for x in range(0, 8, 2): a(f"v_add_f32 v{8+4*x+v}, v{8+4*x+v}, v{12+4*x+v}")
    for v in range(4):
        a(f"v_add_f32 v{8+v}, v{8+v}, v{16+v}"); a(f"v_add_f32 v{24+v}, v{24+v}, v{32+v}")
    for v in range(4): a(f"v_add_f32 v{8+v}, v{8+v}, v{24+v}")
    a("v_cvt_pk_bf16_f32 v8, v8, v9"); a("v_cvt_pk_bf16_f32 v9, v10, v11")
    a("buffer_store_dwordx2 v[8:9], v2, s[36:39], s46 offen")
    if OPT['stamps']:
        a("s_waitcnt vmcnt(0)")
        stamp(a, 10); cstamp(a, 15)
        a(f"s_cmp_ge_u32 s{S_WAVE}, 8"); a("s_cbranch_scc1 L_end_mha_p3_kernel")
        stamp_flush(a, 44)
    a.label(f"L_end_{name}")
    a("s_endpgm")

def descriptor(a, name, vgpr, sgpr=102):
    a(f".amdhsa_kernel {name}")
    a(f".amdhsa_next_free_vgpr {vgpr}"); a(f".amdhsa_next_free_sgpr {sgpr}"); a(f".amdhsa_accum_offset {vgpr}")
    a(".amdhsa_group_segment_fixed_size 0"); a(".amdhsa_kernarg_size 64")
    a(".amdhsa_user_sgpr_count 2"); a(".amdhsa_user_sgpr_kernarg_segment_ptr 1")
    a(".amdhsa_system_sgpr_workgroup_id_x 1"); a(".end_amdhsa_kernel")

def main():
    out = sys.argv[1]
    for arg in sys.argv[2:]:
        if arg == "--stamps": OPT['stamps'] = True
        elif "=" in arg:
            k, v = arg.lstrip("-").split("="); OPT[k] = int(v)
    a = Asm()
    hdr = "; MHA block (Q-proj + attention + out-proj), generated by gen3.py\n"
    if OPT['dk']:
        hdr += "; @launch grid=(256,1,1) block=(512,1,1) lds=163840\n"
    else:
        hdr += "; @launch kernel=mha_a_kernel grid=(256,1,1) block=(512,1,1) lds=163840\n"
        if OPT.get('k3bf', 0): hdr += "; @launch kernel=mha_p3_kernel grid=(288,1,1) block=(256,1,1) lds=0\n"
        else: hdr += "; @launch kernel=mha_p3_kernel grid=(256,1,1) block=(576,1,1) lds=0\n"
    a('.amdgcn_target "amdgcn-amd-amdhsa--gfx950"'); a(".text")
    kernelA(a)
    if not OPT['dk']:
        if OPT.get('k3bf', 0): kernel3b(a)
        else: kernel3(a)
    a('.section .rodata,"a"'); a(".p2align 6"); descriptor(a, KNAME(), 256)
    if not OPT['dk']:
        a(".p2align 6"); descriptor(a, "mha_p3_kernel", 56)
    open(out, "w").write(hdr + a.text())

if __name__ == "__main__": main()
```

```python
import sys, struct

class Asm:
    def __init__(self): self.l = []
    def __call__(self, s=""):
        for x in s.split("\n"):
            x = x.strip()
            self.l.append(x if (x.endswith(":") or x.startswith(".")) else "  " + x)
    def label(self, s): self.l.append(s + ":")
    def text(self): return "\n".join(self.l) + "\n"

def vr(b, n=1): return f"v{b}" if n == 1 else f"v[{b}:{b+n-1}]"
def f32hex(x): return "0x%08x" % struct.unpack("<I", struct.pack("<f", x))[0]

P_X, P_K, P_V, P_WQ, P_WO, P_OUT, P_DBG, P_WS = 16, 18, 20, 22, 24, 26, 28, 30
SZ_X, SZ_KV, SZ_W, SZ_OUT = 1179648, 8388608, 4718592, 1179648
WS_O = 0
WS_P = 8 << 20
WS_F = 28 << 20
WS_F2 = (28 << 20) + (1 << 19)
WS_D = 8 << 20
WS_STAMP = 32 << 20
SZ_WS_USED = 64 << 20
S_WAVE, S_X, S_R, S_J, S_G, S_H = 3, 4, 5, 6, 9, 10

OPT = dict(stamps=False, fast=1, spin_max=2000000, kvmode=20, flagpos=3, d_sleep=3, o_sleep=1, k_nt=1, v_nt=1, wot_pos=8, dk=1)

def srd(a, base, ptr, size, add=0):
    if add:
        a(f"s_add_u32 s{base}, s{ptr}, {add}"); a(f"s_addc_u32 s{base+1}, s{ptr+1}, 0")
        a(f"s_and_b32 s{base+1}, s{base+1}, 0xffff")
    else:
        a(f"s_mov_b32 s{base}, s{ptr}"); a(f"s_and_b32 s{base+1}, s{ptr+1}, 0xffff")
    a(f"s_mov_b32 s{base+2}, {size}"); a(f"s_mov_b32 s{base+3}, 0x00020000")

def prologue(a, name, nwg=256):
    a(".p2align 8"); a(f".globl {name}"); a(f".type {name},@function"); a.label(name)
    a(f"s_cmp_ge_u32 s2, {nwg}"); a(f"s_cbranch_scc1 L_end_{name}")
    a("s_load_dwordx16 s[16:31], s[0:1], 0")
    a("v_lshrrev_b32 v1, 6, v0"); a("v_and_b32 v0, 63, v0")
    a(f"s_and_b32 s{S_X}, s2, 7"); a(f"s_lshr_b32 s{S_R}, s2, 3")
    a(f"v_readfirstlane_b32 s{S_WAVE}, v1")
    a(f"s_and_b32 s{S_J}, s{S_R}, 3"); a(f"s_lshr_b32 s{S_G}, s{S_R}, 2")
    a(f"s_lshl_b32 s{S_H}, s{S_X}, 2"); a(f"s_add_u32 s{S_H}, s{S_H}, s{S_J}")
    a("s_waitcnt lgkmcnt(0)")

KIDX = 0
CUR = {}
def tstamp(a, idx):
    if OPT.get('tailstamps', 0): stamp(a, idx, force=True)
def stamp(a, idx, force=False):
    if OPT.get('probe', -1) == idx and CUR.get('compute') and (force or not (OPT.get('tailstamps', 0) and idx in (1,2,3,4,13))):
        a("s_memrealtime s[60:61]"); a("s_waitcnt lgkmcnt(0)")
        return
    if not OPT['stamps']: return
    if OPT.get('tailstamps', 0) and not force and idx in (1,2,3,4,13) and CUR.get('compute'): return
    a(f"s_memrealtime s[{60+2*idx}:{61+2*idx}]"); a("s_waitcnt lgkmcnt(0)")
def cstamp(a, idx):
    if not OPT['stamps']: return
    a(f"s_memtime s[{60+2*idx}:{61+2*idx}]"); a("s_waitcnt lgkmcnt(0)")
def stamp_init(a):
    if not OPT['stamps']: return
    for i in range(16): a(f"s_mov_b64 s[{60+2*i}:{61+2*i}], 0")
def stamp_flush(a, vb=250):
    if not OPT['stamps']: return
    srd(a, 92, P_WS, 256*16*16*8, add=WS_STAMP + KIDX*256*8*16*8)
    a("s_lshl_b32 s96, s2, 3"); a(f"s_add_u32 s96, s96, s{S_WAVE}"); a("s_lshl_b32 s96, s96, 7")
    a(f"v_mov_b32 v{vb+2}, 0")
    for i in range(16):
        a(f"v_mov_b32 v{vb}, s{60+2*i}"); a(f"v_mov_b32 v{vb+1}, s{61+2*i}")
        a(f"buffer_store_dwordx2 v[{vb}:{vb+1}], v{vb+2}, s[92:95], s96 offen offset:{i*8}")
        a("s_nop 1")
    a("s_waitcnt vmcnt(0)")

L_K = 98304; L_V = 131072; NCH = 9
W_SLOT = 36864

def dma(a, voff, srdb, soff, off=0, nt=False):
    a(f"buffer_load_dwordx4 v{voff}, s[{srdb}:{srdb+3}], s{soff} offen" + (f" offset:{off}" if off else "") + (" nt" if nt else "") + " lds")

V_WOV = 16
def wo_prep(a):
    srd(a, 52, P_WO, SZ_W)
    for t in range(9):
        a(f"v_add_u32 v1, {64*t}, v0")
        a("v_mul_u32_u24 v2, 3641, v1")
        a("v_lshrrev_b32 v2, 16, v2")
        a("v_mul_u32_u24 v3, 18, v2")
        a("v_sub_u32 v3, v1, v3")
        a("v_lshlrev_b32 v3, 4, v3")
        a("v_mul_u32_u24 v2, 1152, v2")
        a(f"v_add_u32 v{V_WOV+t}, v2, v3")
    a(f"s_mul_i32 s56, s{S_J}, 288")
def wo_issue(a, slot, q0, nq):
    a(f"s_add_u32 s57, s{S_J}, {slot}"); a("s_and_b32 s57, s57, 3")
    a(f"s_lshl_b32 s58, s{S_X}, 2"); a("s_add_u32 s57, s57, s58")
    a(f"s_mul_i32 s57, s57, {128*1152}"); a("s_add_u32 s57, s57, s56")
    if q0: a(f"s_add_u32 s57, s57, {q0*32*1152}")
    a(f"s_mov_b32 m0, {slot*W_SLOT + q0*32*288}"); a("s_nop 0")
    for blk in range(nq):
        for t in range(9):
            dma(a, V_WOV + t, 52, 57)
            if not (blk == nq - 1 and t == 8):
                a("s_add_u32 m0, m0, 1024")
                if t == 8: a(f"s_add_u32 s57, s57, {32*1152}")
                else: a("s_nop 0")

def loader_tail(a, role):
    a("s_barrier")
    stamp(a, 8)
    if role < 2:
        wo_issue(a, 0, 2 * role, 2); wo_issue(a, 1, 2 * role, 2)
    stamp(a, 9)
    if OPT.get('vearly', 0):
        if role < 2: a("s_waitcnt vmcnt(18)")
        a("s_barrier")
    else:
        if role == 3: a("s_waitcnt vmcnt(0)")
        a("s_barrier")
        if role < 2: a("s_waitcnt vmcnt(18)")
        a("s_barrier")
    if OPT.get('woearly', 0):
        wo_issue(a, 2, role, 1)
        wo_issue(a, 3, role, 1)
        stamp(a, 10)
        if role < 2: a("s_waitcnt vmcnt(18)")
        a("s_barrier")
    else:
        if role < 2: a("s_waitcnt vmcnt(0)")
        a("s_barrier")
        wo_issue(a, 2, role, 1)
        wo_issue(a, 3, role, 1)
        stamp(a, 10)
    a("s_waitcnt vmcnt(9)")
    a("s_barrier")
    a("s_waitcnt vmcnt(0)")
    stamp(a, 11)
    a("s_barrier")

def loader_ring(a, which):
    SRD = 32; SO = 40
    if which == 'wq':
        srd(a, SRD, P_WQ, SZ_W)
        a("v_lshrrev_b32 v1, 4, v0"); a("v_and_b32 v2, 15, v0")
        a("v_lshlrev_b32 v3, 2, v1"); a("v_xor_b32 v3, v3, v2"); a("v_lshlrev_b32 v3, 4, v3")
        a("v_lshlrev_b32 v4, 13, v1"); a("v_add_u32 v4, v4, v3")
        a(f"s_lshl_b32 s{SO}, s{S_H}, 8")
        def issue(kc):
            a(f"s_mov_b32 m0, {(kc%3)*32768}")
            for t in range(16):
                if t == 0: a("s_nop 0")
                dma(a, 4, SRD, SO)
                a(f"s_add_u32 s{SO}, s{SO}, 32768")
                if t < 15:
                    a("s_add_u32 m0, m0, 1024"); a("s_nop 0")
    else:
        srd(a, SRD, P_X, SZ_X)
        a("v_lshrrev_b32 v1, 3, v0"); a("v_mul_u32_u24 v1, 1152, v1")
        a("v_and_b32 v2, 7, v0"); a("v_lshrrev_b32 v3, 4, v0"); a("v_xor_b32 v2, v2, v3")
        a("v_lshlrev_b32 v4, 4, v2"); a("v_add_u32 v4, v4, v1")
        a("v_xor_b32 v2, 4, v2"); a("v_lshlrev_b32 v5, 4, v2"); a("v_add_u32 v5, v5, v1")
        a(f"s_mul_i32 s{SO+1}, s{S_G}, 147456")
        def issue(kc):
            a(f"s_mov_b32 m0, {(kc%3)*32768 + 16384}")
            a(f"s_add_u32 s{SO}, s{SO+1}, {kc*128}")
            for T in range(16):
                dma(a, 4 + (T & 1), SRD, SO)
                if T < 15:
                    a("s_add_u32 m0, m0, 1024"); a(f"s_add_u32 s{SO}, s{SO}, 9216")
    kv_pos(a, 43, 'k')
    if which == 'wq':
        a("v_lshrrev_b32 v8, 1, v0"); a("v_and_b32 v9, 1, v0")
        a("v_lshlrev_b32 v8, 13, v8"); a("v_lshl_add_u32 v8, v9, 7, v8")
        a(f"s_lshl_b32 s46, s{S_G}, {5+13}"); a(f"s_lshl_b32 s47, s{S_H}, 8"); a("s_add_u32 s46, s46, s47")
        def touch(part):
            if part == 0:
                a(f"buffer_load_dword v10, v8, s[{SRD}:{SRD+3}], s46 offen")
            else:
                a(f"s_add_u32 s46, s46, {256*8192}")
                a(f"buffer_load_dword v10, v8, s[{SRD}:{SRD+3}], s46 offen")
                a(f"s_lshl_b32 s46, s{S_G}, {3+13}"); a("s_add_u32 s46, s46, s47"); a(f"s_add_u32 s46, s46, {512*8192}")
                a("s_mov_b64 exec, 0xffff")
                a(f"buffer_load_dword v10, v8, s[{SRD}:{SRD+3}], s46 offen")
                a("s_mov_b64 exec, -1")
        NT1 = 2
    else:
        if OPT.get('xonce', 0):
            a("v_mul_u32_u24 v8, 7282, v0"); a("v_lshrrev_b32 v8, 16, v8")
            a("v_mul_u32_u24 v9, 9, v8"); a("v_sub_u32 v9, v0, v9")
            a("v_mul_u32_u24 v8, 1152, v8"); a("v_lshl_add_u32 v8, v9, 7, v8")
            a(f"s_mul_i32 s46, s{S_G}, 147456"); a(f"s_mul_i32 s47, s{S_H}, {4*1152}"); a("s_add_u32 s46, s46, s47")
            def touch(part):
                if part == 0:
                    a("s_mov_b32 exec_lo, -1"); a("s_mov_b32 exec_hi, 15")
                    a(f"buffer_load_dword v10, v8, s[{SRD}:{SRD+3}], s46 offen")
                    a("s_mov_b64 exec, -1")
            NT1 = 0
        else:
            a("v_and_b32 v9, 31, v0"); a("v_mul_u32_u24 v9, 1152, v9")
            a("v_lshrrev_b32 v8, 5, v0"); a("v_lshl_add_u32 v8, v8, 7, v9")
            a(f"s_mul_i32 s46, s{S_G}, 147456"); a(f"s_mul_i32 s47, s{S_J}, {32*1152}"); a("s_add_u32 s46, s46, s47")
            def touch(part):
                if part == 0:
                    a(f"buffer_load_dword v10, v8, s[{SRD}:{SRD+3}], s46 offen")
                else:
                    for t in range(1, 4):
                        a(f"buffer_load_dword v10, v8, s[{SRD}:{SRD+3}], s46 offen offset:{256*t}")
                    a("s_mov_b64 exec, 0xffffffff")
                    a(f"buffer_load_dword v10, v9, s[{SRD}:{SRD+3}], s46 offen offset:1024")
                    a("s_mov_b64 exec, -1")
            NT1 = 4
    touch(0)
    issue(0); stamp(a, 1)
    touch(1)
    a("s_barrier")
    bx(a, -1, "r" + which)
    issue(1)
    stamp(a, 2)
    a(f"s_waitcnt vmcnt({16 + NT1})")
    stamp(a, 3)
    a("s_barrier")
    bx(a, 0, "r" + which)
    issue(2)
    for i in range(1, NCH):
        last_issued = min(i + 1, NCH - 1)
        a(f"s_waitcnt vmcnt({(last_issued - i) * 16})")
        a("s_barrier")
        if which == 'wq' and i in (1,2,3,4): stamp(a, {1:4,2:5,3:6,4:12}[i])
        if which == 'x' and i in (5,6,7,8): stamp(a, {5:4,6:5,7:6,8:12}[i])
        if i < 8: bx(a, i, "r" + which)
        if i + 2 < NCH: issue(i + 2)
        if i == 7: wo_prep(a)
    stamp(a, 7)
    loader_tail(a, 0 if which == 'wq' else 1)

def kv_pos(a, sdst, which):
    m = OPT['kvmode']
    if m == 10:
        tab = [-1, 2, 4, 7]
    elif m == 11: tab = [7, 7, 7, 7]
    elif m == 12: tab = [-1, -1, -1, -1]
    elif m == 13: tab = [1, 1, 6, 6]
    elif m == 14: tab = [-1, 1, 4, 7]
    elif m == 15: tab = [0, 3, 5, 7]
    elif m == 16: tab = [2, 7, 2, 7]
    elif m == 17: tab = [3, 5, 7, 7]
    elif m == 20: tab = [-1, 1, 3, 5]
    elif m == 21: tab = [-1, 2, 4, 6]
    elif m == 22: tab = [-1, -1, 3, 3]
    elif m == 23: tab = [-1, 0, 2, 4]
    elif m == 24: tab = [0, 2, 4, 6]
    elif m == 25: tab = [-1, -1, -1, -1]
    packed = sum(((p + 1) & 15) << (4 * k) for k, p in enumerate(tab))
    a(f"s_and_b32 s{sdst}, s{S_G}, 3"); a(f"s_lshl_b32 s{sdst}, s{sdst}, 2")
    a(f"s_lshr_b32 s{sdst}, {packed}, s{sdst}"); a(f"s_and_b32 s{sdst}, s{sdst}, 15")

def bx(a, p, tag):
    if p >= 6: return
    a(f"s_cmp_lg_u32 s43, {p+1}"); a(f"s_cbranch_scc1 L_bx_{tag}_{p+1}")
    a("s_barrier")
    a.label(f"L_bx_{tag}_{p+1}")

def kv_loop(a, tag, issue_fn, extra_fn=None, extra_pos=None):
    a("s_mov_b32 s59, 0")
    a.label(f"L_{tag}_loop")
    a("s_cmp_lg_u32 s59, s43"); a(f"s_cbranch_scc1 L_{tag}_skip")
    stamp(a, 3)
    issue_fn()
    stamp(a, 4)
    a(f"s_cmp_ge_u32 s59, 7"); a(f"s_cbranch_scc1 L_{tag}_skip")
    a("s_barrier")
    a.label(f"L_{tag}_skip")
    if extra_fn is not None:
        a(f"s_cmp_lg_u32 s59, {extra_pos}"); a(f"s_cbranch_scc1 L_{tag}_skip2")
        extra_fn()
        a.label(f"L_{tag}_skip2")
    a("s_barrier")
    a("s_add_u32 s59, s59, 1")
    a("s_cmp_le_u32 s59, 8"); a(f"s_cbranch_scc1 L_{tag}_loop")

def loader_k(a):
    SRD = 32; SRD2 = 36; SO = 40
    srd(a, SRD2, P_WQ, SZ_W); srd(a, SRD, P_K, SZ_KV)
    a("v_lshrrev_b32 v1, 4, v0"); a("v_and_b32 v2, 15, v0"); a("v_xor_b32 v2, v2, v1")
    a("v_lshlrev_b32 v2, 4, v2"); a("v_lshl_add_u32 v4, v1, 8, v2")
    a("v_xor_b32 v5, 64, v4"); a("v_xor_b32 v6, 128, v4"); a("v_xor_b32 v7, 192, v4")
    wo_prep(a)
    a("v_and_b32 v8, 15, v0"); a("v_mul_u32_u24 v8, 1152, v8")
    a("v_lshrrev_b32 v9, 4, v0"); a("v_lshl_add_u32 v9, v9, 7, v8")
    kv_pos(a, 43, 'k')
    a("s_barrier")
    stamp(a, 1)
    def issue():
        a(f"s_lshl_b32 s{SO}, s{S_G}, 7"); a(f"s_add_u32 s{SO}, s{SO}, s{S_H}"); a(f"s_lshl_b32 s{SO}, s{SO}, 13")
        for w in range(4):
            for hf in range(2):
                a(f"s_mov_b32 m0, {L_K + w*8192 + hf*4096}"); a("s_nop 0")
                for t4 in range(4):
                    t = hf * 4 + t4
                    dma(a, 4 + (t >> 1), SRD, SO, off=t4 * 1024, nt=bool(OPT['k_nt']))
                a(f"s_add_u32 s{SO}, s{SO}, {4096 if hf == 0 else 32*8192 - 4096}")
    def wotouch():
        a(f"s_lshl_b32 s{SO}, s{S_X}, 5"); a(f"s_add_u32 s{SO}, s{SO}, s{S_R}")
        a(f"s_mul_i32 s{SO}, s{SO}, {16*1152}")
        a(f"buffer_load_dword v10, v9, s[52:55], s{SO} offen")
        a(f"buffer_load_dword v10, v9, s[52:55], s{SO} offen offset:512")
        a("s_mov_b64 exec, 0xffff")
        a(f"buffer_load_dword v10, v8, s[52:55], s{SO} offen offset:1024")
        a("s_mov_b64 exec, -1")
    kv_loop(a, "k", issue, wotouch, OPT['wot_pos'])
    a("s_waitcnt vmcnt(3)")
    stamp(a, 7)
    loader_tail(a, 2)

def loader_v(a):
    SRD = 32; SRD3 = 44; SO = 40
    srd(a, SRD3, P_X, SZ_X); srd(a, SRD, P_V, SZ_KV)
    a("s_cmp_lg_u32 s2, 0"); a("s_cbranch_scc1 L_nononce")
    srd(a, 48, P_DBG, 256)
    a("s_memrealtime s[42:43]"); a("s_waitcnt lgkmcnt(0)")
    a("s_or_b32 s42, s42, 1")
    a("v_mov_b32 v8, s42"); a("v_mov_b32 v9, s43"); a("v_mov_b32 v1, 0")
    a("s_mov_b64 exec, 1")
    a("buffer_store_dwordx2 v[8:9], v1, s[48:51], 0 offen sc1")
    a("s_mov_b64 exec, -1")
    a.label("L_nononce")
    if OPT['fast']:
        srd(a, 48, P_DBG, 256)
        a("s_getreg_b32 s42, hwreg(HW_REG_XCC_ID)")
        a("s_and_b32 s42, s42, 15")
        a("s_cmp_ge_u32 s42, 8"); a("s_cbranch_scc1 L_noxcc")
        a("s_mul_i32 s43, s42, s42"); a("s_lshl_b32 s43, s43, 5"); a("s_add_u32 s42, s42, s43")
        a("s_add_u32 s42, s42, 0x2000")
        a(f"s_lshl_b32 s43, s{S_G}, 3"); a(f"s_add_u32 s43, s43, s{S_X}")
        a("s_and_b32 s41, s43, 1"); a("s_lshl_b32 s41, s41, 4"); a("s_lshl_b32 s42, s42, s41")
        a("s_lshr_b32 s43, s43, 1"); a("s_lshl_b32 s43, s43, 2"); a("s_add_u32 s43, s43, 128")
        a("v_mov_b32 v8, s42"); a("v_mov_b32 v1, 0")
        a("s_mov_b64 exec, 1")
        a("buffer_atomic_add v8, v1, s[48:51], s43 offen")
        a("s_mov_b64 exec, -1")
        a.label("L_noxcc")
    a("v_lshrrev_b32 v1, 4, v0"); a("v_and_b32 v2, 15, v0"); a("v_lshlrev_b32 v3, 1, v1")
    a("v_xor_b32 v2, v2, v3"); a("v_lshlrev_b32 v2, 4, v2"); a("v_lshl_add_u32 v4, v1, 8, v2")
    a("v_xor_b32 v5, 128, v4")
    wo_prep(a)
    kv_pos(a, 43, 'v')
    a("s_barrier")
    stamp(a, 1)
    def issue():
        a(f"s_lshl_b32 s{SO}, s{S_G}, 7"); a(f"s_add_u32 s{SO}, s{SO}, s{S_H}"); a(f"s_lshl_b32 s{SO}, s{SO}, 13")
        for w in range(4):
            for hf in range(2):
                a(f"s_mov_b32 m0, {L_V + w*8192 + hf*4096}"); a("s_nop 0")
                for t4 in range(4):
                    t = hf * 4 + t4
                    dma(a, 4 + ((t >> 1) & 1), SRD, SO, off=t4 * 1024, nt=bool(OPT['v_nt']))
                a(f"s_add_u32 s{SO}, s{SO}, {4096 if hf == 0 else 32*8192 - 4096}")
    kv_loop(a, "v", issue)
    if OPT.get('vearly', 0): a("s_waitcnt vmcnt(0)")
    stamp(a, 7)
    loader_tail(a, 3)

V_XA = [4, 8]; V_WA = [12, 248]
V_A = [16, 32]; V_B = [48, 52]; V_ACC = 64
V_QF = 128; V_KF = 160; V_S = 192; V_VF = 208; V_PF = 240; V_OF = 128
V_KA = 56; V_VA = 60; V_CLW = 61; V_NONCE = 62
SC_SCALE = 0.08838834764831845 * 1.4426950408889634

def gemm1_addrs(a):
    a("v_and_b32 v1, 31, v0"); a("v_lshrrev_b32 v2, 5, v0"); a("v_bfe_u32 v3, v0, 1, 3")
    a("v_xor_b32 v2, v2, v3"); a("v_lshlrev_b32 v2, 4, v2"); a("v_lshl_add_u32 v2, v1, 7, v2")
    a(f"s_lshl_b32 s40, s{S_WAVE}, 12"); a("s_add_u32 s40, s40, 16384")
    a("v_add_u32 v2, s40, v2")
    for ks in range(4):
        a(f"v_xor_b32 v{V_XA[0]+ks}, {32*ks}, v2"); a(f"v_add_u32 v{V_XA[1]+ks}, 65536, v{V_XA[0]+ks}")
    a("v_bfe_u32 v1, v0, 2, 2"); a("v_lshrrev_b32 v2, 5, v0"); a("v_lshl_add_u32 v2, v2, 3, v1")
    a("v_lshlrev_b32 v2, 8, v2"); a("v_and_b32 v3, 1, v0"); a("v_lshl_add_u32 v2, v3, 5, v2")
    a("v_bfe_u32 v3, v0, 4, 1"); a("v_lshl_add_u32 v2, v3, 4, v2")
    a("v_bfe_u32 v3, v0, 1, 1"); a("v_lshl_add_u32 v2, v3, 3, v2")
    a("v_lshl_add_u32 v2, v1, 6, v2")
    for dt in range(4):
        a(f"v_xor_b32 v{V_WA[0]+dt}, {64*dt}, v2"); a(f"v_add_u32 v{V_WA[1]+dt}, 65536, v{V_WA[0]+dt}")

def attn_addrs(a):
    a("v_and_b32 v1, 15, v0"); a("v_lshrrev_b32 v2, 4, v0"); a("v_xor_b32 v2, v2, v1")
    a("v_lshlrev_b32 v2, 4, v2"); a("v_lshrrev_b32 v3, 2, v1"); a("v_lshl_add_u32 v2, v3, 11, v2")
    a("v_and_b32 v3, 3, v1"); a("v_lshl_add_u32 v2, v3, 8, v2")
    a(f"s_lshl_b32 s40, s{S_WAVE}, 13"); a(f"s_add_u32 s40, s40, {L_K}")
    a("v_add_u32 v2, s40, v2")
    for st in range(4): a(f"v_xor_b32 v{V_KA+st}, {64*st}, v2")
    a("v_lshrrev_b32 v1, 4, v0"); a("v_bfe_u32 v3, v0, 2, 2"); a("v_lshl_add_u32 v2, v1, 3, v3")
    a("v_lshlrev_b32 v2, 8, v2"); a("v_and_b32 v1, 1, v1"); a("v_lshl_add_u32 v3, v1, 2, v3")
    a("v_lshl_add_u32 v2, v3, 5, v2"); a("v_and_b32 v3, 3, v0"); a("v_lshl_add_u32 v2, v3, 3, v2")
    a(f"s_lshl_b32 s40, s{S_WAVE}, 13"); a(f"s_add_u32 s40, s40, {L_V}")
    a(f"v_add_u32 v{V_VA}, s40, v2")

def g1_reads(n):
    i, ks = divmod(n, 4)
    slot = i % 3; st = n & 1; hs = 1 if slot == 2 else 0; so = (slot & 1) * 32768 if slot < 2 else 0
    r = [f"ds_read_b128 {vr(V_B[st],4)}, v{V_XA[hs]+ks} offset:{so}"]
    for dt in range(4):
        base = V_A[st] + 4 * dt
        off = so + ks * 4096
        r.append(f"ds_read_b64_tr_b16 {vr(base,2)}, v{V_WA[hs]+dt} offset:{off}")
        r.append(f"ds_read_b64_tr_b16 {vr(base+2,2)}, v{V_WA[hs]+dt} offset:{off+1024}")
    return r

def gemm1(a):
    NS = NCH * 4
    kv_pos(a, 43, 'k')
    a("s_barrier")
    bx(a, -1, "c")
    a("s_barrier")
    stamp(a, 1)
    for r in g1_reads(0): a(r)
    for n in range(NS):
        i, ks = divmod(n, 4); st = n & 1
        nxt = g1_reads(n + 1) if n + 1 < NS else []
        def mf(dt):
            c = "0" if n == 0 else vr(V_ACC + 16 * dt, 16)
            a(f"v_mfma_f32_32x32x16_bf16 {vr(V_ACC+16*dt,16)}, {vr(V_A[st]+4*dt,4)}, {vr(V_B[st],4)}, {c}")
        if ks == 3:
            for dt in range(4):
                a(f"s_waitcnt lgkmcnt({[6,4,2,0][dt]})")
                if dt == 3 and nxt:
                    bx(a, i, "c")
                    a("s_barrier")
                    for r in nxt[:5]: a(r)
                mf(dt)
            for r in nxt[5:]: a(r)
        else:
            first_after_boundary = (ks == 0 and n > 0)
            for dt in range(4):
                a(f"s_waitcnt lgkmcnt({[6,7,8,9][dt]})")
                mf(dt)
                if dt < 3:
                    for r in nxt[3*dt:3*dt+3]: a(r)
        if n == 24:
            a(f"buffer_load_dwordx2 {vr(V_NONCE,2)}, v1, s[36:39], 0 offen sc1")
            if OPT['fast']:
                a(f"buffer_load_dword v{V_CLW}, v1, s[36:39], s40 offen sc1")
                a(f"buffer_load_dword v2, v1, s[44:47], s42 offen sc1")

def attention(a):
    VE = OPT.get('vearly', 0)
    a("s_barrier")
    stamp(a, 3)
    for ai in range(2):
        for st in range(4):
            a(f"ds_read_b128 {vr(V_KF+(ai*4+st)*4,4)}, v{V_KA+st} offset:{ai*1024}")
    def vreads(T0, T1):
        for T in range(T0, T1):
            if T: a(f"v_xor_b32 v1, {32*T}, v{V_VA}")
            ad = "v1" if T else f"v{V_VA}"
            a(f"ds_read_b64_tr_b16 {vr(V_VF+4*T,2)}, {ad}")
            a(f"ds_read_b64_tr_b16 {vr(V_VF+4*T+2,2)}, {ad} offset:1024")
    for dt in range(4):
        for i in range(8):
            a(f"v_cvt_pk_bf16_f32 v{V_QF+8*dt+i}, v{V_ACC+16*dt+2*i}, v{V_ACC+16*dt+2*i+1}")
        if VE and dt == 1:
            a("s_waitcnt lgkmcnt(0)"); vreads(0, 4)
    a("s_nop 1")
    for dt in range(4):
        for i in range(4):
            a(f"v_permlane16_swap_b32 v{V_QF+8*dt+i}, v{V_QF+8*dt+4+i}")
    if VE:
        a("s_waitcnt lgkmcnt(4)"); vreads(4, 8)
    else:
        a("s_waitcnt lgkmcnt(0)")
    for st in range(4):
        for ai in range(2):
            for qt in range(2):
                d = vr(V_S + (ai*2+qt)*4, 4)
                c = "0" if st == 0 else d
                a(f"v_mfma_f32_16x16x32_bf16 {d}, {vr(V_KF+(ai*4+st)*4,4)}, {vr(V_QF+8*st+4*qt,4)}, {c}")
    if VE:
        a("s_waitcnt lgkmcnt(0)")
    def S(ai, qt, v): return V_S + (ai*2+qt)*4 + v
    M = [48, 49]; T_ = [50, 51]; SUM = [52, 53]
    a("s_nop 7")
    for qt in range(2): a(f"v_max3_f32 v{M[qt]}, v{S(0,qt,0)}, v{S(0,qt,1)}, v{S(0,qt,2)}")
    for qt in range(2): a(f"v_max3_f32 v{M[qt]}, v{M[qt]}, v{S(0,qt,3)}, v{S(1,qt,0)}")
    for qt in range(2): a(f"v_max3_f32 v{M[qt]}, v{M[qt]}, v{S(1,qt,1)}, v{S(1,qt,2)}")
    for qt in range(2): a(f"v_max_f32 v{M[qt]}, v{M[qt]}, v{S(1,qt,3)}")
    def xlane(regs, tmps, op):
        for sw in ("v_permlane16_swap_b32", "v_permlane32_swap_b32"):
            for qt in range(2): a(f"v_mov_b32 v{tmps[qt]}, v{regs[qt]}")
            a("s_nop 0")
            for qt in range(2): a(f"{sw} v{tmps[qt]}, v{regs[qt]}")
            a("s_nop 0")
            for qt in range(2): a(f"{op} v{regs[qt]}, v{regs[qt]}, v{tmps[qt]}")
    xlane(M, T_, "v_max_f32")
    a(f"s_mov_b32 s41, {f32hex(SC_SCALE)}")
    for qt in range(2): a(f"v_mul_f32 v{M[qt]}, s41, v{M[qt]}")
    for ai in range(2):
        for v in range(4):
            for qt in range(2): a(f"v_fma_f32 v{S(ai,qt,v)}, v{S(ai,qt,v)}, s41, -v{M[qt]}")
    for ai in range(2):
        for v in range(4):
            for qt in range(2): a(f"v_exp_f32 v{S(ai,qt,v)}, v{S(ai,qt,v)}")
    a("s_nop 0")
    for qt in range(2): a(f"v_add_f32 v{SUM[qt]}, v{S(0,qt,0)}, v{S(0,qt,1)}")
    for (ai, v) in [(0,2),(0,3),(1,0),(1,1),(1,2),(1,3)]:
        for qt in range(2): a(f"v_add_f32 v{SUM[qt]}, v{SUM[qt]}, v{S(ai,qt,v)}")
    xlane(SUM, T_, "v_add_f32")
    for qt in range(2): a(f"v_rcp_f32 v{SUM[qt]}, v{SUM[qt]}")
    a("s_nop 0")
    for ai in range(2):
        for v in range(4):
            for qt in range(2): a(f"v_mul_f32 v{S(ai,qt,v)}, v{S(ai,qt,v)}, v{SUM[qt]}")
    for qt in range(2):
        for ai in range(2):
            for h2 in range(2):
                a(f"v_cvt_pk_bf16_f32 v{V_PF+4*qt+2*ai+h2}, v{S(ai,qt,2*h2)}, v{S(ai,qt,2*h2+1)}")
    stamp(a, 4)
    if VE:
        a("s_nop 0")
    else:
        a("s_barrier")
        vreads(0, 6); a("s_waitcnt lgkmcnt(4)"); vreads(6, 8)
        a("s_waitcnt lgkmcnt(0)")
        a("s_barrier")
    for T in range(8):
        for qt in range(2):
            a(f"v_mfma_f32_16x16x32_bf16 {vr(V_ACC+(T*2+qt)*4,4)}, {vr(V_VF+4*T,4)}, {vr(V_PF+4*qt,4)}, 0")
    if VE: a("s_barrier")
    a("s_nop 7")
    for p in range(4):
        for qt in range(2):
            for e in range(2):
                T = 2*p + e
                for h2 in range(2):
                    src = V_ACC + (T*2+qt)*4 + 2*h2
                    a(f"v_cvt_pk_bf16_f32 v{V_OF+(2*p+qt)*4+2*e+h2}, v{src}, v{src+1}")

V2_ACC = 16
V2_A = [88, 108]
V2_AD = [4, 5, 6, 12]
BUF = [160, 192, 224]

def p2_areads(slot, p, half, buf=None):
    r = []
    ad = V2_AD[slot]
    taus = range(0, 5) if half == 0 else range(5, 9)
    if buf is None: buf = half
    for k, tau in enumerate(taus):
        off = p * 32 * 288 + 32 * tau
        base = V2_A[buf] + 4 * k
        r.append(f"ds_read_b64_tr_b16 {vr(base,2)}, v{ad} offset:{off}")
        r.append(f"ds_read_b64_tr_b16 {vr(base+2,2)}, v{ad} offset:{off+16*288}")
    return r

def p2_bloads(a, slot, breg):
    a(f"s_add_u32 s45, s{S_J}, {slot}"); a("s_and_b32 s45, s45, 3"); a("s_add_u32 s45, s45, s44")
    a("s_lshl_b32 s45, s45, 2"); a(f"s_add_u32 s45, s45, s{S_WAVE}")
    a("s_lshl_b32 s46, s45, 13"); a("s_add_u32 s47, s46, 4096")
    for f in range(8):
        a(f"buffer_load_dwordx4 {vr(breg+4*f,4)}, v7, s[32:35], s{46 + f//4} offen offset:{(f%4)*1024} sc1")

S_NON = 52
S_FAST = 54

def get_nonce(a):
    a("s_waitcnt vmcnt(0)")
    a("v_mov_b32 v9, 0")
    a("s_mov_b32 s50, 0")
    a.label("L_nonce_chk")
    a(f"v_readfirstlane_b32 s{S_NON}, v{V_NONCE}"); a(f"v_readfirstlane_b32 s{S_NON+1}, v{V_NONCE+1}")
    a("s_nop 0")
    a(f"s_cmp_lg_u32 s{S_NON}, 0"); a("s_cbranch_scc1 L_nonce_ok")
    a(f"buffer_load_dwordx2 {vr(V_NONCE,2)}, v9, s[36:39], 0 offen sc1")
    a("s_add_u32 s50, s50, 1"); a("s_waitcnt vmcnt(0)")
    a(f"s_cmp_lt_u32 s50, {OPT['spin_max']}"); a("s_cbranch_scc1 L_nonce_chk")
    a.label("L_nonce_ok")
    a(f"s_mov_b32 s{S_FAST}, 0")
    if OPT['fast']:
        a(f"v_readfirstlane_b32 s55, v{V_CLW}")
        a(f"s_and_b32 s56, s{S_X}, 1"); a("s_lshl_b32 s56, s56, 4"); a("s_lshr_b32 s55, s55, s56")
        a("s_and_b32 s56, s55, 31")
        a("s_bfe_u32 s57, s55, 0x80005")
        a("s_bfe_u32 s55, s55, 0x3000d")
        a("s_mul_i32 s56, s56, s56"); a("s_lshl_b32 s57, s57, 2")
        a("s_cmp_eq_u32 s56, s57"); a(f"s_cselect_b32 s{S_FAST}, 1, 0")
        a("s_cmp_eq_u32 s55, 4"); a(f"s_cselect_b32 s{S_FAST}, s{S_FAST}, 0")
        if OPT['fast'] == 2: a(f"s_mov_b32 s{S_FAST}, 0")

def poll(a, tag, voff, soff, sleep=0):
    a("s_mov_b32 s50, 0")
    a.label(f"L_poll_{tag}")
    if sleep: a(f"s_sleep {sleep}")
    a(f"buffer_load_dwordx2 v[10:11], v{voff}, s[32:35], s{soff} offen sc1")
    a("s_add_u32 s50, s50, 1"); a("s_waitcnt vmcnt(0)")
    a(f"v_cmp_eq_u64 vcc, v[10:11], s[{S_NON}:{S_NON+1}]")
    a(f"s_cmp_ge_u32 s50, {OPT['spin_max']}"); a(f"s_cbranch_scc1 L_poll_{tag}_done")
    a("s_cmp_eq_u64 vcc, -1"); a(f"s_cbranch_scc0 L_poll_{tag}")
    a.label(f"L_poll_{tag}_done")

def flag_store(a, soff, mode):
    a(f"v_mov_b32 v10, s{S_NON}"); a(f"v_mov_b32 v11, s{S_NON+1}")
    a("s_mov_b64 exec, 1")
    if mode == 'dyn':
        a(f"s_cmp_eq_u32 s{S_FAST}, 0"); a("s_cbranch_scc1 L_flag_slow")
        a(f"buffer_store_dwordx2 v[10:11], v9, s[32:35], s{soff} offen")
        a("s_branch L_flag_join")
        a.label("L_flag_slow")
        a(f"buffer_store_dwordx2 v[10:11], v9, s[32:35], s{soff} offen sc1")
        a.label("L_flag_join")
    else:
        a(f"buffer_store_dwordx2 v[10:11], v9, s[32:35], s{soff} offen sc1")
    a("s_mov_b64 exec, -1")

def o_store(a):
    srd(a, 32, P_WS, SZ_WS_USED)
    a("v_lshlrev_b32 v7, 4, v0")
    a(f"s_lshl_b32 s40, s{S_G}, 5"); a(f"s_add_u32 s40, s40, s{S_H}"); a("s_lshl_b32 s40, s40, 2")
    a(f"s_add_u32 s40, s40, s{S_WAVE}"); a("s_lshl_b32 s40, s40, 13"); a("s_add_u32 s41, s40, 4096")
    global OSTORES
    OSTORES = [f"buffer_store_dwordx4 {vr(V_OF+4*f,4)}, v7, s[32:35], s{40 + f//4} offen offset:{(f%4)*1024} sc1" for f in range(8)]
    a("v_lshrrev_b32 v2, 4, v0"); a("v_bfe_u32 v3, v0, 2, 2"); a("v_lshl_add_u32 v2, v2, 2, v3")
    a("v_mul_u32_u24 v2, 288, v2"); a("v_and_b32 v3, 3, v0")
    a(f"v_lshl_add_u32 v{V2_AD[0]}, v3, 3, v2")
    for sl in range(1, 4): a(f"v_add_u32 v{V2_AD[sl]}, {sl*W_SLOT}, v{V2_AD[0]}")
    a(f"s_lshl_b32 s44, s{S_G}, 5"); a(f"s_lshl_b32 s45, s{S_X}, 2"); a("s_add_u32 s44, s44, s45")
    a(f"s_lshl_b32 s48, s{S_G}, 3"); a(f"s_add_u32 s48, s48, s{S_X}"); a("s_lshl_b32 s48, s48, 2")
    a(f"s_add_u32 s48, s48, s{S_WAVE}"); a("s_lshl_b32 s48, s48, 7"); a(f"s_add_u32 s48, s48, {WS_F}")
    a(f"s_lshl_b32 s49, s{S_J}, 3"); a("s_add_u32 s49, s49, s48")
    a("v_and_b32 v8, 3, v0"); a("v_lshlrev_b32 v8, 3, v8")

def bload_list(slot, breg):
    setup = [f"s_add_u32 s45, s{S_J}, {slot}", "s_and_b32 s45, s45, 3", "s_add_u32 s45, s45, s44",
             "s_lshl_b32 s45, s45, 2", f"s_add_u32 s45, s45, s{S_WAVE}",
             "s_lshl_b32 s46, s45, 13", "s_add_u32 s47, s46, 4096"]
    loads = [f"buffer_load_dwordx4 {vr(breg+4*f,4)}, v7, s[32:35], s{46 + f//4} offen offset:{(f%4)*1024} sc1" for f in range(8)]
    return setup, loads

def p2_run(a, hs, n0, n1, hooks_pre=None, hooks_mid=None, inject=None, spread=None):
    hooks_pre = hooks_pre or {}; hooks_mid = hooks_mid or {}; inject = inject or {}; spread = spread or {}
    for n in range(n0, n1):
        (s, p, hf) = hs[n]
        breg = V_OF if s == 0 else BUF[s - 1]
        nxt = p2_areads(*hs[n+1], buf=(n+1) & 1) if n + 1 < n1 else []
        taus = list(range(0, 5)) if hf == 0 else list(range(5, 9))
        nown = 2 * len(taus)
        nm = nown
        plan = [0] * nm
        for t in range(len(nxt)): plan[t % nm] += 1
        issued = 0; m = 0
        inj = list(inject.get(n, []))
        spr = list(spread.get(n, []))
        per = -(-len(spr) // nm) if spr else 0
        if n in hooks_pre: hooks_pre[n]()
        for k, tau in enumerate(taus):
            a(f"s_waitcnt lgkmcnt({nown - 2 * (k + 1) + issued})")
            for qt in range(2):
                d = vr(V2_ACC + (tau*2+qt)*4, 4)
                c = "0" if (s == 0 and p == 0) else d
                a(f"v_mfma_f32_16x16x32_bf16 {d}, {vr(V2_A[n & 1]+4*k,4)}, {vr(breg+(2*p+qt)*4,4)}, {c}")
                if m == 0 and n in hooks_mid: hooks_mid[n]()
                if nxt:
                    for r in nxt[issued:issued+plan[m]]: a(r)
                    issued = min(len(nxt), issued + plan[m])
                for _ in range(per):
                    if spr: a(spr.pop(0))
                m += 1
                if k >= len(taus) - 1 and inj: a(inj.pop(0))
        while inj: a(inj.pop(0))
        while spr: a(spr.pop(0))

def d_prep(a):
    a("v_bfe_u32 v13, v0, 1, 3"); a("v_mul_u32_u24 v13, 9216, v13")
    a("v_lshrrev_b32 v14, 4, v0"); a("v_lshlrev_b32 v14, 1, v14"); a("v_and_b32 v15, 1, v0")
    a("v_add_u32 v14, v14, v15"); a("v_lshl_add_u32 v13, v14, 4, v13")
    a(f"s_lshl_b32 s58, s{S_G}, 2"); a(f"s_add_u32 s58, s58, s{S_J}"); a("s_lshl_b32 s58, s58, 2")
    a(f"s_add_u32 s58, s58, s{S_WAVE}")
    a("s_mul_i32 s59, s58, 73728"); a(f"s_add_u32 s59, s59, {WS_D}")
    a(f"s_mul_i32 s40, s{S_X}, 1152"); a("s_add_u32 s40, s40, s59")

def d_pack_store(tau, G=160):
    r = []
    for qt in range(2):
        for h2 in range(2):
            src = V2_ACC + (tau*2+qt)*4 + 2*h2
            r.append(f"v_cvt_pk_bf16_f32 v{G+4*tau+2*qt+h2}, v{src}, v{src+1}")
    r.append(f"buffer_store_dwordx4 {vr(G+4*tau,4)}, v13, s[32:35], s40 offen offset:{128*tau} sc1")
    return r

def tail(a):
    hs = [(s, p, hf) for s in range(3) for p in range(4) for hf in range(2)]
    hs += [(3, p, 0) for p in range(4)] + [(3, p, 1) for p in range(4)]
    o_store(a)
    stamp(a, 6)
    for x in OSTORES: a(x)
    for r in p2_areads(*hs[0], buf=0): a(r)
    def exch():
        a("s_waitcnt vmcnt(0)")
        flag_store(a, 49, 'dyn')
        stamp(a, 7)
        if OPT.get('pollin', 1):
            poll(a, "o", 8, 48, sleep=OPT.get('o_sleep', 0))
            stamp(a, 8)
            p2_bloads(a, 1, BUF[0])
        a("s_nop 3")
    p2_run(a, hs, 0, 8, hooks_pre={OPT.get('flagpos', 4): exch})
    if not OPT.get('pollin', 1):
        poll(a, "o", 8, 48, sleep=OPT.get('o_sleep', 0))
        stamp(a, 8)
        p2_bloads(a, 1, BUF[0])
    a("s_barrier")
    tstamp(a, 1)
    for r in p2_areads(*hs[8], buf=0): a(r)
    su2, l2 = bload_list(2, BUF[1]); su3, l3 = bload_list(3, BUF[2])
    for x in su2: a(x)
    d_prep(a)
    inj = {}
    for t in range(4):
        inj[8 + t] = l2[2*t:2*t+2]
        inj[16 + t] = l3[2*t:2*t+2]
    inj[15] = su3
    a("s_waitcnt vmcnt(0)")
    tstamp(a, 2)
    spr = {29: d_pack_store(0) + d_pack_store(1), 30: d_pack_store(2) + d_pack_store(3), 31: d_pack_store(4)}
    p2_run(a, hs, 8, 32,
           hooks_pre={16: lambda: a("s_waitcnt vmcnt(0)"), 24: lambda: a("s_waitcnt vmcnt(0)")},
           hooks_mid={15: lambda: a("s_barrier"), 23: lambda: a("s_barrier")},
           inject=inj, spread=spr)
    stamp(a, 9)
    reduce_inkernel(a)

def store_partials_f32(a):
    a("s_nop 7")
    a(f"s_lshl_b32 s45, s{S_X}, 3"); a(f"s_add_u32 s45, s45, s{S_G}"); a("s_lshl_b32 s45, s45, 2")
    a(f"s_add_u32 s45, s45, s{S_J}"); a("s_lshl_b32 s45, s45, 2"); a(f"s_add_u32 s45, s45, s{S_WAVE}")
    a(f"s_mul_i32 s45, s45, {18*1024}"); a(f"s_add_u32 s45, s45, {WS_P}")
    for u in range(18):
        if u and u % 4 == 0: a("s_add_u32 s45, s45, 4096")
        a(f"buffer_store_dwordx4 {vr(V2_ACC+4*u,4)}, v7, s[32:35], s45 offen offset:{(u%4)*1024}")

def store_partials_bf16(a):
    G = 160
    a(f"s_lshl_b32 s44, s{S_G}, 2"); a(f"s_add_u32 s44, s44, s{S_J}"); a("s_lshl_b32 s44, s44, 2")
    a(f"s_add_u32 s44, s44, s{S_WAVE}")
    a(f"s_lshl_b32 s45, s{S_X}, 7"); a("s_add_u32 s45, s45, s44"); a("s_mul_i32 s45, s45, 9216")
    a(f"s_add_u32 s45, s45, {WS_P}"); a("s_add_u32 s46, s45, 4096"); a("s_add_u32 s47, s45, 8192")
    sc = " sc1" if OPT.get('psc1', 1) else ""
    for tau in range(9):
        for qt in range(2):
            for h2 in range(2):
                src = V2_ACC + (tau*2+qt)*4 + 2*h2
                a(f"v_cvt_pk_bf16_f32 v{G+4*tau+2*qt+h2}, v{src}, v{src+1}")
        a(f"buffer_store_dwordx4 {vr(G+4*tau,4)}, v7, s[32:35], s{45 + tau//4} offen offset:{(tau%4)*1024}{sc}")

def kernel3b(a):
    name = "mha_p3_kernel"
    a(".p2align 8"); a(f".globl {name}"); a(f".type {name},@function"); a.label(name)
    a("s_cmp_ge_u32 s2, 288"); a(f"s_cbranch_scc1 L_end_{name}")
    a("s_load_dwordx2 s[26:27], s[0:1], 40"); a("s_load_dwordx2 s[30:31], s[0:1], 56")
    a("v_lshrrev_b32 v1, 6, v0"); a("v_and_b32 v0, 63, v0")
    a("s_lshl_b32 s5, s2, 2")
    a(f"v_readfirstlane_b32 s{S_WAVE}, v1")
    a("v_lshlrev_b32 v1, 4, v0")
    a(f"s_add_u32 s5, s5, s{S_WAVE}")
    a("s_mul_i32 s45, s5, 1024"); a(f"s_add_u32 s45, s45, {WS_P}")
    a("s_mul_hi_u32 s6, s5, 477218589")
    a("s_mul_i32 s7, s6, 9"); a("s_sub_u32 s7, s5, s7")
    a("s_waitcnt lgkmcnt(0)")
    srd(a, 32, P_WS, SZ_WS_USED); srd(a, 36, P_OUT, SZ_OUT)
    for x in range(8):
        a(f"buffer_load_dwordx4 {vr(8+4*x,4)}, v1, s[32:35], s45 offen")
        if x < 7: a(f"s_add_u32 s45, s45, {128*9216}")
    a("v_and_b32 v2, 15, v0"); a("v_mul_u32_u24 v2, 1152, v2"); a("v_lshrrev_b32 v3, 4, v0")
    a("v_lshl_add_u32 v2, v3, 3, v2")
    a("s_lshr_b32 s46, s6, 4"); a("s_lshl_b32 s46, s46, 2"); a("s_and_b32 s47, s6, 3"); a("s_add_u32 s46, s46, s47")
    a(f"s_mul_i32 s46, s46, {32*1152}")
    a("s_lshr_b32 s47, s6, 2"); a("s_and_b32 s47, s47, 3"); a("s_mul_i32 s47, s47, 288"); a("s_add_u32 s46, s46, s47")
    a("s_lshl_b32 s47, s7, 5"); a("s_add_u32 s46, s46, s47"); a(f"s_add_u32 s47, s46, {16*1152}")
    for x in range(8):
        a(f"s_waitcnt vmcnt({7-x})")
        for d in range(4):
            src = 8 + 4*x + d
            if x == 0:
                a(f"v_lshlrev_b32 v{40+2*d}, 16, v{src}"); a(f"v_and_b32 v{40+2*d+1}, 0xffff0000, v{src}")
            else:
                a(f"v_lshlrev_b32 v48, 16, v{src}"); a(f"v_and_b32 v49, 0xffff0000, v{src}")
                a(f"v_pk_add_f32 v[{40+2*d}:{40+2*d+1}], v[{40+2*d}:{40+2*d+1}], v[48:49]")
    for d in range(4): a(f"v_cvt_pk_bf16_f32 v{50+d}, v{40+2*d}, v{40+2*d+1}")
    a("buffer_store_dwordx2 v[50:51], v2, s[36:39], s46 offen")
    a("buffer_store_dwordx2 v[52:53], v2, s[36:39], s47 offen")
    a.label(f"L_end_{name}")
    a("s_endpgm")

def reduce_inkernel(a):
    G = 160; R1 = 196; R2 = 88
    a("s_nop 7")
    for tau in range(5, 9):
        for x in d_pack_store(tau): a(x)
    a("s_lshl_b32 s48, s58, 7"); a(f"s_add_u32 s48, s48, {WS_F2}")
    a(f"s_lshl_b32 s49, s{S_X}, 3"); a("s_add_u32 s49, s49, s48")
    a("v_and_b32 v8, 7, v0"); a("v_lshlrev_b32 v8, 3, v8")
    a("v_and_b32 v14, 1, v0"); a("v_mul_u32_u24 v14, 1152, v14")
    a("v_bfe_u32 v15, v0, 1, 2"); a("v_lshl_add_u32 v14, v15, 3, v14")
    a("v_add_u32 v15, 256, v14")
    a("v_lshrrev_b32 v12, 3, v0"); a("v_lshl_add_u32 v14, v12, 5, v14")
    srd(a, 36, P_OUT, SZ_OUT)
    a(f"s_lshl_b32 s56, s{S_G}, 2"); a(f"s_add_u32 s56, s56, s{S_WAVE}"); a("s_lshl_b32 s56, s56, 5")
    a(f"s_lshl_b32 s57, s{S_X}, 1"); a("s_add_u32 s56, s56, s57"); a("s_mul_i32 s56, s56, 1152")
    a(f"s_mul_i32 s57, s{S_J}, 288"); a("s_add_u32 s56, s56, s57")
    a(f"s_add_u32 s57, s56, {16*1152}")
    a(f"s_mul_i32 s47, s{S_X}, 9216"); a("s_add_u32 s47, s47, s59")
    a("s_waitcnt vmcnt(0)")
    flag_store(a, 49, 'sc1')
    stamp(a, 10)
    poll(a, "d", 8, 48, sleep=OPT.get('d_sleep', 0))
    stamp(a, 11)
    for sx in range(8):
        a(f"buffer_load_dwordx4 {vr(R1+4*sx,4)}, v7, s[32:35], s47 offen sc1")
        if sx < 7: a("s_add_u32 s47, s47, 1152")
    a(f"s_sub_u32 s47, s47, {7*1152}")
    a("s_mov_b64 exec, 0xff")
    for sx in range(8):
        a(f"buffer_load_dwordx4 {vr(R2+4*sx,4)}, v7, s[32:35], s47 offen offset:1024 sc1")
        if sx < 7: a("s_add_u32 s47, s47, 1152")
    a("s_mov_b64 exec, -1")
    A1 = 16; A2 = 24; T = 32
    def summ(R, A, waitbase):
        for sx in range(8):
            a(f"s_waitcnt vmcnt({waitbase - sx})")
            for d in range(4):
                src = R + 4*sx + d
                if sx == 0:
                    a(f"v_lshlrev_b32 v{A+2*d}, 16, v{src}"); a(f"v_and_b32 v{A+2*d+1}, 0xffff0000, v{src}")
                else:
                    t = T + 2 * (d & 1)
                    a(f"v_lshlrev_b32 v{t}, 16, v{src}"); a(f"v_and_b32 v{t+1}, 0xffff0000, v{src}")
                    a(f"v_pk_add_f32 v[{A+2*d}:{A+2*d+1}], v[{A+2*d}:{A+2*d+1}], v[{t}:{t+1}]")
    fl = {0: "", 1: " sc1", 2: " nt", 3: " sc0 sc1"}[OPT.get('outfl', 0)]
    summ(R1, A1, 15)
    for d in range(4): a(f"v_cvt_pk_bf16_f32 v{36+d}, v{A1+2*d}, v{A1+2*d+1}")
    summ(R2, A2, 7)
    a(f"buffer_store_dwordx2 v[36:37], v14, s[36:39], s56 offen{fl}")
    a(f"buffer_store_dwordx2 v[38:39], v14, s[36:39], s57 offen{fl}")
    for d in range(4): a(f"v_cvt_pk_bf16_f32 v{40+d}, v{A2+2*d}, v{A2+2*d+1}")
    a("s_mov_b64 exec, 0xff")
    a(f"buffer_store_dwordx2 v[40:41], v15, s[36:39], s56 offen{fl}")
    a(f"buffer_store_dwordx2 v[42:43], v15, s[36:39], s57 offen{fl}")
    a("s_mov_b64 exec, -1")

def KNAME():
    return "standalone__mha_block_cached__near_ridge_kernel" if OPT['dk'] else "mha_a_kernel"

def kernelA(a):
    global KIDX
    KIDX = 0
    name = KNAME()
    prologue(a, name)
    stamp_init(a); stamp(a, 0); cstamp(a, 14)
    a(f"s_cmp_lt_u32 s{S_WAVE}, 4"); a("s_cbranch_scc1 L_a_compute")
    a(f"s_cmp_eq_u32 s{S_WAVE}, 6"); a("s_cbranch_scc1 L_a_ldk")
    a(f"s_cmp_eq_u32 s{S_WAVE}, 4"); a("s_cbranch_scc1 L_a_ldwq")
    a(f"s_cmp_eq_u32 s{S_WAVE}, 5"); a("s_cbranch_scc1 L_a_ldx")
    loader_v(a); stamp_flush(a); a("s_endpgm")
    a.label("L_a_ldk"); loader_k(a); stamp_flush(a); a("s_endpgm")
    a.label("L_a_ldwq"); loader_ring(a, 'wq'); stamp_flush(a); a("s_endpgm")
    a.label("L_a_ldx"); loader_ring(a, 'x'); stamp_flush(a); a("s_endpgm")
    a.label("L_a_compute")
    CUR['compute'] = True
    srd(a, 36, P_DBG, 256)
    gemm1_addrs(a); attn_addrs(a)
    a("v_mov_b32 v1, 0")
    a(f"s_lshl_b32 s40, s{S_G}, 3"); a(f"s_add_u32 s40, s40, s{S_X}"); a("s_lshr_b32 s40, s40, 1")
    a("s_lshl_b32 s40, s40, 2"); a("s_add_u32 s40, s40, 128")
    srd(a, 44, P_WS, SZ_WS_USED)
    a(f"s_lshl_b32 s42, s{S_G}, 3"); a(f"s_add_u32 s42, s42, s{S_X}"); a("s_lshl_b32 s42, s42, 2")
    a(f"s_add_u32 s42, s42, s{S_WAVE}"); a("s_lshl_b32 s42, s42, 7"); a(f"s_add_u32 s42, s42, {WS_F}")
    gemm1(a); get_nonce(a); stamp(a, 2)
    attention(a); stamp(a, 5)
    tail(a)
    if OPT['stamps']: a("s_waitcnt vmcnt(0)")
    stamp(a, 12); cstamp(a, 15); stamp_flush(a)
    if OPT.get('waitx', 0):
        a("s_waitcnt vmcnt(0)")
        a(f"s_add_u32 s62, s{S_NON}, {OPT['waitx']}")
        a("s_mov_b32 s63, 0")
        a.label("L_wx_spin")
        a("s_memrealtime s[64:65]"); a("s_waitcnt lgkmcnt(0)")
        a("s_add_u32 s63, s63, 1"); a("s_cmp_gt_u32 s63, 100000"); a("s_cbranch_scc1 L_wx_done")
        a("s_sub_u32 s66, s62, s64"); a("s_cmp_gt_i32 s66, 0"); a("s_cbranch_scc1 L_wx_spin")
        a.label("L_wx_done")
    if OPT.get('probe', -1) >= 0:
        a("s_waitcnt vmcnt(0)")
        a(f"s_sub_u32 s62, s60, s{S_NON}"); a(f"s_mul_i32 s62, s62, {OPT.get('probek', 8)}")
        a("s_memrealtime s[64:65]"); a("s_waitcnt lgkmcnt(0)")
        a("s_add_u32 s62, s62, s64")
        a("s_mov_b32 s63, 0")
        a.label("L_probe_spin")
        a("s_memrealtime s[64:65]"); a("s_waitcnt lgkmcnt(0)")
        a("s_add_u32 s63, s63, 1"); a("s_cmp_gt_u32 s63, 100000"); a("s_cbranch_scc1 L_probe_done")
        a("s_sub_u32 s66, s62, s64"); a("s_cmp_gt_i32 s66, 0"); a("s_cbranch_scc1 L_probe_spin")
        a.label("L_probe_done")
    a.label(f"L_end_{name}")
    a("s_endpgm")

def kernel3(a):
    global KIDX
    KIDX = 1
    name = "mha_p3_kernel"
    a(".p2align 8"); a(f".globl {name}"); a(f".type {name},@function"); a.label(name)
    a("s_cmp_ge_u32 s2, 256"); a(f"s_cbranch_scc1 L_end_{name}")
    a("s_load_dwordx16 s[16:31], s[0:1], 0")
    a("v_lshrrev_b32 v1, 6, v0"); a("v_and_b32 v0, 63, v0")
    a("s_lshr_b32 s5, s2, 1")
    a("s_and_b32 s6, s2, 1")
    a(f"v_readfirstlane_b32 s{S_WAVE}, v1")
    a("s_mul_i32 s6, s6, 9")
    a("s_waitcnt lgkmcnt(0)")
    stamp_init(a); stamp(a, 0); cstamp(a, 14)
    a(f"s_add_u32 s6, s6, s{S_WAVE}")
    srd(a, 32, P_WS, SZ_WS_USED); srd(a, 36, P_OUT, SZ_OUT)
    a("v_lshlrev_b32 v1, 4, v0")
    a("s_mul_i32 s45, s5, 18"); a("s_add_u32 s45, s45, s6"); a("s_lshl_b32 s45, s45, 10")
    a(f"s_add_u32 s45, s45, {WS_P}")
    for x in range(8):
        a(f"buffer_load_dwordx4 {vr(8+4*x,4)}, v1, s[32:35], s45 offen")
        if x < 7: a(f"s_add_u32 s45, s45, {128*18*1024}")
    a("v_and_b32 v2, 15, v0"); a("v_mul_u32_u24 v2, 1152, v2"); a("v_lshrrev_b32 v3, 4, v0")
    a("v_lshl_add_u32 v2, v3, 3, v2")
    a("s_lshr_b32 s46, s5, 4"); a("s_lshl_b32 s46, s46, 2"); a("s_and_b32 s47, s5, 3"); a("s_add_u32 s46, s46, s47")
    a(f"s_mul_i32 s46, s46, {32*1152}")
    a("s_lshr_b32 s47, s5, 2"); a("s_and_b32 s47, s47, 3"); a("s_mul_i32 s47, s47, 288"); a("s_add_u32 s46, s46, s47")
    a("s_and_b32 s47, s6, 1"); a(f"s_mul_i32 s47, s47, {16*1152}"); a("s_add_u32 s46, s46, s47")
    a("s_lshr_b32 s47, s6, 1"); a("s_lshl_b32 s47, s47, 5"); a("s_add_u32 s46, s46, s47")
    a("s_waitcnt vmcnt(0)")
    for v in range(4):
        for x in range(0, 8, 2): a(f"v_add_f32 v{8+4*x+v}, v{8+4*x+v}, v{12+4*x+v}")
    for v in range(4):
        a(f"v_add_f32 v{8+v}, v{8+v}, v{16+v}"); a(f"v_add_f32 v{24+v}, v{24+v}, v{32+v}")
    for v in range(4): a(f"v_add_f32 v{8+v}, v{8+v}, v{24+v}")
    a("v_cvt_pk_bf16_f32 v8, v8, v9"); a("v_cvt_pk_bf16_f32 v9, v10, v11")
    a("buffer_store_dwordx2 v[8:9], v2, s[36:39], s46 offen")
    if OPT['stamps']:
        a("s_waitcnt vmcnt(0)")
        stamp(a, 10); cstamp(a, 15)
        a(f"s_cmp_ge_u32 s{S_WAVE}, 8"); a("s_cbranch_scc1 L_end_mha_p3_kernel")
        stamp_flush(a, 44)
    a.label(f"L_end_{name}")
    a("s_endpgm")

def descriptor(a, name, vgpr, sgpr=102):
    a(f".amdhsa_kernel {name}")
    a(f".amdhsa_next_free_vgpr {vgpr}"); a(f".amdhsa_next_free_sgpr {sgpr}"); a(f".amdhsa_accum_offset {vgpr}")
    a(".amdhsa_group_segment_fixed_size 0"); a(".amdhsa_kernarg_size 64")
    a(".amdhsa_user_sgpr_count 2"); a(".amdhsa_user_sgpr_kernarg_segment_ptr 1")
    a(".amdhsa_system_sgpr_workgroup_id_x 1"); a(".end_amdhsa_kernel")

def main():
    out = sys.argv[1]
    for arg in sys.argv[2:]:
        if arg == "--stamps": OPT['stamps'] = True
        elif "=" in arg:
            k, v = arg.lstrip("-").split("="); OPT[k] = int(v)
    a = Asm()
    hdr = "; MHA block (Q-proj + attention + out-proj), generated by gen3.py\n"
    if OPT['dk']:
        hdr += "; @launch grid=(256,1,1) block=(512,1,1) lds=163840\n"
    else:
        hdr += "; @launch kernel=mha_a_kernel grid=(256,1,1) block=(512,1,1) lds=163840\n"
        if OPT.get('k3bf', 0): hdr += "; @launch kernel=mha_p3_kernel grid=(288,1,1) block=(256,1,1) lds=0\n"
        else: hdr += "; @launch kernel=mha_p3_kernel grid=(256,1,1) block=(576,1,1) lds=0\n"
    a('.amdgcn_target "amdgcn-amd-amdhsa--gfx950"'); a(".text")
    kernelA(a)
    if not OPT['dk']:
        if OPT.get('k3bf', 0): kernel3b(a)
        else: kernel3(a)
    a('.section .rodata,"a"'); a(".p2align 6"); descriptor(a, KNAME(), 256)
    if not OPT['dk']:
        a(".p2align 6"); descriptor(a, "mha_p3_kernel", 56)
    open(out, "w").write(hdr + a.text())

if __name__ == "__main__": main()
```

```python
import sys, struct

class Asm:
    def __init__(self): self.l = []
    def __call__(self, s=""):
        for x in s.split("\n"):
            x = x.strip()
            self.l.append(x if (x.endswith(":") or x.startswith(".")) else "  " + x)
    def label(self, s): self.l.append(s + ":")
    def text(self): return "\n".join(self.l) + "\n"

def vr(b, n=1): return f"v{b}" if n == 1 else f"v[{b}:{b+n-1}]"
def f32hex(x): return "0x%08x" % struct.unpack("<I", struct.pack("<f", x))[0]

P_X, P_K, P_V, P_WQ, P_WO, P_OUT, P_DBG, P_WS = 16, 18, 20, 22, 24, 26, 28, 30
SZ_X, SZ_KV, SZ_W, SZ_OUT = 1179648, 8388608, 4718592, 1179648
WS_O = 0
WS_P = 8 << 20
WS_F = 28 << 20
WS_F2 = (28 << 20) + (1 << 19)
WS_D = 8 << 20
WS_STAMP = 32 << 20
SZ_WS_USED = 64 << 20
S_WAVE, S_X, S_R, S_J, S_G, S_H = 3, 4, 5, 6, 9, 10

OPT = dict(stamps=False, fast=1, spin_max=2000000, kvmode=20, flagpos=3, xonce=1, vearly=1, woearly=1, d_sleep=3, o_sleep=1, k_nt=1, v_nt=1, wot_pos=8, dk=1)

def srd(a, base, ptr, size, add=0):
    if add:
        a(f"s_add_u32 s{base}, s{ptr}, {add}"); a(f"s_addc_u32 s{base+1}, s{ptr+1}, 0")
        a(f"s_and_b32 s{base+1}, s{base+1}, 0xffff")
    else:
        a(f"s_mov_b32 s{base}, s{ptr}"); a(f"s_and_b32 s{base+1}, s{ptr+1}, 0xffff")
    a(f"s_mov_b32 s{base+2}, {size}"); a(f"s_mov_b32 s{base+3}, 0x00020000")

def prologue(a, name, nwg=256):
    a(".p2align 8"); a(f".globl {name}"); a(f".type {name},@function"); a.label(name)
    a(f"s_cmp_ge_u32 s2, {nwg}"); a(f"s_cbranch_scc1 L_end_{name}")
    if OPT['stamps'] and OPT.get('entrystamp', 0): a("s_memrealtime s[96:97]")
    a("s_load_dwordx16 s[16:31], s[0:1], 0")
    a("v_lshrrev_b32 v1, 6, v0"); a("v_and_b32 v0, 63, v0")
    a(f"s_and_b32 s{S_X}, s2, 7"); a(f"s_lshr_b32 s{S_R}, s2, 3")
    a(f"v_readfirstlane_b32 s{S_WAVE}, v1")
    a(f"s_and_b32 s{S_J}, s{S_R}, 3"); a(f"s_lshr_b32 s{S_G}, s{S_R}, 2")
    a(f"s_lshl_b32 s{S_H}, s{S_X}, 2"); a(f"s_add_u32 s{S_H}, s{S_H}, s{S_J}")
    if OPT['stamps'] or not OPT.get('latewait', 1): a("s_waitcnt lgkmcnt(0)")

def kwait(a):
    if not OPT['stamps'] and OPT.get('latewait', 1): a("s_waitcnt lgkmcnt(0)")

KIDX = 0
CUR = {}
def tstamp(a, idx):
    if OPT.get('tailstamps', 0): stamp(a, idx, force=True)
def stamp(a, idx, force=False):
    if OPT.get('probe', -1) == idx and CUR.get('compute') and (force or not (OPT.get('tailstamps', 0) and idx in (1,2,3,4,13))):
        a("s_memrealtime s[60:61]"); a("s_waitcnt lgkmcnt(0)")
        return
    if not OPT['stamps']: return
    if OPT.get('tailstamps', 0) and not force and idx in (1,2,3,4,13) and CUR.get('compute'): return
    a(f"s_memrealtime s[{60+2*idx}:{61+2*idx}]"); a("s_waitcnt lgkmcnt(0)")
def cstamp(a, idx):
    if not OPT['stamps']: return
    a(f"s_memtime s[{60+2*idx}:{61+2*idx}]"); a("s_waitcnt lgkmcnt(0)")
def stamp_init(a):
    if not OPT['stamps']: return
    for i in range(16): a(f"s_mov_b64 s[{60+2*i}:{61+2*i}], 0")
def stamp_flush(a, vb=250):
    if not OPT['stamps']: return
    srd(a, 92, P_WS, 256*16*16*8, add=WS_STAMP + KIDX*256*8*16*8)
    a("s_lshl_b32 s96, s2, 3"); a(f"s_add_u32 s96, s96, s{S_WAVE}"); a("s_lshl_b32 s96, s96, 7")
    a(f"v_mov_b32 v{vb+2}, 0")
    for i in range(16):
        a(f"v_mov_b32 v{vb}, s{60+2*i}"); a(f"v_mov_b32 v{vb+1}, s{61+2*i}")
        a(f"buffer_store_dwordx2 v[{vb}:{vb+1}], v{vb+2}, s[92:95], s96 offen offset:{i*8}")
        a("s_nop 1")
    a("s_waitcnt vmcnt(0)")

L_K = 98304; L_V = 131072; NCH = 9
W_SLOT = 36864

def dma(a, voff, srdb, soff, off=0, nt=False):
    a(f"buffer_load_dwordx4 v{voff}, s[{srdb}:{srdb+3}], s{soff} offen" + (f" offset:{off}" if off else "") + (" nt" if nt else "") + " lds")

V_WOV = 16
def wo_prep(a):
    srd(a, 52, P_WO, SZ_W)
    for t in range(9):
        a(f"v_add_u32 v1, {64*t}, v0")
        a("v_mul_u32_u24 v2, 3641, v1")
        a("v_lshrrev_b32 v2, 16, v2")
        a("v_mul_u32_u24 v3, 18, v2")
        a("v_sub_u32 v3, v1, v3")
        a("v_lshlrev_b32 v3, 4, v3")
        a("v_mul_u32_u24 v2, 1152, v2")
        a(f"v_add_u32 v{V_WOV+t}, v2, v3")
    a(f"s_mul_i32 s56, s{S_J}, 288")
def wo_issue(a, slot, q0, nq):
    a(f"s_add_u32 s57, s{S_J}, {slot}"); a("s_and_b32 s57, s57, 3")
    a(f"s_lshl_b32 s58, s{S_X}, 2"); a("s_add_u32 s57, s57, s58")
    a(f"s_mul_i32 s57, s57, {128*1152}"); a("s_add_u32 s57, s57, s56")
    if q0: a(f"s_add_u32 s57, s57, {q0*32*1152}")
    a(f"s_mov_b32 m0, {slot*W_SLOT + q0*32*288}"); a("s_nop 0")
    for blk in range(nq):
        for t in range(9):
            dma(a, V_WOV + t, 52, 57)
            if not (blk == nq - 1 and t == 8):
                a("s_add_u32 m0, m0, 1024")
                if t == 8: a(f"s_add_u32 s57, s57, {32*1152}")
                else: a("s_nop 0")

def loader_tail(a, role):
    a("s_barrier")
    stamp(a, 8)
    if role < 2:
        wo_issue(a, 0, 2 * role, 2); wo_issue(a, 1, 2 * role, 2)
    stamp(a, 9)
    if OPT.get('vearly', 0):
        if role < 2: a("s_waitcnt vmcnt(18)")
        a("s_barrier")
    else:
        if role == 3: a("s_waitcnt vmcnt(0)")
        a("s_barrier")
        if role < 2: a("s_waitcnt vmcnt(18)")
        a("s_barrier")
    if OPT.get('woearly', 0):
        wo_issue(a, 2, role, 1)
        wo_issue(a, 3, role, 1)
        stamp(a, 10)
        if role < 2: a("s_waitcnt vmcnt(18)")
        a("s_barrier")
    else:
        if role < 2: a("s_waitcnt vmcnt(0)")
        a("s_barrier")
        wo_issue(a, 2, role, 1)
        wo_issue(a, 3, role, 1)
        stamp(a, 10)
    a("s_waitcnt vmcnt(9)")
    a("s_barrier")
    a("s_waitcnt vmcnt(0)")
    stamp(a, 11)
    a("s_barrier")

def loader_ring(a, which):
    SRD = 32; SO = 40
    if which == 'wq':
        a("v_lshrrev_b32 v1, 4, v0"); a("v_and_b32 v2, 15, v0")
        a("v_lshlrev_b32 v3, 2, v1"); a("v_xor_b32 v3, v3, v2"); a("v_lshlrev_b32 v3, 4, v3")
        a("v_lshlrev_b32 v4, 13, v1"); a("v_add_u32 v4, v4, v3")
        a(f"s_lshl_b32 s{SO}, s{S_H}, 8")
        def issue(kc):
            a(f"s_mov_b32 m0, {(kc%3)*32768}")
            for t in range(16):
                if t == 0: a("s_nop 0")
                dma(a, 4, SRD, SO)
                a(f"s_add_u32 s{SO}, s{SO}, 32768")
                if t < 15:
                    a("s_add_u32 m0, m0, 1024"); a("s_nop 0")
    else:
        a("v_lshrrev_b32 v1, 3, v0"); a("v_mul_u32_u24 v1, 1152, v1")
        a("v_and_b32 v2, 7, v0"); a("v_lshrrev_b32 v3, 4, v0"); a("v_xor_b32 v2, v2, v3")
        a("v_lshlrev_b32 v4, 4, v2"); a("v_add_u32 v4, v4, v1")
        a("v_xor_b32 v2, 4, v2"); a("v_lshlrev_b32 v5, 4, v2"); a("v_add_u32 v5, v5, v1")
        a(f"s_mul_i32 s{SO+1}, s{S_G}, 147456")
        def issue(kc):
            a(f"s_mov_b32 m0, {(kc%3)*32768 + 16384}")
            a(f"s_add_u32 s{SO}, s{SO+1}, {kc*128}")
            for T in range(16):
                dma(a, 4 + (T & 1), SRD, SO)
                if T < 15:
                    a("s_add_u32 m0, m0, 1024"); a(f"s_add_u32 s{SO}, s{SO}, 9216")
    kv_pos(a, 43, 'k')
    if which == 'wq':
        a("v_lshrrev_b32 v8, 1, v0"); a("v_and_b32 v9, 1, v0")
        a("v_lshlrev_b32 v8, 13, v8"); a("v_lshl_add_u32 v8, v9, 7, v8")
        a(f"s_lshl_b32 s46, s{S_G}, {5+13}"); a(f"s_lshl_b32 s47, s{S_H}, 8"); a("s_add_u32 s46, s46, s47")
        def touch(part):
            if part == 0:
                a(f"buffer_load_dword v10, v8, s[{SRD}:{SRD+3}], s46 offen")
            else:
                a(f"s_add_u32 s46, s46, {256*8192}")
                a(f"buffer_load_dword v10, v8, s[{SRD}:{SRD+3}], s46 offen")
                a(f"s_lshl_b32 s46, s{S_G}, {3+13}"); a("s_add_u32 s46, s46, s47"); a(f"s_add_u32 s46, s46, {512*8192}")
                a("s_mov_b64 exec, 0xffff")
                a(f"buffer_load_dword v10, v8, s[{SRD}:{SRD+3}], s46 offen")
                a("s_mov_b64 exec, -1")
        NT1 = 2
    else:
        if OPT.get('xonce', 0):
            a("v_mul_u32_u24 v8, 7282, v0"); a("v_lshrrev_b32 v8, 16, v8")
            a("v_mul_u32_u24 v9, 9, v8"); a("v_sub_u32 v9, v0, v9")
            a("v_mul_u32_u24 v8, 1152, v8"); a("v_lshl_add_u32 v8, v9, 7, v8")
            a(f"s_mul_i32 s46, s{S_G}, 147456"); a(f"s_mul_i32 s47, s{S_H}, {4*1152}"); a("s_add_u32 s46, s46, s47")
            def touch(part):
                if part == 0:
                    a("s_mov_b32 exec_lo, -1"); a("s_mov_b32 exec_hi, 15")
                    a(f"buffer_load_dword v10, v8, s[{SRD}:{SRD+3}], s46 offen")
                    a("s_mov_b64 exec, -1")
            NT1 = 0
        else:
            a("v_and_b32 v9, 31, v0"); a("v_mul_u32_u24 v9, 1152, v9")
            a("v_lshrrev_b32 v8, 5, v0"); a("v_lshl_add_u32 v8, v8, 7, v9")
            a(f"s_mul_i32 s46, s{S_G}, 147456"); a(f"s_mul_i32 s47, s{S_J}, {32*1152}"); a("s_add_u32 s46, s46, s47")
            def touch(part):
                if part == 0:
                    a(f"buffer_load_dword v10, v8, s[{SRD}:{SRD+3}], s46 offen")
                else:
                    for t in range(1, 4):
                        a(f"buffer_load_dword v10, v8, s[{SRD}:{SRD+3}], s46 offen offset:{256*t}")
                    a("s_mov_b64 exec, 0xffffffff")
                    a(f"buffer_load_dword v10, v9, s[{SRD}:{SRD+3}], s46 offen offset:1024")
                    a("s_mov_b64 exec, -1")
            NT1 = 4
    kwait(a)
    srd(a, SRD, P_WQ if which == 'wq' else P_X, SZ_W if which == 'wq' else SZ_X)
    touch(0)
    issue(0); stamp(a, 1)
    touch(1)
    a("s_barrier")
    bx(a, -1, "r" + which)
    issue(1)
    stamp(a, 2)
    a(f"s_waitcnt vmcnt({16 + NT1})")
    stamp(a, 3)
    a("s_barrier")
    bx(a, 0, "r" + which)
    issue(2)
    for i in range(1, NCH):
        last_issued = min(i + 1, NCH - 1)
        a(f"s_waitcnt vmcnt({(last_issued - i) * 16})")
        a("s_barrier")
        if which == 'wq' and i in (1,2,3,4): stamp(a, {1:4,2:5,3:6,4:12}[i])
        if which == 'x' and i in (5,6,7,8): stamp(a, {5:4,6:5,7:6,8:12}[i])
        if i < 8: bx(a, i, "r" + which)
        if i + 2 < NCH: issue(i + 2)
        if i == 7: wo_prep(a)
    stamp(a, 7)
    loader_tail(a, 0 if which == 'wq' else 1)

def kv_pos(a, sdst, which):
    m = OPT['kvmode']
    if m == 10:
        tab = [-1, 2, 4, 7]
    elif m == 11: tab = [7, 7, 7, 7]
    elif m == 12: tab = [-1, -1, -1, -1]
    elif m == 13: tab = [1, 1, 6, 6]
    elif m == 14: tab = [-1, 1, 4, 7]
    elif m == 15: tab = [0, 3, 5, 7]
    elif m == 16: tab = [2, 7, 2, 7]
    elif m == 17: tab = [3, 5, 7, 7]
    elif m == 20: tab = [-1, 1, 3, 5]
    elif m == 21: tab = [-1, 2, 4, 6]
    elif m == 22: tab = [-1, -1, 3, 3]
    elif m == 23: tab = [-1, 0, 2, 4]
    elif m == 24: tab = [0, 2, 4, 6]
    elif m == 25: tab = [-1, -1, -1, -1]
    packed = sum(((p + 1) & 15) << (4 * k) for k, p in enumerate(tab))
    a(f"s_and_b32 s{sdst}, s{S_G}, 3"); a(f"s_lshl_b32 s{sdst}, s{sdst}, 2")
    a(f"s_lshr_b32 s{sdst}, {packed}, s{sdst}"); a(f"s_and_b32 s{sdst}, s{sdst}, 15")

def bx(a, p, tag):
    if p >= 6: return
    a(f"s_cmp_lg_u32 s43, {p+1}"); a(f"s_cbranch_scc1 L_bx_{tag}_{p+1}")
    a("s_barrier")
    a.label(f"L_bx_{tag}_{p+1}")

def kv_loop(a, tag, issue_fn, extra_fn=None, extra_pos=None):
    a("s_mov_b32 s59, 0")
    a.label(f"L_{tag}_loop")
    a("s_cmp_lg_u32 s59, s43"); a(f"s_cbranch_scc1 L_{tag}_skip")
    stamp(a, 3)
    issue_fn()
    stamp(a, 4)
    a(f"s_cmp_ge_u32 s59, 7"); a(f"s_cbranch_scc1 L_{tag}_skip")
    a("s_barrier")
    a.label(f"L_{tag}_skip")
    if extra_fn is not None:
        a(f"s_cmp_lg_u32 s59, {extra_pos}"); a(f"s_cbranch_scc1 L_{tag}_skip2")
        extra_fn()
        a.label(f"L_{tag}_skip2")
    a("s_barrier")
    a("s_add_u32 s59, s59, 1")
    a("s_cmp_le_u32 s59, 8"); a(f"s_cbranch_scc1 L_{tag}_loop")

def loader_k(a):
    SRD = 32; SO = 40
    kwait(a)
    srd(a, SRD, P_K, SZ_KV)
    a("v_lshrrev_b32 v1, 4, v0"); a("v_and_b32 v2, 15, v0"); a("v_xor_b32 v2, v2, v1")
    a("v_lshlrev_b32 v2, 4, v2"); a("v_lshl_add_u32 v4, v1, 8, v2")
    a("v_xor_b32 v5, 64, v4"); a("v_xor_b32 v6, 128, v4"); a("v_xor_b32 v7, 192, v4")
    wo_prep(a)
    a("v_and_b32 v8, 15, v0"); a("v_mul_u32_u24 v8, 1152, v8")
    a("v_lshrrev_b32 v9, 4, v0"); a("v_lshl_add_u32 v9, v9, 7, v8")
    kv_pos(a, 43, 'k')
    a("s_barrier")
    stamp(a, 1)
    def issue():
        a(f"s_lshl_b32 s{SO}, s{S_G}, 7"); a(f"s_add_u32 s{SO}, s{SO}, s{S_H}"); a(f"s_lshl_b32 s{SO}, s{SO}, 13")
        for w in range(4):
            for hf in range(2):
                a(f"s_mov_b32 m0, {L_K + w*8192 + hf*4096}"); a("s_nop 0")
                for t4 in range(4):
                    t = hf * 4 + t4
                    dma(a, 4 + (t >> 1), SRD, SO, off=t4 * 1024, nt=bool(OPT['k_nt']))
                a(f"s_add_u32 s{SO}, s{SO}, {4096 if hf == 0 else 32*8192 - 4096}")
    def wotouch():
        a(f"s_lshl_b32 s{SO}, s{S_X}, 5"); a(f"s_add_u32 s{SO}, s{SO}, s{S_R}")
        a(f"s_mul_i32 s{SO}, s{SO}, {16*1152}")
        a(f"buffer_load_dword v10, v9, s[52:55], s{SO} offen")
        a(f"buffer_load_dword v10, v9, s[52:55], s{SO} offen offset:512")
        a("s_mov_b64 exec, 0xffff")
        a(f"buffer_load_dword v10, v8, s[52:55], s{SO} offen offset:1024")
        a("s_mov_b64 exec, -1")
    kv_loop(a, "k", issue, wotouch, OPT['wot_pos'])
    a("s_waitcnt vmcnt(3)")
    stamp(a, 7)
    loader_tail(a, 2)

def loader_v(a):
    SRD = 32; SO = 40
    kwait(a)
    srd(a, SRD, P_V, SZ_KV)
    a("s_cmp_lg_u32 s2, 0"); a("s_cbranch_scc1 L_nononce")
    srd(a, 48, P_DBG, 256)
    a("s_memrealtime s[42:43]"); a("s_waitcnt lgkmcnt(0)")
    a("s_or_b32 s42, s42, 1")
    a("v_mov_b32 v8, s42"); a("v_mov_b32 v9, s43"); a("v_mov_b32 v1, 0")
    a("s_mov_b64 exec, 1")
    a("buffer_store_dwordx2 v[8:9], v1, s[48:51], 0 offen sc1")
    a("s_mov_b64 exec, -1")
    a.label("L_nononce")
    if OPT['fast']:
        srd(a, 48, P_DBG, 256)
        a("s_getreg_b32 s42, hwreg(HW_REG_XCC_ID)")
        a("s_and_b32 s42, s42, 15")
        a("s_cmp_ge_u32 s42, 8"); a("s_cbranch_scc1 L_noxcc")
        a("s_mul_i32 s43, s42, s42"); a("s_lshl_b32 s43, s43, 5"); a("s_add_u32 s42, s42, s43")
        a("s_add_u32 s42, s42, 0x2000")
        a(f"s_lshl_b32 s43, s{S_G}, 3"); a(f"s_add_u32 s43, s43, s{S_X}")
        a("s_and_b32 s41, s43, 1"); a("s_lshl_b32 s41, s41, 4"); a("s_lshl_b32 s42, s42, s41")
        a("s_lshr_b32 s43, s43, 1"); a("s_lshl_b32 s43, s43, 2"); a("s_add_u32 s43, s43, 128")
        a("v_mov_b32 v8, s42"); a("v_mov_b32 v1, 0")
        a("s_mov_b64 exec, 1")
        a("buffer_atomic_add v8, v1, s[48:51], s43 offen")
        a("s_mov_b64 exec, -1")
        a.label("L_noxcc")
    a("v_lshrrev_b32 v1, 4, v0"); a("v_and_b32 v2, 15, v0"); a("v_lshlrev_b32 v3, 1, v1")
    a("v_xor_b32 v2, v2, v3"); a("v_lshlrev_b32 v2, 4, v2"); a("v_lshl_add_u32 v4, v1, 8, v2")
    a("v_xor_b32 v5, 128, v4")
    wo_prep(a)
    kv_pos(a, 43, 'v')
    a("s_barrier")
    stamp(a, 1)
    def issue():
        a(f"s_lshl_b32 s{SO}, s{S_G}, 7"); a(f"s_add_u32 s{SO}, s{SO}, s{S_H}"); a(f"s_lshl_b32 s{SO}, s{SO}, 13")
        for w in range(4):
            for hf in range(2):
                a(f"s_mov_b32 m0, {L_V + w*8192 + hf*4096}"); a("s_nop 0")
                for t4 in range(4):
                    t = hf * 4 + t4
                    dma(a, 4 + ((t >> 1) & 1), SRD, SO, off=t4 * 1024, nt=bool(OPT['v_nt']))
                a(f"s_add_u32 s{SO}, s{SO}, {4096 if hf == 0 else 32*8192 - 4096}")
    kv_loop(a, "v", issue)
    if OPT.get('vearly', 0): a("s_waitcnt vmcnt(0)")
    stamp(a, 7)
    loader_tail(a, 3)

V_XA = [4, 8]; V_WA = [12, 248]
V_A = [16, 32]; V_B = [48, 52]; V_ACC = 64
V_QF = 128; V_KF = 160; V_S = 192; V_VF = 208; V_PF = 240; V_OF = 128
V_KA = 56; V_VA = 60; V_CLW = 61; V_NONCE = 62
SC_SCALE = 0.08838834764831845 * 1.4426950408889634

def gemm1_addrs(a):
    a("v_and_b32 v1, 31, v0"); a("v_lshrrev_b32 v2, 5, v0"); a("v_bfe_u32 v3, v0, 1, 3")
    a("v_xor_b32 v2, v2, v3"); a("v_lshlrev_b32 v2, 4, v2"); a("v_lshl_add_u32 v2, v1, 7, v2")
    a(f"s_lshl_b32 s40, s{S_WAVE}, 12"); a("s_add_u32 s40, s40, 16384")
    a("v_add_u32 v2, s40, v2")
    for ks in range(4):
        a(f"v_xor_b32 v{V_XA[0]+ks}, {32*ks}, v2"); a(f"v_add_u32 v{V_XA[1]+ks}, 65536, v{V_XA[0]+ks}")
    a("v_bfe_u32 v1, v0, 2, 2"); a("v_lshrrev_b32 v2, 5, v0"); a("v_lshl_add_u32 v2, v2, 3, v1")
    a("v_lshlrev_b32 v2, 8, v2"); a("v_and_b32 v3, 1, v0"); a("v_lshl_add_u32 v2, v3, 5, v2")
    a("v_bfe_u32 v3, v0, 4, 1"); a("v_lshl_add_u32 v2, v3, 4, v2")
    a("v_bfe_u32 v3, v0, 1, 1"); a("v_lshl_add_u32 v2, v3, 3, v2")
    a("v_lshl_add_u32 v2, v1, 6, v2")
    for dt in range(4):
        a(f"v_xor_b32 v{V_WA[0]+dt}, {64*dt}, v2"); a(f"v_add_u32 v{V_WA[1]+dt}, 65536, v{V_WA[0]+dt}")

def attn_addrs(a):
    a("v_and_b32 v1, 15, v0"); a("v_lshrrev_b32 v2, 4, v0"); a("v_xor_b32 v2, v2, v1")
    a("v_lshlrev_b32 v2, 4, v2"); a("v_lshrrev_b32 v3, 2, v1"); a("v_lshl_add_u32 v2, v3, 11, v2")
    a("v_and_b32 v3, 3, v1"); a("v_lshl_add_u32 v2, v3, 8, v2")
    a(f"s_lshl_b32 s40, s{S_WAVE}, 13"); a(f"s_add_u32 s40, s40, {L_K}")
    a("v_add_u32 v2, s40, v2")
    for st in range(4): a(f"v_xor_b32 v{V_KA+st}, {64*st}, v2")
    a("v_lshrrev_b32 v1, 4, v0"); a("v_bfe_u32 v3, v0, 2, 2"); a("v_lshl_add_u32 v2, v1, 3, v3")
    a("v_lshlrev_b32 v2, 8, v2"); a("v_and_b32 v1, 1, v1"); a("v_lshl_add_u32 v3, v1, 2, v3")
    a("v_lshl_add_u32 v2, v3, 5, v2"); a("v_and_b32 v3, 3, v0"); a("v_lshl_add_u32 v2, v3, 3, v2")
    a(f"s_lshl_b32 s40, s{S_WAVE}, 13"); a(f"s_add_u32 s40, s40, {L_V}")
    a(f"v_add_u32 v{V_VA}, s40, v2")

def g1_reads(n):
    i, ks = divmod(n, 4)
    slot = i % 3; st = n & 1; hs = 1 if slot == 2 else 0; so = (slot & 1) * 32768 if slot < 2 else 0
    r = [f"ds_read_b128 {vr(V_B[st],4)}, v{V_XA[hs]+ks} offset:{so}"]
    for dt in range(4):
        base = V_A[st] + 4 * dt
        off = so + ks * 4096
        r.append(f"ds_read_b64_tr_b16 {vr(base,2)}, v{V_WA[hs]+dt} offset:{off}")
        r.append(f"ds_read_b64_tr_b16 {vr(base+2,2)}, v{V_WA[hs]+dt} offset:{off+1024}")
    return r

def gemm1(a):
    NS = NCH * 4
    kv_pos(a, 43, 'k')
    a("s_barrier")
    bx(a, -1, "c")
    a("s_barrier")
    stamp(a, 1)
    for r in g1_reads(0): a(r)
    for n in range(NS):
        i, ks = divmod(n, 4); st = n & 1
        nxt = g1_reads(n + 1) if n + 1 < NS else []
        def mf(dt):
            c = "0" if n == 0 else vr(V_ACC + 16 * dt, 16)
            a(f"v_mfma_f32_32x32x16_bf16 {vr(V_ACC+16*dt,16)}, {vr(V_A[st]+4*dt,4)}, {vr(V_B[st],4)}, {c}")
        if ks == 3:
            for dt in range(4):
                a(f"s_waitcnt lgkmcnt({[6,4,2,0][dt]})")
                if dt == 3 and nxt:
                    bx(a, i, "c")
                    a("s_barrier")
                    for r in nxt[:5]: a(r)
                mf(dt)
            for r in nxt[5:]: a(r)
        else:
            first_after_boundary = (ks == 0 and n > 0)
            for dt in range(4):
                a(f"s_waitcnt lgkmcnt({[6,7,8,9][dt]})")
                mf(dt)
                if dt < 3:
                    for r in nxt[3*dt:3*dt+3]: a(r)
        if n == 24:
            a(f"buffer_load_dwordx2 {vr(V_NONCE,2)}, v1, s[36:39], 0 offen sc1")
            if OPT['fast']:
                a(f"buffer_load_dword v{V_CLW}, v1, s[36:39], s40 offen sc1")
                a(f"buffer_load_dword v2, v1, s[44:47], s42 offen sc1")

def attention(a):
    VE = OPT.get('vearly', 0)
    a("s_barrier")
    stamp(a, 3)
    for ai in range(2):
        for st in range(4):
            a(f"ds_read_b128 {vr(V_KF+(ai*4+st)*4,4)}, v{V_KA+st} offset:{ai*1024}")
    def vreads(T0, T1):
        for T in range(T0, T1):
            if T: a(f"v_xor_b32 v1, {32*T}, v{V_VA}")
            ad = "v1" if T else f"v{V_VA}"
            a(f"ds_read_b64_tr_b16 {vr(V_VF+4*T,2)}, {ad}")
            a(f"ds_read_b64_tr_b16 {vr(V_VF+4*T+2,2)}, {ad} offset:1024")
    for dt in range(4):
        for i in range(8):
            a(f"v_cvt_pk_bf16_f32 v{V_QF+8*dt+i}, v{V_ACC+16*dt+2*i}, v{V_ACC+16*dt+2*i+1}")
        if VE and dt == 1:
            a("s_waitcnt lgkmcnt(0)"); vreads(0, 4)
    a("s_nop 1")
    for dt in range(4):
        for i in range(4):
            a(f"v_permlane16_swap_b32 v{V_QF+8*dt+i}, v{V_QF+8*dt+4+i}")
    if VE:
        a("s_waitcnt lgkmcnt(4)"); vreads(4, 8)
    else:
        a("s_waitcnt lgkmcnt(0)")
    for st in range(4):
        for ai in range(2):
            for qt in range(2):
                d = vr(V_S + (ai*2+qt)*4, 4)
                c = "0" if st == 0 else d
                a(f"v_mfma_f32_16x16x32_bf16 {d}, {vr(V_KF+(ai*4+st)*4,4)}, {vr(V_QF+8*st+4*qt,4)}, {c}")
    if VE:
        a("s_waitcnt lgkmcnt(0)")
    def S(ai, qt, v): return V_S + (ai*2+qt)*4 + v
    M = [48, 49]; T_ = [50, 51]; SUM = [52, 53]
    a("s_nop 7")
    for qt in range(2): a(f"v_max3_f32 v{M[qt]}, v{S(0,qt,0)}, v{S(0,qt,1)}, v{S(0,qt,2)}")
    for qt in range(2): a(f"v_max3_f32 v{M[qt]}, v{M[qt]}, v{S(0,qt,3)}, v{S(1,qt,0)}")
    for qt in range(2): a(f"v_max3_f32 v{M[qt]}, v{M[qt]}, v{S(1,qt,1)}, v{S(1,qt,2)}")
    for qt in range(2): a(f"v_max_f32 v{M[qt]}, v{M[qt]}, v{S(1,qt,3)}")
    def xlane(regs, tmps, op):
        for sw in ("v_permlane16_swap_b32", "v_permlane32_swap_b32"):
            for qt in range(2): a(f"v_mov_b32 v{tmps[qt]}, v{regs[qt]}")
            a("s_nop 0")
            for qt in range(2): a(f"{sw} v{tmps[qt]}, v{regs[qt]}")
            a("s_nop 0")
            for qt in range(2): a(f"{op} v{regs[qt]}, v{regs[qt]}, v{tmps[qt]}")
    xlane(M, T_, "v_max_f32")
    a(f"s_mov_b32 s41, {f32hex(SC_SCALE)}")
    for qt in range(2): a(f"v_mul_f32 v{M[qt]}, s41, v{M[qt]}")
    for ai in range(2):
        for v in range(4):
            for qt in range(2): a(f"v_fma_f32 v{S(ai,qt,v)}, v{S(ai,qt,v)}, s41, -v{M[qt]}")
    for ai in range(2):
        for v in range(4):
            for qt in range(2): a(f"v_exp_f32 v{S(ai,qt,v)}, v{S(ai,qt,v)}")
    a("s_nop 0")
    for qt in range(2): a(f"v_add_f32 v{SUM[qt]}, v{S(0,qt,0)}, v{S(0,qt,1)}")
    for (ai, v) in [(0,2),(0,3),(1,0),(1,1),(1,2),(1,3)]:
        for qt in range(2): a(f"v_add_f32 v{SUM[qt]}, v{SUM[qt]}, v{S(ai,qt,v)}")
    xlane(SUM, T_, "v_add_f32")
    for qt in range(2): a(f"v_rcp_f32 v{SUM[qt]}, v{SUM[qt]}")
    a("s_nop 0")
    for ai in range(2):
        for v in range(4):
            for qt in range(2): a(f"v_mul_f32 v{S(ai,qt,v)}, v{S(ai,qt,v)}, v{SUM[qt]}")
    for qt in range(2):
        for ai in range(2):
            for h2 in range(2):
                a(f"v_cvt_pk_bf16_f32 v{V_PF+4*qt+2*ai+h2}, v{S(ai,qt,2*h2)}, v{S(ai,qt,2*h2+1)}")
    stamp(a, 4)
    if VE:
        a("s_nop 0")
    else:
        a("s_barrier")
        vreads(0, 6); a("s_waitcnt lgkmcnt(4)"); vreads(6, 8)
        a("s_waitcnt lgkmcnt(0)")
        a("s_barrier")
    for T in range(8):
        for qt in range(2):
            a(f"v_mfma_f32_16x16x32_bf16 {vr(V_ACC+(T*2+qt)*4,4)}, {vr(V_VF+4*T,4)}, {vr(V_PF+4*qt,4)}, 0")
    if VE: a("s_barrier")
    a("s_nop 7")
    for p in range(4):
        for qt in range(2):
            for e in range(2):
                T = 2*p + e
                for h2 in range(2):
                    src = V_ACC + (T*2+qt)*4 + 2*h2
                    a(f"v_cvt_pk_bf16_f32 v{V_OF+(2*p+qt)*4+2*e+h2}, v{src}, v{src+1}")

V2_ACC = 16
V2_A = [88, 108]
V2_AD = [4, 5, 6, 12]
BUF = [160, 192, 224]

def p2_areads(slot, p, half, buf=None):
    r = []
    ad = V2_AD[slot]
    taus = range(0, 5) if half == 0 else range(5, 9)
    if buf is None: buf = half
    for k, tau in enumerate(taus):
        off = p * 32 * 288 + 32 * tau
        base = V2_A[buf] + 4 * k
        r.append(f"ds_read_b64_tr_b16 {vr(base,2)}, v{ad} offset:{off}")
        r.append(f"ds_read_b64_tr_b16 {vr(base+2,2)}, v{ad} offset:{off+16*288}")
    return r

def p2_bloads(a, slot, breg):
    a(f"s_add_u32 s45, s{S_J}, {slot}"); a("s_and_b32 s45, s45, 3"); a("s_add_u32 s45, s45, s44")
    a("s_lshl_b32 s45, s45, 2"); a(f"s_add_u32 s45, s45, s{S_WAVE}")
    a("s_lshl_b32 s46, s45, 13"); a("s_add_u32 s47, s46, 4096")
    for f in range(8):
        a(f"buffer_load_dwordx4 {vr(breg+4*f,4)}, v7, s[32:35], s{46 + f//4} offen offset:{(f%4)*1024} sc1")

S_NON = 52
S_FAST = 54

def get_nonce(a):
    a("s_waitcnt vmcnt(0)")
    a("v_mov_b32 v9, 0")
    a("s_mov_b32 s50, 0")
    a.label("L_nonce_chk")
    a(f"v_readfirstlane_b32 s{S_NON}, v{V_NONCE}"); a(f"v_readfirstlane_b32 s{S_NON+1}, v{V_NONCE+1}")
    a("s_nop 0")
    a(f"s_cmp_lg_u32 s{S_NON}, 0"); a("s_cbranch_scc1 L_nonce_ok")
    a(f"buffer_load_dwordx2 {vr(V_NONCE,2)}, v9, s[36:39], 0 offen sc1")
    a("s_add_u32 s50, s50, 1"); a("s_waitcnt vmcnt(0)")
    a(f"s_cmp_lt_u32 s50, {OPT['spin_max']}"); a("s_cbranch_scc1 L_nonce_chk")
    a.label("L_nonce_ok")
    a(f"s_mov_b32 s{S_FAST}, 0")
    if OPT['fast']:
        a(f"v_readfirstlane_b32 s55, v{V_CLW}")
        a(f"s_and_b32 s56, s{S_X}, 1"); a("s_lshl_b32 s56, s56, 4"); a("s_lshr_b32 s55, s55, s56")
        a("s_and_b32 s56, s55, 31")
        a("s_bfe_u32 s57, s55, 0x80005")
        a("s_bfe_u32 s55, s55, 0x3000d")
        a("s_mul_i32 s56, s56, s56"); a("s_lshl_b32 s57, s57, 2")
        a("s_cmp_eq_u32 s56, s57"); a(f"s_cselect_b32 s{S_FAST}, 1, 0")
        a("s_cmp_eq_u32 s55, 4"); a(f"s_cselect_b32 s{S_FAST}, s{S_FAST}, 0")
        if OPT['fast'] == 2: a(f"s_mov_b32 s{S_FAST}, 0")

def poll(a, tag, voff, soff, sleep=0):
    a("s_mov_b32 s50, 0")
    a.label(f"L_poll_{tag}")
    if sleep: a(f"s_sleep {sleep}")
    a(f"buffer_load_dwordx2 v[10:11], v{voff}, s[32:35], s{soff} offen sc1")
    a("s_add_u32 s50, s50, 1"); a("s_waitcnt vmcnt(0)")
    a(f"v_cmp_eq_u64 vcc, v[10:11], s[{S_NON}:{S_NON+1}]")
    a(f"s_cmp_ge_u32 s50, {OPT['spin_max']}"); a(f"s_cbranch_scc1 L_poll_{tag}_done")
    a("s_cmp_eq_u64 vcc, -1"); a(f"s_cbranch_scc0 L_poll_{tag}")
    a.label(f"L_poll_{tag}_done")

def flag_store(a, soff, mode):
    a(f"v_mov_b32 v10, s{S_NON}"); a(f"v_mov_b32 v11, s{S_NON+1}")
    a("s_mov_b64 exec, 1")
    if mode == 'dyn':
        a(f"s_cmp_eq_u32 s{S_FAST}, 0"); a("s_cbranch_scc1 L_flag_slow")
        a(f"buffer_store_dwordx2 v[10:11], v9, s[32:35], s{soff} offen")
        a("s_branch L_flag_join")
        a.label("L_flag_slow")
        a(f"buffer_store_dwordx2 v[10:11], v9, s[32:35], s{soff} offen sc1")
        a.label("L_flag_join")
    else:
        a(f"buffer_store_dwordx2 v[10:11], v9, s[32:35], s{soff} offen sc1")
    a("s_mov_b64 exec, -1")

def o_store(a):
    srd(a, 32, P_WS, SZ_WS_USED)
    a("v_lshlrev_b32 v7, 4, v0")
    a(f"s_lshl_b32 s40, s{S_G}, 5"); a(f"s_add_u32 s40, s40, s{S_H}"); a("s_lshl_b32 s40, s40, 2")
    a(f"s_add_u32 s40, s40, s{S_WAVE}"); a("s_lshl_b32 s40, s40, 13"); a("s_add_u32 s41, s40, 4096")
    global OSTORES
    OSTORES = [f"buffer_store_dwordx4 {vr(V_OF+4*f,4)}, v7, s[32:35], s{40 + f//4} offen offset:{(f%4)*1024} sc1" for f in range(8)]
    a("v_lshrrev_b32 v2, 4, v0"); a("v_bfe_u32 v3, v0, 2, 2"); a("v_lshl_add_u32 v2, v2, 2, v3")
    a("v_mul_u32_u24 v2, 288, v2"); a("v_and_b32 v3, 3, v0")
    a(f"v_lshl_add_u32 v{V2_AD[0]}, v3, 3, v2")
    for sl in range(1, 4): a(f"v_add_u32 v{V2_AD[sl]}, {sl*W_SLOT}, v{V2_AD[0]}")
    a(f"s_lshl_b32 s44, s{S_G}, 5"); a(f"s_lshl_b32 s45, s{S_X}, 2"); a("s_add_u32 s44, s44, s45")
    a(f"s_lshl_b32 s48, s{S_G}, 3"); a(f"s_add_u32 s48, s48, s{S_X}"); a("s_lshl_b32 s48, s48, 2")
    a(f"s_add_u32 s48, s48, s{S_WAVE}"); a("s_lshl_b32 s48, s48, 7"); a(f"s_add_u32 s48, s48, {WS_F}")
    a(f"s_lshl_b32 s49, s{S_J}, 3"); a("s_add_u32 s49, s49, s48")
    a("v_and_b32 v8, 3, v0"); a("v_lshlrev_b32 v8, 3, v8")

def bload_list(slot, breg):
    setup = [f"s_add_u32 s45, s{S_J}, {slot}", "s_and_b32 s45, s45, 3", "s_add_u32 s45, s45, s44",
             "s_lshl_b32 s45, s45, 2", f"s_add_u32 s45, s45, s{S_WAVE}",
             "s_lshl_b32 s46, s45, 13", "s_add_u32 s47, s46, 4096"]
    loads = [f"buffer_load_dwordx4 {vr(breg+4*f,4)}, v7, s[32:35], s{46 + f//4} offen offset:{(f%4)*1024} sc1" for f in range(8)]
    return setup, loads

def p2_run(a, hs, n0, n1, hooks_pre=None, hooks_mid=None, inject=None, spread=None):
    hooks_pre = hooks_pre or {}; hooks_mid = hooks_mid or {}; inject = inject or {}; spread = spread or {}
    for n in range(n0, n1):
        (s, p, hf) = hs[n]
        breg = V_OF if s == 0 else BUF[s - 1]
        nxt = p2_areads(*hs[n+1], buf=(n+1) & 1) if n + 1 < n1 else []
        taus = list(range(0, 5)) if hf == 0 else list(range(5, 9))
        nown = 2 * len(taus)
        nm = nown
        plan = [0] * nm
        for t in range(len(nxt)): plan[t % nm] += 1
        issued = 0; m = 0
        inj = list(inject.get(n, []))
        spr = list(spread.get(n, []))
        per = -(-len(spr) // nm) if spr else 0
        if n in hooks_pre: hooks_pre[n]()
        for k, tau in enumerate(taus):
            a(f"s_waitcnt lgkmcnt({nown - 2 * (k + 1) + issued})")
            for qt in range(2):
                d = vr(V2_ACC + (tau*2+qt)*4, 4)
                c = "0" if (s == 0 and p == 0) else d
                a(f"v_mfma_f32_16x16x32_bf16 {d}, {vr(V2_A[n & 1]+4*k,4)}, {vr(breg+(2*p+qt)*4,4)}, {c}")
                if m == 0 and n in hooks_mid: hooks_mid[n]()
                if nxt:
                    for r in nxt[issued:issued+plan[m]]: a(r)
                    issued = min(len(nxt), issued + plan[m])
                for _ in range(per):
                    if spr: a(spr.pop(0))
                m += 1
                if k >= len(taus) - 1 and inj: a(inj.pop(0))
        while inj: a(inj.pop(0))
        while spr: a(spr.pop(0))

def d_prep(a):
    a("v_bfe_u32 v13, v0, 1, 3"); a("v_mul_u32_u24 v13, 9216, v13")
    a("v_lshrrev_b32 v14, 4, v0"); a("v_lshlrev_b32 v14, 1, v14"); a("v_and_b32 v15, 1, v0")
    a("v_add_u32 v14, v14, v15"); a("v_lshl_add_u32 v13, v14, 4, v13")
    a(f"s_lshl_b32 s58, s{S_G}, 2"); a(f"s_add_u32 s58, s58, s{S_J}"); a("s_lshl_b32 s58, s58, 2")
    a(f"s_add_u32 s58, s58, s{S_WAVE}")
    a("s_mul_i32 s59, s58, 73728"); a(f"s_add_u32 s59, s59, {WS_D}")
    a(f"s_mul_i32 s40, s{S_X}, 1152"); a("s_add_u32 s40, s40, s59")

def d_pack_store(tau, G=160):
    r = []
    for qt in range(2):
        for h2 in range(2):
            src = V2_ACC + (tau*2+qt)*4 + 2*h2
            r.append(f"v_cvt_pk_bf16_f32 v{G+4*tau+2*qt+h2}, v{src}, v{src+1}")
    r.append(f"buffer_store_dwordx4 {vr(G+4*tau,4)}, v13, s[32:35], s40 offen offset:{128*tau} sc1")
    return r

def tail(a):
    hs = [(s, p, hf) for s in range(3) for p in range(4) for hf in range(2)]
    hs += [(3, p, 0) for p in range(4)] + [(3, p, 1) for p in range(4)]
    o_store(a)
    stamp(a, 6)
    for x in OSTORES: a(x)
    for r in p2_areads(*hs[0], buf=0): a(r)
    def exch():
        a("s_waitcnt vmcnt(0)")
        flag_store(a, 49, 'dyn')
        stamp(a, 7)
        if OPT.get('pollin', 1):
            poll(a, "o", 8, 48, sleep=OPT.get('o_sleep', 0))
            stamp(a, 8)
            p2_bloads(a, 1, BUF[0])
        a("s_nop 3")
    p2_run(a, hs, 0, 8, hooks_pre={OPT.get('flagpos', 4): exch})
    if not OPT.get('pollin', 1):
        poll(a, "o", 8, 48, sleep=OPT.get('o_sleep', 0))
        stamp(a, 8)
        p2_bloads(a, 1, BUF[0])
    a("s_barrier")
    tstamp(a, 1)
    for r in p2_areads(*hs[8], buf=0): a(r)
    su2, l2 = bload_list(2, BUF[1]); su3, l3 = bload_list(3, BUF[2])
    for x in su2: a(x)
    d_prep(a)
    inj = {}
    for t in range(4):
        inj[8 + t] = l2[2*t:2*t+2]
        inj[16 + t] = l3[2*t:2*t+2]
    inj[15] = su3
    fine = OPT.get('finewait', 1)
    if not fine: a("s_waitcnt vmcnt(0)")
    tstamp(a, 2)
    spr = {29: d_pack_store(0) + d_pack_store(1), 30: d_pack_store(2) + d_pack_store(3), 31: d_pack_store(4)}
    p2_run(a, hs, 8, 32,
           hooks_pre=dict([(16, lambda: a("s_waitcnt vmcnt(0)")), (24, lambda: a("s_waitcnt vmcnt(0)"))] +
                          ([(8, lambda: a("s_waitcnt vmcnt(6)")), (10, lambda: a("s_waitcnt vmcnt(8)")),
                            (12, lambda: a("s_waitcnt vmcnt(10)")), (14, lambda: a("s_waitcnt vmcnt(8)"))] if fine else [])),
           hooks_mid={15: lambda: a("s_barrier"), 23: lambda: a("s_barrier")},
           inject=inj, spread=spr)
    stamp(a, 9)
    reduce_inkernel(a)

def store_partials_f32(a):
    a("s_nop 7")
    a(f"s_lshl_b32 s45, s{S_X}, 3"); a(f"s_add_u32 s45, s45, s{S_G}"); a("s_lshl_b32 s45, s45, 2")
    a(f"s_add_u32 s45, s45, s{S_J}"); a("s_lshl_b32 s45, s45, 2"); a(f"s_add_u32 s45, s45, s{S_WAVE}")
    a(f"s_mul_i32 s45, s45, {18*1024}"); a(f"s_add_u32 s45, s45, {WS_P}")
    for u in range(18):
        if u and u % 4 == 0: a("s_add_u32 s45, s45, 4096")
        a(f"buffer_store_dwordx4 {vr(V2_ACC+4*u,4)}, v7, s[32:35], s45 offen offset:{(u%4)*1024}")

def store_partials_bf16(a):
    G = 160
    a(f"s_lshl_b32 s44, s{S_G}, 2"); a(f"s_add_u32 s44, s44, s{S_J}"); a("s_lshl_b32 s44, s44, 2")
    a(f"s_add_u32 s44, s44, s{S_WAVE}")
    a(f"s_lshl_b32 s45, s{S_X}, 7"); a("s_add_u32 s45, s45, s44"); a("s_mul_i32 s45, s45, 9216")
    a(f"s_add_u32 s45, s45, {WS_P}"); a("s_add_u32 s46, s45, 4096"); a("s_add_u32 s47, s45, 8192")
    sc = " sc1" if OPT.get('psc1', 1) else ""
    for tau in range(9):
        for qt in range(2):
            for h2 in range(2):
                src = V2_ACC + (tau*2+qt)*4 + 2*h2
                a(f"v_cvt_pk_bf16_f32 v{G+4*tau+2*qt+h2}, v{src}, v{src+1}")
        a(f"buffer_store_dwordx4 {vr(G+4*tau,4)}, v7, s[32:35], s{45 + tau//4} offen offset:{(tau%4)*1024}{sc}")

def kernel3b(a):
    name = "mha_p3_kernel"
    a(".p2align 8"); a(f".globl {name}"); a(f".type {name},@function"); a.label(name)
    a("s_cmp_ge_u32 s2, 288"); a(f"s_cbranch_scc1 L_end_{name}")
    a("s_load_dwordx2 s[26:27], s[0:1], 40"); a("s_load_dwordx2 s[30:31], s[0:1], 56")
    a("v_lshrrev_b32 v1, 6, v0"); a("v_and_b32 v0, 63, v0")
    a("s_lshl_b32 s5, s2, 2")
    a(f"v_readfirstlane_b32 s{S_WAVE}, v1")
    a("v_lshlrev_b32 v1, 4, v0")
    a(f"s_add_u32 s5, s5, s{S_WAVE}")
    a("s_mul_i32 s45, s5, 1024"); a(f"s_add_u32 s45, s45, {WS_P}")
    a("s_mul_hi_u32 s6, s5, 477218589")
    a("s_mul_i32 s7, s6, 9"); a("s_sub_u32 s7, s5, s7")
    a("s_waitcnt lgkmcnt(0)")
    srd(a, 32, P_WS, SZ_WS_USED); srd(a, 36, P_OUT, SZ_OUT)
    for x in range(8):
        a(f"buffer_load_dwordx4 {vr(8+4*x,4)}, v1, s[32:35], s45 offen")
        if x < 7: a(f"s_add_u32 s45, s45, {128*9216}")
    a("v_and_b32 v2, 15, v0"); a("v_mul_u32_u24 v2, 1152, v2"); a("v_lshrrev_b32 v3, 4, v0")
    a("v_lshl_add_u32 v2, v3, 3, v2")
    a("s_lshr_b32 s46, s6, 4"); a("s_lshl_b32 s46, s46, 2"); a("s_and_b32 s47, s6, 3"); a("s_add_u32 s46, s46, s47")
    a(f"s_mul_i32 s46, s46, {32*1152}")
    a("s_lshr_b32 s47, s6, 2"); a("s_and_b32 s47, s47, 3"); a("s_mul_i32 s47, s47, 288"); a("s_add_u32 s46, s46, s47")
    a("s_lshl_b32 s47, s7, 5"); a("s_add_u32 s46, s46, s47"); a(f"s_add_u32 s47, s46, {16*1152}")
    for x in range(8):
        a(f"s_waitcnt vmcnt({7-x})")
        for d in range(4):
            src = 8 + 4*x + d
            if x == 0:
                a(f"v_lshlrev_b32 v{40+2*d}, 16, v{src}"); a(f"v_and_b32 v{40+2*d+1}, 0xffff0000, v{src}")
            else:
                a(f"v_lshlrev_b32 v48, 16, v{src}"); a(f"v_and_b32 v49, 0xffff0000, v{src}")
                a(f"v_pk_add_f32 v[{40+2*d}:{40+2*d+1}], v[{40+2*d}:{40+2*d+1}], v[48:49]")
    for d in range(4): a(f"v_cvt_pk_bf16_f32 v{50+d}, v{40+2*d}, v{40+2*d+1}")
    a("buffer_store_dwordx2 v[50:51], v2, s[36:39], s46 offen")
    a("buffer_store_dwordx2 v[52:53], v2, s[36:39], s47 offen")
    a.label(f"L_end_{name}")
    a("s_endpgm")

def reduce_inkernel(a):
    G = 160; R1 = 196; R2 = 88
    a("s_nop 7")
    for tau in range(5, 9):
        for x in d_pack_store(tau): a(x)
    a("s_lshl_b32 s48, s58, 7"); a(f"s_add_u32 s48, s48, {WS_F2}")
    a(f"s_lshl_b32 s49, s{S_X}, 3"); a("s_add_u32 s49, s49, s48")
    a("v_and_b32 v8, 7, v0"); a("v_lshlrev_b32 v8, 3, v8")
    a("v_and_b32 v14, 1, v0"); a("v_mul_u32_u24 v14, 1152, v14")
    a("v_bfe_u32 v15, v0, 1, 2"); a("v_lshl_add_u32 v14, v15, 3, v14")
    a("v_add_u32 v15, 256, v14")
    a("v_lshrrev_b32 v12, 3, v0"); a("v_lshl_add_u32 v14, v12, 5, v14")
    srd(a, 36, P_OUT, SZ_OUT)
    a(f"s_lshl_b32 s56, s{S_G}, 2"); a(f"s_add_u32 s56, s56, s{S_WAVE}"); a("s_lshl_b32 s56, s56, 5")
    a(f"s_lshl_b32 s57, s{S_X}, 1"); a("s_add_u32 s56, s56, s57"); a("s_mul_i32 s56, s56, 1152")
    a(f"s_mul_i32 s57, s{S_J}, 288"); a("s_add_u32 s56, s56, s57")
    a(f"s_add_u32 s57, s56, {16*1152}")
    a(f"s_mul_i32 s47, s{S_X}, 9216"); a("s_add_u32 s47, s47, s59")
    a("s_waitcnt vmcnt(0)")
    flag_store(a, 49, 'sc1')
    stamp(a, 10)
    poll(a, "d", 8, 48, sleep=OPT.get('d_sleep', 0))
    stamp(a, 11)
    for sx in range(8):
        a(f"buffer_load_dwordx4 {vr(R1+4*sx,4)}, v7, s[32:35], s47 offen sc1")
        if sx < 7: a("s_add_u32 s47, s47, 1152")
    a(f"s_sub_u32 s47, s47, {7*1152}")
    a("s_mov_b64 exec, 0xff")
    for sx in range(8):
        a(f"buffer_load_dwordx4 {vr(R2+4*sx,4)}, v7, s[32:35], s47 offen offset:1024 sc1")
        if sx < 7: a("s_add_u32 s47, s47, 1152")
    a("s_mov_b64 exec, -1")
    A1 = 16; A2 = 24; T = 32
    def summ(R, A, waitbase):
        for sx in range(8):
            a(f"s_waitcnt vmcnt({waitbase - sx})")
            for d in range(4):
                src = R + 4*sx + d
                if sx == 0:
                    a(f"v_lshlrev_b32 v{A+2*d}, 16, v{src}"); a(f"v_and_b32 v{A+2*d+1}, 0xffff0000, v{src}")
                else:
                    t = T + 2 * (d & 1)
                    a(f"v_lshlrev_b32 v{t}, 16, v{src}"); a(f"v_and_b32 v{t+1}, 0xffff0000, v{src}")
                    a(f"v_pk_add_f32 v[{A+2*d}:{A+2*d+1}], v[{A+2*d}:{A+2*d+1}], v[{t}:{t+1}]")
    fl = {0: "", 1: " sc1", 2: " nt", 3: " sc0 sc1"}[OPT.get('outfl', 0)]
    summ(R1, A1, 15)
    for d in range(4): a(f"v_cvt_pk_bf16_f32 v{36+d}, v{A1+2*d}, v{A1+2*d+1}")
    summ(R2, A2, 7)
    a(f"buffer_store_dwordx2 v[36:37], v14, s[36:39], s56 offen{fl}")
    a(f"buffer_store_dwordx2 v[38:39], v14, s[36:39], s57 offen{fl}")
    for d in range(4): a(f"v_cvt_pk_bf16_f32 v{40+d}, v{A2+2*d}, v{A2+2*d+1}")
    a("s_mov_b64 exec, 0xff")
    a(f"buffer_store_dwordx2 v[40:41], v15, s[36:39], s56 offen{fl}")
    a(f"buffer_store_dwordx2 v[42:43], v15, s[36:39], s57 offen{fl}")
    a("s_mov_b64 exec, -1")

def KNAME():
    return "standalone__mha_block_cached__near_ridge_kernel" if OPT['dk'] else "mha_a_kernel"

def kernelA(a):
    global KIDX
    KIDX = 0
    name = KNAME()
    prologue(a, name)
    stamp_init(a); stamp(a, 0); cstamp(a, 14)
    if OPT['stamps'] and OPT.get('entrystamp', 0): a("s_mov_b64 s[86:87], s[96:97]")
    a(f"s_cmp_lt_u32 s{S_WAVE}, 4"); a("s_cbranch_scc1 L_a_compute")
    a(f"s_cmp_eq_u32 s{S_WAVE}, 5"); a("s_cbranch_scc1 L_a_ldx")
    a(f"s_cmp_eq_u32 s{S_WAVE}, 6"); a("s_cbranch_scc1 L_a_ldk")
    a(f"s_cmp_eq_u32 s{S_WAVE}, 7"); a("s_cbranch_scc1 L_a_ldv")
    loader_ring(a, 'wq'); stamp_flush(a); a("s_endpgm")
    a.label("L_a_ldx"); loader_ring(a, 'x'); stamp_flush(a); a("s_endpgm")
    a.label("L_a_ldv"); loader_v(a); stamp_flush(a); a("s_endpgm")
    a.label("L_a_ldk"); loader_k(a); stamp_flush(a); a("s_endpgm")
    a.label("L_a_compute")
    CUR['compute'] = True
    gemm1_addrs(a); attn_addrs(a)
    kwait(a)
    srd(a, 36, P_DBG, 256)
    a("v_mov_b32 v1, 0")
    a(f"s_lshl_b32 s40, s{S_G}, 3"); a(f"s_add_u32 s40, s40, s{S_X}"); a("s_lshr_b32 s40, s40, 1")
    a("s_lshl_b32 s40, s40, 2"); a("s_add_u32 s40, s40, 128")
    srd(a, 44, P_WS, SZ_WS_USED)
    a(f"s_lshl_b32 s42, s{S_G}, 3"); a(f"s_add_u32 s42, s42, s{S_X}"); a("s_lshl_b32 s42, s42, 2")
    a(f"s_add_u32 s42, s42, s{S_WAVE}"); a("s_lshl_b32 s42, s42, 7"); a(f"s_add_u32 s42, s42, {WS_F}")
    gemm1(a); get_nonce(a); stamp(a, 2)
    attention(a); stamp(a, 5)
    tail(a)
    if OPT['stamps']: a("s_waitcnt vmcnt(0)")
    stamp(a, 12); cstamp(a, 15); stamp_flush(a)
    if OPT.get('waitx', 0):
        a("s_waitcnt vmcnt(0)")
        a(f"s_add_u32 s62, s{S_NON}, {OPT['waitx']}")
        a("s_mov_b32 s63, 0")
        a.label("L_wx_spin")
        a("s_memrealtime s[64:65]"); a("s_waitcnt lgkmcnt(0)")
        a("s_add_u32 s63, s63, 1"); a("s_cmp_gt_u32 s63, 100000"); a("s_cbranch_scc1 L_wx_done")
        a("s_sub_u32 s66, s62, s64"); a("s_cmp_gt_i32 s66, 0"); a("s_cbranch_scc1 L_wx_spin")
        a.label("L_wx_done")
    if OPT.get('probe', -1) >= 0:
        a("s_waitcnt vmcnt(0)")
        a(f"s_sub_u32 s62, s60, s{S_NON}"); a(f"s_mul_i32 s62, s62, {OPT.get('probek', 8)}")
        a("s_memrealtime s[64:65]"); a("s_waitcnt lgkmcnt(0)")
        a("s_add_u32 s62, s62, s64")
        a("s_mov_b32 s63, 0")
        a.label("L_probe_spin")
        a("s_memrealtime s[64:65]"); a("s_waitcnt lgkmcnt(0)")
        a("s_add_u32 s63, s63, 1"); a("s_cmp_gt_u32 s63, 100000"); a("s_cbranch_scc1 L_probe_done")
        a("s_sub_u32 s66, s62, s64"); a("s_cmp_gt_i32 s66, 0"); a("s_cbranch_scc1 L_probe_spin")
        a.label("L_probe_done")
    a.label(f"L_end_{name}")
    a("s_endpgm")

def kernel3(a):
    global KIDX
    KIDX = 1
    name = "mha_p3_kernel"
    a(".p2align 8"); a(f".globl {name}"); a(f".type {name},@function"); a.label(name)
    a("s_cmp_ge_u32 s2, 256"); a(f"s_cbranch_scc1 L_end_{name}")
    a("s_load_dwordx16 s[16:31], s[0:1], 0")
    a("v_lshrrev_b32 v1, 6, v0"); a("v_and_b32 v0, 63, v0")
    a("s_lshr_b32 s5, s2, 1")
    a("s_and_b32 s6, s2, 1")
    a(f"v_readfirstlane_b32 s{S_WAVE}, v1")
    a("s_mul_i32 s6, s6, 9")
    a("s_waitcnt lgkmcnt(0)")
    stamp_init(a); stamp(a, 0); cstamp(a, 14)
    a(f"s_add_u32 s6, s6, s{S_WAVE}")
    srd(a, 32, P_WS, SZ_WS_USED); srd(a, 36, P_OUT, SZ_OUT)
    a("v_lshlrev_b32 v1, 4, v0")
    a("s_mul_i32 s45, s5, 18"); a("s_add_u32 s45, s45, s6"); a("s_lshl_b32 s45, s45, 10")
    a(f"s_add_u32 s45, s45, {WS_P}")
    for x in range(8):
        a(f"buffer_load_dwordx4 {vr(8+4*x,4)}, v1, s[32:35], s45 offen")
        if x < 7: a(f"s_add_u32 s45, s45, {128*18*1024}")
    a("v_and_b32 v2, 15, v0"); a("v_mul_u32_u24 v2, 1152, v2"); a("v_lshrrev_b32 v3, 4, v0")
    a("v_lshl_add_u32 v2, v3, 3, v2")
    a("s_lshr_b32 s46, s5, 4"); a("s_lshl_b32 s46, s46, 2"); a("s_and_b32 s47, s5, 3"); a("s_add_u32 s46, s46, s47")
    a(f"s_mul_i32 s46, s46, {32*1152}")
    a("s_lshr_b32 s47, s5, 2"); a("s_and_b32 s47, s47, 3"); a("s_mul_i32 s47, s47, 288"); a("s_add_u32 s46, s46, s47")
    a("s_and_b32 s47, s6, 1"); a(f"s_mul_i32 s47, s47, {16*1152}"); a("s_add_u32 s46, s46, s47")
    a("s_lshr_b32 s47, s6, 1"); a("s_lshl_b32 s47, s47, 5"); a("s_add_u32 s46, s46, s47")
    a("s_waitcnt vmcnt(0)")
    for v in range(4):
        for x in range(0, 8, 2): a(f"v_add_f32 v{8+4*x+v}, v{8+4*x+v}, v{12+4*x+v}")
    for v in range(4):
        a(f"v_add_f32 v{8+v}, v{8+v}, v{16+v}"); a(f"v_add_f32 v{24+v}, v{24+v}, v{32+v}")
    for v in range(4): a(f"v_add_f32 v{8+v}, v{8+v}, v{24+v}")
    a("v_cvt_pk_bf16_f32 v8, v8, v9"); a("v_cvt_pk_bf16_f32 v9, v10, v11")
    a("buffer_store_dwordx2 v[8:9], v2, s[36:39], s46 offen")
    if OPT['stamps']:
        a("s_waitcnt vmcnt(0)")
        stamp(a, 10); cstamp(a, 15)
        a(f"s_cmp_ge_u32 s{S_WAVE}, 8"); a("s_cbranch_scc1 L_end_mha_p3_kernel")
        stamp_flush(a, 44)
    a.label(f"L_end_{name}")
    a("s_endpgm")

def descriptor(a, name, vgpr, sgpr=102):
    a(f".amdhsa_kernel {name}")
    a(f".amdhsa_next_free_vgpr {vgpr}"); a(f".amdhsa_next_free_sgpr {sgpr}"); a(f".amdhsa_accum_offset {vgpr}")
    a(".amdhsa_group_segment_fixed_size 0"); a(".amdhsa_kernarg_size 64")
    a(".amdhsa_user_sgpr_count 2"); a(".amdhsa_user_sgpr_kernarg_segment_ptr 1")
    a(".amdhsa_system_sgpr_workgroup_id_x 1"); a(".end_amdhsa_kernel")

def main():
    out = sys.argv[1]
    for arg in sys.argv[2:]:
        if arg == "--stamps": OPT['stamps'] = True
        elif "=" in arg:
            k, v = arg.lstrip("-").split("="); OPT[k] = int(v)
    a = Asm()
    hdr = "; MHA block (Q-proj + attention + out-proj), generated by gen3.py\n"
    if OPT['dk']:
        hdr += "; @launch grid=(256,1,1) block=(512,1,1) lds=163840\n"
    else:
        hdr += "; @launch kernel=mha_a_kernel grid=(256,1,1) block=(512,1,1) lds=163840\n"
        if OPT.get('k3bf', 0): hdr += "; @launch kernel=mha_p3_kernel grid=(288,1,1) block=(256,1,1) lds=0\n"
        else: hdr += "; @launch kernel=mha_p3_kernel grid=(256,1,1) block=(576,1,1) lds=0\n"
    a('.amdgcn_target "amdgcn-amd-amdhsa--gfx950"'); a(".text")
    kernelA(a)
    if not OPT['dk']:
        if OPT.get('k3bf', 0): kernel3b(a)
        else: kernel3(a)
    a('.section .rodata,"a"'); a(".p2align 6"); descriptor(a, KNAME(), 256)
    if not OPT['dk']:
        a(".p2align 6"); descriptor(a, "mha_p3_kernel", 56)
    open(out, "w").write(hdr + a.text())

if __name__ == "__main__": main()
```

```python
import sys, struct

class Asm:
    def __init__(self): self.l = []
    def __call__(self, s=""):
        for x in s.split("\n"):
            x = x.strip()
            self.l.append(x if (x.endswith(":") or x.startswith(".")) else "  " + x)
    def label(self, s): self.l.append(s + ":")
    def text(self): return "\n".join(self.l) + "\n"

def vr(b, n=1): return f"v{b}" if n == 1 else f"v[{b}:{b+n-1}]"
def f32hex(x): return "0x%08x" % struct.unpack("<I", struct.pack("<f", x))[0]

P_X, P_K, P_V, P_WQ, P_WO, P_OUT, P_DBG, P_WS = 16, 18, 20, 22, 24, 26, 28, 30
SZ_X, SZ_KV, SZ_W, SZ_OUT = 1179648, 8388608, 4718592, 1179648
WS_O = 0
WS_P = 8 << 20
WS_F = 28 << 20
WS_F2 = (28 << 20) + (1 << 19)
WS_D = 8 << 20
WS_STAMP = 32 << 20
SZ_WS_USED = 64 << 20
S_WAVE, S_X, S_R, S_J, S_G, S_H = 3, 4, 5, 6, 9, 10

OPT = dict(stamps=False, fast=1, spin_max=2000000, kvmode=20, flagpos=3, xonce=1, vearly=1, woearly=1, d_sleep=3, o_sleep=1, k_nt=1, v_nt=1, wot_pos=8, dk=1)

def srd(a, base, ptr, size, add=0):
    if add:
        a(f"s_add_u32 s{base}, s{ptr}, {add}"); a(f"s_addc_u32 s{base+1}, s{ptr+1}, 0")
        a(f"s_and_b32 s{base+1}, s{base+1}, 0xffff")
    else:
        a(f"s_mov_b32 s{base}, s{ptr}"); a(f"s_and_b32 s{base+1}, s{ptr+1}, 0xffff")
    a(f"s_mov_b32 s{base+2}, {size}"); a(f"s_mov_b32 s{base+3}, 0x00020000")

def prologue(a, name, nwg=256):
    a(".p2align 8"); a(f".globl {name}"); a(f".type {name},@function"); a.label(name)
    a(f"s_cmp_ge_u32 s2, {nwg}"); a(f"s_cbranch_scc1 L_end_{name}")
    if OPT['stamps'] and OPT.get('entrystamp', 0): a("s_memrealtime s[96:97]")
    a("s_load_dwordx16 s[16:31], s[0:1], 0")
    a("v_lshrrev_b32 v1, 6, v0"); a("v_and_b32 v0, 63, v0")
    a(f"s_and_b32 s{S_X}, s2, 7"); a(f"s_lshr_b32 s{S_R}, s2, 3")
    a(f"v_readfirstlane_b32 s{S_WAVE}, v1")
    a(f"s_and_b32 s{S_J}, s{S_R}, 3"); a(f"s_lshr_b32 s{S_G}, s{S_R}, 2")
    a(f"s_lshl_b32 s{S_H}, s{S_X}, 2"); a(f"s_add_u32 s{S_H}, s{S_H}, s{S_J}")
    if OPT['stamps'] or not OPT.get('latewait', 1): a("s_waitcnt lgkmcnt(0)")

def kwait(a):
    if not OPT['stamps'] and OPT.get('latewait', 1): a("s_waitcnt lgkmcnt(0)")

KIDX = 0
CUR = {}
def tstamp(a, idx):
    if OPT.get('tailstamps', 0): stamp(a, idx, force=True)
def stamp(a, idx, force=False):
    if OPT.get('probe', -1) == idx and CUR.get('compute') and (force or not (OPT.get('tailstamps', 0) and idx in (1,2,3,4,13))):
        a("s_memrealtime s[60:61]"); a("s_waitcnt lgkmcnt(0)")
        return
    if not OPT['stamps']: return
    if OPT.get('tailstamps', 0) and not force and idx in (1,2,3,4,13) and CUR.get('compute'): return
    a(f"s_memrealtime s[{60+2*idx}:{61+2*idx}]"); a("s_waitcnt lgkmcnt(0)")
def cstamp(a, idx):
    if not OPT['stamps']: return
    a(f"s_memtime s[{60+2*idx}:{61+2*idx}]"); a("s_waitcnt lgkmcnt(0)")
def stamp_init(a):
    if not OPT['stamps']: return
    for i in range(16): a(f"s_mov_b64 s[{60+2*i}:{61+2*i}], 0")
def stamp_flush(a, vb=250):
    if not OPT['stamps']: return
    srd(a, 92, P_WS, 256*16*16*8, add=WS_STAMP + KIDX*256*8*16*8)
    a("s_lshl_b32 s96, s2, 3"); a(f"s_add_u32 s96, s96, s{S_WAVE}"); a("s_lshl_b32 s96, s96, 7")
    a(f"v_mov_b32 v{vb+2}, 0")
    for i in range(16):
        a(f"v_mov_b32 v{vb}, s{60+2*i}"); a(f"v_mov_b32 v{vb+1}, s{61+2*i}")
        a(f"buffer_store_dwordx2 v[{vb}:{vb+1}], v{vb+2}, s[92:95], s96 offen offset:{i*8}")
        a("s_nop 1")
    a("s_waitcnt vmcnt(0)")

L_K = 98304; L_V = 131072; NCH = 9
W_SLOT = 36864

def dma(a, voff, srdb, soff, off=0, nt=False):
    a(f"buffer_load_dwordx4 v{voff}, s[{srdb}:{srdb+3}], s{soff} offen" + (f" offset:{off}" if off else "") + (" nt" if nt else "") + " lds")

V_WOV = 16
def wo_prep(a):
    srd(a, 52, P_WO, SZ_W)
    for t in range(9):
        a(f"v_add_u32 v1, {64*t}, v0")
        a("v_mul_u32_u24 v2, 3641, v1")
        a("v_lshrrev_b32 v2, 16, v2")
        a("v_mul_u32_u24 v3, 18, v2")
        a("v_sub_u32 v3, v1, v3")
        a("v_lshlrev_b32 v3, 4, v3")
        a("v_mul_u32_u24 v2, 1152, v2")
        a(f"v_add_u32 v{V_WOV+t}, v2, v3")
    a(f"s_mul_i32 s56, s{S_J}, 288")
def wo_issue(a, slot, q0, nq):
    a(f"s_add_u32 s57, s{S_J}, {slot}"); a("s_and_b32 s57, s57, 3")
    a(f"s_lshl_b32 s58, s{S_X}, 2"); a("s_add_u32 s57, s57, s58")
    a(f"s_mul_i32 s57, s57, {128*1152}"); a("s_add_u32 s57, s57, s56")
    if q0: a(f"s_add_u32 s57, s57, {q0*32*1152}")
    a(f"s_mov_b32 m0, {slot*W_SLOT + q0*32*288}"); a("s_nop 0")
    for blk in range(nq):
        for t in range(9):
            dma(a, V_WOV + t, 52, 57)
            if not (blk == nq - 1 and t == 8):
                a("s_add_u32 m0, m0, 1024")
                if t == 8: a(f"s_add_u32 s57, s57, {32*1152}")
                else: a("s_nop 0")

def loader_tail(a, role):
    a("s_barrier")
    stamp(a, 8)
    if role < 2:
        wo_issue(a, 0, 2 * role, 2); wo_issue(a, 1, 2 * role, 2)
    stamp(a, 9)
    if OPT.get('vearly', 0):
        if role < 2: a("s_waitcnt vmcnt(18)")
        a("s_barrier")
    else:
        if role == 3: a("s_waitcnt vmcnt(0)")
        a("s_barrier")
        if role < 2: a("s_waitcnt vmcnt(18)")
        a("s_barrier")
    if OPT.get('woearly', 0):
        wo_issue(a, 2, role, 1)
        wo_issue(a, 3, role, 1)
        stamp(a, 10)
        if role < 2: a("s_waitcnt vmcnt(18)")
        a("s_barrier")
    else:
        if role < 2: a("s_waitcnt vmcnt(0)")
        a("s_barrier")
        wo_issue(a, 2, role, 1)
        wo_issue(a, 3, role, 1)
        stamp(a, 10)
    a("s_waitcnt vmcnt(9)")
    a("s_barrier")
    a("s_waitcnt vmcnt(0)")
    stamp(a, 11)
    a("s_barrier")

def loader_ring(a, which):
    SRD = 32; SO = 40
    if which == 'wq':
        a("v_lshrrev_b32 v1, 4, v0"); a("v_and_b32 v2, 15, v0")
        a("v_lshlrev_b32 v3, 2, v1"); a("v_xor_b32 v3, v3, v2"); a("v_lshlrev_b32 v3, 4, v3")
        a("v_lshlrev_b32 v4, 13, v1"); a("v_add_u32 v4, v4, v3")
        a(f"s_lshl_b32 s{SO}, s{S_H}, 8")
        def issue(kc):
            a(f"s_mov_b32 m0, {(kc%3)*32768}")
            for t in range(16):
                if t == 0: a("s_nop 0")
                dma(a, 4, SRD, SO)
                a(f"s_add_u32 s{SO}, s{SO}, 32768")
                if t < 15:
                    a("s_add_u32 m0, m0, 1024"); a("s_nop 0")
    else:
        a("v_lshrrev_b32 v1, 3, v0"); a("v_mul_u32_u24 v1, 1152, v1")
        a("v_and_b32 v2, 7, v0"); a("v_lshrrev_b32 v3, 4, v0"); a("v_xor_b32 v2, v2, v3")
        a("v_lshlrev_b32 v4, 4, v2"); a("v_add_u32 v4, v4, v1")
        a("v_xor_b32 v2, 4, v2"); a("v_lshlrev_b32 v5, 4, v2"); a("v_add_u32 v5, v5, v1")
        a(f"s_mul_i32 s{SO+1}, s{S_G}, 147456")
        def issue(kc):
            a(f"s_mov_b32 m0, {(kc%3)*32768 + 16384}")
            a(f"s_add_u32 s{SO}, s{SO+1}, {kc*128}")
            for T in range(16):
                dma(a, 4 + (T & 1), SRD, SO)
                if T < 15:
                    a("s_add_u32 m0, m0, 1024"); a(f"s_add_u32 s{SO}, s{SO}, 9216")
    kv_pos(a, 43, 'k')
    if which == 'wq':
        a("v_lshrrev_b32 v8, 1, v0"); a("v_and_b32 v9, 1, v0")
        a("v_lshlrev_b32 v8, 13, v8"); a("v_lshl_add_u32 v8, v9, 7, v8")
        a(f"s_lshl_b32 s46, s{S_G}, {5+13}"); a(f"s_lshl_b32 s47, s{S_H}, 8"); a("s_add_u32 s46, s46, s47")
        def touch(part):
            if part == 0:
                a(f"buffer_load_dword v10, v8, s[{SRD}:{SRD+3}], s46 offen")
            else:
                a(f"s_add_u32 s46, s46, {256*8192}")
                a(f"buffer_load_dword v10, v8, s[{SRD}:{SRD+3}], s46 offen")
                a(f"s_lshl_b32 s46, s{S_G}, {3+13}"); a("s_add_u32 s46, s46, s47"); a(f"s_add_u32 s46, s46, {512*8192}")
                a("s_mov_b64 exec, 0xffff")
                a(f"buffer_load_dword v10, v8, s[{SRD}:{SRD+3}], s46 offen")
                a("s_mov_b64 exec, -1")
        NT1 = 2
    else:
        if OPT.get('xonce', 0):
            a("v_mul_u32_u24 v8, 7282, v0"); a("v_lshrrev_b32 v8, 16, v8")
            a("v_mul_u32_u24 v9, 9, v8"); a("v_sub_u32 v9, v0, v9")
            a("v_mul_u32_u24 v8, 1152, v8"); a("v_lshl_add_u32 v8, v9, 7, v8")
            a(f"s_mul_i32 s46, s{S_G}, 147456"); a(f"s_mul_i32 s47, s{S_H}, {4*1152}"); a("s_add_u32 s46, s46, s47")
            def touch(part):
                if part == 0:
                    a("s_mov_b32 exec_lo, -1"); a("s_mov_b32 exec_hi, 15")
                    a(f"buffer_load_dword v10, v8, s[{SRD}:{SRD+3}], s46 offen")
                    a("s_mov_b64 exec, -1")
            NT1 = 0
        else:
            a("v_and_b32 v9, 31, v0"); a("v_mul_u32_u24 v9, 1152, v9")
            a("v_lshrrev_b32 v8, 5, v0"); a("v_lshl_add_u32 v8, v8, 7, v9")
            a(f"s_mul_i32 s46, s{S_G}, 147456"); a(f"s_mul_i32 s47, s{S_J}, {32*1152}"); a("s_add_u32 s46, s46, s47")
            def touch(part):
                if part == 0:
                    a(f"buffer_load_dword v10, v8, s[{SRD}:{SRD+3}], s46 offen")
                else:
                    for t in range(1, 4):
                        a(f"buffer_load_dword v10, v8, s[{SRD}:{SRD+3}], s46 offen offset:{256*t}")
                    a("s_mov_b64 exec, 0xffffffff")
                    a(f"buffer_load_dword v10, v9, s[{SRD}:{SRD+3}], s46 offen offset:1024")
                    a("s_mov_b64 exec, -1")
            NT1 = 4
    kwait(a)
    srd(a, SRD, P_WQ if which == 'wq' else P_X, SZ_W if which == 'wq' else SZ_X)
    touch(0)
    issue(0); stamp(a, 1)
    touch(1)
    a("s_barrier")
    bx(a, -1, "r" + which)
    issue(1)
    stamp(a, 2)
    a(f"s_waitcnt vmcnt({16 + NT1})")
    stamp(a, 3)
    a("s_barrier")
    bx(a, 0, "r" + which)
    issue(2)
    for i in range(1, NCH):
        last_issued = min(i + 1, NCH - 1)
        a(f"s_waitcnt vmcnt({(last_issued - i) * 16})")
        a("s_barrier")
        if which == 'wq' and i in (1,2,3,4): stamp(a, {1:4,2:5,3:6,4:12}[i])
        if which == 'x' and i in (5,6,7,8): stamp(a, {5:4,6:5,7:6,8:12}[i])
        if i < 8: bx(a, i, "r" + which)
        if i + 2 < NCH: issue(i + 2)
        if i == 7: wo_prep(a)
    stamp(a, 7)
    loader_tail(a, 0 if which == 'wq' else 1)

def kv_pos(a, sdst, which):
    m = OPT['kvmode']
    if m == 10:
        tab = [-1, 2, 4, 7]
    elif m == 11: tab = [7, 7, 7, 7]
    elif m == 12: tab = [-1, -1, -1, -1]
    elif m == 13: tab = [1, 1, 6, 6]
    elif m == 14: tab = [-1, 1, 4, 7]
    elif m == 15: tab = [0, 3, 5, 7]
    elif m == 16: tab = [2, 7, 2, 7]
    elif m == 17: tab = [3, 5, 7, 7]
    elif m == 20: tab = [-1, 1, 3, 5]
    elif m == 21: tab = [-1, 2, 4, 6]
    elif m == 22: tab = [-1, -1, 3, 3]
    elif m == 23: tab = [-1, 0, 2, 4]
    elif m == 24: tab = [0, 2, 4, 6]
    elif m == 25: tab = [-1, -1, -1, -1]
    packed = sum(((p + 1) & 15) << (4 * k) for k, p in enumerate(tab))
    a(f"s_and_b32 s{sdst}, s{S_G}, 3"); a(f"s_lshl_b32 s{sdst}, s{sdst}, 2")
    a(f"s_lshr_b32 s{sdst}, {packed}, s{sdst}"); a(f"s_and_b32 s{sdst}, s{sdst}, 15")

def bx(a, p, tag):
    if p >= 6: return
    a(f"s_cmp_lg_u32 s43, {p+1}"); a(f"s_cbranch_scc1 L_bx_{tag}_{p+1}")
    a("s_barrier")
    a.label(f"L_bx_{tag}_{p+1}")

def kv_loop(a, tag, issue_fn, extra_fn=None, extra_pos=None):
    a("s_mov_b32 s59, 0")
    a.label(f"L_{tag}_loop")
    a("s_cmp_lg_u32 s59, s43"); a(f"s_cbranch_scc1 L_{tag}_skip")
    stamp(a, 3)
    issue_fn()
    stamp(a, 4)
    a(f"s_cmp_ge_u32 s59, 7"); a(f"s_cbranch_scc1 L_{tag}_skip")
    a("s_barrier")
    a.label(f"L_{tag}_skip")
    if extra_fn is not None:
        a(f"s_cmp_lg_u32 s59, {extra_pos}"); a(f"s_cbranch_scc1 L_{tag}_skip2")
        extra_fn()
        a.label(f"L_{tag}_skip2")
    a("s_barrier")
    a("s_add_u32 s59, s59, 1")
    a("s_cmp_le_u32 s59, 8"); a(f"s_cbranch_scc1 L_{tag}_loop")

def loader_k(a):
    SRD = 32; SO = 40
    kwait(a)
    srd(a, SRD, P_K, SZ_KV)
    a("v_lshrrev_b32 v1, 4, v0"); a("v_and_b32 v2, 15, v0"); a("v_xor_b32 v2, v2, v1")
    a("v_lshlrev_b32 v2, 4, v2"); a("v_lshl_add_u32 v4, v1, 8, v2")
    a("v_xor_b32 v5, 64, v4"); a("v_xor_b32 v6, 128, v4"); a("v_xor_b32 v7, 192, v4")
    wo_prep(a)
    a("v_and_b32 v8, 15, v0"); a("v_mul_u32_u24 v8, 1152, v8")
    a("v_lshrrev_b32 v9, 4, v0"); a("v_lshl_add_u32 v9, v9, 7, v8")
    kv_pos(a, 43, 'k')
    a("s_barrier")
    stamp(a, 1)
    def issue():
        a(f"s_lshl_b32 s{SO}, s{S_G}, 7"); a(f"s_add_u32 s{SO}, s{SO}, s{S_H}"); a(f"s_lshl_b32 s{SO}, s{SO}, 13")
        for w in range(4):
            for hf in range(2):
                a(f"s_mov_b32 m0, {L_K + w*8192 + hf*4096}"); a("s_nop 0")
                for t4 in range(4):
                    t = hf * 4 + t4
                    dma(a, 4 + (t >> 1), SRD, SO, off=t4 * 1024, nt=bool(OPT['k_nt']))
                a(f"s_add_u32 s{SO}, s{SO}, {4096 if hf == 0 else 32*8192 - 4096}")
    def wotouch():
        a(f"s_lshl_b32 s{SO}, s{S_X}, 5"); a(f"s_add_u32 s{SO}, s{SO}, s{S_R}")
        a(f"s_mul_i32 s{SO}, s{SO}, {16*1152}")
        a(f"buffer_load_dword v10, v9, s[52:55], s{SO} offen")
        a(f"buffer_load_dword v10, v9, s[52:55], s{SO} offen offset:512")
        a("s_mov_b64 exec, 0xffff")
        a(f"buffer_load_dword v10, v8, s[52:55], s{SO} offen offset:1024")
        a("s_mov_b64 exec, -1")
    kv_loop(a, "k", issue, wotouch, OPT['wot_pos'])
    a("s_waitcnt vmcnt(3)")
    stamp(a, 7)
    loader_tail(a, 2)

def loader_v(a):
    SRD = 32; SO = 40
    kwait(a)
    srd(a, SRD, P_V, SZ_KV)
    a("s_cmp_lg_u32 s2, 0"); a("s_cbranch_scc1 L_nononce")
    srd(a, 48, P_DBG, 256)
    a("s_memrealtime s[42:43]"); a("s_waitcnt lgkmcnt(0)")
    a("s_or_b32 s42, s42, 1")
    a("v_mov_b32 v8, s42"); a("v_mov_b32 v9, s43"); a("v_mov_b32 v1, 0")
    a("s_mov_b64 exec, 1")
    a("buffer_store_dwordx2 v[8:9], v1, s[48:51], 0 offen sc1")
    a("s_mov_b64 exec, -1")
    a.label("L_nononce")
    if OPT['fast']:
        srd(a, 48, P_DBG, 256)
        a("s_getreg_b32 s42, hwreg(HW_REG_XCC_ID)")
        a("s_and_b32 s42, s42, 15")
        a("s_cmp_ge_u32 s42, 8"); a("s_cbranch_scc1 L_noxcc")
        a("s_mul_i32 s43, s42, s42"); a("s_lshl_b32 s43, s43, 5"); a("s_add_u32 s42, s42, s43")
        a("s_add_u32 s42, s42, 0x2000")
        a(f"s_lshl_b32 s43, s{S_G}, 3"); a(f"s_add_u32 s43, s43, s{S_X}")
        a("s_and_b32 s41, s43, 1"); a("s_lshl_b32 s41, s41, 4"); a("s_lshl_b32 s42, s42, s41")
        a("s_lshr_b32 s43, s43, 1"); a("s_lshl_b32 s43, s43, 2"); a("s_add_u32 s43, s43, 128")
        a("v_mov_b32 v8, s42"); a("v_mov_b32 v1, 0")
        a("s_mov_b64 exec, 1")
        a("buffer_atomic_add v8, v1, s[48:51], s43 offen")
        a("s_mov_b64 exec, -1")
        a.label("L_noxcc")
    a("v_lshrrev_b32 v1, 4, v0"); a("v_and_b32 v2, 15, v0"); a("v_lshlrev_b32 v3, 1, v1")
    a("v_xor_b32 v2, v2, v3"); a("v_lshlrev_b32 v2, 4, v2"); a("v_lshl_add_u32 v4, v1, 8, v2")
    a("v_xor_b32 v5, 128, v4")
    wo_prep(a)
    kv_pos(a, 43, 'v')
    a("s_barrier")
    stamp(a, 1)
    def issue():
        a(f"s_lshl_b32 s{SO}, s{S_G}, 7"); a(f"s_add_u32 s{SO}, s{SO}, s{S_H}"); a(f"s_lshl_b32 s{SO}, s{SO}, 13")
        for w in range(4):
            for hf in range(2):
                a(f"s_mov_b32 m0, {L_V + w*8192 + hf*4096}"); a("s_nop 0")
                for t4 in range(4):
                    t = hf * 4 + t4
                    dma(a, 4 + ((t >> 1) & 1), SRD, SO, off=t4 * 1024, nt=bool(OPT['v_nt']))
                a(f"s_add_u32 s{SO}, s{SO}, {4096 if hf == 0 else 32*8192 - 4096}")
    kv_loop(a, "v", issue)
    if OPT.get('vearly', 0): a("s_waitcnt vmcnt(0)")
    stamp(a, 7)
    loader_tail(a, 3)

V_XA = [4, 8]; V_WA = [12, 248]
V_A = [16, 32]; V_B = [48, 52]; V_ACC = 64
V_QF = 128; V_KF = 160; V_S = 192; V_VF = 208; V_PF = 240; V_OF = 128
V_KA = 56; V_VA = 60; V_CLW = 61; V_NONCE = 62
SC_SCALE = 0.08838834764831845 * 1.4426950408889634

def gemm1_addrs(a):
    a("v_and_b32 v1, 31, v0"); a("v_lshrrev_b32 v2, 5, v0"); a("v_bfe_u32 v3, v0, 1, 3")
    a("v_xor_b32 v2, v2, v3"); a("v_lshlrev_b32 v2, 4, v2"); a("v_lshl_add_u32 v2, v1, 7, v2")
    a(f"s_lshl_b32 s40, s{S_WAVE}, 12"); a("s_add_u32 s40, s40, 16384")
    a("v_add_u32 v2, s40, v2")
    for ks in range(4):
        a(f"v_xor_b32 v{V_XA[0]+ks}, {32*ks}, v2"); a(f"v_add_u32 v{V_XA[1]+ks}, 65536, v{V_XA[0]+ks}")
    a("v_bfe_u32 v1, v0, 2, 2"); a("v_lshrrev_b32 v2, 5, v0"); a("v_lshl_add_u32 v2, v2, 3, v1")
    a("v_lshlrev_b32 v2, 8, v2"); a("v_and_b32 v3, 1, v0"); a("v_lshl_add_u32 v2, v3, 5, v2")
    a("v_bfe_u32 v3, v0, 4, 1"); a("v_lshl_add_u32 v2, v3, 4, v2")
    a("v_bfe_u32 v3, v0, 1, 1"); a("v_lshl_add_u32 v2, v3, 3, v2")
    a("v_lshl_add_u32 v2, v1, 6, v2")
    for dt in range(4):
        a(f"v_xor_b32 v{V_WA[0]+dt}, {64*dt}, v2"); a(f"v_add_u32 v{V_WA[1]+dt}, 65536, v{V_WA[0]+dt}")

def attn_addrs(a):
    a("v_and_b32 v1, 15, v0"); a("v_lshrrev_b32 v2, 4, v0"); a("v_xor_b32 v2, v2, v1")
    a("v_lshlrev_b32 v2, 4, v2"); a("v_lshrrev_b32 v3, 2, v1"); a("v_lshl_add_u32 v2, v3, 11, v2")
    a("v_and_b32 v3, 3, v1"); a("v_lshl_add_u32 v2, v3, 8, v2")
    a(f"s_lshl_b32 s40, s{S_WAVE}, 13"); a(f"s_add_u32 s40, s40, {L_K}")
    a("v_add_u32 v2, s40, v2")
    for st in range(4): a(f"v_xor_b32 v{V_KA+st}, {64*st}, v2")
    a("v_lshrrev_b32 v1, 4, v0"); a("v_bfe_u32 v3, v0, 2, 2"); a("v_lshl_add_u32 v2, v1, 3, v3")
    a("v_lshlrev_b32 v2, 8, v2"); a("v_and_b32 v1, 1, v1"); a("v_lshl_add_u32 v3, v1, 2, v3")
    a("v_lshl_add_u32 v2, v3, 5, v2"); a("v_and_b32 v3, 3, v0"); a("v_lshl_add_u32 v2, v3, 3, v2")
    a(f"s_lshl_b32 s40, s{S_WAVE}, 13"); a(f"s_add_u32 s40, s40, {L_V}")
    a(f"v_add_u32 v{V_VA}, s40, v2")

def g1_reads(n):
    i, ks = divmod(n, 4)
    slot = i % 3; st = n & 1; hs = 1 if slot == 2 else 0; so = (slot & 1) * 32768 if slot < 2 else 0
    r = [f"ds_read_b128 {vr(V_B[st],4)}, v{V_XA[hs]+ks} offset:{so}"]
    for dt in range(4):
        base = V_A[st] + 4 * dt
        off = so + ks * 4096
        r.append(f"ds_read_b64_tr_b16 {vr(base,2)}, v{V_WA[hs]+dt} offset:{off}")
        r.append(f"ds_read_b64_tr_b16 {vr(base+2,2)}, v{V_WA[hs]+dt} offset:{off+1024}")
    return r

def gemm1(a):
    NS = NCH * 4
    kv_pos(a, 43, 'k')
    a("s_barrier")
    bx(a, -1, "c")
    a("s_barrier")
    stamp(a, 1)
    for r in g1_reads(0): a(r)
    for n in range(NS):
        i, ks = divmod(n, 4); st = n & 1
        nxt = g1_reads(n + 1) if n + 1 < NS else []
        def mf(dt):
            c = "0" if n == 0 else vr(V_ACC + 16 * dt, 16)
            a(f"v_mfma_f32_32x32x16_bf16 {vr(V_ACC+16*dt,16)}, {vr(V_A[st]+4*dt,4)}, {vr(V_B[st],4)}, {c}")
        if ks == 3:
            for dt in range(4):
                a(f"s_waitcnt lgkmcnt({[6,4,2,0][dt]})")
                if dt == 3 and nxt:
                    bx(a, i, "c")
                    a("s_barrier")
                    for r in nxt[:5]: a(r)
                mf(dt)
            for r in nxt[5:]: a(r)
        else:
            first_after_boundary = (ks == 0 and n > 0)
            for dt in range(4):
                a(f"s_waitcnt lgkmcnt({[6,7,8,9][dt]})")
                mf(dt)
                if dt < 3:
                    for r in nxt[3*dt:3*dt+3]: a(r)
        if n == 24:
            a(f"buffer_load_dwordx2 {vr(V_NONCE,2)}, v1, s[36:39], 0 offen sc1")
            if OPT['fast']:
                a(f"buffer_load_dword v{V_CLW}, v1, s[36:39], s40 offen sc1")
                a(f"buffer_load_dword v2, v1, s[44:47], s42 offen sc1")

def attention(a):
    VE = OPT.get('vearly', 0)
    a("s_barrier")
    stamp(a, 3)
    for ai in range(2):
        for st in range(4):
            a(f"ds_read_b128 {vr(V_KF+(ai*4+st)*4,4)}, v{V_KA+st} offset:{ai*1024}")
    def vreads(T0, T1):
        for T in range(T0, T1):
            if T: a(f"v_xor_b32 v1, {32*T}, v{V_VA}")
            ad = "v1" if T else f"v{V_VA}"
            a(f"ds_read_b64_tr_b16 {vr(V_VF+4*T,2)}, {ad}")
            a(f"ds_read_b64_tr_b16 {vr(V_VF+4*T+2,2)}, {ad} offset:1024")
    for dt in range(4):
        for i in range(8):
            a(f"v_cvt_pk_bf16_f32 v{V_QF+8*dt+i}, v{V_ACC+16*dt+2*i}, v{V_ACC+16*dt+2*i+1}")
        if VE and dt == 1:
            a("s_waitcnt lgkmcnt(0)"); vreads(0, 4)
    a("s_nop 1")
    for dt in range(4):
        for i in range(4):
            a(f"v_permlane16_swap_b32 v{V_QF+8*dt+i}, v{V_QF+8*dt+4+i}")
    if VE:
        a("s_waitcnt lgkmcnt(4)"); vreads(4, 8)
    else:
        a("s_waitcnt lgkmcnt(0)")
    for st in range(4):
        for ai in range(2):
            for qt in range(2):
                d = vr(V_S + (ai*2+qt)*4, 4)
                c = "0" if st == 0 else d
                a(f"v_mfma_f32_16x16x32_bf16 {d}, {vr(V_KF+(ai*4+st)*4,4)}, {vr(V_QF+8*st+4*qt,4)}, {c}")
    if VE:
        a("s_waitcnt lgkmcnt(0)")
    def S(ai, qt, v): return V_S + (ai*2+qt)*4 + v
    M = [48, 49]; T_ = [50, 51]; SUM = [52, 53]
    a("s_nop 7")
    for qt in range(2): a(f"v_max3_f32 v{M[qt]}, v{S(0,qt,0)}, v{S(0,qt,1)}, v{S(0,qt,2)}")
    for qt in range(2): a(f"v_max3_f32 v{M[qt]}, v{M[qt]}, v{S(0,qt,3)}, v{S(1,qt,0)}")
    for qt in range(2): a(f"v_max3_f32 v{M[qt]}, v{M[qt]}, v{S(1,qt,1)}, v{S(1,qt,2)}")
    for qt in range(2): a(f"v_max_f32 v{M[qt]}, v{M[qt]}, v{S(1,qt,3)}")
    def xlane(regs, tmps, op):
        for sw in ("v_permlane16_swap_b32", "v_permlane32_swap_b32"):
            for qt in range(2): a(f"v_mov_b32 v{tmps[qt]}, v{regs[qt]}")
            a("s_nop 0")
            for qt in range(2): a(f"{sw} v{tmps[qt]}, v{regs[qt]}")
            a("s_nop 0")
            for qt in range(2): a(f"{op} v{regs[qt]}, v{regs[qt]}, v{tmps[qt]}")
    xlane(M, T_, "v_max_f32")
    a(f"s_mov_b32 s41, {f32hex(SC_SCALE)}")
    for qt in range(2): a(f"v_mul_f32 v{M[qt]}, s41, v{M[qt]}")
    for ai in range(2):
        for v in range(4):
            for qt in range(2): a(f"v_fma_f32 v{S(ai,qt,v)}, v{S(ai,qt,v)}, s41, -v{M[qt]}")
    for ai in range(2):
        for v in range(4):
            for qt in range(2): a(f"v_exp_f32 v{S(ai,qt,v)}, v{S(ai,qt,v)}")
    a("s_nop 0")
    for qt in range(2): a(f"v_add_f32 v{SUM[qt]}, v{S(0,qt,0)}, v{S(0,qt,1)}")
    for (ai, v) in [(0,2),(0,3),(1,0),(1,1),(1,2),(1,3)]:
        for qt in range(2): a(f"v_add_f32 v{SUM[qt]}, v{SUM[qt]}, v{S(ai,qt,v)}")
    xlane(SUM, T_, "v_add_f32")
    for qt in range(2): a(f"v_rcp_f32 v{SUM[qt]}, v{SUM[qt]}")
    a("s_nop 0")
    for ai in range(2):
        for v in range(4):
            for qt in range(2): a(f"v_mul_f32 v{S(ai,qt,v)}, v{S(ai,qt,v)}, v{SUM[qt]}")
    for qt in range(2):
        for ai in range(2):
            for h2 in range(2):
                a(f"v_cvt_pk_bf16_f32 v{V_PF+4*qt+2*ai+h2}, v{S(ai,qt,2*h2)}, v{S(ai,qt,2*h2+1)}")
    stamp(a, 4)
    if VE:
        a("s_nop 0")
    else:
        a("s_barrier")
        vreads(0, 6); a("s_waitcnt lgkmcnt(4)"); vreads(6, 8)
        a("s_waitcnt lgkmcnt(0)")
        a("s_barrier")
    for T in range(8):
        for qt in range(2):
            a(f"v_mfma_f32_16x16x32_bf16 {vr(V_ACC+(T*2+qt)*4,4)}, {vr(V_VF+4*T,4)}, {vr(V_PF+4*qt,4)}, 0")
    if VE: a("s_barrier")
    a("s_nop 7")
    for p in range(4):
        for qt in range(2):
            for e in range(2):
                T = 2*p + e
                for h2 in range(2):
                    src = V_ACC + (T*2+qt)*4 + 2*h2
                    a(f"v_cvt_pk_bf16_f32 v{V_OF+(2*p+qt)*4+2*e+h2}, v{src}, v{src+1}")

V2_ACC = 16
V2_A = [88, 108]
V2_AD = [4, 5, 6, 12]
BUF = [160, 192, 224]

def p2_areads(slot, p, half, buf=None):
    r = []
    ad = V2_AD[slot]
    taus = range(0, 5) if half == 0 else range(5, 9)
    if buf is None: buf = half
    for k, tau in enumerate(taus):
        off = p * 32 * 288 + 32 * tau
        base = V2_A[buf] + 4 * k
        r.append(f"ds_read_b64_tr_b16 {vr(base,2)}, v{ad} offset:{off}")
        r.append(f"ds_read_b64_tr_b16 {vr(base+2,2)}, v{ad} offset:{off+16*288}")
    return r

def p2_bloads(a, slot, breg):
    a(f"s_add_u32 s45, s{S_J}, {slot}"); a("s_and_b32 s45, s45, 3"); a("s_add_u32 s45, s45, s44")
    a("s_lshl_b32 s45, s45, 2"); a(f"s_add_u32 s45, s45, s{S_WAVE}")
    a("s_lshl_b32 s46, s45, 13"); a("s_add_u32 s47, s46, 4096")
    for f in range(8):
        a(f"buffer_load_dwordx4 {vr(breg+4*f,4)}, v7, s[32:35], s{46 + f//4} offen offset:{(f%4)*1024} sc1")

S_NON = 52
S_FAST = 54

def get_nonce(a):
    a("s_waitcnt vmcnt(0)")
    a("v_mov_b32 v9, 0")
    a("s_mov_b32 s50, 0")
    a.label("L_nonce_chk")
    a(f"v_readfirstlane_b32 s{S_NON}, v{V_NONCE}"); a(f"v_readfirstlane_b32 s{S_NON+1}, v{V_NONCE+1}")
    a("s_nop 0")
    a(f"s_cmp_lg_u32 s{S_NON}, 0"); a("s_cbranch_scc1 L_nonce_ok")
    a(f"buffer_load_dwordx2 {vr(V_NONCE,2)}, v9, s[36:39], 0 offen sc1")
    a("s_add_u32 s50, s50, 1"); a("s_waitcnt vmcnt(0)")
    a(f"s_cmp_lt_u32 s50, {OPT['spin_max']}"); a("s_cbranch_scc1 L_nonce_chk")
    a.label("L_nonce_ok")
    a(f"s_mov_b32 s{S_FAST}, 0")
    if OPT['fast']:
        a(f"v_readfirstlane_b32 s55, v{V_CLW}")
        a(f"s_and_b32 s56, s{S_X}, 1"); a("s_lshl_b32 s56, s56, 4"); a("s_lshr_b32 s55, s55, s56")
        a("s_and_b32 s56, s55, 31")
        a("s_bfe_u32 s57, s55, 0x80005")
        a("s_bfe_u32 s55, s55, 0x3000d")
        a("s_mul_i32 s56, s56, s56"); a("s_lshl_b32 s57, s57, 2")
        a("s_cmp_eq_u32 s56, s57"); a(f"s_cselect_b32 s{S_FAST}, 1, 0")
        a("s_cmp_eq_u32 s55, 4"); a(f"s_cselect_b32 s{S_FAST}, s{S_FAST}, 0")
        if OPT['fast'] == 2: a(f"s_mov_b32 s{S_FAST}, 0")

def poll(a, tag, voff, soff, sleep=0):
    a("s_mov_b32 s50, 0")
    a.label(f"L_poll_{tag}")
    if sleep: a(f"s_sleep {sleep}")
    a(f"buffer_load_dwordx2 v[10:11], v{voff}, s[32:35], s{soff} offen sc1")
    a("s_add_u32 s50, s50, 1"); a("s_waitcnt vmcnt(0)")
    a(f"v_cmp_eq_u64 vcc, v[10:11], s[{S_NON}:{S_NON+1}]")
    a(f"s_cmp_ge_u32 s50, {OPT['spin_max']}"); a(f"s_cbranch_scc1 L_poll_{tag}_done")
    a("s_cmp_eq_u64 vcc, -1"); a(f"s_cbranch_scc0 L_poll_{tag}")
    a.label(f"L_poll_{tag}_done")

def flag_store(a, soff, mode):
    a(f"v_mov_b32 v10, s{S_NON}"); a(f"v_mov_b32 v11, s{S_NON+1}")
    a("s_mov_b64 exec, 1")
    if mode == 'dyn':
        a(f"s_cmp_eq_u32 s{S_FAST}, 0"); a("s_cbranch_scc1 L_flag_slow")
        a(f"buffer_store_dwordx2 v[10:11], v9, s[32:35], s{soff} offen")
        a("s_branch L_flag_join")
        a.label("L_flag_slow")
        a(f"buffer_store_dwordx2 v[10:11], v9, s[32:35], s{soff} offen sc1")
        a.label("L_flag_join")
    else:
        a(f"buffer_store_dwordx2 v[10:11], v9, s[32:35], s{soff} offen sc1")
    a("s_mov_b64 exec, -1")

def o_store(a):
    srd(a, 32, P_WS, SZ_WS_USED)
    a("v_lshlrev_b32 v7, 4, v0")
    a(f"s_lshl_b32 s40, s{S_G}, 5"); a(f"s_add_u32 s40, s40, s{S_H}"); a("s_lshl_b32 s40, s40, 2")
    a(f"s_add_u32 s40, s40, s{S_WAVE}"); a("s_lshl_b32 s40, s40, 13"); a("s_add_u32 s41, s40, 4096")
    global OSTORES
    OSTORES = [f"buffer_store_dwordx4 {vr(V_OF+4*f,4)}, v7, s[32:35], s{40 + f//4} offen offset:{(f%4)*1024} sc1" for f in range(8)]
    a("v_lshrrev_b32 v2, 4, v0"); a("v_bfe_u32 v3, v0, 2, 2"); a("v_lshl_add_u32 v2, v2, 2, v3")
    a("v_mul_u32_u24 v2, 288, v2"); a("v_and_b32 v3, 3, v0")
    a(f"v_lshl_add_u32 v{V2_AD[0]}, v3, 3, v2")
    for sl in range(1, 4): a(f"v_add_u32 v{V2_AD[sl]}, {sl*W_SLOT}, v{V2_AD[0]}")
    a(f"s_lshl_b32 s44, s{S_G}, 5"); a(f"s_lshl_b32 s45, s{S_X}, 2"); a("s_add_u32 s44, s44, s45")
    a(f"s_lshl_b32 s48, s{S_G}, 3"); a(f"s_add_u32 s48, s48, s{S_X}"); a("s_lshl_b32 s48, s48, 2")
    a(f"s_add_u32 s48, s48, s{S_WAVE}"); a("s_lshl_b32 s48, s48, 7"); a(f"s_add_u32 s48, s48, {WS_F}")
    a(f"s_lshl_b32 s49, s{S_J}, 3"); a("s_add_u32 s49, s49, s48")
    a("v_and_b32 v8, 3, v0"); a("v_lshlrev_b32 v8, 3, v8")

def bload_list(slot, breg):
    setup = [f"s_add_u32 s45, s{S_J}, {slot}", "s_and_b32 s45, s45, 3", "s_add_u32 s45, s45, s44",
             "s_lshl_b32 s45, s45, 2", f"s_add_u32 s45, s45, s{S_WAVE}",
             "s_lshl_b32 s46, s45, 13", "s_add_u32 s47, s46, 4096"]
    loads = [f"buffer_load_dwordx4 {vr(breg+4*f,4)}, v7, s[32:35], s{46 + f//4} offen offset:{(f%4)*1024} sc1" for f in range(8)]
    return setup, loads

def p2_run(a, hs, n0, n1, hooks_pre=None, hooks_mid=None, inject=None, spread=None):
    hooks_pre = hooks_pre or {}; hooks_mid = hooks_mid or {}; inject = inject or {}; spread = spread or {}
    for n in range(n0, n1):
        (s, p, hf) = hs[n]
        breg = V_OF if s == 0 else BUF[s - 1]
        nxt = p2_areads(*hs[n+1], buf=(n+1) & 1) if n + 1 < n1 else []
        taus = list(range(0, 5)) if hf == 0 else list(range(5, 9))
        nown = 2 * len(taus)
        nm = nown
        plan = [0] * nm
        for t in range(len(nxt)): plan[t % nm] += 1
        issued = 0; m = 0
        inj = list(inject.get(n, []))
        spr = list(spread.get(n, []))
        per = -(-len(spr) // nm) if spr else 0
        if n in hooks_pre: hooks_pre[n]()
        for k, tau in enumerate(taus):
            a(f"s_waitcnt lgkmcnt({nown - 2 * (k + 1) + issued})")
            for qt in range(2):
                d = vr(V2_ACC + (tau*2+qt)*4, 4)
                c = "0" if (s == 0 and p == 0) else d
                a(f"v_mfma_f32_16x16x32_bf16 {d}, {vr(V2_A[n & 1]+4*k,4)}, {vr(breg+(2*p+qt)*4,4)}, {c}")
                if m == 0 and n in hooks_mid: hooks_mid[n]()
                if nxt:
                    for r in nxt[issued:issued+plan[m]]: a(r)
                    issued = min(len(nxt), issued + plan[m])
                for _ in range(per):
                    if spr: a(spr.pop(0))
                m += 1
                if k >= len(taus) - 1 and inj: a(inj.pop(0))
        while inj: a(inj.pop(0))
        while spr: a(spr.pop(0))

def d_prep(a):
    a("v_bfe_u32 v13, v0, 1, 3"); a("v_mul_u32_u24 v13, 9216, v13")
    a("v_lshrrev_b32 v14, 4, v0"); a("v_lshlrev_b32 v14, 1, v14"); a("v_and_b32 v15, 1, v0")
    a("v_add_u32 v14, v14, v15"); a("v_lshl_add_u32 v13, v14, 4, v13")
    a(f"s_lshl_b32 s58, s{S_G}, 2"); a(f"s_add_u32 s58, s58, s{S_J}"); a("s_lshl_b32 s58, s58, 2")
    a(f"s_add_u32 s58, s58, s{S_WAVE}")
    a("s_mul_i32 s59, s58, 73728"); a(f"s_add_u32 s59, s59, {WS_D}")
    a(f"s_mul_i32 s40, s{S_X}, 1152"); a("s_add_u32 s40, s40, s59")

def d_pack_store(tau, G=160):
    r = []
    for qt in range(2):
        for h2 in range(2):
            src = V2_ACC + (tau*2+qt)*4 + 2*h2
            r.append(f"v_cvt_pk_bf16_f32 v{G+4*tau+2*qt+h2}, v{src}, v{src+1}")
    r.append(f"buffer_store_dwordx4 {vr(G+4*tau,4)}, v13, s[32:35], s40 offen offset:{128*tau} sc1")
    return r

def tail(a):
    hs = [(s, p, hf) for s in range(2) for p in range(4) for hf in range(2)]
    hs += [(2, p, 0) for p in range(4)] + [(3, p, 0) for p in range(4)]
    hs += [(2, p, 1) for p in range(4)] + [(3, p, 1) for p in range(4)]
    o_store(a)
    stamp(a, 6)
    for x in OSTORES: a(x)
    for r in p2_areads(*hs[0], buf=0): a(r)
    def exch():
        a("s_waitcnt vmcnt(0)")
        flag_store(a, 49, 'dyn')
        stamp(a, 7)
        poll(a, "o", 8, 48, sleep=OPT.get('o_sleep', 0))
        stamp(a, 8)
        p2_bloads(a, 1, BUF[0])
        a("s_nop 3")
    p2_run(a, hs, 0, 8, hooks_pre={OPT.get('flagpos', 4): exch})
    a("s_barrier")
    tstamp(a, 1)
    for r in p2_areads(*hs[8], buf=0): a(r)
    su2, l2 = bload_list(2, BUF[1]); su3, l3 = bload_list(3, BUF[2])
    for x in su2: a(x)
    d_prep(a)
    inj = {}
    for t in range(4):
        inj[8 + t] = list(l2[2*t:2*t+2])
        inj[12 + t] = list(l3[2*t:2*t+2])
    inj[11] = inj[11] + su3
    spr = {25: d_pack_store(0) + d_pack_store(1), 26: d_pack_store(2) + d_pack_store(3), 27: d_pack_store(4)}
    W = lambda n: (lambda: a(f"s_waitcnt vmcnt({n})"))
    p2_run(a, hs, 8, 32,
           hooks_pre={8: W(6), 10: W(8), 12: W(10), 14: W(12), 16: W(8), 20: W(0)},
           hooks_mid={15: lambda: a("s_barrier"), 19: lambda: a("s_barrier")},
           inject=inj, spread=spr)
    stamp(a, 9)
    reduce_inkernel(a)

def store_partials_f32(a):
    a("s_nop 7")
    a(f"s_lshl_b32 s45, s{S_X}, 3"); a(f"s_add_u32 s45, s45, s{S_G}"); a("s_lshl_b32 s45, s45, 2")
    a(f"s_add_u32 s45, s45, s{S_J}"); a("s_lshl_b32 s45, s45, 2"); a(f"s_add_u32 s45, s45, s{S_WAVE}")
    a(f"s_mul_i32 s45, s45, {18*1024}"); a(f"s_add_u32 s45, s45, {WS_P}")
    for u in range(18):
        if u and u % 4 == 0: a("s_add_u32 s45, s45, 4096")
        a(f"buffer_store_dwordx4 {vr(V2_ACC+4*u,4)}, v7, s[32:35], s45 offen offset:{(u%4)*1024}")

def store_partials_bf16(a):
    G = 160
    a(f"s_lshl_b32 s44, s{S_G}, 2"); a(f"s_add_u32 s44, s44, s{S_J}"); a("s_lshl_b32 s44, s44, 2")
    a(f"s_add_u32 s44, s44, s{S_WAVE}")
    a(f"s_lshl_b32 s45, s{S_X}, 7"); a("s_add_u32 s45, s45, s44"); a("s_mul_i32 s45, s45, 9216")
    a(f"s_add_u32 s45, s45, {WS_P}"); a("s_add_u32 s46, s45, 4096"); a("s_add_u32 s47, s45, 8192")
    sc = " sc1" if OPT.get('psc1', 1) else ""
    for tau in range(9):
        for qt in range(2):
            for h2 in range(2):
                src = V2_ACC + (tau*2+qt)*4 + 2*h2
                a(f"v_cvt_pk_bf16_f32 v{G+4*tau+2*qt+h2}, v{src}, v{src+1}")
        a(f"buffer_store_dwordx4 {vr(G+4*tau,4)}, v7, s[32:35], s{45 + tau//4} offen offset:{(tau%4)*1024}{sc}")

def kernel3b(a):
    name = "mha_p3_kernel"
    a(".p2align 8"); a(f".globl {name}"); a(f".type {name},@function"); a.label(name)
    a("s_cmp_ge_u32 s2, 288"); a(f"s_cbranch_scc1 L_end_{name}")
    a("s_load_dwordx2 s[26:27], s[0:1], 40"); a("s_load_dwordx2 s[30:31], s[0:1], 56")
    a("v_lshrrev_b32 v1, 6, v0"); a("v_and_b32 v0, 63, v0")
    a("s_lshl_b32 s5, s2, 2")
    a(f"v_readfirstlane_b32 s{S_WAVE}, v1")
    a("v_lshlrev_b32 v1, 4, v0")
    a(f"s_add_u32 s5, s5, s{S_WAVE}")
    a("s_mul_i32 s45, s5, 1024"); a(f"s_add_u32 s45, s45, {WS_P}")
    a("s_mul_hi_u32 s6, s5, 477218589")
    a("s_mul_i32 s7, s6, 9"); a("s_sub_u32 s7, s5, s7")
    a("s_waitcnt lgkmcnt(0)")
    srd(a, 32, P_WS, SZ_WS_USED); srd(a, 36, P_OUT, SZ_OUT)
    for x in range(8):
        a(f"buffer_load_dwordx4 {vr(8+4*x,4)}, v1, s[32:35], s45 offen")
        if x < 7: a(f"s_add_u32 s45, s45, {128*9216}")
    a("v_and_b32 v2, 15, v0"); a("v_mul_u32_u24 v2, 1152, v2"); a("v_lshrrev_b32 v3, 4, v0")
    a("v_lshl_add_u32 v2, v3, 3, v2")
    a("s_lshr_b32 s46, s6, 4"); a("s_lshl_b32 s46, s46, 2"); a("s_and_b32 s47, s6, 3"); a("s_add_u32 s46, s46, s47")
    a(f"s_mul_i32 s46, s46, {32*1152}")
    a("s_lshr_b32 s47, s6, 2"); a("s_and_b32 s47, s47, 3"); a("s_mul_i32 s47, s47, 288"); a("s_add_u32 s46, s46, s47")
    a("s_lshl_b32 s47, s7, 5"); a("s_add_u32 s46, s46, s47"); a(f"s_add_u32 s47, s46, {16*1152}")
    for x in range(8):
        a(f"s_waitcnt vmcnt({7-x})")
        for d in range(4):
            src = 8 + 4*x + d
            if x == 0:
                a(f"v_lshlrev_b32 v{40+2*d}, 16, v{src}"); a(f"v_and_b32 v{40+2*d+1}, 0xffff0000, v{src}")
            else:
                a(f"v_lshlrev_b32 v48, 16, v{src}"); a(f"v_and_b32 v49, 0xffff0000, v{src}")
                a(f"v_pk_add_f32 v[{40+2*d}:{40+2*d+1}], v[{40+2*d}:{40+2*d+1}], v[48:49]")
    for d in range(4): a(f"v_cvt_pk_bf16_f32 v{50+d}, v{40+2*d}, v{40+2*d+1}")
    a("buffer_store_dwordx2 v[50:51], v2, s[36:39], s46 offen")
    a("buffer_store_dwordx2 v[52:53], v2, s[36:39], s47 offen")
    a.label(f"L_end_{name}")
    a("s_endpgm")

def reduce_inkernel(a):
    RA = 196; RB = 88
    a("s_nop 7")
    for tau in range(5, 9):
        for x in d_pack_store(tau): a(x)
    a("s_lshl_b32 s48, s58, 8"); a(f"s_add_u32 s48, s48, {WS_F2}")
    a(f"s_lshl_b32 s49, s{S_X}, 3"); a("s_add_u32 s49, s49, s48")
    a("s_waitcnt vmcnt(4)")
    flag_store(a, 49, 'sc1')
    a("s_add_u32 s49, s49, 128")
    a("v_and_b32 v8, 7, v0"); a("v_lshlrev_b32 v8, 3, v8")
    a("v_and_b32 v14, 1, v0"); a("v_mul_u32_u24 v14, 1152, v14")
    a("v_bfe_u32 v15, v0, 1, 2"); a("v_lshl_add_u32 v14, v15, 3, v14")
    a("v_lshrrev_b32 v12, 3, v0"); a("v_lshl_add_u32 v14, v12, 5, v14")
    a("v_add_u32 v15, 160, v14")
    srd(a, 36, P_OUT, SZ_OUT)
    a(f"s_lshl_b32 s56, s{S_G}, 2"); a(f"s_add_u32 s56, s56, s{S_WAVE}"); a("s_lshl_b32 s56, s56, 5")
    a(f"s_lshl_b32 s57, s{S_X}, 1"); a("s_add_u32 s56, s56, s57"); a("s_mul_i32 s56, s56, 1152")
    a(f"s_mul_i32 s57, s{S_J}, 288"); a("s_add_u32 s56, s56, s57")
    a(f"s_add_u32 s57, s56, {16*1152}")
    a(f"s_mul_i32 s47, s{S_X}, 9216"); a("s_add_u32 s47, s47, s59")
    a("s_waitcnt vmcnt(1)")
    flag_store(a, 49, 'sc1')
    stamp(a, 10)
    poll(a, "da", 8, 48, sleep=OPT.get('d_sleep', 0))
    a("s_mov_b32 s46, s47")
    a("s_mov_b32 exec_hi, 0xff")
    for sx in range(8):
        a(f"buffer_load_dwordx4 {vr(RA+4*sx,4)}, v7, s[32:35], s46 offen sc1")
        if sx < 7: a("s_add_u32 s46, s46, 1152")
    a("s_mov_b64 exec, -1")
    a("s_add_u32 s48, s48, 128")
    poll(a, "db", 8, 48, sleep=OPT.get('d_sleep2', 1))
    stamp(a, 11)
    a("s_mov_b64 exec, 0xffffffff")
    for sx in range(8):
        a(f"buffer_load_dwordx4 {vr(RB+4*sx,4)}, v7, s[32:35], s47 offen offset:640 sc1")
        if sx < 7: a("s_add_u32 s47, s47, 1152")
    a("s_mov_b64 exec, -1")
    AA = 16; AB = 24; T = 32
    def summ(R, A, waits):
        for sx in range(8):
            if waits: a(f"s_waitcnt vmcnt({7 - sx})")
            for d in range(4):
                src = R + 4*sx + d
                if sx == 0:
                    a(f"v_lshlrev_b32 v{A+2*d}, 16, v{src}"); a(f"v_and_b32 v{A+2*d+1}, 0xffff0000, v{src}")
                else:
                    t = T + 2 * (d & 1)
                    a(f"v_lshlrev_b32 v{t}, 16, v{src}"); a(f"v_and_b32 v{t+1}, 0xffff0000, v{src}")
                    a(f"v_pk_add_f32 v[{A+2*d}:{A+2*d+1}], v[{A+2*d}:{A+2*d+1}], v[{t}:{t+1}]")
    fl = {0: "", 1: " sc1", 2: " nt", 3: " sc0 sc1"}[OPT.get('outfl', 0)]
    summ(RA, AA, False)
    for d in range(4): a(f"v_cvt_pk_bf16_f32 v{36+d}, v{AA+2*d}, v{AA+2*d+1}")
    summ(RB, AB, True)
    a("s_mov_b32 exec_hi, 0xff")
    a(f"buffer_store_dwordx2 v[36:37], v14, s[36:39], s56 offen{fl}")
    a(f"buffer_store_dwordx2 v[38:39], v14, s[36:39], s57 offen{fl}")
    a("s_mov_b64 exec, -1")
    for d in range(4): a(f"v_cvt_pk_bf16_f32 v{40+d}, v{AB+2*d}, v{AB+2*d+1}")
    a("s_mov_b64 exec, 0xffffffff")
    a(f"buffer_store_dwordx2 v[40:41], v15, s[36:39], s56 offen{fl}")
    a(f"buffer_store_dwordx2 v[42:43], v15, s[36:39], s57 offen{fl}")
    a("s_mov_b64 exec, -1")

def KNAME():
    return "standalone__mha_block_cached__near_ridge_kernel" if OPT['dk'] else "mha_a_kernel"

def kernelA(a):
    global KIDX
    KIDX = 0
    name = KNAME()
    prologue(a, name)
    stamp_init(a); stamp(a, 0); cstamp(a, 14)
    if OPT['stamps'] and OPT.get('entrystamp', 0): a("s_mov_b64 s[86:87], s[96:97]")
    a(f"s_cmp_lt_u32 s{S_WAVE}, 4"); a("s_cbranch_scc1 L_a_compute")
    a(f"s_cmp_eq_u32 s{S_WAVE}, 5"); a("s_cbranch_scc1 L_a_ldx")
    a(f"s_cmp_eq_u32 s{S_WAVE}, 6"); a("s_cbranch_scc1 L_a_ldk")
    a(f"s_cmp_eq_u32 s{S_WAVE}, 7"); a("s_cbranch_scc1 L_a_ldv")
    loader_ring(a, 'wq'); stamp_flush(a); a("s_endpgm")
    a.label("L_a_ldx"); loader_ring(a, 'x'); stamp_flush(a); a("s_endpgm")
    a.label("L_a_ldv"); loader_v(a); stamp_flush(a); a("s_endpgm")
    a.label("L_a_ldk"); loader_k(a); stamp_flush(a); a("s_endpgm")
    a.label("L_a_compute")
    CUR['compute'] = True
    gemm1_addrs(a); attn_addrs(a)
    kwait(a)
    srd(a, 36, P_DBG, 256)
    a("v_mov_b32 v1, 0")
    a(f"s_lshl_b32 s40, s{S_G}, 3"); a(f"s_add_u32 s40, s40, s{S_X}"); a("s_lshr_b32 s40, s40, 1")
    a("s_lshl_b32 s40, s40, 2"); a("s_add_u32 s40, s40, 128")
    srd(a, 44, P_WS, SZ_WS_USED)
    a(f"s_lshl_b32 s42, s{S_G}, 3"); a(f"s_add_u32 s42, s42, s{S_X}"); a("s_lshl_b32 s42, s42, 2")
    a(f"s_add_u32 s42, s42, s{S_WAVE}"); a("s_lshl_b32 s42, s42, 7"); a(f"s_add_u32 s42, s42, {WS_F}")
    gemm1(a); get_nonce(a); stamp(a, 2)
    attention(a); stamp(a, 5)
    tail(a)
    if OPT['stamps']: a("s_waitcnt vmcnt(0)")
    stamp(a, 12); cstamp(a, 15); stamp_flush(a)
    if OPT.get('waitx', 0):
        a("s_waitcnt vmcnt(0)")
        a(f"s_add_u32 s62, s{S_NON}, {OPT['waitx']}")
        a("s_mov_b32 s63, 0")
        a.label("L_wx_spin")
        a("s_memrealtime s[64:65]"); a("s_waitcnt lgkmcnt(0)")
        a("s_add_u32 s63, s63, 1"); a("s_cmp_gt_u32 s63, 100000"); a("s_cbranch_scc1 L_wx_done")
        a("s_sub_u32 s66, s62, s64"); a("s_cmp_gt_i32 s66, 0"); a("s_cbranch_scc1 L_wx_spin")
        a.label("L_wx_done")
    if OPT.get('probe', -1) >= 0:
        a("s_waitcnt vmcnt(0)")
        a(f"s_sub_u32 s62, s60, s{S_NON}"); a(f"s_mul_i32 s62, s62, {OPT.get('probek', 8)}")
        a("s_memrealtime s[64:65]"); a("s_waitcnt lgkmcnt(0)")
        a("s_add_u32 s62, s62, s64")
        a("s_mov_b32 s63, 0")
        a.label("L_probe_spin")
        a("s_memrealtime s[64:65]"); a("s_waitcnt lgkmcnt(0)")
        a("s_add_u32 s63, s63, 1"); a("s_cmp_gt_u32 s63, 100000"); a("s_cbranch_scc1 L_probe_done")
        a("s_sub_u32 s66, s62, s64"); a("s_cmp_gt_i32 s66, 0"); a("s_cbranch_scc1 L_probe_spin")
        a.label("L_probe_done")
    a.label(f"L_end_{name}")
    a("s_endpgm")

def kernel3(a):
    global KIDX
    KIDX = 1
    name = "mha_p3_kernel"
    a(".p2align 8"); a(f".globl {name}"); a(f".type {name},@function"); a.label(name)
    a("s_cmp_ge_u32 s2, 256"); a(f"s_cbranch_scc1 L_end_{name}")
    a("s_load_dwordx16 s[16:31], s[0:1], 0")
    a("v_lshrrev_b32 v1, 6, v0"); a("v_and_b32 v0, 63, v0")
    a("s_lshr_b32 s5, s2, 1")
    a("s_and_b32 s6, s2, 1")
    a(f"v_readfirstlane_b32 s{S_WAVE}, v1")
    a("s_mul_i32 s6, s6, 9")
    a("s_waitcnt lgkmcnt(0)")
    stamp_init(a); stamp(a, 0); cstamp(a, 14)
    a(f"s_add_u32 s6, s6, s{S_WAVE}")
    srd(a, 32, P_WS, SZ_WS_USED); srd(a, 36, P_OUT, SZ_OUT)
    a("v_lshlrev_b32 v1, 4, v0")
    a("s_mul_i32 s45, s5, 18"); a("s_add_u32 s45, s45, s6"); a("s_lshl_b32 s45, s45, 10")
    a(f"s_add_u32 s45, s45, {WS_P}")
    for x in range(8):
        a(f"buffer_load_dwordx4 {vr(8+4*x,4)}, v1, s[32:35], s45 offen")
        if x < 7: a(f"s_add_u32 s45, s45, {128*18*1024}")
    a("v_and_b32 v2, 15, v0"); a("v_mul_u32_u24 v2, 1152, v2"); a("v_lshrrev_b32 v3, 4, v0")
    a("v_lshl_add_u32 v2, v3, 3, v2")
    a("s_lshr_b32 s46, s5, 4"); a("s_lshl_b32 s46, s46, 2"); a("s_and_b32 s47, s5, 3"); a("s_add_u32 s46, s46, s47")
    a(f"s_mul_i32 s46, s46, {32*1152}")
    a("s_lshr_b32 s47, s5, 2"); a("s_and_b32 s47, s47, 3"); a("s_mul_i32 s47, s47, 288"); a("s_add_u32 s46, s46, s47")
    a("s_and_b32 s47, s6, 1"); a(f"s_mul_i32 s47, s47, {16*1152}"); a("s_add_u32 s46, s46, s47")
    a("s_lshr_b32 s47, s6, 1"); a("s_lshl_b32 s47, s47, 5"); a("s_add_u32 s46, s46, s47")
    a("s_waitcnt vmcnt(0)")
    for v in range(4):
        for x in range(0, 8, 2): a(f"v_add_f32 v{8+4*x+v}, v{8+4*x+v}, v{12+4*x+v}")
    for v in range(4):
        a(f"v_add_f32 v{8+v}, v{8+v}, v{16+v}"); a(f"v_add_f32 v{24+v}, v{24+v}, v{32+v}")
    for v in range(4): a(f"v_add_f32 v{8+v}, v{8+v}, v{24+v}")
    a("v_cvt_pk_bf16_f32 v8, v8, v9"); a("v_cvt_pk_bf16_f32 v9, v10, v11")
    a("buffer_store_dwordx2 v[8:9], v2, s[36:39], s46 offen")
    if OPT['stamps']:
        a("s_waitcnt vmcnt(0)")
        stamp(a, 10); cstamp(a, 15)
        a(f"s_cmp_ge_u32 s{S_WAVE}, 8"); a("s_cbranch_scc1 L_end_mha_p3_kernel")
        stamp_flush(a, 44)
    a.label(f"L_end_{name}")
    a("s_endpgm")

def descriptor(a, name, vgpr, sgpr=102):
    a(f".amdhsa_kernel {name}")
    a(f".amdhsa_next_free_vgpr {vgpr}"); a(f".amdhsa_next_free_sgpr {sgpr}"); a(f".amdhsa_accum_offset {vgpr}")
    a(".amdhsa_group_segment_fixed_size 0"); a(".amdhsa_kernarg_size 64")
    a(".amdhsa_user_sgpr_count 2"); a(".amdhsa_user_sgpr_kernarg_segment_ptr 1")
    a(".amdhsa_system_sgpr_workgroup_id_x 1"); a(".end_amdhsa_kernel")

def main():
    out = sys.argv[1]
    for arg in sys.argv[2:]:
        if arg == "--stamps": OPT['stamps'] = True
        elif "=" in arg:
            k, v = arg.lstrip("-").split("="); OPT[k] = int(v)
    a = Asm()
    hdr = "; MHA block (Q-proj + attention + out-proj), generated by gen3.py\n"
    if OPT['dk']:
        hdr += "; @launch grid=(256,1,1) block=(512,1,1) lds=163840\n"
    else:
        hdr += "; @launch kernel=mha_a_kernel grid=(256,1,1) block=(512,1,1) lds=163840\n"
        if OPT.get('k3bf', 0): hdr += "; @launch kernel=mha_p3_kernel grid=(288,1,1) block=(256,1,1) lds=0\n"
        else: hdr += "; @launch kernel=mha_p3_kernel grid=(256,1,1) block=(576,1,1) lds=0\n"
    a('.amdgcn_target "amdgcn-amd-amdhsa--gfx950"'); a(".text")
    kernelA(a)
    if not OPT['dk']:
        if OPT.get('k3bf', 0): kernel3b(a)
        else: kernel3(a)
    a('.section .rodata,"a"'); a(".p2align 6"); descriptor(a, KNAME(), 256)
    if not OPT['dk']:
        a(".p2align 6"); descriptor(a, "mha_p3_kernel", 56)
    open(out, "w").write(hdr + a.text())

if __name__ == "__main__": main()
```

```python
import sys, struct

class Asm:
    def __init__(self): self.l = []
    def __call__(self, s=""):
        for x in s.split("\n"):
            x = x.strip()
            self.l.append(x if (x.endswith(":") or x.startswith(".")) else "  " + x)
    def label(self, s): self.l.append(s + ":")
    def text(self): return "\n".join(self.l) + "\n"

def vr(b, n=1): return f"v{b}" if n == 1 else f"v[{b}:{b+n-1}]"
def f32hex(x): return "0x%08x" % struct.unpack("<I", struct.pack("<f", x))[0]

P_X, P_K, P_V, P_WQ, P_WO, P_OUT, P_DBG, P_WS = 16, 18, 20, 22, 24, 26, 28, 30
SZ_X, SZ_KV, SZ_W, SZ_OUT = 1179648, 8388608, 4718592, 1179648
WS_O = 0
WS_P = 8 << 20
WS_F = 28 << 20
WS_F2 = (28 << 20) + (1 << 19)
WS_D = 8 << 20
WS_STAMP = 32 << 20
SZ_WS_USED = 64 << 20
S_WAVE, S_X, S_R, S_J, S_G, S_H = 3, 4, 5, 6, 9, 10

OPT = dict(stamps=False, fast=1, spin_max=2000000, kvmode=21, flagpos=4, xonce=1, vearly=1, woearly=1, d_sleep=1, d_sleep2=0, o_sleep=1, k_nt=1, v_nt=1, wot_pos=8, dk=1)

def srd(a, base, ptr, size, add=0):
    if add:
        a(f"s_add_u32 s{base}, s{ptr}, {add}"); a(f"s_addc_u32 s{base+1}, s{ptr+1}, 0")
        a(f"s_and_b32 s{base+1}, s{base+1}, 0xffff")
    else:
        a(f"s_mov_b32 s{base}, s{ptr}"); a(f"s_and_b32 s{base+1}, s{ptr+1}, 0xffff")
    a(f"s_mov_b32 s{base+2}, {size}"); a(f"s_mov_b32 s{base+3}, 0x00020000")

def prologue(a, name, nwg=256):
    a(".p2align 8"); a(f".globl {name}"); a(f".type {name},@function"); a.label(name)
    a(f"s_cmp_ge_u32 s2, {nwg}"); a(f"s_cbranch_scc1 L_end_{name}")
    if OPT['stamps'] and OPT.get('entrystamp', 0): a("s_memrealtime s[96:97]")
    a("s_load_dwordx16 s[16:31], s[0:1], 0")
    a("v_lshrrev_b32 v1, 6, v0"); a("v_and_b32 v0, 63, v0")
    a(f"s_and_b32 s{S_X}, s2, 7"); a(f"s_lshr_b32 s{S_R}, s2, 3")
    a(f"v_readfirstlane_b32 s{S_WAVE}, v1")
    a(f"s_and_b32 s{S_J}, s{S_R}, 3"); a(f"s_lshr_b32 s{S_G}, s{S_R}, 2")
    a(f"s_lshl_b32 s{S_H}, s{S_X}, 2"); a(f"s_add_u32 s{S_H}, s{S_H}, s{S_J}")
    if OPT['stamps'] or not OPT.get('latewait', 1): a("s_waitcnt lgkmcnt(0)")

def kwait(a):
    if not OPT['stamps'] and OPT.get('latewait', 1): a("s_waitcnt lgkmcnt(0)")

KIDX = 0
CUR = {}
def tstamp(a, idx):
    if OPT.get('tailstamps', 0): stamp(a, idx, force=True)
def stamp(a, idx, force=False):
    if OPT.get('probe', -1) == idx and CUR.get('compute') and (force or not (OPT.get('tailstamps', 0) and idx in (1,2,3,4,13))):
        a("s_memrealtime s[60:61]"); a("s_waitcnt lgkmcnt(0)")
        return
    if not OPT['stamps']: return
    if OPT.get('tailstamps', 0) and not force and idx in (1,2,3,4,13) and CUR.get('compute'): return
    a(f"s_memrealtime s[{60+2*idx}:{61+2*idx}]"); a("s_waitcnt lgkmcnt(0)")
def cstamp(a, idx):
    if not OPT['stamps']: return
    a(f"s_memtime s[{60+2*idx}:{61+2*idx}]"); a("s_waitcnt lgkmcnt(0)")
def stamp_init(a):
    if not OPT['stamps']: return
    for i in range(16): a(f"s_mov_b64 s[{60+2*i}:{61+2*i}], 0")
def stamp_flush(a, vb=250):
    if not OPT['stamps']: return
    srd(a, 92, P_WS, 256*16*16*8, add=WS_STAMP + KIDX*256*8*16*8)
    a("s_lshl_b32 s96, s2, 3"); a(f"s_add_u32 s96, s96, s{S_WAVE}"); a("s_lshl_b32 s96, s96, 7")
    a(f"v_mov_b32 v{vb+2}, 0")
    for i in range(16):
        a(f"v_mov_b32 v{vb}, s{60+2*i}"); a(f"v_mov_b32 v{vb+1}, s{61+2*i}")
        a(f"buffer_store_dwordx2 v[{vb}:{vb+1}], v{vb+2}, s[92:95], s96 offen offset:{i*8}")
        a("s_nop 1")
    a("s_waitcnt vmcnt(0)")

L_K = 98304; L_V = 131072; NCH = 9
W_SLOT = 36864

def dma(a, voff, srdb, soff, off=0, nt=False):
    a(f"buffer_load_dwordx4 v{voff}, s[{srdb}:{srdb+3}], s{soff} offen" + (f" offset:{off}" if off else "") + (" nt" if nt else "") + " lds")

V_WOV = 16
def wo_prep(a):
    srd(a, 52, P_WO, SZ_W)
    for t in range(9):
        a(f"v_add_u32 v1, {64*t}, v0")
        a("v_mul_u32_u24 v2, 3641, v1")
        a("v_lshrrev_b32 v2, 16, v2")
        a("v_mul_u32_u24 v3, 18, v2")
        a("v_sub_u32 v3, v1, v3")
        a("v_lshlrev_b32 v3, 4, v3")
        a("v_mul_u32_u24 v2, 1152, v2")
        a(f"v_add_u32 v{V_WOV+t}, v2, v3")
    a(f"s_mul_i32 s56, s{S_J}, 288")
def wo_issue(a, slot, q0, nq):
    a(f"s_add_u32 s57, s{S_J}, {slot}"); a("s_and_b32 s57, s57, 3")
    a(f"s_lshl_b32 s58, s{S_X}, 2"); a("s_add_u32 s57, s57, s58")
    a(f"s_mul_i32 s57, s57, {128*1152}"); a("s_add_u32 s57, s57, s56")
    if q0: a(f"s_add_u32 s57, s57, {q0*32*1152}")
    a(f"s_mov_b32 m0, {slot*W_SLOT + q0*32*288}"); a("s_nop 0")
    for blk in range(nq):
        for t in range(9):
            dma(a, V_WOV + t, 52, 57)
            if not (blk == nq - 1 and t == 8):
                a("s_add_u32 m0, m0, 1024")
                if t == 8: a(f"s_add_u32 s57, s57, {32*1152}")
                else: a("s_nop 0")

def loader_tail(a, role):
    a("s_barrier")
    stamp(a, 8)
    if role < 2:
        wo_issue(a, 0, 2 * role, 2); wo_issue(a, 1, 2 * role, 2)
    stamp(a, 9)
    if OPT.get('vearly', 0):
        if role < 2: a("s_waitcnt vmcnt(18)")
        a("s_barrier")
    else:
        if role == 3: a("s_waitcnt vmcnt(0)")
        a("s_barrier")
        if role < 2: a("s_waitcnt vmcnt(18)")
        a("s_barrier")
    if OPT.get('woearly', 0):
        wo_issue(a, 2, role, 1)
        wo_issue(a, 3, role, 1)
        stamp(a, 10)
        if role < 2: a("s_waitcnt vmcnt(18)")
        a("s_barrier")
    else:
        if role < 2: a("s_waitcnt vmcnt(0)")
        a("s_barrier")
        wo_issue(a, 2, role, 1)
        wo_issue(a, 3, role, 1)
        stamp(a, 10)
    a("s_waitcnt vmcnt(9)")
    a("s_barrier")
    a("s_waitcnt vmcnt(0)")
    stamp(a, 11)
    a("s_barrier")

def loader_ring(a, which):
    SRD = 32; SO = 40
    if which == 'wq':
        a("v_lshrrev_b32 v1, 4, v0"); a("v_and_b32 v2, 15, v0")
        a("v_lshlrev_b32 v3, 2, v1"); a("v_xor_b32 v3, v3, v2"); a("v_lshlrev_b32 v3, 4, v3")
        a("v_lshlrev_b32 v4, 13, v1"); a("v_add_u32 v4, v4, v3")
        a(f"s_lshl_b32 s{SO}, s{S_H}, 8")
        def issue(kc):
            a(f"s_mov_b32 m0, {(kc%3)*32768}")
            for t in range(16):
                if t == 0: a("s_nop 0")
                dma(a, 4, SRD, SO)
                a(f"s_add_u32 s{SO}, s{SO}, 32768")
                if t < 15:
                    a("s_add_u32 m0, m0, 1024"); a("s_nop 0")
    else:
        a("v_lshrrev_b32 v1, 3, v0"); a("v_mul_u32_u24 v1, 1152, v1")
        a("v_and_b32 v2, 7, v0"); a("v_lshrrev_b32 v3, 4, v0"); a("v_xor_b32 v2, v2, v3")
        a("v_lshlrev_b32 v4, 4, v2"); a("v_add_u32 v4, v4, v1")
        a("v_xor_b32 v2, 4, v2"); a("v_lshlrev_b32 v5, 4, v2"); a("v_add_u32 v5, v5, v1")
        a(f"s_mul_i32 s{SO+1}, s{S_G}, 147456")
        def issue(kc):
            a(f"s_mov_b32 m0, {(kc%3)*32768 + 16384}")
            a(f"s_add_u32 s{SO}, s{SO+1}, {kc*128}")
            for T in range(16):
                dma(a, 4 + (T & 1), SRD, SO)
                if T < 15:
                    a("s_add_u32 m0, m0, 1024"); a(f"s_add_u32 s{SO}, s{SO}, 9216")
    kv_pos(a, 43, 'k')
    if which == 'wq':
        a("v_lshrrev_b32 v8, 1, v0"); a("v_and_b32 v9, 1, v0")
        a("v_lshlrev_b32 v8, 13, v8"); a("v_lshl_add_u32 v8, v9, 7, v8")
        a(f"s_lshl_b32 s46, s{S_G}, {5+13}"); a(f"s_lshl_b32 s47, s{S_H}, 8"); a("s_add_u32 s46, s46, s47")
        def touch(part):
            if part == 0:
                a(f"buffer_load_dword v10, v8, s[{SRD}:{SRD+3}], s46 offen")
            else:
                a(f"s_add_u32 s46, s46, {256*8192}")
                a(f"buffer_load_dword v10, v8, s[{SRD}:{SRD+3}], s46 offen")
                a(f"s_lshl_b32 s46, s{S_G}, {3+13}"); a("s_add_u32 s46, s46, s47"); a(f"s_add_u32 s46, s46, {512*8192}")
                a("s_mov_b64 exec, 0xffff")
                a(f"buffer_load_dword v10, v8, s[{SRD}:{SRD+3}], s46 offen")
                a("s_mov_b64 exec, -1")
        NT1 = 2
    else:
        if OPT.get('xonce', 0):
            a("v_mul_u32_u24 v8, 7282, v0"); a("v_lshrrev_b32 v8, 16, v8")
            a("v_mul_u32_u24 v9, 9, v8"); a("v_sub_u32 v9, v0, v9")
            a("v_mul_u32_u24 v8, 1152, v8"); a("v_lshl_add_u32 v8, v9, 7, v8")
            a(f"s_mul_i32 s46, s{S_G}, 147456"); a(f"s_mul_i32 s47, s{S_H}, {4*1152}"); a("s_add_u32 s46, s46, s47")
            def touch(part):
                if part == 0:
                    a("s_mov_b32 exec_lo, -1"); a("s_mov_b32 exec_hi, 15")
                    a(f"buffer_load_dword v10, v8, s[{SRD}:{SRD+3}], s46 offen")
                    a("s_mov_b64 exec, -1")
            NT1 = 0
        else:
            a("v_and_b32 v9, 31, v0"); a("v_mul_u32_u24 v9, 1152, v9")
            a("v_lshrrev_b32 v8, 5, v0"); a("v_lshl_add_u32 v8, v8, 7, v9")
            a(f"s_mul_i32 s46, s{S_G}, 147456"); a(f"s_mul_i32 s47, s{S_J}, {32*1152}"); a("s_add_u32 s46, s46, s47")
            def touch(part):
                if part == 0:
                    a(f"buffer_load_dword v10, v8, s[{SRD}:{SRD+3}], s46 offen")
                else:
                    for t in range(1, 4):
                        a(f"buffer_load_dword v10, v8, s[{SRD}:{SRD+3}], s46 offen offset:{256*t}")
                    a("s_mov_b64 exec, 0xffffffff")
                    a(f"buffer_load_dword v10, v9, s[{SRD}:{SRD+3}], s46 offen offset:1024")
                    a("s_mov_b64 exec, -1")
            NT1 = 4
    kwait(a)
    srd(a, SRD, P_WQ if which == 'wq' else P_X, SZ_W if which == 'wq' else SZ_X)
    touch(0)
    issue(0); stamp(a, 1)
    touch(1)
    a("s_barrier")
    bx(a, -1, "r" + which)
    issue(1)
    stamp(a, 2)
    a(f"s_waitcnt vmcnt({16 + NT1})")
    stamp(a, 3)
    a("s_barrier")
    bx(a, 0, "r" + which)
    issue(2)
    for i in range(1, NCH):
        last_issued = min(i + 1, NCH - 1)
        a(f"s_waitcnt vmcnt({(last_issued - i) * 16})")
        a("s_barrier")
        if which == 'wq' and i in (1,2,3,4): stamp(a, {1:4,2:5,3:6,4:12}[i])
        if which == 'x' and i in (5,6,7,8): stamp(a, {5:4,6:5,7:6,8:12}[i])
        if i < 8: bx(a, i, "r" + which)
        if i + 2 < NCH: issue(i + 2)
        if i == 7: wo_prep(a)
    stamp(a, 7)
    loader_tail(a, 0 if which == 'wq' else 1)

def kv_pos(a, sdst, which):
    m = OPT['kvmode']
    if m == 10:
        tab = [-1, 2, 4, 7]
    elif m == 11: tab = [7, 7, 7, 7]
    elif m == 12: tab = [-1, -1, -1, -1]
    elif m == 13: tab = [1, 1, 6, 6]
    elif m == 14: tab = [-1, 1, 4, 7]
    elif m == 15: tab = [0, 3, 5, 7]
    elif m == 16: tab = [2, 7, 2, 7]
    elif m == 17: tab = [3, 5, 7, 7]
    elif m == 20: tab = [-1, 1, 3, 5]
    elif m == 21: tab = [-1, 2, 4, 6]
    elif m == 22: tab = [-1, -1, 3, 3]
    elif m == 23: tab = [-1, 0, 2, 4]
    elif m == 24: tab = [0, 2, 4, 6]
    elif m == 25: tab = [-1, -1, -1, -1]
    packed = sum(((p + 1) & 15) << (4 * k) for k, p in enumerate(tab))
    a(f"s_and_b32 s{sdst}, s{S_G}, 3"); a(f"s_lshl_b32 s{sdst}, s{sdst}, 2")
    a(f"s_lshr_b32 s{sdst}, {packed}, s{sdst}"); a(f"s_and_b32 s{sdst}, s{sdst}, 15")

def bx(a, p, tag):
    if p >= 6: return
    a(f"s_cmp_lg_u32 s43, {p+1}"); a(f"s_cbranch_scc1 L_bx_{tag}_{p+1}")
    a("s_barrier")
    a.label(f"L_bx_{tag}_{p+1}")

def kv_loop(a, tag, issue_fn, extra_fn=None, extra_pos=None):
    a("s_mov_b32 s59, 0")
    a.label(f"L_{tag}_loop")
    a("s_cmp_lg_u32 s59, s43"); a(f"s_cbranch_scc1 L_{tag}_skip")
    stamp(a, 3)
    issue_fn()
    stamp(a, 4)
    a(f"s_cmp_ge_u32 s59, 7"); a(f"s_cbranch_scc1 L_{tag}_skip")
    a("s_barrier")
    a.label(f"L_{tag}_skip")
    if extra_fn is not None:
        a(f"s_cmp_lg_u32 s59, {extra_pos}"); a(f"s_cbranch_scc1 L_{tag}_skip2")
        extra_fn()
        a.label(f"L_{tag}_skip2")
    a("s_barrier")
    a("s_add_u32 s59, s59, 1")
    a("s_cmp_le_u32 s59, 8"); a(f"s_cbranch_scc1 L_{tag}_loop")

def loader_k(a):
    SRD = 32; SO = 40
    kwait(a)
    srd(a, SRD, P_K, SZ_KV)
    a("v_lshrrev_b32 v1, 4, v0"); a("v_and_b32 v2, 15, v0"); a("v_xor_b32 v2, v2, v1")
    a("v_lshlrev_b32 v2, 4, v2"); a("v_lshl_add_u32 v4, v1, 8, v2")
    a("v_xor_b32 v5, 64, v4"); a("v_xor_b32 v6, 128, v4"); a("v_xor_b32 v7, 192, v4")
    wo_prep(a)
    a("v_and_b32 v8, 15, v0"); a("v_mul_u32_u24 v8, 1152, v8")
    a("v_lshrrev_b32 v9, 4, v0"); a("v_lshl_add_u32 v9, v9, 7, v8")
    kv_pos(a, 43, 'k')
    if OPT.get('tlbwarm', 0):
        a(f"s_lshl_b32 s{SO}, s{S_G}, 7"); a(f"s_add_u32 s{SO}, s{SO}, s{S_H}"); a(f"s_lshl_b32 s{SO}, s{SO}, 13")
        a("v_lshlrev_b32 v11, 18, v0")
        a("s_mov_b64 exec, 15")
        a(f"buffer_load_dword v10, v11, s[{SRD}:{SRD+3}], s{SO} offen nt")
        a("s_mov_b64 exec, -1")
    a("s_barrier")
    stamp(a, 1)
    def issue():
        a(f"s_lshl_b32 s{SO}, s{S_G}, 7"); a(f"s_add_u32 s{SO}, s{SO}, s{S_H}"); a(f"s_lshl_b32 s{SO}, s{SO}, 13")
        for w in range(4):
            for hf in range(2):
                a(f"s_mov_b32 m0, {L_K + w*8192 + hf*4096}"); a("s_nop 0")
                for t4 in range(4):
                    t = hf * 4 + t4
                    dma(a, 4 + (t >> 1), SRD, SO, off=t4 * 1024, nt=bool(OPT['k_nt']))
                a(f"s_add_u32 s{SO}, s{SO}, {4096 if hf == 0 else 32*8192 - 4096}")
    def wotouch():
        a(f"s_lshl_b32 s{SO}, s{S_X}, 5"); a(f"s_add_u32 s{SO}, s{SO}, s{S_R}")
        a(f"s_mul_i32 s{SO}, s{SO}, {16*1152}")
        a(f"buffer_load_dword v10, v9, s[52:55], s{SO} offen")
        a(f"buffer_load_dword v10, v9, s[52:55], s{SO} offen offset:512")
        a("s_mov_b64 exec, 0xffff")
        a(f"buffer_load_dword v10, v8, s[52:55], s{SO} offen offset:1024")
        a("s_mov_b64 exec, -1")
    kv_loop(a, "k", issue, wotouch, OPT['wot_pos'])
    a("s_waitcnt vmcnt(3)")
    stamp(a, 7)
    loader_tail(a, 2)

def loader_v(a):
    SRD = 32; SO = 40
    kwait(a)
    srd(a, SRD, P_V, SZ_KV)
    a("s_cmp_lg_u32 s2, 0"); a("s_cbranch_scc1 L_nononce")
    srd(a, 48, P_DBG, 256)
    a("s_memrealtime s[42:43]"); a("s_waitcnt lgkmcnt(0)")
    a("s_or_b32 s42, s42, 1")
    a("v_mov_b32 v8, s42"); a("v_mov_b32 v9, s43"); a("v_mov_b32 v1, 0")
    a("s_mov_b64 exec, 1")
    a("buffer_store_dwordx2 v[8:9], v1, s[48:51], 0 offen sc1")
    a("s_mov_b64 exec, -1")
    a.label("L_nononce")
    if OPT['fast']:
        srd(a, 48, P_DBG, 256)
        a("s_getreg_b32 s42, hwreg(HW_REG_XCC_ID)")
        a("s_and_b32 s42, s42, 15")
        a("s_cmp_ge_u32 s42, 8"); a("s_cbranch_scc1 L_noxcc")
        a("s_mul_i32 s43, s42, s42"); a("s_lshl_b32 s43, s43, 5"); a("s_add_u32 s42, s42, s43")
        a("s_add_u32 s42, s42, 0x2000")
        a(f"s_lshl_b32 s43, s{S_G}, 3"); a(f"s_add_u32 s43, s43, s{S_X}")
        a("s_and_b32 s41, s43, 1"); a("s_lshl_b32 s41, s41, 4"); a("s_lshl_b32 s42, s42, s41")
        a("s_lshr_b32 s43, s43, 1"); a("s_lshl_b32 s43, s43, 2"); a("s_add_u32 s43, s43, 128")
        a("v_mov_b32 v8, s42"); a("v_mov_b32 v1, 0")
        a("s_mov_b64 exec, 1")
        a("buffer_atomic_add v8, v1, s[48:51], s43 offen")
        a("s_mov_b64 exec, -1")
        a.label("L_noxcc")
    a("v_lshrrev_b32 v1, 4, v0"); a("v_and_b32 v2, 15, v0"); a("v_lshlrev_b32 v3, 1, v1")
    a("v_xor_b32 v2, v2, v3"); a("v_lshlrev_b32 v2, 4, v2"); a("v_lshl_add_u32 v4, v1, 8, v2")
    a("v_xor_b32 v5, 128, v4")
    wo_prep(a)
    kv_pos(a, 43, 'v')
    if OPT.get('tlbwarm', 0):
        a(f"s_lshl_b32 s{SO}, s{S_G}, 7"); a(f"s_add_u32 s{SO}, s{SO}, s{S_H}"); a(f"s_lshl_b32 s{SO}, s{SO}, 13")
        a("v_lshlrev_b32 v11, 18, v0")
        a("s_mov_b64 exec, 15")
        a(f"buffer_load_dword v10, v11, s[{SRD}:{SRD+3}], s{SO} offen nt")
        a("s_mov_b64 exec, -1")
    a("s_barrier")
    stamp(a, 1)
    def issue():
        a(f"s_lshl_b32 s{SO}, s{S_G}, 7"); a(f"s_add_u32 s{SO}, s{SO}, s{S_H}"); a(f"s_lshl_b32 s{SO}, s{SO}, 13")
        for w in range(4):
            for hf in range(2):
                a(f"s_mov_b32 m0, {L_V + w*8192 + hf*4096}"); a("s_nop 0")
                for t4 in range(4):
                    t = hf * 4 + t4
                    dma(a, 4 + ((t >> 1) & 1), SRD, SO, off=t4 * 1024, nt=bool(OPT['v_nt']))
                a(f"s_add_u32 s{SO}, s{SO}, {4096 if hf == 0 else 32*8192 - 4096}")
    kv_loop(a, "v", issue)
    if OPT.get('vearly', 0): a("s_waitcnt vmcnt(0)")
    stamp(a, 7)
    loader_tail(a, 3)

V_XA = [4, 8]; V_WA = [12, 248]
V_A = [16, 32]; V_B = [48, 52]; V_ACC = 64
V_QF = 128; V_KF = 160; V_S = 192; V_VF = 208; V_PF = 240; V_OF = 128
V_KA = 56; V_VA = 60; V_CLW = 61; V_NONCE = 62
SC_SCALE = 0.08838834764831845 * 1.4426950408889634

def gemm1_addrs(a):
    a("v_and_b32 v1, 31, v0"); a("v_lshrrev_b32 v2, 5, v0"); a("v_bfe_u32 v3, v0, 1, 3")
    a("v_xor_b32 v2, v2, v3"); a("v_lshlrev_b32 v2, 4, v2"); a("v_lshl_add_u32 v2, v1, 7, v2")
    a(f"s_lshl_b32 s40, s{S_WAVE}, 12"); a("s_add_u32 s40, s40, 16384")
    a("v_add_u32 v2, s40, v2")
    for ks in range(4):
        a(f"v_xor_b32 v{V_XA[0]+ks}, {32*ks}, v2"); a(f"v_add_u32 v{V_XA[1]+ks}, 65536, v{V_XA[0]+ks}")
    a("v_bfe_u32 v1, v0, 2, 2"); a("v_lshrrev_b32 v2, 5, v0"); a("v_lshl_add_u32 v2, v2, 3, v1")
    a("v_lshlrev_b32 v2, 8, v2"); a("v_and_b32 v3, 1, v0"); a("v_lshl_add_u32 v2, v3, 5, v2")
    a("v_bfe_u32 v3, v0, 4, 1"); a("v_lshl_add_u32 v2, v3, 4, v2")
    a("v_bfe_u32 v3, v0, 1, 1"); a("v_lshl_add_u32 v2, v3, 3, v2")
    a("v_lshl_add_u32 v2, v1, 6, v2")
    for dt in range(4):
        a(f"v_xor_b32 v{V_WA[0]+dt}, {64*dt}, v2"); a(f"v_add_u32 v{V_WA[1]+dt}, 65536, v{V_WA[0]+dt}")

def attn_addrs(a):
    a("v_and_b32 v1, 15, v0"); a("v_lshrrev_b32 v2, 4, v0"); a("v_xor_b32 v2, v2, v1")
    a("v_lshlrev_b32 v2, 4, v2"); a("v_lshrrev_b32 v3, 2, v1"); a("v_lshl_add_u32 v2, v3, 11, v2")
    a("v_and_b32 v3, 3, v1"); a("v_lshl_add_u32 v2, v3, 8, v2")
    a(f"s_lshl_b32 s40, s{S_WAVE}, 13"); a(f"s_add_u32 s40, s40, {L_K}")
    a("v_add_u32 v2, s40, v2")
    for st in range(4): a(f"v_xor_b32 v{V_KA+st}, {64*st}, v2")
    a("v_lshrrev_b32 v1, 4, v0"); a("v_bfe_u32 v3, v0, 2, 2"); a("v_lshl_add_u32 v2, v1, 3, v3")
    a("v_lshlrev_b32 v2, 8, v2"); a("v_and_b32 v1, 1, v1"); a("v_lshl_add_u32 v3, v1, 2, v3")
    a("v_lshl_add_u32 v2, v3, 5, v2"); a("v_and_b32 v3, 3, v0"); a("v_lshl_add_u32 v2, v3, 3, v2")
    a(f"s_lshl_b32 s40, s{S_WAVE}, 13"); a(f"s_add_u32 s40, s40, {L_V}")
    a(f"v_add_u32 v{V_VA}, s40, v2")

def g1_reads(n):
    i, ks = divmod(n, 4)
    slot = i % 3; st = n & 1; hs = 1 if slot == 2 else 0; so = (slot & 1) * 32768 if slot < 2 else 0
    r = [f"ds_read_b128 {vr(V_B[st],4)}, v{V_XA[hs]+ks} offset:{so}"]
    for dt in range(4):
        base = V_A[st] + 4 * dt
        off = so + ks * 4096
        r.append(f"ds_read_b64_tr_b16 {vr(base,2)}, v{V_WA[hs]+dt} offset:{off}")
        r.append(f"ds_read_b64_tr_b16 {vr(base+2,2)}, v{V_WA[hs]+dt} offset:{off+1024}")
    return r

def gemm1(a):
    NS = NCH * 4
    kv_pos(a, 43, 'k')
    a("s_barrier")
    bx(a, -1, "c")
    a("s_barrier")
    stamp(a, 1)
    for r in g1_reads(0): a(r)
    for n in range(NS):
        i, ks = divmod(n, 4); st = n & 1
        nxt = g1_reads(n + 1) if n + 1 < NS else []
        def mf(dt):
            c = "0" if n == 0 else vr(V_ACC + 16 * dt, 16)
            a(f"v_mfma_f32_32x32x16_bf16 {vr(V_ACC+16*dt,16)}, {vr(V_A[st]+4*dt,4)}, {vr(V_B[st],4)}, {c}")
        if ks == 3:
            for dt in range(4):
                a(f"s_waitcnt lgkmcnt({[6,4,2,0][dt]})")
                if dt == 3 and nxt:
                    bx(a, i, "c")
                    a("s_barrier")
                    for r in nxt[:5]: a(r)
                mf(dt)
            for r in nxt[5:]: a(r)
        else:
            first_after_boundary = (ks == 0 and n > 0)
            for dt in range(4):
                a(f"s_waitcnt lgkmcnt({[6,7,8,9][dt]})")
                mf(dt)
                if dt < 3:
                    for r in nxt[3*dt:3*dt+3]: a(r)
        if n == 33 and OPT.get('nonce_in', 1): get_nonce(a)
        if n == 24:
            a(f"buffer_load_dwordx2 {vr(V_NONCE,2)}, v1, s[36:39], 0 offen sc1")
            if OPT['fast']:
                a(f"buffer_load_dword v{V_CLW}, v1, s[36:39], s40 offen sc1")
                a(f"buffer_load_dword v2, v1, s[44:47], s42 offen sc1")

def attention(a):
    VE = OPT.get('vearly', 0)
    a("s_barrier")
    stamp(a, 3)
    for ai in range(2):
        for st in range(4):
            a(f"ds_read_b128 {vr(V_KF+(ai*4+st)*4,4)}, v{V_KA+st} offset:{ai*1024}")
    def vreads(T0, T1):
        for T in range(T0, T1):
            if T: a(f"v_xor_b32 v1, {32*T}, v{V_VA}")
            ad = "v1" if T else f"v{V_VA}"
            a(f"ds_read_b64_tr_b16 {vr(V_VF+4*T,2)}, {ad}")
            a(f"ds_read_b64_tr_b16 {vr(V_VF+4*T+2,2)}, {ad} offset:1024")
    for dt in range(4):
        for i in range(8):
            a(f"v_cvt_pk_bf16_f32 v{V_QF+8*dt+i}, v{V_ACC+16*dt+2*i}, v{V_ACC+16*dt+2*i+1}")
        if VE and dt == 1:
            a("s_waitcnt lgkmcnt(0)"); vreads(0, 4)
    a("s_nop 1")
    for dt in range(4):
        for i in range(4):
            a(f"v_permlane16_swap_b32 v{V_QF+8*dt+i}, v{V_QF+8*dt+4+i}")
    if VE:
        a("s_waitcnt lgkmcnt(4)"); vreads(4, 8)
    else:
        a("s_waitcnt lgkmcnt(0)")
    for st in range(4):
        for ai in range(2):
            for qt in range(2):
                d = vr(V_S + (ai*2+qt)*4, 4)
                c = "0" if st == 0 else d
                a(f"v_mfma_f32_16x16x32_bf16 {d}, {vr(V_KF+(ai*4+st)*4,4)}, {vr(V_QF+8*st+4*qt,4)}, {c}")
    if VE:
        a("s_waitcnt lgkmcnt(0)")
    def S(ai, qt, v): return V_S + (ai*2+qt)*4 + v
    M = [48, 49]; T_ = [50, 51]; SUM = [52, 53]
    a("s_nop 7")
    for qt in range(2): a(f"v_max3_f32 v{M[qt]}, v{S(0,qt,0)}, v{S(0,qt,1)}, v{S(0,qt,2)}")
    for qt in range(2): a(f"v_max3_f32 v{M[qt]}, v{M[qt]}, v{S(0,qt,3)}, v{S(1,qt,0)}")
    for qt in range(2): a(f"v_max3_f32 v{M[qt]}, v{M[qt]}, v{S(1,qt,1)}, v{S(1,qt,2)}")
    for qt in range(2): a(f"v_max_f32 v{M[qt]}, v{M[qt]}, v{S(1,qt,3)}")
    def xlane(regs, tmps, op):
        for sw in ("v_permlane16_swap_b32", "v_permlane32_swap_b32"):
            for qt in range(2): a(f"v_mov_b32 v{tmps[qt]}, v{regs[qt]}")
            a("s_nop 0")
            for qt in range(2): a(f"{sw} v{tmps[qt]}, v{regs[qt]}")
            a("s_nop 0")
            for qt in range(2): a(f"{op} v{regs[qt]}, v{regs[qt]}, v{tmps[qt]}")
    xlane(M, T_, "v_max_f32")
    a(f"s_mov_b32 s41, {f32hex(SC_SCALE)}")
    for qt in range(2): a(f"v_mul_f32 v{M[qt]}, s41, v{M[qt]}")
    for ai in range(2):
        for v in range(4):
            for qt in range(2): a(f"v_fma_f32 v{S(ai,qt,v)}, v{S(ai,qt,v)}, s41, -v{M[qt]}")
    for ai in range(2):
        for v in range(4):
            for qt in range(2): a(f"v_exp_f32 v{S(ai,qt,v)}, v{S(ai,qt,v)}")
    a("s_nop 0")
    for qt in range(2): a(f"v_add_f32 v{SUM[qt]}, v{S(0,qt,0)}, v{S(0,qt,1)}")
    for (ai, v) in [(0,2),(0,3),(1,0),(1,1),(1,2),(1,3)]:
        for qt in range(2): a(f"v_add_f32 v{SUM[qt]}, v{SUM[qt]}, v{S(ai,qt,v)}")
    xlane(SUM, T_, "v_add_f32")
    for qt in range(2): a(f"v_rcp_f32 v{SUM[qt]}, v{SUM[qt]}")
    a("s_nop 0")
    for ai in range(2):
        for v in range(4):
            for qt in range(2): a(f"v_mul_f32 v{S(ai,qt,v)}, v{S(ai,qt,v)}, v{SUM[qt]}")
    for qt in range(2):
        for ai in range(2):
            for h2 in range(2):
                a(f"v_cvt_pk_bf16_f32 v{V_PF+4*qt+2*ai+h2}, v{S(ai,qt,2*h2)}, v{S(ai,qt,2*h2+1)}")
    stamp(a, 4)
    if VE:
        a("s_nop 0")
    else:
        a("s_barrier")
        vreads(0, 6); a("s_waitcnt lgkmcnt(4)"); vreads(6, 8)
        a("s_waitcnt lgkmcnt(0)")
        a("s_barrier")
    for T in range(8):
        for qt in range(2):
            a(f"v_mfma_f32_16x16x32_bf16 {vr(V_ACC+(T*2+qt)*4,4)}, {vr(V_VF+4*T,4)}, {vr(V_PF+4*qt,4)}, 0")
    if VE: a("s_barrier")
    a("s_nop 7")
    for p in range(4):
        for qt in range(2):
            for e in range(2):
                T = 2*p + e
                for h2 in range(2):
                    src = V_ACC + (T*2+qt)*4 + 2*h2
                    a(f"v_cvt_pk_bf16_f32 v{V_OF+(2*p+qt)*4+2*e+h2}, v{src}, v{src+1}")

V2_ACC = 16
V2_A = [88, 108]
V2_AD = [4, 5, 6, 12]
BUF = [160, 192, 224]

def p2_areads(slot, p, half, buf=None):
    r = []
    ad = V2_AD[slot]
    taus = range(0, 5) if half == 0 else range(5, 9)
    if buf is None: buf = half
    for k, tau in enumerate(taus):
        off = p * 32 * 288 + 32 * tau
        base = V2_A[buf] + 4 * k
        r.append(f"ds_read_b64_tr_b16 {vr(base,2)}, v{ad} offset:{off}")
        r.append(f"ds_read_b64_tr_b16 {vr(base+2,2)}, v{ad} offset:{off+16*288}")
    return r

def p2_bloads(a, slot, breg):
    a(f"s_add_u32 s45, s{S_J}, {slot}"); a("s_and_b32 s45, s45, 3"); a("s_add_u32 s45, s45, s44")
    a("s_lshl_b32 s45, s45, 2"); a(f"s_add_u32 s45, s45, s{S_WAVE}")
    a("s_lshl_b32 s46, s45, 13"); a("s_add_u32 s47, s46, 4096")
    for f in range(8):
        a(f"buffer_load_dwordx4 {vr(breg+4*f,4)}, v7, s[32:35], s{46 + f//4} offen offset:{(f%4)*1024} sc1")

S_NON = 52
S_FAST = 54

def get_nonce(a):
    a("s_waitcnt vmcnt(0)")
    a("v_mov_b32 v9, 0")
    a("s_mov_b32 s50, 0")
    a.label("L_nonce_chk")
    a(f"v_readfirstlane_b32 s{S_NON}, v{V_NONCE}"); a(f"v_readfirstlane_b32 s{S_NON+1}, v{V_NONCE+1}")
    a("s_nop 0")
    a(f"s_cmp_lg_u32 s{S_NON}, 0"); a("s_cbranch_scc1 L_nonce_ok")
    a(f"buffer_load_dwordx2 {vr(V_NONCE,2)}, v9, s[36:39], 0 offen sc1")
    a("s_add_u32 s50, s50, 1"); a("s_waitcnt vmcnt(0)")
    a(f"s_cmp_lt_u32 s50, {OPT['spin_max']}"); a("s_cbranch_scc1 L_nonce_chk")
    a.label("L_nonce_ok")
    a(f"s_mov_b32 s{S_FAST}, 0")
    if OPT['fast']:
        a(f"v_readfirstlane_b32 s55, v{V_CLW}")
        a(f"s_and_b32 s56, s{S_X}, 1"); a("s_lshl_b32 s56, s56, 4"); a("s_lshr_b32 s55, s55, s56")
        a("s_and_b32 s56, s55, 31")
        a("s_bfe_u32 s57, s55, 0x80005")
        a("s_bfe_u32 s55, s55, 0x3000d")
        a("s_mul_i32 s56, s56, s56"); a("s_lshl_b32 s57, s57, 2")
        a("s_cmp_eq_u32 s56, s57"); a(f"s_cselect_b32 s{S_FAST}, 1, 0")
        a("s_cmp_eq_u32 s55, 4"); a(f"s_cselect_b32 s{S_FAST}, s{S_FAST}, 0")
        if OPT['fast'] == 2: a(f"s_mov_b32 s{S_FAST}, 0")

def poll(a, tag, voff, soff, sleep=0):
    a("s_mov_b32 s50, 0")
    a.label(f"L_poll_{tag}")
    if sleep: a(f"s_sleep {sleep}")
    a(f"buffer_load_dwordx2 v[10:11], v{voff}, s[32:35], s{soff} offen sc1")
    a("s_add_u32 s50, s50, 1"); a("s_waitcnt vmcnt(0)")
    a(f"v_cmp_eq_u64 vcc, v[10:11], s[{S_NON}:{S_NON+1}]")
    a(f"s_cmp_ge_u32 s50, {OPT['spin_max']}"); a(f"s_cbranch_scc1 L_poll_{tag}_done")
    a("s_cmp_eq_u64 vcc, -1"); a(f"s_cbranch_scc0 L_poll_{tag}")
    a.label(f"L_poll_{tag}_done")

def flag_store(a, soff, mode):
    a(f"v_mov_b32 v10, s{S_NON}"); a(f"v_mov_b32 v11, s{S_NON+1}")
    a("s_mov_b64 exec, 1")
    if mode == 'dyn':
        a(f"s_cmp_eq_u32 s{S_FAST}, 0"); a("s_cbranch_scc1 L_flag_slow")
        a(f"buffer_store_dwordx2 v[10:11], v9, s[32:35], s{soff} offen")
        a("s_branch L_flag_join")
        a.label("L_flag_slow")
        a(f"buffer_store_dwordx2 v[10:11], v9, s[32:35], s{soff} offen sc1")
        a.label("L_flag_join")
    else:
        a(f"buffer_store_dwordx2 v[10:11], v9, s[32:35], s{soff} offen sc1")
    a("s_mov_b64 exec, -1")

def o_store(a):
    srd(a, 32, P_WS, SZ_WS_USED)
    a("v_lshlrev_b32 v7, 4, v0")
    a(f"s_lshl_b32 s40, s{S_G}, 5"); a(f"s_add_u32 s40, s40, s{S_H}"); a("s_lshl_b32 s40, s40, 2")
    a(f"s_add_u32 s40, s40, s{S_WAVE}"); a("s_lshl_b32 s40, s40, 13"); a("s_add_u32 s41, s40, 4096")
    global OSTORES
    OSTORES = [f"buffer_store_dwordx4 {vr(V_OF+4*f,4)}, v7, s[32:35], s{40 + f//4} offen offset:{(f%4)*1024} sc1" for f in range(8)]
    a("v_lshrrev_b32 v2, 4, v0"); a("v_bfe_u32 v3, v0, 2, 2"); a("v_lshl_add_u32 v2, v2, 2, v3")
    a("v_mul_u32_u24 v2, 288, v2"); a("v_and_b32 v3, 3, v0")
    a(f"v_lshl_add_u32 v{V2_AD[0]}, v3, 3, v2")
    for sl in range(1, 4): a(f"v_add_u32 v{V2_AD[sl]}, {sl*W_SLOT}, v{V2_AD[0]}")
    a(f"s_lshl_b32 s44, s{S_G}, 5"); a(f"s_lshl_b32 s45, s{S_X}, 2"); a("s_add_u32 s44, s44, s45")
    a(f"s_lshl_b32 s48, s{S_G}, 3"); a(f"s_add_u32 s48, s48, s{S_X}"); a("s_lshl_b32 s48, s48, 2")
    a(f"s_add_u32 s48, s48, s{S_WAVE}"); a("s_lshl_b32 s48, s48, 7"); a(f"s_add_u32 s48, s48, {WS_F}")
    a(f"s_lshl_b32 s49, s{S_J}, 3"); a("s_add_u32 s49, s49, s48")
    a("v_and_b32 v8, 3, v0"); a("v_lshlrev_b32 v8, 3, v8")

def bload_list(slot, breg):
    setup = [f"s_add_u32 s45, s{S_J}, {slot}", "s_and_b32 s45, s45, 3", "s_add_u32 s45, s45, s44",
             "s_lshl_b32 s45, s45, 2", f"s_add_u32 s45, s45, s{S_WAVE}",
             "s_lshl_b32 s46, s45, 13", "s_add_u32 s47, s46, 4096"]
    loads = [f"buffer_load_dwordx4 {vr(breg+4*f,4)}, v7, s[32:35], s{46 + f//4} offen offset:{(f%4)*1024} sc1" for f in range(8)]
    return setup, loads

def p2_run(a, hs, n0, n1, hooks_pre=None, hooks_mid=None, inject=None, spread=None):
    hooks_pre = hooks_pre or {}; hooks_mid = hooks_mid or {}; inject = inject or {}; spread = spread or {}
    for n in range(n0, n1):
        (s, p, hf) = hs[n]
        breg = V_OF if s == 0 else BUF[s - 1]
        nxt = p2_areads(*hs[n+1], buf=(n+1) & 1) if n + 1 < n1 else []
        taus = list(range(0, 5)) if hf == 0 else list(range(5, 9))
        nown = 2 * len(taus)
        nm = nown
        plan = [0] * nm
        for t in range(len(nxt)): plan[t % nm] += 1
        issued = 0; m = 0
        inj = list(inject.get(n, []))
        spr = list(spread.get(n, []))
        per = -(-len(spr) // nm) if spr else 0
        if n in hooks_pre: hooks_pre[n]()
        for k, tau in enumerate(taus):
            a(f"s_waitcnt lgkmcnt({nown - 2 * (k + 1) + issued})")
            for qt in range(2):
                d = vr(V2_ACC + (tau*2+qt)*4, 4)
                c = "0" if (s == 0 and p == 0) else d
                a(f"v_mfma_f32_16x16x32_bf16 {d}, {vr(V2_A[n & 1]+4*k,4)}, {vr(breg+(2*p+qt)*4,4)}, {c}")
                if m == 0 and n in hooks_mid: hooks_mid[n]()
                if nxt:
                    for r in nxt[issued:issued+plan[m]]: a(r)
                    issued = min(len(nxt), issued + plan[m])
                for _ in range(per):
                    if spr: a(spr.pop(0))
                m += 1
                if k >= len(taus) - 1 and inj: a(inj.pop(0))
        while inj: a(inj.pop(0))
        while spr: a(spr.pop(0))

def d_prep(a):
    a("v_bfe_u32 v13, v0, 1, 3"); a("v_mul_u32_u24 v13, 9216, v13")
    a("v_lshrrev_b32 v14, 4, v0"); a("v_lshlrev_b32 v14, 1, v14"); a("v_and_b32 v15, 1, v0")
    a("v_add_u32 v14, v14, v15"); a("v_lshl_add_u32 v13, v14, 4, v13")
    a(f"s_lshl_b32 s58, s{S_G}, 2"); a(f"s_add_u32 s58, s58, s{S_J}"); a("s_lshl_b32 s58, s58, 2")
    a(f"s_add_u32 s58, s58, s{S_WAVE}")
    a("s_mul_i32 s59, s58, 73728"); a(f"s_add_u32 s59, s59, {WS_D}")
    a(f"s_mul_i32 s40, s{S_X}, 1152"); a("s_add_u32 s40, s40, s59")

def d_pack_store(tau, G=160):
    r = []
    for qt in range(2):
        for h2 in range(2):
            src = V2_ACC + (tau*2+qt)*4 + 2*h2
            r.append(f"v_cvt_pk_bf16_f32 v{G+4*tau+2*qt+h2}, v{src}, v{src+1}")
    r.append(f"buffer_store_dwordx4 {vr(G+4*tau,4)}, v13, s[32:35], s40 offen offset:{128*tau} sc1")
    return r

def tail(a):
    hs = [(s, p, hf) for s in range(2) for p in range(4) for hf in range(2)]
    hs += [(2, p, 0) for p in range(4)] + [(3, p, 0) for p in range(4)]
    hs += [(2, p, 1) for p in range(4)] + [(3, p, 1) for p in range(4)]
    o_store(a)
    stamp(a, 6)
    for x in OSTORES: a(x)
    for r in p2_areads(*hs[0], buf=0): a(r)
    def exch():
        a("s_waitcnt vmcnt(0)")
        flag_store(a, 49, 'dyn')
        stamp(a, 7)
        poll(a, "o", 8, 48, sleep=OPT.get('o_sleep', 0))
        stamp(a, 8)
        p2_bloads(a, 1, BUF[0])
        a("s_nop 3")
    p2_run(a, hs, 0, 8, hooks_pre={OPT.get('flagpos', 4): exch})
    a("s_barrier")
    tstamp(a, 1)
    for r in p2_areads(*hs[8], buf=0): a(r)
    su2, l2 = bload_list(2, BUF[1]); su3, l3 = bload_list(3, BUF[2])
    for x in su2: a(x)
    d_prep(a)
    inj = {}
    for t in range(4):
        inj[8 + t] = list(l2[2*t:2*t+2])
        inj[12 + t] = list(l3[2*t:2*t+2])
    inj[11] = inj[11] + su3
    spr = {25: d_pack_store(0) + d_pack_store(1), 26: d_pack_store(2) + d_pack_store(3), 27: d_pack_store(4)}
    W = lambda n: (lambda: a(f"s_waitcnt vmcnt({n})"))
    p2_run(a, hs, 8, 32,
           hooks_pre={8: W(6), 10: W(8), 12: W(10), 14: W(12), 16: W(8), 20: W(0)},
           hooks_mid={15: lambda: a("s_barrier"), 19: lambda: a("s_barrier")},
           inject=inj, spread=spr)
    stamp(a, 9)
    reduce_inkernel(a)

def store_partials_f32(a):
    a("s_nop 7")
    a(f"s_lshl_b32 s45, s{S_X}, 3"); a(f"s_add_u32 s45, s45, s{S_G}"); a("s_lshl_b32 s45, s45, 2")
    a(f"s_add_u32 s45, s45, s{S_J}"); a("s_lshl_b32 s45, s45, 2"); a(f"s_add_u32 s45, s45, s{S_WAVE}")
    a(f"s_mul_i32 s45, s45, {18*1024}"); a(f"s_add_u32 s45, s45, {WS_P}")
    for u in range(18):
        if u and u % 4 == 0: a("s_add_u32 s45, s45, 4096")
        a(f"buffer_store_dwordx4 {vr(V2_ACC+4*u,4)}, v7, s[32:35], s45 offen offset:{(u%4)*1024}")

def store_partials_bf16(a):
    G = 160
    a(f"s_lshl_b32 s44, s{S_G}, 2"); a(f"s_add_u32 s44, s44, s{S_J}"); a("s_lshl_b32 s44, s44, 2")
    a(f"s_add_u32 s44, s44, s{S_WAVE}")
    a(f"s_lshl_b32 s45, s{S_X}, 7"); a("s_add_u32 s45, s45, s44"); a("s_mul_i32 s45, s45, 9216")
    a(f"s_add_u32 s45, s45, {WS_P}"); a("s_add_u32 s46, s45, 4096"); a("s_add_u32 s47, s45, 8192")
    sc = " sc1" if OPT.get('psc1', 1) else ""
    for tau in range(9):
        for qt in range(2):
            for h2 in range(2):
                src = V2_ACC + (tau*2+qt)*4 + 2*h2
                a(f"v_cvt_pk_bf16_f32 v{G+4*tau+2*qt+h2}, v{src}, v{src+1}")
        a(f"buffer_store_dwordx4 {vr(G+4*tau,4)}, v7, s[32:35], s{45 + tau//4} offen offset:{(tau%4)*1024}{sc}")

def kernel3b(a):
    name = "mha_p3_kernel"
    a(".p2align 8"); a(f".globl {name}"); a(f".type {name},@function"); a.label(name)
    a("s_cmp_ge_u32 s2, 288"); a(f"s_cbranch_scc1 L_end_{name}")
    a("s_load_dwordx2 s[26:27], s[0:1], 40"); a("s_load_dwordx2 s[30:31], s[0:1], 56")
    a("v_lshrrev_b32 v1, 6, v0"); a("v_and_b32 v0, 63, v0")
    a("s_lshl_b32 s5, s2, 2")
    a(f"v_readfirstlane_b32 s{S_WAVE}, v1")
    a("v_lshlrev_b32 v1, 4, v0")
    a(f"s_add_u32 s5, s5, s{S_WAVE}")
    a("s_mul_i32 s45, s5, 1024"); a(f"s_add_u32 s45, s45, {WS_P}")
    a("s_mul_hi_u32 s6, s5, 477218589")
    a("s_mul_i32 s7, s6, 9"); a("s_sub_u32 s7, s5, s7")
    a("s_waitcnt lgkmcnt(0)")
    srd(a, 32, P_WS, SZ_WS_USED); srd(a, 36, P_OUT, SZ_OUT)
    for x in range(8):
        a(f"buffer_load_dwordx4 {vr(8+4*x,4)}, v1, s[32:35], s45 offen")
        if x < 7: a(f"s_add_u32 s45, s45, {128*9216}")
    a("v_and_b32 v2, 15, v0"); a("v_mul_u32_u24 v2, 1152, v2"); a("v_lshrrev_b32 v3, 4, v0")
    a("v_lshl_add_u32 v2, v3, 3, v2")
    a("s_lshr_b32 s46, s6, 4"); a("s_lshl_b32 s46, s46, 2"); a("s_and_b32 s47, s6, 3"); a("s_add_u32 s46, s46, s47")
    a(f"s_mul_i32 s46, s46, {32*1152}")
    a("s_lshr_b32 s47, s6, 2"); a("s_and_b32 s47, s47, 3"); a("s_mul_i32 s47, s47, 288"); a("s_add_u32 s46, s46, s47")
    a("s_lshl_b32 s47, s7, 5"); a("s_add_u32 s46, s46, s47"); a(f"s_add_u32 s47, s46, {16*1152}")
    for x in range(8):
        a(f"s_waitcnt vmcnt({7-x})")
        for d in range(4):
            src = 8 + 4*x + d
            if x == 0:
                a(f"v_lshlrev_b32 v{40+2*d}, 16, v{src}"); a(f"v_and_b32 v{40+2*d+1}, 0xffff0000, v{src}")
            else:
                a(f"v_lshlrev_b32 v48, 16, v{src}"); a(f"v_and_b32 v49, 0xffff0000, v{src}")
                a(f"v_pk_add_f32 v[{40+2*d}:{40+2*d+1}], v[{40+2*d}:{40+2*d+1}], v[48:49]")
    for d in range(4): a(f"v_cvt_pk_bf16_f32 v{50+d}, v{40+2*d}, v{40+2*d+1}")
    a("buffer_store_dwordx2 v[50:51], v2, s[36:39], s46 offen")
    a("buffer_store_dwordx2 v[52:53], v2, s[36:39], s47 offen")
    a.label(f"L_end_{name}")
    a("s_endpgm")

def reduce_inkernel(a):
    RA = 196; RB = 88
    a("s_nop 7")
    for tau in range(5, 9):
        for x in d_pack_store(tau): a(x)
    a("s_lshl_b32 s48, s58, 8"); a(f"s_add_u32 s48, s48, {WS_F2}")
    a(f"s_lshl_b32 s49, s{S_X}, 3"); a("s_add_u32 s49, s49, s48")
    a("s_waitcnt vmcnt(4)")
    flag_store(a, 49, 'sc1')
    a("s_add_u32 s49, s49, 128")
    a("v_and_b32 v8, 7, v0"); a("v_lshlrev_b32 v8, 3, v8")
    a("v_and_b32 v14, 1, v0"); a("v_mul_u32_u24 v14, 1152, v14")
    a("v_bfe_u32 v15, v0, 1, 2"); a("v_lshl_add_u32 v14, v15, 3, v14")
    a("v_lshrrev_b32 v12, 3, v0"); a("v_lshl_add_u32 v14, v12, 5, v14")
    a("v_add_u32 v15, 160, v14")
    srd(a, 36, P_OUT, SZ_OUT)
    a(f"s_lshl_b32 s56, s{S_G}, 2"); a(f"s_add_u32 s56, s56, s{S_WAVE}"); a("s_lshl_b32 s56, s56, 5")
    a(f"s_lshl_b32 s57, s{S_X}, 1"); a("s_add_u32 s56, s56, s57"); a("s_mul_i32 s56, s56, 1152")
    a(f"s_mul_i32 s57, s{S_J}, 288"); a("s_add_u32 s56, s56, s57")
    a(f"s_add_u32 s57, s56, {16*1152}")
    a(f"s_mul_i32 s47, s{S_X}, 9216"); a("s_add_u32 s47, s47, s59")
    a("s_waitcnt vmcnt(1)")
    flag_store(a, 49, 'sc1')
    stamp(a, 10)
    poll(a, "da", 8, 48, sleep=OPT.get('d_sleep', 0))
    a("s_mov_b32 s46, s47")
    a("s_mov_b32 exec_hi, 0xff")
    for sx in range(8):
        a(f"buffer_load_dwordx4 {vr(RA+4*sx,4)}, v7, s[32:35], s46 offen sc1")
        if sx < 7: a("s_add_u32 s46, s46, 1152")
    a("s_mov_b64 exec, -1")
    a("s_add_u32 s48, s48, 128")
    poll(a, "db", 8, 48, sleep=OPT.get('d_sleep2', 1))
    stamp(a, 11)
    a("s_mov_b64 exec, 0xffffffff")
    for sx in range(8):
        a(f"buffer_load_dwordx4 {vr(RB+4*sx,4)}, v7, s[32:35], s47 offen offset:640 sc1")
        if sx < 7: a("s_add_u32 s47, s47, 1152")
    a("s_mov_b64 exec, -1")
    AA = 16; AB = 24; T = 32
    def summ(R, A, waits):
        for sx in range(8):
            if waits: a(f"s_waitcnt vmcnt({7 - sx})")
            for d in range(4):
                src = R + 4*sx + d
                if sx == 0:
                    a(f"v_lshlrev_b32 v{A+2*d}, 16, v{src}"); a(f"v_and_b32 v{A+2*d+1}, 0xffff0000, v{src}")
                else:
                    t = T + 2 * (d & 1)
                    a(f"v_lshlrev_b32 v{t}, 16, v{src}"); a(f"v_and_b32 v{t+1}, 0xffff0000, v{src}")
                    a(f"v_pk_add_f32 v[{A+2*d}:{A+2*d+1}], v[{A+2*d}:{A+2*d+1}], v[{t}:{t+1}]")
    fl = {0: "", 1: " sc1", 2: " nt", 3: " sc0 sc1"}[OPT.get('outfl', 0)]
    summ(RA, AA, False)
    for d in range(4): a(f"v_cvt_pk_bf16_f32 v{36+d}, v{AA+2*d}, v{AA+2*d+1}")
    summ(RB, AB, True)
    a("s_mov_b32 exec_hi, 0xff")
    a(f"buffer_store_dwordx2 v[36:37], v14, s[36:39], s56 offen{fl}")
    a(f"buffer_store_dwordx2 v[38:39], v14, s[36:39], s57 offen{fl}")
    a("s_mov_b64 exec, -1")
    for d in range(4): a(f"v_cvt_pk_bf16_f32 v{40+d}, v{AB+2*d}, v{AB+2*d+1}")
    a("s_mov_b64 exec, 0xffffffff")
    a(f"buffer_store_dwordx2 v[40:41], v15, s[36:39], s56 offen{fl}")
    a(f"buffer_store_dwordx2 v[42:43], v15, s[36:39], s57 offen{fl}")
    a("s_mov_b64 exec, -1")

def KNAME():
    return "standalone__mha_block_cached__near_ridge_kernel" if OPT['dk'] else "mha_a_kernel"

def kernelA(a):
    global KIDX
    KIDX = 0
    name = KNAME()
    prologue(a, name)
    stamp_init(a); stamp(a, 0); cstamp(a, 14)
    if OPT['stamps'] and OPT.get('entrystamp', 0): a("s_mov_b64 s[86:87], s[96:97]")
    a(f"s_cmp_lt_u32 s{S_WAVE}, 4"); a("s_cbranch_scc1 L_a_compute")
    a(f"s_cmp_eq_u32 s{S_WAVE}, 5"); a("s_cbranch_scc1 L_a_ldx")
    a(f"s_cmp_eq_u32 s{S_WAVE}, 6"); a("s_cbranch_scc1 L_a_ldk")
    a(f"s_cmp_eq_u32 s{S_WAVE}, 7"); a("s_cbranch_scc1 L_a_ldv")
    loader_ring(a, 'wq'); stamp_flush(a); a("s_endpgm")
    a.label("L_a_ldx"); loader_ring(a, 'x'); stamp_flush(a); a("s_endpgm")
    a.label("L_a_ldv"); loader_v(a); stamp_flush(a); a("s_endpgm")
    a.label("L_a_ldk"); loader_k(a); stamp_flush(a); a("s_endpgm")
    a.label("L_a_compute")
    CUR['compute'] = True
    gemm1_addrs(a); attn_addrs(a)
    kwait(a)
    srd(a, 36, P_DBG, 256)
    a("v_mov_b32 v1, 0")
    a(f"s_lshl_b32 s40, s{S_G}, 3"); a(f"s_add_u32 s40, s40, s{S_X}"); a("s_lshr_b32 s40, s40, 1")
    a("s_lshl_b32 s40, s40, 2"); a("s_add_u32 s40, s40, 128")
    srd(a, 44, P_WS, SZ_WS_USED)
    a(f"s_lshl_b32 s42, s{S_G}, 3"); a(f"s_add_u32 s42, s42, s{S_X}"); a("s_lshl_b32 s42, s42, 2")
    a(f"s_add_u32 s42, s42, s{S_WAVE}"); a("s_lshl_b32 s42, s42, 7"); a(f"s_add_u32 s42, s42, {WS_F}")
    gemm1(a)
    if not OPT.get('nonce_in', 1): get_nonce(a)
    stamp(a, 2)
    attention(a); stamp(a, 5)
    tail(a)
    if OPT['stamps']: a("s_waitcnt vmcnt(0)")
    stamp(a, 12); cstamp(a, 15); stamp_flush(a)
    if OPT.get('waitx', 0):
        a("s_waitcnt vmcnt(0)")
        a(f"s_add_u32 s62, s{S_NON}, {OPT['waitx']}")
        a("s_mov_b32 s63, 0")
        a.label("L_wx_spin")
        a("s_memrealtime s[64:65]"); a("s_waitcnt lgkmcnt(0)")
        a("s_add_u32 s63, s63, 1"); a("s_cmp_gt_u32 s63, 100000"); a("s_cbranch_scc1 L_wx_done")
        a("s_sub_u32 s66, s62, s64"); a("s_cmp_gt_i32 s66, 0"); a("s_cbranch_scc1 L_wx_spin")
        a.label("L_wx_done")
    if OPT.get('probe', -1) >= 0:
        a("s_waitcnt vmcnt(0)")
        a(f"s_sub_u32 s62, s60, s{S_NON}"); a(f"s_mul_i32 s62, s62, {OPT.get('probek', 8)}")
        a("s_memrealtime s[64:65]"); a("s_waitcnt lgkmcnt(0)")
        a("s_add_u32 s62, s62, s64")
        a("s_mov_b32 s63, 0")
        a.label("L_probe_spin")
        a("s_memrealtime s[64:65]"); a("s_waitcnt lgkmcnt(0)")
        a("s_add_u32 s63, s63, 1"); a("s_cmp_gt_u32 s63, 100000"); a("s_cbranch_scc1 L_probe_done")
        a("s_sub_u32 s66, s62, s64"); a("s_cmp_gt_i32 s66, 0"); a("s_cbranch_scc1 L_probe_spin")
        a.label("L_probe_done")
    a.label(f"L_end_{name}")
    a("s_endpgm")

def kernel3(a):
    global KIDX
    KIDX = 1
    name = "mha_p3_kernel"
    a(".p2align 8"); a(f".globl {name}"); a(f".type {name},@function"); a.label(name)
    a("s_cmp_ge_u32 s2, 256"); a(f"s_cbranch_scc1 L_end_{name}")
    a("s_load_dwordx16 s[16:31], s[0:1], 0")
    a("v_lshrrev_b32 v1, 6, v0"); a("v_and_b32 v0, 63, v0")
    a("s_lshr_b32 s5, s2, 1")
    a("s_and_b32 s6, s2, 1")
    a(f"v_readfirstlane_b32 s{S_WAVE}, v1")
    a("s_mul_i32 s6, s6, 9")
    a("s_waitcnt lgkmcnt(0)")
    stamp_init(a); stamp(a, 0); cstamp(a, 14)
    a(f"s_add_u32 s6, s6, s{S_WAVE}")
    srd(a, 32, P_WS, SZ_WS_USED); srd(a, 36, P_OUT, SZ_OUT)
    a("v_lshlrev_b32 v1, 4, v0")
    a("s_mul_i32 s45, s5, 18"); a("s_add_u32 s45, s45, s6"); a("s_lshl_b32 s45, s45, 10")
    a(f"s_add_u32 s45, s45, {WS_P}")
    for x in range(8):
        a(f"buffer_load_dwordx4 {vr(8+4*x,4)}, v1, s[32:35], s45 offen")
        if x < 7: a(f"s_add_u32 s45, s45, {128*18*1024}")
    a("v_and_b32 v2, 15, v0"); a("v_mul_u32_u24 v2, 1152, v2"); a("v_lshrrev_b32 v3, 4, v0")
    a("v_lshl_add_u32 v2, v3, 3, v2")
    a("s_lshr_b32 s46, s5, 4"); a("s_lshl_b32 s46, s46, 2"); a("s_and_b32 s47, s5, 3"); a("s_add_u32 s46, s46, s47")
    a(f"s_mul_i32 s46, s46, {32*1152}")
    a("s_lshr_b32 s47, s5, 2"); a("s_and_b32 s47, s47, 3"); a("s_mul_i32 s47, s47, 288"); a("s_add_u32 s46, s46, s47")
    a("s_and_b32 s47, s6, 1"); a(f"s_mul_i32 s47, s47, {16*1152}"); a("s_add_u32 s46, s46, s47")
    a("s_lshr_b32 s47, s6, 1"); a("s_lshl_b32 s47, s47, 5"); a("s_add_u32 s46, s46, s47")
    a("s_waitcnt vmcnt(0)")
    for v in range(4):
        for x in range(0, 8, 2): a(f"v_add_f32 v{8+4*x+v}, v{8+4*x+v}, v{12+4*x+v}")
    for v in range(4):
        a(f"v_add_f32 v{8+v}, v{8+v}, v{16+v}"); a(f"v_add_f32 v{24+v}, v{24+v}, v{32+v}")
    for v in range(4): a(f"v_add_f32 v{8+v}, v{8+v}, v{24+v}")
    a("v_cvt_pk_bf16_f32 v8, v8, v9"); a("v_cvt_pk_bf16_f32 v9, v10, v11")
    a("buffer_store_dwordx2 v[8:9], v2, s[36:39], s46 offen")
    if OPT['stamps']:
        a("s_waitcnt vmcnt(0)")
        stamp(a, 10); cstamp(a, 15)
        a(f"s_cmp_ge_u32 s{S_WAVE}, 8"); a("s_cbranch_scc1 L_end_mha_p3_kernel")
        stamp_flush(a, 44)
    a.label(f"L_end_{name}")
    a("s_endpgm")

def descriptor(a, name, vgpr, sgpr=102):
    a(f".amdhsa_kernel {name}")
    a(f".amdhsa_next_free_vgpr {vgpr}"); a(f".amdhsa_next_free_sgpr {sgpr}"); a(f".amdhsa_accum_offset {vgpr}")
    a(".amdhsa_group_segment_fixed_size 0"); a(".amdhsa_kernarg_size 64")
    a(".amdhsa_user_sgpr_count 2"); a(".amdhsa_user_sgpr_kernarg_segment_ptr 1")
    a(".amdhsa_system_sgpr_workgroup_id_x 1"); a(".end_amdhsa_kernel")

def main():
    out = sys.argv[1]
    for arg in sys.argv[2:]:
        if arg == "--stamps": OPT['stamps'] = True
        elif "=" in arg:
            k, v = arg.lstrip("-").split("="); OPT[k] = int(v)
    a = Asm()
    hdr = "; MHA block (Q-proj + attention + out-proj), generated by gen3.py\n"
    if OPT['dk']:
        hdr += "; @launch grid=(256,1,1) block=(512,1,1) lds=163840\n"
    else:
        hdr += "; @launch kernel=mha_a_kernel grid=(256,1,1) block=(512,1,1) lds=163840\n"
        if OPT.get('k3bf', 0): hdr += "; @launch kernel=mha_p3_kernel grid=(288,1,1) block=(256,1,1) lds=0\n"
        else: hdr += "; @launch kernel=mha_p3_kernel grid=(256,1,1) block=(576,1,1) lds=0\n"
    a('.amdgcn_target "amdgcn-amd-amdhsa--gfx950"'); a(".text")
    kernelA(a)
    if not OPT['dk']:
        if OPT.get('k3bf', 0): kernel3b(a)
        else: kernel3(a)
    a('.section .rodata,"a"'); a(".p2align 6"); descriptor(a, KNAME(), 256)
    if not OPT['dk']:
        a(".p2align 6"); descriptor(a, "mha_p3_kernel", 56)
    open(out, "w").write(hdr + a.text())

if __name__ == "__main__": main()
```

```python
import sys, struct

class Asm:
    def __init__(self): self.l = []
    def __call__(self, s=""):
        for x in s.split("\n"):
            x = x.strip()
            self.l.append(x if (x.endswith(":") or x.startswith(".")) else "  " + x)
    def label(self, s): self.l.append(s + ":")
    def text(self): return "\n".join(self.l) + "\n"

def vr(b, n=1): return f"v{b}" if n == 1 else f"v[{b}:{b+n-1}]"
def f32hex(x): return "0x%08x" % struct.unpack("<I", struct.pack("<f", x))[0]

P_X, P_K, P_V, P_WQ, P_WO, P_OUT, P_DBG, P_WS = 16, 18, 20, 22, 24, 26, 28, 30
SZ_X, SZ_KV, SZ_W, SZ_OUT = 1179648, 8388608, 4718592, 1179648
WS_O = 0
WS_P = 8 << 20
WS_F = 28 << 20
WS_F2 = (28 << 20) + (1 << 19)
WS_D = 8 << 20
WS_STAMP = 32 << 20
SZ_WS_USED = 64 << 20
S_WAVE, S_X, S_R, S_J, S_G, S_H = 3, 4, 5, 6, 9, 10

OPT = dict(stamps=False, fast=1, spin_max=2000000, kvmode=21, flagpos=4, xonce=1, vearly=1, woearly=1, d_sleep=1, d_sleep2=0, o_sleep=1, k_nt=1, v_nt=1, wot_pos=8, dk=1)

def srd(a, base, ptr, size, add=0):
    if add:
        a(f"s_add_u32 s{base}, s{ptr}, {add}"); a(f"s_addc_u32 s{base+1}, s{ptr+1}, 0")
        a(f"s_and_b32 s{base+1}, s{base+1}, 0xffff")
    else:
        a(f"s_mov_b32 s{base}, s{ptr}"); a(f"s_and_b32 s{base+1}, s{ptr+1}, 0xffff")
    a(f"s_mov_b32 s{base+2}, {size}"); a(f"s_mov_b32 s{base+3}, 0x00020000")

def prologue(a, name, nwg=256):
    a(".p2align 8"); a(f".globl {name}"); a(f".type {name},@function"); a.label(name)
    a(f"s_cmp_ge_u32 s2, {nwg}"); a(f"s_cbranch_scc1 L_end_{name}")
    if OPT['stamps'] and OPT.get('entrystamp', 0): a("s_memrealtime s[96:97]")
    a("s_load_dwordx16 s[16:31], s[0:1], 0")
    a("v_lshrrev_b32 v1, 6, v0"); a("v_and_b32 v0, 63, v0")
    a(f"s_and_b32 s{S_X}, s2, 7"); a(f"s_lshr_b32 s{S_R}, s2, 3")
    a(f"v_readfirstlane_b32 s{S_WAVE}, v1")
    a(f"s_and_b32 s{S_J}, s{S_R}, 3"); a(f"s_lshr_b32 s{S_G}, s{S_R}, 2")
    a(f"s_lshl_b32 s{S_H}, s{S_X}, 2"); a(f"s_add_u32 s{S_H}, s{S_H}, s{S_J}")
    if OPT['stamps'] or not OPT.get('latewait', 1): a("s_waitcnt lgkmcnt(0)")

def kwait(a):
    if not OPT['stamps'] and OPT.get('latewait', 1): a("s_waitcnt lgkmcnt(0)")

KIDX = 0
CUR = {}
def tstamp(a, idx):
    if OPT.get('tailstamps', 0): stamp(a, idx, force=True)
def stamp(a, idx, force=False):
    if OPT.get('probe', -1) == idx and CUR.get('compute') and (force or not (OPT.get('tailstamps', 0) and idx in (1,2,3,4,13))):
        a("s_memrealtime s[60:61]"); a("s_waitcnt lgkmcnt(0)")
        return
    if not OPT['stamps']: return
    if OPT.get('tailstamps', 0) and not force and idx in (1,2,3,4,13) and CUR.get('compute'): return
    a(f"s_memrealtime s[{60+2*idx}:{61+2*idx}]"); a("s_waitcnt lgkmcnt(0)")
def cstamp(a, idx):
    if not OPT['stamps']: return
    a(f"s_memtime s[{60+2*idx}:{61+2*idx}]"); a("s_waitcnt lgkmcnt(0)")
def stamp_init(a):
    if not OPT['stamps']: return
    for i in range(16): a(f"s_mov_b64 s[{60+2*i}:{61+2*i}], 0")
def stamp_flush(a, vb=250):
    if not OPT['stamps']: return
    srd(a, 92, P_WS, 256*16*16*8, add=WS_STAMP + KIDX*256*8*16*8)
    a("s_lshl_b32 s96, s2, 3"); a(f"s_add_u32 s96, s96, s{S_WAVE}"); a("s_lshl_b32 s96, s96, 7")
    a(f"v_mov_b32 v{vb+2}, 0")
    for i in range(16):
        a(f"v_mov_b32 v{vb}, s{60+2*i}"); a(f"v_mov_b32 v{vb+1}, s{61+2*i}")
        a(f"buffer_store_dwordx2 v[{vb}:{vb+1}], v{vb+2}, s[92:95], s96 offen offset:{i*8}")
        a("s_nop 1")
    a("s_waitcnt vmcnt(0)")

L_K = 98304; L_V = 131072; NCH = 9
W_SLOT = 36864

def dma(a, voff, srdb, soff, off=0, nt=False):
    a(f"buffer_load_dwordx4 v{voff}, s[{srdb}:{srdb+3}], s{soff} offen" + (f" offset:{off}" if off else "") + (" nt" if nt else "") + " lds")

V_WOV = 16
def wo_prep(a):
    srd(a, 52, P_WO, SZ_W)
    for t in range(9):
        a(f"v_add_u32 v1, {64*t}, v0")
        a("v_mul_u32_u24 v2, 3641, v1")
        a("v_lshrrev_b32 v2, 16, v2")
        a("v_mul_u32_u24 v3, 18, v2")
        a("v_sub_u32 v3, v1, v3")
        a("v_lshlrev_b32 v3, 4, v3")
        a("v_mul_u32_u24 v2, 1152, v2")
        a(f"v_add_u32 v{V_WOV+t}, v2, v3")
    a(f"s_mul_i32 s56, s{S_J}, 288")
def wo_issue(a, slot, q0, nq):
    a(f"s_add_u32 s57, s{S_J}, {slot}"); a("s_and_b32 s57, s57, 3")
    a(f"s_lshl_b32 s58, s{S_X}, 2"); a("s_add_u32 s57, s57, s58")
    a(f"s_mul_i32 s57, s57, {128*1152}"); a("s_add_u32 s57, s57, s56")
    if q0: a(f"s_add_u32 s57, s57, {q0*32*1152}")
    a(f"s_mov_b32 m0, {slot*W_SLOT + q0*32*288}"); a("s_nop 0")
    for blk in range(nq):
        for t in range(9):
            dma(a, V_WOV + t, 52, 57)
            if not (blk == nq - 1 and t == 8):
                a("s_add_u32 m0, m0, 1024")
                if t == 8: a(f"s_add_u32 s57, s57, {32*1152}")
                else: a("s_nop 0")

def loader_tail(a, role):
    a("s_barrier")
    stamp(a, 8)
    if role < 2:
        wo_issue(a, 0, 2 * role, 2); wo_issue(a, 1, 2 * role, 2)
    stamp(a, 9)
    if OPT.get('vearly', 0):
        if role < 2: a("s_waitcnt vmcnt(18)")
        a("s_barrier")
    else:
        if role == 3: a("s_waitcnt vmcnt(0)")
        a("s_barrier")
        if role < 2: a("s_waitcnt vmcnt(18)")
        a("s_barrier")
    if OPT.get('woearly', 0):
        wo_issue(a, 2, role, 1)
        wo_issue(a, 3, role, 1)
        stamp(a, 10)
        if role < 2: a("s_waitcnt vmcnt(18)")
        a("s_barrier")
    else:
        if role < 2: a("s_waitcnt vmcnt(0)")
        a("s_barrier")
        wo_issue(a, 2, role, 1)
        wo_issue(a, 3, role, 1)
        stamp(a, 10)
    a("s_waitcnt vmcnt(9)")
    a("s_barrier")
    a("s_waitcnt vmcnt(0)")
    stamp(a, 11)
    a("s_barrier")

def loader_ring(a, which):
    SRD = 32; SO = 40
    if which == 'wq':
        a("v_lshrrev_b32 v1, 4, v0"); a("v_and_b32 v2, 15, v0")
        a("v_lshlrev_b32 v3, 2, v1"); a("v_xor_b32 v3, v3, v2"); a("v_lshlrev_b32 v3, 4, v3")
        a("v_lshlrev_b32 v4, 13, v1"); a("v_add_u32 v4, v4, v3")
        a(f"s_lshl_b32 s{SO}, s{S_H}, 8")
        def issue(kc):
            a(f"s_mov_b32 m0, {(kc%3)*32768}")
            for t in range(16):
                if t == 0: a("s_nop 0")
                dma(a, 4, SRD, SO)
                a(f"s_add_u32 s{SO}, s{SO}, 32768")
                if t < 15:
                    a("s_add_u32 m0, m0, 1024"); a("s_nop 0")
    else:
        a("v_lshrrev_b32 v1, 3, v0"); a("v_mul_u32_u24 v1, 1152, v1")
        a("v_and_b32 v2, 7, v0"); a("v_lshrrev_b32 v3, 4, v0"); a("v_xor_b32 v2, v2, v3")
        a("v_lshlrev_b32 v4, 4, v2"); a("v_add_u32 v4, v4, v1")
        a("v_xor_b32 v2, 4, v2"); a("v_lshlrev_b32 v5, 4, v2"); a("v_add_u32 v5, v5, v1")
        a(f"s_mul_i32 s{SO+1}, s{S_G}, 147456")
        def issue(kc):
            a(f"s_mov_b32 m0, {(kc%3)*32768 + 16384}")
            a(f"s_add_u32 s{SO}, s{SO+1}, {kc*128}")
            for T in range(16):
                dma(a, 4 + (T & 1), SRD, SO)
                if T < 15:
                    a("s_add_u32 m0, m0, 1024"); a(f"s_add_u32 s{SO}, s{SO}, 9216")
    kv_pos(a, 43, 'k')
    if which == 'wq':
        a("v_lshrrev_b32 v8, 1, v0"); a("v_and_b32 v9, 1, v0")
        a("v_lshlrev_b32 v8, 13, v8"); a("v_lshl_add_u32 v8, v9, 7, v8")
        a(f"s_lshl_b32 s46, s{S_G}, {5+13}"); a(f"s_lshl_b32 s47, s{S_H}, 8"); a("s_add_u32 s46, s46, s47")
        def touch(part):
            if part == 0:
                a(f"buffer_load_dword v10, v8, s[{SRD}:{SRD+3}], s46 offen")
            else:
                a(f"s_add_u32 s46, s46, {256*8192}")
                a(f"buffer_load_dword v10, v8, s[{SRD}:{SRD+3}], s46 offen")
                a(f"s_lshl_b32 s46, s{S_G}, {3+13}"); a("s_add_u32 s46, s46, s47"); a(f"s_add_u32 s46, s46, {512*8192}")
                a("s_mov_b64 exec, 0xffff")
                a(f"buffer_load_dword v10, v8, s[{SRD}:{SRD+3}], s46 offen")
                a("s_mov_b64 exec, -1")
        NT1 = 2
    else:
        if OPT.get('xonce', 0):
            a("v_mul_u32_u24 v8, 7282, v0"); a("v_lshrrev_b32 v8, 16, v8")
            a("v_mul_u32_u24 v9, 9, v8"); a("v_sub_u32 v9, v0, v9")
            a("v_mul_u32_u24 v8, 1152, v8"); a("v_lshl_add_u32 v8, v9, 7, v8")
            a(f"s_mul_i32 s46, s{S_G}, 147456"); a(f"s_mul_i32 s47, s{S_H}, {4*1152}"); a("s_add_u32 s46, s46, s47")
            def touch(part):
                if part == 0:
                    a("s_mov_b32 exec_lo, -1"); a("s_mov_b32 exec_hi, 15")
                    a(f"buffer_load_dword v10, v8, s[{SRD}:{SRD+3}], s46 offen")
                    a("s_mov_b64 exec, -1")
            NT1 = 0
        else:
            a("v_and_b32 v9, 31, v0"); a("v_mul_u32_u24 v9, 1152, v9")
            a("v_lshrrev_b32 v8, 5, v0"); a("v_lshl_add_u32 v8, v8, 7, v9")
            a(f"s_mul_i32 s46, s{S_G}, 147456"); a(f"s_mul_i32 s47, s{S_J}, {32*1152}"); a("s_add_u32 s46, s46, s47")
            def touch(part):
                if part == 0:
                    a(f"buffer_load_dword v10, v8, s[{SRD}:{SRD+3}], s46 offen")
                else:
                    for t in range(1, 4):
                        a(f"buffer_load_dword v10, v8, s[{SRD}:{SRD+3}], s46 offen offset:{256*t}")
                    a("s_mov_b64 exec, 0xffffffff")
                    a(f"buffer_load_dword v10, v9, s[{SRD}:{SRD+3}], s46 offen offset:1024")
                    a("s_mov_b64 exec, -1")
            NT1 = 4
    kwait(a)
    srd(a, SRD, P_WQ if which == 'wq' else P_X, SZ_W if which == 'wq' else SZ_X)
    touch(0)
    issue(0); stamp(a, 1)
    touch(1)
    a("s_barrier")
    bx(a, -1, "r" + which)
    issue(1)
    stamp(a, 2)
    a(f"s_waitcnt vmcnt({16 + NT1})")
    stamp(a, 3)
    a("s_barrier")
    bx(a, 0, "r" + which)
    issue(2)
    for i in range(1, NCH):
        last_issued = min(i + 1, NCH - 1)
        a(f"s_waitcnt vmcnt({(last_issued - i) * 16})")
        a("s_barrier")
        if which == 'wq' and i in (1,2,3,4): stamp(a, {1:4,2:5,3:6,4:12}[i])
        if which == 'x' and i in (5,6,7,8): stamp(a, {5:4,6:5,7:6,8:12}[i])
        if i < 8: bx(a, i, "r" + which)
        if i + 2 < NCH: issue(i + 2)
        if i == 7: wo_prep(a)
    stamp(a, 7)
    loader_tail(a, 0 if which == 'wq' else 1)

def kv_pos(a, sdst, which):
    m = OPT['kvmode']
    if m == 10:
        tab = [-1, 2, 4, 7]
    elif m == 11: tab = [7, 7, 7, 7]
    elif m == 12: tab = [-1, -1, -1, -1]
    elif m == 13: tab = [1, 1, 6, 6]
    elif m == 14: tab = [-1, 1, 4, 7]
    elif m == 15: tab = [0, 3, 5, 7]
    elif m == 16: tab = [2, 7, 2, 7]
    elif m == 17: tab = [3, 5, 7, 7]
    elif m == 20: tab = [-1, 1, 3, 5]
    elif m == 21: tab = [-1, 2, 4, 6]
    elif m == 22: tab = [-1, -1, 3, 3]
    elif m == 23: tab = [-1, 0, 2, 4]
    elif m == 24: tab = [0, 2, 4, 6]
    elif m == 25: tab = [-1, -1, -1, -1]
    packed = sum(((p + 1) & 15) << (4 * k) for k, p in enumerate(tab))
    a(f"s_and_b32 s{sdst}, s{S_G}, 3"); a(f"s_lshl_b32 s{sdst}, s{sdst}, 2")
    a(f"s_lshr_b32 s{sdst}, {packed}, s{sdst}"); a(f"s_and_b32 s{sdst}, s{sdst}, 15")

def bx(a, p, tag):
    if p >= 6: return
    a(f"s_cmp_lg_u32 s43, {p+1}"); a(f"s_cbranch_scc1 L_bx_{tag}_{p+1}")
    a("s_barrier")
    a.label(f"L_bx_{tag}_{p+1}")

def kv_loop(a, tag, issue_fn, extra_fn=None, extra_pos=None):
    a("s_mov_b32 s59, 0")
    a.label(f"L_{tag}_loop")
    a("s_cmp_lg_u32 s59, s43"); a(f"s_cbranch_scc1 L_{tag}_skip")
    stamp(a, 3)
    issue_fn()
    stamp(a, 4)
    a(f"s_cmp_ge_u32 s59, 7"); a(f"s_cbranch_scc1 L_{tag}_skip")
    a("s_barrier")
    a.label(f"L_{tag}_skip")
    if extra_fn is not None:
        a(f"s_cmp_lg_u32 s59, {extra_pos}"); a(f"s_cbranch_scc1 L_{tag}_skip2")
        extra_fn()
        a.label(f"L_{tag}_skip2")
    a("s_barrier")
    a("s_add_u32 s59, s59, 1")
    a("s_cmp_le_u32 s59, 8"); a(f"s_cbranch_scc1 L_{tag}_loop")

def loader_k(a):
    SRD = 32; SO = 40
    kwait(a)
    srd(a, SRD, P_K, SZ_KV)
    a("v_lshrrev_b32 v1, 4, v0"); a("v_and_b32 v2, 15, v0"); a("v_xor_b32 v2, v2, v1")
    a("v_lshlrev_b32 v2, 4, v2"); a("v_lshl_add_u32 v4, v1, 8, v2")
    a("v_xor_b32 v5, 64, v4"); a("v_xor_b32 v6, 128, v4"); a("v_xor_b32 v7, 192, v4")
    wo_prep(a)
    a("v_and_b32 v8, 15, v0"); a("v_mul_u32_u24 v8, 1152, v8")
    a("v_lshrrev_b32 v9, 4, v0"); a("v_lshl_add_u32 v9, v9, 7, v8")
    kv_pos(a, 43, 'k')
    if OPT.get('tlbwarm', 0):
        a(f"s_lshl_b32 s{SO}, s{S_G}, 7"); a(f"s_add_u32 s{SO}, s{SO}, s{S_H}"); a(f"s_lshl_b32 s{SO}, s{SO}, 13")
        a("v_lshlrev_b32 v11, 18, v0")
        a("s_mov_b64 exec, 15")
        a(f"buffer_load_dword v10, v11, s[{SRD}:{SRD+3}], s{SO} offen nt")
        a("s_mov_b64 exec, -1")
    a("s_barrier")
    stamp(a, 1)
    def issue():
        a(f"s_lshl_b32 s{SO}, s{S_G}, 7"); a(f"s_add_u32 s{SO}, s{SO}, s{S_H}"); a(f"s_lshl_b32 s{SO}, s{SO}, 13")
        for w in range(4):
            for hf in range(2):
                a(f"s_mov_b32 m0, {L_K + w*8192 + hf*4096}"); a("s_nop 0")
                for t4 in range(4):
                    t = hf * 4 + t4
                    dma(a, 4 + (t >> 1), SRD, SO, off=t4 * 1024, nt=bool(OPT['k_nt']))
                a(f"s_add_u32 s{SO}, s{SO}, {4096 if hf == 0 else 32*8192 - 4096}")
    def wotouch():
        a(f"s_lshl_b32 s{SO}, s{S_X}, 5"); a(f"s_add_u32 s{SO}, s{SO}, s{S_R}")
        a(f"s_mul_i32 s{SO}, s{SO}, {16*1152}")
        a(f"buffer_load_dword v10, v9, s[52:55], s{SO} offen")
        a(f"buffer_load_dword v10, v9, s[52:55], s{SO} offen offset:512")
        a("s_mov_b64 exec, 0xffff")
        a(f"buffer_load_dword v10, v8, s[52:55], s{SO} offen offset:1024")
        a("s_mov_b64 exec, -1")
    kv_loop(a, "k", issue, wotouch, OPT['wot_pos'])
    a("s_waitcnt vmcnt(3)")
    stamp(a, 7)
    loader_tail(a, 2)

def loader_v(a):
    SRD = 32; SO = 40
    kwait(a)
    srd(a, SRD, P_V, SZ_KV)
    a("s_cmp_lg_u32 s2, 0"); a("s_cbranch_scc1 L_nononce")
    srd(a, 48, P_DBG, 256)
    a("s_memrealtime s[42:43]"); a("s_waitcnt lgkmcnt(0)")
    a("s_or_b32 s42, s42, 1")
    a("v_mov_b32 v8, s42"); a("v_mov_b32 v9, s43"); a("v_mov_b32 v1, 0")
    a("s_mov_b64 exec, 1")
    a("buffer_store_dwordx2 v[8:9], v1, s[48:51], 0 offen sc1")
    a("s_mov_b64 exec, -1")
    a.label("L_nononce")
    if OPT['fast']:
        srd(a, 48, P_DBG, 256)
        a("s_getreg_b32 s42, hwreg(HW_REG_XCC_ID)")
        a("s_and_b32 s42, s42, 15")
        a("s_cmp_ge_u32 s42, 8"); a("s_cbranch_scc1 L_noxcc")
        a("s_mul_i32 s43, s42, s42"); a("s_lshl_b32 s43, s43, 5"); a("s_add_u32 s42, s42, s43")
        a("s_add_u32 s42, s42, 0x2000")
        a(f"s_lshl_b32 s43, s{S_G}, 3"); a(f"s_add_u32 s43, s43, s{S_X}")
        a("s_and_b32 s41, s43, 1"); a("s_lshl_b32 s41, s41, 4"); a("s_lshl_b32 s42, s42, s41")
        a("s_lshr_b32 s43, s43, 1"); a("s_lshl_b32 s43, s43, 2"); a("s_add_u32 s43, s43, 128")
        a("v_mov_b32 v8, s42"); a("v_mov_b32 v1, 0")
        a("s_mov_b64 exec, 1")
        a("buffer_atomic_add v8, v1, s[48:51], s43 offen")
        a("s_mov_b64 exec, -1")
        a.label("L_noxcc")
    a("v_lshrrev_b32 v1, 4, v0"); a("v_and_b32 v2, 15, v0"); a("v_lshlrev_b32 v3, 1, v1")
    a("v_xor_b32 v2, v2, v3"); a("v_lshlrev_b32 v2, 4, v2"); a("v_lshl_add_u32 v4, v1, 8, v2")
    a("v_xor_b32 v5, 128, v4")
    wo_prep(a)
    kv_pos(a, 43, 'v')
    if OPT.get('tlbwarm', 0):
        a(f"s_lshl_b32 s{SO}, s{S_G}, 7"); a(f"s_add_u32 s{SO}, s{SO}, s{S_H}"); a(f"s_lshl_b32 s{SO}, s{SO}, 13")
        a("v_lshlrev_b32 v11, 18, v0")
        a("s_mov_b64 exec, 15")
        a(f"buffer_load_dword v10, v11, s[{SRD}:{SRD+3}], s{SO} offen nt")
        a("s_mov_b64 exec, -1")
    a("s_barrier")
    stamp(a, 1)
    def issue():
        a(f"s_lshl_b32 s{SO}, s{S_G}, 7"); a(f"s_add_u32 s{SO}, s{SO}, s{S_H}"); a(f"s_lshl_b32 s{SO}, s{SO}, 13")
        for w in range(4):
            for hf in range(2):
                a(f"s_mov_b32 m0, {L_V + w*8192 + hf*4096}"); a("s_nop 0")
                for t4 in range(4):
                    t = hf * 4 + t4
                    dma(a, 4 + ((t >> 1) & 1), SRD, SO, off=t4 * 1024, nt=bool(OPT['v_nt']))
                a(f"s_add_u32 s{SO}, s{SO}, {4096 if hf == 0 else 32*8192 - 4096}")
    kv_loop(a, "v", issue)
    if OPT.get('vearly', 0): a("s_waitcnt vmcnt(0)")
    stamp(a, 7)
    loader_tail(a, 3)

V_XA = [4, 8]; V_WA = [12, 248]
V_A = [16, 32]; V_B = [48, 52]; V_ACC = 64
V_QF = 128; V_KF = 160; V_S = 192; V_VF = 208; V_PF = 240; V_OF = 128
V_KA = 56; V_VA = 60; V_CLW = 61; V_NONCE = 62
SC_SCALE = 0.08838834764831845 * 1.4426950408889634

def gemm1_addrs(a):
    a("v_and_b32 v1, 31, v0"); a("v_lshrrev_b32 v2, 5, v0"); a("v_bfe_u32 v3, v0, 1, 3")
    a("v_xor_b32 v2, v2, v3"); a("v_lshlrev_b32 v2, 4, v2"); a("v_lshl_add_u32 v2, v1, 7, v2")
    a(f"s_lshl_b32 s40, s{S_WAVE}, 12"); a("s_add_u32 s40, s40, 16384")
    a("v_add_u32 v2, s40, v2")
    for ks in range(4):
        a(f"v_xor_b32 v{V_XA[0]+ks}, {32*ks}, v2"); a(f"v_add_u32 v{V_XA[1]+ks}, 65536, v{V_XA[0]+ks}")
    a("v_bfe_u32 v1, v0, 2, 2"); a("v_lshrrev_b32 v2, 5, v0"); a("v_lshl_add_u32 v2, v2, 3, v1")
    a("v_lshlrev_b32 v2, 8, v2"); a("v_and_b32 v3, 1, v0"); a("v_lshl_add_u32 v2, v3, 5, v2")
    a("v_bfe_u32 v3, v0, 4, 1"); a("v_lshl_add_u32 v2, v3, 4, v2")
    a("v_bfe_u32 v3, v0, 1, 1"); a("v_lshl_add_u32 v2, v3, 3, v2")
    a("v_lshl_add_u32 v2, v1, 6, v2")
    for dt in range(4):
        a(f"v_xor_b32 v{V_WA[0]+dt}, {64*dt}, v2"); a(f"v_add_u32 v{V_WA[1]+dt}, 65536, v{V_WA[0]+dt}")

def attn_addrs(a):
    a("v_and_b32 v1, 15, v0"); a("v_lshrrev_b32 v2, 4, v0"); a("v_xor_b32 v2, v2, v1")
    a("v_lshlrev_b32 v2, 4, v2"); a("v_lshrrev_b32 v3, 2, v1"); a("v_lshl_add_u32 v2, v3, 11, v2")
    a("v_and_b32 v3, 3, v1"); a("v_lshl_add_u32 v2, v3, 8, v2")
    a(f"s_lshl_b32 s40, s{S_WAVE}, 13"); a(f"s_add_u32 s40, s40, {L_K}")
    a("v_add_u32 v2, s40, v2")
    for st in range(4): a(f"v_xor_b32 v{V_KA+st}, {64*st}, v2")
    a("v_lshrrev_b32 v1, 4, v0"); a("v_bfe_u32 v3, v0, 2, 2"); a("v_lshl_add_u32 v2, v1, 3, v3")
    a("v_lshlrev_b32 v2, 8, v2"); a("v_and_b32 v1, 1, v1"); a("v_lshl_add_u32 v3, v1, 2, v3")
    a("v_lshl_add_u32 v2, v3, 5, v2"); a("v_and_b32 v3, 3, v0"); a("v_lshl_add_u32 v2, v3, 3, v2")
    a(f"s_lshl_b32 s40, s{S_WAVE}, 13"); a(f"s_add_u32 s40, s40, {L_V}")
    a(f"v_add_u32 v{V_VA}, s40, v2")

def g1_reads(n):
    i, ks = divmod(n, 4)
    slot = i % 3; st = n & 1; hs = 1 if slot == 2 else 0; so = (slot & 1) * 32768 if slot < 2 else 0
    r = [f"ds_read_b128 {vr(V_B[st],4)}, v{V_XA[hs]+ks} offset:{so}"]
    for dt in range(4):
        base = V_A[st] + 4 * dt
        off = so + ks * 4096
        r.append(f"ds_read_b64_tr_b16 {vr(base,2)}, v{V_WA[hs]+dt} offset:{off}")
        r.append(f"ds_read_b64_tr_b16 {vr(base+2,2)}, v{V_WA[hs]+dt} offset:{off+1024}")
    return r

def gemm1(a):
    NS = NCH * 4
    kv_pos(a, 43, 'k')
    a("s_barrier")
    bx(a, -1, "c")
    a("s_barrier")
    stamp(a, 1)
    for r in g1_reads(0): a(r)
    for n in range(NS):
        i, ks = divmod(n, 4); st = n & 1
        nxt = g1_reads(n + 1) if n + 1 < NS else []
        def mf(dt):
            c = "0" if n == 0 else vr(V_ACC + 16 * dt, 16)
            a(f"v_mfma_f32_32x32x16_bf16 {vr(V_ACC+16*dt,16)}, {vr(V_A[st]+4*dt,4)}, {vr(V_B[st],4)}, {c}")
        if ks == 3:
            for dt in range(4):
                a(f"s_waitcnt lgkmcnt({[6,4,2,0][dt]})")
                if dt == 3 and nxt:
                    bx(a, i, "c")
                    a("s_barrier")
                    for r in nxt[:5]: a(r)
                mf(dt)
            for r in nxt[5:]: a(r)
        else:
            first_after_boundary = (ks == 0 and n > 0)
            for dt in range(4):
                a(f"s_waitcnt lgkmcnt({[6,7,8,9][dt]})")
                mf(dt)
                if dt < 3:
                    for r in nxt[3*dt:3*dt+3]: a(r)
        if n == 33 and OPT.get('nonce_in', 1): get_nonce(a)
        if n == 24:
            a(f"buffer_load_dwordx2 {vr(V_NONCE,2)}, v1, s[36:39], 0 offen sc1")
            if OPT['fast']:
                a(f"buffer_load_dword v{V_CLW}, v1, s[36:39], s40 offen sc1")
                a(f"buffer_load_dword v2, v1, s[44:47], s42 offen sc1")

def attention(a):
    VE = OPT.get('vearly', 0)
    a("s_barrier")
    stamp(a, 3)
    for ai in range(2):
        for st in range(4):
            a(f"ds_read_b128 {vr(V_KF+(ai*4+st)*4,4)}, v{V_KA+st} offset:{ai*1024}")
    def vreads(T0, T1):
        for T in range(T0, T1):
            if T: a(f"v_xor_b32 v1, {32*T}, v{V_VA}")
            ad = "v1" if T else f"v{V_VA}"
            a(f"ds_read_b64_tr_b16 {vr(V_VF+4*T,2)}, {ad}")
            a(f"ds_read_b64_tr_b16 {vr(V_VF+4*T+2,2)}, {ad} offset:1024")
    for dt in range(4):
        for i in range(8):
            a(f"v_cvt_pk_bf16_f32 v{V_QF+8*dt+i}, v{V_ACC+16*dt+2*i}, v{V_ACC+16*dt+2*i+1}")
        if VE and dt == 1:
            a("s_waitcnt lgkmcnt(0)"); vreads(0, 4)
    a("s_nop 1")
    for dt in range(4):
        for i in range(4):
            a(f"v_permlane16_swap_b32 v{V_QF+8*dt+i}, v{V_QF+8*dt+4+i}")
    if VE:
        a("s_waitcnt lgkmcnt(4)"); vreads(4, 8)
    else:
        a("s_waitcnt lgkmcnt(0)")
    for st in range(4):
        for ai in range(2):
            for qt in range(2):
                d = vr(V_S + (ai*2+qt)*4, 4)
                c = "0" if st == 0 else d
                a(f"v_mfma_f32_16x16x32_bf16 {d}, {vr(V_KF+(ai*4+st)*4,4)}, {vr(V_QF+8*st+4*qt,4)}, {c}")
    if VE:
        a("s_waitcnt lgkmcnt(0)")
    def S(ai, qt, v): return V_S + (ai*2+qt)*4 + v
    M = [48, 49]; T_ = [50, 51]; SUM = [52, 53]
    a("s_nop 7")
    for qt in range(2): a(f"v_max3_f32 v{M[qt]}, v{S(0,qt,0)}, v{S(0,qt,1)}, v{S(0,qt,2)}")
    for qt in range(2): a(f"v_max3_f32 v{M[qt]}, v{M[qt]}, v{S(0,qt,3)}, v{S(1,qt,0)}")
    for qt in range(2): a(f"v_max3_f32 v{M[qt]}, v{M[qt]}, v{S(1,qt,1)}, v{S(1,qt,2)}")
    for qt in range(2): a(f"v_max_f32 v{M[qt]}, v{M[qt]}, v{S(1,qt,3)}")
    def xlane(regs, tmps, op):
        for sw in ("v_permlane16_swap_b32", "v_permlane32_swap_b32"):
            for qt in range(2): a(f"v_mov_b32 v{tmps[qt]}, v{regs[qt]}")
            a("s_nop 0")
            for qt in range(2): a(f"{sw} v{tmps[qt]}, v{regs[qt]}")
            a("s_nop 0")
            for qt in range(2): a(f"{op} v{regs[qt]}, v{regs[qt]}, v{tmps[qt]}")
    xlane(M, T_, "v_max_f32")
    a(f"s_mov_b32 s41, {f32hex(SC_SCALE)}")
    for qt in range(2): a(f"v_mul_f32 v{M[qt]}, s41, v{M[qt]}")
    for ai in range(2):
        for v in range(4):
            for qt in range(2): a(f"v_fma_f32 v{S(ai,qt,v)}, v{S(ai,qt,v)}, s41, -v{M[qt]}")
    for ai in range(2):
        for v in range(4):
            for qt in range(2): a(f"v_exp_f32 v{S(ai,qt,v)}, v{S(ai,qt,v)}")
    a("s_nop 0")
    for qt in range(2): a(f"v_add_f32 v{SUM[qt]}, v{S(0,qt,0)}, v{S(0,qt,1)}")
    for (ai, v) in [(0,2),(0,3),(1,0),(1,1),(1,2),(1,3)]:
        for qt in range(2): a(f"v_add_f32 v{SUM[qt]}, v{SUM[qt]}, v{S(ai,qt,v)}")
    xlane(SUM, T_, "v_add_f32")
    for qt in range(2): a(f"v_rcp_f32 v{SUM[qt]}, v{SUM[qt]}")
    a("s_nop 0")
    for ai in range(2):
        for v in range(4):
            for qt in range(2): a(f"v_mul_f32 v{S(ai,qt,v)}, v{S(ai,qt,v)}, v{SUM[qt]}")
    for qt in range(2):
        for ai in range(2):
            for h2 in range(2):
                a(f"v_cvt_pk_bf16_f32 v{V_PF+4*qt+2*ai+h2}, v{S(ai,qt,2*h2)}, v{S(ai,qt,2*h2+1)}")
    stamp(a, 4)
    if VE:
        a("s_nop 0")
    else:
        a("s_barrier")
        vreads(0, 6); a("s_waitcnt lgkmcnt(4)"); vreads(6, 8)
        a("s_waitcnt lgkmcnt(0)")
        a("s_barrier")
    def pv(T):
        for qt in range(2):
            a(f"v_mfma_f32_16x16x32_bf16 {vr(V_ACC+(T*2+qt)*4,4)}, {vr(V_VF+4*T,4)}, {vr(V_PF+4*qt,4)}, 0")
    def pack(p):
        for qt in range(2):
            for e in range(2):
                T = 2*p + e
                for h2 in range(2):
                    src = V_ACC + (T*2+qt)*4 + 2*h2
                    a(f"v_cvt_pk_bf16_f32 v{V_OF+(2*p+qt)*4+2*e+h2}, v{src}, v{src+1}")
    if OPT.get('ostin', 1):
        o_store(a)
        a("s_nop 0")
        for T in range(6): pv(T)
        pack(0); pv(6); a(OSTORES[0]); a(OSTORES[1]); pv(7)
        pack(1); a(OSTORES[2]); a(OSTORES[3])
        a("s_barrier")
        pack(2); a(OSTORES[4]); a(OSTORES[5])
        a("s_nop 1")
        pack(3); a(OSTORES[6]); a(OSTORES[7])
    else:
        for T in range(8): pv(T)
        if VE: a("s_barrier")
        a("s_nop 7")
        for p in range(4): pack(p)

V2_ACC = 16
V2_A = [88, 108]
V2_AD = [4, 5, 6, 12]
BUF = [160, 192, 224]

def p2_areads(slot, p, half, buf=None):
    r = []
    ad = V2_AD[slot]
    taus = range(0, 5) if half == 0 else range(5, 9)
    if buf is None: buf = half
    for k, tau in enumerate(taus):
        off = p * 32 * 288 + 32 * tau
        base = V2_A[buf] + 4 * k
        r.append(f"ds_read_b64_tr_b16 {vr(base,2)}, v{ad} offset:{off}")
        r.append(f"ds_read_b64_tr_b16 {vr(base+2,2)}, v{ad} offset:{off+16*288}")
    return r

def p2_bloads(a, slot, breg):
    a(f"s_add_u32 s45, s{S_J}, {slot}"); a("s_and_b32 s45, s45, 3"); a("s_add_u32 s45, s45, s44")
    a("s_lshl_b32 s45, s45, 2"); a(f"s_add_u32 s45, s45, s{S_WAVE}")
    a("s_lshl_b32 s46, s45, 13"); a("s_add_u32 s47, s46, 4096")
    for f in range(8):
        a(f"buffer_load_dwordx4 {vr(breg+4*f,4)}, v7, s[32:35], s{46 + f//4} offen offset:{(f%4)*1024} sc1")

S_NON = 52
S_FAST = 54

def get_nonce(a):
    a("s_waitcnt vmcnt(0)")
    a("v_mov_b32 v9, 0")
    a("s_mov_b32 s50, 0")
    a.label("L_nonce_chk")
    a(f"v_readfirstlane_b32 s{S_NON}, v{V_NONCE}"); a(f"v_readfirstlane_b32 s{S_NON+1}, v{V_NONCE+1}")
    a("s_nop 0")
    a(f"s_cmp_lg_u32 s{S_NON}, 0"); a("s_cbranch_scc1 L_nonce_ok")
    a(f"buffer_load_dwordx2 {vr(V_NONCE,2)}, v9, s[36:39], 0 offen sc1")
    a("s_add_u32 s50, s50, 1"); a("s_waitcnt vmcnt(0)")
    a(f"s_cmp_lt_u32 s50, {OPT['spin_max']}"); a("s_cbranch_scc1 L_nonce_chk")
    a.label("L_nonce_ok")
    a(f"s_mov_b32 s{S_FAST}, 0")
    if OPT['fast']:
        a(f"v_readfirstlane_b32 s55, v{V_CLW}")
        a(f"s_and_b32 s56, s{S_X}, 1"); a("s_lshl_b32 s56, s56, 4"); a("s_lshr_b32 s55, s55, s56")
        a("s_and_b32 s56, s55, 31")
        a("s_bfe_u32 s57, s55, 0x80005")
        a("s_bfe_u32 s55, s55, 0x3000d")
        a("s_mul_i32 s56, s56, s56"); a("s_lshl_b32 s57, s57, 2")
        a("s_cmp_eq_u32 s56, s57"); a(f"s_cselect_b32 s{S_FAST}, 1, 0")
        a("s_cmp_eq_u32 s55, 4"); a(f"s_cselect_b32 s{S_FAST}, s{S_FAST}, 0")
        if OPT['fast'] == 2: a(f"s_mov_b32 s{S_FAST}, 0")

def poll(a, tag, voff, soff, sleep=0):
    a("s_mov_b32 s50, 0")
    a.label(f"L_poll_{tag}")
    if sleep: a(f"s_sleep {sleep}")
    a(f"buffer_load_dwordx2 v[10:11], v{voff}, s[32:35], s{soff} offen sc1")
    a("s_add_u32 s50, s50, 1"); a("s_waitcnt vmcnt(0)")
    a(f"v_cmp_eq_u64 vcc, v[10:11], s[{S_NON}:{S_NON+1}]")
    a(f"s_cmp_ge_u32 s50, {OPT['spin_max']}"); a(f"s_cbranch_scc1 L_poll_{tag}_done")
    a("s_cmp_eq_u64 vcc, -1"); a(f"s_cbranch_scc0 L_poll_{tag}")
    a.label(f"L_poll_{tag}_done")

def flag_store(a, soff, mode):
    a(f"v_mov_b32 v10, s{S_NON}"); a(f"v_mov_b32 v11, s{S_NON+1}")
    a("s_mov_b64 exec, 1")
    if mode == 'dyn':
        a(f"s_cmp_eq_u32 s{S_FAST}, 0"); a("s_cbranch_scc1 L_flag_slow")
        a(f"buffer_store_dwordx2 v[10:11], v9, s[32:35], s{soff} offen")
        a("s_branch L_flag_join")
        a.label("L_flag_slow")
        a(f"buffer_store_dwordx2 v[10:11], v9, s[32:35], s{soff} offen sc1")
        a.label("L_flag_join")
    else:
        a(f"buffer_store_dwordx2 v[10:11], v9, s[32:35], s{soff} offen sc1")
    a("s_mov_b64 exec, -1")

def o_store(a):
    srd(a, 32, P_WS, SZ_WS_USED)
    a("v_lshlrev_b32 v7, 4, v0")
    a(f"s_lshl_b32 s40, s{S_G}, 5"); a(f"s_add_u32 s40, s40, s{S_H}"); a("s_lshl_b32 s40, s40, 2")
    a(f"s_add_u32 s40, s40, s{S_WAVE}"); a("s_lshl_b32 s40, s40, 13"); a("s_add_u32 s41, s40, 4096")
    global OSTORES
    OSTORES = [f"buffer_store_dwordx4 {vr(V_OF+4*f,4)}, v7, s[32:35], s{40 + f//4} offen offset:{(f%4)*1024} sc1" for f in range(8)]
    a("v_lshrrev_b32 v2, 4, v0"); a("v_bfe_u32 v3, v0, 2, 2"); a("v_lshl_add_u32 v2, v2, 2, v3")
    a("v_mul_u32_u24 v2, 288, v2"); a("v_and_b32 v3, 3, v0")
    a(f"v_lshl_add_u32 v{V2_AD[0]}, v3, 3, v2")
    for sl in range(1, 4): a(f"v_add_u32 v{V2_AD[sl]}, {sl*W_SLOT}, v{V2_AD[0]}")
    a(f"s_lshl_b32 s44, s{S_G}, 5"); a(f"s_lshl_b32 s45, s{S_X}, 2"); a("s_add_u32 s44, s44, s45")
    a(f"s_lshl_b32 s48, s{S_G}, 3"); a(f"s_add_u32 s48, s48, s{S_X}"); a("s_lshl_b32 s48, s48, 2")
    a(f"s_add_u32 s48, s48, s{S_WAVE}"); a("s_lshl_b32 s48, s48, 7"); a(f"s_add_u32 s48, s48, {WS_F}")
    a(f"s_lshl_b32 s49, s{S_J}, 3"); a("s_add_u32 s49, s49, s48")
    a("v_and_b32 v8, 3, v0"); a("v_lshlrev_b32 v8, 3, v8")

def bload_list(slot, breg):
    setup = [f"s_add_u32 s45, s{S_J}, {slot}", "s_and_b32 s45, s45, 3", "s_add_u32 s45, s45, s44",
             "s_lshl_b32 s45, s45, 2", f"s_add_u32 s45, s45, s{S_WAVE}",
             "s_lshl_b32 s46, s45, 13", "s_add_u32 s47, s46, 4096"]
    loads = [f"buffer_load_dwordx4 {vr(breg+4*f,4)}, v7, s[32:35], s{46 + f//4} offen offset:{(f%4)*1024} sc1" for f in range(8)]
    return setup, loads

def p2_run(a, hs, n0, n1, hooks_pre=None, hooks_mid=None, inject=None, spread=None):
    hooks_pre = hooks_pre or {}; hooks_mid = hooks_mid or {}; inject = inject or {}; spread = spread or {}
    for n in range(n0, n1):
        (s, p, hf) = hs[n]
        breg = V_OF if s == 0 else BUF[s - 1]
        nxt = p2_areads(*hs[n+1], buf=(n+1) & 1) if n + 1 < n1 else []
        taus = list(range(0, 5)) if hf == 0 else list(range(5, 9))
        nown = 2 * len(taus)
        nm = nown
        plan = [0] * nm
        for t in range(len(nxt)): plan[t % nm] += 1
        issued = 0; m = 0
        inj = list(inject.get(n, []))
        spr = list(spread.get(n, []))
        per = -(-len(spr) // nm) if spr else 0
        if n in hooks_pre: hooks_pre[n]()
        for k, tau in enumerate(taus):
            a(f"s_waitcnt lgkmcnt({nown - 2 * (k + 1) + issued})")
            for qt in range(2):
                d = vr(V2_ACC + (tau*2+qt)*4, 4)
                c = "0" if (s == 0 and p == 0) else d
                a(f"v_mfma_f32_16x16x32_bf16 {d}, {vr(V2_A[n & 1]+4*k,4)}, {vr(breg+(2*p+qt)*4,4)}, {c}")
                if m == 0 and n in hooks_mid: hooks_mid[n]()
                if nxt:
                    for r in nxt[issued:issued+plan[m]]: a(r)
                    issued = min(len(nxt), issued + plan[m])
                for _ in range(per):
                    if spr: a(spr.pop(0))
                m += 1
                if k >= len(taus) - 1 and inj: a(inj.pop(0))
        while inj: a(inj.pop(0))
        while spr: a(spr.pop(0))

def d_prep(a):
    a("v_bfe_u32 v13, v0, 1, 3"); a("v_mul_u32_u24 v13, 9216, v13")
    a("v_lshrrev_b32 v14, 4, v0"); a("v_lshlrev_b32 v14, 1, v14"); a("v_and_b32 v15, 1, v0")
    a("v_add_u32 v14, v14, v15"); a("v_lshl_add_u32 v13, v14, 4, v13")
    a(f"s_lshl_b32 s58, s{S_G}, 2"); a(f"s_add_u32 s58, s58, s{S_J}"); a("s_lshl_b32 s58, s58, 2")
    a(f"s_add_u32 s58, s58, s{S_WAVE}")
    a("s_mul_i32 s59, s58, 73728"); a(f"s_add_u32 s59, s59, {WS_D}")
    a(f"s_mul_i32 s40, s{S_X}, 1152"); a("s_add_u32 s40, s40, s59")

def d_pack_store(tau, G=160):
    r = []
    for qt in range(2):
        for h2 in range(2):
            src = V2_ACC + (tau*2+qt)*4 + 2*h2
            r.append(f"v_cvt_pk_bf16_f32 v{G+4*tau+2*qt+h2}, v{src}, v{src+1}")
    r.append(f"buffer_store_dwordx4 {vr(G+4*tau,4)}, v13, s[32:35], s40 offen offset:{128*tau} sc1")
    return r

def tail(a):
    hs = [(s, p, hf) for s in range(2) for p in range(4) for hf in range(2)]
    hs += [(2, p, 0) for p in range(4)] + [(3, p, 0) for p in range(4)]
    hs += [(2, p, 1) for p in range(4)] + [(3, p, 1) for p in range(4)]
    if not OPT.get('ostin', 1):
        o_store(a)
        for x in OSTORES: a(x)
    stamp(a, 6)
    for r in p2_areads(*hs[0], buf=0): a(r)
    def exch():
        a("s_waitcnt vmcnt(0)")
        flag_store(a, 49, 'dyn')
        stamp(a, 7)
        if OPT.get('poll1', 1):
            a(f"s_add_u32 s56, s{S_J}, 1"); a("s_and_b32 s56, s56, 3")
            a("s_mov_b32 s50, 0")
            a.label("L_poll_o1")
            if OPT.get('o_sleep', 0): a(f"s_sleep {OPT['o_sleep']}")
            a("buffer_load_dwordx2 v[10:11], v8, s[32:35], s48 offen sc1")
            a("s_add_u32 s50, s50, 1"); a("s_waitcnt vmcnt(0)")
            a(f"v_cmp_eq_u64 vcc, v[10:11], s[{S_NON}:{S_NON+1}]")
            a(f"s_cmp_ge_u32 s50, {OPT['spin_max']}"); a("s_cbranch_scc1 L_poll_o1_done")
            a("s_bitcmp1_b32 vcc_lo, s56"); a("s_cbranch_scc0 L_poll_o1")
            a.label("L_poll_o1_done")
            a("s_cmp_eq_u64 vcc, -1"); a("s_cselect_b32 s55, 1, 0")
        else:
            poll(a, "o", 8, 48, sleep=OPT.get('o_sleep', 0))
        stamp(a, 8)
        p2_bloads(a, 1, BUF[0])
        a("s_nop 3")
    p2_run(a, hs, 0, 8, hooks_pre={OPT.get('flagpos', 4): exch})
    a("s_barrier")
    tstamp(a, 1)
    if OPT.get('poll1', 1):
        a("s_cmp_eq_u32 s55, 1"); a("s_cbranch_scc1 L_poll_o_skip")
        poll(a, "o", 8, 48, sleep=OPT.get('o_sleep', 0))
        a.label("L_poll_o_skip")
    for r in p2_areads(*hs[8], buf=0): a(r)
    su2, l2 = bload_list(2, BUF[1]); su3, l3 = bload_list(3, BUF[2])
    for x in su2: a(x)
    d_prep(a)
    inj = {}
    for t in range(4):
        inj[8 + t] = list(l2[2*t:2*t+2])
        inj[12 + t] = list(l3[2*t:2*t+2])
    inj[11] = inj[11] + su3
    spr = {25: d_pack_store(0) + d_pack_store(1), 26: d_pack_store(2) + d_pack_store(3), 27: d_pack_store(4)}
    W = lambda n: (lambda: a(f"s_waitcnt vmcnt({n})"))
    p2_run(a, hs, 8, 32,
           hooks_pre={8: W(6), 10: W(8), 12: W(10), 14: W(12), 16: W(8), 20: W(0)},
           hooks_mid={15: lambda: a("s_barrier"), 19: lambda: a("s_barrier")},
           inject=inj, spread=spr)
    stamp(a, 9)
    reduce_inkernel(a)

def store_partials_f32(a):
    a("s_nop 7")
    a(f"s_lshl_b32 s45, s{S_X}, 3"); a(f"s_add_u32 s45, s45, s{S_G}"); a("s_lshl_b32 s45, s45, 2")
    a(f"s_add_u32 s45, s45, s{S_J}"); a("s_lshl_b32 s45, s45, 2"); a(f"s_add_u32 s45, s45, s{S_WAVE}")
    a(f"s_mul_i32 s45, s45, {18*1024}"); a(f"s_add_u32 s45, s45, {WS_P}")
    for u in range(18):
        if u and u % 4 == 0: a("s_add_u32 s45, s45, 4096")
        a(f"buffer_store_dwordx4 {vr(V2_ACC+4*u,4)}, v7, s[32:35], s45 offen offset:{(u%4)*1024}")

def store_partials_bf16(a):
    G = 160
    a(f"s_lshl_b32 s44, s{S_G}, 2"); a(f"s_add_u32 s44, s44, s{S_J}"); a("s_lshl_b32 s44, s44, 2")
    a(f"s_add_u32 s44, s44, s{S_WAVE}")
    a(f"s_lshl_b32 s45, s{S_X}, 7"); a("s_add_u32 s45, s45, s44"); a("s_mul_i32 s45, s45, 9216")
    a(f"s_add_u32 s45, s45, {WS_P}"); a("s_add_u32 s46, s45, 4096"); a("s_add_u32 s47, s45, 8192")
    sc = " sc1" if OPT.get('psc1', 1) else ""
    for tau in range(9):
        for qt in range(2):
            for h2 in range(2):
                src = V2_ACC + (tau*2+qt)*4 + 2*h2
                a(f"v_cvt_pk_bf16_f32 v{G+4*tau+2*qt+h2}, v{src}, v{src+1}")
        a(f"buffer_store_dwordx4 {vr(G+4*tau,4)}, v7, s[32:35], s{45 + tau//4} offen offset:{(tau%4)*1024}{sc}")

def kernel3b(a):
    name = "mha_p3_kernel"
    a(".p2align 8"); a(f".globl {name}"); a(f".type {name},@function"); a.label(name)
    a("s_cmp_ge_u32 s2, 288"); a(f"s_cbranch_scc1 L_end_{name}")
    a("s_load_dwordx2 s[26:27], s[0:1], 40"); a("s_load_dwordx2 s[30:31], s[0:1], 56")
    a("v_lshrrev_b32 v1, 6, v0"); a("v_and_b32 v0, 63, v0")
    a("s_lshl_b32 s5, s2, 2")
    a(f"v_readfirstlane_b32 s{S_WAVE}, v1")
    a("v_lshlrev_b32 v1, 4, v0")
    a(f"s_add_u32 s5, s5, s{S_WAVE}")
    a("s_mul_i32 s45, s5, 1024"); a(f"s_add_u32 s45, s45, {WS_P}")
    a("s_mul_hi_u32 s6, s5, 477218589")
    a("s_mul_i32 s7, s6, 9"); a("s_sub_u32 s7, s5, s7")
    a("s_waitcnt lgkmcnt(0)")
    srd(a, 32, P_WS, SZ_WS_USED); srd(a, 36, P_OUT, SZ_OUT)
    for x in range(8):
        a(f"buffer_load_dwordx4 {vr(8+4*x,4)}, v1, s[32:35], s45 offen")
        if x < 7: a(f"s_add_u32 s45, s45, {128*9216}")
    a("v_and_b32 v2, 15, v0"); a("v_mul_u32_u24 v2, 1152, v2"); a("v_lshrrev_b32 v3, 4, v0")
    a("v_lshl_add_u32 v2, v3, 3, v2")
    a("s_lshr_b32 s46, s6, 4"); a("s_lshl_b32 s46, s46, 2"); a("s_and_b32 s47, s6, 3"); a("s_add_u32 s46, s46, s47")
    a(f"s_mul_i32 s46, s46, {32*1152}")
    a("s_lshr_b32 s47, s6, 2"); a("s_and_b32 s47, s47, 3"); a("s_mul_i32 s47, s47, 288"); a("s_add_u32 s46, s46, s47")
    a("s_lshl_b32 s47, s7, 5"); a("s_add_u32 s46, s46, s47"); a(f"s_add_u32 s47, s46, {16*1152}")
    for x in range(8):
        a(f"s_waitcnt vmcnt({7-x})")
        for d in range(4):
            src = 8 + 4*x + d
            if x == 0:
                a(f"v_lshlrev_b32 v{40+2*d}, 16, v{src}"); a(f"v_and_b32 v{40+2*d+1}, 0xffff0000, v{src}")
            else:
                a(f"v_lshlrev_b32 v48, 16, v{src}"); a(f"v_and_b32 v49, 0xffff0000, v{src}")
                a(f"v_pk_add_f32 v[{40+2*d}:{40+2*d+1}], v[{40+2*d}:{40+2*d+1}], v[48:49]")
    for d in range(4): a(f"v_cvt_pk_bf16_f32 v{50+d}, v{40+2*d}, v{40+2*d+1}")
    a("buffer_store_dwordx2 v[50:51], v2, s[36:39], s46 offen")
    a("buffer_store_dwordx2 v[52:53], v2, s[36:39], s47 offen")
    a.label(f"L_end_{name}")
    a("s_endpgm")

def reduce_inkernel(a):
    RA = 196; RB = 88
    a("s_nop 7")
    for tau in range(5, 9):
        for x in d_pack_store(tau): a(x)
    a("s_lshl_b32 s48, s58, 8"); a(f"s_add_u32 s48, s48, {WS_F2}")
    a(f"s_lshl_b32 s49, s{S_X}, 3"); a("s_add_u32 s49, s49, s48")
    a("s_waitcnt vmcnt(4)")
    flag_store(a, 49, 'sc1')
    a("s_add_u32 s49, s49, 128")
    a("v_and_b32 v8, 7, v0"); a("v_lshlrev_b32 v8, 3, v8")
    a("v_and_b32 v14, 1, v0"); a("v_mul_u32_u24 v14, 1152, v14")
    a("v_bfe_u32 v15, v0, 1, 2"); a("v_lshl_add_u32 v14, v15, 3, v14")
    a("v_lshrrev_b32 v12, 3, v0"); a("v_lshl_add_u32 v14, v12, 5, v14")
    a("v_add_u32 v15, 160, v14")
    srd(a, 36, P_OUT, SZ_OUT)
    a(f"s_lshl_b32 s56, s{S_G}, 2"); a(f"s_add_u32 s56, s56, s{S_WAVE}"); a("s_lshl_b32 s56, s56, 5")
    a(f"s_lshl_b32 s57, s{S_X}, 1"); a("s_add_u32 s56, s56, s57"); a("s_mul_i32 s56, s56, 1152")
    a(f"s_mul_i32 s57, s{S_J}, 288"); a("s_add_u32 s56, s56, s57")
    a(f"s_add_u32 s57, s56, {16*1152}")
    a(f"s_mul_i32 s47, s{S_X}, 9216"); a("s_add_u32 s47, s47, s59")
    a("s_waitcnt vmcnt(1)")
    flag_store(a, 49, 'sc1')
    stamp(a, 10)
    poll(a, "da", 8, 48, sleep=OPT.get('d_sleep', 0))
    a("s_mov_b32 s46, s47")
    a("s_mov_b32 exec_hi, 0xff")
    for sx in range(8):
        a(f"buffer_load_dwordx4 {vr(RA+4*sx,4)}, v7, s[32:35], s46 offen sc1")
        if sx < 7: a("s_add_u32 s46, s46, 1152")
    a("s_mov_b64 exec, -1")
    a("s_add_u32 s48, s48, 128")
    poll(a, "db", 8, 48, sleep=OPT.get('d_sleep2', 1))
    stamp(a, 11)
    a("s_mov_b64 exec, 0xffffffff")
    for sx in range(8):
        a(f"buffer_load_dwordx4 {vr(RB+4*sx,4)}, v7, s[32:35], s47 offen offset:640 sc1")
        if sx < 7: a("s_add_u32 s47, s47, 1152")
    a("s_mov_b64 exec, -1")
    AA = 16; AB = 24; T = 32
    def summ(R, A, waits):
        for sx in range(8):
            if waits: a(f"s_waitcnt vmcnt({7 - sx})")
            for d in range(4):
                src = R + 4*sx + d
                if sx == 0:
                    a(f"v_lshlrev_b32 v{A+2*d}, 16, v{src}"); a(f"v_and_b32 v{A+2*d+1}, 0xffff0000, v{src}")
                else:
                    t = T + 2 * (d & 1)
                    a(f"v_lshlrev_b32 v{t}, 16, v{src}"); a(f"v_and_b32 v{t+1}, 0xffff0000, v{src}")
                    a(f"v_pk_add_f32 v[{A+2*d}:{A+2*d+1}], v[{A+2*d}:{A+2*d+1}], v[{t}:{t+1}]")
    fl = {0: "", 1: " sc1", 2: " nt", 3: " sc0 sc1"}[OPT.get('outfl', 0)]
    summ(RA, AA, False)
    for d in range(4): a(f"v_cvt_pk_bf16_f32 v{36+d}, v{AA+2*d}, v{AA+2*d+1}")
    summ(RB, AB, True)
    a("s_mov_b32 exec_hi, 0xff")
    a(f"buffer_store_dwordx2 v[36:37], v14, s[36:39], s56 offen{fl}")
    a(f"buffer_store_dwordx2 v[38:39], v14, s[36:39], s57 offen{fl}")
    a("s_mov_b64 exec, -1")
    for d in range(4): a(f"v_cvt_pk_bf16_f32 v{40+d}, v{AB+2*d}, v{AB+2*d+1}")
    a("s_mov_b64 exec, 0xffffffff")
    a(f"buffer_store_dwordx2 v[40:41], v15, s[36:39], s56 offen{fl}")
    a(f"buffer_store_dwordx2 v[42:43], v15, s[36:39], s57 offen{fl}")
    a("s_mov_b64 exec, -1")

def KNAME():
    return "standalone__mha_block_cached__near_ridge_kernel" if OPT['dk'] else "mha_a_kernel"

def kernelA(a):
    global KIDX
    KIDX = 0
    name = KNAME()
    prologue(a, name)
    stamp_init(a); stamp(a, 0); cstamp(a, 14)
    if OPT['stamps'] and OPT.get('entrystamp', 0): a("s_mov_b64 s[86:87], s[96:97]")
    a(f"s_cmp_lt_u32 s{S_WAVE}, 4"); a("s_cbranch_scc1 L_a_compute")
    a(f"s_cmp_eq_u32 s{S_WAVE}, 5"); a("s_cbranch_scc1 L_a_ldx")
    a(f"s_cmp_eq_u32 s{S_WAVE}, 6"); a("s_cbranch_scc1 L_a_ldk")
    a(f"s_cmp_eq_u32 s{S_WAVE}, 7"); a("s_cbranch_scc1 L_a_ldv")
    loader_ring(a, 'wq'); stamp_flush(a); a("s_endpgm")
    a.label("L_a_ldx"); loader_ring(a, 'x'); stamp_flush(a); a("s_endpgm")
    a.label("L_a_ldv"); loader_v(a); stamp_flush(a); a("s_endpgm")
    a.label("L_a_ldk"); loader_k(a); stamp_flush(a); a("s_endpgm")
    a.label("L_a_compute")
    CUR['compute'] = True
    gemm1_addrs(a); attn_addrs(a)
    kwait(a)
    srd(a, 36, P_DBG, 256)
    a("v_mov_b32 v1, 0")
    a(f"s_lshl_b32 s40, s{S_G}, 3"); a(f"s_add_u32 s40, s40, s{S_X}"); a("s_lshr_b32 s40, s40, 1")
    a("s_lshl_b32 s40, s40, 2"); a("s_add_u32 s40, s40, 128")
    srd(a, 44, P_WS, SZ_WS_USED)
    a(f"s_lshl_b32 s42, s{S_G}, 3"); a(f"s_add_u32 s42, s42, s{S_X}"); a("s_lshl_b32 s42, s42, 2")
    a(f"s_add_u32 s42, s42, s{S_WAVE}"); a("s_lshl_b32 s42, s42, 7"); a(f"s_add_u32 s42, s42, {WS_F}")
    gemm1(a)
    if not OPT.get('nonce_in', 1): get_nonce(a)
    stamp(a, 2)
    attention(a); stamp(a, 5)
    tail(a)
    if OPT['stamps']: a("s_waitcnt vmcnt(0)")
    stamp(a, 12); cstamp(a, 15); stamp_flush(a)
    if OPT.get('waitx', 0):
        a("s_waitcnt vmcnt(0)")
        a(f"s_add_u32 s62, s{S_NON}, {OPT['waitx']}")
        a("s_mov_b32 s63, 0")
        a.label("L_wx_spin")
        a("s_memrealtime s[64:65]"); a("s_waitcnt lgkmcnt(0)")
        a("s_add_u32 s63, s63, 1"); a("s_cmp_gt_u32 s63, 100000"); a("s_cbranch_scc1 L_wx_done")
        a("s_sub_u32 s66, s62, s64"); a("s_cmp_gt_i32 s66, 0"); a("s_cbranch_scc1 L_wx_spin")
        a.label("L_wx_done")
    if OPT.get('probe', -1) >= 0:
        a("s_waitcnt vmcnt(0)")
        a(f"s_sub_u32 s62, s60, s{S_NON}"); a(f"s_mul_i32 s62, s62, {OPT.get('probek', 8)}")
        a("s_memrealtime s[64:65]"); a("s_waitcnt lgkmcnt(0)")
        a("s_add_u32 s62, s62, s64")
        a("s_mov_b32 s63, 0")
        a.label("L_probe_spin")
        a("s_memrealtime s[64:65]"); a("s_waitcnt lgkmcnt(0)")
        a("s_add_u32 s63, s63, 1"); a("s_cmp_gt_u32 s63, 100000"); a("s_cbranch_scc1 L_probe_done")
        a("s_sub_u32 s66, s62, s64"); a("s_cmp_gt_i32 s66, 0"); a("s_cbranch_scc1 L_probe_spin")
        a.label("L_probe_done")
    a.label(f"L_end_{name}")
    a("s_endpgm")

def kernel3(a):
    global KIDX
    KIDX = 1
    name = "mha_p3_kernel"
    a(".p2align 8"); a(f".globl {name}"); a(f".type {name},@function"); a.label(name)
    a("s_cmp_ge_u32 s2, 256"); a(f"s_cbranch_scc1 L_end_{name}")
    a("s_load_dwordx16 s[16:31], s[0:1], 0")
    a("v_lshrrev_b32 v1, 6, v0"); a("v_and_b32 v0, 63, v0")
    a("s_lshr_b32 s5, s2, 1")
    a("s_and_b32 s6, s2, 1")
    a(f"v_readfirstlane_b32 s{S_WAVE}, v1")
    a("s_mul_i32 s6, s6, 9")
    a("s_waitcnt lgkmcnt(0)")
    stamp_init(a); stamp(a, 0); cstamp(a, 14)
    a(f"s_add_u32 s6, s6, s{S_WAVE}")
    srd(a, 32, P_WS, SZ_WS_USED); srd(a, 36, P_OUT, SZ_OUT)
    a("v_lshlrev_b32 v1, 4, v0")
    a("s_mul_i32 s45, s5, 18"); a("s_add_u32 s45, s45, s6"); a("s_lshl_b32 s45, s45, 10")
    a(f"s_add_u32 s45, s45, {WS_P}")
    for x in range(8):
        a(f"buffer_load_dwordx4 {vr(8+4*x,4)}, v1, s[32:35], s45 offen")
        if x < 7: a(f"s_add_u32 s45, s45, {128*18*1024}")
    a("v_and_b32 v2, 15, v0"); a("v_mul_u32_u24 v2, 1152, v2"); a("v_lshrrev_b32 v3, 4, v0")
    a("v_lshl_add_u32 v2, v3, 3, v2")
    a("s_lshr_b32 s46, s5, 4"); a("s_lshl_b32 s46, s46, 2"); a("s_and_b32 s47, s5, 3"); a("s_add_u32 s46, s46, s47")
    a(f"s_mul_i32 s46, s46, {32*1152}")
    a("s_lshr_b32 s47, s5, 2"); a("s_and_b32 s47, s47, 3"); a("s_mul_i32 s47, s47, 288"); a("s_add_u32 s46, s46, s47")
    a("s_and_b32 s47, s6, 1"); a(f"s_mul_i32 s47, s47, {16*1152}"); a("s_add_u32 s46, s46, s47")
    a("s_lshr_b32 s47, s6, 1"); a("s_lshl_b32 s47, s47, 5"); a("s_add_u32 s46, s46, s47")
    a("s_waitcnt vmcnt(0)")
    for v in range(4):
        for x in range(0, 8, 2): a(f"v_add_f32 v{8+4*x+v}, v{8+4*x+v}, v{12+4*x+v}")
    for v in range(4):
        a(f"v_add_f32 v{8+v}, v{8+v}, v{16+v}"); a(f"v_add_f32 v{24+v}, v{24+v}, v{32+v}")
    for v in range(4): a(f"v_add_f32 v{8+v}, v{8+v}, v{24+v}")
    a("v_cvt_pk_bf16_f32 v8, v8, v9"); a("v_cvt_pk_bf16_f32 v9, v10, v11")
    a("buffer_store_dwordx2 v[8:9], v2, s[36:39], s46 offen")
    if OPT['stamps']:
        a("s_waitcnt vmcnt(0)")
        stamp(a, 10); cstamp(a, 15)
        a(f"s_cmp_ge_u32 s{S_WAVE}, 8"); a("s_cbranch_scc1 L_end_mha_p3_kernel")
        stamp_flush(a, 44)
    a.label(f"L_end_{name}")
    a("s_endpgm")

def descriptor(a, name, vgpr, sgpr=102):
    a(f".amdhsa_kernel {name}")
    a(f".amdhsa_next_free_vgpr {vgpr}"); a(f".amdhsa_next_free_sgpr {sgpr}"); a(f".amdhsa_accum_offset {vgpr}")
    a(".amdhsa_group_segment_fixed_size 0"); a(".amdhsa_kernarg_size 64")
    a(".amdhsa_user_sgpr_count 2"); a(".amdhsa_user_sgpr_kernarg_segment_ptr 1")
    a(".amdhsa_system_sgpr_workgroup_id_x 1"); a(".end_amdhsa_kernel")

def main():
    out = sys.argv[1]
    for arg in sys.argv[2:]:
        if arg == "--stamps": OPT['stamps'] = True
        elif "=" in arg:
            k, v = arg.lstrip("-").split("="); OPT[k] = int(v)
    a = Asm()
    hdr = "; MHA block (Q-proj + attention + out-proj), generated by gen3.py\n"
    if OPT['dk']:
        hdr += "; @launch grid=(256,1,1) block=(512,1,1) lds=163840\n"
    else:
        hdr += "; @launch kernel=mha_a_kernel grid=(256,1,1) block=(512,1,1) lds=163840\n"
        if OPT.get('k3bf', 0): hdr += "; @launch kernel=mha_p3_kernel grid=(288,1,1) block=(256,1,1) lds=0\n"
        else: hdr += "; @launch kernel=mha_p3_kernel grid=(256,1,1) block=(576,1,1) lds=0\n"
    a('.amdgcn_target "amdgcn-amd-amdhsa--gfx950"'); a(".text")
    kernelA(a)
    if not OPT['dk']:
        if OPT.get('k3bf', 0): kernel3b(a)
        else: kernel3(a)
    a('.section .rodata,"a"'); a(".p2align 6"); descriptor(a, KNAME(), 256)
    if not OPT['dk']:
        a(".p2align 6"); descriptor(a, "mha_p3_kernel", 56)
    open(out, "w").write(hdr + a.text())

if __name__ == "__main__": main()
```

```python
import sys, struct

class Asm:
    def __init__(self): self.l = []
    def __call__(self, s=""):
        for x in s.split("\n"):
            x = x.strip()
            self.l.append(x if (x.endswith(":") or x.startswith(".")) else "  " + x)
    def label(self, s): self.l.append(s + ":")
    def text(self): return "\n".join(self.l) + "\n"

def vr(b, n=1): return f"v{b}" if n == 1 else f"v[{b}:{b+n-1}]"
def f32hex(x): return "0x%08x" % struct.unpack("<I", struct.pack("<f", x))[0]

P_X, P_K, P_V, P_WQ, P_WO, P_OUT, P_DBG, P_WS = 16, 18, 20, 22, 24, 26, 28, 30
SZ_X, SZ_KV, SZ_W, SZ_OUT = 1179648, 8388608, 4718592, 1179648
WS_O = 0
WS_P = 8 << 20
WS_F = 28 << 20
WS_F2 = (28 << 20) + (1 << 19)
WS_D = 8 << 20
WS_STAMP = 32 << 20
SZ_WS_USED = 64 << 20
S_WAVE, S_X, S_R, S_J, S_G, S_H = 3, 4, 5, 6, 9, 10

OPT = dict(stamps=False, fast=1, spin_max=2000000, kvmode=21, flagpos=3, xonce=1, vearly=1, woearly=1, d_sleep=1, d_sleep2=0, o_sleep=1, k_nt=1, v_nt=1, wot_pos=8, dk=1)

def srd(a, base, ptr, size, add=0):
    if add:
        a(f"s_add_u32 s{base}, s{ptr}, {add}"); a(f"s_addc_u32 s{base+1}, s{ptr+1}, 0")
        a(f"s_and_b32 s{base+1}, s{base+1}, 0xffff")
    else:
        a(f"s_mov_b32 s{base}, s{ptr}"); a(f"s_and_b32 s{base+1}, s{ptr+1}, 0xffff")
    a(f"s_mov_b32 s{base+2}, {size}"); a(f"s_mov_b32 s{base+3}, 0x00020000")

def prologue(a, name, nwg=256):
    a(".p2align 8"); a(f".globl {name}"); a(f".type {name},@function"); a.label(name)
    a(f"s_cmp_ge_u32 s2, {nwg}"); a(f"s_cbranch_scc1 L_end_{name}")
    if OPT['stamps'] and OPT.get('entrystamp', 0): a("s_memrealtime s[96:97]")
    a("s_load_dwordx16 s[16:31], s[0:1], 0")
    a("v_lshrrev_b32 v1, 6, v0"); a("v_and_b32 v0, 63, v0")
    a(f"s_and_b32 s{S_X}, s2, 7"); a(f"s_lshr_b32 s{S_R}, s2, 3")
    a(f"v_readfirstlane_b32 s{S_WAVE}, v1")
    a(f"s_and_b32 s{S_J}, s{S_R}, 3"); a(f"s_lshr_b32 s{S_G}, s{S_R}, 2")
    a(f"s_lshl_b32 s{S_H}, s{S_X}, 2"); a(f"s_add_u32 s{S_H}, s{S_H}, s{S_J}")
    if OPT['stamps'] or not OPT.get('latewait', 1): a("s_waitcnt lgkmcnt(0)")

def kwait(a):
    if not OPT['stamps'] and OPT.get('latewait', 1): a("s_waitcnt lgkmcnt(0)")

KIDX = 0
CUR = {}
def tstamp(a, idx):
    if OPT.get('tailstamps', 0): stamp(a, idx, force=True)
def stamp(a, idx, force=False):
    if OPT.get('probe', -1) == idx and CUR.get('compute') and (force or not (OPT.get('tailstamps', 0) and idx in (1,2,3,4,13))):
        a("s_memrealtime s[60:61]"); a("s_waitcnt lgkmcnt(0)")
        return
    if not OPT['stamps']: return
    if OPT.get('tailstamps', 0) and not force and idx in (1,2,3,4,13) and CUR.get('compute'): return
    a(f"s_memrealtime s[{60+2*idx}:{61+2*idx}]"); a("s_waitcnt lgkmcnt(0)")
def cstamp(a, idx):
    if not OPT['stamps']: return
    a(f"s_memtime s[{60+2*idx}:{61+2*idx}]"); a("s_waitcnt lgkmcnt(0)")
def stamp_init(a):
    if not OPT['stamps']: return
    for i in range(16): a(f"s_mov_b64 s[{60+2*i}:{61+2*i}], 0")
def stamp_flush(a, vb=250):
    if not OPT['stamps']: return
    srd(a, 92, P_WS, 256*16*16*8, add=WS_STAMP + KIDX*256*8*16*8)
    a("s_lshl_b32 s96, s2, 3"); a(f"s_add_u32 s96, s96, s{S_WAVE}"); a("s_lshl_b32 s96, s96, 7")
    a(f"v_mov_b32 v{vb+2}, 0")
    for i in range(16):
        a(f"v_mov_b32 v{vb}, s{60+2*i}"); a(f"v_mov_b32 v{vb+1}, s{61+2*i}")
        a(f"buffer_store_dwordx2 v[{vb}:{vb+1}], v{vb+2}, s[92:95], s96 offen offset:{i*8}")
        a("s_nop 1")
    a("s_waitcnt vmcnt(0)")

L_K = 98304; L_V = 131072; NCH = 9
W_SLOT = 36864

def dma(a, voff, srdb, soff, off=0, nt=False):
    a(f"buffer_load_dwordx4 v{voff}, s[{srdb}:{srdb+3}], s{soff} offen" + (f" offset:{off}" if off else "") + (" nt" if nt else "") + " lds")

V_WOV = 16
def wo_prep(a):
    srd(a, 52, P_WO, SZ_W)
    for t in range(9):
        a(f"v_add_u32 v1, {64*t}, v0")
        a("v_mul_u32_u24 v2, 3641, v1")
        a("v_lshrrev_b32 v2, 16, v2")
        a("v_mul_u32_u24 v3, 18, v2")
        a("v_sub_u32 v3, v1, v3")
        a("v_lshlrev_b32 v3, 4, v3")
        a("v_mul_u32_u24 v2, 1152, v2")
        a(f"v_add_u32 v{V_WOV+t}, v2, v3")
    a(f"s_mul_i32 s56, s{S_J}, 288")
def wo_issue(a, slot, q0, nq):
    a(f"s_add_u32 s57, s{S_J}, {slot}"); a("s_and_b32 s57, s57, 3")
    a(f"s_lshl_b32 s58, s{S_X}, 2"); a("s_add_u32 s57, s57, s58")
    a(f"s_mul_i32 s57, s57, {128*1152}"); a("s_add_u32 s57, s57, s56")
    if q0: a(f"s_add_u32 s57, s57, {q0*32*1152}")
    a(f"s_mov_b32 m0, {slot*W_SLOT + q0*32*288}"); a("s_nop 0")
    for blk in range(nq):
        for t in range(9):
            dma(a, V_WOV + t, 52, 57)
            if not (blk == nq - 1 and t == 8):
                a("s_add_u32 m0, m0, 1024")
                if t == 8: a(f"s_add_u32 s57, s57, {32*1152}")
                else: a("s_nop 0")

def loader_tail(a, role):
    a("s_barrier")
    stamp(a, 8)
    if role < 2:
        wo_issue(a, 0, 2 * role, 2); wo_issue(a, 1, 2 * role, 2)
    stamp(a, 9)
    if OPT.get('vearly', 0):
        if role < 2: a("s_waitcnt vmcnt(18)")
        a("s_barrier")
    else:
        if role == 3: a("s_waitcnt vmcnt(0)")
        a("s_barrier")
        if role < 2: a("s_waitcnt vmcnt(18)")
        a("s_barrier")
    if OPT.get('woearly', 0):
        wo_issue(a, 2, role, 1)
        wo_issue(a, 3, role, 1)
        stamp(a, 10)
        if role < 2: a("s_waitcnt vmcnt(18)")
        a("s_barrier")
    else:
        if role < 2: a("s_waitcnt vmcnt(0)")
        a("s_barrier")
        wo_issue(a, 2, role, 1)
        wo_issue(a, 3, role, 1)
        stamp(a, 10)
    a("s_waitcnt vmcnt(9)")
    a("s_barrier")
    a("s_waitcnt vmcnt(0)")
    stamp(a, 11)
    a("s_barrier")

def loader_ring(a, which):
    SRD = 32; SO = 40
    if which == 'wq':
        a("v_lshrrev_b32 v1, 4, v0"); a("v_and_b32 v2, 15, v0")
        a("v_lshlrev_b32 v3, 2, v1"); a("v_xor_b32 v3, v3, v2"); a("v_lshlrev_b32 v3, 4, v3")
        a("v_lshlrev_b32 v4, 13, v1"); a("v_add_u32 v4, v4, v3")
        a(f"s_lshl_b32 s{SO}, s{S_H}, 8")
        def issue(kc):
            a(f"s_mov_b32 m0, {(kc%3)*32768}")
            for t in range(16):
                if t == 0: a("s_nop 0")
                dma(a, 4, SRD, SO)
                a(f"s_add_u32 s{SO}, s{SO}, 32768")
                if t < 15:
                    a("s_add_u32 m0, m0, 1024"); a("s_nop 0")
    else:
        a("v_lshrrev_b32 v1, 3, v0"); a("v_mul_u32_u24 v1, 1152, v1")
        a("v_and_b32 v2, 7, v0"); a("v_lshrrev_b32 v3, 4, v0"); a("v_xor_b32 v2, v2, v3")
        a("v_lshlrev_b32 v4, 4, v2"); a("v_add_u32 v4, v4, v1")
        a("v_xor_b32 v2, 4, v2"); a("v_lshlrev_b32 v5, 4, v2"); a("v_add_u32 v5, v5, v1")
        a(f"s_mul_i32 s{SO+1}, s{S_G}, 147456")
        def issue(kc):
            a(f"s_mov_b32 m0, {(kc%3)*32768 + 16384}")
            a(f"s_add_u32 s{SO}, s{SO+1}, {kc*128}")
            for T in range(16):
                dma(a, 4 + (T & 1), SRD, SO)
                if T < 15:
                    a("s_add_u32 m0, m0, 1024"); a(f"s_add_u32 s{SO}, s{SO}, 9216")
    kv_pos(a, 43, 'k')
    if which == 'wq':
        a("v_lshrrev_b32 v8, 1, v0"); a("v_and_b32 v9, 1, v0")
        a("v_lshlrev_b32 v8, 13, v8"); a("v_lshl_add_u32 v8, v9, 7, v8")
        a(f"s_lshl_b32 s46, s{S_G}, {5+13}"); a(f"s_lshl_b32 s47, s{S_H}, 8"); a("s_add_u32 s46, s46, s47")
        def touch(part):
            if part == 0:
                a(f"buffer_load_dword v10, v8, s[{SRD}:{SRD+3}], s46 offen")
            else:
                a(f"s_add_u32 s46, s46, {256*8192}")
                a(f"buffer_load_dword v10, v8, s[{SRD}:{SRD+3}], s46 offen")
                a(f"s_lshl_b32 s46, s{S_G}, {3+13}"); a("s_add_u32 s46, s46, s47"); a(f"s_add_u32 s46, s46, {512*8192}")
                a("s_mov_b64 exec, 0xffff")
                a(f"buffer_load_dword v10, v8, s[{SRD}:{SRD+3}], s46 offen")
                a("s_mov_b64 exec, -1")
        NT1 = 2
    else:
        if OPT.get('xonce', 0):
            a("v_mul_u32_u24 v8, 7282, v0"); a("v_lshrrev_b32 v8, 16, v8")
            a("v_mul_u32_u24 v9, 9, v8"); a("v_sub_u32 v9, v0, v9")
            a("v_mul_u32_u24 v8, 1152, v8"); a("v_lshl_add_u32 v8, v9, 7, v8")
            a(f"s_mul_i32 s46, s{S_G}, 147456"); a(f"s_mul_i32 s47, s{S_H}, {4*1152}"); a("s_add_u32 s46, s46, s47")
            def touch(part):
                if part == 0:
                    a("s_mov_b32 exec_lo, -1"); a("s_mov_b32 exec_hi, 15")
                    a(f"buffer_load_dword v10, v8, s[{SRD}:{SRD+3}], s46 offen")
                    a("s_mov_b64 exec, -1")
            NT1 = 0
        else:
            a("v_and_b32 v9, 31, v0"); a("v_mul_u32_u24 v9, 1152, v9")
            a("v_lshrrev_b32 v8, 5, v0"); a("v_lshl_add_u32 v8, v8, 7, v9")
            a(f"s_mul_i32 s46, s{S_G}, 147456"); a(f"s_mul_i32 s47, s{S_J}, {32*1152}"); a("s_add_u32 s46, s46, s47")
            def touch(part):
                if part == 0:
                    a(f"buffer_load_dword v10, v8, s[{SRD}:{SRD+3}], s46 offen")
                else:
                    for t in range(1, 4):
                        a(f"buffer_load_dword v10, v8, s[{SRD}:{SRD+3}], s46 offen offset:{256*t}")
                    a("s_mov_b64 exec, 0xffffffff")
                    a(f"buffer_load_dword v10, v9, s[{SRD}:{SRD+3}], s46 offen offset:1024")
                    a("s_mov_b64 exec, -1")
            NT1 = 4
    kwait(a)
    srd(a, SRD, P_WQ if which == 'wq' else P_X, SZ_W if which == 'wq' else SZ_X)
    touch(0)
    issue(0); stamp(a, 1)
    touch(1)
    a("s_barrier")
    bx(a, -1, "r" + which)
    issue(1)
    stamp(a, 2)
    a(f"s_waitcnt vmcnt({16 + NT1})")
    stamp(a, 3)
    a("s_barrier")
    bx(a, 0, "r" + which)
    issue(2)
    for i in range(1, NCH):
        last_issued = min(i + 1, NCH - 1)
        a(f"s_waitcnt vmcnt({(last_issued - i) * 16})")
        a("s_barrier")
        if which == 'wq' and i in (1,2,3,4): stamp(a, {1:4,2:5,3:6,4:12}[i])
        if which == 'x' and i in (5,6,7,8): stamp(a, {5:4,6:5,7:6,8:12}[i])
        if i < 8: bx(a, i, "r" + which)
        if i + 2 < NCH: issue(i + 2)
        if i == 7: wo_prep(a)
    stamp(a, 7)
    loader_tail(a, 0 if which == 'wq' else 1)

def kv_pos(a, sdst, which):
    m = OPT['kvmode']
    if m == 10:
        tab = [-1, 2, 4, 7]
    elif m == 11: tab = [7, 7, 7, 7]
    elif m == 12: tab = [-1, -1, -1, -1]
    elif m == 13: tab = [1, 1, 6, 6]
    elif m == 14: tab = [-1, 1, 4, 7]
    elif m == 15: tab = [0, 3, 5, 7]
    elif m == 16: tab = [2, 7, 2, 7]
    elif m == 17: tab = [3, 5, 7, 7]
    elif m == 20: tab = [-1, 1, 3, 5]
    elif m == 21: tab = [-1, 2, 4, 6]
    elif m == 22: tab = [-1, -1, 3, 3]
    elif m == 23: tab = [-1, 0, 2, 4]
    elif m == 24: tab = [0, 2, 4, 6]
    elif m == 25: tab = [-1, -1, -1, -1]
    packed = sum(((p + 1) & 15) << (4 * k) for k, p in enumerate(tab))
    a(f"s_and_b32 s{sdst}, s{S_G}, 3"); a(f"s_lshl_b32 s{sdst}, s{sdst}, 2")
    a(f"s_lshr_b32 s{sdst}, {packed}, s{sdst}"); a(f"s_and_b32 s{sdst}, s{sdst}, 15")

def bx(a, p, tag):
    if p >= 6: return
    a(f"s_cmp_lg_u32 s43, {p+1}"); a(f"s_cbranch_scc1 L_bx_{tag}_{p+1}")
    a("s_barrier")
    a.label(f"L_bx_{tag}_{p+1}")

def kv_loop(a, tag, issue_fn, extra_fn=None, extra_pos=None):
    a("s_mov_b32 s59, 0")
    a.label(f"L_{tag}_loop")
    a("s_cmp_lg_u32 s59, s43"); a(f"s_cbranch_scc1 L_{tag}_skip")
    stamp(a, 3)
    issue_fn()
    stamp(a, 4)
    a(f"s_cmp_ge_u32 s59, 7"); a(f"s_cbranch_scc1 L_{tag}_skip")
    a("s_barrier")
    a.label(f"L_{tag}_skip")
    if extra_fn is not None:
        a(f"s_cmp_lg_u32 s59, {extra_pos}"); a(f"s_cbranch_scc1 L_{tag}_skip2")
        extra_fn()
        a.label(f"L_{tag}_skip2")
    a("s_barrier")
    a("s_add_u32 s59, s59, 1")
    a("s_cmp_le_u32 s59, 8"); a(f"s_cbranch_scc1 L_{tag}_loop")

def loader_k(a):
    SRD = 32; SO = 40
    kwait(a)
    srd(a, SRD, P_K, SZ_KV)
    a("v_lshrrev_b32 v1, 4, v0"); a("v_and_b32 v2, 15, v0"); a("v_xor_b32 v2, v2, v1")
    a("v_lshlrev_b32 v2, 4, v2"); a("v_lshl_add_u32 v4, v1, 8, v2")
    a("v_xor_b32 v5, 64, v4"); a("v_xor_b32 v6, 128, v4"); a("v_xor_b32 v7, 192, v4")
    wo_prep(a)
    a("v_and_b32 v8, 15, v0"); a("v_mul_u32_u24 v8, 1152, v8")
    a("v_lshrrev_b32 v9, 4, v0"); a("v_lshl_add_u32 v9, v9, 7, v8")
    kv_pos(a, 43, 'k')
    if OPT.get('wswarm', 0):
        srd(a, 44, P_WS, SZ_WS_USED); srd(a, 48, P_OUT, SZ_OUT)
        a(f"s_lshl_b32 s40, s{S_G}, 5"); a(f"s_add_u32 s40, s40, s{S_H}"); a("s_lshl_b32 s40, s40, 15")
        a(f"s_lshl_b32 s41, s{S_G}, 2"); a(f"s_add_u32 s41, s41, s{S_J}"); a("s_lshl_b32 s41, s41, 2")
        a("s_mul_i32 s42, s41, 73728"); a(f"s_add_u32 s42, s42, {WS_D}")
        a(f"s_mul_i32 s45, s{S_X}, 1152") if False else None
        a(f"s_mul_i32 s58, s{S_X}, 1152"); a("s_add_u32 s42, s42, s58")
        a("s_lshl_b32 s41, s41, 8"); a(f"s_add_u32 s41, s41, {WS_F2}")
        a("v_mov_b32 v11, 0")
        a("s_mov_b64 exec, 1")
        a("buffer_load_dword v10, v11, s[44:47], s40 offen")
        a("buffer_load_dword v10, v11, s[44:47], s42 offen")
        a("buffer_load_dword v10, v11, s[44:47], s41 offen sc1")
        a(f"s_lshl_b32 s40, s{S_G}, 7"); a(f"s_lshl_b32 s41, s{S_X}, 1"); a("s_add_u32 s40, s40, s41"); a("s_mul_i32 s40, s40, 1152")
        a(f"s_mul_i32 s41, s{S_J}, 288"); a("s_add_u32 s40, s40, s41")
        a("buffer_load_dword v10, v11, s[48:51], s40 offen")
        a("s_mov_b64 exec, -1")
    if OPT.get('tlbwarm', 0):
        a(f"s_lshl_b32 s{SO}, s{S_G}, 7"); a(f"s_add_u32 s{SO}, s{SO}, s{S_H}"); a(f"s_lshl_b32 s{SO}, s{SO}, 13")
        a("v_lshlrev_b32 v11, 18, v0")
        a("s_mov_b64 exec, 15")
        a(f"buffer_load_dword v10, v11, s[{SRD}:{SRD+3}], s{SO} offen nt")
        a("s_mov_b64 exec, -1")
    a("s_barrier")
    stamp(a, 1)
    def issue():
        a(f"s_lshl_b32 s{SO}, s{S_G}, 7"); a(f"s_add_u32 s{SO}, s{SO}, s{S_H}"); a(f"s_lshl_b32 s{SO}, s{SO}, 13")
        for w in range(4):
            for hf in range(2):
                a(f"s_mov_b32 m0, {L_K + w*8192 + hf*4096}"); a("s_nop 0")
                for t4 in range(4):
                    t = hf * 4 + t4
                    dma(a, 4 + (t >> 1), SRD, SO, off=t4 * 1024, nt=bool(OPT['k_nt']))
                a(f"s_add_u32 s{SO}, s{SO}, {4096 if hf == 0 else 32*8192 - 4096}")
    def wotouch():
        a(f"s_lshl_b32 s{SO}, s{S_X}, 5"); a(f"s_add_u32 s{SO}, s{SO}, s{S_R}")
        a(f"s_mul_i32 s{SO}, s{SO}, {16*1152}")
        a(f"buffer_load_dword v10, v9, s[52:55], s{SO} offen")
        a(f"buffer_load_dword v10, v9, s[52:55], s{SO} offen offset:512")
        a("s_mov_b64 exec, 0xffff")
        a(f"buffer_load_dword v10, v8, s[52:55], s{SO} offen offset:1024")
        a("s_mov_b64 exec, -1")
    kv_loop(a, "k", issue, wotouch, OPT['wot_pos'])
    a("s_waitcnt vmcnt(3)")
    stamp(a, 7)
    loader_tail(a, 2)

def loader_v(a):
    SRD = 32; SO = 40
    kwait(a)
    srd(a, SRD, P_V, SZ_KV)
    a("s_cmp_lg_u32 s2, 0"); a("s_cbranch_scc1 L_nononce")
    srd(a, 48, P_DBG, 256)
    a("s_memrealtime s[42:43]"); a("s_waitcnt lgkmcnt(0)")
    a("s_or_b32 s42, s42, 1")
    a("v_mov_b32 v8, s42"); a("v_mov_b32 v9, s43"); a("v_mov_b32 v1, 0")
    a("s_mov_b64 exec, 1")
    a("buffer_store_dwordx2 v[8:9], v1, s[48:51], 0 offen sc1")
    a("s_mov_b64 exec, -1")
    a.label("L_nononce")
    if OPT['fast']:
        srd(a, 48, P_DBG, 256)
        a("s_getreg_b32 s42, hwreg(HW_REG_XCC_ID)")
        a("s_and_b32 s42, s42, 15")
        a("s_cmp_ge_u32 s42, 8"); a("s_cbranch_scc1 L_noxcc")
        a("s_mul_i32 s43, s42, s42"); a("s_lshl_b32 s43, s43, 5"); a("s_add_u32 s42, s42, s43")
        a("s_add_u32 s42, s42, 0x2000")
        a(f"s_lshl_b32 s43, s{S_G}, 3"); a(f"s_add_u32 s43, s43, s{S_X}")
        a("s_and_b32 s41, s43, 1"); a("s_lshl_b32 s41, s41, 4"); a("s_lshl_b32 s42, s42, s41")
        a("s_lshr_b32 s43, s43, 1"); a("s_lshl_b32 s43, s43, 2"); a("s_add_u32 s43, s43, 128")
        a("v_mov_b32 v8, s42"); a("v_mov_b32 v1, 0")
        a("s_mov_b64 exec, 1")
        a("buffer_atomic_add v8, v1, s[48:51], s43 offen")
        a("s_mov_b64 exec, -1")
        a.label("L_noxcc")
    a("v_lshrrev_b32 v1, 4, v0"); a("v_and_b32 v2, 15, v0"); a("v_lshlrev_b32 v3, 1, v1")
    a("v_xor_b32 v2, v2, v3"); a("v_lshlrev_b32 v2, 4, v2"); a("v_lshl_add_u32 v4, v1, 8, v2")
    a("v_xor_b32 v5, 128, v4")
    wo_prep(a)
    kv_pos(a, 43, 'v')
    if OPT.get('tlbwarm', 0):
        a(f"s_lshl_b32 s{SO}, s{S_G}, 7"); a(f"s_add_u32 s{SO}, s{SO}, s{S_H}"); a(f"s_lshl_b32 s{SO}, s{SO}, 13")
        a("v_lshlrev_b32 v11, 18, v0")
        a("s_mov_b64 exec, 15")
        a(f"buffer_load_dword v10, v11, s[{SRD}:{SRD+3}], s{SO} offen nt")
        a("s_mov_b64 exec, -1")
    a("s_barrier")
    stamp(a, 1)
    def issue():
        a(f"s_lshl_b32 s{SO}, s{S_G}, 7"); a(f"s_add_u32 s{SO}, s{SO}, s{S_H}"); a(f"s_lshl_b32 s{SO}, s{SO}, 13")
        for w in range(4):
            for hf in range(2):
                a(f"s_mov_b32 m0, {L_V + w*8192 + hf*4096}"); a("s_nop 0")
                for t4 in range(4):
                    t = hf * 4 + t4
                    dma(a, 4 + ((t >> 1) & 1), SRD, SO, off=t4 * 1024, nt=bool(OPT['v_nt']))
                a(f"s_add_u32 s{SO}, s{SO}, {4096 if hf == 0 else 32*8192 - 4096}")
    kv_loop(a, "v", issue)
    if OPT.get('vearly', 0): a("s_waitcnt vmcnt(0)")
    stamp(a, 7)
    loader_tail(a, 3)

V_XA = [4, 8]; V_WA = [12, 248]
V_A = [16, 32]; V_B = [48, 52]; V_ACC = 64
V_QF = 128; V_KF = 160; V_S = 192; V_VF = 208; V_PF = 240; V_OF = 128
V_KA = 56; V_VA = 60; V_CLW = 61; V_NONCE = 62
SC_SCALE = 0.08838834764831845 * 1.4426950408889634

def gemm1_addrs(a):
    a("v_and_b32 v1, 31, v0"); a("v_lshrrev_b32 v2, 5, v0"); a("v_bfe_u32 v3, v0, 1, 3")
    a("v_xor_b32 v2, v2, v3"); a("v_lshlrev_b32 v2, 4, v2"); a("v_lshl_add_u32 v2, v1, 7, v2")
    a(f"s_lshl_b32 s40, s{S_WAVE}, 12"); a("s_add_u32 s40, s40, 16384")
    a("v_add_u32 v2, s40, v2")
    for ks in range(4):
        a(f"v_xor_b32 v{V_XA[0]+ks}, {32*ks}, v2"); a(f"v_add_u32 v{V_XA[1]+ks}, 65536, v{V_XA[0]+ks}")
    a("v_bfe_u32 v1, v0, 2, 2"); a("v_lshrrev_b32 v2, 5, v0"); a("v_lshl_add_u32 v2, v2, 3, v1")
    a("v_lshlrev_b32 v2, 8, v2"); a("v_and_b32 v3, 1, v0"); a("v_lshl_add_u32 v2, v3, 5, v2")
    a("v_bfe_u32 v3, v0, 4, 1"); a("v_lshl_add_u32 v2, v3, 4, v2")
    a("v_bfe_u32 v3, v0, 1, 1"); a("v_lshl_add_u32 v2, v3, 3, v2")
    a("v_lshl_add_u32 v2, v1, 6, v2")
    for dt in range(4):
        a(f"v_xor_b32 v{V_WA[0]+dt}, {64*dt}, v2"); a(f"v_add_u32 v{V_WA[1]+dt}, 65536, v{V_WA[0]+dt}")

def attn_addrs(a):
    a("v_and_b32 v1, 15, v0"); a("v_lshrrev_b32 v2, 4, v0"); a("v_xor_b32 v2, v2, v1")
    a("v_lshlrev_b32 v2, 4, v2"); a("v_lshrrev_b32 v3, 2, v1"); a("v_lshl_add_u32 v2, v3, 11, v2")
    a("v_and_b32 v3, 3, v1"); a("v_lshl_add_u32 v2, v3, 8, v2")
    a(f"s_lshl_b32 s40, s{S_WAVE}, 13"); a(f"s_add_u32 s40, s40, {L_K}")
    a("v_add_u32 v2, s40, v2")
    for st in range(4): a(f"v_xor_b32 v{V_KA+st}, {64*st}, v2")
    a("v_lshrrev_b32 v1, 4, v0"); a("v_bfe_u32 v3, v0, 2, 2"); a("v_lshl_add_u32 v2, v1, 3, v3")
    a("v_lshlrev_b32 v2, 8, v2"); a("v_and_b32 v1, 1, v1"); a("v_lshl_add_u32 v3, v1, 2, v3")
    a("v_lshl_add_u32 v2, v3, 5, v2"); a("v_and_b32 v3, 3, v0"); a("v_lshl_add_u32 v2, v3, 3, v2")
    a(f"s_lshl_b32 s40, s{S_WAVE}, 13"); a(f"s_add_u32 s40, s40, {L_V}")
    a(f"v_add_u32 v{V_VA}, s40, v2")

def g1_reads(n):
    i, ks = divmod(n, 4)
    slot = i % 3; st = n & 1; hs = 1 if slot == 2 else 0; so = (slot & 1) * 32768 if slot < 2 else 0
    r = [f"ds_read_b128 {vr(V_B[st],4)}, v{V_XA[hs]+ks} offset:{so}"]
    for dt in range(4):
        base = V_A[st] + 4 * dt
        off = so + ks * 4096
        r.append(f"ds_read_b64_tr_b16 {vr(base,2)}, v{V_WA[hs]+dt} offset:{off}")
        r.append(f"ds_read_b64_tr_b16 {vr(base+2,2)}, v{V_WA[hs]+dt} offset:{off+1024}")
    return r

def gemm1(a):
    NS = NCH * 4
    kv_pos(a, 43, 'k')
    a("s_barrier")
    bx(a, -1, "c")
    a("s_barrier")
    stamp(a, 1)
    for r in g1_reads(0): a(r)
    for n in range(NS):
        i, ks = divmod(n, 4); st = n & 1
        nxt = g1_reads(n + 1) if n + 1 < NS else []
        def mf(dt):
            c = "0" if n == 0 else vr(V_ACC + 16 * dt, 16)
            a(f"v_mfma_f32_32x32x16_bf16 {vr(V_ACC+16*dt,16)}, {vr(V_A[st]+4*dt,4)}, {vr(V_B[st],4)}, {c}")
        if ks == 3:
            for dt in range(4):
                a(f"s_waitcnt lgkmcnt({[6,4,2,0][dt]})")
                if dt == 3 and nxt:
                    bx(a, i, "c")
                    a("s_barrier")
                    for r in nxt[:5]: a(r)
                mf(dt)
            for r in nxt[5:]: a(r)
        else:
            first_after_boundary = (ks == 0 and n > 0)
            for dt in range(4):
                a(f"s_waitcnt lgkmcnt({[6,7,8,9][dt]})")
                mf(dt)
                if dt < 3:
                    for r in nxt[3*dt:3*dt+3]: a(r)
        if n == 33 and OPT.get('nonce_in', 1): get_nonce(a)
        if n == 24:
            a(f"buffer_load_dwordx2 {vr(V_NONCE,2)}, v1, s[36:39], 0 offen sc1")
            if OPT['fast']:
                a(f"buffer_load_dword v{V_CLW}, v1, s[36:39], s40 offen sc1")
                a(f"buffer_load_dword v2, v1, s[44:47], s42 offen sc1")

def attention(a):
    VE = OPT.get('vearly', 0)
    a("s_barrier")
    stamp(a, 3)
    for ai in range(2):
        for st in range(4):
            a(f"ds_read_b128 {vr(V_KF+(ai*4+st)*4,4)}, v{V_KA+st} offset:{ai*1024}")
    def vreads(T0, T1):
        for T in range(T0, T1):
            if T: a(f"v_xor_b32 v1, {32*T}, v{V_VA}")
            ad = "v1" if T else f"v{V_VA}"
            a(f"ds_read_b64_tr_b16 {vr(V_VF+4*T,2)}, {ad}")
            a(f"ds_read_b64_tr_b16 {vr(V_VF+4*T+2,2)}, {ad} offset:1024")
    for dt in range(4):
        for i in range(8):
            a(f"v_cvt_pk_bf16_f32 v{V_QF+8*dt+i}, v{V_ACC+16*dt+2*i}, v{V_ACC+16*dt+2*i+1}")
        if VE and dt == 1:
            a("s_waitcnt lgkmcnt(0)"); vreads(0, 4)
    a("s_nop 1")
    for dt in range(4):
        for i in range(4):
            a(f"v_permlane16_swap_b32 v{V_QF+8*dt+i}, v{V_QF+8*dt+4+i}")
    if VE:
        a("s_waitcnt lgkmcnt(4)"); vreads(4, 8)
    else:
        a("s_waitcnt lgkmcnt(0)")
    for st in range(4):
        for ai in range(2):
            for qt in range(2):
                d = vr(V_S + (ai*2+qt)*4, 4)
                c = "0" if st == 0 else d
                a(f"v_mfma_f32_16x16x32_bf16 {d}, {vr(V_KF+(ai*4+st)*4,4)}, {vr(V_QF+8*st+4*qt,4)}, {c}")
    if VE:
        a("s_waitcnt lgkmcnt(0)")
    def S(ai, qt, v): return V_S + (ai*2+qt)*4 + v
    M = [48, 49]; T_ = [50, 51]; SUM = [52, 53]
    a("s_nop 7")
    for qt in range(2): a(f"v_max3_f32 v{M[qt]}, v{S(0,qt,0)}, v{S(0,qt,1)}, v{S(0,qt,2)}")
    for qt in range(2): a(f"v_max3_f32 v{M[qt]}, v{M[qt]}, v{S(0,qt,3)}, v{S(1,qt,0)}")
    for qt in range(2): a(f"v_max3_f32 v{M[qt]}, v{M[qt]}, v{S(1,qt,1)}, v{S(1,qt,2)}")
    for qt in range(2): a(f"v_max_f32 v{M[qt]}, v{M[qt]}, v{S(1,qt,3)}")
    def xlane(regs, tmps, op):
        for sw in ("v_permlane16_swap_b32", "v_permlane32_swap_b32"):
            for qt in range(2): a(f"v_mov_b32 v{tmps[qt]}, v{regs[qt]}")
            a("s_nop 0")
            for qt in range(2): a(f"{sw} v{tmps[qt]}, v{regs[qt]}")
            a("s_nop 0")
            for qt in range(2): a(f"{op} v{regs[qt]}, v{regs[qt]}, v{tmps[qt]}")
    xlane(M, T_, "v_max_f32")
    a(f"s_mov_b32 s41, {f32hex(SC_SCALE)}")
    for qt in range(2): a(f"v_mul_f32 v{M[qt]}, s41, v{M[qt]}")
    for ai in range(2):
        for v in range(4):
            for qt in range(2): a(f"v_fma_f32 v{S(ai,qt,v)}, v{S(ai,qt,v)}, s41, -v{M[qt]}")
    for ai in range(2):
        for v in range(4):
            for qt in range(2): a(f"v_exp_f32 v{S(ai,qt,v)}, v{S(ai,qt,v)}")
    a("s_nop 0")
    for qt in range(2): a(f"v_add_f32 v{SUM[qt]}, v{S(0,qt,0)}, v{S(0,qt,1)}")
    for (ai, v) in [(0,2),(0,3),(1,0),(1,1),(1,2),(1,3)]:
        for qt in range(2): a(f"v_add_f32 v{SUM[qt]}, v{SUM[qt]}, v{S(ai,qt,v)}")
    xlane(SUM, T_, "v_add_f32")
    for qt in range(2): a(f"v_rcp_f32 v{SUM[qt]}, v{SUM[qt]}")
    a("s_nop 0")
    for ai in range(2):
        for v in range(4):
            for qt in range(2): a(f"v_mul_f32 v{S(ai,qt,v)}, v{S(ai,qt,v)}, v{SUM[qt]}")
    for qt in range(2):
        for ai in range(2):
            for h2 in range(2):
                a(f"v_cvt_pk_bf16_f32 v{V_PF+4*qt+2*ai+h2}, v{S(ai,qt,2*h2)}, v{S(ai,qt,2*h2+1)}")
    stamp(a, 4)
    if VE:
        a("s_nop 0")
    else:
        a("s_barrier")
        vreads(0, 6); a("s_waitcnt lgkmcnt(4)"); vreads(6, 8)
        a("s_waitcnt lgkmcnt(0)")
        a("s_barrier")
    def pv(T):
        for qt in range(2):
            a(f"v_mfma_f32_16x16x32_bf16 {vr(V_ACC+(T*2+qt)*4,4)}, {vr(V_VF+4*T,4)}, {vr(V_PF+4*qt,4)}, 0")
    def pack(p):
        for qt in range(2):
            for e in range(2):
                T = 2*p + e
                for h2 in range(2):
                    src = V_ACC + (T*2+qt)*4 + 2*h2
                    a(f"v_cvt_pk_bf16_f32 v{V_OF+(2*p+qt)*4+2*e+h2}, v{src}, v{src+1}")
    if OPT.get('ostin', 1):
        o_store(a)
        a("s_nop 0")
        for T in range(6): pv(T)
        pack(0); pv(6); a(OSTORES[0]); a(OSTORES[1]); pv(7)
        pack(1); a(OSTORES[2]); a(OSTORES[3])
        a("s_barrier")
        pack(2); a(OSTORES[4]); a(OSTORES[5])
        a("s_nop 1")
        pack(3); a(OSTORES[6]); a(OSTORES[7])
    else:
        for T in range(8): pv(T)
        if VE: a("s_barrier")
        a("s_nop 7")
        for p in range(4): pack(p)

V2_ACC = 16
V2_A = [88, 108]
V2_AD = [4, 5, 6, 12]
BUF = [160, 192, 224]

def p2_areads(slot, p, half, buf=None):
    r = []
    ad = V2_AD[slot]
    taus = range(0, 5) if half == 0 else range(5, 9)
    if buf is None: buf = half
    for k, tau in enumerate(taus):
        off = p * 32 * 288 + 32 * tau
        base = V2_A[buf] + 4 * k
        r.append(f"ds_read_b64_tr_b16 {vr(base,2)}, v{ad} offset:{off}")
        r.append(f"ds_read_b64_tr_b16 {vr(base+2,2)}, v{ad} offset:{off+16*288}")
    return r

def p2_bloads(a, slot, breg):
    a(f"s_add_u32 s45, s{S_J}, {slot}"); a("s_and_b32 s45, s45, 3"); a("s_add_u32 s45, s45, s44")
    a("s_lshl_b32 s45, s45, 2"); a(f"s_add_u32 s45, s45, s{S_WAVE}")
    a("s_lshl_b32 s46, s45, 13"); a("s_add_u32 s47, s46, 4096")
    for f in range(8):
        a(f"buffer_load_dwordx4 {vr(breg+4*f,4)}, v7, s[32:35], s{46 + f//4} offen offset:{(f%4)*1024} sc1")

S_NON = 52
S_FAST = 54

def get_nonce(a):
    a("s_waitcnt vmcnt(0)")
    a("v_mov_b32 v9, 0")
    a("s_mov_b32 s50, 0")
    a.label("L_nonce_chk")
    a(f"v_readfirstlane_b32 s{S_NON}, v{V_NONCE}"); a(f"v_readfirstlane_b32 s{S_NON+1}, v{V_NONCE+1}")
    a("s_nop 0")
    a(f"s_cmp_lg_u32 s{S_NON}, 0"); a("s_cbranch_scc1 L_nonce_ok")
    a(f"buffer_load_dwordx2 {vr(V_NONCE,2)}, v9, s[36:39], 0 offen sc1")
    a("s_add_u32 s50, s50, 1"); a("s_waitcnt vmcnt(0)")
    a(f"s_cmp_lt_u32 s50, {OPT['spin_max']}"); a("s_cbranch_scc1 L_nonce_chk")
    a.label("L_nonce_ok")
    a(f"s_mov_b32 s{S_FAST}, 0")
    if OPT['fast']:
        a(f"v_readfirstlane_b32 s55, v{V_CLW}")
        a(f"s_and_b32 s56, s{S_X}, 1"); a("s_lshl_b32 s56, s56, 4"); a("s_lshr_b32 s55, s55, s56")
        a("s_and_b32 s56, s55, 31")
        a("s_bfe_u32 s57, s55, 0x80005")
        a("s_bfe_u32 s55, s55, 0x3000d")
        a("s_mul_i32 s56, s56, s56"); a("s_lshl_b32 s57, s57, 2")
        a("s_cmp_eq_u32 s56, s57"); a(f"s_cselect_b32 s{S_FAST}, 1, 0")
        a("s_cmp_eq_u32 s55, 4"); a(f"s_cselect_b32 s{S_FAST}, s{S_FAST}, 0")
        if OPT['fast'] == 2: a(f"s_mov_b32 s{S_FAST}, 0")

def poll(a, tag, voff, soff, sleep=0):
    a("s_mov_b32 s50, 0")
    a.label(f"L_poll_{tag}")
    if sleep: a(f"s_sleep {sleep}")
    a(f"buffer_load_dwordx2 v[10:11], v{voff}, s[32:35], s{soff} offen sc1")
    a("s_add_u32 s50, s50, 1"); a("s_waitcnt vmcnt(0)")
    a(f"v_cmp_eq_u64 vcc, v[10:11], s[{S_NON}:{S_NON+1}]")
    a(f"s_cmp_ge_u32 s50, {OPT['spin_max']}"); a(f"s_cbranch_scc1 L_poll_{tag}_done")
    a("s_cmp_eq_u64 vcc, -1"); a(f"s_cbranch_scc0 L_poll_{tag}")
    a.label(f"L_poll_{tag}_done")

def flag_store(a, soff, mode):
    a(f"v_mov_b32 v10, s{S_NON}"); a(f"v_mov_b32 v11, s{S_NON+1}")
    a("s_mov_b64 exec, 1")
    if mode == 'dyn':
        a(f"s_cmp_eq_u32 s{S_FAST}, 0"); a("s_cbranch_scc1 L_flag_slow")
        a(f"buffer_store_dwordx2 v[10:11], v9, s[32:35], s{soff} offen")
        a("s_branch L_flag_join")
        a.label("L_flag_slow")
        a(f"buffer_store_dwordx2 v[10:11], v9, s[32:35], s{soff} offen sc1")
        a.label("L_flag_join")
    else:
        a(f"buffer_store_dwordx2 v[10:11], v9, s[32:35], s{soff} offen sc1")
    a("s_mov_b64 exec, -1")

def o_store(a):
    srd(a, 32, P_WS, SZ_WS_USED)
    a("v_lshlrev_b32 v7, 4, v0")
    a(f"s_lshl_b32 s40, s{S_G}, 5"); a(f"s_add_u32 s40, s40, s{S_H}"); a("s_lshl_b32 s40, s40, 2")
    a(f"s_add_u32 s40, s40, s{S_WAVE}"); a("s_lshl_b32 s40, s40, 13"); a("s_add_u32 s41, s40, 4096")
    global OSTORES
    OSTORES = [f"buffer_store_dwordx4 {vr(V_OF+4*f,4)}, v7, s[32:35], s{40 + f//4} offen offset:{(f%4)*1024} sc1" for f in range(8)]
    a("v_lshrrev_b32 v2, 4, v0"); a("v_bfe_u32 v3, v0, 2, 2"); a("v_lshl_add_u32 v2, v2, 2, v3")
    a("v_mul_u32_u24 v2, 288, v2"); a("v_and_b32 v3, 3, v0")
    a(f"v_lshl_add_u32 v{V2_AD[0]}, v3, 3, v2")
    for sl in range(1, 4): a(f"v_add_u32 v{V2_AD[sl]}, {sl*W_SLOT}, v{V2_AD[0]}")
    a(f"s_lshl_b32 s44, s{S_G}, 5"); a(f"s_lshl_b32 s45, s{S_X}, 2"); a("s_add_u32 s44, s44, s45")
    a(f"s_lshl_b32 s48, s{S_G}, 3"); a(f"s_add_u32 s48, s48, s{S_X}"); a("s_lshl_b32 s48, s48, 2")
    a(f"s_add_u32 s48, s48, s{S_WAVE}"); a("s_lshl_b32 s48, s48, 7"); a(f"s_add_u32 s48, s48, {WS_F}")
    a(f"s_lshl_b32 s49, s{S_J}, 3"); a("s_add_u32 s49, s49, s48")
    a("v_and_b32 v8, 3, v0"); a("v_lshlrev_b32 v8, 3, v8")

def bload_list(slot, breg):
    setup = [f"s_add_u32 s45, s{S_J}, {slot}", "s_and_b32 s45, s45, 3", "s_add_u32 s45, s45, s44",
             "s_lshl_b32 s45, s45, 2", f"s_add_u32 s45, s45, s{S_WAVE}",
             "s_lshl_b32 s46, s45, 13", "s_add_u32 s47, s46, 4096"]
    loads = [f"buffer_load_dwordx4 {vr(breg+4*f,4)}, v7, s[32:35], s{46 + f//4} offen offset:{(f%4)*1024} sc1" for f in range(8)]
    return setup, loads

def p2_run(a, hs, n0, n1, hooks_pre=None, hooks_mid=None, inject=None, spread=None):
    hooks_pre = hooks_pre or {}; hooks_mid = hooks_mid or {}; inject = inject or {}; spread = spread or {}
    for n in range(n0, n1):
        (s, p, hf) = hs[n]
        breg = V_OF if s == 0 else BUF[s - 1]
        nxt = p2_areads(*hs[n+1], buf=(n+1) & 1) if n + 1 < n1 else []
        taus = list(range(0, 5)) if hf == 0 else list(range(5, 9))
        nown = 2 * len(taus)
        nm = nown
        plan = [0] * nm
        for t in range(len(nxt)): plan[t % nm] += 1
        issued = 0; m = 0
        inj = list(inject.get(n, []))
        spr = list(spread.get(n, []))
        per = -(-len(spr) // nm) if spr else 0
        if n in hooks_pre: hooks_pre[n]()
        for k, tau in enumerate(taus):
            a(f"s_waitcnt lgkmcnt({nown - 2 * (k + 1) + issued})")
            for qt in range(2):
                d = vr(V2_ACC + (tau*2+qt)*4, 4)
                c = "0" if (s == 0 and p == 0) else d
                a(f"v_mfma_f32_16x16x32_bf16 {d}, {vr(V2_A[n & 1]+4*k,4)}, {vr(breg+(2*p+qt)*4,4)}, {c}")
                if m == 0 and n in hooks_mid: hooks_mid[n]()
                if nxt:
                    for r in nxt[issued:issued+plan[m]]: a(r)
                    issued = min(len(nxt), issued + plan[m])
                for _ in range(per):
                    if spr: a(spr.pop(0))
                m += 1
                if k >= len(taus) - 1 and inj: a(inj.pop(0))
        while inj: a(inj.pop(0))
        while spr: a(spr.pop(0))

def d_prep(a):
    a("v_bfe_u32 v13, v0, 1, 3"); a("v_mul_u32_u24 v13, 9216, v13")
    a("v_lshrrev_b32 v14, 4, v0"); a("v_lshlrev_b32 v14, 1, v14"); a("v_and_b32 v15, 1, v0")
    a("v_add_u32 v14, v14, v15"); a("v_lshl_add_u32 v13, v14, 4, v13")
    a(f"s_lshl_b32 s58, s{S_G}, 2"); a(f"s_add_u32 s58, s58, s{S_J}"); a("s_lshl_b32 s58, s58, 2")
    a(f"s_add_u32 s58, s58, s{S_WAVE}")
    a("s_mul_i32 s59, s58, 73728"); a(f"s_add_u32 s59, s59, {WS_D}")
    a(f"s_mul_i32 s40, s{S_X}, 1152"); a("s_add_u32 s40, s40, s59")

def d_pack_store(tau, G=160):
    r = []
    for qt in range(2):
        for h2 in range(2):
            src = V2_ACC + (tau*2+qt)*4 + 2*h2
            r.append(f"v_cvt_pk_bf16_f32 v{G+4*tau+2*qt+h2}, v{src}, v{src+1}")
    r.append(f"buffer_store_dwordx4 {vr(G+4*tau,4)}, v13, s[32:35], s40 offen offset:{128*tau} sc1")
    return r

def tail(a):
    hs = [(s, p, hf) for s in range(2) for p in range(4) for hf in range(2)]
    hs += [(2, p, 0) for p in range(4)] + [(3, p, 0) for p in range(4)]
    hs += [(2, p, 1) for p in range(4)] + [(3, p, 1) for p in range(4)]
    if not OPT.get('ostin', 1):
        o_store(a)
        for x in OSTORES: a(x)
    stamp(a, 6)
    for r in p2_areads(*hs[0], buf=0): a(r)
    def exch():
        a("s_waitcnt vmcnt(0)")
        flag_store(a, 49, 'dyn')
        stamp(a, 7)
        if OPT.get('poll1', 1):
            a(f"s_add_u32 s56, s{S_J}, 1"); a("s_and_b32 s56, s56, 3")
            a("s_mov_b32 s50, 0")
            a.label("L_poll_o1")
            if OPT.get('o_sleep', 0): a(f"s_sleep {OPT['o_sleep']}")
            a("buffer_load_dwordx2 v[10:11], v8, s[32:35], s48 offen sc1")
            a("s_add_u32 s50, s50, 1"); a("s_waitcnt vmcnt(0)")
            a(f"v_cmp_eq_u64 vcc, v[10:11], s[{S_NON}:{S_NON+1}]")
            a(f"s_cmp_ge_u32 s50, {OPT['spin_max']}"); a("s_cbranch_scc1 L_poll_o1_done")
            a("s_bitcmp1_b32 vcc_lo, s56"); a("s_cbranch_scc0 L_poll_o1")
            a.label("L_poll_o1_done")
            a("s_cmp_eq_u64 vcc, -1"); a("s_cselect_b32 s55, 1, 0")
        else:
            poll(a, "o", 8, 48, sleep=OPT.get('o_sleep', 0))
        stamp(a, 8)
        p2_bloads(a, 1, BUF[0])
        a("s_nop 3")
    p2_run(a, hs, 0, 8, hooks_pre={OPT.get('flagpos', 4): exch})
    a("s_barrier")
    tstamp(a, 1)
    if OPT.get('poll1', 1):
        a("s_cmp_eq_u32 s55, 1"); a("s_cbranch_scc1 L_poll_o_skip")
        poll(a, "o", 8, 48, sleep=OPT.get('o_sleep', 0))
        a.label("L_poll_o_skip")
    for r in p2_areads(*hs[8], buf=0): a(r)
    su2, l2 = bload_list(2, BUF[1]); su3, l3 = bload_list(3, BUF[2])
    for x in su2: a(x)
    d_prep(a)
    inj = {}
    for t in range(4):
        inj[8 + t] = list(l2[2*t:2*t+2])
        inj[12 + t] = list(l3[2*t:2*t+2])
    inj[11] = inj[11] + su3
    spr = {25: d_pack_store(0) + d_pack_store(1), 26: d_pack_store(2) + d_pack_store(3), 27: d_pack_store(4)}
    W = lambda n: (lambda: a(f"s_waitcnt vmcnt({n})"))
    def WC(n, idx):
        def f():
            if OPT.get('cyc', 0): cstamp(a, idx)
            if n is not None: a(f"s_waitcnt vmcnt({n})")
        return f
    p2_run(a, hs, 8, 32,
           hooks_pre={8: WC(6, 3), 10: W(8), 12: W(10), 14: W(12), 16: WC(8, 4), 20: W(0), 24: WC(None, 13)},
           hooks_mid={15: lambda: a("s_barrier"), 19: lambda: a("s_barrier")},
           inject=inj, spread=spr)
    if OPT.get('cyc', 0): cstamp(a, 1)
    stamp(a, 9)
    reduce_inkernel(a)

def store_partials_f32(a):
    a("s_nop 7")
    a(f"s_lshl_b32 s45, s{S_X}, 3"); a(f"s_add_u32 s45, s45, s{S_G}"); a("s_lshl_b32 s45, s45, 2")
    a(f"s_add_u32 s45, s45, s{S_J}"); a("s_lshl_b32 s45, s45, 2"); a(f"s_add_u32 s45, s45, s{S_WAVE}")
    a(f"s_mul_i32 s45, s45, {18*1024}"); a(f"s_add_u32 s45, s45, {WS_P}")
    for u in range(18):
        if u and u % 4 == 0: a("s_add_u32 s45, s45, 4096")
        a(f"buffer_store_dwordx4 {vr(V2_ACC+4*u,4)}, v7, s[32:35], s45 offen offset:{(u%4)*1024}")

def store_partials_bf16(a):
    G = 160
    a(f"s_lshl_b32 s44, s{S_G}, 2"); a(f"s_add_u32 s44, s44, s{S_J}"); a("s_lshl_b32 s44, s44, 2")
    a(f"s_add_u32 s44, s44, s{S_WAVE}")
    a(f"s_lshl_b32 s45, s{S_X}, 7"); a("s_add_u32 s45, s45, s44"); a("s_mul_i32 s45, s45, 9216")
    a(f"s_add_u32 s45, s45, {WS_P}"); a("s_add_u32 s46, s45, 4096"); a("s_add_u32 s47, s45, 8192")
    sc = " sc1" if OPT.get('psc1', 1) else ""
    for tau in range(9):
        for qt in range(2):
            for h2 in range(2):
                src = V2_ACC + (tau*2+qt)*4 + 2*h2
                a(f"v_cvt_pk_bf16_f32 v{G+4*tau+2*qt+h2}, v{src}, v{src+1}")
        a(f"buffer_store_dwordx4 {vr(G+4*tau,4)}, v7, s[32:35], s{45 + tau//4} offen offset:{(tau%4)*1024}{sc}")

def kernel3b(a):
    name = "mha_p3_kernel"
    a(".p2align 8"); a(f".globl {name}"); a(f".type {name},@function"); a.label(name)
    a("s_cmp_ge_u32 s2, 288"); a(f"s_cbranch_scc1 L_end_{name}")
    a("s_load_dwordx2 s[26:27], s[0:1], 40"); a("s_load_dwordx2 s[30:31], s[0:1], 56")
    a("v_lshrrev_b32 v1, 6, v0"); a("v_and_b32 v0, 63, v0")
    a("s_lshl_b32 s5, s2, 2")
    a(f"v_readfirstlane_b32 s{S_WAVE}, v1")
    a("v_lshlrev_b32 v1, 4, v0")
    a(f"s_add_u32 s5, s5, s{S_WAVE}")
    a("s_mul_i32 s45, s5, 1024"); a(f"s_add_u32 s45, s45, {WS_P}")
    a("s_mul_hi_u32 s6, s5, 477218589")
    a("s_mul_i32 s7, s6, 9"); a("s_sub_u32 s7, s5, s7")
    a("s_waitcnt lgkmcnt(0)")
    srd(a, 32, P_WS, SZ_WS_USED); srd(a, 36, P_OUT, SZ_OUT)
    for x in range(8):
        a(f"buffer_load_dwordx4 {vr(8+4*x,4)}, v1, s[32:35], s45 offen")
        if x < 7: a(f"s_add_u32 s45, s45, {128*9216}")
    a("v_and_b32 v2, 15, v0"); a("v_mul_u32_u24 v2, 1152, v2"); a("v_lshrrev_b32 v3, 4, v0")
    a("v_lshl_add_u32 v2, v3, 3, v2")
    a("s_lshr_b32 s46, s6, 4"); a("s_lshl_b32 s46, s46, 2"); a("s_and_b32 s47, s6, 3"); a("s_add_u32 s46, s46, s47")
    a(f"s_mul_i32 s46, s46, {32*1152}")
    a("s_lshr_b32 s47, s6, 2"); a("s_and_b32 s47, s47, 3"); a("s_mul_i32 s47, s47, 288"); a("s_add_u32 s46, s46, s47")
    a("s_lshl_b32 s47, s7, 5"); a("s_add_u32 s46, s46, s47"); a(f"s_add_u32 s47, s46, {16*1152}")
    for x in range(8):
        a(f"s_waitcnt vmcnt({7-x})")
        for d in range(4):
            src = 8 + 4*x + d
            if x == 0:
                a(f"v_lshlrev_b32 v{40+2*d}, 16, v{src}"); a(f"v_and_b32 v{40+2*d+1}, 0xffff0000, v{src}")
            else:
                a(f"v_lshlrev_b32 v48, 16, v{src}"); a(f"v_and_b32 v49, 0xffff0000, v{src}")
                a(f"v_pk_add_f32 v[{40+2*d}:{40+2*d+1}], v[{40+2*d}:{40+2*d+1}], v[48:49]")
    for d in range(4): a(f"v_cvt_pk_bf16_f32 v{50+d}, v{40+2*d}, v{40+2*d+1}")
    a("buffer_store_dwordx2 v[50:51], v2, s[36:39], s46 offen")
    a("buffer_store_dwordx2 v[52:53], v2, s[36:39], s47 offen")
    a.label(f"L_end_{name}")
    a("s_endpgm")

def reduce_inkernel(a):
    RA = 196; RB = 88
    a("s_nop 7")
    for tau in range(5, 9):
        for x in d_pack_store(tau): a(x)
    a("s_lshl_b32 s48, s58, 8"); a(f"s_add_u32 s48, s48, {WS_F2}")
    a(f"s_lshl_b32 s49, s{S_X}, 3"); a("s_add_u32 s49, s49, s48")
    a("s_waitcnt vmcnt(4)")
    flag_store(a, 49, 'sc1')
    a("s_add_u32 s49, s49, 128")
    a("v_and_b32 v8, 7, v0"); a("v_lshlrev_b32 v8, 3, v8")
    a("v_and_b32 v14, 1, v0"); a("v_mul_u32_u24 v14, 1152, v14")
    a("v_bfe_u32 v15, v0, 1, 2"); a("v_lshl_add_u32 v14, v15, 3, v14")
    a("v_lshrrev_b32 v12, 3, v0"); a("v_lshl_add_u32 v14, v12, 5, v14")
    a("v_add_u32 v15, 160, v14")
    srd(a, 36, P_OUT, SZ_OUT)
    a(f"s_lshl_b32 s56, s{S_G}, 2"); a(f"s_add_u32 s56, s56, s{S_WAVE}"); a("s_lshl_b32 s56, s56, 5")
    a(f"s_lshl_b32 s57, s{S_X}, 1"); a("s_add_u32 s56, s56, s57"); a("s_mul_i32 s56, s56, 1152")
    a(f"s_mul_i32 s57, s{S_J}, 288"); a("s_add_u32 s56, s56, s57")
    a(f"s_add_u32 s57, s56, {16*1152}")
    a(f"s_mul_i32 s47, s{S_X}, 9216"); a("s_add_u32 s47, s47, s59")
    a("s_waitcnt vmcnt(1)")
    flag_store(a, 49, 'sc1')
    stamp(a, 10)
    poll(a, "da", 8, 48, sleep=OPT.get('d_sleep', 0))
    a("s_mov_b32 s46, s47")
    a("s_mov_b32 exec_hi, 0xff")
    for sx in range(8):
        a(f"buffer_load_dwordx4 {vr(RA+4*sx,4)}, v7, s[32:35], s46 offen sc1")
        if sx < 7: a("s_add_u32 s46, s46, 1152")
    a("s_mov_b64 exec, -1")
    a("s_add_u32 s48, s48, 128")
    poll(a, "db", 8, 48, sleep=OPT.get('d_sleep2', 1))
    stamp(a, 11)
    a("s_mov_b64 exec, 0xffffffff")
    for sx in range(8):
        a(f"buffer_load_dwordx4 {vr(RB+4*sx,4)}, v7, s[32:35], s47 offen offset:640 sc1")
        if sx < 7: a("s_add_u32 s47, s47, 1152")
    a("s_mov_b64 exec, -1")
    AA = 16; AB = 24; T = 32
    def summ(R, A, waits):
        for sx in range(8):
            if waits: a(f"s_waitcnt vmcnt({7 - sx})")
            for d in range(4):
                src = R + 4*sx + d
                if sx == 0:
                    a(f"v_lshlrev_b32 v{A+2*d}, 16, v{src}"); a(f"v_and_b32 v{A+2*d+1}, 0xffff0000, v{src}")
                else:
                    t = T + 2 * (d & 1)
                    a(f"v_lshlrev_b32 v{t}, 16, v{src}"); a(f"v_and_b32 v{t+1}, 0xffff0000, v{src}")
                    a(f"v_pk_add_f32 v[{A+2*d}:{A+2*d+1}], v[{A+2*d}:{A+2*d+1}], v[{t}:{t+1}]")
    fl = {0: "", 1: " sc1", 2: " nt", 3: " sc0 sc1"}[OPT.get('outfl', 0)]
    summ(RA, AA, False)
    for d in range(4): a(f"v_cvt_pk_bf16_f32 v{36+d}, v{AA+2*d}, v{AA+2*d+1}")
    summ(RB, AB, True)
    a("s_mov_b32 exec_hi, 0xff")
    a(f"buffer_store_dwordx2 v[36:37], v14, s[36:39], s56 offen{fl}")
    a(f"buffer_store_dwordx2 v[38:39], v14, s[36:39], s57 offen{fl}")
    a("s_mov_b64 exec, -1")
    for d in range(4): a(f"v_cvt_pk_bf16_f32 v{40+d}, v{AB+2*d}, v{AB+2*d+1}")
    a("s_mov_b64 exec, 0xffffffff")
    a(f"buffer_store_dwordx2 v[40:41], v15, s[36:39], s56 offen{fl}")
    a(f"buffer_store_dwordx2 v[42:43], v15, s[36:39], s57 offen{fl}")
    a("s_mov_b64 exec, -1")

def KNAME():
    return "standalone__mha_block_cached__near_ridge_kernel" if OPT['dk'] else "mha_a_kernel"

def kernelA(a):
    global KIDX
    KIDX = 0
    name = KNAME()
    prologue(a, name)
    stamp_init(a); stamp(a, 0); cstamp(a, 14)
    if OPT['stamps'] and OPT.get('entrystamp', 0): a("s_mov_b64 s[86:87], s[96:97]")
    a(f"s_cmp_lt_u32 s{S_WAVE}, 4"); a("s_cbranch_scc1 L_a_compute")
    a(f"s_cmp_eq_u32 s{S_WAVE}, 5"); a("s_cbranch_scc1 L_a_ldx")
    a(f"s_cmp_eq_u32 s{S_WAVE}, 6"); a("s_cbranch_scc1 L_a_ldk")
    a(f"s_cmp_eq_u32 s{S_WAVE}, 7"); a("s_cbranch_scc1 L_a_ldv")
    loader_ring(a, 'wq'); stamp_flush(a); a("s_endpgm")
    a.label("L_a_ldx"); loader_ring(a, 'x'); stamp_flush(a); a("s_endpgm")
    a.label("L_a_ldv"); loader_v(a); stamp_flush(a); a("s_endpgm")
    a.label("L_a_ldk"); loader_k(a); stamp_flush(a); a("s_endpgm")
    a.label("L_a_compute")
    CUR['compute'] = True
    gemm1_addrs(a); attn_addrs(a)
    kwait(a)
    srd(a, 36, P_DBG, 256)
    a("v_mov_b32 v1, 0")
    a(f"s_lshl_b32 s40, s{S_G}, 3"); a(f"s_add_u32 s40, s40, s{S_X}"); a("s_lshr_b32 s40, s40, 1")
    a("s_lshl_b32 s40, s40, 2"); a("s_add_u32 s40, s40, 128")
    srd(a, 44, P_WS, SZ_WS_USED)
    a(f"s_lshl_b32 s42, s{S_G}, 3"); a(f"s_add_u32 s42, s42, s{S_X}"); a("s_lshl_b32 s42, s42, 2")
    a(f"s_add_u32 s42, s42, s{S_WAVE}"); a("s_lshl_b32 s42, s42, 7"); a(f"s_add_u32 s42, s42, {WS_F}")
    gemm1(a)
    if not OPT.get('nonce_in', 1): get_nonce(a)
    stamp(a, 2)
    attention(a); stamp(a, 5)
    tail(a)
    if OPT['stamps']: a("s_waitcnt vmcnt(0)")
    stamp(a, 12); cstamp(a, 15); stamp_flush(a)
    if OPT.get('waitx', 0):
        a("s_waitcnt vmcnt(0)")
        a(f"s_add_u32 s62, s{S_NON}, {OPT['waitx']}")
        a("s_mov_b32 s63, 0")
        a.label("L_wx_spin")
        a("s_memrealtime s[64:65]"); a("s_waitcnt lgkmcnt(0)")
        a("s_add_u32 s63, s63, 1"); a("s_cmp_gt_u32 s63, 100000"); a("s_cbranch_scc1 L_wx_done")
        a("s_sub_u32 s66, s62, s64"); a("s_cmp_gt_i32 s66, 0"); a("s_cbranch_scc1 L_wx_spin")
        a.label("L_wx_done")
    if OPT.get('probe', -1) >= 0:
        a("s_waitcnt vmcnt(0)")
        a(f"s_sub_u32 s62, s60, s{S_NON}"); a(f"s_mul_i32 s62, s62, {OPT.get('probek', 8)}")
        a("s_memrealtime s[64:65]"); a("s_waitcnt lgkmcnt(0)")
        a("s_add_u32 s62, s62, s64")
        a("s_mov_b32 s63, 0")
        a.label("L_probe_spin")
        a("s_memrealtime s[64:65]"); a("s_waitcnt lgkmcnt(0)")
        a("s_add_u32 s63, s63, 1"); a("s_cmp_gt_u32 s63, 100000"); a("s_cbranch_scc1 L_probe_done")
        a("s_sub_u32 s66, s62, s64"); a("s_cmp_gt_i32 s66, 0"); a("s_cbranch_scc1 L_probe_spin")
        a.label("L_probe_done")
    a.label(f"L_end_{name}")
    a("s_endpgm")

def kernel3(a):
    global KIDX
    KIDX = 1
    name = "mha_p3_kernel"
    a(".p2align 8"); a(f".globl {name}"); a(f".type {name},@function"); a.label(name)
    a("s_cmp_ge_u32 s2, 256"); a(f"s_cbranch_scc1 L_end_{name}")
    a("s_load_dwordx16 s[16:31], s[0:1], 0")
    a("v_lshrrev_b32 v1, 6, v0"); a("v_and_b32 v0, 63, v0")
    a("s_lshr_b32 s5, s2, 1")
    a("s_and_b32 s6, s2, 1")
    a(f"v_readfirstlane_b32 s{S_WAVE}, v1")
    a("s_mul_i32 s6, s6, 9")
    a("s_waitcnt lgkmcnt(0)")
    stamp_init(a); stamp(a, 0); cstamp(a, 14)
    a(f"s_add_u32 s6, s6, s{S_WAVE}")
    srd(a, 32, P_WS, SZ_WS_USED); srd(a, 36, P_OUT, SZ_OUT)
    a("v_lshlrev_b32 v1, 4, v0")
    a("s_mul_i32 s45, s5, 18"); a("s_add_u32 s45, s45, s6"); a("s_lshl_b32 s45, s45, 10")
    a(f"s_add_u32 s45, s45, {WS_P}")
    for x in range(8):
        a(f"buffer_load_dwordx4 {vr(8+4*x,4)}, v1, s[32:35], s45 offen")
        if x < 7: a(f"s_add_u32 s45, s45, {128*18*1024}")
    a("v_and_b32 v2, 15, v0"); a("v_mul_u32_u24 v2, 1152, v2"); a("v_lshrrev_b32 v3, 4, v0")
    a("v_lshl_add_u32 v2, v3, 3, v2")
    a("s_lshr_b32 s46, s5, 4"); a("s_lshl_b32 s46, s46, 2"); a("s_and_b32 s47, s5, 3"); a("s_add_u32 s46, s46, s47")
    a(f"s_mul_i32 s46, s46, {32*1152}")
    a("s_lshr_b32 s47, s5, 2"); a("s_and_b32 s47, s47, 3"); a("s_mul_i32 s47, s47, 288"); a("s_add_u32 s46, s46, s47")
    a("s_and_b32 s47, s6, 1"); a(f"s_mul_i32 s47, s47, {16*1152}"); a("s_add_u32 s46, s46, s47")
    a("s_lshr_b32 s47, s6, 1"); a("s_lshl_b32 s47, s47, 5"); a("s_add_u32 s46, s46, s47")
    a("s_waitcnt vmcnt(0)")
    for v in range(4):
        for x in range(0, 8, 2): a(f"v_add_f32 v{8+4*x+v}, v{8+4*x+v}, v{12+4*x+v}")
    for v in range(4):
        a(f"v_add_f32 v{8+v}, v{8+v}, v{16+v}"); a(f"v_add_f32 v{24+v}, v{24+v}, v{32+v}")
    for v in range(4): a(f"v_add_f32 v{8+v}, v{8+v}, v{24+v}")
    a("v_cvt_pk_bf16_f32 v8, v8, v9"); a("v_cvt_pk_bf16_f32 v9, v10, v11")
    a("buffer_store_dwordx2 v[8:9], v2, s[36:39], s46 offen")
    if OPT['stamps']:
        a("s_waitcnt vmcnt(0)")
        stamp(a, 10); cstamp(a, 15)
        a(f"s_cmp_ge_u32 s{S_WAVE}, 8"); a("s_cbranch_scc1 L_end_mha_p3_kernel")
        stamp_flush(a, 44)
    a.label(f"L_end_{name}")
    a("s_endpgm")

def descriptor(a, name, vgpr, sgpr=102):
    a(f".amdhsa_kernel {name}")
    a(f".amdhsa_next_free_vgpr {vgpr}"); a(f".amdhsa_next_free_sgpr {sgpr}"); a(f".amdhsa_accum_offset {vgpr}")
    a(".amdhsa_group_segment_fixed_size 0"); a(".amdhsa_kernarg_size 64")
    a(".amdhsa_user_sgpr_count 2"); a(".amdhsa_user_sgpr_kernarg_segment_ptr 1")
    a(".amdhsa_system_sgpr_workgroup_id_x 1"); a(".end_amdhsa_kernel")

def main():
    out = sys.argv[1]
    for arg in sys.argv[2:]:
        if arg == "--stamps": OPT['stamps'] = True
        elif "=" in arg:
            k, v = arg.lstrip("-").split("="); OPT[k] = int(v)
    a = Asm()
    hdr = "; MHA block (Q-proj + attention + out-proj), generated by gen3.py\n"
    if OPT['dk']:
        hdr += "; @launch grid=(256,1,1) block=(512,1,1) lds=163840\n"
    else:
        hdr += "; @launch kernel=mha_a_kernel grid=(256,1,1) block=(512,1,1) lds=163840\n"
        if OPT.get('k3bf', 0): hdr += "; @launch kernel=mha_p3_kernel grid=(288,1,1) block=(256,1,1) lds=0\n"
        else: hdr += "; @launch kernel=mha_p3_kernel grid=(256,1,1) block=(576,1,1) lds=0\n"
    a('.amdgcn_target "amdgcn-amd-amdhsa--gfx950"'); a(".text")
    kernelA(a)
    if not OPT['dk']:
        if OPT.get('k3bf', 0): kernel3b(a)
        else: kernel3(a)
    a('.section .rodata,"a"'); a(".p2align 6"); descriptor(a, KNAME(), 256)
    if not OPT['dk']:
        a(".p2align 6"); descriptor(a, "mha_p3_kernel", 56)
    open(out, "w").write(hdr + a.text())

if __name__ == "__main__": main()
```

```python
import sys, struct

class Asm:
    def __init__(self): self.l = []
    def __call__(self, s=""):
        for x in s.split("\n"):
            x = x.strip()
            self.l.append(x if (x.endswith(":") or x.startswith(".")) else "  " + x)
    def label(self, s): self.l.append(s + ":")
    def text(self): return "\n".join(self.l) + "\n"

def vr(b, n=1): return f"v{b}" if n == 1 else f"v[{b}:{b+n-1}]"
def f32hex(x): return "0x%08x" % struct.unpack("<I", struct.pack("<f", x))[0]

P_X, P_K, P_V, P_WQ, P_WO, P_OUT, P_DBG, P_WS = 16, 18, 20, 22, 24, 26, 28, 30
SZ_X, SZ_KV, SZ_W, SZ_OUT = 1179648, 8388608, 4718592, 1179648
WS_O = 0
WS_P = 8 << 20
WS_F = 28 << 20
WS_F2 = (28 << 20) + (1 << 19)
WS_D = 8 << 20
WS_STAMP = 32 << 20
SZ_WS_USED = 64 << 20
S_WAVE, S_X, S_R, S_J, S_G, S_H = 3, 4, 5, 6, 9, 10

OPT = dict(stamps=False, fast=1, spin_max=2000000, kvmode=21, flagpos=3, xonce=1, vearly=1, woearly=1, d_sleep=1, d_sleep2=0, o_sleep=1, k_nt=1, v_nt=1, wot_pos=8, dk=1)

def srd(a, base, ptr, size, add=0):
    if add:
        a(f"s_add_u32 s{base}, s{ptr}, {add}"); a(f"s_addc_u32 s{base+1}, s{ptr+1}, 0")
        a(f"s_and_b32 s{base+1}, s{base+1}, 0xffff")
    else:
        a(f"s_mov_b32 s{base}, s{ptr}"); a(f"s_and_b32 s{base+1}, s{ptr+1}, 0xffff")
    a(f"s_mov_b32 s{base+2}, {size}"); a(f"s_mov_b32 s{base+3}, 0x00020000")

def prologue(a, name, nwg=256):
    a(".p2align 8"); a(f".globl {name}"); a(f".type {name},@function"); a.label(name)
    a(f"s_cmp_ge_u32 s2, {nwg}"); a(f"s_cbranch_scc1 L_end_{name}")
    if OPT['stamps'] and OPT.get('entrystamp', 0): a("s_memrealtime s[96:97]")
    a("s_load_dwordx16 s[16:31], s[0:1], 0")
    a("v_lshrrev_b32 v1, 6, v0"); a("v_and_b32 v0, 63, v0")
    a(f"s_and_b32 s{S_X}, s2, 7"); a(f"s_lshr_b32 s{S_R}, s2, 3")
    a(f"v_readfirstlane_b32 s{S_WAVE}, v1")
    a(f"s_and_b32 s{S_J}, s{S_R}, 3"); a(f"s_lshr_b32 s{S_G}, s{S_R}, 2")
    a(f"s_lshl_b32 s{S_H}, s{S_X}, 2"); a(f"s_add_u32 s{S_H}, s{S_H}, s{S_J}")
    if OPT['stamps'] or not OPT.get('latewait', 1): a("s_waitcnt lgkmcnt(0)")

def kwait(a):
    if not OPT['stamps'] and OPT.get('latewait', 1): a("s_waitcnt lgkmcnt(0)")

KIDX = 0
CUR = {}
def tstamp(a, idx):
    if OPT.get('tailstamps', 0): stamp(a, idx, force=True)
def stamp(a, idx, force=False):
    if OPT.get('probe', -1) == idx and CUR.get('compute') and (force or not (OPT.get('tailstamps', 0) and idx in (1,2,3,4,13))):
        a("s_memrealtime s[60:61]"); a("s_waitcnt lgkmcnt(0)")
        return
    if not OPT['stamps']: return
    if OPT.get('tailstamps', 0) and not force and idx in (1,2,3,4,13) and CUR.get('compute'): return
    a(f"s_memrealtime s[{60+2*idx}:{61+2*idx}]"); a("s_waitcnt lgkmcnt(0)")
def cstamp(a, idx):
    if not OPT['stamps']: return
    a(f"s_memtime s[{60+2*idx}:{61+2*idx}]"); a("s_waitcnt lgkmcnt(0)")
def stamp_init(a):
    if not OPT['stamps']: return
    for i in range(16): a(f"s_mov_b64 s[{60+2*i}:{61+2*i}], 0")
def stamp_flush(a, vb=250):
    if not OPT['stamps']: return
    srd(a, 92, P_WS, 256*16*16*8, add=WS_STAMP + KIDX*256*8*16*8)
    a("s_lshl_b32 s96, s2, 3"); a(f"s_add_u32 s96, s96, s{S_WAVE}"); a("s_lshl_b32 s96, s96, 7")
    a(f"v_mov_b32 v{vb+2}, 0")
    for i in range(16):
        a(f"v_mov_b32 v{vb}, s{60+2*i}"); a(f"v_mov_b32 v{vb+1}, s{61+2*i}")
        a(f"buffer_store_dwordx2 v[{vb}:{vb+1}], v{vb+2}, s[92:95], s96 offen offset:{i*8}")
        a("s_nop 1")
    a("s_waitcnt vmcnt(0)")

L_K = 98304; L_V = 131072; NCH = 9
W_SLOT = 36864

def dma(a, voff, srdb, soff, off=0, nt=False, fl=""):
    a(f"buffer_load_dwordx4 v{voff}, s[{srdb}:{srdb+3}], s{soff} offen" + (f" offset:{off}" if off else "") + (" nt" if nt else "") + fl + " lds")
def FL(key):
    return {0: "", 1: " sc1", 2: " sc0", 3: " sc0 sc1"}[OPT.get(key, 0)]

V_WOV = 16
def wo_prep(a):
    srd(a, 52, P_WO, SZ_W)
    for t in range(9):
        a(f"v_add_u32 v1, {64*t}, v0")
        a("v_mul_u32_u24 v2, 3641, v1")
        a("v_lshrrev_b32 v2, 16, v2")
        a("v_mul_u32_u24 v3, 18, v2")
        a("v_sub_u32 v3, v1, v3")
        a("v_lshlrev_b32 v3, 4, v3")
        a("v_mul_u32_u24 v2, 1152, v2")
        a(f"v_add_u32 v{V_WOV+t}, v2, v3")
    a(f"s_mul_i32 s56, s{S_J}, 288")
def wo_issue(a, slot, q0, nq):
    a(f"s_add_u32 s57, s{S_J}, {slot}"); a("s_and_b32 s57, s57, 3")
    a(f"s_lshl_b32 s58, s{S_X}, 2"); a("s_add_u32 s57, s57, s58")
    a(f"s_mul_i32 s57, s57, {128*1152}"); a("s_add_u32 s57, s57, s56")
    if q0: a(f"s_add_u32 s57, s57, {q0*32*1152}")
    a(f"s_mov_b32 m0, {slot*W_SLOT + q0*32*288}"); a("s_nop 0")
    for blk in range(nq):
        for t in range(9):
            dma(a, V_WOV + t, 52, 57, fl=FL('wofl'))
            if not (blk == nq - 1 and t == 8):
                a("s_add_u32 m0, m0, 1024")
                if t == 8: a(f"s_add_u32 s57, s57, {32*1152}")
                else: a("s_nop 0")

def loader_tail(a, role):
    a("s_barrier")
    stamp(a, 8)
    if role < 2:
        wo_issue(a, 0, 2 * role, 2); wo_issue(a, 1, 2 * role, 2)
    stamp(a, 9)
    if OPT.get('vearly', 0):
        if role < 2: a("s_waitcnt vmcnt(18)")
        a("s_barrier")
    else:
        if role == 3: a("s_waitcnt vmcnt(0)")
        a("s_barrier")
        if role < 2: a("s_waitcnt vmcnt(18)")
        a("s_barrier")
    if OPT.get('woearly', 0):
        wo_issue(a, 2, role, 1)
        wo_issue(a, 3, role, 1)
        stamp(a, 10)
        if role < 2: a("s_waitcnt vmcnt(18)")
        a("s_barrier")
    else:
        if role < 2: a("s_waitcnt vmcnt(0)")
        a("s_barrier")
        wo_issue(a, 2, role, 1)
        wo_issue(a, 3, role, 1)
        stamp(a, 10)
    a("s_waitcnt vmcnt(9)")
    a("s_barrier")
    a("s_waitcnt vmcnt(0)")
    stamp(a, 11)
    a("s_barrier")

def loader_ring(a, which):
    SRD = 32; SO = 40
    if which == 'wq':
        a("v_lshrrev_b32 v1, 4, v0"); a("v_and_b32 v2, 15, v0")
        a("v_lshlrev_b32 v3, 2, v1"); a("v_xor_b32 v3, v3, v2"); a("v_lshlrev_b32 v3, 4, v3")
        a("v_lshlrev_b32 v4, 13, v1"); a("v_add_u32 v4, v4, v3")
        a(f"s_lshl_b32 s{SO}, s{S_H}, 8")
        def issue(kc):
            a(f"s_mov_b32 m0, {(kc%3)*32768}")
            for t in range(16):
                if t == 0: a("s_nop 0")
                dma(a, 4, SRD, SO, fl=FL('ringfl'))
                a(f"s_add_u32 s{SO}, s{SO}, 32768")
                if t < 15:
                    a("s_add_u32 m0, m0, 1024"); a("s_nop 0")
    else:
        a("v_lshrrev_b32 v1, 3, v0"); a("v_mul_u32_u24 v1, 1152, v1")
        a("v_and_b32 v2, 7, v0"); a("v_lshrrev_b32 v3, 4, v0"); a("v_xor_b32 v2, v2, v3")
        a("v_lshlrev_b32 v4, 4, v2"); a("v_add_u32 v4, v4, v1")
        a("v_xor_b32 v2, 4, v2"); a("v_lshlrev_b32 v5, 4, v2"); a("v_add_u32 v5, v5, v1")
        a(f"s_mul_i32 s{SO+1}, s{S_G}, 147456")
        def issue(kc):
            a(f"s_mov_b32 m0, {(kc%3)*32768 + 16384}")
            a(f"s_add_u32 s{SO}, s{SO+1}, {kc*128}")
            for T in range(16):
                dma(a, 4 + (T & 1), SRD, SO, fl=FL('ringfl'))
                if T < 15:
                    a("s_add_u32 m0, m0, 1024"); a(f"s_add_u32 s{SO}, s{SO}, 9216")
    kv_pos(a, 43, 'k')
    if which == 'wq':
        a("v_lshrrev_b32 v8, 1, v0"); a("v_and_b32 v9, 1, v0")
        a("v_lshlrev_b32 v8, 13, v8"); a("v_lshl_add_u32 v8, v9, 7, v8")
        a(f"s_lshl_b32 s46, s{S_G}, {5+13}"); a(f"s_lshl_b32 s47, s{S_H}, 8"); a("s_add_u32 s46, s46, s47")
        def touch(part):
            if part == 0:
                a(f"buffer_load_dword v10, v8, s[{SRD}:{SRD+3}], s46 offen")
            else:
                a(f"s_add_u32 s46, s46, {256*8192}")
                a(f"buffer_load_dword v10, v8, s[{SRD}:{SRD+3}], s46 offen")
                a(f"s_lshl_b32 s46, s{S_G}, {3+13}"); a("s_add_u32 s46, s46, s47"); a(f"s_add_u32 s46, s46, {512*8192}")
                a("s_mov_b64 exec, 0xffff")
                a(f"buffer_load_dword v10, v8, s[{SRD}:{SRD+3}], s46 offen")
                a("s_mov_b64 exec, -1")
        NT1 = 2
    else:
        if OPT.get('xonce', 0):
            a("v_mul_u32_u24 v8, 7282, v0"); a("v_lshrrev_b32 v8, 16, v8")
            a("v_mul_u32_u24 v9, 9, v8"); a("v_sub_u32 v9, v0, v9")
            a("v_mul_u32_u24 v8, 1152, v8"); a("v_lshl_add_u32 v8, v9, 7, v8")
            a(f"s_mul_i32 s46, s{S_G}, 147456"); a(f"s_mul_i32 s47, s{S_H}, {4*1152}"); a("s_add_u32 s46, s46, s47")
            def touch(part):
                if part == 0:
                    a("s_mov_b32 exec_lo, -1"); a("s_mov_b32 exec_hi, 15")
                    a(f"buffer_load_dword v10, v8, s[{SRD}:{SRD+3}], s46 offen")
                    a("s_mov_b64 exec, -1")
            NT1 = 0
        else:
            a("v_and_b32 v9, 31, v0"); a("v_mul_u32_u24 v9, 1152, v9")
            a("v_lshrrev_b32 v8, 5, v0"); a("v_lshl_add_u32 v8, v8, 7, v9")
            a(f"s_mul_i32 s46, s{S_G}, 147456"); a(f"s_mul_i32 s47, s{S_J}, {32*1152}"); a("s_add_u32 s46, s46, s47")
            def touch(part):
                if part == 0:
                    a(f"buffer_load_dword v10, v8, s[{SRD}:{SRD+3}], s46 offen")
                else:
                    for t in range(1, 4):
                        a(f"buffer_load_dword v10, v8, s[{SRD}:{SRD+3}], s46 offen offset:{256*t}")
                    a("s_mov_b64 exec, 0xffffffff")
                    a(f"buffer_load_dword v10, v9, s[{SRD}:{SRD+3}], s46 offen offset:1024")
                    a("s_mov_b64 exec, -1")
            NT1 = 4
    kwait(a)
    srd(a, SRD, P_WQ if which == 'wq' else P_X, SZ_W if which == 'wq' else SZ_X)
    touch(0)
    issue(0); stamp(a, 1)
    touch(1)
    a("s_barrier")
    bx(a, -1, "r" + which)
    issue(1)
    stamp(a, 2)
    a(f"s_waitcnt vmcnt({16 + NT1})")
    stamp(a, 3)
    a("s_barrier")
    bx(a, 0, "r" + which)
    issue(2)
    for i in range(1, NCH):
        last_issued = min(i + 1, NCH - 1)
        a(f"s_waitcnt vmcnt({(last_issued - i) * 16})")
        a("s_barrier")
        if which == 'wq' and i in (1,2,3,4): stamp(a, {1:4,2:5,3:6,4:12}[i])
        if which == 'x' and i in (5,6,7,8): stamp(a, {5:4,6:5,7:6,8:12}[i])
        if i < 8: bx(a, i, "r" + which)
        if i + 2 < NCH: issue(i + 2)
        if i == 7: wo_prep(a)
    stamp(a, 7)
    loader_tail(a, 0 if which == 'wq' else 1)

def kv_pos(a, sdst, which):
    m = OPT['kvmode']
    if m == 10:
        tab = [-1, 2, 4, 7]
    elif m == 11: tab = [7, 7, 7, 7]
    elif m == 12: tab = [-1, -1, -1, -1]
    elif m == 13: tab = [1, 1, 6, 6]
    elif m == 14: tab = [-1, 1, 4, 7]
    elif m == 15: tab = [0, 3, 5, 7]
    elif m == 16: tab = [2, 7, 2, 7]
    elif m == 17: tab = [3, 5, 7, 7]
    elif m == 20: tab = [-1, 1, 3, 5]
    elif m == 21: tab = [-1, 2, 4, 6]
    elif m == 22: tab = [-1, -1, 3, 3]
    elif m == 23: tab = [-1, 0, 2, 4]
    elif m == 24: tab = [0, 2, 4, 6]
    elif m == 25: tab = [-1, -1, -1, -1]
    packed = sum(((p + 1) & 15) << (4 * k) for k, p in enumerate(tab))
    a(f"s_and_b32 s{sdst}, s{S_G}, 3"); a(f"s_lshl_b32 s{sdst}, s{sdst}, 2")
    a(f"s_lshr_b32 s{sdst}, {packed}, s{sdst}"); a(f"s_and_b32 s{sdst}, s{sdst}, 15")

def bx(a, p, tag):
    if p >= 6: return
    a(f"s_cmp_lg_u32 s43, {p+1}"); a(f"s_cbranch_scc1 L_bx_{tag}_{p+1}")
    a("s_barrier")
    a.label(f"L_bx_{tag}_{p+1}")

def kv_loop(a, tag, issue_fn, extra_fn=None, extra_pos=None):
    a("s_mov_b32 s59, 0")
    a.label(f"L_{tag}_loop")
    a("s_cmp_lg_u32 s59, s43"); a(f"s_cbranch_scc1 L_{tag}_skip")
    stamp(a, 3)
    issue_fn()
    stamp(a, 4)
    a(f"s_cmp_ge_u32 s59, 7"); a(f"s_cbranch_scc1 L_{tag}_skip")
    a("s_barrier")
    a.label(f"L_{tag}_skip")
    if extra_fn is not None:
        a(f"s_cmp_lg_u32 s59, {extra_pos}"); a(f"s_cbranch_scc1 L_{tag}_skip2")
        extra_fn()
        a.label(f"L_{tag}_skip2")
    a("s_barrier")
    a("s_add_u32 s59, s59, 1")
    a("s_cmp_le_u32 s59, 8"); a(f"s_cbranch_scc1 L_{tag}_loop")

def loader_k(a):
    SRD = 32; SO = 40
    kwait(a)
    srd(a, SRD, P_K, SZ_KV)
    a("v_lshrrev_b32 v1, 4, v0"); a("v_and_b32 v2, 15, v0"); a("v_xor_b32 v2, v2, v1")
    a("v_lshlrev_b32 v2, 4, v2"); a("v_lshl_add_u32 v4, v1, 8, v2")
    a("v_xor_b32 v5, 64, v4"); a("v_xor_b32 v6, 128, v4"); a("v_xor_b32 v7, 192, v4")
    wo_prep(a)
    a("v_and_b32 v8, 15, v0"); a("v_mul_u32_u24 v8, 1152, v8")
    a("v_lshrrev_b32 v9, 4, v0"); a("v_lshl_add_u32 v9, v9, 7, v8")
    kv_pos(a, 43, 'k')
    if OPT.get('wswarm', 1):
        srd(a, 44, P_WS, SZ_WS_USED); srd(a, 48, P_OUT, SZ_OUT)
        a(f"s_lshl_b32 s40, s{S_G}, 5"); a(f"s_add_u32 s40, s40, s{S_H}"); a("s_lshl_b32 s40, s40, 15")
        a(f"s_lshl_b32 s41, s{S_G}, 2"); a(f"s_add_u32 s41, s41, s{S_J}"); a("s_lshl_b32 s41, s41, 2")
        a("s_mul_i32 s42, s41, 73728"); a(f"s_add_u32 s42, s42, {WS_D}")
        a(f"s_mul_i32 s45, s{S_X}, 1152") if False else None
        a(f"s_mul_i32 s58, s{S_X}, 1152"); a("s_add_u32 s42, s42, s58")
        a("s_lshl_b32 s41, s41, 8"); a(f"s_add_u32 s41, s41, {WS_F2}")
        a("v_mov_b32 v11, 0")
        a("s_mov_b64 exec, 1")
        a("buffer_load_dword v10, v11, s[44:47], s40 offen")
        a("buffer_load_dword v10, v11, s[44:47], s42 offen")
        a("buffer_load_dword v10, v11, s[44:47], s41 offen sc1")
        a(f"s_lshl_b32 s40, s{S_G}, 7"); a(f"s_lshl_b32 s41, s{S_X}, 1"); a("s_add_u32 s40, s40, s41"); a("s_mul_i32 s40, s40, 1152")
        a(f"s_mul_i32 s41, s{S_J}, 288"); a("s_add_u32 s40, s40, s41")
        a("buffer_load_dword v10, v11, s[48:51], s40 offen")
        a("s_mov_b64 exec, -1")
    if OPT.get('tlbwarm', 0):
        a(f"s_lshl_b32 s{SO}, s{S_G}, 7"); a(f"s_add_u32 s{SO}, s{SO}, s{S_H}"); a(f"s_lshl_b32 s{SO}, s{SO}, 13")
        a("v_lshlrev_b32 v11, 18, v0")
        a("s_mov_b64 exec, 15")
        a(f"buffer_load_dword v10, v11, s[{SRD}:{SRD+3}], s{SO} offen nt")
        a("s_mov_b64 exec, -1")
    a("s_barrier")
    stamp(a, 1)
    def issue():
        a(f"s_lshl_b32 s{SO}, s{S_G}, 7"); a(f"s_add_u32 s{SO}, s{SO}, s{S_H}"); a(f"s_lshl_b32 s{SO}, s{SO}, 13")
        for w in range(4):
            for hf in range(2):
                a(f"s_mov_b32 m0, {L_K + w*8192 + hf*4096}"); a("s_nop 0")
                for t4 in range(4):
                    t = hf * 4 + t4
                    dma(a, 4 + (t >> 1), SRD, SO, off=t4 * 1024, nt=bool(OPT['k_nt']))
                a(f"s_add_u32 s{SO}, s{SO}, {4096 if hf == 0 else 32*8192 - 4096}")
    def wotouch():
        a(f"s_lshl_b32 s{SO}, s{S_X}, 5"); a(f"s_add_u32 s{SO}, s{SO}, s{S_R}")
        a(f"s_mul_i32 s{SO}, s{SO}, {16*1152}")
        a(f"buffer_load_dword v10, v9, s[52:55], s{SO} offen")
        a(f"buffer_load_dword v10, v9, s[52:55], s{SO} offen offset:512")
        a("s_mov_b64 exec, 0xffff")
        a(f"buffer_load_dword v10, v8, s[52:55], s{SO} offen offset:1024")
        a("s_mov_b64 exec, -1")
    kv_loop(a, "k", issue, wotouch, OPT['wot_pos'])
    a("s_waitcnt vmcnt(3)")
    stamp(a, 7)
    loader_tail(a, 2)

def loader_v(a):
    SRD = 32; SO = 40
    kwait(a)
    srd(a, SRD, P_V, SZ_KV)
    a("s_cmp_lg_u32 s2, 0"); a("s_cbranch_scc1 L_nononce")
    srd(a, 48, P_DBG, 256)
    a("s_memrealtime s[42:43]"); a("s_waitcnt lgkmcnt(0)")
    a("s_or_b32 s42, s42, 1")
    a("v_mov_b32 v8, s42"); a("v_mov_b32 v9, s43"); a("v_mov_b32 v1, 0")
    a("s_mov_b64 exec, 1")
    a("buffer_store_dwordx2 v[8:9], v1, s[48:51], 0 offen sc1")
    a("s_mov_b64 exec, -1")
    a.label("L_nononce")
    if OPT['fast']:
        srd(a, 48, P_DBG, 256)
        a("s_getreg_b32 s42, hwreg(HW_REG_XCC_ID)")
        a("s_and_b32 s42, s42, 15")
        a("s_cmp_ge_u32 s42, 8"); a("s_cbranch_scc1 L_noxcc")
        a("s_mul_i32 s43, s42, s42"); a("s_lshl_b32 s43, s43, 5"); a("s_add_u32 s42, s42, s43")
        a("s_add_u32 s42, s42, 0x2000")
        a(f"s_lshl_b32 s43, s{S_G}, 3"); a(f"s_add_u32 s43, s43, s{S_X}")
        a("s_and_b32 s41, s43, 1"); a("s_lshl_b32 s41, s41, 4"); a("s_lshl_b32 s42, s42, s41")
        a("s_lshr_b32 s43, s43, 1"); a("s_lshl_b32 s43, s43, 2"); a("s_add_u32 s43, s43, 128")
        a("v_mov_b32 v8, s42"); a("v_mov_b32 v1, 0")
        a("s_mov_b64 exec, 1")
        a("buffer_atomic_add v8, v1, s[48:51], s43 offen")
        a("s_mov_b64 exec, -1")
        a.label("L_noxcc")
    a("v_lshrrev_b32 v1, 4, v0"); a("v_and_b32 v2, 15, v0"); a("v_lshlrev_b32 v3, 1, v1")
    a("v_xor_b32 v2, v2, v3"); a("v_lshlrev_b32 v2, 4, v2"); a("v_lshl_add_u32 v4, v1, 8, v2")
    a("v_xor_b32 v5, 128, v4")
    wo_prep(a)
    kv_pos(a, 43, 'v')
    if OPT.get('tlbwarm', 0):
        a(f"s_lshl_b32 s{SO}, s{S_G}, 7"); a(f"s_add_u32 s{SO}, s{SO}, s{S_H}"); a(f"s_lshl_b32 s{SO}, s{SO}, 13")
        a("v_lshlrev_b32 v11, 18, v0")
        a("s_mov_b64 exec, 15")
        a(f"buffer_load_dword v10, v11, s[{SRD}:{SRD+3}], s{SO} offen nt")
        a("s_mov_b64 exec, -1")
    a("s_barrier")
    stamp(a, 1)
    def issue():
        a(f"s_lshl_b32 s{SO}, s{S_G}, 7"); a(f"s_add_u32 s{SO}, s{SO}, s{S_H}"); a(f"s_lshl_b32 s{SO}, s{SO}, 13")
        for w in range(4):
            for hf in range(2):
                a(f"s_mov_b32 m0, {L_V + w*8192 + hf*4096}"); a("s_nop 0")
                for t4 in range(4):
                    t = hf * 4 + t4
                    dma(a, 4 + ((t >> 1) & 1), SRD, SO, off=t4 * 1024, nt=bool(OPT['v_nt']))
                a(f"s_add_u32 s{SO}, s{SO}, {4096 if hf == 0 else 32*8192 - 4096}")
    kv_loop(a, "v", issue)
    if OPT.get('vearly', 0): a("s_waitcnt vmcnt(0)")
    stamp(a, 7)
    loader_tail(a, 3)

V_XA = [4, 8]; V_WA = [12, 248]
V_A = [16, 32]; V_B = [48, 52]; V_ACC = 64
V_QF = 128; V_KF = 160; V_S = 192; V_VF = 208; V_PF = 240; V_OF = 128
V_KA = 56; V_VA = 60; V_CLW = 61; V_NONCE = 62
SC_SCALE = 0.08838834764831845 * 1.4426950408889634

def gemm1_addrs(a):
    a("v_and_b32 v1, 31, v0"); a("v_lshrrev_b32 v2, 5, v0"); a("v_bfe_u32 v3, v0, 1, 3")
    a("v_xor_b32 v2, v2, v3"); a("v_lshlrev_b32 v2, 4, v2"); a("v_lshl_add_u32 v2, v1, 7, v2")
    a(f"s_lshl_b32 s40, s{S_WAVE}, 12"); a("s_add_u32 s40, s40, 16384")
    a("v_add_u32 v2, s40, v2")
    for ks in range(4):
        a(f"v_xor_b32 v{V_XA[0]+ks}, {32*ks}, v2"); a(f"v_add_u32 v{V_XA[1]+ks}, 65536, v{V_XA[0]+ks}")
    a("v_bfe_u32 v1, v0, 2, 2"); a("v_lshrrev_b32 v2, 5, v0"); a("v_lshl_add_u32 v2, v2, 3, v1")
    a("v_lshlrev_b32 v2, 8, v2"); a("v_and_b32 v3, 1, v0"); a("v_lshl_add_u32 v2, v3, 5, v2")
    a("v_bfe_u32 v3, v0, 4, 1"); a("v_lshl_add_u32 v2, v3, 4, v2")
    a("v_bfe_u32 v3, v0, 1, 1"); a("v_lshl_add_u32 v2, v3, 3, v2")
    a("v_lshl_add_u32 v2, v1, 6, v2")
    for dt in range(4):
        a(f"v_xor_b32 v{V_WA[0]+dt}, {64*dt}, v2"); a(f"v_add_u32 v{V_WA[1]+dt}, 65536, v{V_WA[0]+dt}")

def attn_addrs(a):
    a("v_and_b32 v1, 15, v0"); a("v_lshrrev_b32 v2, 4, v0"); a("v_xor_b32 v2, v2, v1")
    a("v_lshlrev_b32 v2, 4, v2"); a("v_lshrrev_b32 v3, 2, v1"); a("v_lshl_add_u32 v2, v3, 11, v2")
    a("v_and_b32 v3, 3, v1"); a("v_lshl_add_u32 v2, v3, 8, v2")
    a(f"s_lshl_b32 s40, s{S_WAVE}, 13"); a(f"s_add_u32 s40, s40, {L_K}")
    a("v_add_u32 v2, s40, v2")
    for st in range(4): a(f"v_xor_b32 v{V_KA+st}, {64*st}, v2")
    a("v_lshrrev_b32 v1, 4, v0"); a("v_bfe_u32 v3, v0, 2, 2"); a("v_lshl_add_u32 v2, v1, 3, v3")
    a("v_lshlrev_b32 v2, 8, v2"); a("v_and_b32 v1, 1, v1"); a("v_lshl_add_u32 v3, v1, 2, v3")
    a("v_lshl_add_u32 v2, v3, 5, v2"); a("v_and_b32 v3, 3, v0"); a("v_lshl_add_u32 v2, v3, 3, v2")
    a(f"s_lshl_b32 s40, s{S_WAVE}, 13"); a(f"s_add_u32 s40, s40, {L_V}")
    a(f"v_add_u32 v{V_VA}, s40, v2")

def g1_reads(n):
    i, ks = divmod(n, 4)
    slot = i % 3; st = n & 1; hs = 1 if slot == 2 else 0; so = (slot & 1) * 32768 if slot < 2 else 0
    r = [f"ds_read_b128 {vr(V_B[st],4)}, v{V_XA[hs]+ks} offset:{so}"]
    for dt in range(4):
        base = V_A[st] + 4 * dt
        off = so + ks * 4096
        r.append(f"ds_read_b64_tr_b16 {vr(base,2)}, v{V_WA[hs]+dt} offset:{off}")
        r.append(f"ds_read_b64_tr_b16 {vr(base+2,2)}, v{V_WA[hs]+dt} offset:{off+1024}")
    return r

def gemm1(a):
    NS = NCH * 4
    kv_pos(a, 43, 'k')
    a("s_barrier")
    bx(a, -1, "c")
    a("s_barrier")
    stamp(a, 1)
    for r in g1_reads(0): a(r)
    for n in range(NS):
        i, ks = divmod(n, 4); st = n & 1
        nxt = g1_reads(n + 1) if n + 1 < NS else []
        def mf(dt):
            c = "0" if n == 0 else vr(V_ACC + 16 * dt, 16)
            a(f"v_mfma_f32_32x32x16_bf16 {vr(V_ACC+16*dt,16)}, {vr(V_A[st]+4*dt,4)}, {vr(V_B[st],4)}, {c}")
        if ks == 3:
            for dt in range(4):
                a(f"s_waitcnt lgkmcnt({[6,4,2,0][dt]})")
                if dt == 3 and nxt:
                    bx(a, i, "c")
                    a("s_barrier")
                    for r in nxt[:5]: a(r)
                mf(dt)
            for r in nxt[5:]: a(r)
        else:
            first_after_boundary = (ks == 0 and n > 0)
            for dt in range(4):
                a(f"s_waitcnt lgkmcnt({[6,7,8,9][dt]})")
                mf(dt)
                if dt < 3:
                    for r in nxt[3*dt:3*dt+3]: a(r)
        if n == 33 and OPT.get('nonce_in', 1): get_nonce(a)
        if n == 24:
            a(f"buffer_load_dwordx2 {vr(V_NONCE,2)}, v1, s[36:39], 0 offen sc1")
            if OPT['fast']:
                a(f"buffer_load_dword v{V_CLW}, v1, s[36:39], s40 offen sc1")
                a(f"buffer_load_dword v2, v1, s[44:47], s42 offen sc1")

def attention(a):
    VE = OPT.get('vearly', 0)
    a("s_barrier")
    stamp(a, 3)
    for ai in range(2):
        for st in range(4):
            a(f"ds_read_b128 {vr(V_KF+(ai*4+st)*4,4)}, v{V_KA+st} offset:{ai*1024}")
    def vreads(T0, T1):
        for T in range(T0, T1):
            if T: a(f"v_xor_b32 v1, {32*T}, v{V_VA}")
            ad = "v1" if T else f"v{V_VA}"
            a(f"ds_read_b64_tr_b16 {vr(V_VF+4*T,2)}, {ad}")
            a(f"ds_read_b64_tr_b16 {vr(V_VF+4*T+2,2)}, {ad} offset:1024")
    for dt in range(4):
        for i in range(8):
            a(f"v_cvt_pk_bf16_f32 v{V_QF+8*dt+i}, v{V_ACC+16*dt+2*i}, v{V_ACC+16*dt+2*i+1}")
        if VE and dt == 1:
            a("s_waitcnt lgkmcnt(0)"); vreads(0, 4)
    a("s_nop 1")
    for dt in range(4):
        for i in range(4):
            a(f"v_permlane16_swap_b32 v{V_QF+8*dt+i}, v{V_QF+8*dt+4+i}")
    if VE:
        a("s_waitcnt lgkmcnt(4)"); vreads(4, 8)
    else:
        a("s_waitcnt lgkmcnt(0)")
    for st in range(4):
        for ai in range(2):
            for qt in range(2):
                d = vr(V_S + (ai*2+qt)*4, 4)
                c = "0" if st == 0 else d
                a(f"v_mfma_f32_16x16x32_bf16 {d}, {vr(V_KF+(ai*4+st)*4,4)}, {vr(V_QF+8*st+4*qt,4)}, {c}")
    if VE:
        a("s_waitcnt lgkmcnt(0)")
    def S(ai, qt, v): return V_S + (ai*2+qt)*4 + v
    M = [48, 49]; T_ = [50, 51]; SUM = [52, 53]
    a("s_nop 7")
    for qt in range(2): a(f"v_max3_f32 v{M[qt]}, v{S(0,qt,0)}, v{S(0,qt,1)}, v{S(0,qt,2)}")
    for qt in range(2): a(f"v_max3_f32 v{M[qt]}, v{M[qt]}, v{S(0,qt,3)}, v{S(1,qt,0)}")
    for qt in range(2): a(f"v_max3_f32 v{M[qt]}, v{M[qt]}, v{S(1,qt,1)}, v{S(1,qt,2)}")
    for qt in range(2): a(f"v_max_f32 v{M[qt]}, v{M[qt]}, v{S(1,qt,3)}")
    def xlane(regs, tmps, op):
        for sw in ("v_permlane16_swap_b32", "v_permlane32_swap_b32"):
            for qt in range(2): a(f"v_mov_b32 v{tmps[qt]}, v{regs[qt]}")
            a("s_nop 0")
            for qt in range(2): a(f"{sw} v{tmps[qt]}, v{regs[qt]}")
            a("s_nop 0")
            for qt in range(2): a(f"{op} v{regs[qt]}, v{regs[qt]}, v{tmps[qt]}")
    xlane(M, T_, "v_max_f32")
    a(f"s_mov_b32 s41, {f32hex(SC_SCALE)}")
    for qt in range(2): a(f"v_mul_f32 v{M[qt]}, s41, v{M[qt]}")
    for ai in range(2):
        for v in range(4):
            for qt in range(2): a(f"v_fma_f32 v{S(ai,qt,v)}, v{S(ai,qt,v)}, s41, -v{M[qt]}")
    for ai in range(2):
        for v in range(4):
            for qt in range(2): a(f"v_exp_f32 v{S(ai,qt,v)}, v{S(ai,qt,v)}")
    a("s_nop 0")
    for qt in range(2): a(f"v_add_f32 v{SUM[qt]}, v{S(0,qt,0)}, v{S(0,qt,1)}")
    for (ai, v) in [(0,2),(0,3),(1,0),(1,1),(1,2),(1,3)]:
        for qt in range(2): a(f"v_add_f32 v{SUM[qt]}, v{SUM[qt]}, v{S(ai,qt,v)}")
    xlane(SUM, T_, "v_add_f32")
    for qt in range(2): a(f"v_rcp_f32 v{SUM[qt]}, v{SUM[qt]}")
    a("s_nop 0")
    for ai in range(2):
        for v in range(4):
            for qt in range(2): a(f"v_mul_f32 v{S(ai,qt,v)}, v{S(ai,qt,v)}, v{SUM[qt]}")
    for qt in range(2):
        for ai in range(2):
            for h2 in range(2):
                a(f"v_cvt_pk_bf16_f32 v{V_PF+4*qt+2*ai+h2}, v{S(ai,qt,2*h2)}, v{S(ai,qt,2*h2+1)}")
    stamp(a, 4)
    if VE:
        a("s_nop 0")
    else:
        a("s_barrier")
        vreads(0, 6); a("s_waitcnt lgkmcnt(4)"); vreads(6, 8)
        a("s_waitcnt lgkmcnt(0)")
        a("s_barrier")
    def pv(T):
        for qt in range(2):
            a(f"v_mfma_f32_16x16x32_bf16 {vr(V_ACC+(T*2+qt)*4,4)}, {vr(V_VF+4*T,4)}, {vr(V_PF+4*qt,4)}, 0")
    def pack(p):
        for qt in range(2):
            for e in range(2):
                T = 2*p + e
                for h2 in range(2):
                    src = V_ACC + (T*2+qt)*4 + 2*h2
                    a(f"v_cvt_pk_bf16_f32 v{V_OF+(2*p+qt)*4+2*e+h2}, v{src}, v{src+1}")
    if OPT.get('ostin', 1):
        o_store(a)
        a("s_nop 0")
        for T in range(6): pv(T)
        pack(0); pv(6); a(OSTORES[0]); a(OSTORES[1]); pv(7)
        pack(1); a(OSTORES[2]); a(OSTORES[3])
        a("s_barrier")
        pack(2); a(OSTORES[4]); a(OSTORES[5])
        a("s_nop 1")
        pack(3); a(OSTORES[6]); a(OSTORES[7])
    else:
        for T in range(8): pv(T)
        if VE: a("s_barrier")
        a("s_nop 7")
        for p in range(4): pack(p)

V2_ACC = 16
V2_A = [88, 108]
V2_AD = [4, 5, 6, 12]
BUF = [160, 192, 224]

def p2_areads(slot, p, half, buf=None):
    r = []
    ad = V2_AD[slot]
    taus = range(0, 5) if half == 0 else range(5, 9)
    if buf is None: buf = half
    for k, tau in enumerate(taus):
        off = p * 32 * 288 + 32 * tau
        base = V2_A[buf] + 4 * k
        r.append(f"ds_read_b64_tr_b16 {vr(base,2)}, v{ad} offset:{off}")
        r.append(f"ds_read_b64_tr_b16 {vr(base+2,2)}, v{ad} offset:{off+16*288}")
    return r

def p2_bloads(a, slot, breg):
    a(f"s_add_u32 s45, s{S_J}, {slot}"); a("s_and_b32 s45, s45, 3"); a("s_add_u32 s45, s45, s44")
    a("s_lshl_b32 s45, s45, 2"); a(f"s_add_u32 s45, s45, s{S_WAVE}")
    a("s_lshl_b32 s46, s45, 13"); a("s_add_u32 s47, s46, 4096")
    for f in range(8):
        a(f"buffer_load_dwordx4 {vr(breg+4*f,4)}, v7, s[32:35], s{46 + f//4} offen offset:{(f%4)*1024} sc1")

S_NON = 52
S_FAST = 54

def get_nonce(a):
    a("s_waitcnt vmcnt(0)")
    a("v_mov_b32 v9, 0")
    a("s_mov_b32 s50, 0")
    a.label("L_nonce_chk")
    a(f"v_readfirstlane_b32 s{S_NON}, v{V_NONCE}"); a(f"v_readfirstlane_b32 s{S_NON+1}, v{V_NONCE+1}")
    a("s_nop 0")
    a(f"s_cmp_lg_u32 s{S_NON}, 0"); a("s_cbranch_scc1 L_nonce_ok")
    a(f"buffer_load_dwordx2 {vr(V_NONCE,2)}, v9, s[36:39], 0 offen sc1")
    a("s_add_u32 s50, s50, 1"); a("s_waitcnt vmcnt(0)")
    a(f"s_cmp_lt_u32 s50, {OPT['spin_max']}"); a("s_cbranch_scc1 L_nonce_chk")
    a.label("L_nonce_ok")
    a(f"s_mov_b32 s{S_FAST}, 0")
    if OPT['fast']:
        a(f"v_readfirstlane_b32 s55, v{V_CLW}")
        a(f"s_and_b32 s56, s{S_X}, 1"); a("s_lshl_b32 s56, s56, 4"); a("s_lshr_b32 s55, s55, s56")
        a("s_and_b32 s56, s55, 31")
        a("s_bfe_u32 s57, s55, 0x80005")
        a("s_bfe_u32 s55, s55, 0x3000d")
        a("s_mul_i32 s56, s56, s56"); a("s_lshl_b32 s57, s57, 2")
        a("s_cmp_eq_u32 s56, s57"); a(f"s_cselect_b32 s{S_FAST}, 1, 0")
        a("s_cmp_eq_u32 s55, 4"); a(f"s_cselect_b32 s{S_FAST}, s{S_FAST}, 0")
        if OPT['fast'] == 2: a(f"s_mov_b32 s{S_FAST}, 0")

def poll(a, tag, voff, soff, sleep=0):
    a("s_mov_b32 s50, 0")
    a.label(f"L_poll_{tag}")
    if sleep: a(f"s_sleep {sleep}")
    a(f"buffer_load_dwordx2 v[10:11], v{voff}, s[32:35], s{soff} offen sc1")
    a("s_add_u32 s50, s50, 1"); a("s_waitcnt vmcnt(0)")
    a(f"v_cmp_eq_u64 vcc, v[10:11], s[{S_NON}:{S_NON+1}]")
    a(f"s_cmp_ge_u32 s50, {OPT['spin_max']}"); a(f"s_cbranch_scc1 L_poll_{tag}_done")
    a("s_cmp_eq_u64 vcc, -1"); a(f"s_cbranch_scc0 L_poll_{tag}")
    a.label(f"L_poll_{tag}_done")

def flag_store(a, soff, mode):
    a(f"v_mov_b32 v10, s{S_NON}"); a(f"v_mov_b32 v11, s{S_NON+1}")
    a("s_mov_b64 exec, 1")
    if mode == 'dyn':
        a(f"s_cmp_eq_u32 s{S_FAST}, 0"); a("s_cbranch_scc1 L_flag_slow")
        a(f"buffer_store_dwordx2 v[10:11], v9, s[32:35], s{soff} offen")
        a("s_branch L_flag_join")
        a.label("L_flag_slow")
        a(f"buffer_store_dwordx2 v[10:11], v9, s[32:35], s{soff} offen sc1")
        a.label("L_flag_join")
    else:
        a(f"buffer_store_dwordx2 v[10:11], v9, s[32:35], s{soff} offen sc1")
    a("s_mov_b64 exec, -1")

def o_store(a):
    srd(a, 32, P_WS, SZ_WS_USED)
    a("v_lshlrev_b32 v7, 4, v0")
    a(f"s_lshl_b32 s40, s{S_G}, 5"); a(f"s_add_u32 s40, s40, s{S_H}"); a("s_lshl_b32 s40, s40, 2")
    a(f"s_add_u32 s40, s40, s{S_WAVE}"); a("s_lshl_b32 s40, s40, 13"); a("s_add_u32 s41, s40, 4096")
    global OSTORES
    OSTORES = [f"buffer_store_dwordx4 {vr(V_OF+4*f,4)}, v7, s[32:35], s{40 + f//4} offen offset:{(f%4)*1024} sc1" for f in range(8)]
    a("v_lshrrev_b32 v2, 4, v0"); a("v_bfe_u32 v3, v0, 2, 2"); a("v_lshl_add_u32 v2, v2, 2, v3")
    a("v_mul_u32_u24 v2, 288, v2"); a("v_and_b32 v3, 3, v0")
    a(f"v_lshl_add_u32 v{V2_AD[0]}, v3, 3, v2")
    for sl in range(1, 4): a(f"v_add_u32 v{V2_AD[sl]}, {sl*W_SLOT}, v{V2_AD[0]}")
    a(f"s_lshl_b32 s44, s{S_G}, 5"); a(f"s_lshl_b32 s45, s{S_X}, 2"); a("s_add_u32 s44, s44, s45")
    a(f"s_lshl_b32 s48, s{S_G}, 3"); a(f"s_add_u32 s48, s48, s{S_X}"); a("s_lshl_b32 s48, s48, 2")
    a(f"s_add_u32 s48, s48, s{S_WAVE}"); a("s_lshl_b32 s48, s48, 7"); a(f"s_add_u32 s48, s48, {WS_F}")
    a(f"s_lshl_b32 s49, s{S_J}, 3"); a("s_add_u32 s49, s49, s48")
    a("v_and_b32 v8, 3, v0"); a("v_lshlrev_b32 v8, 3, v8")

def bload_list(slot, breg):
    setup = [f"s_add_u32 s45, s{S_J}, {slot}", "s_and_b32 s45, s45, 3", "s_add_u32 s45, s45, s44",
             "s_lshl_b32 s45, s45, 2", f"s_add_u32 s45, s45, s{S_WAVE}",
             "s_lshl_b32 s46, s45, 13", "s_add_u32 s47, s46, 4096"]
    loads = [f"buffer_load_dwordx4 {vr(breg+4*f,4)}, v7, s[32:35], s{46 + f//4} offen offset:{(f%4)*1024} sc1" for f in range(8)]
    return setup, loads

def p2_run(a, hs, n0, n1, hooks_pre=None, hooks_mid=None, inject=None, spread=None):
    hooks_pre = hooks_pre or {}; hooks_mid = hooks_mid or {}; inject = inject or {}; spread = spread or {}
    for n in range(n0, n1):
        (s, p, hf) = hs[n]
        breg = V_OF if s == 0 else BUF[s - 1]
        nxt = p2_areads(*hs[n+1], buf=(n+1) & 1) if n + 1 < n1 else []
        taus = list(range(0, 5)) if hf == 0 else list(range(5, 9))
        nown = 2 * len(taus)
        nm = nown
        plan = [0] * nm
        for t in range(len(nxt)): plan[t % nm] += 1
        issued = 0; m = 0
        inj = list(inject.get(n, []))
        spr = list(spread.get(n, []))
        per = -(-len(spr) // nm) if spr else 0
        if n in hooks_pre: hooks_pre[n]()
        for k, tau in enumerate(taus):
            a(f"s_waitcnt lgkmcnt({nown - 2 * (k + 1) + issued})")
            for qt in range(2):
                d = vr(V2_ACC + (tau*2+qt)*4, 4)
                c = "0" if (s == 0 and p == 0) else d
                a(f"v_mfma_f32_16x16x32_bf16 {d}, {vr(V2_A[n & 1]+4*k,4)}, {vr(breg+(2*p+qt)*4,4)}, {c}")
                if m == 0 and n in hooks_mid: hooks_mid[n]()
                if nxt:
                    for r in nxt[issued:issued+plan[m]]: a(r)
                    issued = min(len(nxt), issued + plan[m])
                for _ in range(per):
                    if spr: a(spr.pop(0))
                m += 1
                if k >= len(taus) - 1 and inj: a(inj.pop(0))
        while inj: a(inj.pop(0))
        while spr: a(spr.pop(0))

def d_prep(a):
    a("v_bfe_u32 v13, v0, 1, 3"); a("v_mul_u32_u24 v13, 9216, v13")
    a("v_lshrrev_b32 v14, 4, v0"); a("v_lshlrev_b32 v14, 1, v14"); a("v_and_b32 v15, 1, v0")
    a("v_add_u32 v14, v14, v15"); a("v_lshl_add_u32 v13, v14, 4, v13")
    a(f"s_lshl_b32 s58, s{S_G}, 2"); a(f"s_add_u32 s58, s58, s{S_J}"); a("s_lshl_b32 s58, s58, 2")
    a(f"s_add_u32 s58, s58, s{S_WAVE}")
    a("s_mul_i32 s59, s58, 73728"); a(f"s_add_u32 s59, s59, {WS_D}")
    a(f"s_mul_i32 s40, s{S_X}, 1152"); a("s_add_u32 s40, s40, s59")

def d_pack_store(tau, G=160):
    r = []
    for qt in range(2):
        for h2 in range(2):
            src = V2_ACC + (tau*2+qt)*4 + 2*h2
            r.append(f"v_cvt_pk_bf16_f32 v{G+4*tau+2*qt+h2}, v{src}, v{src+1}")
    r.append(f"buffer_store_dwordx4 {vr(G+4*tau,4)}, v13, s[32:35], s40 offen offset:{128*tau} sc1")
    return r

def tail(a):
    hs = [(s, p, hf) for s in range(2) for p in range(4) for hf in range(2)]
    hs += [(2, p, 0) for p in range(4)] + [(3, p, 0) for p in range(4)]
    hs += [(2, p, 1) for p in range(4)] + [(3, p, 1) for p in range(4)]
    if not OPT.get('ostin', 1):
        o_store(a)
        for x in OSTORES: a(x)
    stamp(a, 6)
    for r in p2_areads(*hs[0], buf=0): a(r)
    def exch():
        a("s_waitcnt vmcnt(0)")
        flag_store(a, 49, 'dyn')
        stamp(a, 7)
        if OPT.get('poll1', 1):
            a(f"s_add_u32 s56, s{S_J}, 1"); a("s_and_b32 s56, s56, 3")
            a("s_mov_b32 s50, 0")
            a.label("L_poll_o1")
            if OPT.get('o_sleep', 0): a(f"s_sleep {OPT['o_sleep']}")
            a("buffer_load_dwordx2 v[10:11], v8, s[32:35], s48 offen sc1")
            a("s_add_u32 s50, s50, 1"); a("s_waitcnt vmcnt(0)")
            a(f"v_cmp_eq_u64 vcc, v[10:11], s[{S_NON}:{S_NON+1}]")
            a(f"s_cmp_ge_u32 s50, {OPT['spin_max']}"); a("s_cbranch_scc1 L_poll_o1_done")
            a("s_bitcmp1_b32 vcc_lo, s56"); a("s_cbranch_scc0 L_poll_o1")
            a.label("L_poll_o1_done")
            a("s_cmp_eq_u64 vcc, -1"); a("s_cselect_b32 s55, 1, 0")
        else:
            poll(a, "o", 8, 48, sleep=OPT.get('o_sleep', 0))
        stamp(a, 8)
        p2_bloads(a, 1, BUF[0])
        a("s_nop 3")
    p2_run(a, hs, 0, 8, hooks_pre={OPT.get('flagpos', 4): exch})
    a("s_barrier")
    tstamp(a, 1)
    if OPT.get('poll1', 1):
        a("s_cmp_eq_u32 s55, 1"); a("s_cbranch_scc1 L_poll_o_skip")
        poll(a, "o", 8, 48, sleep=OPT.get('o_sleep', 0))
        a.label("L_poll_o_skip")
    for r in p2_areads(*hs[8], buf=0): a(r)
    su2, l2 = bload_list(2, BUF[1]); su3, l3 = bload_list(3, BUF[2])
    for x in su2: a(x)
    d_prep(a)
    inj = {}
    for t in range(4):
        inj[8 + t] = list(l2[2*t:2*t+2])
        inj[12 + t] = list(l3[2*t:2*t+2])
    inj[11] = inj[11] + su3
    spr = {25: d_pack_store(0) + d_pack_store(1), 26: d_pack_store(2) + d_pack_store(3), 27: d_pack_store(4)}
    W = lambda n: (lambda: a(f"s_waitcnt vmcnt({n})"))
    def WC(n, idx):
        def f():
            if OPT.get('cyc', 0): cstamp(a, idx)
            if n is not None: a(f"s_waitcnt vmcnt({n})")
        return f
    p2_run(a, hs, 8, 32,
           hooks_pre={8: WC(6, 3), 10: W(8), 12: W(10), 14: W(12), 16: WC(8, 4), 20: W(0), 24: WC(None, 13)},
           hooks_mid={15: lambda: a("s_barrier"), 19: lambda: a("s_barrier")},
           inject=inj, spread=spr)
    if OPT.get('cyc', 0): cstamp(a, 1)
    stamp(a, 9)
    reduce_inkernel(a)

def store_partials_f32(a):
    a("s_nop 7")
    a(f"s_lshl_b32 s45, s{S_X}, 3"); a(f"s_add_u32 s45, s45, s{S_G}"); a("s_lshl_b32 s45, s45, 2")
    a(f"s_add_u32 s45, s45, s{S_J}"); a("s_lshl_b32 s45, s45, 2"); a(f"s_add_u32 s45, s45, s{S_WAVE}")
    a(f"s_mul_i32 s45, s45, {18*1024}"); a(f"s_add_u32 s45, s45, {WS_P}")
    for u in range(18):
        if u and u % 4 == 0: a("s_add_u32 s45, s45, 4096")
        a(f"buffer_store_dwordx4 {vr(V2_ACC+4*u,4)}, v7, s[32:35], s45 offen offset:{(u%4)*1024}")

def store_partials_bf16(a):
    G = 160
    a(f"s_lshl_b32 s44, s{S_G}, 2"); a(f"s_add_u32 s44, s44, s{S_J}"); a("s_lshl_b32 s44, s44, 2")
    a(f"s_add_u32 s44, s44, s{S_WAVE}")
    a(f"s_lshl_b32 s45, s{S_X}, 7"); a("s_add_u32 s45, s45, s44"); a("s_mul_i32 s45, s45, 9216")
    a(f"s_add_u32 s45, s45, {WS_P}"); a("s_add_u32 s46, s45, 4096"); a("s_add_u32 s47, s45, 8192")
    sc = " sc1" if OPT.get('psc1', 1) else ""
    for tau in range(9):
        for qt in range(2):
            for h2 in range(2):
                src = V2_ACC + (tau*2+qt)*4 + 2*h2
                a(f"v_cvt_pk_bf16_f32 v{G+4*tau+2*qt+h2}, v{src}, v{src+1}")
        a(f"buffer_store_dwordx4 {vr(G+4*tau,4)}, v7, s[32:35], s{45 + tau//4} offen offset:{(tau%4)*1024}{sc}")

def kernel3b(a):
    name = "mha_p3_kernel"
    a(".p2align 8"); a(f".globl {name}"); a(f".type {name},@function"); a.label(name)
    a("s_cmp_ge_u32 s2, 288"); a(f"s_cbranch_scc1 L_end_{name}")
    a("s_load_dwordx2 s[26:27], s[0:1], 40"); a("s_load_dwordx2 s[30:31], s[0:1], 56")
    a("v_lshrrev_b32 v1, 6, v0"); a("v_and_b32 v0, 63, v0")
    a("s_lshl_b32 s5, s2, 2")
    a(f"v_readfirstlane_b32 s{S_WAVE}, v1")
    a("v_lshlrev_b32 v1, 4, v0")
    a(f"s_add_u32 s5, s5, s{S_WAVE}")
    a("s_mul_i32 s45, s5, 1024"); a(f"s_add_u32 s45, s45, {WS_P}")
    a("s_mul_hi_u32 s6, s5, 477218589")
    a("s_mul_i32 s7, s6, 9"); a("s_sub_u32 s7, s5, s7")
    a("s_waitcnt lgkmcnt(0)")
    srd(a, 32, P_WS, SZ_WS_USED); srd(a, 36, P_OUT, SZ_OUT)
    for x in range(8):
        a(f"buffer_load_dwordx4 {vr(8+4*x,4)}, v1, s[32:35], s45 offen")
        if x < 7: a(f"s_add_u32 s45, s45, {128*9216}")
    a("v_and_b32 v2, 15, v0"); a("v_mul_u32_u24 v2, 1152, v2"); a("v_lshrrev_b32 v3, 4, v0")
    a("v_lshl_add_u32 v2, v3, 3, v2")
    a("s_lshr_b32 s46, s6, 4"); a("s_lshl_b32 s46, s46, 2"); a("s_and_b32 s47, s6, 3"); a("s_add_u32 s46, s46, s47")
    a(f"s_mul_i32 s46, s46, {32*1152}")
    a("s_lshr_b32 s47, s6, 2"); a("s_and_b32 s47, s47, 3"); a("s_mul_i32 s47, s47, 288"); a("s_add_u32 s46, s46, s47")
    a("s_lshl_b32 s47, s7, 5"); a("s_add_u32 s46, s46, s47"); a(f"s_add_u32 s47, s46, {16*1152}")
    for x in range(8):
        a(f"s_waitcnt vmcnt({7-x})")
        for d in range(4):
            src = 8 + 4*x + d
            if x == 0:
                a(f"v_lshlrev_b32 v{40+2*d}, 16, v{src}"); a(f"v_and_b32 v{40+2*d+1}, 0xffff0000, v{src}")
            else:
                a(f"v_lshlrev_b32 v48, 16, v{src}"); a(f"v_and_b32 v49, 0xffff0000, v{src}")
                a(f"v_pk_add_f32 v[{40+2*d}:{40+2*d+1}], v[{40+2*d}:{40+2*d+1}], v[48:49]")
    for d in range(4): a(f"v_cvt_pk_bf16_f32 v{50+d}, v{40+2*d}, v{40+2*d+1}")
    a("buffer_store_dwordx2 v[50:51], v2, s[36:39], s46 offen")
    a("buffer_store_dwordx2 v[52:53], v2, s[36:39], s47 offen")
    a.label(f"L_end_{name}")
    a("s_endpgm")

def reduce_inkernel(a):
    RA = 196; RB = 88
    a("s_nop 7")
    for tau in range(5, 9):
        for x in d_pack_store(tau): a(x)
    a("s_lshl_b32 s48, s58, 8"); a(f"s_add_u32 s48, s48, {WS_F2}")
    a(f"s_lshl_b32 s49, s{S_X}, 3"); a("s_add_u32 s49, s49, s48")
    a("s_waitcnt vmcnt(4)")
    flag_store(a, 49, 'sc1')
    a("s_add_u32 s49, s49, 128")
    a("v_and_b32 v8, 7, v0"); a("v_lshlrev_b32 v8, 3, v8")
    a("v_and_b32 v14, 1, v0"); a("v_mul_u32_u24 v14, 1152, v14")
    a("v_bfe_u32 v15, v0, 1, 2"); a("v_lshl_add_u32 v14, v15, 3, v14")
    a("v_lshrrev_b32 v12, 3, v0"); a("v_lshl_add_u32 v14, v12, 5, v14")
    a("v_add_u32 v15, 160, v14")
    srd(a, 36, P_OUT, SZ_OUT)
    a(f"s_lshl_b32 s56, s{S_G}, 2"); a(f"s_add_u32 s56, s56, s{S_WAVE}"); a("s_lshl_b32 s56, s56, 5")
    a(f"s_lshl_b32 s57, s{S_X}, 1"); a("s_add_u32 s56, s56, s57"); a("s_mul_i32 s56, s56, 1152")
    a(f"s_mul_i32 s57, s{S_J}, 288"); a("s_add_u32 s56, s56, s57")
    a(f"s_add_u32 s57, s56, {16*1152}")
    a(f"s_mul_i32 s47, s{S_X}, 9216"); a("s_add_u32 s47, s47, s59")
    a("s_waitcnt vmcnt(1)")
    flag_store(a, 49, 'sc1')
    stamp(a, 10)
    poll(a, "da", 8, 48, sleep=OPT.get('d_sleep', 0))
    a("s_mov_b32 s46, s47")
    a("s_mov_b32 exec_hi, 0xff")
    for sx in range(8):
        a(f"buffer_load_dwordx4 {vr(RA+4*sx,4)}, v7, s[32:35], s46 offen sc1")
        if sx < 7: a("s_add_u32 s46, s46, 1152")
    a("s_mov_b64 exec, -1")
    a("s_add_u32 s48, s48, 128")
    poll(a, "db", 8, 48, sleep=OPT.get('d_sleep2', 1))
    stamp(a, 11)
    a("s_mov_b64 exec, 0xffffffff")
    for sx in range(8):
        a(f"buffer_load_dwordx4 {vr(RB+4*sx,4)}, v7, s[32:35], s47 offen offset:640 sc1")
        if sx < 7: a("s_add_u32 s47, s47, 1152")
    a("s_mov_b64 exec, -1")
    AA = 16; AB = 24; T = 32
    def summ(R, A, waits):
        for sx in range(8):
            if waits: a(f"s_waitcnt vmcnt({7 - sx})")
            for d in range(4):
                src = R + 4*sx + d
                if sx == 0:
                    a(f"v_lshlrev_b32 v{A+2*d}, 16, v{src}"); a(f"v_and_b32 v{A+2*d+1}, 0xffff0000, v{src}")
                else:
                    t = T + 2 * (d & 1)
                    a(f"v_lshlrev_b32 v{t}, 16, v{src}"); a(f"v_and_b32 v{t+1}, 0xffff0000, v{src}")
                    a(f"v_pk_add_f32 v[{A+2*d}:{A+2*d+1}], v[{A+2*d}:{A+2*d+1}], v[{t}:{t+1}]")
    fl = {0: "", 1: " sc1", 2: " nt", 3: " sc0 sc1"}[OPT.get('outfl', 0)]
    summ(RA, AA, False)
    for d in range(4): a(f"v_cvt_pk_bf16_f32 v{36+d}, v{AA+2*d}, v{AA+2*d+1}")
    summ(RB, AB, True)
    a("s_mov_b32 exec_hi, 0xff")
    a(f"buffer_store_dwordx2 v[36:37], v14, s[36:39], s56 offen{fl}")
    a(f"buffer_store_dwordx2 v[38:39], v14, s[36:39], s57 offen{fl}")
    a("s_mov_b64 exec, -1")
    for d in range(4): a(f"v_cvt_pk_bf16_f32 v{40+d}, v{AB+2*d}, v{AB+2*d+1}")
    a("s_mov_b64 exec, 0xffffffff")
    a(f"buffer_store_dwordx2 v[40:41], v15, s[36:39], s56 offen{fl}")
    a(f"buffer_store_dwordx2 v[42:43], v15, s[36:39], s57 offen{fl}")
    a("s_mov_b64 exec, -1")

def KNAME():
    return "standalone__mha_block_cached__near_ridge_kernel" if OPT['dk'] else "mha_a_kernel"

def kernelA(a):
    global KIDX
    KIDX = 0
    name = KNAME()
    prologue(a, name)
    stamp_init(a); stamp(a, 0); cstamp(a, 14)
    if OPT['stamps'] and OPT.get('entrystamp', 0): a("s_mov_b64 s[86:87], s[96:97]")
    a(f"s_cmp_lt_u32 s{S_WAVE}, 4"); a("s_cbranch_scc1 L_a_compute")
    a(f"s_cmp_eq_u32 s{S_WAVE}, 5"); a("s_cbranch_scc1 L_a_ldx")
    a(f"s_cmp_eq_u32 s{S_WAVE}, 6"); a("s_cbranch_scc1 L_a_ldk")
    a(f"s_cmp_eq_u32 s{S_WAVE}, 7"); a("s_cbranch_scc1 L_a_ldv")
    loader_ring(a, 'wq'); stamp_flush(a); a("s_endpgm")
    a.label("L_a_ldx"); loader_ring(a, 'x'); stamp_flush(a); a("s_endpgm")
    a.label("L_a_ldv"); loader_v(a); stamp_flush(a); a("s_endpgm")
    a.label("L_a_ldk"); loader_k(a); stamp_flush(a); a("s_endpgm")
    a.label("L_a_compute")
    CUR['compute'] = True
    gemm1_addrs(a); attn_addrs(a)
    kwait(a)
    srd(a, 36, P_DBG, 256)
    a("v_mov_b32 v1, 0")
    a(f"s_lshl_b32 s40, s{S_G}, 3"); a(f"s_add_u32 s40, s40, s{S_X}"); a("s_lshr_b32 s40, s40, 1")
    a("s_lshl_b32 s40, s40, 2"); a("s_add_u32 s40, s40, 128")
    srd(a, 44, P_WS, SZ_WS_USED)
    a(f"s_lshl_b32 s42, s{S_G}, 3"); a(f"s_add_u32 s42, s42, s{S_X}"); a("s_lshl_b32 s42, s42, 2")
    a(f"s_add_u32 s42, s42, s{S_WAVE}"); a("s_lshl_b32 s42, s42, 7"); a(f"s_add_u32 s42, s42, {WS_F}")
    gemm1(a)
    if not OPT.get('nonce_in', 1): get_nonce(a)
    stamp(a, 2)
    attention(a); stamp(a, 5)
    tail(a)
    if OPT['stamps']: a("s_waitcnt vmcnt(0)")
    stamp(a, 12); cstamp(a, 15); stamp_flush(a)
    if OPT.get('waitx', 0):
        a("s_waitcnt vmcnt(0)")
        a(f"s_add_u32 s62, s{S_NON}, {OPT['waitx']}")
        a("s_mov_b32 s63, 0")
        a.label("L_wx_spin")
        a("s_memrealtime s[64:65]"); a("s_waitcnt lgkmcnt(0)")
        a("s_add_u32 s63, s63, 1"); a("s_cmp_gt_u32 s63, 100000"); a("s_cbranch_scc1 L_wx_done")
        a("s_sub_u32 s66, s62, s64"); a("s_cmp_gt_i32 s66, 0"); a("s_cbranch_scc1 L_wx_spin")
        a.label("L_wx_done")
    if OPT.get('probe', -1) >= 0:
        a("s_waitcnt vmcnt(0)")
        a(f"s_sub_u32 s62, s60, s{S_NON}"); a(f"s_mul_i32 s62, s62, {OPT.get('probek', 8)}")
        a("s_memrealtime s[64:65]"); a("s_waitcnt lgkmcnt(0)")
        a("s_add_u32 s62, s62, s64")
        a("s_mov_b32 s63, 0")
        a.label("L_probe_spin")
        a("s_memrealtime s[64:65]"); a("s_waitcnt lgkmcnt(0)")
        a("s_add_u32 s63, s63, 1"); a("s_cmp_gt_u32 s63, 100000"); a("s_cbranch_scc1 L_probe_done")
        a("s_sub_u32 s66, s62, s64"); a("s_cmp_gt_i32 s66, 0"); a("s_cbranch_scc1 L_probe_spin")
        a.label("L_probe_done")
    a.label(f"L_end_{name}")
    a("s_endpgm")

def kernel3(a):
    global KIDX
    KIDX = 1
    name = "mha_p3_kernel"
    a(".p2align 8"); a(f".globl {name}"); a(f".type {name},@function"); a.label(name)
    a("s_cmp_ge_u32 s2, 256"); a(f"s_cbranch_scc1 L_end_{name}")
    a("s_load_dwordx16 s[16:31], s[0:1], 0")
    a("v_lshrrev_b32 v1, 6, v0"); a("v_and_b32 v0, 63, v0")
    a("s_lshr_b32 s5, s2, 1")
    a("s_and_b32 s6, s2, 1")
    a(f"v_readfirstlane_b32 s{S_WAVE}, v1")
    a("s_mul_i32 s6, s6, 9")
    a("s_waitcnt lgkmcnt(0)")
    stamp_init(a); stamp(a, 0); cstamp(a, 14)
    a(f"s_add_u32 s6, s6, s{S_WAVE}")
    srd(a, 32, P_WS, SZ_WS_USED); srd(a, 36, P_OUT, SZ_OUT)
    a("v_lshlrev_b32 v1, 4, v0")
    a("s_mul_i32 s45, s5, 18"); a("s_add_u32 s45, s45, s6"); a("s_lshl_b32 s45, s45, 10")
    a(f"s_add_u32 s45, s45, {WS_P}")
    for x in range(8):
        a(f"buffer_load_dwordx4 {vr(8+4*x,4)}, v1, s[32:35], s45 offen")
        if x < 7: a(f"s_add_u32 s45, s45, {128*18*1024}")
    a("v_and_b32 v2, 15, v0"); a("v_mul_u32_u24 v2, 1152, v2"); a("v_lshrrev_b32 v3, 4, v0")
    a("v_lshl_add_u32 v2, v3, 3, v2")
    a("s_lshr_b32 s46, s5, 4"); a("s_lshl_b32 s46, s46, 2"); a("s_and_b32 s47, s5, 3"); a("s_add_u32 s46, s46, s47")
    a(f"s_mul_i32 s46, s46, {32*1152}")
    a("s_lshr_b32 s47, s5, 2"); a("s_and_b32 s47, s47, 3"); a("s_mul_i32 s47, s47, 288"); a("s_add_u32 s46, s46, s47")
    a("s_and_b32 s47, s6, 1"); a(f"s_mul_i32 s47, s47, {16*1152}"); a("s_add_u32 s46, s46, s47")
    a("s_lshr_b32 s47, s6, 1"); a("s_lshl_b32 s47, s47, 5"); a("s_add_u32 s46, s46, s47")
    a("s_waitcnt vmcnt(0)")
    for v in range(4):
        for x in range(0, 8, 2): a(f"v_add_f32 v{8+4*x+v}, v{8+4*x+v}, v{12+4*x+v}")
    for v in range(4):
        a(f"v_add_f32 v{8+v}, v{8+v}, v{16+v}"); a(f"v_add_f32 v{24+v}, v{24+v}, v{32+v}")
    for v in range(4): a(f"v_add_f32 v{8+v}, v{8+v}, v{24+v}")
    a("v_cvt_pk_bf16_f32 v8, v8, v9"); a("v_cvt_pk_bf16_f32 v9, v10, v11")
    a("buffer_store_dwordx2 v[8:9], v2, s[36:39], s46 offen")
    if OPT['stamps']:
        a("s_waitcnt vmcnt(0)")
        stamp(a, 10); cstamp(a, 15)
        a(f"s_cmp_ge_u32 s{S_WAVE}, 8"); a("s_cbranch_scc1 L_end_mha_p3_kernel")
        stamp_flush(a, 44)
    a.label(f"L_end_{name}")
    a("s_endpgm")

def descriptor(a, name, vgpr, sgpr=102):
    a(f".amdhsa_kernel {name}")
    a(f".amdhsa_next_free_vgpr {vgpr}"); a(f".amdhsa_next_free_sgpr {sgpr}"); a(f".amdhsa_accum_offset {vgpr}")
    a(".amdhsa_group_segment_fixed_size 0"); a(".amdhsa_kernarg_size 64")
    a(".amdhsa_user_sgpr_count 2"); a(".amdhsa_user_sgpr_kernarg_segment_ptr 1")
    a(".amdhsa_system_sgpr_workgroup_id_x 1"); a(".end_amdhsa_kernel")

def main():
    out = sys.argv[1]
    for arg in sys.argv[2:]:
        if arg == "--stamps": OPT['stamps'] = True
        elif "=" in arg:
            k, v = arg.lstrip("-").split("="); OPT[k] = int(v)
    a = Asm()
    hdr = "; MHA block (Q-proj + attention + out-proj), generated by gen3.py\n"
    if OPT['dk']:
        hdr += "; @launch grid=(256,1,1) block=(512,1,1) lds=163840\n"
    else:
        hdr += "; @launch kernel=mha_a_kernel grid=(256,1,1) block=(512,1,1) lds=163840\n"
        if OPT.get('k3bf', 0): hdr += "; @launch kernel=mha_p3_kernel grid=(288,1,1) block=(256,1,1) lds=0\n"
        else: hdr += "; @launch kernel=mha_p3_kernel grid=(256,1,1) block=(576,1,1) lds=0\n"
    a('.amdgcn_target "amdgcn-amd-amdhsa--gfx950"'); a(".text")
    kernelA(a)
    if not OPT['dk']:
        if OPT.get('k3bf', 0): kernel3b(a)
        else: kernel3(a)
    a('.section .rodata,"a"'); a(".p2align 6"); descriptor(a, KNAME(), 256)
    if not OPT['dk']:
        a(".p2align 6"); descriptor(a, "mha_p3_kernel", 56)
    open(out, "w").write(hdr + a.text())

if __name__ == "__main__": main()
```

```python
import sys, struct

class Asm:
    def __init__(self): self.l = []
    def __call__(self, s=""):
        for x in s.split("\n"):
            x = x.strip()
            self.l.append(x if (x.endswith(":") or x.startswith(".")) else "  " + x)
    def label(self, s): self.l.append(s + ":")
    def text(self): return "\n".join(self.l) + "\n"

def vr(b, n=1): return f"v{b}" if n == 1 else f"v[{b}:{b+n-1}]"
def f32hex(x): return "0x%08x" % struct.unpack("<I", struct.pack("<f", x))[0]

P_X, P_K, P_V, P_WQ, P_WO, P_OUT, P_DBG, P_WS = 16, 18, 20, 22, 24, 26, 28, 30
SZ_X, SZ_KV, SZ_W, SZ_OUT = 1179648, 8388608, 4718592, 1179648
WS_O = 0
WS_P = 8 << 20
WS_F = 28 << 20
WS_F2 = (28 << 20) + (1 << 19)
WS_D = 8 << 20
WS_STAMP = 32 << 20
SZ_WS_USED = 64 << 20
S_WAVE, S_X, S_R, S_J, S_G, S_H = 3, 4, 5, 6, 9, 10

OPT = dict(stamps=False, fast=1, spin_max=2000000, kvmode=21, flagpos=3, xonce=1, vearly=1, woearly=1, d_sleep=1, d_sleep2=0, o_sleep=1, k_nt=1, v_nt=1, wot_pos=8, dk=1)

def srd(a, base, ptr, size, add=0):
    if add:
        a(f"s_add_u32 s{base}, s{ptr}, {add}"); a(f"s_addc_u32 s{base+1}, s{ptr+1}, 0")
        a(f"s_and_b32 s{base+1}, s{base+1}, 0xffff")
    else:
        a(f"s_mov_b32 s{base}, s{ptr}"); a(f"s_and_b32 s{base+1}, s{ptr+1}, 0xffff")
    a(f"s_mov_b32 s{base+2}, {size}"); a(f"s_mov_b32 s{base+3}, 0x00020000")

def prologue(a, name, nwg=256):
    a(".p2align 8"); a(f".globl {name}"); a(f".type {name},@function"); a.label(name)
    a(f"s_cmp_ge_u32 s2, {nwg}"); a(f"s_cbranch_scc1 L_end_{name}")
    if OPT['stamps'] and OPT.get('entrystamp', 0): a("s_memrealtime s[96:97]")
    a("s_load_dwordx16 s[16:31], s[0:1], 0")
    a("v_lshrrev_b32 v1, 6, v0"); a("v_and_b32 v0, 63, v0")
    a(f"s_and_b32 s{S_X}, s2, 7"); a(f"s_lshr_b32 s{S_R}, s2, 3")
    a(f"v_readfirstlane_b32 s{S_WAVE}, v1")
    a(f"s_and_b32 s{S_J}, s{S_R}, 3"); a(f"s_lshr_b32 s{S_G}, s{S_R}, 2")
    a(f"s_lshl_b32 s{S_H}, s{S_X}, 2"); a(f"s_add_u32 s{S_H}, s{S_H}, s{S_J}")
    if OPT['stamps'] or not OPT.get('latewait', 1): a("s_waitcnt lgkmcnt(0)")

def kwait(a):
    if not OPT['stamps'] and OPT.get('latewait', 1): a("s_waitcnt lgkmcnt(0)")

KIDX = 0
CUR = {}
def tstamp(a, idx):
    if OPT.get('tailstamps', 0): stamp(a, idx, force=True)
def stamp(a, idx, force=False):
    if OPT.get('probe', -1) == idx and CUR.get('compute') and (force or not (OPT.get('tailstamps', 0) and idx in (1,2,3,4,13))):
        a("s_memrealtime s[60:61]"); a("s_waitcnt lgkmcnt(0)")
        return
    if not OPT['stamps']: return
    if OPT.get('tailstamps', 0) and not force and idx in (1,2,3,4,13) and CUR.get('compute'): return
    a(f"s_memrealtime s[{60+2*idx}:{61+2*idx}]"); a("s_waitcnt lgkmcnt(0)")
def cstamp(a, idx):
    if not OPT['stamps']: return
    a(f"s_memtime s[{60+2*idx}:{61+2*idx}]"); a("s_waitcnt lgkmcnt(0)")
def stamp_init(a):
    if not OPT['stamps']: return
    for i in range(16): a(f"s_mov_b64 s[{60+2*i}:{61+2*i}], 0")
def stamp_flush(a, vb=250):
    if not OPT['stamps']: return
    srd(a, 92, P_WS, 256*16*16*8, add=WS_STAMP + KIDX*256*8*16*8)
    a("s_lshl_b32 s96, s2, 3"); a(f"s_add_u32 s96, s96, s{S_WAVE}"); a("s_lshl_b32 s96, s96, 7")
    a(f"v_mov_b32 v{vb+2}, 0")
    for i in range(16):
        a(f"v_mov_b32 v{vb}, s{60+2*i}"); a(f"v_mov_b32 v{vb+1}, s{61+2*i}")
        a(f"buffer_store_dwordx2 v[{vb}:{vb+1}], v{vb+2}, s[92:95], s96 offen offset:{i*8}")
        a("s_nop 1")
    a("s_waitcnt vmcnt(0)")

L_K = 98304; L_V = 131072; NCH = 9
W_SLOT = 36864

def dma(a, voff, srdb, soff, off=0, nt=False, fl=""):
    a(f"buffer_load_dwordx4 v{voff}, s[{srdb}:{srdb+3}], s{soff} offen" + (f" offset:{off}" if off else "") + (" nt" if nt else "") + fl + " lds")
def FL(key):
    return {0: "", 1: " sc1", 2: " sc0", 3: " sc0 sc1"}[OPT.get(key, 0)]

V_WOV = 16
def wo_prep(a):
    srd(a, 52, P_WO, SZ_W)
    for t in range(9):
        a(f"v_add_u32 v1, {64*t}, v0")
        a("v_mul_u32_u24 v2, 3641, v1")
        a("v_lshrrev_b32 v2, 16, v2")
        a("v_mul_u32_u24 v3, 18, v2")
        a("v_sub_u32 v3, v1, v3")
        a("v_lshlrev_b32 v3, 4, v3")
        a("v_mul_u32_u24 v2, 1152, v2")
        a(f"v_add_u32 v{V_WOV+t}, v2, v3")
    a(f"s_mul_i32 s56, s{S_J}, 288")
def wo_issue(a, slot, q0, nq):
    a(f"s_add_u32 s57, s{S_J}, {slot}"); a("s_and_b32 s57, s57, 3")
    a(f"s_lshl_b32 s58, s{S_X}, 2"); a("s_add_u32 s57, s57, s58")
    a(f"s_mul_i32 s57, s57, {128*1152}"); a("s_add_u32 s57, s57, s56")
    if q0: a(f"s_add_u32 s57, s57, {q0*32*1152}")
    a(f"s_mov_b32 m0, {slot*W_SLOT + q0*32*288}"); a("s_nop 0")
    for blk in range(nq):
        for t in range(9):
            dma(a, V_WOV + t, 52, 57, fl=FL('wofl'))
            if not (blk == nq - 1 and t == 8):
                a("s_add_u32 m0, m0, 1024")
                if t == 8: a(f"s_add_u32 s57, s57, {32*1152}")
                else: a("s_nop 0")

def loader_tail(a, role):
    a("s_barrier")
    stamp(a, 8)
    if role < 2:
        wo_issue(a, 0, 2 * role, 2); wo_issue(a, 1, 2 * role, 2)
    stamp(a, 9)
    if OPT.get('vearly', 0):
        if role < 2: a("s_waitcnt vmcnt(18)")
        a("s_barrier")
    else:
        if role == 3: a("s_waitcnt vmcnt(0)")
        a("s_barrier")
        if role < 2: a("s_waitcnt vmcnt(18)")
        a("s_barrier")
    if OPT.get('woearly', 0):
        wo_issue(a, 2, role, 1)
        wo_issue(a, 3, role, 1)
        stamp(a, 10)
        if role < 2: a("s_waitcnt vmcnt(18)")
        a("s_barrier")
    else:
        if role < 2: a("s_waitcnt vmcnt(0)")
        a("s_barrier")
        wo_issue(a, 2, role, 1)
        wo_issue(a, 3, role, 1)
        stamp(a, 10)
    a("s_waitcnt vmcnt(9)")
    a("s_barrier")
    a("s_waitcnt vmcnt(0)")
    stamp(a, 11)
    a("s_barrier")

def loader_ring(a, which):
    SRD = 32; SO = 40
    if which == 'wq':
        a("v_lshrrev_b32 v1, 4, v0"); a("v_and_b32 v2, 15, v0")
        a("v_lshlrev_b32 v3, 2, v1"); a("v_xor_b32 v3, v3, v2"); a("v_lshlrev_b32 v3, 4, v3")
        a("v_lshlrev_b32 v4, 13, v1"); a("v_add_u32 v4, v4, v3")
        a(f"s_lshl_b32 s{SO}, s{S_H}, 8")
        def issue(kc):
            a(f"s_mov_b32 m0, {(kc%3)*32768}")
            for t in range(16):
                if t == 0: a("s_nop 0")
                dma(a, 4, SRD, SO, fl=FL('ringfl'))
                a(f"s_add_u32 s{SO}, s{SO}, 32768")
                if t < 15:
                    a("s_add_u32 m0, m0, 1024"); a("s_nop 0")
    else:
        a("v_lshrrev_b32 v1, 3, v0"); a("v_mul_u32_u24 v1, 1152, v1")
        a("v_and_b32 v2, 7, v0"); a("v_lshrrev_b32 v3, 4, v0"); a("v_xor_b32 v2, v2, v3")
        a("v_lshlrev_b32 v4, 4, v2"); a("v_add_u32 v4, v4, v1")
        a("v_xor_b32 v2, 4, v2"); a("v_lshlrev_b32 v5, 4, v2"); a("v_add_u32 v5, v5, v1")
        a(f"s_mul_i32 s{SO+1}, s{S_G}, 147456")
        def issue(kc):
            a(f"s_mov_b32 m0, {(kc%3)*32768 + 16384}")
            a(f"s_add_u32 s{SO}, s{SO+1}, {kc*128}")
            for T in range(16):
                dma(a, 4 + (T & 1), SRD, SO, fl=FL('ringfl'))
                if T < 15:
                    a("s_add_u32 m0, m0, 1024"); a(f"s_add_u32 s{SO}, s{SO}, 9216")
    kv_pos(a, 43, 'k')
    if which == 'wq':
        a("v_lshrrev_b32 v8, 1, v0"); a("v_and_b32 v9, 1, v0")
        a("v_lshlrev_b32 v8, 13, v8"); a("v_lshl_add_u32 v8, v9, 7, v8")
        a(f"s_lshl_b32 s46, s{S_G}, {5+13}"); a(f"s_lshl_b32 s47, s{S_H}, 8"); a("s_add_u32 s46, s46, s47")
        def touch(part):
            if part == 0:
                a(f"buffer_load_dword v10, v8, s[{SRD}:{SRD+3}], s46 offen")
            else:
                a(f"s_add_u32 s46, s46, {256*8192}")
                a(f"buffer_load_dword v10, v8, s[{SRD}:{SRD+3}], s46 offen")
                a(f"s_lshl_b32 s46, s{S_G}, {3+13}"); a("s_add_u32 s46, s46, s47"); a(f"s_add_u32 s46, s46, {512*8192}")
                a("s_mov_b64 exec, 0xffff")
                a(f"buffer_load_dword v10, v8, s[{SRD}:{SRD+3}], s46 offen")
                a("s_mov_b64 exec, -1")
        NT1 = 2
    else:
        if OPT.get('xonce', 0):
            a("v_mul_u32_u24 v8, 7282, v0"); a("v_lshrrev_b32 v8, 16, v8")
            a("v_mul_u32_u24 v9, 9, v8"); a("v_sub_u32 v9, v0, v9")
            a("v_mul_u32_u24 v8, 1152, v8"); a("v_lshl_add_u32 v8, v9, 7, v8")
            a(f"s_mul_i32 s46, s{S_G}, 147456"); a(f"s_mul_i32 s47, s{S_H}, {4*1152}"); a("s_add_u32 s46, s46, s47")
            def touch(part):
                if part == 0:
                    a("s_mov_b32 exec_lo, -1"); a("s_mov_b32 exec_hi, 15")
                    a(f"buffer_load_dword v10, v8, s[{SRD}:{SRD+3}], s46 offen")
                    a("s_mov_b64 exec, -1")
            NT1 = 0
        else:
            a("v_and_b32 v9, 31, v0"); a("v_mul_u32_u24 v9, 1152, v9")
            a("v_lshrrev_b32 v8, 5, v0"); a("v_lshl_add_u32 v8, v8, 7, v9")
            a(f"s_mul_i32 s46, s{S_G}, 147456"); a(f"s_mul_i32 s47, s{S_J}, {32*1152}"); a("s_add_u32 s46, s46, s47")
            def touch(part):
                if part == 0:
                    a(f"buffer_load_dword v10, v8, s[{SRD}:{SRD+3}], s46 offen")
                else:
                    for t in range(1, 4):
                        a(f"buffer_load_dword v10, v8, s[{SRD}:{SRD+3}], s46 offen offset:{256*t}")
                    a("s_mov_b64 exec, 0xffffffff")
                    a(f"buffer_load_dword v10, v9, s[{SRD}:{SRD+3}], s46 offen offset:1024")
                    a("s_mov_b64 exec, -1")
            NT1 = 4
    if OPT.get('lprio', 0): a(f"s_setprio {OPT['lprio']}")
    kwait(a)
    srd(a, SRD, P_WQ if which == 'wq' else P_X, SZ_W if which == 'wq' else SZ_X)
    if OPT.get('tall', 0):
        touch(0); touch(1); NT1 = 0
        issue(0); stamp(a, 1)
    else:
        touch(0)
        issue(0); stamp(a, 1)
        touch(1)
    a("s_barrier")
    bx(a, -1, "r" + which)
    issue(1)
    stamp(a, 2)
    a(f"s_waitcnt vmcnt({16 + NT1})")
    stamp(a, 3)
    a("s_barrier")
    bx(a, 0, "r" + which)
    issue(2)
    for i in range(1, NCH):
        last_issued = min(i + 1, NCH - 1)
        a(f"s_waitcnt vmcnt({(last_issued - i) * 16})")
        a("s_barrier")
        if which == 'wq' and i in (1,2,3,4): stamp(a, {1:4,2:5,3:6,4:12}[i])
        if which == 'x' and i in (5,6,7,8): stamp(a, {5:4,6:5,7:6,8:12}[i])
        if i < 8: bx(a, i, "r" + which)
        if i + 2 < NCH: issue(i + 2)
        if i == 7: wo_prep(a)
    stamp(a, 7)
    loader_tail(a, 0 if which == 'wq' else 1)

def kv_pos(a, sdst, which):
    m = OPT['kvmode']
    if m == 10:
        tab = [-1, 2, 4, 7]
    elif m == 11: tab = [7, 7, 7, 7]
    elif m == 12: tab = [-1, -1, -1, -1]
    elif m == 13: tab = [1, 1, 6, 6]
    elif m == 14: tab = [-1, 1, 4, 7]
    elif m == 15: tab = [0, 3, 5, 7]
    elif m == 16: tab = [2, 7, 2, 7]
    elif m == 17: tab = [3, 5, 7, 7]
    elif m == 20: tab = [-1, 1, 3, 5]
    elif m == 21: tab = [-1, 2, 4, 6]
    elif m == 22: tab = [-1, -1, 3, 3]
    elif m == 23: tab = [-1, 0, 2, 4]
    elif m == 24: tab = [0, 2, 4, 6]
    elif m == 25: tab = [-1, -1, -1, -1]
    packed = sum(((p + 1) & 15) << (4 * k) for k, p in enumerate(tab))
    a(f"s_and_b32 s{sdst}, s{S_G}, 3"); a(f"s_lshl_b32 s{sdst}, s{sdst}, 2")
    a(f"s_lshr_b32 s{sdst}, {packed}, s{sdst}"); a(f"s_and_b32 s{sdst}, s{sdst}, 15")

def bx(a, p, tag):
    if p >= 6: return
    a(f"s_cmp_lg_u32 s43, {p+1}"); a(f"s_cbranch_scc1 L_bx_{tag}_{p+1}")
    a("s_barrier")
    a.label(f"L_bx_{tag}_{p+1}")

def kv_loop(a, tag, issue_fn, extra_fn=None, extra_pos=None):
    a("s_mov_b32 s59, 0")
    a.label(f"L_{tag}_loop")
    a("s_cmp_lg_u32 s59, s43"); a(f"s_cbranch_scc1 L_{tag}_skip")
    stamp(a, 3)
    issue_fn()
    stamp(a, 4)
    a(f"s_cmp_ge_u32 s59, 7"); a(f"s_cbranch_scc1 L_{tag}_skip")
    a("s_barrier")
    a.label(f"L_{tag}_skip")
    if extra_fn is not None:
        a(f"s_cmp_lg_u32 s59, {extra_pos}"); a(f"s_cbranch_scc1 L_{tag}_skip2")
        extra_fn()
        a.label(f"L_{tag}_skip2")
    a("s_barrier")
    a("s_add_u32 s59, s59, 1")
    a("s_cmp_le_u32 s59, 8"); a(f"s_cbranch_scc1 L_{tag}_loop")

def loader_k(a):
    SRD = 32; SO = 40
    kwait(a)
    srd(a, SRD, P_K, SZ_KV)
    a("v_lshrrev_b32 v1, 4, v0"); a("v_and_b32 v2, 15, v0"); a("v_xor_b32 v2, v2, v1")
    a("v_lshlrev_b32 v2, 4, v2"); a("v_lshl_add_u32 v4, v1, 8, v2")
    a("v_xor_b32 v5, 64, v4"); a("v_xor_b32 v6, 128, v4"); a("v_xor_b32 v7, 192, v4")
    wo_prep(a)
    a("v_and_b32 v8, 15, v0"); a("v_mul_u32_u24 v8, 1152, v8")
    a("v_lshrrev_b32 v9, 4, v0"); a("v_lshl_add_u32 v9, v9, 7, v8")
    kv_pos(a, 43, 'k')
    if OPT.get('wswarm', 1):
        srd(a, 44, P_WS, SZ_WS_USED); srd(a, 48, P_OUT, SZ_OUT)
        a(f"s_lshl_b32 s40, s{S_G}, 5"); a(f"s_add_u32 s40, s40, s{S_H}"); a("s_lshl_b32 s40, s40, 15")
        a(f"s_lshl_b32 s41, s{S_G}, 2"); a(f"s_add_u32 s41, s41, s{S_J}"); a("s_lshl_b32 s41, s41, 2")
        a("s_mul_i32 s42, s41, 73728"); a(f"s_add_u32 s42, s42, {WS_D}")
        a(f"s_mul_i32 s45, s{S_X}, 1152") if False else None
        a(f"s_mul_i32 s58, s{S_X}, 1152"); a("s_add_u32 s42, s42, s58")
        a("s_lshl_b32 s41, s41, 8"); a(f"s_add_u32 s41, s41, {WS_F2}")
        a("v_mov_b32 v11, 0")
        a("s_mov_b64 exec, 1")
        a("buffer_load_dword v10, v11, s[44:47], s40 offen")
        a("buffer_load_dword v10, v11, s[44:47], s42 offen")
        a("buffer_load_dword v10, v11, s[44:47], s41 offen sc1")
        a(f"s_lshl_b32 s40, s{S_G}, 7"); a(f"s_lshl_b32 s41, s{S_X}, 1"); a("s_add_u32 s40, s40, s41"); a("s_mul_i32 s40, s40, 1152")
        a(f"s_mul_i32 s41, s{S_J}, 288"); a("s_add_u32 s40, s40, s41")
        a("buffer_load_dword v10, v11, s[48:51], s40 offen")
        a("s_mov_b64 exec, -1")
    if OPT.get('tlbwarm', 0):
        a(f"s_lshl_b32 s{SO}, s{S_G}, 7"); a(f"s_add_u32 s{SO}, s{SO}, s{S_H}"); a(f"s_lshl_b32 s{SO}, s{SO}, 13")
        a("v_lshlrev_b32 v11, 18, v0")
        a("s_mov_b64 exec, 15")
        a(f"buffer_load_dword v10, v11, s[{SRD}:{SRD+3}], s{SO} offen nt")
        a("s_mov_b64 exec, -1")
    a("s_barrier")
    stamp(a, 1)
    def issue():
        a(f"s_lshl_b32 s{SO}, s{S_G}, 7"); a(f"s_add_u32 s{SO}, s{SO}, s{S_H}"); a(f"s_lshl_b32 s{SO}, s{SO}, 13")
        for w in range(4):
            for hf in range(2):
                a(f"s_mov_b32 m0, {L_K + w*8192 + hf*4096}"); a("s_nop 0")
                for t4 in range(4):
                    t = hf * 4 + t4
                    dma(a, 4 + (t >> 1), SRD, SO, off=t4 * 1024, nt=bool(OPT['k_nt']))
                a(f"s_add_u32 s{SO}, s{SO}, {4096 if hf == 0 else 32*8192 - 4096}")
    def wotouch():
        a(f"s_lshl_b32 s{SO}, s{S_X}, 5"); a(f"s_add_u32 s{SO}, s{SO}, s{S_R}")
        a(f"s_mul_i32 s{SO}, s{SO}, {16*1152}")
        a(f"buffer_load_dword v10, v9, s[52:55], s{SO} offen")
        a(f"buffer_load_dword v10, v9, s[52:55], s{SO} offen offset:512")
        a("s_mov_b64 exec, 0xffff")
        a(f"buffer_load_dword v10, v8, s[52:55], s{SO} offen offset:1024")
        a("s_mov_b64 exec, -1")
    kv_loop(a, "k", issue, wotouch, OPT['wot_pos'])
    a("s_waitcnt vmcnt(3)")
    stamp(a, 7)
    loader_tail(a, 2)

def loader_v(a):
    SRD = 32; SO = 40
    kwait(a)
    srd(a, SRD, P_V, SZ_KV)
    a("s_cmp_lg_u32 s2, 0"); a("s_cbranch_scc1 L_nononce")
    srd(a, 48, P_DBG, 256)
    a("s_memrealtime s[42:43]"); a("s_waitcnt lgkmcnt(0)")
    a("s_or_b32 s42, s42, 1")
    a("v_mov_b32 v8, s42"); a("v_mov_b32 v9, s43"); a("v_mov_b32 v1, 0")
    a("s_mov_b64 exec, 1")
    a("buffer_store_dwordx2 v[8:9], v1, s[48:51], 0 offen sc1")
    a("s_mov_b64 exec, -1")
    a.label("L_nononce")
    if OPT['fast']:
        srd(a, 48, P_DBG, 256)
        a("s_getreg_b32 s42, hwreg(HW_REG_XCC_ID)")
        a("s_and_b32 s42, s42, 15")
        a("s_cmp_ge_u32 s42, 8"); a("s_cbranch_scc1 L_noxcc")
        a("s_mul_i32 s43, s42, s42"); a("s_lshl_b32 s43, s43, 5"); a("s_add_u32 s42, s42, s43")
        a("s_add_u32 s42, s42, 0x2000")
        a(f"s_lshl_b32 s43, s{S_G}, 3"); a(f"s_add_u32 s43, s43, s{S_X}")
        a("s_and_b32 s41, s43, 1"); a("s_lshl_b32 s41, s41, 4"); a("s_lshl_b32 s42, s42, s41")
        a("s_lshr_b32 s43, s43, 1"); a("s_lshl_b32 s43, s43, 2"); a("s_add_u32 s43, s43, 128")
        a("v_mov_b32 v8, s42"); a("v_mov_b32 v1, 0")
        a("s_mov_b64 exec, 1")
        a("buffer_atomic_add v8, v1, s[48:51], s43 offen")
        a("s_mov_b64 exec, -1")
        a.label("L_noxcc")
    a("v_lshrrev_b32 v1, 4, v0"); a("v_and_b32 v2, 15, v0"); a("v_lshlrev_b32 v3, 1, v1")
    a("v_xor_b32 v2, v2, v3"); a("v_lshlrev_b32 v2, 4, v2"); a("v_lshl_add_u32 v4, v1, 8, v2")
    a("v_xor_b32 v5, 128, v4")
    wo_prep(a)
    kv_pos(a, 43, 'v')
    if OPT.get('tlbwarm', 0):
        a(f"s_lshl_b32 s{SO}, s{S_G}, 7"); a(f"s_add_u32 s{SO}, s{SO}, s{S_H}"); a(f"s_lshl_b32 s{SO}, s{SO}, 13")
        a("v_lshlrev_b32 v11, 18, v0")
        a("s_mov_b64 exec, 15")
        a(f"buffer_load_dword v10, v11, s[{SRD}:{SRD+3}], s{SO} offen nt")
        a("s_mov_b64 exec, -1")
    a("s_barrier")
    stamp(a, 1)
    def issue():
        a(f"s_lshl_b32 s{SO}, s{S_G}, 7"); a(f"s_add_u32 s{SO}, s{SO}, s{S_H}"); a(f"s_lshl_b32 s{SO}, s{SO}, 13")
        for w in range(4):
            for hf in range(2):
                a(f"s_mov_b32 m0, {L_V + w*8192 + hf*4096}"); a("s_nop 0")
                for t4 in range(4):
                    t = hf * 4 + t4
                    dma(a, 4 + ((t >> 1) & 1), SRD, SO, off=t4 * 1024, nt=bool(OPT['v_nt']))
                a(f"s_add_u32 s{SO}, s{SO}, {4096 if hf == 0 else 32*8192 - 4096}")
    kv_loop(a, "v", issue)
    if OPT.get('vearly', 0): a("s_waitcnt vmcnt(0)")
    stamp(a, 7)
    loader_tail(a, 3)

V_XA = [4, 8]; V_WA = [12, 248]
V_A = [16, 32]; V_B = [48, 52]; V_ACC = 64
V_QF = 128; V_KF = 160; V_S = 192; V_VF = 208; V_PF = 240; V_OF = 128
V_KA = 56; V_VA = 60; V_CLW = 61; V_NONCE = 62
SC_SCALE = 0.08838834764831845 * 1.4426950408889634

def gemm1_addrs(a):
    a("v_and_b32 v1, 31, v0"); a("v_lshrrev_b32 v2, 5, v0"); a("v_bfe_u32 v3, v0, 1, 3")
    a("v_xor_b32 v2, v2, v3"); a("v_lshlrev_b32 v2, 4, v2"); a("v_lshl_add_u32 v2, v1, 7, v2")
    a(f"s_lshl_b32 s40, s{S_WAVE}, 12"); a("s_add_u32 s40, s40, 16384")
    a("v_add_u32 v2, s40, v2")
    for ks in range(4):
        a(f"v_xor_b32 v{V_XA[0]+ks}, {32*ks}, v2"); a(f"v_add_u32 v{V_XA[1]+ks}, 65536, v{V_XA[0]+ks}")
    a("v_bfe_u32 v1, v0, 2, 2"); a("v_lshrrev_b32 v2, 5, v0"); a("v_lshl_add_u32 v2, v2, 3, v1")
    a("v_lshlrev_b32 v2, 8, v2"); a("v_and_b32 v3, 1, v0"); a("v_lshl_add_u32 v2, v3, 5, v2")
    a("v_bfe_u32 v3, v0, 4, 1"); a("v_lshl_add_u32 v2, v3, 4, v2")
    a("v_bfe_u32 v3, v0, 1, 1"); a("v_lshl_add_u32 v2, v3, 3, v2")
    a("v_lshl_add_u32 v2, v1, 6, v2")
    for dt in range(4):
        a(f"v_xor_b32 v{V_WA[0]+dt}, {64*dt}, v2"); a(f"v_add_u32 v{V_WA[1]+dt}, 65536, v{V_WA[0]+dt}")

def attn_addrs(a):
    a("v_and_b32 v1, 15, v0"); a("v_lshrrev_b32 v2, 4, v0"); a("v_xor_b32 v2, v2, v1")
    a("v_lshlrev_b32 v2, 4, v2"); a("v_lshrrev_b32 v3, 2, v1"); a("v_lshl_add_u32 v2, v3, 11, v2")
    a("v_and_b32 v3, 3, v1"); a("v_lshl_add_u32 v2, v3, 8, v2")
    a(f"s_lshl_b32 s40, s{S_WAVE}, 13"); a(f"s_add_u32 s40, s40, {L_K}")
    a("v_add_u32 v2, s40, v2")
    for st in range(4): a(f"v_xor_b32 v{V_KA+st}, {64*st}, v2")
    a("v_lshrrev_b32 v1, 4, v0"); a("v_bfe_u32 v3, v0, 2, 2"); a("v_lshl_add_u32 v2, v1, 3, v3")
    a("v_lshlrev_b32 v2, 8, v2"); a("v_and_b32 v1, 1, v1"); a("v_lshl_add_u32 v3, v1, 2, v3")
    a("v_lshl_add_u32 v2, v3, 5, v2"); a("v_and_b32 v3, 3, v0"); a("v_lshl_add_u32 v2, v3, 3, v2")
    a(f"s_lshl_b32 s40, s{S_WAVE}, 13"); a(f"s_add_u32 s40, s40, {L_V}")
    a(f"v_add_u32 v{V_VA}, s40, v2")

def g1_reads(n):
    i, ks = divmod(n, 4)
    slot = i % 3; st = n & 1; hs = 1 if slot == 2 else 0; so = (slot & 1) * 32768 if slot < 2 else 0
    r = [f"ds_read_b128 {vr(V_B[st],4)}, v{V_XA[hs]+ks} offset:{so}"]
    for dt in range(4):
        base = V_A[st] + 4 * dt
        off = so + ks * 4096
        r.append(f"ds_read_b64_tr_b16 {vr(base,2)}, v{V_WA[hs]+dt} offset:{off}")
        r.append(f"ds_read_b64_tr_b16 {vr(base+2,2)}, v{V_WA[hs]+dt} offset:{off+1024}")
    return r

def gemm1(a):
    NS = NCH * 4
    kv_pos(a, 43, 'k')
    a("s_barrier")
    bx(a, -1, "c")
    a("s_barrier")
    stamp(a, 1)
    for r in g1_reads(0): a(r)
    for n in range(NS):
        i, ks = divmod(n, 4); st = n & 1
        nxt = g1_reads(n + 1) if n + 1 < NS else []
        def mf(dt):
            c = "0" if n == 0 else vr(V_ACC + 16 * dt, 16)
            a(f"v_mfma_f32_32x32x16_bf16 {vr(V_ACC+16*dt,16)}, {vr(V_A[st]+4*dt,4)}, {vr(V_B[st],4)}, {c}")
        if ks == 3:
            for dt in range(4):
                a(f"s_waitcnt lgkmcnt({[6,4,2,0][dt]})")
                if dt == 3 and nxt:
                    bx(a, i, "c")
                    a("s_barrier")
                    for r in nxt[:5]: a(r)
                mf(dt)
            for r in nxt[5:]: a(r)
        else:
            first_after_boundary = (ks == 0 and n > 0)
            for dt in range(4):
                a(f"s_waitcnt lgkmcnt({[6,7,8,9][dt]})")
                mf(dt)
                if dt < 3:
                    for r in nxt[3*dt:3*dt+3]: a(r)
        if n == 33 and OPT.get('nonce_in', 1): get_nonce(a)
        if n == 24:
            a(f"buffer_load_dwordx2 {vr(V_NONCE,2)}, v1, s[36:39], 0 offen sc1")
            if OPT['fast']:
                a(f"buffer_load_dword v{V_CLW}, v1, s[36:39], s40 offen sc1")
                a(f"buffer_load_dword v2, v1, s[44:47], s42 offen sc1")

def attention(a):
    VE = OPT.get('vearly', 0)
    a("s_barrier")
    stamp(a, 3)
    for ai in range(2):
        for st in range(4):
            a(f"ds_read_b128 {vr(V_KF+(ai*4+st)*4,4)}, v{V_KA+st} offset:{ai*1024}")
    def vreads(T0, T1):
        for T in range(T0, T1):
            if T: a(f"v_xor_b32 v1, {32*T}, v{V_VA}")
            ad = "v1" if T else f"v{V_VA}"
            a(f"ds_read_b64_tr_b16 {vr(V_VF+4*T,2)}, {ad}")
            a(f"ds_read_b64_tr_b16 {vr(V_VF+4*T+2,2)}, {ad} offset:1024")
    for dt in range(4):
        for i in range(8):
            a(f"v_cvt_pk_bf16_f32 v{V_QF+8*dt+i}, v{V_ACC+16*dt+2*i}, v{V_ACC+16*dt+2*i+1}")
        if VE and dt == 1:
            a("s_waitcnt lgkmcnt(0)"); vreads(0, 4)
    a("s_nop 1")
    for dt in range(4):
        for i in range(4):
            a(f"v_permlane16_swap_b32 v{V_QF+8*dt+i}, v{V_QF+8*dt+4+i}")
    if VE:
        a("s_waitcnt lgkmcnt(4)"); vreads(4, 8)
    else:
        a("s_waitcnt lgkmcnt(0)")
    for st in range(4):
        for ai in range(2):
            for qt in range(2):
                d = vr(V_S + (ai*2+qt)*4, 4)
                c = "0" if st == 0 else d
                a(f"v_mfma_f32_16x16x32_bf16 {d}, {vr(V_KF+(ai*4+st)*4,4)}, {vr(V_QF+8*st+4*qt,4)}, {c}")
    if VE:
        a("s_waitcnt lgkmcnt(0)")
    def S(ai, qt, v): return V_S + (ai*2+qt)*4 + v
    M = [48, 49]; T_ = [50, 51]; SUM = [52, 53]
    a("s_nop 7")
    for qt in range(2): a(f"v_max3_f32 v{M[qt]}, v{S(0,qt,0)}, v{S(0,qt,1)}, v{S(0,qt,2)}")
    for qt in range(2): a(f"v_max3_f32 v{M[qt]}, v{M[qt]}, v{S(0,qt,3)}, v{S(1,qt,0)}")
    for qt in range(2): a(f"v_max3_f32 v{M[qt]}, v{M[qt]}, v{S(1,qt,1)}, v{S(1,qt,2)}")
    for qt in range(2): a(f"v_max_f32 v{M[qt]}, v{M[qt]}, v{S(1,qt,3)}")
    def xlane(regs, tmps, op):
        for sw in ("v_permlane16_swap_b32", "v_permlane32_swap_b32"):
            for qt in range(2): a(f"v_mov_b32 v{tmps[qt]}, v{regs[qt]}")
            a("s_nop 0")
            for qt in range(2): a(f"{sw} v{tmps[qt]}, v{regs[qt]}")
            a("s_nop 0")
            for qt in range(2): a(f"{op} v{regs[qt]}, v{regs[qt]}, v{tmps[qt]}")
    xlane(M, T_, "v_max_f32")
    a(f"s_mov_b32 s41, {f32hex(SC_SCALE)}")
    for qt in range(2): a(f"v_mul_f32 v{M[qt]}, s41, v{M[qt]}")
    for ai in range(2):
        for v in range(4):
            for qt in range(2): a(f"v_fma_f32 v{S(ai,qt,v)}, v{S(ai,qt,v)}, s41, -v{M[qt]}")
    for ai in range(2):
        for v in range(4):
            for qt in range(2): a(f"v_exp_f32 v{S(ai,qt,v)}, v{S(ai,qt,v)}")
    a("s_nop 0")
    for qt in range(2): a(f"v_add_f32 v{SUM[qt]}, v{S(0,qt,0)}, v{S(0,qt,1)}")
    for (ai, v) in [(0,2),(0,3),(1,0),(1,1),(1,2),(1,3)]:
        for qt in range(2): a(f"v_add_f32 v{SUM[qt]}, v{SUM[qt]}, v{S(ai,qt,v)}")
    xlane(SUM, T_, "v_add_f32")
    for qt in range(2): a(f"v_rcp_f32 v{SUM[qt]}, v{SUM[qt]}")
    a("s_nop 0")
    for ai in range(2):
        for v in range(4):
            for qt in range(2): a(f"v_mul_f32 v{S(ai,qt,v)}, v{S(ai,qt,v)}, v{SUM[qt]}")
    for qt in range(2):
        for ai in range(2):
            for h2 in range(2):
                a(f"v_cvt_pk_bf16_f32 v{V_PF+4*qt+2*ai+h2}, v{S(ai,qt,2*h2)}, v{S(ai,qt,2*h2+1)}")
    stamp(a, 4)
    if VE:
        a("s_nop 0")
    else:
        a("s_barrier")
        vreads(0, 6); a("s_waitcnt lgkmcnt(4)"); vreads(6, 8)
        a("s_waitcnt lgkmcnt(0)")
        a("s_barrier")
    def pv(T):
        for qt in range(2):
            a(f"v_mfma_f32_16x16x32_bf16 {vr(V_ACC+(T*2+qt)*4,4)}, {vr(V_VF+4*T,4)}, {vr(V_PF+4*qt,4)}, 0")
    def pack(p):
        for qt in range(2):
            for e in range(2):
                T = 2*p + e
                for h2 in range(2):
                    src = V_ACC + (T*2+qt)*4 + 2*h2
                    a(f"v_cvt_pk_bf16_f32 v{V_OF+(2*p+qt)*4+2*e+h2}, v{src}, v{src+1}")
    if OPT.get('ostin', 1):
        o_store(a)
        a("s_nop 0")
        for T in range(6): pv(T)
        pack(0); pv(6); a(OSTORES[0]); a(OSTORES[1]); pv(7)
        pack(1); a(OSTORES[2]); a(OSTORES[3])
        a("s_barrier")
        pack(2); a(OSTORES[4]); a(OSTORES[5])
        a("s_nop 1")
        pack(3); a(OSTORES[6]); a(OSTORES[7])
    else:
        for T in range(8): pv(T)
        if VE: a("s_barrier")
        a("s_nop 7")
        for p in range(4): pack(p)

V2_ACC = 16
V2_A = [88, 108]
V2_AD = [4, 5, 6, 12]
BUF = [160, 192, 224]

def p2_areads(slot, p, half, buf=None):
    r = []
    ad = V2_AD[slot]
    taus = range(0, 5) if half == 0 else range(5, 9)
    if buf is None: buf = half
    for k, tau in enumerate(taus):
        off = p * 32 * 288 + 32 * tau
        base = V2_A[buf] + 4 * k
        r.append(f"ds_read_b64_tr_b16 {vr(base,2)}, v{ad} offset:{off}")
        r.append(f"ds_read_b64_tr_b16 {vr(base+2,2)}, v{ad} offset:{off+16*288}")
    return r

def p2_bloads(a, slot, breg):
    a(f"s_add_u32 s45, s{S_J}, {slot}"); a("s_and_b32 s45, s45, 3"); a("s_add_u32 s45, s45, s44")
    a("s_lshl_b32 s45, s45, 2"); a(f"s_add_u32 s45, s45, s{S_WAVE}")
    a("s_lshl_b32 s46, s45, 13"); a("s_add_u32 s47, s46, 4096")
    for f in range(8):
        a(f"buffer_load_dwordx4 {vr(breg+4*f,4)}, v7, s[32:35], s{46 + f//4} offen offset:{(f%4)*1024} sc1")

S_NON = 52
S_FAST = 54

def get_nonce(a):
    a("s_waitcnt vmcnt(0)")
    a("v_mov_b32 v9, 0")
    a("s_mov_b32 s50, 0")
    a.label("L_nonce_chk")
    a(f"v_readfirstlane_b32 s{S_NON}, v{V_NONCE}"); a(f"v_readfirstlane_b32 s{S_NON+1}, v{V_NONCE+1}")
    a("s_nop 0")
    a(f"s_cmp_lg_u32 s{S_NON}, 0"); a("s_cbranch_scc1 L_nonce_ok")
    a(f"buffer_load_dwordx2 {vr(V_NONCE,2)}, v9, s[36:39], 0 offen sc1")
    a("s_add_u32 s50, s50, 1"); a("s_waitcnt vmcnt(0)")
    a(f"s_cmp_lt_u32 s50, {OPT['spin_max']}"); a("s_cbranch_scc1 L_nonce_chk")
    a.label("L_nonce_ok")
    a(f"s_mov_b32 s{S_FAST}, 0")
    if OPT['fast']:
        a(f"v_readfirstlane_b32 s55, v{V_CLW}")
        a(f"s_and_b32 s56, s{S_X}, 1"); a("s_lshl_b32 s56, s56, 4"); a("s_lshr_b32 s55, s55, s56")
        a("s_and_b32 s56, s55, 31")
        a("s_bfe_u32 s57, s55, 0x80005")
        a("s_bfe_u32 s55, s55, 0x3000d")
        a("s_mul_i32 s56, s56, s56"); a("s_lshl_b32 s57, s57, 2")
        a("s_cmp_eq_u32 s56, s57"); a(f"s_cselect_b32 s{S_FAST}, 1, 0")
        a("s_cmp_eq_u32 s55, 4"); a(f"s_cselect_b32 s{S_FAST}, s{S_FAST}, 0")
        if OPT['fast'] == 2: a(f"s_mov_b32 s{S_FAST}, 0")

def poll(a, tag, voff, soff, sleep=0):
    a("s_mov_b32 s50, 0")
    a.label(f"L_poll_{tag}")
    if sleep: a(f"s_sleep {sleep}")
    a(f"buffer_load_dwordx2 v[10:11], v{voff}, s[32:35], s{soff} offen sc1")
    a("s_add_u32 s50, s50, 1"); a("s_waitcnt vmcnt(0)")
    a(f"v_cmp_eq_u64 vcc, v[10:11], s[{S_NON}:{S_NON+1}]")
    a(f"s_cmp_ge_u32 s50, {OPT['spin_max']}"); a(f"s_cbranch_scc1 L_poll_{tag}_done")
    a("s_cmp_eq_u64 vcc, -1"); a(f"s_cbranch_scc0 L_poll_{tag}")
    a.label(f"L_poll_{tag}_done")

def flag_store(a, soff, mode):
    a(f"v_mov_b32 v10, s{S_NON}"); a(f"v_mov_b32 v11, s{S_NON+1}")
    a("s_mov_b64 exec, 1")
    if mode == 'dyn':
        a(f"s_cmp_eq_u32 s{S_FAST}, 0"); a("s_cbranch_scc1 L_flag_slow")
        a(f"buffer_store_dwordx2 v[10:11], v9, s[32:35], s{soff} offen")
        a("s_branch L_flag_join")
        a.label("L_flag_slow")
        a(f"buffer_store_dwordx2 v[10:11], v9, s[32:35], s{soff} offen sc1")
        a.label("L_flag_join")
    else:
        a(f"buffer_store_dwordx2 v[10:11], v9, s[32:35], s{soff} offen sc1")
    a("s_mov_b64 exec, -1")

def o_store(a):
    srd(a, 32, P_WS, SZ_WS_USED)
    a("v_lshlrev_b32 v7, 4, v0")
    a(f"s_lshl_b32 s40, s{S_G}, 5"); a(f"s_add_u32 s40, s40, s{S_H}"); a("s_lshl_b32 s40, s40, 2")
    a(f"s_add_u32 s40, s40, s{S_WAVE}"); a("s_lshl_b32 s40, s40, 13"); a("s_add_u32 s41, s40, 4096")
    global OSTORES
    OSTORES = [f"buffer_store_dwordx4 {vr(V_OF+4*f,4)}, v7, s[32:35], s{40 + f//4} offen offset:{(f%4)*1024} sc1" for f in range(8)]
    a("v_lshrrev_b32 v2, 4, v0"); a("v_bfe_u32 v3, v0, 2, 2"); a("v_lshl_add_u32 v2, v2, 2, v3")
    a("v_mul_u32_u24 v2, 288, v2"); a("v_and_b32 v3, 3, v0")
    a(f"v_lshl_add_u32 v{V2_AD[0]}, v3, 3, v2")
    for sl in range(1, 4): a(f"v_add_u32 v{V2_AD[sl]}, {sl*W_SLOT}, v{V2_AD[0]}")
    a(f"s_lshl_b32 s44, s{S_G}, 5"); a(f"s_lshl_b32 s45, s{S_X}, 2"); a("s_add_u32 s44, s44, s45")
    a(f"s_lshl_b32 s48, s{S_G}, 3"); a(f"s_add_u32 s48, s48, s{S_X}"); a("s_lshl_b32 s48, s48, 2")
    a(f"s_add_u32 s48, s48, s{S_WAVE}"); a("s_lshl_b32 s48, s48, 7"); a(f"s_add_u32 s48, s48, {WS_F}")
    a(f"s_lshl_b32 s49, s{S_J}, 3"); a("s_add_u32 s49, s49, s48")
    a("v_and_b32 v8, 3, v0"); a("v_lshlrev_b32 v8, 3, v8")

def bload_list(slot, breg):
    setup = [f"s_add_u32 s45, s{S_J}, {slot}", "s_and_b32 s45, s45, 3", "s_add_u32 s45, s45, s44",
             "s_lshl_b32 s45, s45, 2", f"s_add_u32 s45, s45, s{S_WAVE}",
             "s_lshl_b32 s46, s45, 13", "s_add_u32 s47, s46, 4096"]
    loads = [f"buffer_load_dwordx4 {vr(breg+4*f,4)}, v7, s[32:35], s{46 + f//4} offen offset:{(f%4)*1024} sc1" for f in range(8)]
    return setup, loads

def p2_run(a, hs, n0, n1, hooks_pre=None, hooks_mid=None, inject=None, spread=None):
    hooks_pre = hooks_pre or {}; hooks_mid = hooks_mid or {}; inject = inject or {}; spread = spread or {}
    for n in range(n0, n1):
        (s, p, hf) = hs[n]
        breg = V_OF if s == 0 else BUF[s - 1]
        nxt = p2_areads(*hs[n+1], buf=(n+1) & 1) if n + 1 < n1 else []
        taus = list(range(0, 5)) if hf == 0 else list(range(5, 9))
        nown = 2 * len(taus)
        nm = nown
        plan = [0] * nm
        for t in range(len(nxt)): plan[t % nm] += 1
        issued = 0; m = 0
        inj = list(inject.get(n, []))
        spr = list(spread.get(n, []))
        per = -(-len(spr) // nm) if spr else 0
        if n in hooks_pre: hooks_pre[n]()
        for k, tau in enumerate(taus):
            a(f"s_waitcnt lgkmcnt({nown - 2 * (k + 1) + issued})")
            for qt in range(2):
                d = vr(V2_ACC + (tau*2+qt)*4, 4)
                c = "0" if (s == 0 and p == 0) else d
                a(f"v_mfma_f32_16x16x32_bf16 {d}, {vr(V2_A[n & 1]+4*k,4)}, {vr(breg+(2*p+qt)*4,4)}, {c}")
                if m == 0 and n in hooks_mid: hooks_mid[n]()
                if nxt:
                    for r in nxt[issued:issued+plan[m]]: a(r)
                    issued = min(len(nxt), issued + plan[m])
                for _ in range(per):
                    if spr: a(spr.pop(0))
                m += 1
                if k >= len(taus) - 1 and inj: a(inj.pop(0))
        while inj: a(inj.pop(0))
        while spr: a(spr.pop(0))

def d_prep(a):
    a("v_bfe_u32 v13, v0, 1, 3"); a("v_mul_u32_u24 v13, 9216, v13")
    a("v_lshrrev_b32 v14, 4, v0"); a("v_lshlrev_b32 v14, 1, v14"); a("v_and_b32 v15, 1, v0")
    a("v_add_u32 v14, v14, v15"); a("v_lshl_add_u32 v13, v14, 4, v13")
    a(f"s_lshl_b32 s58, s{S_G}, 2"); a(f"s_add_u32 s58, s58, s{S_J}"); a("s_lshl_b32 s58, s58, 2")
    a(f"s_add_u32 s58, s58, s{S_WAVE}")
    a("s_mul_i32 s59, s58, 73728"); a(f"s_add_u32 s59, s59, {WS_D}")
    a(f"s_mul_i32 s40, s{S_X}, 1152"); a("s_add_u32 s40, s40, s59")

def d_pack_store(tau, G=160):
    r = []
    for qt in range(2):
        for h2 in range(2):
            src = V2_ACC + (tau*2+qt)*4 + 2*h2
            r.append(f"v_cvt_pk_bf16_f32 v{G+4*tau+2*qt+h2}, v{src}, v{src+1}")
    r.append(f"buffer_store_dwordx4 {vr(G+4*tau,4)}, v13, s[32:35], s40 offen offset:{128*tau} sc1")
    return r

def tail(a):
    hs = [(s, p, hf) for s in range(2) for p in range(4) for hf in range(2)]
    hs += [(2, p, 0) for p in range(4)] + [(3, p, 0) for p in range(4)]
    hs += [(2, p, 1) for p in range(4)] + [(3, p, 1) for p in range(4)]
    if not OPT.get('ostin', 1):
        o_store(a)
        for x in OSTORES: a(x)
    stamp(a, 6)
    for r in p2_areads(*hs[0], buf=0): a(r)
    def exch():
        a("s_waitcnt vmcnt(0)")
        flag_store(a, 49, 'dyn')
        stamp(a, 7)
        if OPT.get('poll1', 1):
            a(f"s_add_u32 s56, s{S_J}, 1"); a("s_and_b32 s56, s56, 3")
            a("s_mov_b32 s50, 0")
            a.label("L_poll_o1")
            if OPT.get('o_sleep', 0): a(f"s_sleep {OPT['o_sleep']}")
            a("buffer_load_dwordx2 v[10:11], v8, s[32:35], s48 offen sc1")
            a("s_add_u32 s50, s50, 1"); a("s_waitcnt vmcnt(0)")
            a(f"v_cmp_eq_u64 vcc, v[10:11], s[{S_NON}:{S_NON+1}]")
            a(f"s_cmp_ge_u32 s50, {OPT['spin_max']}"); a("s_cbranch_scc1 L_poll_o1_done")
            a("s_bitcmp1_b32 vcc_lo, s56"); a("s_cbranch_scc0 L_poll_o1")
            a.label("L_poll_o1_done")
            a("s_cmp_eq_u64 vcc, -1"); a("s_cselect_b32 s55, 1, 0")
        else:
            poll(a, "o", 8, 48, sleep=OPT.get('o_sleep', 0))
        stamp(a, 8)
        p2_bloads(a, 1, BUF[0])
        a("s_nop 3")
    p2_run(a, hs, 0, 8, hooks_pre={OPT.get('flagpos', 4): exch})
    a("s_barrier")
    tstamp(a, 1)
    if OPT.get('poll1', 1):
        a("s_cmp_eq_u32 s55, 1"); a("s_cbranch_scc1 L_poll_o_skip")
        poll(a, "o", 8, 48, sleep=OPT.get('o_sleep', 0))
        a.label("L_poll_o_skip")
    for r in p2_areads(*hs[8], buf=0): a(r)
    su2, l2 = bload_list(2, BUF[1]); su3, l3 = bload_list(3, BUF[2])
    for x in su2: a(x)
    d_prep(a)
    inj = {}
    for t in range(4):
        inj[8 + t] = list(l2[2*t:2*t+2])
        inj[12 + t] = list(l3[2*t:2*t+2])
    inj[11] = inj[11] + su3
    spr = {25: d_pack_store(0) + d_pack_store(1), 26: d_pack_store(2) + d_pack_store(3), 27: d_pack_store(4)}
    W = lambda n: (lambda: a(f"s_waitcnt vmcnt({n})"))
    def WC(n, idx):
        def f():
            if OPT.get('cyc', 0): cstamp(a, idx)
            if n is not None: a(f"s_waitcnt vmcnt({n})")
        return f
    p2_run(a, hs, 8, 32,
           hooks_pre={8: WC(6, 3), 10: W(8), 12: W(10), 14: W(12), 16: WC(8, 4), 20: W(0), 24: WC(None, 13)},
           hooks_mid={15: lambda: a("s_barrier"), 19: lambda: a("s_barrier")},
           inject=inj, spread=spr)
    if OPT.get('cyc', 0): cstamp(a, 1)
    stamp(a, 9)
    reduce_inkernel(a)

def store_partials_f32(a):
    a("s_nop 7")
    a(f"s_lshl_b32 s45, s{S_X}, 3"); a(f"s_add_u32 s45, s45, s{S_G}"); a("s_lshl_b32 s45, s45, 2")
    a(f"s_add_u32 s45, s45, s{S_J}"); a("s_lshl_b32 s45, s45, 2"); a(f"s_add_u32 s45, s45, s{S_WAVE}")
    a(f"s_mul_i32 s45, s45, {18*1024}"); a(f"s_add_u32 s45, s45, {WS_P}")
    for u in range(18):
        if u and u % 4 == 0: a("s_add_u32 s45, s45, 4096")
        a(f"buffer_store_dwordx4 {vr(V2_ACC+4*u,4)}, v7, s[32:35], s45 offen offset:{(u%4)*1024}")

def store_partials_bf16(a):
    G = 160
    a(f"s_lshl_b32 s44, s{S_G}, 2"); a(f"s_add_u32 s44, s44, s{S_J}"); a("s_lshl_b32 s44, s44, 2")
    a(f"s_add_u32 s44, s44, s{S_WAVE}")
    a(f"s_lshl_b32 s45, s{S_X}, 7"); a("s_add_u32 s45, s45, s44"); a("s_mul_i32 s45, s45, 9216")
    a(f"s_add_u32 s45, s45, {WS_P}"); a("s_add_u32 s46, s45, 4096"); a("s_add_u32 s47, s45, 8192")
    sc = " sc1" if OPT.get('psc1', 1) else ""
    for tau in range(9):
        for qt in range(2):
            for h2 in range(2):
                src = V2_ACC + (tau*2+qt)*4 + 2*h2
                a(f"v_cvt_pk_bf16_f32 v{G+4*tau+2*qt+h2}, v{src}, v{src+1}")
        a(f"buffer_store_dwordx4 {vr(G+4*tau,4)}, v7, s[32:35], s{45 + tau//4} offen offset:{(tau%4)*1024}{sc}")

def kernel3b(a):
    name = "mha_p3_kernel"
    a(".p2align 8"); a(f".globl {name}"); a(f".type {name},@function"); a.label(name)
    a("s_cmp_ge_u32 s2, 288"); a(f"s_cbranch_scc1 L_end_{name}")
    a("s_load_dwordx2 s[26:27], s[0:1], 40"); a("s_load_dwordx2 s[30:31], s[0:1], 56")
    a("v_lshrrev_b32 v1, 6, v0"); a("v_and_b32 v0, 63, v0")
    a("s_lshl_b32 s5, s2, 2")
    a(f"v_readfirstlane_b32 s{S_WAVE}, v1")
    a("v_lshlrev_b32 v1, 4, v0")
    a(f"s_add_u32 s5, s5, s{S_WAVE}")
    a("s_mul_i32 s45, s5, 1024"); a(f"s_add_u32 s45, s45, {WS_P}")
    a("s_mul_hi_u32 s6, s5, 477218589")
    a("s_mul_i32 s7, s6, 9"); a("s_sub_u32 s7, s5, s7")
    a("s_waitcnt lgkmcnt(0)")
    srd(a, 32, P_WS, SZ_WS_USED); srd(a, 36, P_OUT, SZ_OUT)
    for x in range(8):
        a(f"buffer_load_dwordx4 {vr(8+4*x,4)}, v1, s[32:35], s45 offen")
        if x < 7: a(f"s_add_u32 s45, s45, {128*9216}")
    a("v_and_b32 v2, 15, v0"); a("v_mul_u32_u24 v2, 1152, v2"); a("v_lshrrev_b32 v3, 4, v0")
    a("v_lshl_add_u32 v2, v3, 3, v2")
    a("s_lshr_b32 s46, s6, 4"); a("s_lshl_b32 s46, s46, 2"); a("s_and_b32 s47, s6, 3"); a("s_add_u32 s46, s46, s47")
    a(f"s_mul_i32 s46, s46, {32*1152}")
    a("s_lshr_b32 s47, s6, 2"); a("s_and_b32 s47, s47, 3"); a("s_mul_i32 s47, s47, 288"); a("s_add_u32 s46, s46, s47")
    a("s_lshl_b32 s47, s7, 5"); a("s_add_u32 s46, s46, s47"); a(f"s_add_u32 s47, s46, {16*1152}")
    for x in range(8):
        a(f"s_waitcnt vmcnt({7-x})")
        for d in range(4):
            src = 8 + 4*x + d
            if x == 0:
                a(f"v_lshlrev_b32 v{40+2*d}, 16, v{src}"); a(f"v_and_b32 v{40+2*d+1}, 0xffff0000, v{src}")
            else:
                a(f"v_lshlrev_b32 v48, 16, v{src}"); a(f"v_and_b32 v49, 0xffff0000, v{src}")
                a(f"v_pk_add_f32 v[{40+2*d}:{40+2*d+1}], v[{40+2*d}:{40+2*d+1}], v[48:49]")
    for d in range(4): a(f"v_cvt_pk_bf16_f32 v{50+d}, v{40+2*d}, v{40+2*d+1}")
    a("buffer_store_dwordx2 v[50:51], v2, s[36:39], s46 offen")
    a("buffer_store_dwordx2 v[52:53], v2, s[36:39], s47 offen")
    a.label(f"L_end_{name}")
    a("s_endpgm")

def reduce_inkernel(a):
    RA = 196; RB = 88
    a("s_nop 7")
    for tau in range(5, 9):
        for x in d_pack_store(tau): a(x)
    a("s_lshl_b32 s48, s58, 8"); a(f"s_add_u32 s48, s48, {WS_F2}")
    a(f"s_lshl_b32 s49, s{S_X}, 3"); a("s_add_u32 s49, s49, s48")
    a("s_waitcnt vmcnt(4)")
    flag_store(a, 49, 'sc1')
    a("s_add_u32 s49, s49, 128")
    a("v_and_b32 v8, 7, v0"); a("v_lshlrev_b32 v8, 3, v8")
    a("v_and_b32 v14, 1, v0"); a("v_mul_u32_u24 v14, 1152, v14")
    a("v_bfe_u32 v15, v0, 1, 2"); a("v_lshl_add_u32 v14, v15, 3, v14")
    a("v_lshrrev_b32 v12, 3, v0"); a("v_lshl_add_u32 v14, v12, 5, v14")
    a("v_add_u32 v15, 160, v14")
    srd(a, 36, P_OUT, SZ_OUT)
    a(f"s_lshl_b32 s56, s{S_G}, 2"); a(f"s_add_u32 s56, s56, s{S_WAVE}"); a("s_lshl_b32 s56, s56, 5")
    a(f"s_lshl_b32 s57, s{S_X}, 1"); a("s_add_u32 s56, s56, s57"); a("s_mul_i32 s56, s56, 1152")
    a(f"s_mul_i32 s57, s{S_J}, 288"); a("s_add_u32 s56, s56, s57")
    a(f"s_add_u32 s57, s56, {16*1152}")
    a(f"s_mul_i32 s47, s{S_X}, 9216"); a("s_add_u32 s47, s47, s59")
    a("s_waitcnt vmcnt(1)")
    flag_store(a, 49, 'sc1')
    stamp(a, 10)
    poll(a, "da", 8, 48, sleep=OPT.get('d_sleep', 0))
    a("s_mov_b32 s46, s47")
    a("s_mov_b32 exec_hi, 0xff")
    for sx in range(8):
        a(f"buffer_load_dwordx4 {vr(RA+4*sx,4)}, v7, s[32:35], s46 offen sc1")
        if sx < 7: a("s_add_u32 s46, s46, 1152")
    a("s_mov_b64 exec, -1")
    a("s_add_u32 s48, s48, 128")
    poll(a, "db", 8, 48, sleep=OPT.get('d_sleep2', 1))
    stamp(a, 11)
    a("s_mov_b64 exec, 0xffffffff")
    for sx in range(8):
        a(f"buffer_load_dwordx4 {vr(RB+4*sx,4)}, v7, s[32:35], s47 offen offset:640 sc1")
        if sx < 7: a("s_add_u32 s47, s47, 1152")
    a("s_mov_b64 exec, -1")
    AA = 16; AB = 24; T = 32
    def summ(R, A, waits):
        for sx in range(8):
            if waits: a(f"s_waitcnt vmcnt({7 - sx})")
            for d in range(4):
                src = R + 4*sx + d
                if sx == 0:
                    a(f"v_lshlrev_b32 v{A+2*d}, 16, v{src}"); a(f"v_and_b32 v{A+2*d+1}, 0xffff0000, v{src}")
                else:
                    t = T + 2 * (d & 1)
                    a(f"v_lshlrev_b32 v{t}, 16, v{src}"); a(f"v_and_b32 v{t+1}, 0xffff0000, v{src}")
                    a(f"v_pk_add_f32 v[{A+2*d}:{A+2*d+1}], v[{A+2*d}:{A+2*d+1}], v[{t}:{t+1}]")
    fl = {0: "", 1: " sc1", 2: " nt", 3: " sc0 sc1"}[OPT.get('outfl', 0)]
    summ(RA, AA, False)
    for d in range(4): a(f"v_cvt_pk_bf16_f32 v{36+d}, v{AA+2*d}, v{AA+2*d+1}")
    summ(RB, AB, True)
    a("s_mov_b32 exec_hi, 0xff")
    a(f"buffer_store_dwordx2 v[36:37], v14, s[36:39], s56 offen{fl}")
    a(f"buffer_store_dwordx2 v[38:39], v14, s[36:39], s57 offen{fl}")
    a("s_mov_b64 exec, -1")
    for d in range(4): a(f"v_cvt_pk_bf16_f32 v{40+d}, v{AB+2*d}, v{AB+2*d+1}")
    a("s_mov_b64 exec, 0xffffffff")
    a(f"buffer_store_dwordx2 v[40:41], v15, s[36:39], s56 offen{fl}")
    a(f"buffer_store_dwordx2 v[42:43], v15, s[36:39], s57 offen{fl}")
    a("s_mov_b64 exec, -1")

def KNAME():
    return "standalone__mha_block_cached__near_ridge_kernel" if OPT['dk'] else "mha_a_kernel"

def kernelA(a):
    global KIDX
    KIDX = 0
    name = KNAME()
    prologue(a, name)
    stamp_init(a); stamp(a, 0); cstamp(a, 14)
    if OPT['stamps'] and OPT.get('entrystamp', 0): a("s_mov_b64 s[86:87], s[96:97]")
    a(f"s_cmp_lt_u32 s{S_WAVE}, 4"); a("s_cbranch_scc1 L_a_compute")
    a(f"s_cmp_eq_u32 s{S_WAVE}, 5"); a("s_cbranch_scc1 L_a_ldx")
    a(f"s_cmp_eq_u32 s{S_WAVE}, 6"); a("s_cbranch_scc1 L_a_ldk")
    a(f"s_cmp_eq_u32 s{S_WAVE}, 7"); a("s_cbranch_scc1 L_a_ldv")
    loader_ring(a, 'wq'); stamp_flush(a); a("s_endpgm")
    a.label("L_a_ldx"); loader_ring(a, 'x'); stamp_flush(a); a("s_endpgm")
    a.label("L_a_ldv"); loader_v(a); stamp_flush(a); a("s_endpgm")
    a.label("L_a_ldk"); loader_k(a); stamp_flush(a); a("s_endpgm")
    a.label("L_a_compute")
    CUR['compute'] = True
    gemm1_addrs(a); attn_addrs(a)
    if OPT.get('cprio', 0): a(f"s_setprio {OPT['cprio']}")
    kwait(a)
    srd(a, 36, P_DBG, 256)
    a("v_mov_b32 v1, 0")
    a(f"s_lshl_b32 s40, s{S_G}, 3"); a(f"s_add_u32 s40, s40, s{S_X}"); a("s_lshr_b32 s40, s40, 1")
    a("s_lshl_b32 s40, s40, 2"); a("s_add_u32 s40, s40, 128")
    srd(a, 44, P_WS, SZ_WS_USED)
    a(f"s_lshl_b32 s42, s{S_G}, 3"); a(f"s_add_u32 s42, s42, s{S_X}"); a("s_lshl_b32 s42, s42, 2")
    a(f"s_add_u32 s42, s42, s{S_WAVE}"); a("s_lshl_b32 s42, s42, 7"); a(f"s_add_u32 s42, s42, {WS_F}")
    gemm1(a)
    if not OPT.get('nonce_in', 1): get_nonce(a)
    stamp(a, 2)
    attention(a); stamp(a, 5)
    tail(a)
    if OPT['stamps']: a("s_waitcnt vmcnt(0)")
    stamp(a, 12); cstamp(a, 15); stamp_flush(a)
    if OPT.get('waitx', 0):
        a("s_waitcnt vmcnt(0)")
        a(f"s_add_u32 s62, s{S_NON}, {OPT['waitx']}")
        a("s_mov_b32 s63, 0")
        a.label("L_wx_spin")
        a("s_memrealtime s[64:65]"); a("s_waitcnt lgkmcnt(0)")
        a("s_add_u32 s63, s63, 1"); a("s_cmp_gt_u32 s63, 100000"); a("s_cbranch_scc1 L_wx_done")
        a("s_sub_u32 s66, s62, s64"); a("s_cmp_gt_i32 s66, 0"); a("s_cbranch_scc1 L_wx_spin")
        a.label("L_wx_done")
    if OPT.get('probe', -1) >= 0:
        a("s_waitcnt vmcnt(0)")
        a(f"s_sub_u32 s62, s60, s{S_NON}"); a(f"s_mul_i32 s62, s62, {OPT.get('probek', 8)}")
        a("s_memrealtime s[64:65]"); a("s_waitcnt lgkmcnt(0)")
        a("s_add_u32 s62, s62, s64")
        a("s_mov_b32 s63, 0")
        a.label("L_probe_spin")
        a("s_memrealtime s[64:65]"); a("s_waitcnt lgkmcnt(0)")
        a("s_add_u32 s63, s63, 1"); a("s_cmp_gt_u32 s63, 100000"); a("s_cbranch_scc1 L_probe_done")
        a("s_sub_u32 s66, s62, s64"); a("s_cmp_gt_i32 s66, 0"); a("s_cbranch_scc1 L_probe_spin")
        a.label("L_probe_done")
    a.label(f"L_end_{name}")
    a("s_endpgm")

def kernel3(a):
    global KIDX
    KIDX = 1
    name = "mha_p3_kernel"
    a(".p2align 8"); a(f".globl {name}"); a(f".type {name},@function"); a.label(name)
    a("s_cmp_ge_u32 s2, 256"); a(f"s_cbranch_scc1 L_end_{name}")
    a("s_load_dwordx16 s[16:31], s[0:1], 0")
    a("v_lshrrev_b32 v1, 6, v0"); a("v_and_b32 v0, 63, v0")
    a("s_lshr_b32 s5, s2, 1")
    a("s_and_b32 s6, s2, 1")
    a(f"v_readfirstlane_b32 s{S_WAVE}, v1")
    a("s_mul_i32 s6, s6, 9")
    a("s_waitcnt lgkmcnt(0)")
    stamp_init(a); stamp(a, 0); cstamp(a, 14)
    a(f"s_add_u32 s6, s6, s{S_WAVE}")
    srd(a, 32, P_WS, SZ_WS_USED); srd(a, 36, P_OUT, SZ_OUT)
    a("v_lshlrev_b32 v1, 4, v0")
    a("s_mul_i32 s45, s5, 18"); a("s_add_u32 s45, s45, s6"); a("s_lshl_b32 s45, s45, 10")
    a(f"s_add_u32 s45, s45, {WS_P}")
    for x in range(8):
        a(f"buffer_load_dwordx4 {vr(8+4*x,4)}, v1, s[32:35], s45 offen")
        if x < 7: a(f"s_add_u32 s45, s45, {128*18*1024}")
    a("v_and_b32 v2, 15, v0"); a("v_mul_u32_u24 v2, 1152, v2"); a("v_lshrrev_b32 v3, 4, v0")
    a("v_lshl_add_u32 v2, v3, 3, v2")
    a("s_lshr_b32 s46, s5, 4"); a("s_lshl_b32 s46, s46, 2"); a("s_and_b32 s47, s5, 3"); a("s_add_u32 s46, s46, s47")
    a(f"s_mul_i32 s46, s46, {32*1152}")
    a("s_lshr_b32 s47, s5, 2"); a("s_and_b32 s47, s47, 3"); a("s_mul_i32 s47, s47, 288"); a("s_add_u32 s46, s46, s47")
    a("s_and_b32 s47, s6, 1"); a(f"s_mul_i32 s47, s47, {16*1152}"); a("s_add_u32 s46, s46, s47")
    a("s_lshr_b32 s47, s6, 1"); a("s_lshl_b32 s47, s47, 5"); a("s_add_u32 s46, s46, s47")
    a("s_waitcnt vmcnt(0)")
    for v in range(4):
        for x in range(0, 8, 2): a(f"v_add_f32 v{8+4*x+v}, v{8+4*x+v}, v{12+4*x+v}")
    for v in range(4):
        a(f"v_add_f32 v{8+v}, v{8+v}, v{16+v}"); a(f"v_add_f32 v{24+v}, v{24+v}, v{32+v}")
    for v in range(4): a(f"v_add_f32 v{8+v}, v{8+v}, v{24+v}")
    a("v_cvt_pk_bf16_f32 v8, v8, v9"); a("v_cvt_pk_bf16_f32 v9, v10, v11")
    a("buffer_store_dwordx2 v[8:9], v2, s[36:39], s46 offen")
    if OPT['stamps']:
        a("s_waitcnt vmcnt(0)")
        stamp(a, 10); cstamp(a, 15)
        a(f"s_cmp_ge_u32 s{S_WAVE}, 8"); a("s_cbranch_scc1 L_end_mha_p3_kernel")
        stamp_flush(a, 44)
    a.label(f"L_end_{name}")
    a("s_endpgm")

def descriptor(a, name, vgpr, sgpr=102):
    a(f".amdhsa_kernel {name}")
    a(f".amdhsa_next_free_vgpr {vgpr}"); a(f".amdhsa_next_free_sgpr {sgpr}"); a(f".amdhsa_accum_offset {vgpr}")
    a(".amdhsa_group_segment_fixed_size 0"); a(".amdhsa_kernarg_size 64")
    a(".amdhsa_user_sgpr_count 2"); a(".amdhsa_user_sgpr_kernarg_segment_ptr 1")
    a(".amdhsa_system_sgpr_workgroup_id_x 1"); a(".end_amdhsa_kernel")

def main():
    out = sys.argv[1]
    for arg in sys.argv[2:]:
        if arg == "--stamps": OPT['stamps'] = True
        elif "=" in arg:
            k, v = arg.lstrip("-").split("="); OPT[k] = int(v)
    a = Asm()
    hdr = "; MHA block (Q-proj + attention + out-proj), generated by gen3.py\n"
    if OPT['dk']:
        hdr += "; @launch grid=(256,1,1) block=(512,1,1) lds=163840\n"
    else:
        hdr += "; @launch kernel=mha_a_kernel grid=(256,1,1) block=(512,1,1) lds=163840\n"
        if OPT.get('k3bf', 0): hdr += "; @launch kernel=mha_p3_kernel grid=(288,1,1) block=(256,1,1) lds=0\n"
        else: hdr += "; @launch kernel=mha_p3_kernel grid=(256,1,1) block=(576,1,1) lds=0\n"
    a('.amdgcn_target "amdgcn-amd-amdhsa--gfx950"'); a(".text")
    kernelA(a)
    if not OPT['dk']:
        if OPT.get('k3bf', 0): kernel3b(a)
        else: kernel3(a)
    a('.section .rodata,"a"'); a(".p2align 6"); descriptor(a, KNAME(), 256)
    if not OPT['dk']:
        a(".p2align 6"); descriptor(a, "mha_p3_kernel", 56)
    open(out, "w").write(hdr + a.text())

if __name__ == "__main__": main()
```

```python
import sys, struct

class Asm:
    def __init__(self): self.l = []
    def __call__(self, s=""):
        for x in s.split("\n"):
            x = x.strip()
            self.l.append(x if (x.endswith(":") or x.startswith(".")) else "  " + x)
    def label(self, s): self.l.append(s + ":")
    def text(self): return "\n".join(self.l) + "\n"

def vr(b, n=1): return f"v{b}" if n == 1 else f"v[{b}:{b+n-1}]"
def f32hex(x): return "0x%08x" % struct.unpack("<I", struct.pack("<f", x))[0]

P_X, P_K, P_V, P_WQ, P_WO, P_OUT, P_DBG, P_WS = 16, 18, 20, 22, 24, 26, 28, 30
SZ_X, SZ_KV, SZ_W, SZ_OUT = 1179648, 8388608, 4718592, 1179648
WS_O = 0
WS_P = 8 << 20
WS_F = 28 << 20
WS_F2 = (28 << 20) + (1 << 19)
WS_D = 8 << 20
WS_STAMP = 32 << 20
SZ_WS_USED = 64 << 20
S_WAVE, S_X, S_R, S_J, S_G, S_H = 3, 4, 5, 6, 9, 10

OPT = dict(stamps=False, fast=1, spin_max=2000000, kvmode=21, flagpos=3, xonce=1, vearly=1, woearly=1, d_sleep=1, d_sleep2=0, o_sleep=1, k_nt=1, v_nt=1, wot_pos=8, dk=1)

def srd(a, base, ptr, size, add=0):
    if add:
        a(f"s_add_u32 s{base}, s{ptr}, {add}"); a(f"s_addc_u32 s{base+1}, s{ptr+1}, 0")
        a(f"s_and_b32 s{base+1}, s{base+1}, 0xffff")
    else:
        a(f"s_mov_b32 s{base}, s{ptr}"); a(f"s_and_b32 s{base+1}, s{ptr+1}, 0xffff")
    a(f"s_mov_b32 s{base+2}, {size}"); a(f"s_mov_b32 s{base+3}, 0x00020000")

def prologue(a, name, nwg=256):
    a(".p2align 8"); a(f".globl {name}"); a(f".type {name},@function"); a.label(name)
    a(f"s_cmp_ge_u32 s2, {nwg}"); a(f"s_cbranch_scc1 L_end_{name}")
    if OPT['stamps'] and OPT.get('entrystamp', 0): a("s_memrealtime s[96:97]")
    a("s_load_dwordx16 s[16:31], s[0:1], 0")
    a("v_lshrrev_b32 v1, 6, v0"); a("v_and_b32 v0, 63, v0")
    a(f"s_and_b32 s{S_X}, s2, 7"); a(f"s_lshr_b32 s{S_R}, s2, 3")
    a(f"v_readfirstlane_b32 s{S_WAVE}, v1")
    a(f"s_and_b32 s{S_J}, s{S_R}, 3"); a(f"s_lshr_b32 s{S_G}, s{S_R}, 2")
    a(f"s_lshl_b32 s{S_H}, s{S_X}, 2"); a(f"s_add_u32 s{S_H}, s{S_H}, s{S_J}")
    if OPT['stamps'] or not OPT.get('latewait', 1): a("s_waitcnt lgkmcnt(0)")

def kwait(a):
    if not OPT['stamps'] and OPT.get('latewait', 1): a("s_waitcnt lgkmcnt(0)")

KIDX = 0
CUR = {}
def tstamp(a, idx):
    if OPT.get('tailstamps', 0): stamp(a, idx, force=True)
def stamp(a, idx, force=False):
    if OPT.get('probe', -1) == idx and CUR.get('compute') and (force or not (OPT.get('tailstamps', 0) and idx in (1,2,3,4,13))):
        a("s_memrealtime s[60:61]"); a("s_waitcnt lgkmcnt(0)")
        return
    if not OPT['stamps']: return
    if OPT.get('tailstamps', 0) and not force and idx in (1,2,3,4,13) and CUR.get('compute'): return
    a(f"s_memrealtime s[{60+2*idx}:{61+2*idx}]"); a("s_waitcnt lgkmcnt(0)")
def cstamp(a, idx):
    if not OPT['stamps']: return
    a(f"s_memtime s[{60+2*idx}:{61+2*idx}]"); a("s_waitcnt lgkmcnt(0)")
def stamp_init(a):
    if not OPT['stamps']: return
    for i in range(16): a(f"s_mov_b64 s[{60+2*i}:{61+2*i}], 0")
def stamp_flush(a, vb=250):
    if not OPT['stamps']: return
    srd(a, 92, P_WS, 256*16*16*8, add=WS_STAMP + KIDX*256*8*16*8)
    a("s_lshl_b32 s96, s2, 3"); a(f"s_add_u32 s96, s96, s{S_WAVE}"); a("s_lshl_b32 s96, s96, 7")
    a(f"v_mov_b32 v{vb+2}, 0")
    for i in range(16):
        a(f"v_mov_b32 v{vb}, s{60+2*i}"); a(f"v_mov_b32 v{vb+1}, s{61+2*i}")
        a(f"buffer_store_dwordx2 v[{vb}:{vb+1}], v{vb+2}, s[92:95], s96 offen offset:{i*8}")
        a("s_nop 1")
    a("s_waitcnt vmcnt(0)")

L_K = 98304; L_V = 131072; NCH = 9
W_SLOT = 36864

def dma(a, voff, srdb, soff, off=0, nt=False, fl=""):
    a(f"buffer_load_dwordx4 v{voff}, s[{srdb}:{srdb+3}], s{soff} offen" + (f" offset:{off}" if off else "") + (" nt" if nt else "") + fl + " lds")
def FL(key):
    return {0: "", 1: " sc1", 2: " sc0", 3: " sc0 sc1"}[OPT.get(key, 0)]

V_WOV = 16
def wo_prep(a):
    srd(a, 52, P_WO, SZ_W)
    for t in range(9):
        a(f"v_add_u32 v1, {64*t}, v0")
        a("v_mul_u32_u24 v2, 3641, v1")
        a("v_lshrrev_b32 v2, 16, v2")
        a("v_mul_u32_u24 v3, 18, v2")
        a("v_sub_u32 v3, v1, v3")
        a("v_lshlrev_b32 v3, 4, v3")
        a("v_mul_u32_u24 v2, 1152, v2")
        a(f"v_add_u32 v{V_WOV+t}, v2, v3")
    a(f"s_mul_i32 s56, s{S_J}, 288")
def wo_issue(a, slot, q0, nq):
    a(f"s_add_u32 s57, s{S_J}, {slot}"); a("s_and_b32 s57, s57, 3")
    a(f"s_lshl_b32 s58, s{S_X}, 2"); a("s_add_u32 s57, s57, s58")
    a(f"s_mul_i32 s57, s57, {128*1152}"); a("s_add_u32 s57, s57, s56")
    if q0: a(f"s_add_u32 s57, s57, {q0*32*1152}")
    a(f"s_mov_b32 m0, {slot*W_SLOT + q0*32*288}"); a("s_nop 0")
    for blk in range(nq):
        for t in range(9):
            dma(a, V_WOV + t, 52, 57, fl=FL('wofl'))
            if not (blk == nq - 1 and t == 8):
                a("s_add_u32 m0, m0, 1024")
                if t == 8: a(f"s_add_u32 s57, s57, {32*1152}")
                else: a("s_nop 0")

def loader_tail(a, role):
    a("s_barrier")
    stamp(a, 8)
    if role < 2:
        wo_issue(a, 0, 2 * role, 2); wo_issue(a, 1, 2 * role, 2)
    stamp(a, 9)
    if OPT.get('vearly', 0):
        if role < 2: a("s_waitcnt vmcnt(18)")
        a("s_barrier")
    else:
        if role == 3: a("s_waitcnt vmcnt(0)")
        a("s_barrier")
        if role < 2: a("s_waitcnt vmcnt(18)")
        a("s_barrier")
    if OPT.get('woearly', 0):
        wo_issue(a, 2, role, 1)
        wo_issue(a, 3, role, 1)
        stamp(a, 10)
        if role < 2: a("s_waitcnt vmcnt(18)")
        a("s_barrier")
    else:
        if role < 2: a("s_waitcnt vmcnt(0)")
        a("s_barrier")
        wo_issue(a, 2, role, 1)
        wo_issue(a, 3, role, 1)
        stamp(a, 10)
    a("s_waitcnt vmcnt(9)")
    a("s_barrier")
    a("s_waitcnt vmcnt(0)")
    stamp(a, 11)
    a("s_barrier")

def loader_ring(a, which):
    SRD = 32; SO = 40
    if which == 'wq':
        a("v_lshrrev_b32 v1, 4, v0"); a("v_and_b32 v2, 15, v0")
        a("v_lshlrev_b32 v3, 2, v1"); a("v_xor_b32 v3, v3, v2"); a("v_lshlrev_b32 v3, 4, v3")
        a("v_lshlrev_b32 v4, 13, v1"); a("v_add_u32 v4, v4, v3")
        a(f"s_lshl_b32 s{SO}, s{S_H}, 8")
        def issue(kc):
            a(f"s_mov_b32 m0, {(kc%3)*32768}")
            for t in range(16):
                if t == 0: a("s_nop 0")
                dma(a, 4, SRD, SO, fl=FL('ringfl'))
                a(f"s_add_u32 s{SO}, s{SO}, 32768")
                if t < 15:
                    a("s_add_u32 m0, m0, 1024"); a("s_nop 0")
    else:
        a("v_lshrrev_b32 v1, 3, v0"); a("v_mul_u32_u24 v1, 1152, v1")
        a("v_and_b32 v2, 7, v0"); a("v_lshrrev_b32 v3, 4, v0"); a("v_xor_b32 v2, v2, v3")
        a("v_lshlrev_b32 v4, 4, v2"); a("v_add_u32 v4, v4, v1")
        a("v_xor_b32 v2, 4, v2"); a("v_lshlrev_b32 v5, 4, v2"); a("v_add_u32 v5, v5, v1")
        a(f"s_mul_i32 s{SO+1}, s{S_G}, 147456")
        def issue(kc):
            a(f"s_mov_b32 m0, {(kc%3)*32768 + 16384}")
            a(f"s_add_u32 s{SO}, s{SO+1}, {kc*128}")
            for T in range(16):
                dma(a, 4 + (T & 1), SRD, SO, fl=FL('ringfl'))
                if T < 15:
                    a("s_add_u32 m0, m0, 1024"); a(f"s_add_u32 s{SO}, s{SO}, 9216")
    kv_pos(a, 43, 'k')
    if which == 'wq':
        a("v_lshrrev_b32 v8, 1, v0"); a("v_and_b32 v9, 1, v0")
        a("v_lshlrev_b32 v8, 13, v8"); a("v_lshl_add_u32 v8, v9, 7, v8")
        a(f"s_lshl_b32 s46, s{S_G}, {5+13}"); a(f"s_lshl_b32 s47, s{S_H}, 8"); a("s_add_u32 s46, s46, s47")
        def touch(part):
            if part == 0:
                a(f"buffer_load_dword v10, v8, s[{SRD}:{SRD+3}], s46 offen")
            else:
                a(f"s_add_u32 s46, s46, {256*8192}")
                a(f"buffer_load_dword v10, v8, s[{SRD}:{SRD+3}], s46 offen")
                a(f"s_lshl_b32 s46, s{S_G}, {3+13}"); a("s_add_u32 s46, s46, s47"); a(f"s_add_u32 s46, s46, {512*8192}")
                a("s_mov_b64 exec, 0xffff")
                a(f"buffer_load_dword v10, v8, s[{SRD}:{SRD+3}], s46 offen")
                a("s_mov_b64 exec, -1")
        NT1 = 2
    else:
        if OPT.get('xonce', 0):
            a("v_mul_u32_u24 v8, 7282, v0"); a("v_lshrrev_b32 v8, 16, v8")
            a("v_mul_u32_u24 v9, 9, v8"); a("v_sub_u32 v9, v0, v9")
            a("v_mul_u32_u24 v8, 1152, v8"); a("v_lshl_add_u32 v8, v9, 7, v8")
            a(f"s_mul_i32 s46, s{S_G}, 147456"); a(f"s_mul_i32 s47, s{S_H}, {4*1152}"); a("s_add_u32 s46, s46, s47")
            def touch(part):
                if part == 0:
                    a("s_mov_b32 exec_lo, -1"); a("s_mov_b32 exec_hi, 15")
                    a(f"buffer_load_dword v10, v8, s[{SRD}:{SRD+3}], s46 offen")
                    a("s_mov_b64 exec, -1")
            NT1 = 0
        else:
            a("v_and_b32 v9, 31, v0"); a("v_mul_u32_u24 v9, 1152, v9")
            a("v_lshrrev_b32 v8, 5, v0"); a("v_lshl_add_u32 v8, v8, 7, v9")
            a(f"s_mul_i32 s46, s{S_G}, 147456"); a(f"s_mul_i32 s47, s{S_J}, {32*1152}"); a("s_add_u32 s46, s46, s47")
            def touch(part):
                if part == 0:
                    a(f"buffer_load_dword v10, v8, s[{SRD}:{SRD+3}], s46 offen")
                else:
                    for t in range(1, 4):
                        a(f"buffer_load_dword v10, v8, s[{SRD}:{SRD+3}], s46 offen offset:{256*t}")
                    a("s_mov_b64 exec, 0xffffffff")
                    a(f"buffer_load_dword v10, v9, s[{SRD}:{SRD+3}], s46 offen offset:1024")
                    a("s_mov_b64 exec, -1")
            NT1 = 4
    if OPT.get('lprio', 0): a(f"s_setprio {OPT['lprio']}")
    kwait(a)
    srd(a, SRD, P_WQ if which == 'wq' else P_X, SZ_W if which == 'wq' else SZ_X)
    if OPT.get('tall', 0):
        touch(0); touch(1); NT1 = 0
        issue(0); stamp(a, 1)
    else:
        touch(0)
        issue(0); stamp(a, 1)
        touch(1)
    a("s_barrier")
    bx(a, -1, "r" + which)
    issue(1)
    stamp(a, 2)
    a(f"s_waitcnt vmcnt({16 + NT1})")
    stamp(a, 3)
    a("s_barrier")
    bx(a, 0, "r" + which)
    issue(2)
    for i in range(1, NCH):
        last_issued = min(i + 1, NCH - 1)
        a(f"s_waitcnt vmcnt({(last_issued - i) * 16})")
        a("s_barrier")
        if which == 'wq' and i in (1,2,3,4): stamp(a, {1:4,2:5,3:6,4:12}[i])
        if which == 'x' and i in (5,6,7,8): stamp(a, {5:4,6:5,7:6,8:12}[i])
        if i < 8: bx(a, i, "r" + which)
        if i + 2 < NCH: issue(i + 2)
        if i == 7: wo_prep(a)
    stamp(a, 7)
    loader_tail(a, 0 if which == 'wq' else 1)

def kv_pos(a, sdst, which):
    m = OPT['kvmode']
    if m == 10:
        tab = [-1, 2, 4, 7]
    elif m == 11: tab = [7, 7, 7, 7]
    elif m == 12: tab = [-1, -1, -1, -1]
    elif m == 13: tab = [1, 1, 6, 6]
    elif m == 14: tab = [-1, 1, 4, 7]
    elif m == 15: tab = [0, 3, 5, 7]
    elif m == 16: tab = [2, 7, 2, 7]
    elif m == 17: tab = [3, 5, 7, 7]
    elif m == 20: tab = [-1, 1, 3, 5]
    elif m == 21: tab = [-1, 2, 4, 6]
    elif m == 22: tab = [-1, -1, 3, 3]
    elif m == 23: tab = [-1, 0, 2, 4]
    elif m == 24: tab = [0, 2, 4, 6]
    elif m == 25: tab = [-1, -1, -1, -1]
    packed = sum(((p + 1) & 15) << (4 * k) for k, p in enumerate(tab))
    a(f"s_and_b32 s{sdst}, s{S_G}, 3"); a(f"s_lshl_b32 s{sdst}, s{sdst}, 2")
    a(f"s_lshr_b32 s{sdst}, {packed}, s{sdst}"); a(f"s_and_b32 s{sdst}, s{sdst}, 15")

def bx(a, p, tag):
    if p >= 6: return
    a(f"s_cmp_lg_u32 s43, {p+1}"); a(f"s_cbranch_scc1 L_bx_{tag}_{p+1}")
    a("s_barrier")
    a.label(f"L_bx_{tag}_{p+1}")

def kv_loop(a, tag, issue_fn, extra_fn=None, extra_pos=None):
    a("s_mov_b32 s59, 0")
    a.label(f"L_{tag}_loop")
    a("s_cmp_lg_u32 s59, s43"); a(f"s_cbranch_scc1 L_{tag}_skip")
    stamp(a, 3)
    issue_fn()
    stamp(a, 4)
    a(f"s_cmp_ge_u32 s59, 7"); a(f"s_cbranch_scc1 L_{tag}_skip")
    a("s_barrier")
    a.label(f"L_{tag}_skip")
    if extra_fn is not None:
        a(f"s_cmp_lg_u32 s59, {extra_pos}"); a(f"s_cbranch_scc1 L_{tag}_skip2")
        extra_fn()
        a.label(f"L_{tag}_skip2")
    a("s_barrier")
    a("s_add_u32 s59, s59, 1")
    a("s_cmp_le_u32 s59, 8"); a(f"s_cbranch_scc1 L_{tag}_loop")

def loader_k(a):
    SRD = 32; SO = 40
    kwait(a)
    srd(a, SRD, P_K, SZ_KV)
    a("v_lshrrev_b32 v1, 4, v0"); a("v_and_b32 v2, 15, v0"); a("v_xor_b32 v2, v2, v1")
    a("v_lshlrev_b32 v2, 4, v2"); a("v_lshl_add_u32 v4, v1, 8, v2")
    a("v_xor_b32 v5, 64, v4"); a("v_xor_b32 v6, 128, v4"); a("v_xor_b32 v7, 192, v4")
    wo_prep(a)
    a("v_and_b32 v8, 15, v0"); a("v_mul_u32_u24 v8, 1152, v8")
    a("v_lshrrev_b32 v9, 4, v0"); a("v_lshl_add_u32 v9, v9, 7, v8")
    kv_pos(a, 43, 'k')
    if OPT.get('wswarm', 1):
        srd(a, 44, P_WS, SZ_WS_USED); srd(a, 48, P_OUT, SZ_OUT)
        a(f"s_lshl_b32 s40, s{S_G}, 5"); a(f"s_add_u32 s40, s40, s{S_H}"); a("s_lshl_b32 s40, s40, 15")
        a(f"s_lshl_b32 s41, s{S_G}, 2"); a(f"s_add_u32 s41, s41, s{S_J}"); a("s_lshl_b32 s41, s41, 2")
        a("s_mul_i32 s42, s41, 73728"); a(f"s_add_u32 s42, s42, {WS_D}")
        a(f"s_mul_i32 s45, s{S_X}, 1152") if False else None
        a(f"s_mul_i32 s58, s{S_X}, 1152"); a("s_add_u32 s42, s42, s58")
        a("s_lshl_b32 s41, s41, 8"); a(f"s_add_u32 s41, s41, {WS_F2}")
        a("v_mov_b32 v11, 0")
        a("s_mov_b64 exec, 1")
        a("buffer_load_dword v10, v11, s[44:47], s40 offen")
        a("buffer_load_dword v10, v11, s[44:47], s42 offen")
        a("buffer_load_dword v10, v11, s[44:47], s41 offen sc1")
        a(f"s_lshl_b32 s40, s{S_G}, 7"); a(f"s_lshl_b32 s41, s{S_X}, 1"); a("s_add_u32 s40, s40, s41"); a("s_mul_i32 s40, s40, 1152")
        a(f"s_mul_i32 s41, s{S_J}, 288"); a("s_add_u32 s40, s40, s41")
        a("buffer_load_dword v10, v11, s[48:51], s40 offen")
        a("s_mov_b64 exec, -1")
    if OPT.get('tlbwarm', 0):
        a(f"s_lshl_b32 s{SO}, s{S_G}, 7"); a(f"s_add_u32 s{SO}, s{SO}, s{S_H}"); a(f"s_lshl_b32 s{SO}, s{SO}, 13")
        a("v_lshlrev_b32 v11, 18, v0")
        a("s_mov_b64 exec, 15")
        a(f"buffer_load_dword v10, v11, s[{SRD}:{SRD+3}], s{SO} offen nt")
        a("s_mov_b64 exec, -1")
    a("s_barrier")
    stamp(a, 1)
    def issue():
        a(f"s_lshl_b32 s{SO}, s{S_G}, 7"); a(f"s_add_u32 s{SO}, s{SO}, s{S_H}"); a(f"s_lshl_b32 s{SO}, s{SO}, 13")
        for w in range(4):
            for hf in range(2):
                a(f"s_mov_b32 m0, {L_K + w*8192 + hf*4096}"); a("s_nop 0")
                for t4 in range(4):
                    t = hf * 4 + t4
                    dma(a, 4 + (t >> 1), SRD, SO, off=t4 * 1024, nt=bool(OPT['k_nt']), fl=FL('kvfl'))
                a(f"s_add_u32 s{SO}, s{SO}, {4096 if hf == 0 else 32*8192 - 4096}")
    def wotouch():
        a(f"s_lshl_b32 s{SO}, s{S_X}, 5"); a(f"s_add_u32 s{SO}, s{SO}, s{S_R}")
        a(f"s_mul_i32 s{SO}, s{SO}, {16*1152}")
        a(f"buffer_load_dword v10, v9, s[52:55], s{SO} offen")
        a(f"buffer_load_dword v10, v9, s[52:55], s{SO} offen offset:512")
        a("s_mov_b64 exec, 0xffff")
        a(f"buffer_load_dword v10, v8, s[52:55], s{SO} offen offset:1024")
        a("s_mov_b64 exec, -1")
    def wotouch0():
        a(f"s_lshl_b32 s{SO}, s{S_X}, 2"); a(f"s_add_u32 s{SO}, s{SO}, s{S_J}"); a(f"s_lshl_b32 s{SO}, s{SO}, 3")
        a(f"s_add_u32 s{SO}, s{SO}, s{S_G}"); a(f"s_mul_i32 s{SO}, s{SO}, {16*1152}")
        a(f"s_mul_i32 s{SO+1}, s{S_J}, 288"); a(f"s_and_b32 s{SO+1}, s{SO+1}, 0xffffff80"); a(f"s_add_u32 s{SO}, s{SO}, s{SO+1}")
        a("s_mov_b32 exec_lo, -1"); a("s_mov_b32 exec_hi, 0xffff")
        a(f"buffer_load_dword v10, v9, s[52:55], s{SO} offen")
        a("s_mov_b64 exec, -1")
    wm = OPT.get('wotmode', 3)
    if wm == 3:
        def both():
            wotouch0(); issue()
        kv_loop(a, "k", both, wotouch, OPT['wot_pos'])
        a("s_waitcnt vmcnt(3)")
    elif wm == 0:
        kv_loop(a, "k", issue, wotouch, OPT['wot_pos'])
        a("s_waitcnt vmcnt(3)")
    if wm in (1, 2):
        def both():
            if wm == 1: wotouch()
            issue()
            if wm == 2: wotouch()
        kv_loop(a, "k", both)
        a("s_waitcnt vmcnt(0)")
    stamp(a, 7)
    loader_tail(a, 2)

def loader_v(a):
    SRD = 32; SO = 40
    kwait(a)
    srd(a, SRD, P_V, SZ_KV)
    a("s_cmp_lg_u32 s2, 0"); a("s_cbranch_scc1 L_nononce")
    srd(a, 48, P_DBG, 256)
    a("s_memrealtime s[42:43]"); a("s_waitcnt lgkmcnt(0)")
    a("s_or_b32 s42, s42, 1")
    a("v_mov_b32 v8, s42"); a("v_mov_b32 v9, s43"); a("v_mov_b32 v1, 0")
    a("s_mov_b64 exec, 1")
    a("buffer_store_dwordx2 v[8:9], v1, s[48:51], 0 offen sc1")
    a("s_mov_b64 exec, -1")
    a.label("L_nononce")
    if OPT['fast']:
        srd(a, 48, P_DBG, 256)
        a("s_getreg_b32 s42, hwreg(HW_REG_XCC_ID)")
        a("s_and_b32 s42, s42, 15")
        a("s_cmp_ge_u32 s42, 8"); a("s_cbranch_scc1 L_noxcc")
        a("s_mul_i32 s43, s42, s42"); a("s_lshl_b32 s43, s43, 5"); a("s_add_u32 s42, s42, s43")
        a("s_add_u32 s42, s42, 0x2000")
        a(f"s_lshl_b32 s43, s{S_G}, 3"); a(f"s_add_u32 s43, s43, s{S_X}")
        a("s_and_b32 s41, s43, 1"); a("s_lshl_b32 s41, s41, 4"); a("s_lshl_b32 s42, s42, s41")
        a("s_lshr_b32 s43, s43, 1"); a("s_lshl_b32 s43, s43, 2"); a("s_add_u32 s43, s43, 128")
        a("v_mov_b32 v8, s42"); a("v_mov_b32 v1, 0")
        a("s_mov_b64 exec, 1")
        a("buffer_atomic_add v8, v1, s[48:51], s43 offen")
        a("s_mov_b64 exec, -1")
        a.label("L_noxcc")
    a("v_lshrrev_b32 v1, 4, v0"); a("v_and_b32 v2, 15, v0"); a("v_lshlrev_b32 v3, 1, v1")
    a("v_xor_b32 v2, v2, v3"); a("v_lshlrev_b32 v2, 4, v2"); a("v_lshl_add_u32 v4, v1, 8, v2")
    a("v_xor_b32 v5, 128, v4")
    wo_prep(a)
    kv_pos(a, 43, 'v')
    if OPT.get('tlbwarm', 0):
        a(f"s_lshl_b32 s{SO}, s{S_G}, 7"); a(f"s_add_u32 s{SO}, s{SO}, s{S_H}"); a(f"s_lshl_b32 s{SO}, s{SO}, 13")
        a("v_lshlrev_b32 v11, 18, v0")
        a("s_mov_b64 exec, 15")
        a(f"buffer_load_dword v10, v11, s[{SRD}:{SRD+3}], s{SO} offen nt")
        a("s_mov_b64 exec, -1")
    a("s_barrier")
    stamp(a, 1)
    def issue():
        a(f"s_lshl_b32 s{SO}, s{S_G}, 7"); a(f"s_add_u32 s{SO}, s{SO}, s{S_H}"); a(f"s_lshl_b32 s{SO}, s{SO}, 13")
        for w in range(4):
            for hf in range(2):
                a(f"s_mov_b32 m0, {L_V + w*8192 + hf*4096}"); a("s_nop 0")
                for t4 in range(4):
                    t = hf * 4 + t4
                    dma(a, 4 + ((t >> 1) & 1), SRD, SO, off=t4 * 1024, nt=bool(OPT['v_nt']), fl=FL('kvfl'))
                a(f"s_add_u32 s{SO}, s{SO}, {4096 if hf == 0 else 32*8192 - 4096}")
    kv_loop(a, "v", issue)
    if OPT.get('vearly', 0): a("s_waitcnt vmcnt(0)")
    stamp(a, 7)
    loader_tail(a, 3)

V_XA = [4, 8]; V_WA = [12, 248]
V_A = [16, 32]; V_B = [48, 52]; V_ACC = 64
V_QF = 128; V_KF = 160; V_S = 192; V_VF = 208; V_PF = 240; V_OF = 128
V_KA = 56; V_VA = 60; V_CLW = 61; V_NONCE = 62
SC_SCALE = 0.08838834764831845 * 1.4426950408889634

def gemm1_addrs(a):
    a("v_and_b32 v1, 31, v0"); a("v_lshrrev_b32 v2, 5, v0"); a("v_bfe_u32 v3, v0, 1, 3")
    a("v_xor_b32 v2, v2, v3"); a("v_lshlrev_b32 v2, 4, v2"); a("v_lshl_add_u32 v2, v1, 7, v2")
    a(f"s_lshl_b32 s40, s{S_WAVE}, 12"); a("s_add_u32 s40, s40, 16384")
    a("v_add_u32 v2, s40, v2")
    for ks in range(4):
        a(f"v_xor_b32 v{V_XA[0]+ks}, {32*ks}, v2"); a(f"v_add_u32 v{V_XA[1]+ks}, 65536, v{V_XA[0]+ks}")
    a("v_bfe_u32 v1, v0, 2, 2"); a("v_lshrrev_b32 v2, 5, v0"); a("v_lshl_add_u32 v2, v2, 3, v1")
    a("v_lshlrev_b32 v2, 8, v2"); a("v_and_b32 v3, 1, v0"); a("v_lshl_add_u32 v2, v3, 5, v2")
    a("v_bfe_u32 v3, v0, 4, 1"); a("v_lshl_add_u32 v2, v3, 4, v2")
    a("v_bfe_u32 v3, v0, 1, 1"); a("v_lshl_add_u32 v2, v3, 3, v2")
    a("v_lshl_add_u32 v2, v1, 6, v2")
    for dt in range(4):
        a(f"v_xor_b32 v{V_WA[0]+dt}, {64*dt}, v2"); a(f"v_add_u32 v{V_WA[1]+dt}, 65536, v{V_WA[0]+dt}")

def attn_addrs(a):
    a("v_and_b32 v1, 15, v0"); a("v_lshrrev_b32 v2, 4, v0"); a("v_xor_b32 v2, v2, v1")
    a("v_lshlrev_b32 v2, 4, v2"); a("v_lshrrev_b32 v3, 2, v1"); a("v_lshl_add_u32 v2, v3, 11, v2")
    a("v_and_b32 v3, 3, v1"); a("v_lshl_add_u32 v2, v3, 8, v2")
    a(f"s_lshl_b32 s40, s{S_WAVE}, 13"); a(f"s_add_u32 s40, s40, {L_K}")
    a("v_add_u32 v2, s40, v2")
    for st in range(4): a(f"v_xor_b32 v{V_KA+st}, {64*st}, v2")
    a("v_lshrrev_b32 v1, 4, v0"); a("v_bfe_u32 v3, v0, 2, 2"); a("v_lshl_add_u32 v2, v1, 3, v3")
    a("v_lshlrev_b32 v2, 8, v2"); a("v_and_b32 v1, 1, v1"); a("v_lshl_add_u32 v3, v1, 2, v3")
    a("v_lshl_add_u32 v2, v3, 5, v2"); a("v_and_b32 v3, 3, v0"); a("v_lshl_add_u32 v2, v3, 3, v2")
    a(f"s_lshl_b32 s40, s{S_WAVE}, 13"); a(f"s_add_u32 s40, s40, {L_V}")
    a(f"v_add_u32 v{V_VA}, s40, v2")

def g1_reads(n):
    i, ks = divmod(n, 4)
    slot = i % 3; st = n & 1; hs = 1 if slot == 2 else 0; so = (slot & 1) * 32768 if slot < 2 else 0
    r = [f"ds_read_b128 {vr(V_B[st],4)}, v{V_XA[hs]+ks} offset:{so}"]
    for dt in range(4):
        base = V_A[st] + 4 * dt
        off = so + ks * 4096
        r.append(f"ds_read_b64_tr_b16 {vr(base,2)}, v{V_WA[hs]+dt} offset:{off}")
        r.append(f"ds_read_b64_tr_b16 {vr(base+2,2)}, v{V_WA[hs]+dt} offset:{off+1024}")
    return r

def gemm1(a):
    NS = NCH * 4
    kv_pos(a, 43, 'k')
    a("s_barrier")
    bx(a, -1, "c")
    a("s_barrier")
    stamp(a, 1)
    for r in g1_reads(0): a(r)
    for n in range(NS):
        i, ks = divmod(n, 4); st = n & 1
        nxt = g1_reads(n + 1) if n + 1 < NS else []
        def mf(dt):
            c = "0" if n == 0 else vr(V_ACC + 16 * dt, 16)
            a(f"v_mfma_f32_32x32x16_bf16 {vr(V_ACC+16*dt,16)}, {vr(V_A[st]+4*dt,4)}, {vr(V_B[st],4)}, {c}")
        if ks == 3:
            for dt in range(4):
                a(f"s_waitcnt lgkmcnt({[6,4,2,0][dt]})")
                if dt == 3 and nxt:
                    bx(a, i, "c")
                    a("s_barrier")
                    for r in nxt[:5]: a(r)
                mf(dt)
            for r in nxt[5:]: a(r)
        else:
            first_after_boundary = (ks == 0 and n > 0)
            for dt in range(4):
                a(f"s_waitcnt lgkmcnt({[6,7,8,9][dt]})")
                mf(dt)
                if dt < 3:
                    for r in nxt[3*dt:3*dt+3]: a(r)
        if n == 33 and OPT.get('nonce_in', 1): get_nonce(a)
        if n == 24:
            a(f"buffer_load_dwordx2 {vr(V_NONCE,2)}, v1, s[36:39], 0 offen sc1")
            if OPT['fast']:
                a(f"buffer_load_dword v{V_CLW}, v1, s[36:39], s40 offen sc1")
                a(f"buffer_load_dword v2, v1, s[44:47], s42 offen sc1")

def attention(a):
    VE = OPT.get('vearly', 0)
    a("s_barrier")
    stamp(a, 3)
    for ai in range(2):
        for st in range(4):
            a(f"ds_read_b128 {vr(V_KF+(ai*4+st)*4,4)}, v{V_KA+st} offset:{ai*1024}")
    def vreads(T0, T1):
        for T in range(T0, T1):
            if T: a(f"v_xor_b32 v1, {32*T}, v{V_VA}")
            ad = "v1" if T else f"v{V_VA}"
            a(f"ds_read_b64_tr_b16 {vr(V_VF+4*T,2)}, {ad}")
            a(f"ds_read_b64_tr_b16 {vr(V_VF+4*T+2,2)}, {ad} offset:1024")
    for dt in range(4):
        for i in range(8):
            a(f"v_cvt_pk_bf16_f32 v{V_QF+8*dt+i}, v{V_ACC+16*dt+2*i}, v{V_ACC+16*dt+2*i+1}")
        if VE and dt == 1:
            a("s_waitcnt lgkmcnt(0)"); vreads(0, 4)
    a("s_nop 1")
    for dt in range(4):
        for i in range(4):
            a(f"v_permlane16_swap_b32 v{V_QF+8*dt+i}, v{V_QF+8*dt+4+i}")
    if VE:
        a("s_waitcnt lgkmcnt(4)"); vreads(4, 8)
    else:
        a("s_waitcnt lgkmcnt(0)")
    for st in range(4):
        for ai in range(2):
            for qt in range(2):
                d = vr(V_S + (ai*2+qt)*4, 4)
                c = "0" if st == 0 else d
                a(f"v_mfma_f32_16x16x32_bf16 {d}, {vr(V_KF+(ai*4+st)*4,4)}, {vr(V_QF+8*st+4*qt,4)}, {c}")
    if VE:
        a("s_waitcnt lgkmcnt(0)")
    def S(ai, qt, v): return V_S + (ai*2+qt)*4 + v
    M = [48, 49]; T_ = [50, 51]; SUM = [52, 53]
    a("s_nop 7")
    for qt in range(2): a(f"v_max3_f32 v{M[qt]}, v{S(0,qt,0)}, v{S(0,qt,1)}, v{S(0,qt,2)}")
    for qt in range(2): a(f"v_max3_f32 v{M[qt]}, v{M[qt]}, v{S(0,qt,3)}, v{S(1,qt,0)}")
    for qt in range(2): a(f"v_max3_f32 v{M[qt]}, v{M[qt]}, v{S(1,qt,1)}, v{S(1,qt,2)}")
    for qt in range(2): a(f"v_max_f32 v{M[qt]}, v{M[qt]}, v{S(1,qt,3)}")
    def xlane(regs, tmps, op):
        for sw in ("v_permlane16_swap_b32", "v_permlane32_swap_b32"):
            for qt in range(2): a(f"v_mov_b32 v{tmps[qt]}, v{regs[qt]}")
            a("s_nop 0")
            for qt in range(2): a(f"{sw} v{tmps[qt]}, v{regs[qt]}")
            a("s_nop 0")
            for qt in range(2): a(f"{op} v{regs[qt]}, v{regs[qt]}, v{tmps[qt]}")
    xlane(M, T_, "v_max_f32")
    a(f"s_mov_b32 s41, {f32hex(SC_SCALE)}")
    for qt in range(2): a(f"v_mul_f32 v{M[qt]}, s41, v{M[qt]}")
    for ai in range(2):
        for v in range(4):
            for qt in range(2): a(f"v_fma_f32 v{S(ai,qt,v)}, v{S(ai,qt,v)}, s41, -v{M[qt]}")
    for ai in range(2):
        for v in range(4):
            for qt in range(2): a(f"v_exp_f32 v{S(ai,qt,v)}, v{S(ai,qt,v)}")
    a("s_nop 0")
    for qt in range(2): a(f"v_add_f32 v{SUM[qt]}, v{S(0,qt,0)}, v{S(0,qt,1)}")
    for (ai, v) in [(0,2),(0,3),(1,0),(1,1),(1,2),(1,3)]:
        for qt in range(2): a(f"v_add_f32 v{SUM[qt]}, v{SUM[qt]}, v{S(ai,qt,v)}")
    xlane(SUM, T_, "v_add_f32")
    for qt in range(2): a(f"v_rcp_f32 v{SUM[qt]}, v{SUM[qt]}")
    a("s_nop 0")
    for ai in range(2):
        for v in range(4):
            for qt in range(2): a(f"v_mul_f32 v{S(ai,qt,v)}, v{S(ai,qt,v)}, v{SUM[qt]}")
    for qt in range(2):
        for ai in range(2):
            for h2 in range(2):
                a(f"v_cvt_pk_bf16_f32 v{V_PF+4*qt+2*ai+h2}, v{S(ai,qt,2*h2)}, v{S(ai,qt,2*h2+1)}")
    stamp(a, 4)
    if VE:
        a("s_nop 0")
    else:
        a("s_barrier")
        vreads(0, 6); a("s_waitcnt lgkmcnt(4)"); vreads(6, 8)
        a("s_waitcnt lgkmcnt(0)")
        a("s_barrier")
    def pv(T):
        for qt in range(2):
            a(f"v_mfma_f32_16x16x32_bf16 {vr(V_ACC+(T*2+qt)*4,4)}, {vr(V_VF+4*T,4)}, {vr(V_PF+4*qt,4)}, 0")
    def pack(p):
        for qt in range(2):
            for e in range(2):
                T = 2*p + e
                for h2 in range(2):
                    src = V_ACC + (T*2+qt)*4 + 2*h2
                    a(f"v_cvt_pk_bf16_f32 v{V_OF+(2*p+qt)*4+2*e+h2}, v{src}, v{src+1}")
    if OPT.get('ostin', 1):
        o_store(a)
        a("s_nop 0")
        for T in range(6): pv(T)
        pack(0); pv(6); a(OSTORES[0]); a(OSTORES[1]); pv(7)
        pack(1); a(OSTORES[2]); a(OSTORES[3])
        if not OPT.get('b12late', 1): a("s_barrier")
        else: a("s_nop 0")
        pack(2); a(OSTORES[4]); a(OSTORES[5])
        a("s_nop 1")
        pack(3); a(OSTORES[6]); a(OSTORES[7])
        if OPT.get('b12late', 1) and OPT.get('flagpos', 3) >= 0: a("s_barrier")
    else:
        for T in range(8): pv(T)
        if VE: a("s_barrier")
        a("s_nop 7")
        for p in range(4): pack(p)

V2_ACC = 16
V2_A = [88, 108]
V2_AD = [4, 5, 6, 12]
BUF = [160, 192, 224]

def p2_areads(slot, p, half, buf=None):
    r = []
    ad = V2_AD[slot]
    taus = range(0, 5) if half == 0 else range(5, 9)
    if buf is None: buf = half
    for k, tau in enumerate(taus):
        off = p * 32 * 288 + 32 * tau
        base = V2_A[buf] + 4 * k
        r.append(f"ds_read_b64_tr_b16 {vr(base,2)}, v{ad} offset:{off}")
        r.append(f"ds_read_b64_tr_b16 {vr(base+2,2)}, v{ad} offset:{off+16*288}")
    return r

def p2_bloads(a, slot, breg):
    a(f"s_add_u32 s45, s{S_J}, {slot}"); a("s_and_b32 s45, s45, 3"); a("s_add_u32 s45, s45, s44")
    a("s_lshl_b32 s45, s45, 2"); a(f"s_add_u32 s45, s45, s{S_WAVE}")
    a("s_lshl_b32 s46, s45, 13"); a("s_add_u32 s47, s46, 4096")
    for f in range(8):
        a(f"buffer_load_dwordx4 {vr(breg+4*f,4)}, v7, s[32:35], s{46 + f//4} offen offset:{(f%4)*1024} sc1")

S_NON = 52
S_FAST = 54

def get_nonce(a):
    a("s_waitcnt vmcnt(0)")
    a("v_mov_b32 v9, 0")
    a("s_mov_b32 s50, 0")
    a.label("L_nonce_chk")
    a(f"v_readfirstlane_b32 s{S_NON}, v{V_NONCE}"); a(f"v_readfirstlane_b32 s{S_NON+1}, v{V_NONCE+1}")
    a("s_nop 0")
    a(f"s_cmp_lg_u32 s{S_NON}, 0"); a("s_cbranch_scc1 L_nonce_ok")
    a(f"buffer_load_dwordx2 {vr(V_NONCE,2)}, v9, s[36:39], 0 offen sc1")
    a("s_add_u32 s50, s50, 1"); a("s_waitcnt vmcnt(0)")
    a(f"s_cmp_lt_u32 s50, {OPT['spin_max']}"); a("s_cbranch_scc1 L_nonce_chk")
    a.label("L_nonce_ok")
    a(f"s_mov_b32 s{S_FAST}, 0")
    if OPT['fast']:
        a(f"v_readfirstlane_b32 s55, v{V_CLW}")
        a(f"s_and_b32 s56, s{S_X}, 1"); a("s_lshl_b32 s56, s56, 4"); a("s_lshr_b32 s55, s55, s56")
        a("s_and_b32 s56, s55, 31")
        a("s_bfe_u32 s57, s55, 0x80005")
        a("s_bfe_u32 s55, s55, 0x3000d")
        a("s_mul_i32 s56, s56, s56"); a("s_lshl_b32 s57, s57, 2")
        a("s_cmp_eq_u32 s56, s57"); a(f"s_cselect_b32 s{S_FAST}, 1, 0")
        a("s_cmp_eq_u32 s55, 4"); a(f"s_cselect_b32 s{S_FAST}, s{S_FAST}, 0")
        if OPT['fast'] == 2: a(f"s_mov_b32 s{S_FAST}, 0")

def poll(a, tag, voff, soff, sleep=0):
    a("s_mov_b32 s50, 0")
    a.label(f"L_poll_{tag}")
    if sleep: a(f"s_sleep {sleep}")
    a(f"buffer_load_dwordx2 v[10:11], v{voff}, s[32:35], s{soff} offen sc1")
    a("s_add_u32 s50, s50, 1"); a("s_waitcnt vmcnt(0)")
    a(f"v_cmp_eq_u64 vcc, v[10:11], s[{S_NON}:{S_NON+1}]")
    a(f"s_cmp_ge_u32 s50, {OPT['spin_max']}"); a(f"s_cbranch_scc1 L_poll_{tag}_done")
    a("s_cmp_eq_u64 vcc, -1"); a(f"s_cbranch_scc0 L_poll_{tag}")
    a.label(f"L_poll_{tag}_done")

def flag_store(a, soff, mode):
    a(f"v_mov_b32 v10, s{S_NON}"); a(f"v_mov_b32 v11, s{S_NON+1}")
    a("s_mov_b64 exec, 1")
    if mode == 'dyn':
        a(f"s_cmp_eq_u32 s{S_FAST}, 0"); a("s_cbranch_scc1 L_flag_slow")
        a(f"buffer_store_dwordx2 v[10:11], v9, s[32:35], s{soff} offen")
        a("s_branch L_flag_join")
        a.label("L_flag_slow")
        a(f"buffer_store_dwordx2 v[10:11], v9, s[32:35], s{soff} offen sc1")
        a.label("L_flag_join")
    else:
        a(f"buffer_store_dwordx2 v[10:11], v9, s[32:35], s{soff} offen sc1")
    a("s_mov_b64 exec, -1")

def o_store(a):
    srd(a, 32, P_WS, SZ_WS_USED)
    a("v_lshlrev_b32 v7, 4, v0")
    a(f"s_lshl_b32 s40, s{S_G}, 5"); a(f"s_add_u32 s40, s40, s{S_H}"); a("s_lshl_b32 s40, s40, 2")
    a(f"s_add_u32 s40, s40, s{S_WAVE}"); a("s_lshl_b32 s40, s40, 13"); a("s_add_u32 s41, s40, 4096")
    global OSTORES
    OSTORES = [f"buffer_store_dwordx4 {vr(V_OF+4*f,4)}, v7, s[32:35], s{40 + f//4} offen offset:{(f%4)*1024} sc1" for f in range(8)]
    a("v_lshrrev_b32 v2, 4, v0"); a("v_bfe_u32 v3, v0, 2, 2"); a("v_lshl_add_u32 v2, v2, 2, v3")
    a("v_mul_u32_u24 v2, 288, v2"); a("v_and_b32 v3, 3, v0")
    a(f"v_lshl_add_u32 v{V2_AD[0]}, v3, 3, v2")
    for sl in range(1, 4): a(f"v_add_u32 v{V2_AD[sl]}, {sl*W_SLOT}, v{V2_AD[0]}")
    a(f"s_lshl_b32 s44, s{S_G}, 5"); a(f"s_lshl_b32 s45, s{S_X}, 2"); a("s_add_u32 s44, s44, s45")
    a(f"s_lshl_b32 s48, s{S_G}, 3"); a(f"s_add_u32 s48, s48, s{S_X}"); a("s_lshl_b32 s48, s48, 2")
    a(f"s_add_u32 s48, s48, s{S_WAVE}"); a("s_lshl_b32 s48, s48, 7"); a(f"s_add_u32 s48, s48, {WS_F}")
    a(f"s_lshl_b32 s49, s{S_J}, 3"); a("s_add_u32 s49, s49, s48")
    a("v_and_b32 v8, 3, v0"); a("v_lshlrev_b32 v8, 3, v8")

def bload_list(slot, breg):
    setup = [f"s_add_u32 s45, s{S_J}, {slot}", "s_and_b32 s45, s45, 3", "s_add_u32 s45, s45, s44",
             "s_lshl_b32 s45, s45, 2", f"s_add_u32 s45, s45, s{S_WAVE}",
             "s_lshl_b32 s46, s45, 13", "s_add_u32 s47, s46, 4096"]
    loads = [f"buffer_load_dwordx4 {vr(breg+4*f,4)}, v7, s[32:35], s{46 + f//4} offen offset:{(f%4)*1024} sc1" for f in range(8)]
    return setup, loads

def p2_run(a, hs, n0, n1, hooks_pre=None, hooks_mid=None, inject=None, spread=None):
    hooks_pre = hooks_pre or {}; hooks_mid = hooks_mid or {}; inject = inject or {}; spread = spread or {}
    for n in range(n0, n1):
        (s, p, hf) = hs[n]
        breg = V_OF if s == 0 else BUF[s - 1]
        nxt = p2_areads(*hs[n+1], buf=(n+1) & 1) if n + 1 < n1 else []
        taus = list(range(0, 5)) if hf == 0 else list(range(5, 9))
        nown = 2 * len(taus)
        nm = nown
        plan = [0] * nm
        for t in range(len(nxt)): plan[t % nm] += 1
        issued = 0; m = 0
        inj = list(inject.get(n, []))
        spr = list(spread.get(n, []))
        per = -(-len(spr) // nm) if spr else 0
        if n in hooks_pre: hooks_pre[n]()
        for k, tau in enumerate(taus):
            a(f"s_waitcnt lgkmcnt({nown - 2 * (k + 1) + issued})")
            for qt in range(2):
                d = vr(V2_ACC + (tau*2+qt)*4, 4)
                c = "0" if (s == 0 and p == 0) else d
                a(f"v_mfma_f32_16x16x32_bf16 {d}, {vr(V2_A[n & 1]+4*k,4)}, {vr(breg+(2*p+qt)*4,4)}, {c}")
                if m == 0 and n in hooks_mid: hooks_mid[n]()
                if nxt:
                    for r in nxt[issued:issued+plan[m]]: a(r)
                    issued = min(len(nxt), issued + plan[m])
                for _ in range(per):
                    if spr: a(spr.pop(0))
                m += 1
                if k >= len(taus) - 1 and inj: a(inj.pop(0))
        while inj: a(inj.pop(0))
        while spr: a(spr.pop(0))

def d_prep(a):
    a("v_bfe_u32 v13, v0, 1, 3"); a("v_mul_u32_u24 v13, 9216, v13")
    a("v_lshrrev_b32 v14, 4, v0"); a("v_lshlrev_b32 v14, 1, v14"); a("v_and_b32 v15, 1, v0")
    a("v_add_u32 v14, v14, v15"); a("v_lshl_add_u32 v13, v14, 4, v13")
    a(f"s_lshl_b32 s58, s{S_G}, 2"); a(f"s_add_u32 s58, s58, s{S_J}"); a("s_lshl_b32 s58, s58, 2")
    a(f"s_add_u32 s58, s58, s{S_WAVE}")
    a("s_mul_i32 s59, s58, 73728"); a(f"s_add_u32 s59, s59, {WS_D}")
    a(f"s_mul_i32 s40, s{S_X}, 1152"); a("s_add_u32 s40, s40, s59")

def d_pack_store(tau, G=160):
    r = []
    for qt in range(2):
        for h2 in range(2):
            src = V2_ACC + (tau*2+qt)*4 + 2*h2
            r.append(f"v_cvt_pk_bf16_f32 v{G+4*tau+2*qt+h2}, v{src}, v{src+1}")
    r.append(f"buffer_store_dwordx4 {vr(G+4*tau,4)}, v13, s[32:35], s40 offen offset:{128*tau} sc1")
    return r

def tail(a):
    hs = [(s, p, hf) for s in range(2) for p in range(4) for hf in range(2)]
    hs += [(2, p, 0) for p in range(4)] + [(3, p, 0) for p in range(4)]
    hs += [(2, p, 1) for p in range(4)] + [(3, p, 1) for p in range(4)]
    if not OPT.get('ostin', 1):
        o_store(a)
        for x in OSTORES: a(x)
    stamp(a, 6)
    if OPT.get('flagpos', 3) >= 0:
        for r in p2_areads(*hs[0], buf=0): a(r)
    def exch():
        a("s_waitcnt vmcnt(0)")
        flag_store(a, 49, 'dyn')
        stamp(a, 7)
        if OPT.get('poll1', 1):
            a(f"s_add_u32 s56, s{S_J}, 1"); a("s_and_b32 s56, s56, 3")
            a("s_mov_b32 s50, 0")
            a.label("L_poll_o1")
            if OPT.get('o_sleep', 0): a(f"s_sleep {OPT['o_sleep']}")
            a("buffer_load_dwordx2 v[10:11], v8, s[32:35], s48 offen sc1")
            a("s_add_u32 s50, s50, 1"); a("s_waitcnt vmcnt(0)")
            a(f"v_cmp_eq_u64 vcc, v[10:11], s[{S_NON}:{S_NON+1}]")
            a(f"s_cmp_ge_u32 s50, {OPT['spin_max']}"); a("s_cbranch_scc1 L_poll_o1_done")
            a("s_bitcmp1_b32 vcc_lo, s56"); a("s_cbranch_scc0 L_poll_o1")
            a.label("L_poll_o1_done")
            a("s_cmp_eq_u64 vcc, -1"); a("s_cselect_b32 s55, 1, 0")
        else:
            poll(a, "o", 8, 48, sleep=OPT.get('o_sleep', 0))
        stamp(a, 8)
        p2_bloads(a, 1, BUF[0])
        a("s_nop 3")
    if OPT.get('flagpos', 3) >= 0:
        p2_run(a, hs, 0, 8, hooks_pre={OPT.get('flagpos', 4): exch})
    else:
        exch()
        a("s_barrier")
        for r in p2_areads(*hs[0], buf=0): a(r)
        p2_run(a, hs, 0, 8)
    a("s_barrier")
    tstamp(a, 1)
    if OPT.get('poll1', 1):
        a("s_cmp_eq_u32 s55, 1"); a("s_cbranch_scc1 L_poll_o_skip")
        poll(a, "o", 8, 48, sleep=OPT.get('o_sleep', 0))
        a.label("L_poll_o_skip")
    for r in p2_areads(*hs[8], buf=0): a(r)
    su2, l2 = bload_list(2, BUF[1]); su3, l3 = bload_list(3, BUF[2])
    for x in su2: a(x)
    d_prep(a)
    inj = {}
    for t in range(4):
        inj[8 + t] = list(l2[2*t:2*t+2])
        inj[12 + t] = list(l3[2*t:2*t+2])
    inj[11] = inj[11] + su3
    spr = {25: d_pack_store(0) + d_pack_store(1), 26: d_pack_store(2) + d_pack_store(3), 27: d_pack_store(4)}
    W = lambda n: (lambda: a(f"s_waitcnt vmcnt({n})"))
    def WC(n, idx):
        def f():
            if OPT.get('cyc', 0): cstamp(a, idx)
            if n is not None: a(f"s_waitcnt vmcnt({n})")
        return f
    p2_run(a, hs, 8, 32,
           hooks_pre={8: WC(6, 3), 10: W(8), 12: W(10), 14: W(12), 16: WC(8, 4), 20: W(0), 24: WC(None, 13)},
           hooks_mid={15: lambda: a("s_barrier"), 19: lambda: a("s_barrier")},
           inject=inj, spread=spr)
    if OPT.get('cyc', 0): cstamp(a, 1)
    stamp(a, 9)
    reduce_inkernel(a)

def store_partials_f32(a):
    a("s_nop 7")
    a(f"s_lshl_b32 s45, s{S_X}, 3"); a(f"s_add_u32 s45, s45, s{S_G}"); a("s_lshl_b32 s45, s45, 2")
    a(f"s_add_u32 s45, s45, s{S_J}"); a("s_lshl_b32 s45, s45, 2"); a(f"s_add_u32 s45, s45, s{S_WAVE}")
    a(f"s_mul_i32 s45, s45, {18*1024}"); a(f"s_add_u32 s45, s45, {WS_P}")
    for u in range(18):
        if u and u % 4 == 0: a("s_add_u32 s45, s45, 4096")
        a(f"buffer_store_dwordx4 {vr(V2_ACC+4*u,4)}, v7, s[32:35], s45 offen offset:{(u%4)*1024}")

def store_partials_bf16(a):
    G = 160
    a(f"s_lshl_b32 s44, s{S_G}, 2"); a(f"s_add_u32 s44, s44, s{S_J}"); a("s_lshl_b32 s44, s44, 2")
    a(f"s_add_u32 s44, s44, s{S_WAVE}")
    a(f"s_lshl_b32 s45, s{S_X}, 7"); a("s_add_u32 s45, s45, s44"); a("s_mul_i32 s45, s45, 9216")
    a(f"s_add_u32 s45, s45, {WS_P}"); a("s_add_u32 s46, s45, 4096"); a("s_add_u32 s47, s45, 8192")
    sc = " sc1" if OPT.get('psc1', 1) else ""
    for tau in range(9):
        for qt in range(2):
            for h2 in range(2):
                src = V2_ACC + (tau*2+qt)*4 + 2*h2
                a(f"v_cvt_pk_bf16_f32 v{G+4*tau+2*qt+h2}, v{src}, v{src+1}")
        a(f"buffer_store_dwordx4 {vr(G+4*tau,4)}, v7, s[32:35], s{45 + tau//4} offen offset:{(tau%4)*1024}{sc}")

def kernel3b(a):
    name = "mha_p3_kernel"
    a(".p2align 8"); a(f".globl {name}"); a(f".type {name},@function"); a.label(name)
    a("s_cmp_ge_u32 s2, 288"); a(f"s_cbranch_scc1 L_end_{name}")
    a("s_load_dwordx2 s[26:27], s[0:1], 40"); a("s_load_dwordx2 s[30:31], s[0:1], 56")
    a("v_lshrrev_b32 v1, 6, v0"); a("v_and_b32 v0, 63, v0")
    a("s_lshl_b32 s5, s2, 2")
    a(f"v_readfirstlane_b32 s{S_WAVE}, v1")
    a("v_lshlrev_b32 v1, 4, v0")
    a(f"s_add_u32 s5, s5, s{S_WAVE}")
    a("s_mul_i32 s45, s5, 1024"); a(f"s_add_u32 s45, s45, {WS_P}")
    a("s_mul_hi_u32 s6, s5, 477218589")
    a("s_mul_i32 s7, s6, 9"); a("s_sub_u32 s7, s5, s7")
    a("s_waitcnt lgkmcnt(0)")
    srd(a, 32, P_WS, SZ_WS_USED); srd(a, 36, P_OUT, SZ_OUT)
    for x in range(8):
        a(f"buffer_load_dwordx4 {vr(8+4*x,4)}, v1, s[32:35], s45 offen")
        if x < 7: a(f"s_add_u32 s45, s45, {128*9216}")
    a("v_and_b32 v2, 15, v0"); a("v_mul_u32_u24 v2, 1152, v2"); a("v_lshrrev_b32 v3, 4, v0")
    a("v_lshl_add_u32 v2, v3, 3, v2")
    a("s_lshr_b32 s46, s6, 4"); a("s_lshl_b32 s46, s46, 2"); a("s_and_b32 s47, s6, 3"); a("s_add_u32 s46, s46, s47")
    a(f"s_mul_i32 s46, s46, {32*1152}")
    a("s_lshr_b32 s47, s6, 2"); a("s_and_b32 s47, s47, 3"); a("s_mul_i32 s47, s47, 288"); a("s_add_u32 s46, s46, s47")
    a("s_lshl_b32 s47, s7, 5"); a("s_add_u32 s46, s46, s47"); a(f"s_add_u32 s47, s46, {16*1152}")
    for x in range(8):
        a(f"s_waitcnt vmcnt({7-x})")
        for d in range(4):
            src = 8 + 4*x + d
            if x == 0:
                a(f"v_lshlrev_b32 v{40+2*d}, 16, v{src}"); a(f"v_and_b32 v{40+2*d+1}, 0xffff0000, v{src}")
            else:
                a(f"v_lshlrev_b32 v48, 16, v{src}"); a(f"v_and_b32 v49, 0xffff0000, v{src}")
                a(f"v_pk_add_f32 v[{40+2*d}:{40+2*d+1}], v[{40+2*d}:{40+2*d+1}], v[48:49]")
    for d in range(4): a(f"v_cvt_pk_bf16_f32 v{50+d}, v{40+2*d}, v{40+2*d+1}")
    a("buffer_store_dwordx2 v[50:51], v2, s[36:39], s46 offen")
    a("buffer_store_dwordx2 v[52:53], v2, s[36:39], s47 offen")
    a.label(f"L_end_{name}")
    a("s_endpgm")

def reduce_inkernel(a):
    RA = 196; RB = 88
    a("s_nop 7")
    for tau in range(5, 9):
        for x in d_pack_store(tau): a(x)
    a("s_lshl_b32 s48, s58, 8"); a(f"s_add_u32 s48, s48, {WS_F2}")
    a(f"s_lshl_b32 s49, s{S_X}, 3"); a("s_add_u32 s49, s49, s48")
    a("s_waitcnt vmcnt(4)")
    flag_store(a, 49, 'sc1')
    a("s_add_u32 s49, s49, 128")
    a("v_and_b32 v8, 7, v0"); a("v_lshlrev_b32 v8, 3, v8")
    a("v_and_b32 v14, 1, v0"); a("v_mul_u32_u24 v14, 1152, v14")
    a("v_bfe_u32 v15, v0, 1, 2"); a("v_lshl_add_u32 v14, v15, 3, v14")
    a("v_lshrrev_b32 v12, 3, v0"); a("v_lshl_add_u32 v14, v12, 5, v14")
    a("v_add_u32 v15, 160, v14")
    srd(a, 36, P_OUT, SZ_OUT)
    a(f"s_lshl_b32 s56, s{S_G}, 2"); a(f"s_add_u32 s56, s56, s{S_WAVE}"); a("s_lshl_b32 s56, s56, 5")
    a(f"s_lshl_b32 s57, s{S_X}, 1"); a("s_add_u32 s56, s56, s57"); a("s_mul_i32 s56, s56, 1152")
    a(f"s_mul_i32 s57, s{S_J}, 288"); a("s_add_u32 s56, s56, s57")
    a(f"s_add_u32 s57, s56, {16*1152}")
    a(f"s_mul_i32 s47, s{S_X}, 9216"); a("s_add_u32 s47, s47, s59")
    a("s_waitcnt vmcnt(1)")
    flag_store(a, 49, 'sc1')
    stamp(a, 10)
    poll(a, "da", 8, 48, sleep=OPT.get('d_sleep', 0))
    a("s_mov_b32 s46, s47")
    a("s_mov_b32 exec_hi, 0xff")
    for sx in range(8):
        a(f"buffer_load_dwordx4 {vr(RA+4*sx,4)}, v7, s[32:35], s46 offen sc1")
        if sx < 7: a("s_add_u32 s46, s46, 1152")
    a("s_mov_b64 exec, -1")
    a("s_add_u32 s48, s48, 128")
    poll(a, "db", 8, 48, sleep=OPT.get('d_sleep2', 1))
    stamp(a, 11)
    a("s_mov_b64 exec, 0xffffffff")
    for sx in range(8):
        a(f"buffer_load_dwordx4 {vr(RB+4*sx,4)}, v7, s[32:35], s47 offen offset:640 sc1")
        if sx < 7: a("s_add_u32 s47, s47, 1152")
    a("s_mov_b64 exec, -1")
    AA = 16; AB = 24; T = 32
    def summ(R, A, waits):
        for sx in range(8):
            if waits: a(f"s_waitcnt vmcnt({7 - sx})")
            for d in range(4):
                src = R + 4*sx + d
                if sx == 0:
                    a(f"v_lshlrev_b32 v{A+2*d}, 16, v{src}"); a(f"v_and_b32 v{A+2*d+1}, 0xffff0000, v{src}")
                else:
                    t = T + 2 * (d & 1)
                    a(f"v_lshlrev_b32 v{t}, 16, v{src}"); a(f"v_and_b32 v{t+1}, 0xffff0000, v{src}")
                    a(f"v_pk_add_f32 v[{A+2*d}:{A+2*d+1}], v[{A+2*d}:{A+2*d+1}], v[{t}:{t+1}]")
    fl = {0: "", 1: " sc1", 2: " nt", 3: " sc0 sc1"}[OPT.get('outfl', 0)]
    summ(RA, AA, False)
    for d in range(4): a(f"v_cvt_pk_bf16_f32 v{36+d}, v{AA+2*d}, v{AA+2*d+1}")
    summ(RB, AB, True)
    a("s_mov_b32 exec_hi, 0xff")
    a(f"buffer_store_dwordx2 v[36:37], v14, s[36:39], s56 offen{fl}")
    a(f"buffer_store_dwordx2 v[38:39], v14, s[36:39], s57 offen{fl}")
    a("s_mov_b64 exec, -1")
    for d in range(4): a(f"v_cvt_pk_bf16_f32 v{40+d}, v{AB+2*d}, v{AB+2*d+1}")
    a("s_mov_b64 exec, 0xffffffff")
    a(f"buffer_store_dwordx2 v[40:41], v15, s[36:39], s56 offen{fl}")
    a(f"buffer_store_dwordx2 v[42:43], v15, s[36:39], s57 offen{fl}")
    a("s_mov_b64 exec, -1")

def KNAME():
    return "standalone__mha_block_cached__near_ridge_kernel" if OPT['dk'] else "mha_a_kernel"

def kernelA(a):
    global KIDX
    KIDX = 0
    name = KNAME()
    prologue(a, name)
    stamp_init(a); stamp(a, 0); cstamp(a, 14)
    if OPT['stamps'] and OPT.get('entrystamp', 0): a("s_mov_b64 s[86:87], s[96:97]")
    a(f"s_cmp_lt_u32 s{S_WAVE}, 4"); a("s_cbranch_scc1 L_a_compute")
    a(f"s_cmp_eq_u32 s{S_WAVE}, 5"); a("s_cbranch_scc1 L_a_ldx")
    a(f"s_cmp_eq_u32 s{S_WAVE}, 6"); a("s_cbranch_scc1 L_a_ldk")
    a(f"s_cmp_eq_u32 s{S_WAVE}, 7"); a("s_cbranch_scc1 L_a_ldv")
    loader_ring(a, 'wq'); stamp_flush(a); a("s_endpgm")
    a.label("L_a_ldx"); loader_ring(a, 'x'); stamp_flush(a); a("s_endpgm")
    a.label("L_a_ldv"); loader_v(a); stamp_flush(a); a("s_endpgm")
    a.label("L_a_ldk"); loader_k(a); stamp_flush(a); a("s_endpgm")
    a.label("L_a_compute")
    CUR['compute'] = True
    gemm1_addrs(a); attn_addrs(a)
    if OPT.get('cprio', 0): a(f"s_setprio {OPT['cprio']}")
    kwait(a)
    srd(a, 36, P_DBG, 256)
    a("v_mov_b32 v1, 0")
    a(f"s_lshl_b32 s40, s{S_G}, 3"); a(f"s_add_u32 s40, s40, s{S_X}"); a("s_lshr_b32 s40, s40, 1")
    a("s_lshl_b32 s40, s40, 2"); a("s_add_u32 s40, s40, 128")
    srd(a, 44, P_WS, SZ_WS_USED)
    a(f"s_lshl_b32 s42, s{S_G}, 3"); a(f"s_add_u32 s42, s42, s{S_X}"); a("s_lshl_b32 s42, s42, 2")
    a(f"s_add_u32 s42, s42, s{S_WAVE}"); a("s_lshl_b32 s42, s42, 7"); a(f"s_add_u32 s42, s42, {WS_F}")
    gemm1(a)
    if not OPT.get('nonce_in', 1): get_nonce(a)
    stamp(a, 2)
    attention(a); stamp(a, 5)
    tail(a)
    if OPT['stamps']: a("s_waitcnt vmcnt(0)")
    stamp(a, 12); cstamp(a, 15); stamp_flush(a)
    if OPT.get('waitx', 0):
        a("s_waitcnt vmcnt(0)")
        a(f"s_add_u32 s62, s{S_NON}, {OPT['waitx']}")
        a("s_mov_b32 s63, 0")
        a.label("L_wx_spin")
        a("s_memrealtime s[64:65]"); a("s_waitcnt lgkmcnt(0)")
        a("s_add_u32 s63, s63, 1"); a("s_cmp_gt_u32 s63, 100000"); a("s_cbranch_scc1 L_wx_done")
        a("s_sub_u32 s66, s62, s64"); a("s_cmp_gt_i32 s66, 0"); a("s_cbranch_scc1 L_wx_spin")
        a.label("L_wx_done")
    if OPT.get('probe', -1) >= 0:
        a("s_waitcnt vmcnt(0)")
        a(f"s_sub_u32 s62, s60, s{S_NON}"); a(f"s_mul_i32 s62, s62, {OPT.get('probek', 8)}")
        a("s_memrealtime s[64:65]"); a("s_waitcnt lgkmcnt(0)")
        a("s_add_u32 s62, s62, s64")
        a("s_mov_b32 s63, 0")
        a.label("L_probe_spin")
        a("s_memrealtime s[64:65]"); a("s_waitcnt lgkmcnt(0)")
        a("s_add_u32 s63, s63, 1"); a("s_cmp_gt_u32 s63, 100000"); a("s_cbranch_scc1 L_probe_done")
        a("s_sub_u32 s66, s62, s64"); a("s_cmp_gt_i32 s66, 0"); a("s_cbranch_scc1 L_probe_spin")
        a.label("L_probe_done")
    a.label(f"L_end_{name}")
    a("s_endpgm")

def kernel3(a):
    global KIDX
    KIDX = 1
    name = "mha_p3_kernel"
    a(".p2align 8"); a(f".globl {name}"); a(f".type {name},@function"); a.label(name)
    a("s_cmp_ge_u32 s2, 256"); a(f"s_cbranch_scc1 L_end_{name}")
    a("s_load_dwordx16 s[16:31], s[0:1], 0")
    a("v_lshrrev_b32 v1, 6, v0"); a("v_and_b32 v0, 63, v0")
    a("s_lshr_b32 s5, s2, 1")
    a("s_and_b32 s6, s2, 1")
    a(f"v_readfirstlane_b32 s{S_WAVE}, v1")
    a("s_mul_i32 s6, s6, 9")
    a("s_waitcnt lgkmcnt(0)")
    stamp_init(a); stamp(a, 0); cstamp(a, 14)
    a(f"s_add_u32 s6, s6, s{S_WAVE}")
    srd(a, 32, P_WS, SZ_WS_USED); srd(a, 36, P_OUT, SZ_OUT)
    a("v_lshlrev_b32 v1, 4, v0")
    a("s_mul_i32 s45, s5, 18"); a("s_add_u32 s45, s45, s6"); a("s_lshl_b32 s45, s45, 10")
    a(f"s_add_u32 s45, s45, {WS_P}")
    for x in range(8):
        a(f"buffer_load_dwordx4 {vr(8+4*x,4)}, v1, s[32:35], s45 offen")
        if x < 7: a(f"s_add_u32 s45, s45, {128*18*1024}")
    a("v_and_b32 v2, 15, v0"); a("v_mul_u32_u24 v2, 1152, v2"); a("v_lshrrev_b32 v3, 4, v0")
    a("v_lshl_add_u32 v2, v3, 3, v2")
    a("s_lshr_b32 s46, s5, 4"); a("s_lshl_b32 s46, s46, 2"); a("s_and_b32 s47, s5, 3"); a("s_add_u32 s46, s46, s47")
    a(f"s_mul_i32 s46, s46, {32*1152}")
    a("s_lshr_b32 s47, s5, 2"); a("s_and_b32 s47, s47, 3"); a("s_mul_i32 s47, s47, 288"); a("s_add_u32 s46, s46, s47")
    a("s_and_b32 s47, s6, 1"); a(f"s_mul_i32 s47, s47, {16*1152}"); a("s_add_u32 s46, s46, s47")
    a("s_lshr_b32 s47, s6, 1"); a("s_lshl_b32 s47, s47, 5"); a("s_add_u32 s46, s46, s47")
    a("s_waitcnt vmcnt(0)")
    for v in range(4):
        for x in range(0, 8, 2): a(f"v_add_f32 v{8+4*x+v}, v{8+4*x+v}, v{12+4*x+v}")
    for v in range(4):
        a(f"v_add_f32 v{8+v}, v{8+v}, v{16+v}"); a(f"v_add_f32 v{24+v}, v{24+v}, v{32+v}")
    for v in range(4): a(f"v_add_f32 v{8+v}, v{8+v}, v{24+v}")
    a("v_cvt_pk_bf16_f32 v8, v8, v9"); a("v_cvt_pk_bf16_f32 v9, v10, v11")
    a("buffer_store_dwordx2 v[8:9], v2, s[36:39], s46 offen")
    if OPT['stamps']:
        a("s_waitcnt vmcnt(0)")
        stamp(a, 10); cstamp(a, 15)
        a(f"s_cmp_ge_u32 s{S_WAVE}, 8"); a("s_cbranch_scc1 L_end_mha_p3_kernel")
        stamp_flush(a, 44)
    a.label(f"L_end_{name}")
    a("s_endpgm")

def descriptor(a, name, vgpr, sgpr=102):
    a(f".amdhsa_kernel {name}")
    a(f".amdhsa_next_free_vgpr {vgpr}"); a(f".amdhsa_next_free_sgpr {sgpr}"); a(f".amdhsa_accum_offset {vgpr}")
    a(".amdhsa_group_segment_fixed_size 0"); a(".amdhsa_kernarg_size 64")
    a(".amdhsa_user_sgpr_count 2"); a(".amdhsa_user_sgpr_kernarg_segment_ptr 1")
    a(".amdhsa_system_sgpr_workgroup_id_x 1"); a(".end_amdhsa_kernel")

def main():
    out = sys.argv[1]
    for arg in sys.argv[2:]:
        if arg == "--stamps": OPT['stamps'] = True
        elif "=" in arg:
            k, v = arg.lstrip("-").split("="); OPT[k] = int(v)
    a = Asm()
    hdr = "; MHA block (Q-proj + attention + out-proj), generated by gen3.py\n"
    if OPT['dk']:
        hdr += "; @launch grid=(256,1,1) block=(512,1,1) lds=163840\n"
    else:
        hdr += "; @launch kernel=mha_a_kernel grid=(256,1,1) block=(512,1,1) lds=163840\n"
        if OPT.get('k3bf', 0): hdr += "; @launch kernel=mha_p3_kernel grid=(288,1,1) block=(256,1,1) lds=0\n"
        else: hdr += "; @launch kernel=mha_p3_kernel grid=(256,1,1) block=(576,1,1) lds=0\n"
    a('.amdgcn_target "amdgcn-amd-amdhsa--gfx950"'); a(".text")
    kernelA(a)
    if not OPT['dk']:
        if OPT.get('k3bf', 0): kernel3b(a)
        else: kernel3(a)
    a('.section .rodata,"a"'); a(".p2align 6"); descriptor(a, KNAME(), 256)
    if not OPT['dk']:
        a(".p2align 6"); descriptor(a, "mha_p3_kernel", 56)
    open(out, "w").write(hdr + a.text())

if __name__ == "__main__": main()
```

```python
import sys, struct

class Asm:
    def __init__(self): self.l = []
    def __call__(self, s=""):
        for x in s.split("\n"):
            x = x.strip()
            self.l.append(x if (x.endswith(":") or x.startswith(".")) else "  " + x)
    def label(self, s): self.l.append(s + ":")
    def text(self): return "\n".join(self.l) + "\n"

def vr(b, n=1): return f"v{b}" if n == 1 else f"v[{b}:{b+n-1}]"
def f32hex(x): return "0x%08x" % struct.unpack("<I", struct.pack("<f", x))[0]

P_X, P_K, P_V, P_WQ, P_WO, P_OUT, P_DBG, P_WS = 16, 18, 20, 22, 24, 26, 28, 30
SZ_X, SZ_KV, SZ_W, SZ_OUT = 1179648, 8388608, 4718592, 1179648
WS_O = 0
WS_P = 8 << 20
WS_F = 28 << 20
WS_F2 = (28 << 20) + (1 << 19)
WS_D = 8 << 20
WS_STAMP = 32 << 20
SZ_WS_USED = 64 << 20
S_WAVE, S_X, S_R, S_J, S_G, S_H = 3, 4, 5, 6, 9, 10

OPT = dict(stamps=False, fast=1, spin_max=2000000, kvmode=21, flagpos=3, xonce=1, vearly=1, woearly=1, d_sleep=1, d_sleep2=0, o_sleep=0, k_nt=1, v_nt=1, wot_pos=8, dk=1)

def srd(a, base, ptr, size, add=0):
    if add:
        a(f"s_add_u32 s{base}, s{ptr}, {add}"); a(f"s_addc_u32 s{base+1}, s{ptr+1}, 0")
        a(f"s_and_b32 s{base+1}, s{base+1}, 0xffff")
    else:
        a(f"s_mov_b32 s{base}, s{ptr}"); a(f"s_and_b32 s{base+1}, s{ptr+1}, 0xffff")
    a(f"s_mov_b32 s{base+2}, {size}"); a(f"s_mov_b32 s{base+3}, 0x00020000")

def prologue(a, name, nwg=256):
    a(".p2align 8"); a(f".globl {name}"); a(f".type {name},@function"); a.label(name)
    a(f"s_cmp_ge_u32 s2, {nwg}"); a(f"s_cbranch_scc1 L_end_{name}")
    if OPT['stamps'] and OPT.get('entrystamp', 0): a("s_memrealtime s[96:97]")
    a("s_load_dwordx16 s[16:31], s[0:1], 0")
    a("v_lshrrev_b32 v1, 6, v0"); a("v_and_b32 v0, 63, v0")
    a(f"s_and_b32 s{S_X}, s2, 7"); a(f"s_lshr_b32 s{S_R}, s2, 3")
    a(f"v_readfirstlane_b32 s{S_WAVE}, v1")
    a(f"s_and_b32 s{S_J}, s{S_R}, 3"); a(f"s_lshr_b32 s{S_G}, s{S_R}, 2")
    a(f"s_lshl_b32 s{S_H}, s{S_X}, 2"); a(f"s_add_u32 s{S_H}, s{S_H}, s{S_J}")
    if OPT['stamps'] or not OPT.get('latewait', 1): a("s_waitcnt lgkmcnt(0)")

def kwait(a):
    if not OPT['stamps'] and OPT.get('latewait', 1): a("s_waitcnt lgkmcnt(0)")

KIDX = 0
CUR = {}
def tstamp(a, idx):
    if OPT.get('tailstamps', 0): stamp(a, idx, force=True)
def stamp(a, idx, force=False):
    if OPT.get('probe', -1) == idx and CUR.get('compute') and (force or not (OPT.get('tailstamps', 0) and idx in (1,2,3,4,13))):
        a("s_memrealtime s[60:61]"); a("s_waitcnt lgkmcnt(0)")
        return
    if not OPT['stamps']: return
    if OPT.get('tailstamps', 0) and not force and idx in (1,2,3,4,13) and CUR.get('compute'): return
    a(f"s_memrealtime s[{60+2*idx}:{61+2*idx}]"); a("s_waitcnt lgkmcnt(0)")
def cstamp(a, idx):
    if not OPT['stamps']: return
    a(f"s_memtime s[{60+2*idx}:{61+2*idx}]"); a("s_waitcnt lgkmcnt(0)")
def stamp_init(a):
    if not OPT['stamps']: return
    for i in range(16): a(f"s_mov_b64 s[{60+2*i}:{61+2*i}], 0")
def stamp_flush(a, vb=250):
    if not OPT['stamps']: return
    srd(a, 92, P_WS, 256*16*16*8, add=WS_STAMP + KIDX*256*8*16*8)
    a("s_lshl_b32 s96, s2, 3"); a(f"s_add_u32 s96, s96, s{S_WAVE}"); a("s_lshl_b32 s96, s96, 7")
    a(f"v_mov_b32 v{vb+2}, 0")
    for i in range(16):
        a(f"v_mov_b32 v{vb}, s{60+2*i}"); a(f"v_mov_b32 v{vb+1}, s{61+2*i}")
        a(f"buffer_store_dwordx2 v[{vb}:{vb+1}], v{vb+2}, s[92:95], s96 offen offset:{i*8}")
        a("s_nop 1")
    a("s_waitcnt vmcnt(0)")

L_K = 98304; L_V = 131072; NCH = 9
W_SLOT = 36864

def dma(a, voff, srdb, soff, off=0, nt=False, fl=""):
    a(f"buffer_load_dwordx4 v{voff}, s[{srdb}:{srdb+3}], s{soff} offen" + (f" offset:{off}" if off else "") + (" nt" if nt else "") + fl + " lds")
def FL(key):
    return {0: "", 1: " sc1", 2: " sc0", 3: " sc0 sc1"}[OPT.get(key, 0)]

V_WOV = 16
def wo_prep(a):
    srd(a, 52, P_WO, SZ_W)
    for t in range(9):
        a(f"v_add_u32 v1, {64*t}, v0")
        a("v_mul_u32_u24 v2, 3641, v1")
        a("v_lshrrev_b32 v2, 16, v2")
        a("v_mul_u32_u24 v3, 18, v2")
        a("v_sub_u32 v3, v1, v3")
        a("v_lshlrev_b32 v3, 4, v3")
        a("v_mul_u32_u24 v2, 1152, v2")
        a(f"v_add_u32 v{V_WOV+t}, v2, v3")
    a(f"s_mul_i32 s56, s{S_J}, 288")
def wo_issue(a, slot, q0, nq):
    a(f"s_add_u32 s57, s{S_J}, {slot}"); a("s_and_b32 s57, s57, 3")
    a(f"s_lshl_b32 s58, s{S_X}, 2"); a("s_add_u32 s57, s57, s58")
    a(f"s_mul_i32 s57, s57, {128*1152}"); a("s_add_u32 s57, s57, s56")
    if q0: a(f"s_add_u32 s57, s57, {q0*32*1152}")
    a(f"s_mov_b32 m0, {slot*W_SLOT + q0*32*288}"); a("s_nop 0")
    for blk in range(nq):
        for t in range(9):
            dma(a, V_WOV + t, 52, 57, fl=FL('wofl'))
            if not (blk == nq - 1 and t == 8):
                a("s_add_u32 m0, m0, 1024")
                if t == 8: a(f"s_add_u32 s57, s57, {32*1152}")
                else: a("s_nop 0")

def loader_tail(a, role):
    a("s_barrier")
    stamp(a, 8)
    if OPT.get('s1late', 0):
        if role < 2:
            wo_issue(a, 0, 2 * role, 2)
            a("s_waitcnt vmcnt(0)")
        stamp(a, 9)
        a("s_barrier")
        for sl in (1, 2, 3): wo_issue(a, sl, role, 1)
        stamp(a, 10)
        a("s_waitcnt vmcnt(18)")
        a("s_barrier")
    else:
        if role < 2:
            wo_issue(a, 0, 2 * role, 2); wo_issue(a, 1, 2 * role, 2)
        stamp(a, 9)
        if role < 2: a("s_waitcnt vmcnt(18)")
        a("s_barrier")
        wo_issue(a, 2, role, 1)
        wo_issue(a, 3, role, 1)
        stamp(a, 10)
        if role < 2: a("s_waitcnt vmcnt(18)")
        a("s_barrier")
    a("s_waitcnt vmcnt(9)")
    a("s_barrier")
    a("s_waitcnt vmcnt(0)")
    stamp(a, 11)
    a("s_barrier")

def loader_ring(a, which):
    SRD = 32; SO = 40
    if which == 'wq':
        a("v_lshrrev_b32 v1, 4, v0"); a("v_and_b32 v2, 15, v0")
        a("v_lshlrev_b32 v3, 2, v1"); a("v_xor_b32 v3, v3, v2"); a("v_lshlrev_b32 v3, 4, v3")
        a("v_lshlrev_b32 v4, 13, v1"); a("v_add_u32 v4, v4, v3")
        a(f"s_lshl_b32 s{SO}, s{S_H}, 8")
        def issue(kc):
            a(f"s_mov_b32 m0, {(kc%3)*32768}")
            for t in range(16):
                if t == 0: a("s_nop 0")
                dma(a, 4, SRD, SO, fl=FL('ringfl'))
                a(f"s_add_u32 s{SO}, s{SO}, 32768")
                if t < 15:
                    a("s_add_u32 m0, m0, 1024"); a("s_nop 0")
    else:
        a("v_lshrrev_b32 v1, 3, v0"); a("v_mul_u32_u24 v1, 1152, v1")
        a("v_and_b32 v2, 7, v0"); a("v_lshrrev_b32 v3, 4, v0"); a("v_xor_b32 v2, v2, v3")
        a("v_lshlrev_b32 v4, 4, v2"); a("v_add_u32 v4, v4, v1")
        a("v_xor_b32 v2, 4, v2"); a("v_lshlrev_b32 v5, 4, v2"); a("v_add_u32 v5, v5, v1")
        a(f"s_mul_i32 s{SO+1}, s{S_G}, 147456")
        def issue(kc):
            a(f"s_mov_b32 m0, {(kc%3)*32768 + 16384}")
            a(f"s_add_u32 s{SO}, s{SO+1}, {kc*128}")
            for T in range(16):
                dma(a, 4 + (T & 1), SRD, SO, fl=FL('ringfl'))
                if T < 15:
                    a("s_add_u32 m0, m0, 1024"); a(f"s_add_u32 s{SO}, s{SO}, 9216")
    kv_pos(a, 43, 'k')
    if which == 'wq':
        a("v_lshrrev_b32 v8, 1, v0"); a("v_and_b32 v9, 1, v0")
        a("v_lshlrev_b32 v8, 13, v8"); a("v_lshl_add_u32 v8, v9, 7, v8")
        a(f"s_lshl_b32 s46, s{S_G}, {5+13}"); a(f"s_lshl_b32 s47, s{S_H}, 8"); a("s_add_u32 s46, s46, s47")
        def touch(part):
            if part == 0:
                a(f"buffer_load_dword v10, v8, s[{SRD}:{SRD+3}], s46 offen")
            else:
                a(f"s_add_u32 s46, s46, {256*8192}")
                a(f"buffer_load_dword v10, v8, s[{SRD}:{SRD+3}], s46 offen")
                a(f"s_lshl_b32 s46, s{S_G}, {3+13}"); a("s_add_u32 s46, s46, s47"); a(f"s_add_u32 s46, s46, {512*8192}")
                a("s_mov_b64 exec, 0xffff")
                a(f"buffer_load_dword v10, v8, s[{SRD}:{SRD+3}], s46 offen")
                a("s_mov_b64 exec, -1")
        NT1 = 2
    else:
        if OPT.get('xonce', 0):
            a("v_mul_u32_u24 v8, 7282, v0"); a("v_lshrrev_b32 v8, 16, v8")
            a("v_mul_u32_u24 v9, 9, v8"); a("v_sub_u32 v9, v0, v9")
            a("v_mul_u32_u24 v8, 1152, v8"); a("v_lshl_add_u32 v8, v9, 7, v8")
            a(f"s_mul_i32 s46, s{S_G}, 147456"); a(f"s_mul_i32 s47, s{S_H}, {4*1152}"); a("s_add_u32 s46, s46, s47")
            def touch(part):
                if part == 0:
                    a("s_mov_b32 exec_lo, -1"); a("s_mov_b32 exec_hi, 15")
                    a(f"buffer_load_dword v10, v8, s[{SRD}:{SRD+3}], s46 offen")
                    a("s_mov_b64 exec, -1")
            NT1 = 0
        else:
            a("v_and_b32 v9, 31, v0"); a("v_mul_u32_u24 v9, 1152, v9")
            a("v_lshrrev_b32 v8, 5, v0"); a("v_lshl_add_u32 v8, v8, 7, v9")
            a(f"s_mul_i32 s46, s{S_G}, 147456"); a(f"s_mul_i32 s47, s{S_J}, {32*1152}"); a("s_add_u32 s46, s46, s47")
            def touch(part):
                if part == 0:
                    a(f"buffer_load_dword v10, v8, s[{SRD}:{SRD+3}], s46 offen")
                else:
                    for t in range(1, 4):
                        a(f"buffer_load_dword v10, v8, s[{SRD}:{SRD+3}], s46 offen offset:{256*t}")
                    a("s_mov_b64 exec, 0xffffffff")
                    a(f"buffer_load_dword v10, v9, s[{SRD}:{SRD+3}], s46 offen offset:1024")
                    a("s_mov_b64 exec, -1")
            NT1 = 4
    if OPT.get('lprio', 0): a(f"s_setprio {OPT['lprio']}")
    kwait(a)
    srd(a, SRD, P_WQ if which == 'wq' else P_X, SZ_W if which == 'wq' else SZ_X)
    if OPT.get('tall', 0):
        touch(0); touch(1); NT1 = 0
        issue(0); stamp(a, 1)
    else:
        touch(0)
        issue(0); stamp(a, 1)
        touch(1)
    a("s_barrier")
    if OPT.get('kearly', 0): a("s_barrier")
    bx(a, -1, "r" + which)
    issue(1)
    stamp(a, 2)
    a(f"s_waitcnt vmcnt({16 + NT1})")
    stamp(a, 3)
    a("s_barrier")
    bx(a, 0, "r" + which)
    issue(2)
    for i in range(1, NCH):
        last_issued = min(i + 1, NCH - 1)
        a(f"s_waitcnt vmcnt({(last_issued - i) * 16})")
        a("s_barrier")
        if which == 'wq' and i in (1,2,3,4): stamp(a, {1:4,2:5,3:6,4:12}[i])
        if which == 'x' and i in (5,6,7,8): stamp(a, {5:4,6:5,7:6,8:12}[i])
        if i < 8: bx(a, i, "r" + which)
        if i + 2 < NCH: issue(i + 2)
        if i == 7: wo_prep(a)
    stamp(a, 7)
    loader_tail(a, 0 if which == 'wq' else 1)

def kv_pos(a, sdst, which):
    m = OPT['kvmode']
    if m == 10:
        tab = [-1, 2, 4, 7]
    elif m == 11: tab = [7, 7, 7, 7]
    elif m == 12: tab = [-1, -1, -1, -1]
    elif m == 13: tab = [1, 1, 6, 6]
    elif m == 14: tab = [-1, 1, 4, 7]
    elif m == 15: tab = [0, 3, 5, 7]
    elif m == 16: tab = [2, 7, 2, 7]
    elif m == 17: tab = [3, 5, 7, 7]
    elif m == 20: tab = [-1, 1, 3, 5]
    elif m == 21: tab = [-1, 2, 4, 6]
    elif m == 22: tab = [-1, -1, 3, 3]
    elif m == 23: tab = [-1, 0, 2, 4]
    elif m == 24: tab = [0, 2, 4, 6]
    elif m == 25: tab = [-1, -1, -1, -1]
    packed = sum(((p + 1) & 15) << (4 * k) for k, p in enumerate(tab))
    a(f"s_and_b32 s{sdst}, s{S_G}, 3"); a(f"s_lshl_b32 s{sdst}, s{sdst}, 2")
    a(f"s_lshr_b32 s{sdst}, {packed}, s{sdst}"); a(f"s_and_b32 s{sdst}, s{sdst}, 15")

def bx(a, p, tag):
    if p >= 6: return
    a(f"s_cmp_lg_u32 s43, {p+1}"); a(f"s_cbranch_scc1 L_bx_{tag}_{p+1}")
    a("s_barrier")
    a.label(f"L_bx_{tag}_{p+1}")

def kv_loop(a, tag, issue_fn, extra_fn=None, extra_pos=None):
    a("s_mov_b32 s59, 0")
    a.label(f"L_{tag}_loop")
    a("s_cmp_lg_u32 s59, s43"); a(f"s_cbranch_scc1 L_{tag}_skip")
    stamp(a, 3)
    issue_fn()
    stamp(a, 4)
    a(f"s_cmp_ge_u32 s59, 7"); a(f"s_cbranch_scc1 L_{tag}_skip")
    a("s_barrier")
    a.label(f"L_{tag}_skip")
    if extra_fn is not None:
        a(f"s_cmp_lg_u32 s59, {extra_pos}"); a(f"s_cbranch_scc1 L_{tag}_skip2")
        extra_fn()
        a.label(f"L_{tag}_skip2")
    a("s_barrier")
    a("s_add_u32 s59, s59, 1")
    a("s_cmp_le_u32 s59, 8"); a(f"s_cbranch_scc1 L_{tag}_loop")

def loader_k(a):
    SRD = 32; SO = 40
    kwait(a)
    srd(a, SRD, P_K, SZ_KV)
    a("v_lshrrev_b32 v1, 4, v0"); a("v_and_b32 v2, 15, v0"); a("v_xor_b32 v2, v2, v1")
    a("v_lshlrev_b32 v2, 4, v2"); a("v_lshl_add_u32 v4, v1, 8, v2")
    a("v_xor_b32 v5, 64, v4"); a("v_xor_b32 v6, 128, v4"); a("v_xor_b32 v7, 192, v4")
    wo_prep(a)
    a("v_and_b32 v8, 15, v0"); a("v_mul_u32_u24 v8, 1152, v8")
    a("v_lshrrev_b32 v9, 4, v0"); a("v_lshl_add_u32 v9, v9, 7, v8")
    kv_pos(a, 43, 'k')
    if OPT.get('wswarm', 1):
        srd(a, 44, P_WS, SZ_WS_USED); srd(a, 48, P_OUT, SZ_OUT)
        a(f"s_lshl_b32 s40, s{S_G}, 5"); a(f"s_add_u32 s40, s40, s{S_H}"); a("s_lshl_b32 s40, s40, 15")
        a(f"s_lshl_b32 s41, s{S_G}, 2"); a(f"s_add_u32 s41, s41, s{S_J}"); a("s_lshl_b32 s41, s41, 2")
        a("s_mul_i32 s42, s41, 73728"); a(f"s_add_u32 s42, s42, {WS_D}")
        a(f"s_mul_i32 s45, s{S_X}, 1152") if False else None
        a(f"s_mul_i32 s58, s{S_X}, 1152"); a("s_add_u32 s42, s42, s58")
        a("s_lshl_b32 s41, s41, 8"); a(f"s_add_u32 s41, s41, {WS_F2}")
        a("v_mov_b32 v11, 0")
        a("s_mov_b64 exec, 1")
        a("buffer_load_dword v10, v11, s[44:47], s40 offen")
        a("buffer_load_dword v10, v11, s[44:47], s42 offen")
        a("buffer_load_dword v10, v11, s[44:47], s41 offen sc1")
        a(f"s_lshl_b32 s40, s{S_G}, 7"); a(f"s_lshl_b32 s41, s{S_X}, 1"); a("s_add_u32 s40, s40, s41"); a("s_mul_i32 s40, s40, 1152")
        a(f"s_mul_i32 s41, s{S_J}, 288"); a("s_add_u32 s40, s40, s41")
        a("buffer_load_dword v10, v11, s[48:51], s40 offen")
        a("s_mov_b64 exec, -1")
    if OPT.get('tlbwarm', 0):
        a(f"s_lshl_b32 s{SO}, s{S_G}, 7"); a(f"s_add_u32 s{SO}, s{SO}, s{S_H}"); a(f"s_lshl_b32 s{SO}, s{SO}, 13")
        a("v_lshlrev_b32 v11, 18, v0")
        a("s_mov_b64 exec, 15")
        a(f"buffer_load_dword v10, v11, s[{SRD}:{SRD+3}], s{SO} offen nt")
        a("s_mov_b64 exec, -1")
    a("s_barrier")
    stamp(a, 1)
    KE = OPT.get('kearly', 0)
    def issue(w0=None, w1=4):
        if w0 is None: w0 = KE
        a(f"s_lshl_b32 s{SO}, s{S_G}, 7"); a(f"s_add_u32 s{SO}, s{SO}, s{S_H}"); a(f"s_lshl_b32 s{SO}, s{SO}, 13")
        if w0: a(f"s_add_u32 s{SO}, s{SO}, {w0*32*8192}")
        for w in range(w0, w1):
            for hf in range(2):
                a(f"s_mov_b32 m0, {L_K + w*8192 + hf*4096}"); a("s_nop 0")
                for t4 in range(4):
                    t = hf * 4 + t4
                    dma(a, 4 + (t >> 1), SRD, SO, off=t4 * 1024, nt=bool(OPT['k_nt']), fl=FL('kvfl'))
                a(f"s_add_u32 s{SO}, s{SO}, {4096 if hf == 0 else 32*8192 - 4096}")
    if KE:
        issue(0, KE)
        a("s_barrier")
    def wotouch():
        a(f"s_lshl_b32 s{SO}, s{S_X}, 5"); a(f"s_add_u32 s{SO}, s{SO}, s{S_R}")
        a(f"s_mul_i32 s{SO}, s{SO}, {16*1152}")
        a(f"buffer_load_dword v10, v9, s[52:55], s{SO} offen")
        a(f"buffer_load_dword v10, v9, s[52:55], s{SO} offen offset:512")
        a("s_mov_b64 exec, 0xffff")
        a(f"buffer_load_dword v10, v8, s[52:55], s{SO} offen offset:1024")
        a("s_mov_b64 exec, -1")
    def wotouch0():
        a(f"s_lshl_b32 s{SO}, s{S_X}, 2"); a(f"s_add_u32 s{SO}, s{SO}, s{S_J}"); a(f"s_lshl_b32 s{SO}, s{SO}, 3")
        a(f"s_add_u32 s{SO}, s{SO}, s{S_G}"); a(f"s_mul_i32 s{SO}, s{SO}, {16*1152}")
        a(f"s_mul_i32 s{SO+1}, s{S_J}, 288"); a(f"s_and_b32 s{SO+1}, s{SO+1}, 0xffffff80"); a(f"s_add_u32 s{SO}, s{SO}, s{SO+1}")
        a("s_mov_b32 exec_lo, -1"); a("s_mov_b32 exec_hi, 0xffff")
        a(f"buffer_load_dword v10, v9, s[52:55], s{SO} offen")
        a("s_mov_b64 exec, -1")
    wm = OPT.get('wotmode', 3)
    if wm == 3:
        def both():
            wotouch0(); issue()
        kv_loop(a, "k", both, wotouch, OPT['wot_pos'])
        a("s_waitcnt vmcnt(3)")
    elif wm == 0:
        kv_loop(a, "k", issue, wotouch, OPT['wot_pos'])
        a("s_waitcnt vmcnt(3)")
    if wm in (1, 2):
        def both():
            if wm == 1: wotouch()
            issue()
            if wm == 2: wotouch()
        kv_loop(a, "k", both)
        a("s_waitcnt vmcnt(0)")
    stamp(a, 7)
    loader_tail(a, 2)

def loader_v(a):
    SRD = 32; SO = 40
    kwait(a)
    srd(a, SRD, P_V, SZ_KV)
    a("s_cmp_lg_u32 s2, 0"); a("s_cbranch_scc1 L_nononce")
    srd(a, 48, P_DBG, 256)
    a("s_memrealtime s[42:43]"); a("s_waitcnt lgkmcnt(0)")
    a("s_or_b32 s42, s42, 1")
    a("v_mov_b32 v8, s42"); a("v_mov_b32 v9, s43"); a("v_mov_b32 v1, 0")
    a("s_mov_b64 exec, 1")
    a("buffer_store_dwordx2 v[8:9], v1, s[48:51], 0 offen sc1")
    a("s_mov_b64 exec, -1")
    a.label("L_nononce")
    if OPT['fast']:
        srd(a, 48, P_DBG, 256)
        a("s_getreg_b32 s42, hwreg(HW_REG_XCC_ID)")
        a("s_and_b32 s42, s42, 15")
        a("s_cmp_ge_u32 s42, 8"); a("s_cbranch_scc1 L_noxcc")
        a("s_mul_i32 s43, s42, s42"); a("s_lshl_b32 s43, s43, 5"); a("s_add_u32 s42, s42, s43")
        a("s_add_u32 s42, s42, 0x2000")
        a(f"s_lshl_b32 s43, s{S_G}, 3"); a(f"s_add_u32 s43, s43, s{S_X}")
        a("s_and_b32 s41, s43, 1"); a("s_lshl_b32 s41, s41, 4"); a("s_lshl_b32 s42, s42, s41")
        a("s_lshr_b32 s43, s43, 1"); a("s_lshl_b32 s43, s43, 2"); a("s_add_u32 s43, s43, 128")
        a("v_mov_b32 v8, s42"); a("v_mov_b32 v1, 0")
        a("s_mov_b64 exec, 1")
        a("buffer_atomic_add v8, v1, s[48:51], s43 offen")
        a("s_mov_b64 exec, -1")
        a.label("L_noxcc")
    a("v_lshrrev_b32 v1, 4, v0"); a("v_and_b32 v2, 15, v0"); a("v_lshlrev_b32 v3, 1, v1")
    a("v_xor_b32 v2, v2, v3"); a("v_lshlrev_b32 v2, 4, v2"); a("v_lshl_add_u32 v4, v1, 8, v2")
    a("v_xor_b32 v5, 128, v4")
    wo_prep(a)
    kv_pos(a, 43, 'v')
    if OPT.get('tlbwarm', 0):
        a(f"s_lshl_b32 s{SO}, s{S_G}, 7"); a(f"s_add_u32 s{SO}, s{SO}, s{S_H}"); a(f"s_lshl_b32 s{SO}, s{SO}, 13")
        a("v_lshlrev_b32 v11, 18, v0")
        a("s_mov_b64 exec, 15")
        a(f"buffer_load_dword v10, v11, s[{SRD}:{SRD+3}], s{SO} offen nt")
        a("s_mov_b64 exec, -1")
    a("s_barrier")
    if OPT.get('kearly', 0): a("s_barrier")
    stamp(a, 1)
    def issue():
        a(f"s_lshl_b32 s{SO}, s{S_G}, 7"); a(f"s_add_u32 s{SO}, s{SO}, s{S_H}"); a(f"s_lshl_b32 s{SO}, s{SO}, 13")
        for w in range(4):
            for hf in range(2):
                a(f"s_mov_b32 m0, {L_V + w*8192 + hf*4096}"); a("s_nop 0")
                for t4 in range(4):
                    t = hf * 4 + t4
                    dma(a, 4 + ((t >> 1) & 1), SRD, SO, off=t4 * 1024, nt=bool(OPT['v_nt']), fl=FL('kvfl'))
                a(f"s_add_u32 s{SO}, s{SO}, {4096 if hf == 0 else 32*8192 - 4096}")
    kv_loop(a, "v", issue)
    if OPT.get('vearly', 0): a("s_waitcnt vmcnt(0)")
    stamp(a, 7)
    loader_tail(a, 3)

V_XA = [4, 8]; V_WA = [12, 248]
V_A = [16, 32]; V_B = [48, 52]; V_ACC = 64
V_QF = 128; V_KF = 160; V_S = 192; V_VF = 208; V_PF = 240; V_OF = 128
V_KA = 56; V_VA = 60; V_CLW = 61; V_NONCE = 62
SC_SCALE = 0.08838834764831845 * 1.4426950408889634

def gemm1_addrs(a):
    a("v_and_b32 v1, 31, v0"); a("v_lshrrev_b32 v2, 5, v0"); a("v_bfe_u32 v3, v0, 1, 3")
    a("v_xor_b32 v2, v2, v3"); a("v_lshlrev_b32 v2, 4, v2"); a("v_lshl_add_u32 v2, v1, 7, v2")
    a(f"s_lshl_b32 s40, s{S_WAVE}, 12"); a("s_add_u32 s40, s40, 16384")
    a("v_add_u32 v2, s40, v2")
    for ks in range(4):
        a(f"v_xor_b32 v{V_XA[0]+ks}, {32*ks}, v2"); a(f"v_add_u32 v{V_XA[1]+ks}, 65536, v{V_XA[0]+ks}")
    a("v_bfe_u32 v1, v0, 2, 2"); a("v_lshrrev_b32 v2, 5, v0"); a("v_lshl_add_u32 v2, v2, 3, v1")
    a("v_lshlrev_b32 v2, 8, v2"); a("v_and_b32 v3, 1, v0"); a("v_lshl_add_u32 v2, v3, 5, v2")
    a("v_bfe_u32 v3, v0, 4, 1"); a("v_lshl_add_u32 v2, v3, 4, v2")
    a("v_bfe_u32 v3, v0, 1, 1"); a("v_lshl_add_u32 v2, v3, 3, v2")
    a("v_lshl_add_u32 v2, v1, 6, v2")
    for dt in range(4):
        a(f"v_xor_b32 v{V_WA[0]+dt}, {64*dt}, v2"); a(f"v_add_u32 v{V_WA[1]+dt}, 65536, v{V_WA[0]+dt}")

def attn_addrs(a):
    a("v_and_b32 v1, 15, v0"); a("v_lshrrev_b32 v2, 4, v0"); a("v_xor_b32 v2, v2, v1")
    a("v_lshlrev_b32 v2, 4, v2"); a("v_lshrrev_b32 v3, 2, v1"); a("v_lshl_add_u32 v2, v3, 11, v2")
    a("v_and_b32 v3, 3, v1"); a("v_lshl_add_u32 v2, v3, 8, v2")
    a(f"s_lshl_b32 s40, s{S_WAVE}, 13"); a(f"s_add_u32 s40, s40, {L_K}")
    a("v_add_u32 v2, s40, v2")
    for st in range(4): a(f"v_xor_b32 v{V_KA+st}, {64*st}, v2")
    a("v_lshrrev_b32 v1, 4, v0"); a("v_bfe_u32 v3, v0, 2, 2"); a("v_lshl_add_u32 v2, v1, 3, v3")
    a("v_lshlrev_b32 v2, 8, v2"); a("v_and_b32 v1, 1, v1"); a("v_lshl_add_u32 v3, v1, 2, v3")
    a("v_lshl_add_u32 v2, v3, 5, v2"); a("v_and_b32 v3, 3, v0"); a("v_lshl_add_u32 v2, v3, 3, v2")
    a(f"s_lshl_b32 s40, s{S_WAVE}, 13"); a(f"s_add_u32 s40, s40, {L_V}")
    a(f"v_add_u32 v{V_VA}, s40, v2")

def g1_reads(n):
    i, ks = divmod(n, 4)
    slot = i % 3; st = n & 1; hs = 1 if slot == 2 else 0; so = (slot & 1) * 32768 if slot < 2 else 0
    r = [f"ds_read_b128 {vr(V_B[st],4)}, v{V_XA[hs]+ks} offset:{so}"]
    for dt in range(4):
        base = V_A[st] + 4 * dt
        off = so + ks * 4096
        r.append(f"ds_read_b64_tr_b16 {vr(base,2)}, v{V_WA[hs]+dt} offset:{off}")
        r.append(f"ds_read_b64_tr_b16 {vr(base+2,2)}, v{V_WA[hs]+dt} offset:{off+1024}")
    return r

def gemm1(a):
    NS = NCH * 4
    kv_pos(a, 43, 'k')
    a("s_barrier")
    if OPT.get('kearly', 0): a("s_barrier")
    bx(a, -1, "c")
    a("s_barrier")
    stamp(a, 1)
    for r in g1_reads(0): a(r)
    for n in range(NS):
        i, ks = divmod(n, 4); st = n & 1
        nxt = g1_reads(n + 1) if n + 1 < NS else []
        def mf(dt):
            c = "0" if n == 0 else vr(V_ACC + 16 * dt, 16)
            a(f"v_mfma_f32_32x32x16_bf16 {vr(V_ACC+16*dt,16)}, {vr(V_A[st]+4*dt,4)}, {vr(V_B[st],4)}, {c}")
        if ks == 3:
            for dt in range(4):
                a(f"s_waitcnt lgkmcnt({[6,4,2,0][dt]})")
                if dt == 3 and nxt:
                    bx(a, i, "c")
                    a("s_barrier")
                    for r in nxt[:5]: a(r)
                mf(dt)
            for r in nxt[5:]: a(r)
        else:
            first_after_boundary = (ks == 0 and n > 0)
            for dt in range(4):
                a(f"s_waitcnt lgkmcnt({[6,7,8,9][dt]})")
                mf(dt)
                if dt < 3:
                    for r in nxt[3*dt:3*dt+3]: a(r)
        if n == 33 and OPT.get('nonce_in', 1): get_nonce(a)
        if n == 24:
            a(f"buffer_load_dwordx2 {vr(V_NONCE,2)}, v1, s[36:39], 0 offen sc1")
            if OPT['fast']:
                a(f"buffer_load_dword v{V_CLW}, v1, s[36:39], s40 offen sc1")
                a(f"buffer_load_dword v2, v1, s[44:47], s42 offen sc1")

def attention(a):
    VE = OPT.get('vearly', 0)
    a("s_barrier")
    stamp(a, 3)
    for ai in range(2):
        for st in range(4):
            a(f"ds_read_b128 {vr(V_KF+(ai*4+st)*4,4)}, v{V_KA+st} offset:{ai*1024}")
    def vreads(T0, T1):
        for T in range(T0, T1):
            if T: a(f"v_xor_b32 v1, {32*T}, v{V_VA}")
            ad = "v1" if T else f"v{V_VA}"
            a(f"ds_read_b64_tr_b16 {vr(V_VF+4*T,2)}, {ad}")
            a(f"ds_read_b64_tr_b16 {vr(V_VF+4*T+2,2)}, {ad} offset:1024")
    for dt in range(4):
        for i in range(8):
            a(f"v_cvt_pk_bf16_f32 v{V_QF+8*dt+i}, v{V_ACC+16*dt+2*i}, v{V_ACC+16*dt+2*i+1}")
        if VE and dt == 1:
            a("s_waitcnt lgkmcnt(0)"); vreads(0, 4)
    a("s_nop 1")
    for dt in range(4):
        for i in range(4):
            a(f"v_permlane16_swap_b32 v{V_QF+8*dt+i}, v{V_QF+8*dt+4+i}")
    if VE:
        a("s_waitcnt lgkmcnt(4)"); vreads(4, 8)
    else:
        a("s_waitcnt lgkmcnt(0)")
    for st in range(4):
        for ai in range(2):
            for qt in range(2):
                d = vr(V_S + (ai*2+qt)*4, 4)
                c = "0" if st == 0 else d
                a(f"v_mfma_f32_16x16x32_bf16 {d}, {vr(V_KF+(ai*4+st)*4,4)}, {vr(V_QF+8*st+4*qt,4)}, {c}")
    if VE:
        a("s_waitcnt lgkmcnt(0)")
    def S(ai, qt, v): return V_S + (ai*2+qt)*4 + v
    M = [48, 49]; T_ = [50, 51]; SUM = [52, 53]
    a("s_nop 7")
    for qt in range(2): a(f"v_max3_f32 v{M[qt]}, v{S(0,qt,0)}, v{S(0,qt,1)}, v{S(0,qt,2)}")
    for qt in range(2): a(f"v_max3_f32 v{M[qt]}, v{M[qt]}, v{S(0,qt,3)}, v{S(1,qt,0)}")
    for qt in range(2): a(f"v_max3_f32 v{M[qt]}, v{M[qt]}, v{S(1,qt,1)}, v{S(1,qt,2)}")
    for qt in range(2): a(f"v_max_f32 v{M[qt]}, v{M[qt]}, v{S(1,qt,3)}")
    def xlane(regs, tmps, op):
        for sw in ("v_permlane16_swap_b32", "v_permlane32_swap_b32"):
            for qt in range(2): a(f"v_mov_b32 v{tmps[qt]}, v{regs[qt]}")
            a("s_nop 0")
            for qt in range(2): a(f"{sw} v{tmps[qt]}, v{regs[qt]}")
            a("s_nop 0")
            for qt in range(2): a(f"{op} v{regs[qt]}, v{regs[qt]}, v{tmps[qt]}")
    xlane(M, T_, "v_max_f32")
    a(f"s_mov_b32 s41, {f32hex(SC_SCALE)}")
    for qt in range(2): a(f"v_mul_f32 v{M[qt]}, s41, v{M[qt]}")
    for ai in range(2):
        for v in range(4):
            for qt in range(2): a(f"v_fma_f32 v{S(ai,qt,v)}, v{S(ai,qt,v)}, s41, -v{M[qt]}")
    for ai in range(2):
        for v in range(4):
            for qt in range(2): a(f"v_exp_f32 v{S(ai,qt,v)}, v{S(ai,qt,v)}")
    a("s_nop 0")
    for qt in range(2): a(f"v_add_f32 v{SUM[qt]}, v{S(0,qt,0)}, v{S(0,qt,1)}")
    for (ai, v) in [(0,2),(0,3),(1,0),(1,1),(1,2),(1,3)]:
        for qt in range(2): a(f"v_add_f32 v{SUM[qt]}, v{SUM[qt]}, v{S(ai,qt,v)}")
    xlane(SUM, T_, "v_add_f32")
    for qt in range(2): a(f"v_rcp_f32 v{SUM[qt]}, v{SUM[qt]}")
    a("s_nop 0")
    for ai in range(2):
        for v in range(4):
            for qt in range(2): a(f"v_mul_f32 v{S(ai,qt,v)}, v{S(ai,qt,v)}, v{SUM[qt]}")
    for qt in range(2):
        for ai in range(2):
            for h2 in range(2):
                a(f"v_cvt_pk_bf16_f32 v{V_PF+4*qt+2*ai+h2}, v{S(ai,qt,2*h2)}, v{S(ai,qt,2*h2+1)}")
    stamp(a, 4)
    if VE:
        a("s_nop 0")
    else:
        a("s_barrier")
        vreads(0, 6); a("s_waitcnt lgkmcnt(4)"); vreads(6, 8)
        a("s_waitcnt lgkmcnt(0)")
        a("s_barrier")
    def pv(T):
        for qt in range(2):
            a(f"v_mfma_f32_16x16x32_bf16 {vr(V_ACC+(T*2+qt)*4,4)}, {vr(V_VF+4*T,4)}, {vr(V_PF+4*qt,4)}, 0")
    def pack(p):
        for qt in range(2):
            for e in range(2):
                T = 2*p + e
                for h2 in range(2):
                    src = V_ACC + (T*2+qt)*4 + 2*h2
                    a(f"v_cvt_pk_bf16_f32 v{V_OF+(2*p+qt)*4+2*e+h2}, v{src}, v{src+1}")
    if OPT.get('ostin', 1):
        o_store(a)
        a("s_nop 0")
        for T in range(6): pv(T)
        pack(0); pv(6); a(OSTORES[0]); a(OSTORES[1]); pv(7)
        pack(1); a(OSTORES[2]); a(OSTORES[3])
        if not OPT.get('b12late', 1): a("s_barrier")
        else: a("s_nop 0")
        pack(2); a(OSTORES[4]); a(OSTORES[5])
        a("s_nop 1")
        pack(3); a(OSTORES[6]); a(OSTORES[7])
        if OPT.get('b12late', 1) and OPT.get('flagpos', 3) >= 0: a("s_barrier")
    else:
        for T in range(8): pv(T)
        if VE: a("s_barrier")
        a("s_nop 7")
        for p in range(4): pack(p)

V2_ACC = 16
V2_A = [88, 108]
V2_AD = [4, 5, 6, 12]
BUF = [160, 192, 224]

def p2_areads(slot, p, half, buf=None):
    r = []
    ad = V2_AD[slot]
    taus = range(0, 5) if half == 0 else range(5, 9)
    if buf is None: buf = half
    for k, tau in enumerate(taus):
        off = p * 32 * 288 + 32 * tau
        base = V2_A[buf] + 4 * k
        r.append(f"ds_read_b64_tr_b16 {vr(base,2)}, v{ad} offset:{off}")
        r.append(f"ds_read_b64_tr_b16 {vr(base+2,2)}, v{ad} offset:{off+16*288}")
    return r

def p2_bloads(a, slot, breg):
    a(f"s_add_u32 s45, s{S_J}, {slot}"); a("s_and_b32 s45, s45, 3"); a("s_add_u32 s45, s45, s44")
    a("s_lshl_b32 s45, s45, 2"); a(f"s_add_u32 s45, s45, s{S_WAVE}")
    a("s_lshl_b32 s46, s45, 13"); a("s_add_u32 s47, s46, 4096")
    for f in range(8):
        a(f"buffer_load_dwordx4 {vr(breg+4*f,4)}, v7, s[32:35], s{46 + f//4} offen offset:{(f%4)*1024} sc1")

S_NON = 52
S_FAST = 54

def get_nonce(a):
    a("s_waitcnt vmcnt(0)")
    a("v_mov_b32 v9, 0")
    a("s_mov_b32 s50, 0")
    a.label("L_nonce_chk")
    a(f"v_readfirstlane_b32 s{S_NON}, v{V_NONCE}"); a(f"v_readfirstlane_b32 s{S_NON+1}, v{V_NONCE+1}")
    a("s_nop 0")
    a(f"s_cmp_lg_u32 s{S_NON}, 0"); a("s_cbranch_scc1 L_nonce_ok")
    a(f"buffer_load_dwordx2 {vr(V_NONCE,2)}, v9, s[36:39], 0 offen sc1")
    a("s_add_u32 s50, s50, 1"); a("s_waitcnt vmcnt(0)")
    a(f"s_cmp_lt_u32 s50, {OPT['spin_max']}"); a("s_cbranch_scc1 L_nonce_chk")
    a.label("L_nonce_ok")
    a(f"s_mov_b32 s{S_FAST}, 0")
    if OPT['fast']:
        a(f"v_readfirstlane_b32 s55, v{V_CLW}")
        a(f"s_and_b32 s56, s{S_X}, 1"); a("s_lshl_b32 s56, s56, 4"); a("s_lshr_b32 s55, s55, s56")
        a("s_and_b32 s56, s55, 31")
        a("s_bfe_u32 s57, s55, 0x80005")
        a("s_bfe_u32 s55, s55, 0x3000d")
        a("s_mul_i32 s56, s56, s56"); a("s_lshl_b32 s57, s57, 2")
        a("s_cmp_eq_u32 s56, s57"); a(f"s_cselect_b32 s{S_FAST}, 1, 0")
        a("s_cmp_eq_u32 s55, 4"); a(f"s_cselect_b32 s{S_FAST}, s{S_FAST}, 0")
        if OPT['fast'] == 2: a(f"s_mov_b32 s{S_FAST}, 0")

def poll(a, tag, voff, soff, sleep=0):
    a("s_mov_b32 s50, 0")
    a.label(f"L_poll_{tag}")
    if sleep: a(f"s_sleep {sleep}")
    a(f"buffer_load_dwordx2 v[10:11], v{voff}, s[32:35], s{soff} offen sc1")
    a("s_add_u32 s50, s50, 1"); a("s_waitcnt vmcnt(0)")
    a(f"v_cmp_eq_u64 vcc, v[10:11], s[{S_NON}:{S_NON+1}]")
    a(f"s_cmp_ge_u32 s50, {OPT['spin_max']}"); a(f"s_cbranch_scc1 L_poll_{tag}_done")
    a("s_cmp_eq_u64 vcc, -1"); a(f"s_cbranch_scc0 L_poll_{tag}")
    a.label(f"L_poll_{tag}_done")

def flag_store(a, soff, mode):
    a(f"v_mov_b32 v10, s{S_NON}"); a(f"v_mov_b32 v11, s{S_NON+1}")
    a("s_mov_b64 exec, 1")
    if mode == 'dyn':
        a(f"s_cmp_eq_u32 s{S_FAST}, 0"); a("s_cbranch_scc1 L_flag_slow")
        a(f"buffer_store_dwordx2 v[10:11], v9, s[32:35], s{soff} offen")
        a("s_branch L_flag_join")
        a.label("L_flag_slow")
        a(f"buffer_store_dwordx2 v[10:11], v9, s[32:35], s{soff} offen sc1")
        a.label("L_flag_join")
    else:
        a(f"buffer_store_dwordx2 v[10:11], v9, s[32:35], s{soff} offen sc1")
    a("s_mov_b64 exec, -1")

def o_store(a):
    srd(a, 32, P_WS, SZ_WS_USED)
    a("v_lshlrev_b32 v7, 4, v0")
    a(f"s_lshl_b32 s40, s{S_G}, 5"); a(f"s_add_u32 s40, s40, s{S_H}"); a("s_lshl_b32 s40, s40, 2")
    a(f"s_add_u32 s40, s40, s{S_WAVE}"); a("s_lshl_b32 s40, s40, 13"); a("s_add_u32 s41, s40, 4096")
    global OSTORES
    OSTORES = [f"buffer_store_dwordx4 {vr(V_OF+4*f,4)}, v7, s[32:35], s{40 + f//4} offen offset:{(f%4)*1024} sc1" for f in range(8)]
    a("v_lshrrev_b32 v2, 4, v0"); a("v_bfe_u32 v3, v0, 2, 2"); a("v_lshl_add_u32 v2, v2, 2, v3")
    a("v_mul_u32_u24 v2, 288, v2"); a("v_and_b32 v3, 3, v0")
    a(f"v_lshl_add_u32 v{V2_AD[0]}, v3, 3, v2")
    for sl in range(1, 4): a(f"v_add_u32 v{V2_AD[sl]}, {sl*W_SLOT}, v{V2_AD[0]}")
    a(f"s_lshl_b32 s44, s{S_G}, 5"); a(f"s_lshl_b32 s45, s{S_X}, 2"); a("s_add_u32 s44, s44, s45")
    a(f"s_lshl_b32 s48, s{S_G}, 3"); a(f"s_add_u32 s48, s48, s{S_X}"); a("s_lshl_b32 s48, s48, 2")
    a(f"s_add_u32 s48, s48, s{S_WAVE}"); a("s_lshl_b32 s48, s48, 7"); a(f"s_add_u32 s48, s48, {WS_F}")
    a(f"s_lshl_b32 s49, s{S_J}, 3"); a("s_add_u32 s49, s49, s48")
    a("v_and_b32 v8, 3, v0"); a("v_lshlrev_b32 v8, 3, v8")

def bload_list(slot, breg):
    setup = [f"s_add_u32 s45, s{S_J}, {slot}", "s_and_b32 s45, s45, 3", "s_add_u32 s45, s45, s44",
             "s_lshl_b32 s45, s45, 2", f"s_add_u32 s45, s45, s{S_WAVE}",
             "s_lshl_b32 s46, s45, 13", "s_add_u32 s47, s46, 4096"]
    loads = [f"buffer_load_dwordx4 {vr(breg+4*f,4)}, v7, s[32:35], s{46 + f//4} offen offset:{(f%4)*1024} sc1" for f in range(8)]
    return setup, loads

def p2_run(a, hs, n0, n1, hooks_pre=None, hooks_mid=None, inject=None, spread=None):
    hooks_pre = hooks_pre or {}; hooks_mid = hooks_mid or {}; inject = inject or {}; spread = spread or {}
    for n in range(n0, n1):
        (s, p, hf) = hs[n]
        breg = V_OF if s == 0 else BUF[s - 1]
        nxt = p2_areads(*hs[n+1], buf=(n+1) & 1) if n + 1 < n1 else []
        taus = list(range(0, 5)) if hf == 0 else list(range(5, 9))
        nown = 2 * len(taus)
        nm = nown
        plan = [0] * nm
        for t in range(len(nxt)): plan[t % nm] += 1
        issued = 0; m = 0
        inj = list(inject.get(n, []))
        spr = list(spread.get(n, []))
        per = -(-len(spr) // nm) if spr else 0
        if n in hooks_pre: hooks_pre[n]()
        for k, tau in enumerate(taus):
            a(f"s_waitcnt lgkmcnt({nown - 2 * (k + 1) + issued})")
            for qt in range(2):
                d = vr(V2_ACC + (tau*2+qt)*4, 4)
                c = "0" if (s == 0 and p == 0) else d
                a(f"v_mfma_f32_16x16x32_bf16 {d}, {vr(V2_A[n & 1]+4*k,4)}, {vr(breg+(2*p+qt)*4,4)}, {c}")
                if m == 0 and n in hooks_mid: hooks_mid[n]()
                if nxt:
                    for r in nxt[issued:issued+plan[m]]: a(r)
                    issued = min(len(nxt), issued + plan[m])
                for _ in range(per):
                    if spr: a(spr.pop(0))
                m += 1
                if k >= len(taus) - 1 and inj: a(inj.pop(0))
        while inj: a(inj.pop(0))
        while spr: a(spr.pop(0))

def d_prep(a):
    a("v_bfe_u32 v13, v0, 1, 3"); a("v_mul_u32_u24 v13, 9216, v13")
    a("v_lshrrev_b32 v14, 4, v0"); a("v_lshlrev_b32 v14, 1, v14"); a("v_and_b32 v15, 1, v0")
    a("v_add_u32 v14, v14, v15"); a("v_lshl_add_u32 v13, v14, 4, v13")
    a(f"s_lshl_b32 s58, s{S_G}, 2"); a(f"s_add_u32 s58, s58, s{S_J}"); a("s_lshl_b32 s58, s58, 2")
    a(f"s_add_u32 s58, s58, s{S_WAVE}")
    a("s_mul_i32 s59, s58, 73728"); a(f"s_add_u32 s59, s59, {WS_D}")
    a(f"s_mul_i32 s40, s{S_X}, 1152"); a("s_add_u32 s40, s40, s59")

def d_pack_store(tau, G=160):
    r = []
    for qt in range(2):
        for h2 in range(2):
            src = V2_ACC + (tau*2+qt)*4 + 2*h2
            r.append(f"v_cvt_pk_bf16_f32 v{G+4*tau+2*qt+h2}, v{src}, v{src+1}")
    r.append(f"buffer_store_dwordx4 {vr(G+4*tau,4)}, v13, s[32:35], s40 offen offset:{128*tau} sc1")
    return r

def tail(a):
    hs = [(s, p, hf) for s in range(2) for p in range(4) for hf in range(2)]
    hs += [(2, p, 0) for p in range(4)] + [(3, p, 0) for p in range(4)]
    hs += [(2, p, 1) for p in range(4)] + [(3, p, 1) for p in range(4)]
    if not OPT.get('ostin', 1):
        o_store(a)
        for x in OSTORES: a(x)
    stamp(a, 6)
    if OPT.get('flagpos', 3) >= 0:
        for r in p2_areads(*hs[0], buf=0): a(r)
    def exch():
        a("s_waitcnt vmcnt(0)")
        flag_store(a, 49, 'dyn')
        stamp(a, 7)
        if OPT.get('poll1', 1):
            a(f"s_add_u32 s56, s{S_J}, 1"); a("s_and_b32 s56, s56, 3")
            a("s_mov_b32 s50, 0")
            a.label("L_poll_o1")
            if OPT.get('o_sleep', 0): a(f"s_sleep {OPT['o_sleep']}")
            a("buffer_load_dwordx2 v[10:11], v8, s[32:35], s48 offen sc1")
            a("s_add_u32 s50, s50, 1"); a("s_waitcnt vmcnt(0)")
            a(f"v_cmp_eq_u64 vcc, v[10:11], s[{S_NON}:{S_NON+1}]")
            a(f"s_cmp_ge_u32 s50, {OPT['spin_max']}"); a("s_cbranch_scc1 L_poll_o1_done")
            a("s_bitcmp1_b32 vcc_lo, s56"); a("s_cbranch_scc0 L_poll_o1")
            a.label("L_poll_o1_done")
            a("s_cmp_eq_u64 vcc, -1"); a("s_cselect_b32 s55, 1, 0")
        else:
            poll(a, "o", 8, 48, sleep=OPT.get('o_sleep', 0))
        stamp(a, 8)
        p2_bloads(a, 1, BUF[0])
        a("s_nop 3")
    if OPT.get('flagpos', 3) >= 0:
        p2_run(a, hs, 0, 8, hooks_pre={OPT.get('flagpos', 4): exch})
    else:
        exch()
        a("s_barrier")
        for r in p2_areads(*hs[0], buf=0): a(r)
        p2_run(a, hs, 0, 8)
    a("s_barrier")
    tstamp(a, 1)
    if OPT.get('poll1', 1):
        a("s_cmp_eq_u32 s55, 1"); a("s_cbranch_scc1 L_poll_o_skip")
        poll(a, "o", 8, 48, sleep=OPT.get('o_sleep', 0))
        a.label("L_poll_o_skip")
    for r in p2_areads(*hs[8], buf=0): a(r)
    su2, l2 = bload_list(2, BUF[1]); su3, l3 = bload_list(3, BUF[2])
    for x in su2: a(x)
    d_prep(a)
    inj = {}
    for t in range(4):
        inj[8 + t] = list(l2[2*t:2*t+2])
        inj[12 + t] = list(l3[2*t:2*t+2])
    inj[11] = inj[11] + su3
    spr = {25: d_pack_store(0) + d_pack_store(1), 26: d_pack_store(2) + d_pack_store(3), 27: d_pack_store(4)}
    W = lambda n: (lambda: a(f"s_waitcnt vmcnt({n})"))
    def WC(n, idx):
        def f():
            if OPT.get('cyc', 0): cstamp(a, idx)
            if n is not None: a(f"s_waitcnt vmcnt({n})")
        return f
    p2_run(a, hs, 8, 32,
           hooks_pre={8: WC(6, 3), 10: W(8), 12: W(10), 14: W(12), 16: WC(8, 4), 20: W(0), 24: WC(None, 13)},
           hooks_mid={15: lambda: a("s_barrier"), 19: lambda: a("s_barrier")},
           inject=inj, spread=spr)
    if OPT.get('cyc', 0): cstamp(a, 1)
    stamp(a, 9)
    reduce_inkernel(a)

def store_partials_f32(a):
    a("s_nop 7")
    a(f"s_lshl_b32 s45, s{S_X}, 3"); a(f"s_add_u32 s45, s45, s{S_G}"); a("s_lshl_b32 s45, s45, 2")
    a(f"s_add_u32 s45, s45, s{S_J}"); a("s_lshl_b32 s45, s45, 2"); a(f"s_add_u32 s45, s45, s{S_WAVE}")
    a(f"s_mul_i32 s45, s45, {18*1024}"); a(f"s_add_u32 s45, s45, {WS_P}")
    for u in range(18):
        if u and u % 4 == 0: a("s_add_u32 s45, s45, 4096")
        a(f"buffer_store_dwordx4 {vr(V2_ACC+4*u,4)}, v7, s[32:35], s45 offen offset:{(u%4)*1024}")

def store_partials_bf16(a):
    G = 160
    a(f"s_lshl_b32 s44, s{S_G}, 2"); a(f"s_add_u32 s44, s44, s{S_J}"); a("s_lshl_b32 s44, s44, 2")
    a(f"s_add_u32 s44, s44, s{S_WAVE}")
    a(f"s_lshl_b32 s45, s{S_X}, 7"); a("s_add_u32 s45, s45, s44"); a("s_mul_i32 s45, s45, 9216")
    a(f"s_add_u32 s45, s45, {WS_P}"); a("s_add_u32 s46, s45, 4096"); a("s_add_u32 s47, s45, 8192")
    sc = " sc1" if OPT.get('psc1', 1) else ""
    for tau in range(9):
        for qt in range(2):
            for h2 in range(2):
                src = V2_ACC + (tau*2+qt)*4 + 2*h2
                a(f"v_cvt_pk_bf16_f32 v{G+4*tau+2*qt+h2}, v{src}, v{src+1}")
        a(f"buffer_store_dwordx4 {vr(G+4*tau,4)}, v7, s[32:35], s{45 + tau//4} offen offset:{(tau%4)*1024}{sc}")

def kernel3b(a):
    name = "mha_p3_kernel"
    a(".p2align 8"); a(f".globl {name}"); a(f".type {name},@function"); a.label(name)
    a("s_cmp_ge_u32 s2, 288"); a(f"s_cbranch_scc1 L_end_{name}")
    a("s_load_dwordx2 s[26:27], s[0:1], 40"); a("s_load_dwordx2 s[30:31], s[0:1], 56")
    a("v_lshrrev_b32 v1, 6, v0"); a("v_and_b32 v0, 63, v0")
    a("s_lshl_b32 s5, s2, 2")
    a(f"v_readfirstlane_b32 s{S_WAVE}, v1")
    a("v_lshlrev_b32 v1, 4, v0")
    a(f"s_add_u32 s5, s5, s{S_WAVE}")
    a("s_mul_i32 s45, s5, 1024"); a(f"s_add_u32 s45, s45, {WS_P}")
    a("s_mul_hi_u32 s6, s5, 477218589")
    a("s_mul_i32 s7, s6, 9"); a("s_sub_u32 s7, s5, s7")
    a("s_waitcnt lgkmcnt(0)")
    srd(a, 32, P_WS, SZ_WS_USED); srd(a, 36, P_OUT, SZ_OUT)
    for x in range(8):
        a(f"buffer_load_dwordx4 {vr(8+4*x,4)}, v1, s[32:35], s45 offen")
        if x < 7: a(f"s_add_u32 s45, s45, {128*9216}")
    a("v_and_b32 v2, 15, v0"); a("v_mul_u32_u24 v2, 1152, v2"); a("v_lshrrev_b32 v3, 4, v0")
    a("v_lshl_add_u32 v2, v3, 3, v2")
    a("s_lshr_b32 s46, s6, 4"); a("s_lshl_b32 s46, s46, 2"); a("s_and_b32 s47, s6, 3"); a("s_add_u32 s46, s46, s47")
    a(f"s_mul_i32 s46, s46, {32*1152}")
    a("s_lshr_b32 s47, s6, 2"); a("s_and_b32 s47, s47, 3"); a("s_mul_i32 s47, s47, 288"); a("s_add_u32 s46, s46, s47")
    a("s_lshl_b32 s47, s7, 5"); a("s_add_u32 s46, s46, s47"); a(f"s_add_u32 s47, s46, {16*1152}")
    for x in range(8):
        a(f"s_waitcnt vmcnt({7-x})")
        for d in range(4):
            src = 8 + 4*x + d
            if x == 0:
                a(f"v_lshlrev_b32 v{40+2*d}, 16, v{src}"); a(f"v_and_b32 v{40+2*d+1}, 0xffff0000, v{src}")
            else:
                a(f"v_lshlrev_b32 v48, 16, v{src}"); a(f"v_and_b32 v49, 0xffff0000, v{src}")
                a(f"v_pk_add_f32 v[{40+2*d}:{40+2*d+1}], v[{40+2*d}:{40+2*d+1}], v[48:49]")
    for d in range(4): a(f"v_cvt_pk_bf16_f32 v{50+d}, v{40+2*d}, v{40+2*d+1}")
    a("buffer_store_dwordx2 v[50:51], v2, s[36:39], s46 offen")
    a("buffer_store_dwordx2 v[52:53], v2, s[36:39], s47 offen")
    a.label(f"L_end_{name}")
    a("s_endpgm")

def reduce_inkernel(a):
    RA = 196; RB = 88
    a("s_nop 7")
    for tau in range(5, 9):
        for x in d_pack_store(tau): a(x)
    a("s_lshl_b32 s48, s58, 8"); a(f"s_add_u32 s48, s48, {WS_F2}")
    a(f"s_lshl_b32 s49, s{S_X}, 3"); a("s_add_u32 s49, s49, s48")
    a("s_waitcnt vmcnt(4)")
    flag_store(a, 49, 'sc1')
    a("s_add_u32 s49, s49, 128")
    a("v_and_b32 v8, 7, v0"); a("v_lshlrev_b32 v8, 3, v8")
    a("v_and_b32 v14, 1, v0"); a("v_mul_u32_u24 v14, 1152, v14")
    a("v_bfe_u32 v15, v0, 1, 2"); a("v_lshl_add_u32 v14, v15, 3, v14")
    a("v_lshrrev_b32 v12, 3, v0"); a("v_lshl_add_u32 v14, v12, 5, v14")
    a("v_add_u32 v15, 160, v14")
    srd(a, 36, P_OUT, SZ_OUT)
    a(f"s_lshl_b32 s56, s{S_G}, 2"); a(f"s_add_u32 s56, s56, s{S_WAVE}"); a("s_lshl_b32 s56, s56, 5")
    a(f"s_lshl_b32 s57, s{S_X}, 1"); a("s_add_u32 s56, s56, s57"); a("s_mul_i32 s56, s56, 1152")
    a(f"s_mul_i32 s57, s{S_J}, 288"); a("s_add_u32 s56, s56, s57")
    a(f"s_add_u32 s57, s56, {16*1152}")
    a(f"s_mul_i32 s47, s{S_X}, 9216"); a("s_add_u32 s47, s47, s59")
    a("s_waitcnt vmcnt(1)")
    flag_store(a, 49, 'sc1')
    stamp(a, 10)
    poll(a, "da", 8, 48, sleep=OPT.get('d_sleep', 0))
    a("s_mov_b32 s46, s47")
    a("s_mov_b32 exec_hi, 0xff")
    for sx in range(8):
        a(f"buffer_load_dwordx4 {vr(RA+4*sx,4)}, v7, s[32:35], s46 offen sc1")
        if sx < 7: a("s_add_u32 s46, s46, 1152")
    a("s_mov_b64 exec, -1")
    a("s_add_u32 s48, s48, 128")
    poll(a, "db", 8, 48, sleep=OPT.get('d_sleep2', 1))
    stamp(a, 11)
    a("s_mov_b64 exec, 0xffffffff")
    for sx in range(8):
        a(f"buffer_load_dwordx4 {vr(RB+4*sx,4)}, v7, s[32:35], s47 offen offset:640 sc1")
        if sx < 7: a("s_add_u32 s47, s47, 1152")
    a("s_mov_b64 exec, -1")
    AA = 16; AB = 24; T = 32
    def summ(R, A, waits):
        for sx in range(8):
            if waits: a(f"s_waitcnt vmcnt({7 - sx})")
            for d in range(4):
                src = R + 4*sx + d
                if sx == 0:
                    a(f"v_lshlrev_b32 v{A+2*d}, 16, v{src}"); a(f"v_and_b32 v{A+2*d+1}, 0xffff0000, v{src}")
                else:
                    t = T + 2 * (d & 1)
                    a(f"v_lshlrev_b32 v{t}, 16, v{src}"); a(f"v_and_b32 v{t+1}, 0xffff0000, v{src}")
                    a(f"v_pk_add_f32 v[{A+2*d}:{A+2*d+1}], v[{A+2*d}:{A+2*d+1}], v[{t}:{t+1}]")
    fl = {0: "", 1: " sc1", 2: " nt", 3: " sc0 sc1"}[OPT.get('outfl', 0)]
    summ(RA, AA, False)
    for d in range(4): a(f"v_cvt_pk_bf16_f32 v{36+d}, v{AA+2*d}, v{AA+2*d+1}")
    summ(RB, AB, True)
    a("s_mov_b32 exec_hi, 0xff")
    a(f"buffer_store_dwordx2 v[36:37], v14, s[36:39], s56 offen{fl}")
    a(f"buffer_store_dwordx2 v[38:39], v14, s[36:39], s57 offen{fl}")
    a("s_mov_b64 exec, -1")
    for d in range(4): a(f"v_cvt_pk_bf16_f32 v{40+d}, v{AB+2*d}, v{AB+2*d+1}")
    a("s_mov_b64 exec, 0xffffffff")
    a(f"buffer_store_dwordx2 v[40:41], v15, s[36:39], s56 offen{fl}")
    a(f"buffer_store_dwordx2 v[42:43], v15, s[36:39], s57 offen{fl}")
    a("s_mov_b64 exec, -1")

def KNAME():
    return "standalone__mha_block_cached__near_ridge_kernel" if OPT['dk'] else "mha_a_kernel"

def kernelA(a):
    global KIDX
    KIDX = 0
    name = KNAME()
    prologue(a, name)
    stamp_init(a); stamp(a, 0); cstamp(a, 14)
    if OPT['stamps'] and OPT.get('entrystamp', 0): a("s_mov_b64 s[86:87], s[96:97]")
    a(f"s_cmp_lt_u32 s{S_WAVE}, 4"); a("s_cbranch_scc1 L_a_compute")
    a(f"s_cmp_eq_u32 s{S_WAVE}, 5"); a("s_cbranch_scc1 L_a_ldx")
    a(f"s_cmp_eq_u32 s{S_WAVE}, 6"); a("s_cbranch_scc1 L_a_ldk")
    a(f"s_cmp_eq_u32 s{S_WAVE}, 7"); a("s_cbranch_scc1 L_a_ldv")
    loader_ring(a, 'wq'); stamp_flush(a); a("s_endpgm")
    a.label("L_a_ldx"); loader_ring(a, 'x'); stamp_flush(a); a("s_endpgm")
    a.label("L_a_ldv"); loader_v(a); stamp_flush(a); a("s_endpgm")
    a.label("L_a_ldk"); loader_k(a); stamp_flush(a); a("s_endpgm")
    a.label("L_a_compute")
    CUR['compute'] = True
    gemm1_addrs(a); attn_addrs(a)
    if OPT.get('cprio', 0): a(f"s_setprio {OPT['cprio']}")
    kwait(a)
    srd(a, 36, P_DBG, 256)
    a("v_mov_b32 v1, 0")
    a(f"s_lshl_b32 s40, s{S_G}, 3"); a(f"s_add_u32 s40, s40, s{S_X}"); a("s_lshr_b32 s40, s40, 1")
    a("s_lshl_b32 s40, s40, 2"); a("s_add_u32 s40, s40, 128")
    srd(a, 44, P_WS, SZ_WS_USED)
    a(f"s_lshl_b32 s42, s{S_G}, 3"); a(f"s_add_u32 s42, s42, s{S_X}"); a("s_lshl_b32 s42, s42, 2")
    a(f"s_add_u32 s42, s42, s{S_WAVE}"); a("s_lshl_b32 s42, s42, 7"); a(f"s_add_u32 s42, s42, {WS_F}")
    gemm1(a)
    if not OPT.get('nonce_in', 1): get_nonce(a)
    stamp(a, 2)
    attention(a); stamp(a, 5)
    tail(a)
    if OPT['stamps']: a("s_waitcnt vmcnt(0)")
    stamp(a, 12); cstamp(a, 15); stamp_flush(a)
    if OPT.get('waitx', 0):
        a("s_waitcnt vmcnt(0)")
        a(f"s_add_u32 s62, s{S_NON}, {OPT['waitx']}")
        a("s_mov_b32 s63, 0")
        a.label("L_wx_spin")
        a("s_memrealtime s[64:65]"); a("s_waitcnt lgkmcnt(0)")
        a("s_add_u32 s63, s63, 1"); a("s_cmp_gt_u32 s63, 100000"); a("s_cbranch_scc1 L_wx_done")
        a("s_sub_u32 s66, s62, s64"); a("s_cmp_gt_i32 s66, 0"); a("s_cbranch_scc1 L_wx_spin")
        a.label("L_wx_done")
    if OPT.get('probe', -1) >= 0:
        a("s_waitcnt vmcnt(0)")
        a(f"s_sub_u32 s62, s60, s{S_NON}"); a(f"s_mul_i32 s62, s62, {OPT.get('probek', 8)}")
        a("s_memrealtime s[64:65]"); a("s_waitcnt lgkmcnt(0)")
        a("s_add_u32 s62, s62, s64")
        a("s_mov_b32 s63, 0")
        a.label("L_probe_spin")
        a("s_memrealtime s[64:65]"); a("s_waitcnt lgkmcnt(0)")
        a("s_add_u32 s63, s63, 1"); a("s_cmp_gt_u32 s63, 100000"); a("s_cbranch_scc1 L_probe_done")
        a("s_sub_u32 s66, s62, s64"); a("s_cmp_gt_i32 s66, 0"); a("s_cbranch_scc1 L_probe_spin")
        a.label("L_probe_done")
    a.label(f"L_end_{name}")
    a("s_endpgm")

def kernel3(a):
    global KIDX
    KIDX = 1
    name = "mha_p3_kernel"
    a(".p2align 8"); a(f".globl {name}"); a(f".type {name},@function"); a.label(name)
    a("s_cmp_ge_u32 s2, 256"); a(f"s_cbranch_scc1 L_end_{name}")
    a("s_load_dwordx16 s[16:31], s[0:1], 0")
    a("v_lshrrev_b32 v1, 6, v0"); a("v_and_b32 v0, 63, v0")
    a("s_lshr_b32 s5, s2, 1")
    a("s_and_b32 s6, s2, 1")
    a(f"v_readfirstlane_b32 s{S_WAVE}, v1")
    a("s_mul_i32 s6, s6, 9")
    a("s_waitcnt lgkmcnt(0)")
    stamp_init(a); stamp(a, 0); cstamp(a, 14)
    a(f"s_add_u32 s6, s6, s{S_WAVE}")
    srd(a, 32, P_WS, SZ_WS_USED); srd(a, 36, P_OUT, SZ_OUT)
    a("v_lshlrev_b32 v1, 4, v0")
    a("s_mul_i32 s45, s5, 18"); a("s_add_u32 s45, s45, s6"); a("s_lshl_b32 s45, s45, 10")
    a(f"s_add_u32 s45, s45, {WS_P}")
    for x in range(8):
        a(f"buffer_load_dwordx4 {vr(8+4*x,4)}, v1, s[32:35], s45 offen")
        if x < 7: a(f"s_add_u32 s45, s45, {128*18*1024}")
    a("v_and_b32 v2, 15, v0"); a("v_mul_u32_u24 v2, 1152, v2"); a("v_lshrrev_b32 v3, 4, v0")
    a("v_lshl_add_u32 v2, v3, 3, v2")
    a("s_lshr_b32 s46, s5, 4"); a("s_lshl_b32 s46, s46, 2"); a("s_and_b32 s47, s5, 3"); a("s_add_u32 s46, s46, s47")
    a(f"s_mul_i32 s46, s46, {32*1152}")
    a("s_lshr_b32 s47, s5, 2"); a("s_and_b32 s47, s47, 3"); a("s_mul_i32 s47, s47, 288"); a("s_add_u32 s46, s46, s47")
    a("s_and_b32 s47, s6, 1"); a(f"s_mul_i32 s47, s47, {16*1152}"); a("s_add_u32 s46, s46, s47")
    a("s_lshr_b32 s47, s6, 1"); a("s_lshl_b32 s47, s47, 5"); a("s_add_u32 s46, s46, s47")
    a("s_waitcnt vmcnt(0)")
    for v in range(4):
        for x in range(0, 8, 2): a(f"v_add_f32 v{8+4*x+v}, v{8+4*x+v}, v{12+4*x+v}")
    for v in range(4):
        a(f"v_add_f32 v{8+v}, v{8+v}, v{16+v}"); a(f"v_add_f32 v{24+v}, v{24+v}, v{32+v}")
    for v in range(4): a(f"v_add_f32 v{8+v}, v{8+v}, v{24+v}")
    a("v_cvt_pk_bf16_f32 v8, v8, v9"); a("v_cvt_pk_bf16_f32 v9, v10, v11")
    a("buffer_store_dwordx2 v[8:9], v2, s[36:39], s46 offen")
    if OPT['stamps']:
        a("s_waitcnt vmcnt(0)")
        stamp(a, 10); cstamp(a, 15)
        a(f"s_cmp_ge_u32 s{S_WAVE}, 8"); a("s_cbranch_scc1 L_end_mha_p3_kernel")
        stamp_flush(a, 44)
    a.label(f"L_end_{name}")
    a("s_endpgm")

def descriptor(a, name, vgpr, sgpr=102):
    a(f".amdhsa_kernel {name}")
    a(f".amdhsa_next_free_vgpr {vgpr}"); a(f".amdhsa_next_free_sgpr {sgpr}"); a(f".amdhsa_accum_offset {vgpr}")
    a(".amdhsa_group_segment_fixed_size 0"); a(".amdhsa_kernarg_size 64")
    a(".amdhsa_user_sgpr_count 2"); a(".amdhsa_user_sgpr_kernarg_segment_ptr 1")
    a(".amdhsa_system_sgpr_workgroup_id_x 1"); a(".end_amdhsa_kernel")

def main():
    out = sys.argv[1]
    for arg in sys.argv[2:]:
        if arg == "--stamps": OPT['stamps'] = True
        elif "=" in arg:
            k, v = arg.lstrip("-").split("="); OPT[k] = int(v)
    a = Asm()
    hdr = """; Fused MHA block for gfx950 (MI355X): out = softmax((x Wq) K^T / sqrt(128)) V  Wo
;
; Kernarg (8 pointers): x, k_cache, v_cache, wq, wo, out, debug, ws.
"""
    if OPT['dk']:
        hdr += "; @launch grid=(256,1,1) block=(512,1,1) lds=163840\n"
    else:
        hdr += "; @launch kernel=mha_a_kernel grid=(256,1,1) block=(512,1,1) lds=163840\n"
        if OPT.get('k3bf', 0): hdr += "; @launch kernel=mha_p3_kernel grid=(288,1,1) block=(256,1,1) lds=0\n"
        else: hdr += "; @launch kernel=mha_p3_kernel grid=(256,1,1) block=(576,1,1) lds=0\n"
    a('.amdgcn_target "amdgcn-amd-amdhsa--gfx950"'); a(".text")
    kernelA(a)
    if not OPT['dk']:
        if OPT.get('k3bf', 0): kernel3b(a)
        else: kernel3(a)
    a('.section .rodata,"a"'); a(".p2align 6"); descriptor(a, KNAME(), 256)
    if not OPT['dk']:
        a(".p2align 6"); descriptor(a, "mha_p3_kernel", 56)
    open(out, "w").write(hdr + a.text())

if __name__ == "__main__": main()
```

```python
import sys, struct

class Asm:
    def __init__(self): self.l = []
    def __call__(self, s=""):
        for x in s.split("\n"):
            x = x.strip()
            self.l.append(x if (x.endswith(":") or x.startswith(".")) else "  " + x)
    def label(self, s): self.l.append(s + ":")
    def text(self): return "\n".join(self.l) + "\n"

def vr(b, n=1): return f"v{b}" if n == 1 else f"v[{b}:{b+n-1}]"
def f32hex(x): return "0x%08x" % struct.unpack("<I", struct.pack("<f", x))[0]

P_X, P_K, P_V, P_WQ, P_WO, P_OUT, P_DBG, P_WS = 16, 18, 20, 22, 24, 26, 28, 30
SZ_X, SZ_KV, SZ_W, SZ_OUT = 1179648, 8388608, 4718592, 1179648
WS_O = 0
WS_P = 8 << 20
WS_F = 28 << 20
WS_F2 = (28 << 20) + (1 << 19)
WS_D = 8 << 20
WS_STAMP = 32 << 20
SZ_WS_USED = 64 << 20
S_WAVE, S_X, S_R, S_J, S_G, S_H = 3, 4, 5, 6, 9, 10

OPT = dict(stamps=False, fast=1, spin_max=2000000, kvmode=21, flagpos=3, wqt_nt=0, xonce=1, vearly=1, woearly=1, d_sleep=1, d_sleep2=0, o_sleep=0, k_nt=1, v_nt=1, wot_pos=8, dk=1)

def srd(a, base, ptr, size, add=0):
    if add:
        a(f"s_add_u32 s{base}, s{ptr}, {add}"); a(f"s_addc_u32 s{base+1}, s{ptr+1}, 0")
        a(f"s_and_b32 s{base+1}, s{base+1}, 0xffff")
    else:
        a(f"s_mov_b32 s{base}, s{ptr}"); a(f"s_and_b32 s{base+1}, s{ptr+1}, 0xffff")
    a(f"s_mov_b32 s{base+2}, {size}"); a(f"s_mov_b32 s{base+3}, 0x00020000")

def prologue(a, name, nwg=256):
    a(".p2align 8"); a(f".globl {name}"); a(f".type {name},@function"); a.label(name)
    a(f"s_cmp_ge_u32 s2, {nwg}"); a(f"s_cbranch_scc1 L_end_{name}")
    if OPT['stamps'] and OPT.get('entrystamp', 0): a("s_memrealtime s[96:97]")
    a("s_load_dwordx16 s[16:31], s[0:1], 0")
    a("v_lshrrev_b32 v1, 6, v0"); a("v_and_b32 v0, 63, v0")
    a(f"s_and_b32 s{S_X}, s2, 7"); a(f"s_lshr_b32 s{S_R}, s2, 3")
    a(f"v_readfirstlane_b32 s{S_WAVE}, v1")
    a(f"s_and_b32 s{S_J}, s{S_R}, 3"); a(f"s_lshr_b32 s{S_G}, s{S_R}, 2")
    a(f"s_lshl_b32 s{S_H}, s{S_X}, 2"); a(f"s_add_u32 s{S_H}, s{S_H}, s{S_J}")
    if OPT['stamps'] or not OPT.get('latewait', 1): a("s_waitcnt lgkmcnt(0)")

def kwait(a):
    if not OPT['stamps'] and OPT.get('latewait', 1): a("s_waitcnt lgkmcnt(0)")

KIDX = 0
CUR = {}
def tstamp(a, idx):
    if OPT.get('tailstamps', 0): stamp(a, idx, force=True)
def stamp(a, idx, force=False):
    if OPT.get('probe', -1) == idx and CUR.get('compute') and (force or not (OPT.get('tailstamps', 0) and idx in (1,2,3,4,13))):
        a("s_memrealtime s[60:61]"); a("s_waitcnt lgkmcnt(0)")
        return
    if not OPT['stamps']: return
    if OPT.get('tailstamps', 0) and not force and idx in (1,2,3,4,13) and CUR.get('compute'): return
    a(f"s_memrealtime s[{60+2*idx}:{61+2*idx}]"); a("s_waitcnt lgkmcnt(0)")
def cstamp(a, idx):
    if not OPT['stamps']: return
    a(f"s_memtime s[{60+2*idx}:{61+2*idx}]"); a("s_waitcnt lgkmcnt(0)")
def stamp_init(a):
    if not OPT['stamps']: return
    for i in range(16): a(f"s_mov_b64 s[{60+2*i}:{61+2*i}], 0")
def stamp_flush(a, vb=250):
    if not OPT['stamps']: return
    srd(a, 92, P_WS, 256*16*16*8, add=WS_STAMP + KIDX*256*8*16*8)
    a("s_lshl_b32 s96, s2, 3"); a(f"s_add_u32 s96, s96, s{S_WAVE}"); a("s_lshl_b32 s96, s96, 7")
    a(f"v_mov_b32 v{vb+2}, 0")
    for i in range(16):
        a(f"v_mov_b32 v{vb}, s{60+2*i}"); a(f"v_mov_b32 v{vb+1}, s{61+2*i}")
        a(f"buffer_store_dwordx2 v[{vb}:{vb+1}], v{vb+2}, s[92:95], s96 offen offset:{i*8}")
        a("s_nop 1")
    a("s_waitcnt vmcnt(0)")

L_K = 98304; L_V = 131072; NCH = 9
W_SLOT = 36864

def dma(a, voff, srdb, soff, off=0, nt=False, fl=""):
    a(f"buffer_load_dwordx4 v{voff}, s[{srdb}:{srdb+3}], s{soff} offen" + (f" offset:{off}" if off else "") + (" nt" if nt else "") + fl + " lds")
def FL(key):
    return {0: "", 1: " sc1", 2: " sc0", 3: " sc0 sc1"}[OPT.get(key, 0)]

V_WOV = 16
def wo_prep(a):
    srd(a, 52, P_WO, SZ_W)
    for t in range(9):
        a(f"v_add_u32 v1, {64*t}, v0")
        a("v_mul_u32_u24 v2, 3641, v1")
        a("v_lshrrev_b32 v2, 16, v2")
        a("v_mul_u32_u24 v3, 18, v2")
        a("v_sub_u32 v3, v1, v3")
        a("v_lshlrev_b32 v3, 4, v3")
        a("v_mul_u32_u24 v2, 1152, v2")
        a(f"v_add_u32 v{V_WOV+t}, v2, v3")
    a(f"s_mul_i32 s56, s{S_J}, 288")
def wo_issue(a, slot, q0, nq):
    a(f"s_add_u32 s57, s{S_J}, {slot}"); a("s_and_b32 s57, s57, 3")
    a(f"s_lshl_b32 s58, s{S_X}, 2"); a("s_add_u32 s57, s57, s58")
    a(f"s_mul_i32 s57, s57, {128*1152}"); a("s_add_u32 s57, s57, s56")
    if q0: a(f"s_add_u32 s57, s57, {q0*32*1152}")
    a(f"s_mov_b32 m0, {slot*W_SLOT + q0*32*288}"); a("s_nop 0")
    for blk in range(nq):
        for t in range(9):
            dma(a, V_WOV + t, 52, 57, nt=bool(OPT.get('wo_nt', 0)), fl=FL('wofl'))
            if not (blk == nq - 1 and t == 8):
                a("s_add_u32 m0, m0, 1024")
                if t == 8: a(f"s_add_u32 s57, s57, {32*1152}")
                else: a("s_nop 0")

def loader_tail(a, role):
    a("s_barrier")
    stamp(a, 8)
    if OPT.get('s1late', 0):
        if role < 2:
            wo_issue(a, 0, 2 * role, 2)
            a("s_waitcnt vmcnt(0)")
        stamp(a, 9)
        a("s_barrier")
        for sl in (1, 2, 3): wo_issue(a, sl, role, 1)
        stamp(a, 10)
        a("s_waitcnt vmcnt(18)")
        a("s_barrier")
    else:
        if role < 2:
            wo_issue(a, 0, 2 * role, 2); wo_issue(a, 1, 2 * role, 2)
        stamp(a, 9)
        if role < 2: a("s_waitcnt vmcnt(18)")
        a("s_barrier")
        wo_issue(a, 2, role, 1)
        wo_issue(a, 3, role, 1)
        stamp(a, 10)
        if role < 2: a("s_waitcnt vmcnt(18)")
        a("s_barrier")
    a("s_waitcnt vmcnt(9)")
    a("s_barrier")
    a("s_waitcnt vmcnt(0)")
    stamp(a, 11)
    a("s_barrier")

def loader_ring(a, which):
    SRD = 32; SO = 40
    if which == 'wq':
        a("v_lshrrev_b32 v1, 4, v0"); a("v_and_b32 v2, 15, v0")
        a("v_lshlrev_b32 v3, 2, v1"); a("v_xor_b32 v3, v3, v2"); a("v_lshlrev_b32 v3, 4, v3")
        a("v_lshlrev_b32 v4, 13, v1"); a("v_add_u32 v4, v4, v3")
        a(f"s_lshl_b32 s{SO}, s{S_H}, 8")
        def issue(kc):
            a(f"s_mov_b32 m0, {(kc%3)*32768}")
            for t in range(16):
                if t == 0: a("s_nop 0")
                dma(a, 4, SRD, SO, nt=bool(OPT.get('wq_nt', 0)), fl=FL('ringfl'))
                a(f"s_add_u32 s{SO}, s{SO}, 32768")
                if t < 15:
                    a("s_add_u32 m0, m0, 1024"); a("s_nop 0")
    else:
        a("v_lshrrev_b32 v1, 3, v0"); a("v_mul_u32_u24 v1, 1152, v1")
        a("v_and_b32 v2, 7, v0"); a("v_lshrrev_b32 v3, 4, v0"); a("v_xor_b32 v2, v2, v3")
        a("v_lshlrev_b32 v4, 4, v2"); a("v_add_u32 v4, v4, v1")
        a("v_xor_b32 v2, 4, v2"); a("v_lshlrev_b32 v5, 4, v2"); a("v_add_u32 v5, v5, v1")
        a(f"s_mul_i32 s{SO+1}, s{S_G}, 147456")
        def issue(kc):
            a(f"s_mov_b32 m0, {(kc%3)*32768 + 16384}")
            a(f"s_add_u32 s{SO}, s{SO+1}, {kc*128}")
            for T in range(16):
                dma(a, 4 + (T & 1), SRD, SO, nt=bool(OPT.get('x_nt', 0)), fl=FL('ringfl'))
                if T < 15:
                    a("s_add_u32 m0, m0, 1024"); a(f"s_add_u32 s{SO}, s{SO}, 9216")
    kv_pos(a, 43, 'k')
    if which == 'wq':
        a("v_lshrrev_b32 v8, 1, v0"); a("v_and_b32 v9, 1, v0")
        a("v_lshlrev_b32 v8, 13, v8"); a("v_lshl_add_u32 v8, v9, 7, v8")
        a(f"s_lshl_b32 s46, s{S_G}, {5+13}"); a(f"s_lshl_b32 s47, s{S_H}, 8"); a("s_add_u32 s46, s46, s47")
        def touch(part):
            nt = " nt" if OPT.get('wqt_nt', 0) else ""
            if part == 0:
                a(f"buffer_load_dword v10, v8, s[{SRD}:{SRD+3}], s46 offen{nt}")
            else:
                a(f"s_add_u32 s46, s46, {256*8192}")
                a(f"buffer_load_dword v10, v8, s[{SRD}:{SRD+3}], s46 offen{nt}")
                a(f"s_lshl_b32 s46, s{S_G}, {3+13}"); a("s_add_u32 s46, s46, s47"); a(f"s_add_u32 s46, s46, {512*8192}")
                a("s_mov_b64 exec, 0xffff")
                a(f"buffer_load_dword v10, v8, s[{SRD}:{SRD+3}], s46 offen{nt}")
                a("s_mov_b64 exec, -1")
        NT1 = 2
    else:
        if OPT.get('xonce', 0):
            a("v_mul_u32_u24 v8, 7282, v0"); a("v_lshrrev_b32 v8, 16, v8")
            a("v_mul_u32_u24 v9, 9, v8"); a("v_sub_u32 v9, v0, v9")
            a("v_mul_u32_u24 v8, 1152, v8"); a("v_lshl_add_u32 v8, v9, 7, v8")
            a(f"s_mul_i32 s46, s{S_G}, 147456"); a(f"s_mul_i32 s47, s{S_H}, {4*1152}"); a("s_add_u32 s46, s46, s47")
            def touch(part):
                if part == 0:
                    a("s_mov_b32 exec_lo, -1"); a("s_mov_b32 exec_hi, 15")
                    a(f"buffer_load_dword v10, v8, s[{SRD}:{SRD+3}], s46 offen")
                    a("s_mov_b64 exec, -1")
            NT1 = 0
        else:
            a("v_and_b32 v9, 31, v0"); a("v_mul_u32_u24 v9, 1152, v9")
            a("v_lshrrev_b32 v8, 5, v0"); a("v_lshl_add_u32 v8, v8, 7, v9")
            a(f"s_mul_i32 s46, s{S_G}, 147456"); a(f"s_mul_i32 s47, s{S_J}, {32*1152}"); a("s_add_u32 s46, s46, s47")
            def touch(part):
                if part == 0:
                    a(f"buffer_load_dword v10, v8, s[{SRD}:{SRD+3}], s46 offen")
                else:
                    for t in range(1, 4):
                        a(f"buffer_load_dword v10, v8, s[{SRD}:{SRD+3}], s46 offen offset:{256*t}")
                    a("s_mov_b64 exec, 0xffffffff")
                    a(f"buffer_load_dword v10, v9, s[{SRD}:{SRD+3}], s46 offen offset:1024")
                    a("s_mov_b64 exec, -1")
            NT1 = 4
    if OPT.get('lprio', 0): a(f"s_setprio {OPT['lprio']}")
    kwait(a)
    srd(a, SRD, P_WQ if which == 'wq' else P_X, SZ_W if which == 'wq' else SZ_X)
    if OPT.get('tall', 0):
        touch(0); touch(1); NT1 = 0
        issue(0); stamp(a, 1)
    else:
        touch(0)
        issue(0); stamp(a, 1)
        touch(1)
    a("s_barrier")
    if OPT.get('kearly', 0): a("s_barrier")
    bx(a, -1, "r" + which)
    issue(1)
    stamp(a, 2)
    a(f"s_waitcnt vmcnt({16 + NT1})")
    stamp(a, 3)
    a("s_barrier")
    bx(a, 0, "r" + which)
    issue(2)
    for i in range(1, NCH):
        last_issued = min(i + 1, NCH - 1)
        a(f"s_waitcnt vmcnt({(last_issued - i) * 16})")
        a("s_barrier")
        if which == 'wq' and i in (1,2,3,4): stamp(a, {1:4,2:5,3:6,4:12}[i])
        if which == 'x' and i in (5,6,7,8): stamp(a, {5:4,6:5,7:6,8:12}[i])
        if i < 8: bx(a, i, "r" + which)
        if i + 2 < NCH: issue(i + 2)
        if i == 7: wo_prep(a)
    stamp(a, 7)
    loader_tail(a, 0 if which == 'wq' else 1)

def kv_pos(a, sdst, which):
    m = OPT['kvmode']
    if m == 10:
        tab = [-1, 2, 4, 7]
    elif m == 11: tab = [7, 7, 7, 7]
    elif m == 12: tab = [-1, -1, -1, -1]
    elif m == 13: tab = [1, 1, 6, 6]
    elif m == 14: tab = [-1, 1, 4, 7]
    elif m == 15: tab = [0, 3, 5, 7]
    elif m == 16: tab = [2, 7, 2, 7]
    elif m == 17: tab = [3, 5, 7, 7]
    elif m == 20: tab = [-1, 1, 3, 5]
    elif m == 21: tab = [-1, 2, 4, 6]
    elif m == 22: tab = [-1, -1, 3, 3]
    elif m == 23: tab = [-1, 0, 2, 4]
    elif m == 24: tab = [0, 2, 4, 6]
    elif m == 25: tab = [-1, -1, -1, -1]
    packed = sum(((p + 1) & 15) << (4 * k) for k, p in enumerate(tab))
    a(f"s_and_b32 s{sdst}, s{S_G}, 3"); a(f"s_lshl_b32 s{sdst}, s{sdst}, 2")
    a(f"s_lshr_b32 s{sdst}, {packed}, s{sdst}"); a(f"s_and_b32 s{sdst}, s{sdst}, 15")

def bx(a, p, tag):
    if p >= 6: return
    a(f"s_cmp_lg_u32 s43, {p+1}"); a(f"s_cbranch_scc1 L_bx_{tag}_{p+1}")
    a("s_barrier")
    a.label(f"L_bx_{tag}_{p+1}")

def kv_loop(a, tag, issue_fn, extra_fn=None, extra_pos=None):
    a("s_mov_b32 s59, 0")
    a.label(f"L_{tag}_loop")
    a("s_cmp_lg_u32 s59, s43"); a(f"s_cbranch_scc1 L_{tag}_skip")
    stamp(a, 3)
    issue_fn()
    stamp(a, 4)
    a(f"s_cmp_ge_u32 s59, 7"); a(f"s_cbranch_scc1 L_{tag}_skip")
    a("s_barrier")
    a.label(f"L_{tag}_skip")
    if extra_fn is not None:
        a(f"s_cmp_lg_u32 s59, {extra_pos}"); a(f"s_cbranch_scc1 L_{tag}_skip2")
        extra_fn()
        a.label(f"L_{tag}_skip2")
    a("s_barrier")
    a("s_add_u32 s59, s59, 1")
    a("s_cmp_le_u32 s59, 8"); a(f"s_cbranch_scc1 L_{tag}_loop")

def loader_k(a):
    SRD = 32; SO = 40
    kwait(a)
    srd(a, SRD, P_K, SZ_KV)
    a("v_lshrrev_b32 v1, 4, v0"); a("v_and_b32 v2, 15, v0"); a("v_xor_b32 v2, v2, v1")
    a("v_lshlrev_b32 v2, 4, v2"); a("v_lshl_add_u32 v4, v1, 8, v2")
    a("v_xor_b32 v5, 64, v4"); a("v_xor_b32 v6, 128, v4"); a("v_xor_b32 v7, 192, v4")
    wo_prep(a)
    a("v_and_b32 v8, 15, v0"); a("v_mul_u32_u24 v8, 1152, v8")
    a("v_lshrrev_b32 v9, 4, v0"); a("v_lshl_add_u32 v9, v9, 7, v8")
    kv_pos(a, 43, 'k')
    if OPT.get('wswarm', 1):
        srd(a, 44, P_WS, SZ_WS_USED); srd(a, 48, P_OUT, SZ_OUT)
        a(f"s_lshl_b32 s40, s{S_G}, 5"); a(f"s_add_u32 s40, s40, s{S_H}"); a("s_lshl_b32 s40, s40, 15")
        a(f"s_lshl_b32 s41, s{S_G}, 2"); a(f"s_add_u32 s41, s41, s{S_J}"); a("s_lshl_b32 s41, s41, 2")
        a("s_mul_i32 s42, s41, 73728"); a(f"s_add_u32 s42, s42, {WS_D}")
        a(f"s_mul_i32 s45, s{S_X}, 1152") if False else None
        a(f"s_mul_i32 s58, s{S_X}, 1152"); a("s_add_u32 s42, s42, s58")
        a("s_lshl_b32 s41, s41, 8"); a(f"s_add_u32 s41, s41, {WS_F2}")
        a("v_mov_b32 v11, 0")
        a("s_mov_b64 exec, 1")
        a("buffer_load_dword v10, v11, s[44:47], s40 offen")
        a("buffer_load_dword v10, v11, s[44:47], s42 offen")
        a("buffer_load_dword v10, v11, s[44:47], s41 offen sc1")
        a(f"s_lshl_b32 s40, s{S_G}, 7"); a(f"s_lshl_b32 s41, s{S_X}, 1"); a("s_add_u32 s40, s40, s41"); a("s_mul_i32 s40, s40, 1152")
        a(f"s_mul_i32 s41, s{S_J}, 288"); a("s_add_u32 s40, s40, s41")
        a("buffer_load_dword v10, v11, s[48:51], s40 offen")
        a("s_mov_b64 exec, -1")
    if OPT.get('tlbwarm', 0):
        a(f"s_lshl_b32 s{SO}, s{S_G}, 7"); a(f"s_add_u32 s{SO}, s{SO}, s{S_H}"); a(f"s_lshl_b32 s{SO}, s{SO}, 13")
        a("v_lshlrev_b32 v11, 18, v0")
        a("s_mov_b64 exec, 15")
        a(f"buffer_load_dword v10, v11, s[{SRD}:{SRD+3}], s{SO} offen nt")
        a("s_mov_b64 exec, -1")
    a("s_barrier")
    stamp(a, 1)
    KE = OPT.get('kearly', 0)
    def issue(w0=None, w1=4):
        if w0 is None: w0 = KE
        a(f"s_lshl_b32 s{SO}, s{S_G}, 7"); a(f"s_add_u32 s{SO}, s{SO}, s{S_H}"); a(f"s_lshl_b32 s{SO}, s{SO}, 13")
        if w0: a(f"s_add_u32 s{SO}, s{SO}, {w0*32*8192}")
        for w in range(w0, w1):
            for hf in range(2):
                a(f"s_mov_b32 m0, {L_K + w*8192 + hf*4096}"); a("s_nop 0")
                for t4 in range(4):
                    t = hf * 4 + t4
                    dma(a, 4 + (t >> 1), SRD, SO, off=t4 * 1024, nt=bool(OPT['k_nt']), fl=FL('kvfl'))
                a(f"s_add_u32 s{SO}, s{SO}, {4096 if hf == 0 else 32*8192 - 4096}")
    if KE:
        issue(0, KE)
        a("s_barrier")
    def wotouch():
        a(f"s_lshl_b32 s{SO}, s{S_X}, 5"); a(f"s_add_u32 s{SO}, s{SO}, s{S_R}")
        a(f"s_mul_i32 s{SO}, s{SO}, {16*1152}")
        nt = " nt" if OPT.get('wot_nt', 0) else ""
        a(f"buffer_load_dword v10, v9, s[52:55], s{SO} offen{nt}")
        a(f"buffer_load_dword v10, v9, s[52:55], s{SO} offen offset:512{nt}")
        a("s_mov_b64 exec, 0xffff")
        a(f"buffer_load_dword v10, v8, s[52:55], s{SO} offen offset:1024{nt}")
        a("s_mov_b64 exec, -1")
    def wotouch0():
        a(f"s_lshl_b32 s{SO}, s{S_X}, 2"); a(f"s_add_u32 s{SO}, s{SO}, s{S_J}"); a(f"s_lshl_b32 s{SO}, s{SO}, 3")
        a(f"s_add_u32 s{SO}, s{SO}, s{S_G}"); a(f"s_mul_i32 s{SO}, s{SO}, {16*1152}")
        a(f"s_mul_i32 s{SO+1}, s{S_J}, 288"); a(f"s_and_b32 s{SO+1}, s{SO+1}, 0xffffff80"); a(f"s_add_u32 s{SO}, s{SO}, s{SO+1}")
        a("s_mov_b32 exec_lo, -1"); a("s_mov_b32 exec_hi, 0xffff")
        a(f"buffer_load_dword v10, v9, s[52:55], s{SO} offen" + (" nt" if OPT.get('wot_nt', 0) else ""))
        a("s_mov_b64 exec, -1")
    wm = OPT.get('wotmode', 3)
    if wm == 3:
        def both():
            wotouch0(); issue()
        kv_loop(a, "k", both, wotouch, OPT['wot_pos'])
        a("s_waitcnt vmcnt(3)")
    elif wm == 0:
        kv_loop(a, "k", issue, wotouch, OPT['wot_pos'])
        a("s_waitcnt vmcnt(3)")
    if wm in (1, 2):
        def both():
            if wm == 1: wotouch()
            issue()
            if wm == 2: wotouch()
        kv_loop(a, "k", both)
        a("s_waitcnt vmcnt(0)")
    stamp(a, 7)
    loader_tail(a, 2)

def loader_v(a):
    SRD = 32; SO = 40
    kwait(a)
    srd(a, SRD, P_V, SZ_KV)
    a("s_cmp_lg_u32 s2, 0"); a("s_cbranch_scc1 L_nononce")
    srd(a, 48, P_DBG, 256)
    a("s_memrealtime s[42:43]"); a("s_waitcnt lgkmcnt(0)")
    a("s_or_b32 s42, s42, 1")
    a("v_mov_b32 v8, s42"); a("v_mov_b32 v9, s43"); a("v_mov_b32 v1, 0")
    a("s_mov_b64 exec, 1")
    a("buffer_store_dwordx2 v[8:9], v1, s[48:51], 0 offen sc1")
    a("s_mov_b64 exec, -1")
    a.label("L_nononce")
    if OPT['fast']:
        srd(a, 48, P_DBG, 256)
        a("s_getreg_b32 s42, hwreg(HW_REG_XCC_ID)")
        a("s_and_b32 s42, s42, 15")
        a("s_cmp_ge_u32 s42, 8"); a("s_cbranch_scc1 L_noxcc")
        a("s_mul_i32 s43, s42, s42"); a("s_lshl_b32 s43, s43, 5"); a("s_add_u32 s42, s42, s43")
        a("s_add_u32 s42, s42, 0x2000")
        a(f"s_lshl_b32 s43, s{S_G}, 3"); a(f"s_add_u32 s43, s43, s{S_X}")
        a("s_and_b32 s41, s43, 1"); a("s_lshl_b32 s41, s41, 4"); a("s_lshl_b32 s42, s42, s41")
        a("s_lshr_b32 s43, s43, 1"); a("s_lshl_b32 s43, s43, 2"); a("s_add_u32 s43, s43, 128")
        a("v_mov_b32 v8, s42"); a("v_mov_b32 v1, 0")
        a("s_mov_b64 exec, 1")
        a("buffer_atomic_add v8, v1, s[48:51], s43 offen")
        a("s_mov_b64 exec, -1")
        a.label("L_noxcc")
    a("v_lshrrev_b32 v1, 4, v0"); a("v_and_b32 v2, 15, v0"); a("v_lshlrev_b32 v3, 1, v1")
    a("v_xor_b32 v2, v2, v3"); a("v_lshlrev_b32 v2, 4, v2"); a("v_lshl_add_u32 v4, v1, 8, v2")
    a("v_xor_b32 v5, 128, v4")
    wo_prep(a)
    kv_pos(a, 43, 'v')
    if OPT.get('tlbwarm', 0):
        a(f"s_lshl_b32 s{SO}, s{S_G}, 7"); a(f"s_add_u32 s{SO}, s{SO}, s{S_H}"); a(f"s_lshl_b32 s{SO}, s{SO}, 13")
        a("v_lshlrev_b32 v11, 18, v0")
        a("s_mov_b64 exec, 15")
        a(f"buffer_load_dword v10, v11, s[{SRD}:{SRD+3}], s{SO} offen nt")
        a("s_mov_b64 exec, -1")
    a("s_barrier")
    if OPT.get('kearly', 0): a("s_barrier")
    stamp(a, 1)
    def issue():
        a(f"s_lshl_b32 s{SO}, s{S_G}, 7"); a(f"s_add_u32 s{SO}, s{SO}, s{S_H}"); a(f"s_lshl_b32 s{SO}, s{SO}, 13")
        for w in range(4):
            for hf in range(2):
                a(f"s_mov_b32 m0, {L_V + w*8192 + hf*4096}"); a("s_nop 0")
                for t4 in range(4):
                    t = hf * 4 + t4
                    dma(a, 4 + ((t >> 1) & 1), SRD, SO, off=t4 * 1024, nt=bool(OPT['v_nt']), fl=FL('kvfl'))
                a(f"s_add_u32 s{SO}, s{SO}, {4096 if hf == 0 else 32*8192 - 4096}")
    kv_loop(a, "v", issue)
    if OPT.get('vearly', 0): a("s_waitcnt vmcnt(0)")
    stamp(a, 7)
    loader_tail(a, 3)

V_XA = [4, 8]; V_WA = [12, 248]
V_A = [16, 32]; V_B = [48, 52]; V_ACC = 64
V_QF = 128; V_KF = 160; V_S = 192; V_VF = 208; V_PF = 240; V_OF = 128
V_KA = 56; V_VA = 60; V_CLW = 61; V_NONCE = 62
SC_SCALE = 0.08838834764831845 * 1.4426950408889634

def gemm1_addrs(a):
    a("v_and_b32 v1, 31, v0"); a("v_lshrrev_b32 v2, 5, v0"); a("v_bfe_u32 v3, v0, 1, 3")
    a("v_xor_b32 v2, v2, v3"); a("v_lshlrev_b32 v2, 4, v2"); a("v_lshl_add_u32 v2, v1, 7, v2")
    a(f"s_lshl_b32 s40, s{S_WAVE}, 12"); a("s_add_u32 s40, s40, 16384")
    a("v_add_u32 v2, s40, v2")
    for ks in range(4):
        a(f"v_xor_b32 v{V_XA[0]+ks}, {32*ks}, v2"); a(f"v_add_u32 v{V_XA[1]+ks}, 65536, v{V_XA[0]+ks}")
    a("v_bfe_u32 v1, v0, 2, 2"); a("v_lshrrev_b32 v2, 5, v0"); a("v_lshl_add_u32 v2, v2, 3, v1")
    a("v_lshlrev_b32 v2, 8, v2"); a("v_and_b32 v3, 1, v0"); a("v_lshl_add_u32 v2, v3, 5, v2")
    a("v_bfe_u32 v3, v0, 4, 1"); a("v_lshl_add_u32 v2, v3, 4, v2")
    a("v_bfe_u32 v3, v0, 1, 1"); a("v_lshl_add_u32 v2, v3, 3, v2")
    a("v_lshl_add_u32 v2, v1, 6, v2")
    for dt in range(4):
        a(f"v_xor_b32 v{V_WA[0]+dt}, {64*dt}, v2"); a(f"v_add_u32 v{V_WA[1]+dt}, 65536, v{V_WA[0]+dt}")

def attn_addrs(a):
    a("v_and_b32 v1, 15, v0"); a("v_lshrrev_b32 v2, 4, v0"); a("v_xor_b32 v2, v2, v1")
    a("v_lshlrev_b32 v2, 4, v2"); a("v_lshrrev_b32 v3, 2, v1"); a("v_lshl_add_u32 v2, v3, 11, v2")
    a("v_and_b32 v3, 3, v1"); a("v_lshl_add_u32 v2, v3, 8, v2")
    a(f"s_lshl_b32 s40, s{S_WAVE}, 13"); a(f"s_add_u32 s40, s40, {L_K}")
    a("v_add_u32 v2, s40, v2")
    for st in range(4): a(f"v_xor_b32 v{V_KA+st}, {64*st}, v2")
    a("v_lshrrev_b32 v1, 4, v0"); a("v_bfe_u32 v3, v0, 2, 2"); a("v_lshl_add_u32 v2, v1, 3, v3")
    a("v_lshlrev_b32 v2, 8, v2"); a("v_and_b32 v1, 1, v1"); a("v_lshl_add_u32 v3, v1, 2, v3")
    a("v_lshl_add_u32 v2, v3, 5, v2"); a("v_and_b32 v3, 3, v0"); a("v_lshl_add_u32 v2, v3, 3, v2")
    a(f"s_lshl_b32 s40, s{S_WAVE}, 13"); a(f"s_add_u32 s40, s40, {L_V}")
    a(f"v_add_u32 v{V_VA}, s40, v2")

def g1_reads(n):
    i, ks = divmod(n, 4)
    slot = i % 3; st = n & 1; hs = 1 if slot == 2 else 0; so = (slot & 1) * 32768 if slot < 2 else 0
    r = [f"ds_read_b128 {vr(V_B[st],4)}, v{V_XA[hs]+ks} offset:{so}"]
    for dt in range(4):
        base = V_A[st] + 4 * dt
        off = so + ks * 4096
        r.append(f"ds_read_b64_tr_b16 {vr(base,2)}, v{V_WA[hs]+dt} offset:{off}")
        r.append(f"ds_read_b64_tr_b16 {vr(base+2,2)}, v{V_WA[hs]+dt} offset:{off+1024}")
    return r

def gemm1(a):
    NS = NCH * 4
    kv_pos(a, 43, 'k')
    a("s_barrier")
    if OPT.get('kearly', 0): a("s_barrier")
    bx(a, -1, "c")
    a("s_barrier")
    stamp(a, 1)
    for r in g1_reads(0): a(r)
    for n in range(NS):
        i, ks = divmod(n, 4); st = n & 1
        nxt = g1_reads(n + 1) if n + 1 < NS else []
        def mf(dt):
            c = "0" if n == 0 else vr(V_ACC + 16 * dt, 16)
            a(f"v_mfma_f32_32x32x16_bf16 {vr(V_ACC+16*dt,16)}, {vr(V_A[st]+4*dt,4)}, {vr(V_B[st],4)}, {c}")
        if ks == 3:
            for dt in range(4):
                a(f"s_waitcnt lgkmcnt({[6,4,2,0][dt]})")
                if dt == 3 and nxt:
                    bx(a, i, "c")
                    a("s_barrier")
                    for r in nxt[:5]: a(r)
                mf(dt)
            for r in nxt[5:]: a(r)
        else:
            first_after_boundary = (ks == 0 and n > 0)
            for dt in range(4):
                a(f"s_waitcnt lgkmcnt({[6,7,8,9][dt]})")
                mf(dt)
                if dt < 3:
                    for r in nxt[3*dt:3*dt+3]: a(r)
        if n == 33 and OPT.get('nonce_in', 1): get_nonce(a)
        if n == 24:
            a(f"buffer_load_dwordx2 {vr(V_NONCE,2)}, v1, s[36:39], 0 offen sc1")
            if OPT['fast']:
                a(f"buffer_load_dword v{V_CLW}, v1, s[36:39], s40 offen sc1")
                a(f"buffer_load_dword v2, v1, s[44:47], s42 offen sc1")

def attention(a):
    VE = OPT.get('vearly', 0)
    a("s_barrier")
    stamp(a, 3)
    for ai in range(2):
        for st in range(4):
            a(f"ds_read_b128 {vr(V_KF+(ai*4+st)*4,4)}, v{V_KA+st} offset:{ai*1024}")
    def vreads(T0, T1):
        for T in range(T0, T1):
            if T: a(f"v_xor_b32 v1, {32*T}, v{V_VA}")
            ad = "v1" if T else f"v{V_VA}"
            a(f"ds_read_b64_tr_b16 {vr(V_VF+4*T,2)}, {ad}")
            a(f"ds_read_b64_tr_b16 {vr(V_VF+4*T+2,2)}, {ad} offset:1024")
    for dt in range(4):
        for i in range(8):
            a(f"v_cvt_pk_bf16_f32 v{V_QF+8*dt+i}, v{V_ACC+16*dt+2*i}, v{V_ACC+16*dt+2*i+1}")
        if VE and dt == 1:
            a("s_waitcnt lgkmcnt(0)"); vreads(0, 4)
    a("s_nop 1")
    for dt in range(4):
        for i in range(4):
            a(f"v_permlane16_swap_b32 v{V_QF+8*dt+i}, v{V_QF+8*dt+4+i}")
    if VE:
        a("s_waitcnt lgkmcnt(4)"); vreads(4, 8)
    else:
        a("s_waitcnt lgkmcnt(0)")
    for st in range(4):
        for ai in range(2):
            for qt in range(2):
                d = vr(V_S + (ai*2+qt)*4, 4)
                c = "0" if st == 0 else d
                a(f"v_mfma_f32_16x16x32_bf16 {d}, {vr(V_KF+(ai*4+st)*4,4)}, {vr(V_QF+8*st+4*qt,4)}, {c}")
    if VE:
        a("s_waitcnt lgkmcnt(0)")
    def S(ai, qt, v): return V_S + (ai*2+qt)*4 + v
    M = [48, 49]; T_ = [50, 51]; SUM = [52, 53]
    a("s_nop 7")
    for qt in range(2): a(f"v_max3_f32 v{M[qt]}, v{S(0,qt,0)}, v{S(0,qt,1)}, v{S(0,qt,2)}")
    for qt in range(2): a(f"v_max3_f32 v{M[qt]}, v{M[qt]}, v{S(0,qt,3)}, v{S(1,qt,0)}")
    for qt in range(2): a(f"v_max3_f32 v{M[qt]}, v{M[qt]}, v{S(1,qt,1)}, v{S(1,qt,2)}")
    for qt in range(2): a(f"v_max_f32 v{M[qt]}, v{M[qt]}, v{S(1,qt,3)}")
    def xlane(regs, tmps, op):
        for sw in ("v_permlane16_swap_b32", "v_permlane32_swap_b32"):
            for qt in range(2): a(f"v_mov_b32 v{tmps[qt]}, v{regs[qt]}")
            a("s_nop 0")
            for qt in range(2): a(f"{sw} v{tmps[qt]}, v{regs[qt]}")
            a("s_nop 0")
            for qt in range(2): a(f"{op} v{regs[qt]}, v{regs[qt]}, v{tmps[qt]}")
    xlane(M, T_, "v_max_f32")
    a(f"s_mov_b32 s41, {f32hex(SC_SCALE)}")
    for qt in range(2): a(f"v_mul_f32 v{M[qt]}, s41, v{M[qt]}")
    for ai in range(2):
        for v in range(4):
            for qt in range(2): a(f"v_fma_f32 v{S(ai,qt,v)}, v{S(ai,qt,v)}, s41, -v{M[qt]}")
    for ai in range(2):
        for v in range(4):
            for qt in range(2): a(f"v_exp_f32 v{S(ai,qt,v)}, v{S(ai,qt,v)}")
    a("s_nop 0")
    for qt in range(2): a(f"v_add_f32 v{SUM[qt]}, v{S(0,qt,0)}, v{S(0,qt,1)}")
    for (ai, v) in [(0,2),(0,3),(1,0),(1,1),(1,2),(1,3)]:
        for qt in range(2): a(f"v_add_f32 v{SUM[qt]}, v{SUM[qt]}, v{S(ai,qt,v)}")
    xlane(SUM, T_, "v_add_f32")
    for qt in range(2): a(f"v_rcp_f32 v{SUM[qt]}, v{SUM[qt]}")
    a("s_nop 0")
    for ai in range(2):
        for v in range(4):
            for qt in range(2): a(f"v_mul_f32 v{S(ai,qt,v)}, v{S(ai,qt,v)}, v{SUM[qt]}")
    for qt in range(2):
        for ai in range(2):
            for h2 in range(2):
                a(f"v_cvt_pk_bf16_f32 v{V_PF+4*qt+2*ai+h2}, v{S(ai,qt,2*h2)}, v{S(ai,qt,2*h2+1)}")
    stamp(a, 4)
    if VE:
        a("s_nop 0")
    else:
        a("s_barrier")
        vreads(0, 6); a("s_waitcnt lgkmcnt(4)"); vreads(6, 8)
        a("s_waitcnt lgkmcnt(0)")
        a("s_barrier")
    def pv(T):
        for qt in range(2):
            a(f"v_mfma_f32_16x16x32_bf16 {vr(V_ACC+(T*2+qt)*4,4)}, {vr(V_VF+4*T,4)}, {vr(V_PF+4*qt,4)}, 0")
    def pack(p):
        for qt in range(2):
            for e in range(2):
                T = 2*p + e
                for h2 in range(2):
                    src = V_ACC + (T*2+qt)*4 + 2*h2
                    a(f"v_cvt_pk_bf16_f32 v{V_OF+(2*p+qt)*4+2*e+h2}, v{src}, v{src+1}")
    if OPT.get('ostin', 1):
        o_store(a)
        a("s_nop 0")
        for T in range(6): pv(T)
        pack(0); pv(6); a(OSTORES[0]); a(OSTORES[1]); pv(7)
        pack(1); a(OSTORES[2]); a(OSTORES[3])
        if not OPT.get('b12late', 1): a("s_barrier")
        else: a("s_nop 0")
        pack(2); a(OSTORES[4]); a(OSTORES[5])
        a("s_nop 1")
        pack(3); a(OSTORES[6]); a(OSTORES[7])
        if OPT.get('b12late', 1) and OPT.get('flagpos', 3) >= 0: a("s_barrier")
    else:
        for T in range(8): pv(T)
        if VE: a("s_barrier")
        a("s_nop 7")
        for p in range(4): pack(p)

V2_ACC = 16
V2_A = [88, 108]
V2_AD = [4, 5, 6, 12]
BUF = [160, 192, 224]

def p2_areads(slot, p, half, buf=None):
    r = []
    ad = V2_AD[slot]
    taus = range(0, 5) if half == 0 else range(5, 9)
    if buf is None: buf = half
    for k, tau in enumerate(taus):
        off = p * 32 * 288 + 32 * tau
        base = V2_A[buf] + 4 * k
        r.append(f"ds_read_b64_tr_b16 {vr(base,2)}, v{ad} offset:{off}")
        r.append(f"ds_read_b64_tr_b16 {vr(base+2,2)}, v{ad} offset:{off+16*288}")
    return r

def p2_bloads(a, slot, breg):
    a(f"s_add_u32 s45, s{S_J}, {slot}"); a("s_and_b32 s45, s45, 3"); a("s_add_u32 s45, s45, s44")
    a("s_lshl_b32 s45, s45, 2"); a(f"s_add_u32 s45, s45, s{S_WAVE}")
    a("s_lshl_b32 s46, s45, 13"); a("s_add_u32 s47, s46, 4096")
    for f in range(8):
        a(f"buffer_load_dwordx4 {vr(breg+4*f,4)}, v7, s[32:35], s{46 + f//4} offen offset:{(f%4)*1024} sc1")

S_NON = 52
S_FAST = 54

def get_nonce(a):
    a("s_waitcnt vmcnt(0)")
    a("v_mov_b32 v9, 0")
    a("s_mov_b32 s50, 0")
    a.label("L_nonce_chk")
    a(f"v_readfirstlane_b32 s{S_NON}, v{V_NONCE}"); a(f"v_readfirstlane_b32 s{S_NON+1}, v{V_NONCE+1}")
    a("s_nop 0")
    a(f"s_cmp_lg_u32 s{S_NON}, 0"); a("s_cbranch_scc1 L_nonce_ok")
    a(f"buffer_load_dwordx2 {vr(V_NONCE,2)}, v9, s[36:39], 0 offen sc1")
    a("s_add_u32 s50, s50, 1"); a("s_waitcnt vmcnt(0)")
    a(f"s_cmp_lt_u32 s50, {OPT['spin_max']}"); a("s_cbranch_scc1 L_nonce_chk")
    a.label("L_nonce_ok")
    a(f"s_mov_b32 s{S_FAST}, 0")
    if OPT['fast']:
        a(f"v_readfirstlane_b32 s55, v{V_CLW}")
        a(f"s_and_b32 s56, s{S_X}, 1"); a("s_lshl_b32 s56, s56, 4"); a("s_lshr_b32 s55, s55, s56")
        a("s_and_b32 s56, s55, 31")
        a("s_bfe_u32 s57, s55, 0x80005")
        a("s_bfe_u32 s55, s55, 0x3000d")
        a("s_mul_i32 s56, s56, s56"); a("s_lshl_b32 s57, s57, 2")
        a("s_cmp_eq_u32 s56, s57"); a(f"s_cselect_b32 s{S_FAST}, 1, 0")
        a("s_cmp_eq_u32 s55, 4"); a(f"s_cselect_b32 s{S_FAST}, s{S_FAST}, 0")
        if OPT['fast'] == 2: a(f"s_mov_b32 s{S_FAST}, 0")

def poll(a, tag, voff, soff, sleep=0):
    a("s_mov_b32 s50, 0")
    a.label(f"L_poll_{tag}")
    if sleep: a(f"s_sleep {sleep}")
    a(f"buffer_load_dwordx2 v[10:11], v{voff}, s[32:35], s{soff} offen sc1")
    a("s_add_u32 s50, s50, 1"); a("s_waitcnt vmcnt(0)")
    a(f"v_cmp_eq_u64 vcc, v[10:11], s[{S_NON}:{S_NON+1}]")
    a(f"s_cmp_ge_u32 s50, {OPT['spin_max']}"); a(f"s_cbranch_scc1 L_poll_{tag}_done")
    a("s_cmp_eq_u64 vcc, -1"); a(f"s_cbranch_scc0 L_poll_{tag}")
    a.label(f"L_poll_{tag}_done")

def flag_store(a, soff, mode):
    a(f"v_mov_b32 v10, s{S_NON}"); a(f"v_mov_b32 v11, s{S_NON+1}")
    a("s_mov_b64 exec, 1")
    if mode == 'dyn':
        a(f"s_cmp_eq_u32 s{S_FAST}, 0"); a("s_cbranch_scc1 L_flag_slow")
        a(f"buffer_store_dwordx2 v[10:11], v9, s[32:35], s{soff} offen")
        a("s_branch L_flag_join")
        a.label("L_flag_slow")
        a(f"buffer_store_dwordx2 v[10:11], v9, s[32:35], s{soff} offen sc1")
        a.label("L_flag_join")
    else:
        a(f"buffer_store_dwordx2 v[10:11], v9, s[32:35], s{soff} offen sc1")
    a("s_mov_b64 exec, -1")

def o_store(a):
    srd(a, 32, P_WS, SZ_WS_USED)
    a("v_lshlrev_b32 v7, 4, v0")
    a(f"s_lshl_b32 s40, s{S_G}, 5"); a(f"s_add_u32 s40, s40, s{S_H}"); a("s_lshl_b32 s40, s40, 2")
    a(f"s_add_u32 s40, s40, s{S_WAVE}"); a("s_lshl_b32 s40, s40, 13"); a("s_add_u32 s41, s40, 4096")
    global OSTORES
    OSTORES = [f"buffer_store_dwordx4 {vr(V_OF+4*f,4)}, v7, s[32:35], s{40 + f//4} offen offset:{(f%4)*1024} sc1" for f in range(8)]
    a("v_lshrrev_b32 v2, 4, v0"); a("v_bfe_u32 v3, v0, 2, 2"); a("v_lshl_add_u32 v2, v2, 2, v3")
    a("v_mul_u32_u24 v2, 288, v2"); a("v_and_b32 v3, 3, v0")
    a(f"v_lshl_add_u32 v{V2_AD[0]}, v3, 3, v2")
    for sl in range(1, 4): a(f"v_add_u32 v{V2_AD[sl]}, {sl*W_SLOT}, v{V2_AD[0]}")
    a(f"s_lshl_b32 s44, s{S_G}, 5"); a(f"s_lshl_b32 s45, s{S_X}, 2"); a("s_add_u32 s44, s44, s45")
    a(f"s_lshl_b32 s48, s{S_G}, 3"); a(f"s_add_u32 s48, s48, s{S_X}"); a("s_lshl_b32 s48, s48, 2")
    a(f"s_add_u32 s48, s48, s{S_WAVE}"); a("s_lshl_b32 s48, s48, 7"); a(f"s_add_u32 s48, s48, {WS_F}")
    a(f"s_lshl_b32 s49, s{S_J}, 3"); a("s_add_u32 s49, s49, s48")
    a("v_and_b32 v8, 3, v0"); a("v_lshlrev_b32 v8, 3, v8")

def bload_list(slot, breg):
    setup = [f"s_add_u32 s45, s{S_J}, {slot}", "s_and_b32 s45, s45, 3", "s_add_u32 s45, s45, s44",
             "s_lshl_b32 s45, s45, 2", f"s_add_u32 s45, s45, s{S_WAVE}",
             "s_lshl_b32 s46, s45, 13", "s_add_u32 s47, s46, 4096"]
    loads = [f"buffer_load_dwordx4 {vr(breg+4*f,4)}, v7, s[32:35], s{46 + f//4} offen offset:{(f%4)*1024} sc1" for f in range(8)]
    return setup, loads

def p2_run(a, hs, n0, n1, hooks_pre=None, hooks_mid=None, inject=None, spread=None):
    hooks_pre = hooks_pre or {}; hooks_mid = hooks_mid or {}; inject = inject or {}; spread = spread or {}
    for n in range(n0, n1):
        (s, p, hf) = hs[n]
        breg = V_OF if s == 0 else BUF[s - 1]
        nxt = p2_areads(*hs[n+1], buf=(n+1) & 1) if n + 1 < n1 else []
        taus = list(range(0, 5)) if hf == 0 else list(range(5, 9))
        nown = 2 * len(taus)
        nm = nown
        plan = [0] * nm
        for t in range(len(nxt)): plan[t % nm] += 1
        issued = 0; m = 0
        inj = list(inject.get(n, []))
        spr = list(spread.get(n, []))
        per = -(-len(spr) // nm) if spr else 0
        if n in hooks_pre: hooks_pre[n]()
        for k, tau in enumerate(taus):
            a(f"s_waitcnt lgkmcnt({nown - 2 * (k + 1) + issued})")
            for qt in range(2):
                d = vr(V2_ACC + (tau*2+qt)*4, 4)
                c = "0" if (s == 0 and p == 0) else d
                a(f"v_mfma_f32_16x16x32_bf16 {d}, {vr(V2_A[n & 1]+4*k,4)}, {vr(breg+(2*p+qt)*4,4)}, {c}")
                if m == 0 and n in hooks_mid: hooks_mid[n]()
                if nxt:
                    for r in nxt[issued:issued+plan[m]]: a(r)
                    issued = min(len(nxt), issued + plan[m])
                for _ in range(per):
                    if spr: a(spr.pop(0))
                m += 1
                if k >= len(taus) - 1 and inj: a(inj.pop(0))
        while inj: a(inj.pop(0))
        while spr: a(spr.pop(0))

def d_prep(a):
    a("v_bfe_u32 v13, v0, 1, 3"); a("v_mul_u32_u24 v13, 9216, v13")
    a("v_lshrrev_b32 v14, 4, v0"); a("v_lshlrev_b32 v14, 1, v14"); a("v_and_b32 v15, 1, v0")
    a("v_add_u32 v14, v14, v15"); a("v_lshl_add_u32 v13, v14, 4, v13")
    a(f"s_lshl_b32 s58, s{S_G}, 2"); a(f"s_add_u32 s58, s58, s{S_J}"); a("s_lshl_b32 s58, s58, 2")
    a(f"s_add_u32 s58, s58, s{S_WAVE}")
    a("s_mul_i32 s59, s58, 73728"); a(f"s_add_u32 s59, s59, {WS_D}")
    a(f"s_mul_i32 s40, s{S_X}, 1152"); a("s_add_u32 s40, s40, s59")

def d_pack_store(tau, G=160):
    r = []
    for qt in range(2):
        for h2 in range(2):
            src = V2_ACC + (tau*2+qt)*4 + 2*h2
            r.append(f"v_cvt_pk_bf16_f32 v{G+4*tau+2*qt+h2}, v{src}, v{src+1}")
    r.append(f"buffer_store_dwordx4 {vr(G+4*tau,4)}, v13, s[32:35], s40 offen offset:{128*tau} sc1")
    return r

def tail(a):
    hs = [(s, p, hf) for s in range(2) for p in range(4) for hf in range(2)]
    hs += [(2, p, 0) for p in range(4)] + [(3, p, 0) for p in range(4)]
    hs += [(2, p, 1) for p in range(4)] + [(3, p, 1) for p in range(4)]
    if not OPT.get('ostin', 1):
        o_store(a)
        for x in OSTORES: a(x)
    stamp(a, 6)
    if OPT.get('flagpos', 3) >= 0:
        for r in p2_areads(*hs[0], buf=0): a(r)
    def exch():
        a("s_waitcnt vmcnt(0)")
        flag_store(a, 49, 'dyn')
        stamp(a, 7)
        if OPT.get('poll1', 1):
            a(f"s_add_u32 s56, s{S_J}, 1"); a("s_and_b32 s56, s56, 3")
            a("s_mov_b32 s50, 0")
            a.label("L_poll_o1")
            if OPT.get('o_sleep', 0): a(f"s_sleep {OPT['o_sleep']}")
            a("buffer_load_dwordx2 v[10:11], v8, s[32:35], s48 offen sc1")
            a("s_add_u32 s50, s50, 1"); a("s_waitcnt vmcnt(0)")
            a(f"v_cmp_eq_u64 vcc, v[10:11], s[{S_NON}:{S_NON+1}]")
            a(f"s_cmp_ge_u32 s50, {OPT['spin_max']}"); a("s_cbranch_scc1 L_poll_o1_done")
            a("s_bitcmp1_b32 vcc_lo, s56"); a("s_cbranch_scc0 L_poll_o1")
            a.label("L_poll_o1_done")
            a("s_cmp_eq_u64 vcc, -1"); a("s_cselect_b32 s55, 1, 0")
        else:
            poll(a, "o", 8, 48, sleep=OPT.get('o_sleep', 0))
        stamp(a, 8)
        p2_bloads(a, 1, BUF[0])
        a("s_nop 3")
    if OPT.get('flagpos', 3) >= 0:
        p2_run(a, hs, 0, 8, hooks_pre={OPT.get('flagpos', 4): exch})
    else:
        exch()
        a("s_barrier")
        for r in p2_areads(*hs[0], buf=0): a(r)
        p2_run(a, hs, 0, 8)
    a("s_barrier")
    tstamp(a, 1)
    if OPT.get('poll1', 1):
        a("s_cmp_eq_u32 s55, 1"); a("s_cbranch_scc1 L_poll_o_skip")
        poll(a, "o", 8, 48, sleep=OPT.get('o_sleep', 0))
        a.label("L_poll_o_skip")
    for r in p2_areads(*hs[8], buf=0): a(r)
    su2, l2 = bload_list(2, BUF[1]); su3, l3 = bload_list(3, BUF[2])
    for x in su2: a(x)
    d_prep(a)
    inj = {}
    for t in range(4):
        inj[8 + t] = list(l2[2*t:2*t+2])
        inj[12 + t] = list(l3[2*t:2*t+2])
    inj[11] = inj[11] + su3
    spr = {25: d_pack_store(0) + d_pack_store(1), 26: d_pack_store(2) + d_pack_store(3), 27: d_pack_store(4)}
    W = lambda n: (lambda: a(f"s_waitcnt vmcnt({n})"))
    def WC(n, idx):
        def f():
            if OPT.get('cyc', 0): cstamp(a, idx)
            if n is not None: a(f"s_waitcnt vmcnt({n})")
        return f
    p2_run(a, hs, 8, 32,
           hooks_pre={8: WC(6, 3), 10: W(8), 12: W(10), 14: W(12), 16: WC(8, 4), 20: W(0), 24: WC(None, 13)},
           hooks_mid={15: lambda: a("s_barrier"), 19: lambda: a("s_barrier")},
           inject=inj, spread=spr)
    if OPT.get('cyc', 0): cstamp(a, 1)
    stamp(a, 9)
    reduce_inkernel(a)

def store_partials_f32(a):
    a("s_nop 7")
    a(f"s_lshl_b32 s45, s{S_X}, 3"); a(f"s_add_u32 s45, s45, s{S_G}"); a("s_lshl_b32 s45, s45, 2")
    a(f"s_add_u32 s45, s45, s{S_J}"); a("s_lshl_b32 s45, s45, 2"); a(f"s_add_u32 s45, s45, s{S_WAVE}")
    a(f"s_mul_i32 s45, s45, {18*1024}"); a(f"s_add_u32 s45, s45, {WS_P}")
    for u in range(18):
        if u and u % 4 == 0: a("s_add_u32 s45, s45, 4096")
        a(f"buffer_store_dwordx4 {vr(V2_ACC+4*u,4)}, v7, s[32:35], s45 offen offset:{(u%4)*1024}")

def store_partials_bf16(a):
    G = 160
    a(f"s_lshl_b32 s44, s{S_G}, 2"); a(f"s_add_u32 s44, s44, s{S_J}"); a("s_lshl_b32 s44, s44, 2")
    a(f"s_add_u32 s44, s44, s{S_WAVE}")
    a(f"s_lshl_b32 s45, s{S_X}, 7"); a("s_add_u32 s45, s45, s44"); a("s_mul_i32 s45, s45, 9216")
    a(f"s_add_u32 s45, s45, {WS_P}"); a("s_add_u32 s46, s45, 4096"); a("s_add_u32 s47, s45, 8192")
    sc = " sc1" if OPT.get('psc1', 1) else ""
    for tau in range(9):
        for qt in range(2):
            for h2 in range(2):
                src = V2_ACC + (tau*2+qt)*4 + 2*h2
                a(f"v_cvt_pk_bf16_f32 v{G+4*tau+2*qt+h2}, v{src}, v{src+1}")
        a(f"buffer_store_dwordx4 {vr(G+4*tau,4)}, v7, s[32:35], s{45 + tau//4} offen offset:{(tau%4)*1024}{sc}")

def kernel3b(a):
    name = "mha_p3_kernel"
    a(".p2align 8"); a(f".globl {name}"); a(f".type {name},@function"); a.label(name)
    a("s_cmp_ge_u32 s2, 288"); a(f"s_cbranch_scc1 L_end_{name}")
    a("s_load_dwordx2 s[26:27], s[0:1], 40"); a("s_load_dwordx2 s[30:31], s[0:1], 56")
    a("v_lshrrev_b32 v1, 6, v0"); a("v_and_b32 v0, 63, v0")
    a("s_lshl_b32 s5, s2, 2")
    a(f"v_readfirstlane_b32 s{S_WAVE}, v1")
    a("v_lshlrev_b32 v1, 4, v0")
    a(f"s_add_u32 s5, s5, s{S_WAVE}")
    a("s_mul_i32 s45, s5, 1024"); a(f"s_add_u32 s45, s45, {WS_P}")
    a("s_mul_hi_u32 s6, s5, 477218589")
    a("s_mul_i32 s7, s6, 9"); a("s_sub_u32 s7, s5, s7")
    a("s_waitcnt lgkmcnt(0)")
    srd(a, 32, P_WS, SZ_WS_USED); srd(a, 36, P_OUT, SZ_OUT)
    for x in range(8):
        a(f"buffer_load_dwordx4 {vr(8+4*x,4)}, v1, s[32:35], s45 offen")
        if x < 7: a(f"s_add_u32 s45, s45, {128*9216}")
    a("v_and_b32 v2, 15, v0"); a("v_mul_u32_u24 v2, 1152, v2"); a("v_lshrrev_b32 v3, 4, v0")
    a("v_lshl_add_u32 v2, v3, 3, v2")
    a("s_lshr_b32 s46, s6, 4"); a("s_lshl_b32 s46, s46, 2"); a("s_and_b32 s47, s6, 3"); a("s_add_u32 s46, s46, s47")
    a(f"s_mul_i32 s46, s46, {32*1152}")
    a("s_lshr_b32 s47, s6, 2"); a("s_and_b32 s47, s47, 3"); a("s_mul_i32 s47, s47, 288"); a("s_add_u32 s46, s46, s47")
    a("s_lshl_b32 s47, s7, 5"); a("s_add_u32 s46, s46, s47"); a(f"s_add_u32 s47, s46, {16*1152}")
    for x in range(8):
        a(f"s_waitcnt vmcnt({7-x})")
        for d in range(4):
            src = 8 + 4*x + d
            if x == 0:
                a(f"v_lshlrev_b32 v{40+2*d}, 16, v{src}"); a(f"v_and_b32 v{40+2*d+1}, 0xffff0000, v{src}")
            else:
                a(f"v_lshlrev_b32 v48, 16, v{src}"); a(f"v_and_b32 v49, 0xffff0000, v{src}")
                a(f"v_pk_add_f32 v[{40+2*d}:{40+2*d+1}], v[{40+2*d}:{40+2*d+1}], v[48:49]")
    for d in range(4): a(f"v_cvt_pk_bf16_f32 v{50+d}, v{40+2*d}, v{40+2*d+1}")
    a("buffer_store_dwordx2 v[50:51], v2, s[36:39], s46 offen")
    a("buffer_store_dwordx2 v[52:53], v2, s[36:39], s47 offen")
    a.label(f"L_end_{name}")
    a("s_endpgm")

def reduce_inkernel(a):
    RA = 196; RB = 88
    a("s_nop 7")
    for tau in range(5, 9):
        for x in d_pack_store(tau): a(x)
    a("s_lshl_b32 s48, s58, 8"); a(f"s_add_u32 s48, s48, {WS_F2}")
    a(f"s_lshl_b32 s49, s{S_X}, 3"); a("s_add_u32 s49, s49, s48")
    a("s_waitcnt vmcnt(4)")
    flag_store(a, 49, 'sc1')
    a("s_add_u32 s49, s49, 128")
    a("v_and_b32 v8, 7, v0"); a("v_lshlrev_b32 v8, 3, v8")
    a("v_and_b32 v14, 1, v0"); a("v_mul_u32_u24 v14, 1152, v14")
    a("v_bfe_u32 v15, v0, 1, 2"); a("v_lshl_add_u32 v14, v15, 3, v14")
    a("v_lshrrev_b32 v12, 3, v0"); a("v_lshl_add_u32 v14, v12, 5, v14")
    a("v_add_u32 v15, 160, v14")
    srd(a, 36, P_OUT, SZ_OUT)
    a(f"s_lshl_b32 s56, s{S_G}, 2"); a(f"s_add_u32 s56, s56, s{S_WAVE}"); a("s_lshl_b32 s56, s56, 5")
    a(f"s_lshl_b32 s57, s{S_X}, 1"); a("s_add_u32 s56, s56, s57"); a("s_mul_i32 s56, s56, 1152")
    a(f"s_mul_i32 s57, s{S_J}, 288"); a("s_add_u32 s56, s56, s57")
    a(f"s_add_u32 s57, s56, {16*1152}")
    a(f"s_mul_i32 s47, s{S_X}, 9216"); a("s_add_u32 s47, s47, s59")
    a("s_waitcnt vmcnt(1)")
    flag_store(a, 49, 'sc1')
    stamp(a, 10)
    poll(a, "da", 8, 48, sleep=OPT.get('d_sleep', 0))
    a("s_mov_b32 s46, s47")
    a("s_mov_b32 exec_hi, 0xff")
    for sx in range(8):
        a(f"buffer_load_dwordx4 {vr(RA+4*sx,4)}, v7, s[32:35], s46 offen sc1")
        if sx < 7: a("s_add_u32 s46, s46, 1152")
    a("s_mov_b64 exec, -1")
    a("s_add_u32 s48, s48, 128")
    poll(a, "db", 8, 48, sleep=OPT.get('d_sleep2', 1))
    stamp(a, 11)
    a("s_mov_b64 exec, 0xffffffff")
    for sx in range(8):
        a(f"buffer_load_dwordx4 {vr(RB+4*sx,4)}, v7, s[32:35], s47 offen offset:640 sc1")
        if sx < 7: a("s_add_u32 s47, s47, 1152")
    a("s_mov_b64 exec, -1")
    AA = 16; AB = 24; T = 32
    def summ(R, A, waits):
        for sx in range(8):
            if waits: a(f"s_waitcnt vmcnt({7 - sx})")
            for d in range(4):
                src = R + 4*sx + d
                if sx == 0:
                    a(f"v_lshlrev_b32 v{A+2*d}, 16, v{src}"); a(f"v_and_b32 v{A+2*d+1}, 0xffff0000, v{src}")
                else:
                    t = T + 2 * (d & 1)
                    a(f"v_lshlrev_b32 v{t}, 16, v{src}"); a(f"v_and_b32 v{t+1}, 0xffff0000, v{src}")
                    a(f"v_pk_add_f32 v[{A+2*d}:{A+2*d+1}], v[{A+2*d}:{A+2*d+1}], v[{t}:{t+1}]")
    fl = {0: "", 1: " sc1", 2: " nt", 3: " sc0 sc1"}[OPT.get('outfl', 0)]
    summ(RA, AA, False)
    for d in range(4): a(f"v_cvt_pk_bf16_f32 v{36+d}, v{AA+2*d}, v{AA+2*d+1}")
    summ(RB, AB, True)
    a("s_mov_b32 exec_hi, 0xff")
    a(f"buffer_store_dwordx2 v[36:37], v14, s[36:39], s56 offen{fl}")
    a(f"buffer_store_dwordx2 v[38:39], v14, s[36:39], s57 offen{fl}")
    a("s_mov_b64 exec, -1")
    for d in range(4): a(f"v_cvt_pk_bf16_f32 v{40+d}, v{AB+2*d}, v{AB+2*d+1}")
    a("s_mov_b64 exec, 0xffffffff")
    a(f"buffer_store_dwordx2 v[40:41], v15, s[36:39], s56 offen{fl}")
    a(f"buffer_store_dwordx2 v[42:43], v15, s[36:39], s57 offen{fl}")
    a("s_mov_b64 exec, -1")

def KNAME():
    return "standalone__mha_block_cached__near_ridge_kernel" if OPT['dk'] else "mha_a_kernel"

def kernelA(a):
    global KIDX
    KIDX = 0
    name = KNAME()
    prologue(a, name)
    stamp_init(a); stamp(a, 0); cstamp(a, 14)
    if OPT['stamps'] and OPT.get('entrystamp', 0): a("s_mov_b64 s[86:87], s[96:97]")
    a(f"s_cmp_lt_u32 s{S_WAVE}, 4"); a("s_cbranch_scc1 L_a_compute")
    a(f"s_cmp_eq_u32 s{S_WAVE}, 5"); a("s_cbranch_scc1 L_a_ldx")
    a(f"s_cmp_eq_u32 s{S_WAVE}, 6"); a("s_cbranch_scc1 L_a_ldk")
    a(f"s_cmp_eq_u32 s{S_WAVE}, 7"); a("s_cbranch_scc1 L_a_ldv")
    loader_ring(a, 'wq'); stamp_flush(a); a("s_endpgm")
    a.label("L_a_ldx"); loader_ring(a, 'x'); stamp_flush(a); a("s_endpgm")
    a.label("L_a_ldv"); loader_v(a); stamp_flush(a); a("s_endpgm")
    a.label("L_a_ldk"); loader_k(a); stamp_flush(a); a("s_endpgm")
    a.label("L_a_compute")
    CUR['compute'] = True
    gemm1_addrs(a); attn_addrs(a)
    if OPT.get('cprio', 0): a(f"s_setprio {OPT['cprio']}")
    kwait(a)
    srd(a, 36, P_DBG, 256)
    a("v_mov_b32 v1, 0")
    a(f"s_lshl_b32 s40, s{S_G}, 3"); a(f"s_add_u32 s40, s40, s{S_X}"); a("s_lshr_b32 s40, s40, 1")
    a("s_lshl_b32 s40, s40, 2"); a("s_add_u32 s40, s40, 128")
    srd(a, 44, P_WS, SZ_WS_USED)
    a(f"s_lshl_b32 s42, s{S_G}, 3"); a(f"s_add_u32 s42, s42, s{S_X}"); a("s_lshl_b32 s42, s42, 2")
    a(f"s_add_u32 s42, s42, s{S_WAVE}"); a("s_lshl_b32 s42, s42, 7"); a(f"s_add_u32 s42, s42, {WS_F}")
    gemm1(a)
    if not OPT.get('nonce_in', 1): get_nonce(a)
    stamp(a, 2)
    attention(a); stamp(a, 5)
    tail(a)
    if OPT['stamps']: a("s_waitcnt vmcnt(0)")
    stamp(a, 12); cstamp(a, 15); stamp_flush(a)
    if OPT.get('waitx', 0):
        a("s_waitcnt vmcnt(0)")
        a(f"s_add_u32 s62, s{S_NON}, {OPT['waitx']}")
        a("s_mov_b32 s63, 0")
        a.label("L_wx_spin")
        a("s_memrealtime s[64:65]"); a("s_waitcnt lgkmcnt(0)")
        a("s_add_u32 s63, s63, 1"); a("s_cmp_gt_u32 s63, 100000"); a("s_cbranch_scc1 L_wx_done")
        a("s_sub_u32 s66, s62, s64"); a("s_cmp_gt_i32 s66, 0"); a("s_cbranch_scc1 L_wx_spin")
        a.label("L_wx_done")
    if OPT.get('probe', -1) >= 0:
        a("s_waitcnt vmcnt(0)")
        a(f"s_sub_u32 s62, s60, s{S_NON}"); a(f"s_mul_i32 s62, s62, {OPT.get('probek', 8)}")
        a("s_memrealtime s[64:65]"); a("s_waitcnt lgkmcnt(0)")
        a("s_add_u32 s62, s62, s64")
        a("s_mov_b32 s63, 0")
        a.label("L_probe_spin")
        a("s_memrealtime s[64:65]"); a("s_waitcnt lgkmcnt(0)")
        a("s_add_u32 s63, s63, 1"); a("s_cmp_gt_u32 s63, 100000"); a("s_cbranch_scc1 L_probe_done")
        a("s_sub_u32 s66, s62, s64"); a("s_cmp_gt_i32 s66, 0"); a("s_cbranch_scc1 L_probe_spin")
        a.label("L_probe_done")
    a.label(f"L_end_{name}")
    a("s_endpgm")

def kernel3(a):
    global KIDX
    KIDX = 1
    name = "mha_p3_kernel"
    a(".p2align 8"); a(f".globl {name}"); a(f".type {name},@function"); a.label(name)
    a("s_cmp_ge_u32 s2, 256"); a(f"s_cbranch_scc1 L_end_{name}")
    a("s_load_dwordx16 s[16:31], s[0:1], 0")
    a("v_lshrrev_b32 v1, 6, v0"); a("v_and_b32 v0, 63, v0")
    a("s_lshr_b32 s5, s2, 1")
    a("s_and_b32 s6, s2, 1")
    a(f"v_readfirstlane_b32 s{S_WAVE}, v1")
    a("s_mul_i32 s6, s6, 9")
    a("s_waitcnt lgkmcnt(0)")
    stamp_init(a); stamp(a, 0); cstamp(a, 14)
    a(f"s_add_u32 s6, s6, s{S_WAVE}")
    srd(a, 32, P_WS, SZ_WS_USED); srd(a, 36, P_OUT, SZ_OUT)
    a("v_lshlrev_b32 v1, 4, v0")
    a("s_mul_i32 s45, s5, 18"); a("s_add_u32 s45, s45, s6"); a("s_lshl_b32 s45, s45, 10")
    a(f"s_add_u32 s45, s45, {WS_P}")
    for x in range(8):
        a(f"buffer_load_dwordx4 {vr(8+4*x,4)}, v1, s[32:35], s45 offen")
        if x < 7: a(f"s_add_u32 s45, s45, {128*18*1024}")
    a("v_and_b32 v2, 15, v0"); a("v_mul_u32_u24 v2, 1152, v2"); a("v_lshrrev_b32 v3, 4, v0")
    a("v_lshl_add_u32 v2, v3, 3, v2")
    a("s_lshr_b32 s46, s5, 4"); a("s_lshl_b32 s46, s46, 2"); a("s_and_b32 s47, s5, 3"); a("s_add_u32 s46, s46, s47")
    a(f"s_mul_i32 s46, s46, {32*1152}")
    a("s_lshr_b32 s47, s5, 2"); a("s_and_b32 s47, s47, 3"); a("s_mul_i32 s47, s47, 288"); a("s_add_u32 s46, s46, s47")
    a("s_and_b32 s47, s6, 1"); a(f"s_mul_i32 s47, s47, {16*1152}"); a("s_add_u32 s46, s46, s47")
    a("s_lshr_b32 s47, s6, 1"); a("s_lshl_b32 s47, s47, 5"); a("s_add_u32 s46, s46, s47")
    a("s_waitcnt vmcnt(0)")
    for v in range(4):
        for x in range(0, 8, 2): a(f"v_add_f32 v{8+4*x+v}, v{8+4*x+v}, v{12+4*x+v}")
    for v in range(4):
        a(f"v_add_f32 v{8+v}, v{8+v}, v{16+v}"); a(f"v_add_f32 v{24+v}, v{24+v}, v{32+v}")
    for v in range(4): a(f"v_add_f32 v{8+v}, v{8+v}, v{24+v}")
    a("v_cvt_pk_bf16_f32 v8, v8, v9"); a("v_cvt_pk_bf16_f32 v9, v10, v11")
    a("buffer_store_dwordx2 v[8:9], v2, s[36:39], s46 offen")
    if OPT['stamps']:
        a("s_waitcnt vmcnt(0)")
        stamp(a, 10); cstamp(a, 15)
        a(f"s_cmp_ge_u32 s{S_WAVE}, 8"); a("s_cbranch_scc1 L_end_mha_p3_kernel")
        stamp_flush(a, 44)
    a.label(f"L_end_{name}")
    a("s_endpgm")

def descriptor(a, name, vgpr, sgpr=102):
    a(f".amdhsa_kernel {name}")
    a(f".amdhsa_next_free_vgpr {vgpr}"); a(f".amdhsa_next_free_sgpr {sgpr}"); a(f".amdhsa_accum_offset {vgpr}")
    a(".amdhsa_group_segment_fixed_size 0"); a(".amdhsa_kernarg_size 64")
    a(".amdhsa_user_sgpr_count 2"); a(".amdhsa_user_sgpr_kernarg_segment_ptr 1")
    a(".amdhsa_system_sgpr_workgroup_id_x 1"); a(".end_amdhsa_kernel")

def main():
    out = sys.argv[1]
    for arg in sys.argv[2:]:
        if arg == "--stamps": OPT['stamps'] = True
        elif "=" in arg:
            k, v = arg.lstrip("-").split("="); OPT[k] = int(v)
    a = Asm()
    hdr = """; Fused MHA block for gfx950 (MI355X): out = softmax((x Wq) K^T / sqrt(128)) V  Wo
;
; Kernarg (8 pointers): x, k_cache, v_cache, wq, wo, out, debug, ws.
"""
    if OPT['dk']:
        hdr += "; @launch grid=(256,1,1) block=(512,1,1) lds=163840\n"
    else:
        hdr += "; @launch kernel=mha_a_kernel grid=(256,1,1) block=(512,1,1) lds=163840\n"
        if OPT.get('k3bf', 0): hdr += "; @launch kernel=mha_p3_kernel grid=(288,1,1) block=(256,1,1) lds=0\n"
        else: hdr += "; @launch kernel=mha_p3_kernel grid=(256,1,1) block=(576,1,1) lds=0\n"
    a('.amdgcn_target "amdgcn-amd-amdhsa--gfx950"'); a(".text")
    kernelA(a)
    if not OPT['dk']:
        if OPT.get('k3bf', 0): kernel3b(a)
        else: kernel3(a)
    a('.section .rodata,"a"'); a(".p2align 6"); descriptor(a, KNAME(), 256)
    if not OPT['dk']:
        a(".p2align 6"); descriptor(a, "mha_p3_kernel", 56)
    open(out, "w").write(hdr + a.text())

if __name__ == "__main__": main()
```

```python
import sys, struct

class Asm:
    def __init__(self): self.l = []
    def __call__(self, s=""):
        for x in s.split("\n"):
            x = x.strip()
            self.l.append(x if (x.endswith(":") or x.startswith(".")) else "  " + x)
    def label(self, s): self.l.append(s + ":")
    def text(self): return "\n".join(self.l) + "\n"

def vr(b, n=1): return f"v{b}" if n == 1 else f"v[{b}:{b+n-1}]"
def f32hex(x): return "0x%08x" % struct.unpack("<I", struct.pack("<f", x))[0]

P_X, P_K, P_V, P_WQ, P_WO, P_OUT, P_DBG, P_WS = 16, 18, 20, 22, 24, 26, 28, 30
SZ_X, SZ_KV, SZ_W, SZ_OUT = 1179648, 8388608, 4718592, 1179648
WS_O = 0
WS_P = 8 << 20
WS_F = 28 << 20
WS_F2 = (28 << 20) + (1 << 19)
WS_D = 8 << 20
WS_STAMP = 32 << 20
SZ_WS_USED = 256 << 20
S_WAVE, S_X, S_R, S_J, S_G, S_H = 3, 4, 5, 6, 9, 10

OPT = dict(stamps=False, fast=1, spin_max=2000000, kvmode=21, flagpos=3, wqt_nt=0, xonce=1, vearly=1, woearly=1, d_sleep=1, d_sleep2=0, o_sleep=0, k_nt=1, v_nt=1, wot_pos=8, dk=1)

def srd(a, base, ptr, size, add=0):
    if add:
        a(f"s_add_u32 s{base}, s{ptr}, {add}"); a(f"s_addc_u32 s{base+1}, s{ptr+1}, 0")
        a(f"s_and_b32 s{base+1}, s{base+1}, 0xffff")
    else:
        a(f"s_mov_b32 s{base}, s{ptr}"); a(f"s_and_b32 s{base+1}, s{ptr+1}, 0xffff")
    a(f"s_mov_b32 s{base+2}, {size}"); a(f"s_mov_b32 s{base+3}, 0x00020000")

def prologue(a, name, nwg=256):
    a(".p2align 8"); a(f".globl {name}"); a(f".type {name},@function"); a.label(name)
    a(f"s_cmp_ge_u32 s2, {nwg}"); a(f"s_cbranch_scc1 L_end_{name}")
    if OPT['stamps'] and OPT.get('entrystamp', 0): a("s_memrealtime s[96:97]")
    a("s_load_dwordx16 s[16:31], s[0:1], 0")
    a("v_lshrrev_b32 v1, 6, v0"); a("v_and_b32 v0, 63, v0")
    a(f"s_and_b32 s{S_X}, s2, 7"); a(f"s_lshr_b32 s{S_R}, s2, 3")
    a(f"v_readfirstlane_b32 s{S_WAVE}, v1")
    a(f"s_and_b32 s{S_J}, s{S_R}, 3"); a(f"s_lshr_b32 s{S_G}, s{S_R}, 2")
    a(f"s_lshl_b32 s{S_H}, s{S_X}, 2"); a(f"s_add_u32 s{S_H}, s{S_H}, s{S_J}")
    if OPT['stamps'] or not OPT.get('latewait', 1): a("s_waitcnt lgkmcnt(0)")

def kwait(a):
    if not OPT['stamps'] and OPT.get('latewait', 1): a("s_waitcnt lgkmcnt(0)")

KIDX = 0
CUR = {}
def tstamp(a, idx):
    if OPT.get('tailstamps', 0): stamp(a, idx, force=True)
def stamp(a, idx, force=False):
    if OPT.get('probe', -1) == idx and CUR.get('compute') and (force or not (OPT.get('tailstamps', 0) and idx in (1,2,3,4,13))):
        a("s_memrealtime s[60:61]"); a("s_waitcnt lgkmcnt(0)")
        return
    if not OPT['stamps']: return
    if OPT.get('tailstamps', 0) and not force and idx in (1,2,3,4,13) and CUR.get('compute'): return
    a(f"s_memrealtime s[{60+2*idx}:{61+2*idx}]"); a("s_waitcnt lgkmcnt(0)")
def cstamp(a, idx):
    if not OPT['stamps']: return
    a(f"s_memtime s[{60+2*idx}:{61+2*idx}]"); a("s_waitcnt lgkmcnt(0)")
def stamp_init(a):
    if not OPT['stamps']: return
    for i in range(16): a(f"s_mov_b64 s[{60+2*i}:{61+2*i}], 0")
def stamp_flush(a, vb=250):
    if not OPT['stamps']: return
    srd(a, 92, P_WS, 256*16*16*8, add=WS_STAMP + KIDX*256*8*16*8)
    a("s_lshl_b32 s96, s2, 3"); a(f"s_add_u32 s96, s96, s{S_WAVE}"); a("s_lshl_b32 s96, s96, 7")
    a(f"v_mov_b32 v{vb+2}, 0")
    for i in range(16):
        a(f"v_mov_b32 v{vb}, s{60+2*i}"); a(f"v_mov_b32 v{vb+1}, s{61+2*i}")
        a(f"buffer_store_dwordx2 v[{vb}:{vb+1}], v{vb+2}, s[92:95], s96 offen offset:{i*8}")
        a("s_nop 1")
    a("s_waitcnt vmcnt(0)")

L_K = 98304; L_V = 131072; NCH = 9
W_SLOT = 36864

def dma(a, voff, srdb, soff, off=0, nt=False, fl=""):
    a(f"buffer_load_dwordx4 v{voff}, s[{srdb}:{srdb+3}], s{soff} offen" + (f" offset:{off}" if off else "") + (" nt" if nt else "") + fl + " lds")
def FL(key):
    return {0: "", 1: " sc1", 2: " sc0", 3: " sc0 sc1"}[OPT.get(key, 0)]

V_WOV = 16
def wo_prep(a):
    srd(a, 52, P_WO, SZ_W)
    for t in range(9):
        a(f"v_add_u32 v1, {64*t}, v0")
        a("v_mul_u32_u24 v2, 3641, v1")
        a("v_lshrrev_b32 v2, 16, v2")
        a("v_mul_u32_u24 v3, 18, v2")
        a("v_sub_u32 v3, v1, v3")
        a("v_lshlrev_b32 v3, 4, v3")
        a("v_mul_u32_u24 v2, 1152, v2")
        a(f"v_add_u32 v{V_WOV+t}, v2, v3")
    a(f"s_mul_i32 s56, s{S_J}, 288")
def wo_issue(a, slot, q0, nq):
    a(f"s_add_u32 s57, s{S_J}, {slot}"); a("s_and_b32 s57, s57, 3")
    a(f"s_lshl_b32 s58, s{S_X}, 2"); a("s_add_u32 s57, s57, s58")
    a(f"s_mul_i32 s57, s57, {128*1152}"); a("s_add_u32 s57, s57, s56")
    if q0: a(f"s_add_u32 s57, s57, {q0*32*1152}")
    a(f"s_mov_b32 m0, {slot*W_SLOT + q0*32*288}"); a("s_nop 0")
    for blk in range(nq):
        for t in range(9):
            dma(a, V_WOV + t, 52, 57, nt=bool(OPT.get('wo_nt', 0)), fl=FL('wofl'))
            if not (blk == nq - 1 and t == 8):
                a("s_add_u32 m0, m0, 1024")
                if t == 8: a(f"s_add_u32 s57, s57, {32*1152}")
                else: a("s_nop 0")

def loader_tail(a, role):
    a("s_barrier")
    stamp(a, 8)
    if OPT.get('s1late', 0):
        if role < 2:
            wo_issue(a, 0, 2 * role, 2)
            a("s_waitcnt vmcnt(0)")
        stamp(a, 9)
        a("s_barrier")
        for sl in (1, 2, 3): wo_issue(a, sl, role, 1)
        stamp(a, 10)
        a("s_waitcnt vmcnt(18)")
        a("s_barrier")
    else:
        if role < 2:
            wo_issue(a, 0, 2 * role, 2); wo_issue(a, 1, 2 * role, 2)
        stamp(a, 9)
        if role < 2: a("s_waitcnt vmcnt(18)")
        a("s_barrier")
        wo_issue(a, 2, role, 1)
        wo_issue(a, 3, role, 1)
        stamp(a, 10)
        if role < 2: a("s_waitcnt vmcnt(18)")
        a("s_barrier")
    a("s_waitcnt vmcnt(9)")
    a("s_barrier")
    a("s_waitcnt vmcnt(0)")
    stamp(a, 11)
    a("s_barrier")

def loader_ring(a, which):
    SRD = 32; SO = 40
    if which == 'wq':
        a("v_lshrrev_b32 v1, 4, v0"); a("v_and_b32 v2, 15, v0")
        a("v_lshlrev_b32 v3, 2, v1"); a("v_xor_b32 v3, v3, v2"); a("v_lshlrev_b32 v3, 4, v3")
        a("v_lshlrev_b32 v4, 13, v1"); a("v_add_u32 v4, v4, v3")
        a(f"s_lshl_b32 s{SO}, s{S_H}, 8")
        def issue(kc):
            a(f"s_mov_b32 m0, {(kc%3)*32768}")
            for t in range(16):
                if t == 0: a("s_nop 0")
                dma(a, 4, SRD, SO, nt=bool(OPT.get('wq_nt', 0)), fl=FL('ringfl'))
                a(f"s_add_u32 s{SO}, s{SO}, 32768")
                if t < 15:
                    a("s_add_u32 m0, m0, 1024"); a("s_nop 0")
    else:
        a("v_lshrrev_b32 v1, 3, v0"); a("v_mul_u32_u24 v1, 1152, v1")
        a("v_and_b32 v2, 7, v0"); a("v_lshrrev_b32 v3, 4, v0"); a("v_xor_b32 v2, v2, v3")
        a("v_lshlrev_b32 v4, 4, v2"); a("v_add_u32 v4, v4, v1")
        a("v_xor_b32 v2, 4, v2"); a("v_lshlrev_b32 v5, 4, v2"); a("v_add_u32 v5, v5, v1")
        a(f"s_mul_i32 s{SO+1}, s{S_G}, 147456")
        def issue(kc):
            a(f"s_mov_b32 m0, {(kc%3)*32768 + 16384}")
            a(f"s_add_u32 s{SO}, s{SO+1}, {kc*128}")
            for T in range(16):
                dma(a, 4 + (T & 1), SRD, SO, nt=bool(OPT.get('x_nt', 0)), fl=FL('ringfl'))
                if T < 15:
                    a("s_add_u32 m0, m0, 1024"); a(f"s_add_u32 s{SO}, s{SO}, 9216")
    kv_pos(a, 43, 'k')
    if which == 'wq':
        a("v_lshrrev_b32 v8, 1, v0"); a("v_and_b32 v9, 1, v0")
        a("v_lshlrev_b32 v8, 13, v8"); a("v_lshl_add_u32 v8, v9, 7, v8")
        a(f"s_lshl_b32 s46, s{S_G}, {5+13}"); a(f"s_lshl_b32 s47, s{S_H}, 8"); a("s_add_u32 s46, s46, s47")
        def touch(part):
            nt = " nt" if OPT.get('wqt_nt', 0) else ""
            if part == 0:
                a(f"buffer_load_dword v10, v8, s[{SRD}:{SRD+3}], s46 offen{nt}")
            else:
                a(f"s_add_u32 s46, s46, {256*8192}")
                a(f"buffer_load_dword v10, v8, s[{SRD}:{SRD+3}], s46 offen{nt}")
                a(f"s_lshl_b32 s46, s{S_G}, {3+13}"); a("s_add_u32 s46, s46, s47"); a(f"s_add_u32 s46, s46, {512*8192}")
                a("s_mov_b64 exec, 0xffff")
                a(f"buffer_load_dword v10, v8, s[{SRD}:{SRD+3}], s46 offen{nt}")
                a("s_mov_b64 exec, -1")
        NT1 = 2
    else:
        if OPT.get('xonce', 0):
            a("v_mul_u32_u24 v8, 7282, v0"); a("v_lshrrev_b32 v8, 16, v8")
            a("v_mul_u32_u24 v9, 9, v8"); a("v_sub_u32 v9, v0, v9")
            a("v_mul_u32_u24 v8, 1152, v8"); a("v_lshl_add_u32 v8, v9, 7, v8")
            a(f"s_mul_i32 s46, s{S_G}, 147456"); a(f"s_mul_i32 s47, s{S_H}, {4*1152}"); a("s_add_u32 s46, s46, s47")
            def touch(part):
                if part == 0:
                    a("s_mov_b32 exec_lo, -1"); a("s_mov_b32 exec_hi, 15")
                    a(f"buffer_load_dword v10, v8, s[{SRD}:{SRD+3}], s46 offen")
                    a("s_mov_b64 exec, -1")
            NT1 = 0
        else:
            a("v_and_b32 v9, 31, v0"); a("v_mul_u32_u24 v9, 1152, v9")
            a("v_lshrrev_b32 v8, 5, v0"); a("v_lshl_add_u32 v8, v8, 7, v9")
            a(f"s_mul_i32 s46, s{S_G}, 147456"); a(f"s_mul_i32 s47, s{S_J}, {32*1152}"); a("s_add_u32 s46, s46, s47")
            def touch(part):
                if part == 0:
                    a(f"buffer_load_dword v10, v8, s[{SRD}:{SRD+3}], s46 offen")
                else:
                    for t in range(1, 4):
                        a(f"buffer_load_dword v10, v8, s[{SRD}:{SRD+3}], s46 offen offset:{256*t}")
                    a("s_mov_b64 exec, 0xffffffff")
                    a(f"buffer_load_dword v10, v9, s[{SRD}:{SRD+3}], s46 offen offset:1024")
                    a("s_mov_b64 exec, -1")
            NT1 = 4
    if OPT.get('lprio', 0): a(f"s_setprio {OPT['lprio']}")
    kwait(a)
    srd(a, SRD, P_WQ if which == 'wq' else P_X, SZ_W if which == 'wq' else SZ_X)
    if OPT.get('tall', 0):
        touch(0); touch(1); NT1 = 0
        issue(0); stamp(a, 1)
    else:
        touch(0)
        issue(0); stamp(a, 1)
        touch(1)
    a("s_barrier")
    if OPT.get('kearly', 0): a("s_barrier")
    bx(a, -1, "r" + which)
    issue(1)
    stamp(a, 2)
    a(f"s_waitcnt vmcnt({16 + NT1})")
    stamp(a, 3)
    a("s_barrier")
    bx(a, 0, "r" + which)
    issue(2)
    for i in range(1, NCH):
        last_issued = min(i + 1, NCH - 1)
        a(f"s_waitcnt vmcnt({(last_issued - i) * 16})")
        a("s_barrier")
        if which == 'wq' and i in (1,2,3,4): stamp(a, {1:4,2:5,3:6,4:12}[i])
        if which == 'x' and i in (5,6,7,8): stamp(a, {5:4,6:5,7:6,8:12}[i])
        if i < 8: bx(a, i, "r" + which)
        if i + 2 < NCH: issue(i + 2)
        if i == 7: wo_prep(a)
    stamp(a, 7)
    loader_tail(a, 0 if which == 'wq' else 1)

def kv_pos(a, sdst, which):
    m = OPT['kvmode']
    if m == 10:
        tab = [-1, 2, 4, 7]
    elif m == 11: tab = [7, 7, 7, 7]
    elif m == 12: tab = [-1, -1, -1, -1]
    elif m == 13: tab = [1, 1, 6, 6]
    elif m == 14: tab = [-1, 1, 4, 7]
    elif m == 15: tab = [0, 3, 5, 7]
    elif m == 16: tab = [2, 7, 2, 7]
    elif m == 17: tab = [3, 5, 7, 7]
    elif m == 20: tab = [-1, 1, 3, 5]
    elif m == 21: tab = [-1, 2, 4, 6]
    elif m == 22: tab = [-1, -1, 3, 3]
    elif m == 23: tab = [-1, 0, 2, 4]
    elif m == 24: tab = [0, 2, 4, 6]
    elif m == 25: tab = [-1, -1, -1, -1]
    packed = sum(((p + 1) & 15) << (4 * k) for k, p in enumerate(tab))
    a(f"s_and_b32 s{sdst}, s{S_G}, 3"); a(f"s_lshl_b32 s{sdst}, s{sdst}, 2")
    a(f"s_lshr_b32 s{sdst}, {packed}, s{sdst}"); a(f"s_and_b32 s{sdst}, s{sdst}, 15")

def bx(a, p, tag):
    if p >= 6: return
    a(f"s_cmp_lg_u32 s43, {p+1}"); a(f"s_cbranch_scc1 L_bx_{tag}_{p+1}")
    a("s_barrier")
    a.label(f"L_bx_{tag}_{p+1}")

def kv_loop(a, tag, issue_fn, extra_fn=None, extra_pos=None):
    a("s_mov_b32 s59, 0")
    a.label(f"L_{tag}_loop")
    a("s_cmp_lg_u32 s59, s43"); a(f"s_cbranch_scc1 L_{tag}_skip")
    stamp(a, 3)
    issue_fn()
    stamp(a, 4)
    a(f"s_cmp_ge_u32 s59, 7"); a(f"s_cbranch_scc1 L_{tag}_skip")
    a("s_barrier")
    a.label(f"L_{tag}_skip")
    if extra_fn is not None:
        a(f"s_cmp_lg_u32 s59, {extra_pos}"); a(f"s_cbranch_scc1 L_{tag}_skip2")
        extra_fn()
        a.label(f"L_{tag}_skip2")
    a("s_barrier")
    a("s_add_u32 s59, s59, 1")
    a("s_cmp_le_u32 s59, 8"); a(f"s_cbranch_scc1 L_{tag}_loop")

def loader_k(a):
    SRD = 32; SO = 40
    kwait(a)
    srd(a, SRD, P_K, SZ_KV)
    a("v_lshrrev_b32 v1, 4, v0"); a("v_and_b32 v2, 15, v0"); a("v_xor_b32 v2, v2, v1")
    a("v_lshlrev_b32 v2, 4, v2"); a("v_lshl_add_u32 v4, v1, 8, v2")
    a("v_xor_b32 v5, 64, v4"); a("v_xor_b32 v6, 128, v4"); a("v_xor_b32 v7, 192, v4")
    wo_prep(a)
    a("v_and_b32 v8, 15, v0"); a("v_mul_u32_u24 v8, 1152, v8")
    a("v_lshrrev_b32 v9, 4, v0"); a("v_lshl_add_u32 v9, v9, 7, v8")
    kv_pos(a, 43, 'k')
    if OPT.get('wswarm', 1):
        srd(a, 44, P_WS, SZ_WS_USED); srd(a, 48, P_OUT, SZ_OUT)
        SPR = OPT.get('spread', 0)
        a(f"s_lshl_b32 s40, s{S_G}, 5"); a(f"s_add_u32 s40, s40, s{S_H}"); a(f"s_lshl_b32 s40, s40, {20 if SPR else 15}")
        a(f"s_lshl_b32 s41, s{S_G}, 2"); a(f"s_add_u32 s41, s41, s{S_J}"); a("s_lshl_b32 s41, s41, 2")
        if SPR:
            a("s_lshl_b32 s42, s41, 21"); a(f"s_add_u32 s42, s42, {(1<<20) + 0x20000}")
        else:
            a("s_mul_i32 s42, s41, 73728"); a(f"s_add_u32 s42, s42, {WS_D}")
        a(f"s_mul_i32 s45, s{S_X}, 1152") if False else None
        a(f"s_mul_i32 s58, s{S_X}, 1152"); a("s_add_u32 s42, s42, s58")
        if SPR:
            a("s_lshl_b32 s41, s41, 21"); a(f"s_add_u32 s41, s41, {0x50000}")
        else:
            a("s_lshl_b32 s41, s41, 8"); a(f"s_add_u32 s41, s41, {WS_F2}")
        a("v_mov_b32 v11, 0")
        a("s_mov_b64 exec, 1")
        a("buffer_load_dword v10, v11, s[44:47], s40 offen")
        a("buffer_load_dword v10, v11, s[44:47], s42 offen")
        a("buffer_load_dword v10, v11, s[44:47], s41 offen sc1")
        a(f"s_lshl_b32 s40, s{S_G}, 7"); a(f"s_lshl_b32 s41, s{S_X}, 1"); a("s_add_u32 s40, s40, s41"); a("s_mul_i32 s40, s40, 1152")
        a(f"s_mul_i32 s41, s{S_J}, 288"); a("s_add_u32 s40, s40, s41")
        a("buffer_load_dword v10, v11, s[48:51], s40 offen")
        a("s_mov_b64 exec, -1")
    if OPT.get('tlbwarm', 0):
        a(f"s_lshl_b32 s{SO}, s{S_G}, 7"); a(f"s_add_u32 s{SO}, s{SO}, s{S_H}"); a(f"s_lshl_b32 s{SO}, s{SO}, 13")
        a("v_lshlrev_b32 v11, 18, v0")
        a("s_mov_b64 exec, 15")
        a(f"buffer_load_dword v10, v11, s[{SRD}:{SRD+3}], s{SO} offen nt")
        a("s_mov_b64 exec, -1")
    a("s_barrier")
    stamp(a, 1)
    KE = OPT.get('kearly', 0)
    def issue(w0=None, w1=4):
        if w0 is None: w0 = KE
        a(f"s_lshl_b32 s{SO}, s{S_G}, 7"); a(f"s_add_u32 s{SO}, s{SO}, s{S_H}"); a(f"s_lshl_b32 s{SO}, s{SO}, 13")
        if w0: a(f"s_add_u32 s{SO}, s{SO}, {w0*32*8192}")
        for w in range(w0, w1):
            for hf in range(2):
                a(f"s_mov_b32 m0, {L_K + w*8192 + hf*4096}"); a("s_nop 0")
                for t4 in range(4):
                    t = hf * 4 + t4
                    dma(a, 4 + (t >> 1), SRD, SO, off=t4 * 1024, nt=bool(OPT['k_nt']), fl=FL('kvfl'))
                a(f"s_add_u32 s{SO}, s{SO}, {4096 if hf == 0 else 32*8192 - 4096}")
    if KE:
        issue(0, KE)
        a("s_barrier")
    def wotouch():
        a(f"s_lshl_b32 s{SO}, s{S_X}, 5"); a(f"s_add_u32 s{SO}, s{SO}, s{S_R}")
        a(f"s_mul_i32 s{SO}, s{SO}, {16*1152}")
        nt = " nt" if OPT.get('wot_nt', 0) else ""
        a(f"buffer_load_dword v10, v9, s[52:55], s{SO} offen{nt}")
        a(f"buffer_load_dword v10, v9, s[52:55], s{SO} offen offset:512{nt}")
        a("s_mov_b64 exec, 0xffff")
        a(f"buffer_load_dword v10, v8, s[52:55], s{SO} offen offset:1024{nt}")
        a("s_mov_b64 exec, -1")
    def wotouch0():
        a(f"s_lshl_b32 s{SO}, s{S_X}, 2"); a(f"s_add_u32 s{SO}, s{SO}, s{S_J}"); a(f"s_lshl_b32 s{SO}, s{SO}, 3")
        a(f"s_add_u32 s{SO}, s{SO}, s{S_G}"); a(f"s_mul_i32 s{SO}, s{SO}, {16*1152}")
        a(f"s_mul_i32 s{SO+1}, s{S_J}, 288"); a(f"s_and_b32 s{SO+1}, s{SO+1}, 0xffffff80"); a(f"s_add_u32 s{SO}, s{SO}, s{SO+1}")
        a("s_mov_b32 exec_lo, -1"); a("s_mov_b32 exec_hi, 0xffff")
        a(f"buffer_load_dword v10, v9, s[52:55], s{SO} offen" + (" nt" if OPT.get('wot_nt', 0) else ""))
        a("s_mov_b64 exec, -1")
    wm = OPT.get('wotmode', 3)
    if wm == 3:
        def both():
            wotouch0(); issue()
        kv_loop(a, "k", both, wotouch, OPT['wot_pos'])
        a("s_waitcnt vmcnt(3)")
    elif wm == 0:
        kv_loop(a, "k", issue, wotouch, OPT['wot_pos'])
        a("s_waitcnt vmcnt(3)")
    if wm in (1, 2):
        def both():
            if wm == 1: wotouch()
            issue()
            if wm == 2: wotouch()
        kv_loop(a, "k", both)
        a("s_waitcnt vmcnt(0)")
    stamp(a, 7)
    loader_tail(a, 2)

def loader_v(a):
    SRD = 32; SO = 40
    kwait(a)
    srd(a, SRD, P_V, SZ_KV)
    a("s_cmp_lg_u32 s2, 0"); a("s_cbranch_scc1 L_nononce")
    srd(a, 48, P_DBG, 256)
    a("s_memrealtime s[42:43]"); a("s_waitcnt lgkmcnt(0)")
    a("s_or_b32 s42, s42, 1")
    a("v_mov_b32 v8, s42"); a("v_mov_b32 v9, s43"); a("v_mov_b32 v1, 0")
    a("s_mov_b64 exec, 1")
    a("buffer_store_dwordx2 v[8:9], v1, s[48:51], 0 offen sc1")
    a("s_mov_b64 exec, -1")
    a.label("L_nononce")
    if OPT['fast']:
        srd(a, 48, P_DBG, 256)
        a("s_getreg_b32 s42, hwreg(HW_REG_XCC_ID)")
        a("s_and_b32 s42, s42, 15")
        a("s_cmp_ge_u32 s42, 8"); a("s_cbranch_scc1 L_noxcc")
        a("s_mul_i32 s43, s42, s42"); a("s_lshl_b32 s43, s43, 5"); a("s_add_u32 s42, s42, s43")
        a("s_add_u32 s42, s42, 0x2000")
        a(f"s_lshl_b32 s43, s{S_G}, 3"); a(f"s_add_u32 s43, s43, s{S_X}")
        a("s_and_b32 s41, s43, 1"); a("s_lshl_b32 s41, s41, 4"); a("s_lshl_b32 s42, s42, s41")
        a("s_lshr_b32 s43, s43, 1"); a("s_lshl_b32 s43, s43, 2"); a("s_add_u32 s43, s43, 128")
        a("v_mov_b32 v8, s42"); a("v_mov_b32 v1, 0")
        a("s_mov_b64 exec, 1")
        a("buffer_atomic_add v8, v1, s[48:51], s43 offen")
        a("s_mov_b64 exec, -1")
        a.label("L_noxcc")
    a("v_lshrrev_b32 v1, 4, v0"); a("v_and_b32 v2, 15, v0"); a("v_lshlrev_b32 v3, 1, v1")
    a("v_xor_b32 v2, v2, v3"); a("v_lshlrev_b32 v2, 4, v2"); a("v_lshl_add_u32 v4, v1, 8, v2")
    a("v_xor_b32 v5, 128, v4")
    wo_prep(a)
    kv_pos(a, 43, 'v')
    if OPT.get('tlbwarm', 0):
        a(f"s_lshl_b32 s{SO}, s{S_G}, 7"); a(f"s_add_u32 s{SO}, s{SO}, s{S_H}"); a(f"s_lshl_b32 s{SO}, s{SO}, 13")
        a("v_lshlrev_b32 v11, 18, v0")
        a("s_mov_b64 exec, 15")
        a(f"buffer_load_dword v10, v11, s[{SRD}:{SRD+3}], s{SO} offen nt")
        a("s_mov_b64 exec, -1")
    a("s_barrier")
    if OPT.get('kearly', 0): a("s_barrier")
    stamp(a, 1)
    def issue():
        a(f"s_lshl_b32 s{SO}, s{S_G}, 7"); a(f"s_add_u32 s{SO}, s{SO}, s{S_H}"); a(f"s_lshl_b32 s{SO}, s{SO}, 13")
        for w in range(4):
            for hf in range(2):
                a(f"s_mov_b32 m0, {L_V + w*8192 + hf*4096}"); a("s_nop 0")
                for t4 in range(4):
                    t = hf * 4 + t4
                    dma(a, 4 + ((t >> 1) & 1), SRD, SO, off=t4 * 1024, nt=bool(OPT['v_nt']), fl=FL('kvfl'))
                a(f"s_add_u32 s{SO}, s{SO}, {4096 if hf == 0 else 32*8192 - 4096}")
    kv_loop(a, "v", issue)
    if OPT.get('vearly', 0): a("s_waitcnt vmcnt(0)")
    stamp(a, 7)
    loader_tail(a, 3)

V_XA = [4, 8]; V_WA = [12, 248]
V_A = [16, 32]; V_B = [48, 52]; V_ACC = 64
V_QF = 128; V_KF = 160; V_S = 192; V_VF = 208; V_PF = 240; V_OF = 128
V_KA = 56; V_VA = 60; V_CLW = 61; V_NONCE = 62
SC_SCALE = 0.08838834764831845 * 1.4426950408889634

def gemm1_addrs(a):
    a("v_and_b32 v1, 31, v0"); a("v_lshrrev_b32 v2, 5, v0"); a("v_bfe_u32 v3, v0, 1, 3")
    a("v_xor_b32 v2, v2, v3"); a("v_lshlrev_b32 v2, 4, v2"); a("v_lshl_add_u32 v2, v1, 7, v2")
    a(f"s_lshl_b32 s40, s{S_WAVE}, 12"); a("s_add_u32 s40, s40, 16384")
    a("v_add_u32 v2, s40, v2")
    for ks in range(4):
        a(f"v_xor_b32 v{V_XA[0]+ks}, {32*ks}, v2"); a(f"v_add_u32 v{V_XA[1]+ks}, 65536, v{V_XA[0]+ks}")
    a("v_bfe_u32 v1, v0, 2, 2"); a("v_lshrrev_b32 v2, 5, v0"); a("v_lshl_add_u32 v2, v2, 3, v1")
    a("v_lshlrev_b32 v2, 8, v2"); a("v_and_b32 v3, 1, v0"); a("v_lshl_add_u32 v2, v3, 5, v2")
    a("v_bfe_u32 v3, v0, 4, 1"); a("v_lshl_add_u32 v2, v3, 4, v2")
    a("v_bfe_u32 v3, v0, 1, 1"); a("v_lshl_add_u32 v2, v3, 3, v2")
    a("v_lshl_add_u32 v2, v1, 6, v2")
    for dt in range(4):
        a(f"v_xor_b32 v{V_WA[0]+dt}, {64*dt}, v2"); a(f"v_add_u32 v{V_WA[1]+dt}, 65536, v{V_WA[0]+dt}")

def attn_addrs(a):
    a("v_and_b32 v1, 15, v0"); a("v_lshrrev_b32 v2, 4, v0"); a("v_xor_b32 v2, v2, v1")
    a("v_lshlrev_b32 v2, 4, v2"); a("v_lshrrev_b32 v3, 2, v1"); a("v_lshl_add_u32 v2, v3, 11, v2")
    a("v_and_b32 v3, 3, v1"); a("v_lshl_add_u32 v2, v3, 8, v2")
    a(f"s_lshl_b32 s40, s{S_WAVE}, 13"); a(f"s_add_u32 s40, s40, {L_K}")
    a("v_add_u32 v2, s40, v2")
    for st in range(4): a(f"v_xor_b32 v{V_KA+st}, {64*st}, v2")
    a("v_lshrrev_b32 v1, 4, v0"); a("v_bfe_u32 v3, v0, 2, 2"); a("v_lshl_add_u32 v2, v1, 3, v3")
    a("v_lshlrev_b32 v2, 8, v2"); a("v_and_b32 v1, 1, v1"); a("v_lshl_add_u32 v3, v1, 2, v3")
    a("v_lshl_add_u32 v2, v3, 5, v2"); a("v_and_b32 v3, 3, v0"); a("v_lshl_add_u32 v2, v3, 3, v2")
    a(f"s_lshl_b32 s40, s{S_WAVE}, 13"); a(f"s_add_u32 s40, s40, {L_V}")
    a(f"v_add_u32 v{V_VA}, s40, v2")

def g1_reads(n):
    i, ks = divmod(n, 4)
    slot = i % 3; st = n & 1; hs = 1 if slot == 2 else 0; so = (slot & 1) * 32768 if slot < 2 else 0
    r = [f"ds_read_b128 {vr(V_B[st],4)}, v{V_XA[hs]+ks} offset:{so}"]
    for dt in range(4):
        base = V_A[st] + 4 * dt
        off = so + ks * 4096
        r.append(f"ds_read_b64_tr_b16 {vr(base,2)}, v{V_WA[hs]+dt} offset:{off}")
        r.append(f"ds_read_b64_tr_b16 {vr(base+2,2)}, v{V_WA[hs]+dt} offset:{off+1024}")
    return r

def gemm1(a):
    NS = NCH * 4
    kv_pos(a, 43, 'k')
    a("s_barrier")
    if OPT.get('kearly', 0): a("s_barrier")
    bx(a, -1, "c")
    a("s_barrier")
    stamp(a, 1)
    for r in g1_reads(0): a(r)
    for n in range(NS):
        i, ks = divmod(n, 4); st = n & 1
        nxt = g1_reads(n + 1) if n + 1 < NS else []
        def mf(dt):
            c = "0" if n == 0 else vr(V_ACC + 16 * dt, 16)
            a(f"v_mfma_f32_32x32x16_bf16 {vr(V_ACC+16*dt,16)}, {vr(V_A[st]+4*dt,4)}, {vr(V_B[st],4)}, {c}")
        if ks == 3:
            for dt in range(4):
                a(f"s_waitcnt lgkmcnt({[6,4,2,0][dt]})")
                if dt == 3 and nxt:
                    bx(a, i, "c")
                    a("s_barrier")
                    for r in nxt[:5]: a(r)
                mf(dt)
            for r in nxt[5:]: a(r)
        else:
            first_after_boundary = (ks == 0 and n > 0)
            for dt in range(4):
                a(f"s_waitcnt lgkmcnt({[6,7,8,9][dt]})")
                mf(dt)
                if dt < 3:
                    for r in nxt[3*dt:3*dt+3]: a(r)
        if n == 33 and OPT.get('nonce_in', 1): get_nonce(a)
        if n == 24:
            a(f"buffer_load_dwordx2 {vr(V_NONCE,2)}, v1, s[36:39], 0 offen sc1")
            if OPT['fast']:
                a(f"buffer_load_dword v{V_CLW}, v1, s[36:39], s40 offen sc1")
                a(f"buffer_load_dword v2, v1, s[44:47], s42 offen sc1")

def attention(a):
    VE = OPT.get('vearly', 0)
    a("s_barrier")
    stamp(a, 3)
    for ai in range(2):
        for st in range(4):
            a(f"ds_read_b128 {vr(V_KF+(ai*4+st)*4,4)}, v{V_KA+st} offset:{ai*1024}")
    def vreads(T0, T1):
        for T in range(T0, T1):
            if T: a(f"v_xor_b32 v1, {32*T}, v{V_VA}")
            ad = "v1" if T else f"v{V_VA}"
            a(f"ds_read_b64_tr_b16 {vr(V_VF+4*T,2)}, {ad}")
            a(f"ds_read_b64_tr_b16 {vr(V_VF+4*T+2,2)}, {ad} offset:1024")
    for dt in range(4):
        for i in range(8):
            a(f"v_cvt_pk_bf16_f32 v{V_QF+8*dt+i}, v{V_ACC+16*dt+2*i}, v{V_ACC+16*dt+2*i+1}")
        if VE and dt == 1:
            a("s_waitcnt lgkmcnt(0)"); vreads(0, 4)
    a("s_nop 1")
    for dt in range(4):
        for i in range(4):
            a(f"v_permlane16_swap_b32 v{V_QF+8*dt+i}, v{V_QF+8*dt+4+i}")
    if VE:
        a("s_waitcnt lgkmcnt(4)"); vreads(4, 8)
    else:
        a("s_waitcnt lgkmcnt(0)")
    for st in range(4):
        for ai in range(2):
            for qt in range(2):
                d = vr(V_S + (ai*2+qt)*4, 4)
                c = "0" if st == 0 else d
                a(f"v_mfma_f32_16x16x32_bf16 {d}, {vr(V_KF+(ai*4+st)*4,4)}, {vr(V_QF+8*st+4*qt,4)}, {c}")
    if VE:
        a("s_waitcnt lgkmcnt(0)")
    def S(ai, qt, v): return V_S + (ai*2+qt)*4 + v
    M = [48, 49]; T_ = [50, 51]; SUM = [52, 53]
    a("s_nop 7")
    for qt in range(2): a(f"v_max3_f32 v{M[qt]}, v{S(0,qt,0)}, v{S(0,qt,1)}, v{S(0,qt,2)}")
    for qt in range(2): a(f"v_max3_f32 v{M[qt]}, v{M[qt]}, v{S(0,qt,3)}, v{S(1,qt,0)}")
    for qt in range(2): a(f"v_max3_f32 v{M[qt]}, v{M[qt]}, v{S(1,qt,1)}, v{S(1,qt,2)}")
    for qt in range(2): a(f"v_max_f32 v{M[qt]}, v{M[qt]}, v{S(1,qt,3)}")
    def xlane(regs, tmps, op):
        for sw in ("v_permlane16_swap_b32", "v_permlane32_swap_b32"):
            for qt in range(2): a(f"v_mov_b32 v{tmps[qt]}, v{regs[qt]}")
            a("s_nop 0")
            for qt in range(2): a(f"{sw} v{tmps[qt]}, v{regs[qt]}")
            a("s_nop 0")
            for qt in range(2): a(f"{op} v{regs[qt]}, v{regs[qt]}, v{tmps[qt]}")
    xlane(M, T_, "v_max_f32")
    a(f"s_mov_b32 s41, {f32hex(SC_SCALE)}")
    for qt in range(2): a(f"v_mul_f32 v{M[qt]}, s41, v{M[qt]}")
    for ai in range(2):
        for v in range(4):
            for qt in range(2): a(f"v_fma_f32 v{S(ai,qt,v)}, v{S(ai,qt,v)}, s41, -v{M[qt]}")
    for ai in range(2):
        for v in range(4):
            for qt in range(2): a(f"v_exp_f32 v{S(ai,qt,v)}, v{S(ai,qt,v)}")
    a("s_nop 0")
    for qt in range(2): a(f"v_add_f32 v{SUM[qt]}, v{S(0,qt,0)}, v{S(0,qt,1)}")
    for (ai, v) in [(0,2),(0,3),(1,0),(1,1),(1,2),(1,3)]:
        for qt in range(2): a(f"v_add_f32 v{SUM[qt]}, v{SUM[qt]}, v{S(ai,qt,v)}")
    xlane(SUM, T_, "v_add_f32")
    for qt in range(2): a(f"v_rcp_f32 v{SUM[qt]}, v{SUM[qt]}")
    a("s_nop 0")
    for ai in range(2):
        for v in range(4):
            for qt in range(2): a(f"v_mul_f32 v{S(ai,qt,v)}, v{S(ai,qt,v)}, v{SUM[qt]}")
    for qt in range(2):
        for ai in range(2):
            for h2 in range(2):
                a(f"v_cvt_pk_bf16_f32 v{V_PF+4*qt+2*ai+h2}, v{S(ai,qt,2*h2)}, v{S(ai,qt,2*h2+1)}")
    stamp(a, 4)
    if VE:
        a("s_nop 0")
    else:
        a("s_barrier")
        vreads(0, 6); a("s_waitcnt lgkmcnt(4)"); vreads(6, 8)
        a("s_waitcnt lgkmcnt(0)")
        a("s_barrier")
    def pv(T):
        for qt in range(2):
            a(f"v_mfma_f32_16x16x32_bf16 {vr(V_ACC+(T*2+qt)*4,4)}, {vr(V_VF+4*T,4)}, {vr(V_PF+4*qt,4)}, 0")
    def pack(p):
        for qt in range(2):
            for e in range(2):
                T = 2*p + e
                for h2 in range(2):
                    src = V_ACC + (T*2+qt)*4 + 2*h2
                    a(f"v_cvt_pk_bf16_f32 v{V_OF+(2*p+qt)*4+2*e+h2}, v{src}, v{src+1}")
    if OPT.get('ostin', 1):
        o_store(a)
        a("s_nop 0")
        for T in range(6): pv(T)
        pack(0); pv(6); a(OSTORES[0]); a(OSTORES[1]); pv(7)
        pack(1); a(OSTORES[2]); a(OSTORES[3])
        if not OPT.get('b12late', 1): a("s_barrier")
        else: a("s_nop 0")
        pack(2); a(OSTORES[4]); a(OSTORES[5])
        a("s_nop 1")
        pack(3); a(OSTORES[6]); a(OSTORES[7])
        if OPT.get('b12late', 1) and OPT.get('flagpos', 3) >= 0: a("s_barrier")
    else:
        for T in range(8): pv(T)
        if VE: a("s_barrier")
        a("s_nop 7")
        for p in range(4): pack(p)

V2_ACC = 16
V2_A = [88, 108]
V2_AD = [4, 5, 6, 12]
BUF = [160, 192, 224]

def p2_areads(slot, p, half, buf=None):
    r = []
    ad = V2_AD[slot]
    taus = range(0, 5) if half == 0 else range(5, 9)
    if buf is None: buf = half
    for k, tau in enumerate(taus):
        off = p * 32 * 288 + 32 * tau
        base = V2_A[buf] + 4 * k
        r.append(f"ds_read_b64_tr_b16 {vr(base,2)}, v{ad} offset:{off}")
        r.append(f"ds_read_b64_tr_b16 {vr(base+2,2)}, v{ad} offset:{off+16*288}")
    return r

def p2_bloads(a, slot, breg):
    for x in bload_list(slot, breg)[0]: a(x)
    for f in range(8):
        a(f"buffer_load_dwordx4 {vr(breg+4*f,4)}, v7, s[32:35], s{46 + f//4} offen offset:{(f%4)*1024} sc1")

S_NON = 52
S_FAST = 54

def get_nonce(a):
    a("s_waitcnt vmcnt(0)")
    a("v_mov_b32 v9, 0")
    a("s_mov_b32 s50, 0")
    a.label("L_nonce_chk")
    a(f"v_readfirstlane_b32 s{S_NON}, v{V_NONCE}"); a(f"v_readfirstlane_b32 s{S_NON+1}, v{V_NONCE+1}")
    a("s_nop 0")
    a(f"s_cmp_lg_u32 s{S_NON}, 0"); a("s_cbranch_scc1 L_nonce_ok")
    a(f"buffer_load_dwordx2 {vr(V_NONCE,2)}, v9, s[36:39], 0 offen sc1")
    a("s_add_u32 s50, s50, 1"); a("s_waitcnt vmcnt(0)")
    a(f"s_cmp_lt_u32 s50, {OPT['spin_max']}"); a("s_cbranch_scc1 L_nonce_chk")
    a.label("L_nonce_ok")
    a(f"s_mov_b32 s{S_FAST}, 0")
    if OPT['fast']:
        a(f"v_readfirstlane_b32 s55, v{V_CLW}")
        a(f"s_and_b32 s56, s{S_X}, 1"); a("s_lshl_b32 s56, s56, 4"); a("s_lshr_b32 s55, s55, s56")
        a("s_and_b32 s56, s55, 31")
        a("s_bfe_u32 s57, s55, 0x80005")
        a("s_bfe_u32 s55, s55, 0x3000d")
        a("s_mul_i32 s56, s56, s56"); a("s_lshl_b32 s57, s57, 2")
        a("s_cmp_eq_u32 s56, s57"); a(f"s_cselect_b32 s{S_FAST}, 1, 0")
        a("s_cmp_eq_u32 s55, 4"); a(f"s_cselect_b32 s{S_FAST}, s{S_FAST}, 0")
        if OPT['fast'] == 2: a(f"s_mov_b32 s{S_FAST}, 0")

def poll(a, tag, voff, soff, sleep=0):
    a("s_mov_b32 s50, 0")
    a.label(f"L_poll_{tag}")
    if sleep: a(f"s_sleep {sleep}")
    a(f"buffer_load_dwordx2 v[10:11], v{voff}, s[32:35], s{soff} offen sc1")
    a("s_add_u32 s50, s50, 1"); a("s_waitcnt vmcnt(0)")
    a(f"v_cmp_eq_u64 vcc, v[10:11], s[{S_NON}:{S_NON+1}]")
    a(f"s_cmp_ge_u32 s50, {OPT['spin_max']}"); a(f"s_cbranch_scc1 L_poll_{tag}_done")
    a("s_cmp_eq_u64 vcc, -1"); a(f"s_cbranch_scc0 L_poll_{tag}")
    a.label(f"L_poll_{tag}_done")

def flag_store(a, soff, mode):
    a(f"v_mov_b32 v10, s{S_NON}"); a(f"v_mov_b32 v11, s{S_NON+1}")
    a("s_mov_b64 exec, 1")
    if mode == 'dyn':
        a(f"s_cmp_eq_u32 s{S_FAST}, 0"); a("s_cbranch_scc1 L_flag_slow")
        a(f"buffer_store_dwordx2 v[10:11], v9, s[32:35], s{soff} offen")
        a("s_branch L_flag_join")
        a.label("L_flag_slow")
        a(f"buffer_store_dwordx2 v[10:11], v9, s[32:35], s{soff} offen sc1")
        a.label("L_flag_join")
    else:
        a(f"buffer_store_dwordx2 v[10:11], v9, s[32:35], s{soff} offen sc1")
    a("s_mov_b64 exec, -1")

def o_store(a):
    srd(a, 32, P_WS, SZ_WS_USED)
    a("v_lshlrev_b32 v7, 4, v0")
    if OPT.get('spread', 0):
        a(f"s_lshl_b32 s40, s{S_G}, 5"); a(f"s_add_u32 s40, s40, s{S_H}"); a("s_lshl_b32 s40, s40, 20")
        a(f"s_lshl_b32 s41, s{S_WAVE}, 13"); a("s_add_u32 s40, s40, s41"); a("s_add_u32 s41, s40, 4096")
    else:
        a(f"s_lshl_b32 s40, s{S_G}, 5"); a(f"s_add_u32 s40, s40, s{S_H}"); a("s_lshl_b32 s40, s40, 2")
        a(f"s_add_u32 s40, s40, s{S_WAVE}"); a("s_lshl_b32 s40, s40, 13"); a("s_add_u32 s41, s40, 4096")
    global OSTORES
    OSTORES = [f"buffer_store_dwordx4 {vr(V_OF+4*f,4)}, v7, s[32:35], s{40 + f//4} offen offset:{(f%4)*1024} sc1" for f in range(8)]
    a("v_lshrrev_b32 v2, 4, v0"); a("v_bfe_u32 v3, v0, 2, 2"); a("v_lshl_add_u32 v2, v2, 2, v3")
    a("v_mul_u32_u24 v2, 288, v2"); a("v_and_b32 v3, 3, v0")
    a(f"v_lshl_add_u32 v{V2_AD[0]}, v3, 3, v2")
    for sl in range(1, 4): a(f"v_add_u32 v{V2_AD[sl]}, {sl*W_SLOT}, v{V2_AD[0]}")
    a(f"s_lshl_b32 s44, s{S_G}, 5"); a(f"s_lshl_b32 s45, s{S_X}, 2"); a("s_add_u32 s44, s44, s45")
    a(f"s_lshl_b32 s48, s{S_G}, 3"); a(f"s_add_u32 s48, s48, s{S_X}"); a("s_lshl_b32 s48, s48, 2")
    if OPT.get('spread', 0):
        a(f"s_add_u32 s48, s48, s{S_WAVE}"); a("s_lshl_b32 s48, s48, 20"); a(f"s_add_u32 s48, s48, {0x40000}")
    else:
        a(f"s_add_u32 s48, s48, s{S_WAVE}"); a("s_lshl_b32 s48, s48, 7"); a(f"s_add_u32 s48, s48, {WS_F}")
    a(f"s_lshl_b32 s49, s{S_J}, 3"); a("s_add_u32 s49, s49, s48")
    a("v_and_b32 v8, 3, v0"); a("v_lshlrev_b32 v8, 3, v8")

def bload_list(slot, breg):
    if OPT.get('spread', 0):
        setup = [f"s_add_u32 s45, s{S_J}, {slot}", "s_and_b32 s45, s45, 3", "s_add_u32 s45, s45, s44",
                 "s_lshl_b32 s45, s45, 20", f"s_lshl_b32 s46, s{S_WAVE}, 13",
                 "s_add_u32 s46, s46, s45", "s_add_u32 s47, s46, 4096"]
    else:
        setup = [f"s_add_u32 s45, s{S_J}, {slot}", "s_and_b32 s45, s45, 3", "s_add_u32 s45, s45, s44",
                 "s_lshl_b32 s45, s45, 2", f"s_add_u32 s45, s45, s{S_WAVE}",
                 "s_lshl_b32 s46, s45, 13", "s_add_u32 s47, s46, 4096"]
    loads = [f"buffer_load_dwordx4 {vr(breg+4*f,4)}, v7, s[32:35], s{46 + f//4} offen offset:{(f%4)*1024} sc1" for f in range(8)]
    return setup, loads

def p2_run(a, hs, n0, n1, hooks_pre=None, hooks_mid=None, inject=None, spread=None):
    hooks_pre = hooks_pre or {}; hooks_mid = hooks_mid or {}; inject = inject or {}; spread = spread or {}
    for n in range(n0, n1):
        (s, p, hf) = hs[n]
        breg = V_OF if s == 0 else BUF[s - 1]
        nxt = p2_areads(*hs[n+1], buf=(n+1) & 1) if n + 1 < n1 else []
        taus = list(range(0, 5)) if hf == 0 else list(range(5, 9))
        nown = 2 * len(taus)
        nm = nown
        plan = [0] * nm
        for t in range(len(nxt)): plan[t % nm] += 1
        issued = 0; m = 0
        inj = list(inject.get(n, []))
        spr = list(spread.get(n, []))
        per = -(-len(spr) // nm) if spr else 0
        if n in hooks_pre: hooks_pre[n]()
        for k, tau in enumerate(taus):
            a(f"s_waitcnt lgkmcnt({nown - 2 * (k + 1) + issued})")
            for qt in range(2):
                d = vr(V2_ACC + (tau*2+qt)*4, 4)
                c = "0" if (s == 0 and p == 0) else d
                a(f"v_mfma_f32_16x16x32_bf16 {d}, {vr(V2_A[n & 1]+4*k,4)}, {vr(breg+(2*p+qt)*4,4)}, {c}")
                if m == 0 and n in hooks_mid: hooks_mid[n]()
                if nxt:
                    for r in nxt[issued:issued+plan[m]]: a(r)
                    issued = min(len(nxt), issued + plan[m])
                for _ in range(per):
                    if spr: a(spr.pop(0))
                m += 1
                if k >= len(taus) - 1 and inj: a(inj.pop(0))
        while inj: a(inj.pop(0))
        while spr: a(spr.pop(0))

def d_prep(a):
    a("v_bfe_u32 v13, v0, 1, 3"); a("v_mul_u32_u24 v13, 9216, v13")
    a("v_lshrrev_b32 v14, 4, v0"); a("v_lshlrev_b32 v14, 1, v14"); a("v_and_b32 v15, 1, v0")
    a("v_add_u32 v14, v14, v15"); a("v_lshl_add_u32 v13, v14, 4, v13")
    a(f"s_lshl_b32 s58, s{S_G}, 2"); a(f"s_add_u32 s58, s58, s{S_J}"); a("s_lshl_b32 s58, s58, 2")
    a(f"s_add_u32 s58, s58, s{S_WAVE}")
    if OPT.get('spread', 0):
        a("s_lshl_b32 s59, s58, 21"); a(f"s_add_u32 s59, s59, {(1<<20) + 0x20000}")
    else:
        a("s_mul_i32 s59, s58, 73728"); a(f"s_add_u32 s59, s59, {WS_D}")
    a(f"s_mul_i32 s40, s{S_X}, 1152"); a("s_add_u32 s40, s40, s59")

def d_pack_store(tau, G=160):
    r = []
    for qt in range(2):
        for h2 in range(2):
            src = V2_ACC + (tau*2+qt)*4 + 2*h2
            r.append(f"v_cvt_pk_bf16_f32 v{G+4*tau+2*qt+h2}, v{src}, v{src+1}")
    r.append(f"buffer_store_dwordx4 {vr(G+4*tau,4)}, v13, s[32:35], s40 offen offset:{128*tau} sc1")
    return r

def tail(a):
    hs = [(s, p, hf) for s in range(2) for p in range(4) for hf in range(2)]
    hs += [(2, p, 0) for p in range(4)] + [(3, p, 0) for p in range(4)]
    hs += [(2, p, 1) for p in range(4)] + [(3, p, 1) for p in range(4)]
    if not OPT.get('ostin', 1):
        o_store(a)
        for x in OSTORES: a(x)
    stamp(a, 6)
    if OPT.get('flagpos', 3) >= 0:
        for r in p2_areads(*hs[0], buf=0): a(r)
    def exch():
        a("s_waitcnt vmcnt(0)")
        flag_store(a, 49, 'dyn')
        stamp(a, 7)
        if OPT.get('poll1', 1):
            a(f"s_add_u32 s56, s{S_J}, 1"); a("s_and_b32 s56, s56, 3")
            a("s_mov_b32 s50, 0")
            a.label("L_poll_o1")
            if OPT.get('o_sleep', 0): a(f"s_sleep {OPT['o_sleep']}")
            a("buffer_load_dwordx2 v[10:11], v8, s[32:35], s48 offen sc1")
            a("s_add_u32 s50, s50, 1"); a("s_waitcnt vmcnt(0)")
            a(f"v_cmp_eq_u64 vcc, v[10:11], s[{S_NON}:{S_NON+1}]")
            a(f"s_cmp_ge_u32 s50, {OPT['spin_max']}"); a("s_cbranch_scc1 L_poll_o1_done")
            a("s_bitcmp1_b32 vcc_lo, s56"); a("s_cbranch_scc0 L_poll_o1")
            a.label("L_poll_o1_done")
            a("s_cmp_eq_u64 vcc, -1"); a("s_cselect_b32 s55, 1, 0")
        else:
            poll(a, "o", 8, 48, sleep=OPT.get('o_sleep', 0))
        stamp(a, 8)
        p2_bloads(a, 1, BUF[0])
        a("s_nop 3")
    if OPT.get('flagpos', 3) >= 0:
        p2_run(a, hs, 0, 8, hooks_pre={OPT.get('flagpos', 4): exch})
    else:
        exch()
        a("s_barrier")
        for r in p2_areads(*hs[0], buf=0): a(r)
        p2_run(a, hs, 0, 8)
    a("s_barrier")
    tstamp(a, 1)
    if OPT.get('poll1', 1):
        a("s_cmp_eq_u32 s55, 1"); a("s_cbranch_scc1 L_poll_o_skip")
        poll(a, "o", 8, 48, sleep=OPT.get('o_sleep', 0))
        a.label("L_poll_o_skip")
    for r in p2_areads(*hs[8], buf=0): a(r)
    su2, l2 = bload_list(2, BUF[1]); su3, l3 = bload_list(3, BUF[2])
    for x in su2: a(x)
    d_prep(a)
    inj = {}
    for t in range(4):
        inj[8 + t] = list(l2[2*t:2*t+2])
        inj[12 + t] = list(l3[2*t:2*t+2])
    inj[11] = inj[11] + su3
    spr = {25: d_pack_store(0) + d_pack_store(1), 26: d_pack_store(2) + d_pack_store(3), 27: d_pack_store(4)}
    W = lambda n: (lambda: a(f"s_waitcnt vmcnt({n})"))
    def WC(n, idx):
        def f():
            if OPT.get('cyc', 0): cstamp(a, idx)
            if n is not None: a(f"s_waitcnt vmcnt({n})")
        return f
    p2_run(a, hs, 8, 32,
           hooks_pre={8: WC(6, 3), 10: W(8), 12: W(10), 14: W(12), 16: WC(8, 4), 20: W(0), 24: WC(None, 13)},
           hooks_mid={15: lambda: a("s_barrier"), 19: lambda: a("s_barrier")},
           inject=inj, spread=spr)
    if OPT.get('cyc', 0): cstamp(a, 1)
    stamp(a, 9)
    reduce_inkernel(a)

def store_partials_f32(a):
    a("s_nop 7")
    a(f"s_lshl_b32 s45, s{S_X}, 3"); a(f"s_add_u32 s45, s45, s{S_G}"); a("s_lshl_b32 s45, s45, 2")
    a(f"s_add_u32 s45, s45, s{S_J}"); a("s_lshl_b32 s45, s45, 2"); a(f"s_add_u32 s45, s45, s{S_WAVE}")
    a(f"s_mul_i32 s45, s45, {18*1024}"); a(f"s_add_u32 s45, s45, {WS_P}")
    for u in range(18):
        if u and u % 4 == 0: a("s_add_u32 s45, s45, 4096")
        a(f"buffer_store_dwordx4 {vr(V2_ACC+4*u,4)}, v7, s[32:35], s45 offen offset:{(u%4)*1024}")

def store_partials_bf16(a):
    G = 160
    a(f"s_lshl_b32 s44, s{S_G}, 2"); a(f"s_add_u32 s44, s44, s{S_J}"); a("s_lshl_b32 s44, s44, 2")
    a(f"s_add_u32 s44, s44, s{S_WAVE}")
    a(f"s_lshl_b32 s45, s{S_X}, 7"); a("s_add_u32 s45, s45, s44"); a("s_mul_i32 s45, s45, 9216")
    a(f"s_add_u32 s45, s45, {WS_P}"); a("s_add_u32 s46, s45, 4096"); a("s_add_u32 s47, s45, 8192")
    sc = " sc1" if OPT.get('psc1', 1) else ""
    for tau in range(9):
        for qt in range(2):
            for h2 in range(2):
                src = V2_ACC + (tau*2+qt)*4 + 2*h2
                a(f"v_cvt_pk_bf16_f32 v{G+4*tau+2*qt+h2}, v{src}, v{src+1}")
        a(f"buffer_store_dwordx4 {vr(G+4*tau,4)}, v7, s[32:35], s{45 + tau//4} offen offset:{(tau%4)*1024}{sc}")

def kernel3b(a):
    name = "mha_p3_kernel"
    a(".p2align 8"); a(f".globl {name}"); a(f".type {name},@function"); a.label(name)
    a("s_cmp_ge_u32 s2, 288"); a(f"s_cbranch_scc1 L_end_{name}")
    a("s_load_dwordx2 s[26:27], s[0:1], 40"); a("s_load_dwordx2 s[30:31], s[0:1], 56")
    a("v_lshrrev_b32 v1, 6, v0"); a("v_and_b32 v0, 63, v0")
    a("s_lshl_b32 s5, s2, 2")
    a(f"v_readfirstlane_b32 s{S_WAVE}, v1")
    a("v_lshlrev_b32 v1, 4, v0")
    a(f"s_add_u32 s5, s5, s{S_WAVE}")
    a("s_mul_i32 s45, s5, 1024"); a(f"s_add_u32 s45, s45, {WS_P}")
    a("s_mul_hi_u32 s6, s5, 477218589")
    a("s_mul_i32 s7, s6, 9"); a("s_sub_u32 s7, s5, s7")
    a("s_waitcnt lgkmcnt(0)")
    srd(a, 32, P_WS, SZ_WS_USED); srd(a, 36, P_OUT, SZ_OUT)
    for x in range(8):
        a(f"buffer_load_dwordx4 {vr(8+4*x,4)}, v1, s[32:35], s45 offen")
        if x < 7: a(f"s_add_u32 s45, s45, {128*9216}")
    a("v_and_b32 v2, 15, v0"); a("v_mul_u32_u24 v2, 1152, v2"); a("v_lshrrev_b32 v3, 4, v0")
    a("v_lshl_add_u32 v2, v3, 3, v2")
    a("s_lshr_b32 s46, s6, 4"); a("s_lshl_b32 s46, s46, 2"); a("s_and_b32 s47, s6, 3"); a("s_add_u32 s46, s46, s47")
    a(f"s_mul_i32 s46, s46, {32*1152}")
    a("s_lshr_b32 s47, s6, 2"); a("s_and_b32 s47, s47, 3"); a("s_mul_i32 s47, s47, 288"); a("s_add_u32 s46, s46, s47")
    a("s_lshl_b32 s47, s7, 5"); a("s_add_u32 s46, s46, s47"); a(f"s_add_u32 s47, s46, {16*1152}")
    for x in range(8):
        a(f"s_waitcnt vmcnt({7-x})")
        for d in range(4):
            src = 8 + 4*x + d
            if x == 0:
                a(f"v_lshlrev_b32 v{40+2*d}, 16, v{src}"); a(f"v_and_b32 v{40+2*d+1}, 0xffff0000, v{src}")
            else:
                a(f"v_lshlrev_b32 v48, 16, v{src}"); a(f"v_and_b32 v49, 0xffff0000, v{src}")
                a(f"v_pk_add_f32 v[{40+2*d}:{40+2*d+1}], v[{40+2*d}:{40+2*d+1}], v[48:49]")
    for d in range(4): a(f"v_cvt_pk_bf16_f32 v{50+d}, v{40+2*d}, v{40+2*d+1}")
    a("buffer_store_dwordx2 v[50:51], v2, s[36:39], s46 offen")
    a("buffer_store_dwordx2 v[52:53], v2, s[36:39], s47 offen")
    a.label(f"L_end_{name}")
    a("s_endpgm")

def reduce_inkernel(a):
    RA = 196; RB = 88
    a("s_nop 7")
    for tau in range(5, 9):
        for x in d_pack_store(tau): a(x)
    if OPT.get('spread', 0):
        a("s_lshl_b32 s48, s58, 21"); a(f"s_add_u32 s48, s48, {0x50000}")
    else:
        a("s_lshl_b32 s48, s58, 8"); a(f"s_add_u32 s48, s48, {WS_F2}")
    a(f"s_lshl_b32 s49, s{S_X}, 3"); a("s_add_u32 s49, s49, s48")
    a("s_waitcnt vmcnt(4)")
    flag_store(a, 49, 'sc1')
    a("s_add_u32 s49, s49, 128")
    a("v_and_b32 v8, 7, v0"); a("v_lshlrev_b32 v8, 3, v8")
    a("v_and_b32 v14, 1, v0"); a("v_mul_u32_u24 v14, 1152, v14")
    a("v_bfe_u32 v15, v0, 1, 2"); a("v_lshl_add_u32 v14, v15, 3, v14")
    a("v_lshrrev_b32 v12, 3, v0"); a("v_lshl_add_u32 v14, v12, 5, v14")
    a("v_add_u32 v15, 160, v14")
    srd(a, 36, P_OUT, SZ_OUT)
    a(f"s_lshl_b32 s56, s{S_G}, 2"); a(f"s_add_u32 s56, s56, s{S_WAVE}"); a("s_lshl_b32 s56, s56, 5")
    a(f"s_lshl_b32 s57, s{S_X}, 1"); a("s_add_u32 s56, s56, s57"); a("s_mul_i32 s56, s56, 1152")
    a(f"s_mul_i32 s57, s{S_J}, 288"); a("s_add_u32 s56, s56, s57")
    a(f"s_add_u32 s57, s56, {16*1152}")
    a(f"s_mul_i32 s47, s{S_X}, 9216"); a("s_add_u32 s47, s47, s59")
    a("s_waitcnt vmcnt(1)")
    flag_store(a, 49, 'sc1')
    stamp(a, 10)
    poll(a, "da", 8, 48, sleep=OPT.get('d_sleep', 0))
    a("s_mov_b32 s46, s47")
    a("s_mov_b32 exec_hi, 0xff")
    for sx in range(8):
        a(f"buffer_load_dwordx4 {vr(RA+4*sx,4)}, v7, s[32:35], s46 offen sc1")
        if sx < 7: a("s_add_u32 s46, s46, 1152")
    a("s_mov_b64 exec, -1")
    a("s_add_u32 s48, s48, 128")
    poll(a, "db", 8, 48, sleep=OPT.get('d_sleep2', 1))
    stamp(a, 11)
    a("s_mov_b64 exec, 0xffffffff")
    for sx in range(8):
        a(f"buffer_load_dwordx4 {vr(RB+4*sx,4)}, v7, s[32:35], s47 offen offset:640 sc1")
        if sx < 7: a("s_add_u32 s47, s47, 1152")
    a("s_mov_b64 exec, -1")
    AA = 16; AB = 24; T = 32
    def summ(R, A, waits):
        for sx in range(8):
            if waits: a(f"s_waitcnt vmcnt({7 - sx})")
            for d in range(4):
                src = R + 4*sx + d
                if sx == 0:
                    a(f"v_lshlrev_b32 v{A+2*d}, 16, v{src}"); a(f"v_and_b32 v{A+2*d+1}, 0xffff0000, v{src}")
                else:
                    t = T + 2 * (d & 1)
                    a(f"v_lshlrev_b32 v{t}, 16, v{src}"); a(f"v_and_b32 v{t+1}, 0xffff0000, v{src}")
                    a(f"v_pk_add_f32 v[{A+2*d}:{A+2*d+1}], v[{A+2*d}:{A+2*d+1}], v[{t}:{t+1}]")
    fl = {0: "", 1: " sc1", 2: " nt", 3: " sc0 sc1"}[OPT.get('outfl', 0)]
    summ(RA, AA, False)
    for d in range(4): a(f"v_cvt_pk_bf16_f32 v{36+d}, v{AA+2*d}, v{AA+2*d+1}")
    summ(RB, AB, True)
    a("s_mov_b32 exec_hi, 0xff")
    a(f"buffer_store_dwordx2 v[36:37], v14, s[36:39], s56 offen{fl}")
    a(f"buffer_store_dwordx2 v[38:39], v14, s[36:39], s57 offen{fl}")
    a("s_mov_b64 exec, -1")
    for d in range(4): a(f"v_cvt_pk_bf16_f32 v{40+d}, v{AB+2*d}, v{AB+2*d+1}")
    a("s_mov_b64 exec, 0xffffffff")
    a(f"buffer_store_dwordx2 v[40:41], v15, s[36:39], s56 offen{fl}")
    a(f"buffer_store_dwordx2 v[42:43], v15, s[36:39], s57 offen{fl}")
    a("s_mov_b64 exec, -1")

def KNAME():
    return "standalone__mha_block_cached__near_ridge_kernel" if OPT['dk'] else "mha_a_kernel"

def kernelA(a):
    global KIDX
    KIDX = 0
    name = KNAME()
    prologue(a, name)
    stamp_init(a); stamp(a, 0); cstamp(a, 14)
    if OPT['stamps'] and OPT.get('entrystamp', 0): a("s_mov_b64 s[86:87], s[96:97]")
    a(f"s_cmp_lt_u32 s{S_WAVE}, 4"); a("s_cbranch_scc1 L_a_compute")
    a(f"s_cmp_eq_u32 s{S_WAVE}, 5"); a("s_cbranch_scc1 L_a_ldx")
    a(f"s_cmp_eq_u32 s{S_WAVE}, 6"); a("s_cbranch_scc1 L_a_ldk")
    a(f"s_cmp_eq_u32 s{S_WAVE}, 7"); a("s_cbranch_scc1 L_a_ldv")
    loader_ring(a, 'wq'); stamp_flush(a); a("s_endpgm")
    a.label("L_a_ldx"); loader_ring(a, 'x'); stamp_flush(a); a("s_endpgm")
    a.label("L_a_ldv"); loader_v(a); stamp_flush(a); a("s_endpgm")
    a.label("L_a_ldk"); loader_k(a); stamp_flush(a); a("s_endpgm")
    a.label("L_a_compute")
    CUR['compute'] = True
    gemm1_addrs(a); attn_addrs(a)
    if OPT.get('cprio', 0): a(f"s_setprio {OPT['cprio']}")
    kwait(a)
    srd(a, 36, P_DBG, 256)
    a("v_mov_b32 v1, 0")
    a(f"s_lshl_b32 s40, s{S_G}, 3"); a(f"s_add_u32 s40, s40, s{S_X}"); a("s_lshr_b32 s40, s40, 1")
    a("s_lshl_b32 s40, s40, 2"); a("s_add_u32 s40, s40, 128")
    srd(a, 44, P_WS, SZ_WS_USED)
    a(f"s_lshl_b32 s42, s{S_G}, 3"); a(f"s_add_u32 s42, s42, s{S_X}"); a("s_lshl_b32 s42, s42, 2")
    if OPT.get('spread', 0):
        a(f"s_add_u32 s42, s42, s{S_WAVE}"); a("s_lshl_b32 s42, s42, 20"); a(f"s_add_u32 s42, s42, {0x40000}")
    else:
        a(f"s_add_u32 s42, s42, s{S_WAVE}"); a("s_lshl_b32 s42, s42, 7"); a(f"s_add_u32 s42, s42, {WS_F}")
    gemm1(a)
    if not OPT.get('nonce_in', 1): get_nonce(a)
    stamp(a, 2)
    attention(a); stamp(a, 5)
    tail(a)
    if OPT['stamps']: a("s_waitcnt vmcnt(0)")
    stamp(a, 12); cstamp(a, 15); stamp_flush(a)
    if OPT.get('waitx', 0):
        a("s_waitcnt vmcnt(0)")
        a(f"s_add_u32 s62, s{S_NON}, {OPT['waitx']}")
        a("s_mov_b32 s63, 0")
        a.label("L_wx_spin")
        a("s_memrealtime s[64:65]"); a("s_waitcnt lgkmcnt(0)")
        a("s_add_u32 s63, s63, 1"); a("s_cmp_gt_u32 s63, 100000"); a("s_cbranch_scc1 L_wx_done")
        a("s_sub_u32 s66, s62, s64"); a("s_cmp_gt_i32 s66, 0"); a("s_cbranch_scc1 L_wx_spin")
        a.label("L_wx_done")
    if OPT.get('probe', -1) >= 0:
        a("s_waitcnt vmcnt(0)")
        a(f"s_sub_u32 s62, s60, s{S_NON}"); a(f"s_mul_i32 s62, s62, {OPT.get('probek', 8)}")
        a("s_memrealtime s[64:65]"); a("s_waitcnt lgkmcnt(0)")
        a("s_add_u32 s62, s62, s64")
        a("s_mov_b32 s63, 0")
        a.label("L_probe_spin")
        a("s_memrealtime s[64:65]"); a("s_waitcnt lgkmcnt(0)")
        a("s_add_u32 s63, s63, 1"); a("s_cmp_gt_u32 s63, 100000"); a("s_cbranch_scc1 L_probe_done")
        a("s_sub_u32 s66, s62, s64"); a("s_cmp_gt_i32 s66, 0"); a("s_cbranch_scc1 L_probe_spin")
        a.label("L_probe_done")
    a.label(f"L_end_{name}")
    a("s_endpgm")

def kernel3(a):
    global KIDX
    KIDX = 1
    name = "mha_p3_kernel"
    a(".p2align 8"); a(f".globl {name}"); a(f".type {name},@function"); a.label(name)
    a("s_cmp_ge_u32 s2, 256"); a(f"s_cbranch_scc1 L_end_{name}")
    a("s_load_dwordx16 s[16:31], s[0:1], 0")
    a("v_lshrrev_b32 v1, 6, v0"); a("v_and_b32 v0, 63, v0")
    a("s_lshr_b32 s5, s2, 1")
    a("s_and_b32 s6, s2, 1")
    a(f"v_readfirstlane_b32 s{S_WAVE}, v1")
    a("s_mul_i32 s6, s6, 9")
    a("s_waitcnt lgkmcnt(0)")
    stamp_init(a); stamp(a, 0); cstamp(a, 14)
    a(f"s_add_u32 s6, s6, s{S_WAVE}")
    srd(a, 32, P_WS, SZ_WS_USED); srd(a, 36, P_OUT, SZ_OUT)
    a("v_lshlrev_b32 v1, 4, v0")
    a("s_mul_i32 s45, s5, 18"); a("s_add_u32 s45, s45, s6"); a("s_lshl_b32 s45, s45, 10")
    a(f"s_add_u32 s45, s45, {WS_P}")
    for x in range(8):
        a(f"buffer_load_dwordx4 {vr(8+4*x,4)}, v1, s[32:35], s45 offen")
        if x < 7: a(f"s_add_u32 s45, s45, {128*18*1024}")
    a("v_and_b32 v2, 15, v0"); a("v_mul_u32_u24 v2, 1152, v2"); a("v_lshrrev_b32 v3, 4, v0")
    a("v_lshl_add_u32 v2, v3, 3, v2")
    a("s_lshr_b32 s46, s5, 4"); a("s_lshl_b32 s46, s46, 2"); a("s_and_b32 s47, s5, 3"); a("s_add_u32 s46, s46, s47")
    a(f"s_mul_i32 s46, s46, {32*1152}")
    a("s_lshr_b32 s47, s5, 2"); a("s_and_b32 s47, s47, 3"); a("s_mul_i32 s47, s47, 288"); a("s_add_u32 s46, s46, s47")
    a("s_and_b32 s47, s6, 1"); a(f"s_mul_i32 s47, s47, {16*1152}"); a("s_add_u32 s46, s46, s47")
    a("s_lshr_b32 s47, s6, 1"); a("s_lshl_b32 s47, s47, 5"); a("s_add_u32 s46, s46, s47")
    a("s_waitcnt vmcnt(0)")
    for v in range(4):
        for x in range(0, 8, 2): a(f"v_add_f32 v{8+4*x+v}, v{8+4*x+v}, v{12+4*x+v}")
    for v in range(4):
        a(f"v_add_f32 v{8+v}, v{8+v}, v{16+v}"); a(f"v_add_f32 v{24+v}, v{24+v}, v{32+v}")
    for v in range(4): a(f"v_add_f32 v{8+v}, v{8+v}, v{24+v}")
    a("v_cvt_pk_bf16_f32 v8, v8, v9"); a("v_cvt_pk_bf16_f32 v9, v10, v11")
    a("buffer_store_dwordx2 v[8:9], v2, s[36:39], s46 offen")
    if OPT['stamps']:
        a("s_waitcnt vmcnt(0)")
        stamp(a, 10); cstamp(a, 15)
        a(f"s_cmp_ge_u32 s{S_WAVE}, 8"); a("s_cbranch_scc1 L_end_mha_p3_kernel")
        stamp_flush(a, 44)
    a.label(f"L_end_{name}")
    a("s_endpgm")

def descriptor(a, name, vgpr, sgpr=102):
    a(f".amdhsa_kernel {name}")
    a(f".amdhsa_next_free_vgpr {vgpr}"); a(f".amdhsa_next_free_sgpr {sgpr}"); a(f".amdhsa_accum_offset {vgpr}")
    a(".amdhsa_group_segment_fixed_size 0"); a(".amdhsa_kernarg_size 64")
    a(".amdhsa_user_sgpr_count 2"); a(".amdhsa_user_sgpr_kernarg_segment_ptr 1")
    a(".amdhsa_system_sgpr_workgroup_id_x 1"); a(".end_amdhsa_kernel")

def main():
    out = sys.argv[1]
    for arg in sys.argv[2:]:
        if arg == "--stamps": OPT['stamps'] = True
        elif "=" in arg:
            k, v = arg.lstrip("-").split("="); OPT[k] = int(v)
    a = Asm()
    hdr = """; Fused MHA block for gfx950 (MI355X): out = softmax((x Wq) K^T / sqrt(128)) V  Wo
;
; Kernarg (8 pointers): x, k_cache, v_cache, wq, wo, out, debug, ws.
"""
    if OPT['dk']:
        hdr += "; @launch grid=(256,1,1) block=(512,1,1) lds=163840\n"
    else:
        hdr += "; @launch kernel=mha_a_kernel grid=(256,1,1) block=(512,1,1) lds=163840\n"
        if OPT.get('k3bf', 0): hdr += "; @launch kernel=mha_p3_kernel grid=(288,1,1) block=(256,1,1) lds=0\n"
        else: hdr += "; @launch kernel=mha_p3_kernel grid=(256,1,1) block=(576,1,1) lds=0\n"
    a('.amdgcn_target "amdgcn-amd-amdhsa--gfx950"'); a(".text")
    kernelA(a)
    if not OPT['dk']:
        if OPT.get('k3bf', 0): kernel3b(a)
        else: kernel3(a)
    a('.section .rodata,"a"'); a(".p2align 6"); descriptor(a, KNAME(), 256)
    if not OPT['dk']:
        a(".p2align 6"); descriptor(a, "mha_p3_kernel", 56)
    open(out, "w").write(hdr + a.text())

if __name__ == "__main__": main()
```

```python
import sys, struct

class Asm:
    def __init__(self): self.l = []
    def __call__(self, s=""):
        for x in s.split("\n"):
            x = x.strip()
            self.l.append(x if (x.endswith(":") or x.startswith(".")) else "  " + x)
    def label(self, s): self.l.append(s + ":")
    def text(self): return "\n".join(self.l) + "\n"

def vr(b, n=1): return f"v{b}" if n == 1 else f"v[{b}:{b+n-1}]"
def f32hex(x): return "0x%08x" % struct.unpack("<I", struct.pack("<f", x))[0]

P_X, P_K, P_V, P_WQ, P_WO, P_OUT, P_DBG, P_WS = 16, 18, 20, 22, 24, 26, 28, 30
SZ_X, SZ_KV, SZ_W, SZ_OUT = 1179648, 8388608, 4718592, 1179648
WS_O = 0
WS_P = 8 << 20
WS_F = 28 << 20
WS_F2 = (28 << 20) + (1 << 19)
WS_D = 8 << 20
WS_STAMP = 32 << 20
SZ_WS_USED = 256 << 20
S_WAVE, S_X, S_R, S_J, S_G, S_H = 3, 4, 5, 6, 9, 10

OPT = dict(stamps=False, fast=1, spin_max=2000000, kvmode=21, flagpos=3, wqt_nt=0, xonce=1, vearly=1, woearly=1, d_sleep=1, d_sleep2=0, o_sleep=0, k_nt=1, v_nt=1, wot_pos=8, dk=1)

def srd(a, base, ptr, size, add=0):
    if add:
        a(f"s_add_u32 s{base}, s{ptr}, {add}"); a(f"s_addc_u32 s{base+1}, s{ptr+1}, 0")
        a(f"s_and_b32 s{base+1}, s{base+1}, 0xffff")
    else:
        a(f"s_mov_b32 s{base}, s{ptr}"); a(f"s_and_b32 s{base+1}, s{ptr+1}, 0xffff")
    a(f"s_mov_b32 s{base+2}, {size}"); a(f"s_mov_b32 s{base+3}, 0x00020000")

def srd_ws(a, base):
    off = OPT.get('wsbase', 0) << 20
    srd(a, base, P_WS, (256 << 20) - off, add=off)

def prologue(a, name, nwg=256):
    a(".p2align 8"); a(f".globl {name}"); a(f".type {name},@function"); a.label(name)
    a(f"s_cmp_ge_u32 s2, {nwg}"); a(f"s_cbranch_scc1 L_end_{name}")
    if OPT['stamps'] and OPT.get('entrystamp', 0): a("s_memrealtime s[96:97]")
    a("s_load_dwordx16 s[16:31], s[0:1], 0")
    a("v_lshrrev_b32 v1, 6, v0"); a("v_and_b32 v0, 63, v0")
    a(f"s_and_b32 s{S_X}, s2, 7"); a(f"s_lshr_b32 s{S_R}, s2, 3")
    a(f"v_readfirstlane_b32 s{S_WAVE}, v1")
    a(f"s_and_b32 s{S_J}, s{S_R}, 3"); a(f"s_lshr_b32 s{S_G}, s{S_R}, 2")
    a(f"s_lshl_b32 s{S_H}, s{S_X}, 2"); a(f"s_add_u32 s{S_H}, s{S_H}, s{S_J}")
    if OPT['stamps'] or not OPT.get('latewait', 1): a("s_waitcnt lgkmcnt(0)")

def kwait(a):
    if not OPT['stamps'] and OPT.get('latewait', 1): a("s_waitcnt lgkmcnt(0)")

KIDX = 0
CUR = {}
def tstamp(a, idx):
    if OPT.get('tailstamps', 0): stamp(a, idx, force=True)
def stamp(a, idx, force=False):
    if OPT.get('probe', -1) == idx and CUR.get('compute') and (force or not (OPT.get('tailstamps', 0) and idx in (1,2,3,4,13))):
        a("s_memrealtime s[60:61]"); a("s_waitcnt lgkmcnt(0)")
        return
    if not OPT['stamps']: return
    if OPT.get('tailstamps', 0) and not force and idx in (1,2,3,4,13) and CUR.get('compute'): return
    a(f"s_memrealtime s[{60+2*idx}:{61+2*idx}]"); a("s_waitcnt lgkmcnt(0)")
def cstamp(a, idx):
    if not OPT['stamps']: return
    a(f"s_memtime s[{60+2*idx}:{61+2*idx}]"); a("s_waitcnt lgkmcnt(0)")
def stamp_init(a):
    if not OPT['stamps']: return
    for i in range(16): a(f"s_mov_b64 s[{60+2*i}:{61+2*i}], 0")
def stamp_flush(a, vb=250):
    if not OPT['stamps']: return
    srd(a, 92, P_WS, 256*16*16*8, add=WS_STAMP + KIDX*256*8*16*8)
    a("s_lshl_b32 s96, s2, 3"); a(f"s_add_u32 s96, s96, s{S_WAVE}"); a("s_lshl_b32 s96, s96, 7")
    a(f"v_mov_b32 v{vb+2}, 0")
    for i in range(16):
        a(f"v_mov_b32 v{vb}, s{60+2*i}"); a(f"v_mov_b32 v{vb+1}, s{61+2*i}")
        a(f"buffer_store_dwordx2 v[{vb}:{vb+1}], v{vb+2}, s[92:95], s96 offen offset:{i*8}")
        a("s_nop 1")
    a("s_waitcnt vmcnt(0)")

L_K = 98304; L_V = 131072; NCH = 9
W_SLOT = 36864

def dma(a, voff, srdb, soff, off=0, nt=False, fl=""):
    a(f"buffer_load_dwordx4 v{voff}, s[{srdb}:{srdb+3}], s{soff} offen" + (f" offset:{off}" if off else "") + (" nt" if nt else "") + fl + " lds")
def FL(key):
    return {0: "", 1: " sc1", 2: " sc0", 3: " sc0 sc1"}[OPT.get(key, 0)]

V_WOV = 16
def wo_prep(a):
    srd(a, 52, P_WO, SZ_W)
    for t in range(9):
        a(f"v_add_u32 v1, {64*t}, v0")
        a("v_mul_u32_u24 v2, 3641, v1")
        a("v_lshrrev_b32 v2, 16, v2")
        a("v_mul_u32_u24 v3, 18, v2")
        a("v_sub_u32 v3, v1, v3")
        a("v_lshlrev_b32 v3, 4, v3")
        a("v_mul_u32_u24 v2, 1152, v2")
        a(f"v_add_u32 v{V_WOV+t}, v2, v3")
    a(f"s_mul_i32 s56, s{S_J}, 288")
def wo_issue(a, slot, q0, nq):
    a(f"s_add_u32 s57, s{S_J}, {slot}"); a("s_and_b32 s57, s57, 3")
    a(f"s_lshl_b32 s58, s{S_X}, 2"); a("s_add_u32 s57, s57, s58")
    a(f"s_mul_i32 s57, s57, {128*1152}"); a("s_add_u32 s57, s57, s56")
    if q0: a(f"s_add_u32 s57, s57, {q0*32*1152}")
    a(f"s_mov_b32 m0, {slot*W_SLOT + q0*32*288}"); a("s_nop 0")
    for blk in range(nq):
        for t in range(9):
            dma(a, V_WOV + t, 52, 57, nt=bool(OPT.get('wo_nt', 0)), fl=FL('wofl'))
            if not (blk == nq - 1 and t == 8):
                a("s_add_u32 m0, m0, 1024")
                if t == 8: a(f"s_add_u32 s57, s57, {32*1152}")
                else: a("s_nop 0")

def loader_tail(a, role):
    a("s_barrier")
    stamp(a, 8)
    if OPT.get('s1late', 0):
        if role < 2:
            wo_issue(a, 0, 2 * role, 2)
            a("s_waitcnt vmcnt(0)")
        stamp(a, 9)
        a("s_barrier")
        for sl in (1, 2, 3): wo_issue(a, sl, role, 1)
        stamp(a, 10)
        a("s_waitcnt vmcnt(18)")
        a("s_barrier")
    else:
        if role < 2:
            wo_issue(a, 0, 2 * role, 2); wo_issue(a, 1, 2 * role, 2)
        stamp(a, 9)
        if role < 2: a("s_waitcnt vmcnt(18)")
        a("s_barrier")
        wo_issue(a, 2, role, 1)
        wo_issue(a, 3, role, 1)
        stamp(a, 10)
        if role < 2: a("s_waitcnt vmcnt(18)")
        a("s_barrier")
    a("s_waitcnt vmcnt(9)")
    a("s_barrier")
    a("s_waitcnt vmcnt(0)")
    stamp(a, 11)
    a("s_barrier")

def loader_ring(a, which):
    SRD = 32; SO = 40
    if which == 'wq':
        a("v_lshrrev_b32 v1, 4, v0"); a("v_and_b32 v2, 15, v0")
        a("v_lshlrev_b32 v3, 2, v1"); a("v_xor_b32 v3, v3, v2"); a("v_lshlrev_b32 v3, 4, v3")
        a("v_lshlrev_b32 v4, 13, v1"); a("v_add_u32 v4, v4, v3")
        a(f"s_lshl_b32 s{SO}, s{S_H}, 8")
        def issue(kc):
            a(f"s_mov_b32 m0, {(kc%3)*32768}")
            for t in range(16):
                if t == 0: a("s_nop 0")
                dma(a, 4, SRD, SO, nt=bool(OPT.get('wq_nt', 0)), fl=FL('ringfl'))
                a(f"s_add_u32 s{SO}, s{SO}, 32768")
                if t < 15:
                    a("s_add_u32 m0, m0, 1024"); a("s_nop 0")
    else:
        a("v_lshrrev_b32 v1, 3, v0"); a("v_mul_u32_u24 v1, 1152, v1")
        a("v_and_b32 v2, 7, v0"); a("v_lshrrev_b32 v3, 4, v0"); a("v_xor_b32 v2, v2, v3")
        a("v_lshlrev_b32 v4, 4, v2"); a("v_add_u32 v4, v4, v1")
        a("v_xor_b32 v2, 4, v2"); a("v_lshlrev_b32 v5, 4, v2"); a("v_add_u32 v5, v5, v1")
        a(f"s_mul_i32 s{SO+1}, s{S_G}, 147456")
        def issue(kc):
            a(f"s_mov_b32 m0, {(kc%3)*32768 + 16384}")
            a(f"s_add_u32 s{SO}, s{SO+1}, {kc*128}")
            for T in range(16):
                dma(a, 4 + (T & 1), SRD, SO, nt=bool(OPT.get('x_nt', 0)), fl=FL('ringfl'))
                if T < 15:
                    a("s_add_u32 m0, m0, 1024"); a(f"s_add_u32 s{SO}, s{SO}, 9216")
    kv_pos(a, 43, 'k')
    if which == 'wq':
        a("v_lshrrev_b32 v8, 1, v0"); a("v_and_b32 v9, 1, v0")
        a("v_lshlrev_b32 v8, 13, v8"); a("v_lshl_add_u32 v8, v9, 7, v8")
        a(f"s_lshl_b32 s46, s{S_G}, {5+13}"); a(f"s_lshl_b32 s47, s{S_H}, 8"); a("s_add_u32 s46, s46, s47")
        def touch(part):
            nt = " nt" if OPT.get('wqt_nt', 0) else ""
            if part == 0:
                a(f"buffer_load_dword v10, v8, s[{SRD}:{SRD+3}], s46 offen{nt}")
            else:
                a(f"s_add_u32 s46, s46, {256*8192}")
                a(f"buffer_load_dword v10, v8, s[{SRD}:{SRD+3}], s46 offen{nt}")
                a(f"s_lshl_b32 s46, s{S_G}, {3+13}"); a("s_add_u32 s46, s46, s47"); a(f"s_add_u32 s46, s46, {512*8192}")
                a("s_mov_b64 exec, 0xffff")
                a(f"buffer_load_dword v10, v8, s[{SRD}:{SRD+3}], s46 offen{nt}")
                a("s_mov_b64 exec, -1")
        NT1 = 2
    else:
        if OPT.get('xonce', 0):
            a("v_mul_u32_u24 v8, 7282, v0"); a("v_lshrrev_b32 v8, 16, v8")
            a("v_mul_u32_u24 v9, 9, v8"); a("v_sub_u32 v9, v0, v9")
            a("v_mul_u32_u24 v8, 1152, v8"); a("v_lshl_add_u32 v8, v9, 7, v8")
            a(f"s_mul_i32 s46, s{S_G}, 147456"); a(f"s_mul_i32 s47, s{S_H}, {4*1152}"); a("s_add_u32 s46, s46, s47")
            def touch(part):
                if part == 0:
                    a("s_mov_b32 exec_lo, -1"); a("s_mov_b32 exec_hi, 15")
                    a(f"buffer_load_dword v10, v8, s[{SRD}:{SRD+3}], s46 offen")
                    a("s_mov_b64 exec, -1")
            NT1 = 0
        else:
            a("v_and_b32 v9, 31, v0"); a("v_mul_u32_u24 v9, 1152, v9")
            a("v_lshrrev_b32 v8, 5, v0"); a("v_lshl_add_u32 v8, v8, 7, v9")
            a(f"s_mul_i32 s46, s{S_G}, 147456"); a(f"s_mul_i32 s47, s{S_J}, {32*1152}"); a("s_add_u32 s46, s46, s47")
            def touch(part):
                if part == 0:
                    a(f"buffer_load_dword v10, v8, s[{SRD}:{SRD+3}], s46 offen")
                else:
                    for t in range(1, 4):
                        a(f"buffer_load_dword v10, v8, s[{SRD}:{SRD+3}], s46 offen offset:{256*t}")
                    a("s_mov_b64 exec, 0xffffffff")
                    a(f"buffer_load_dword v10, v9, s[{SRD}:{SRD+3}], s46 offen offset:1024")
                    a("s_mov_b64 exec, -1")
            NT1 = 4
    if OPT.get('lprio', 0): a(f"s_setprio {OPT['lprio']}")
    kwait(a)
    srd(a, SRD, P_WQ if which == 'wq' else P_X, SZ_W if which == 'wq' else SZ_X)
    if OPT.get('tall', 0):
        touch(0); touch(1); NT1 = 0
        issue(0); stamp(a, 1)
    else:
        touch(0)
        issue(0); stamp(a, 1)
        touch(1)
    a("s_barrier")
    if OPT.get('kearly', 0): a("s_barrier")
    bx(a, -1, "r" + which)
    issue(1)
    stamp(a, 2)
    a(f"s_waitcnt vmcnt({16 + NT1})")
    stamp(a, 3)
    a("s_barrier")
    bx(a, 0, "r" + which)
    issue(2)
    for i in range(1, NCH):
        last_issued = min(i + 1, NCH - 1)
        a(f"s_waitcnt vmcnt({(last_issued - i) * 16})")
        a("s_barrier")
        if which == 'wq' and i in (1,2,3,4): stamp(a, {1:4,2:5,3:6,4:12}[i])
        if which == 'x' and i in (5,6,7,8): stamp(a, {5:4,6:5,7:6,8:12}[i])
        if i < 8: bx(a, i, "r" + which)
        if i + 2 < NCH: issue(i + 2)
        if i == 7: wo_prep(a)
    stamp(a, 7)
    loader_tail(a, 0 if which == 'wq' else 1)

def kv_pos(a, sdst, which):
    m = OPT['kvmode']
    if m == 10:
        tab = [-1, 2, 4, 7]
    elif m == 11: tab = [7, 7, 7, 7]
    elif m == 12: tab = [-1, -1, -1, -1]
    elif m == 13: tab = [1, 1, 6, 6]
    elif m == 14: tab = [-1, 1, 4, 7]
    elif m == 15: tab = [0, 3, 5, 7]
    elif m == 16: tab = [2, 7, 2, 7]
    elif m == 17: tab = [3, 5, 7, 7]
    elif m == 20: tab = [-1, 1, 3, 5]
    elif m == 21: tab = [-1, 2, 4, 6]
    elif m == 22: tab = [-1, -1, 3, 3]
    elif m == 23: tab = [-1, 0, 2, 4]
    elif m == 24: tab = [0, 2, 4, 6]
    elif m == 25: tab = [-1, -1, -1, -1]
    packed = sum(((p + 1) & 15) << (4 * k) for k, p in enumerate(tab))
    a(f"s_and_b32 s{sdst}, s{S_G}, 3"); a(f"s_lshl_b32 s{sdst}, s{sdst}, 2")
    a(f"s_lshr_b32 s{sdst}, {packed}, s{sdst}"); a(f"s_and_b32 s{sdst}, s{sdst}, 15")

def bx(a, p, tag):
    if p >= 6: return
    a(f"s_cmp_lg_u32 s43, {p+1}"); a(f"s_cbranch_scc1 L_bx_{tag}_{p+1}")
    a("s_barrier")
    a.label(f"L_bx_{tag}_{p+1}")

def kv_loop(a, tag, issue_fn, extra_fn=None, extra_pos=None):
    a("s_mov_b32 s59, 0")
    a.label(f"L_{tag}_loop")
    a("s_cmp_lg_u32 s59, s43"); a(f"s_cbranch_scc1 L_{tag}_skip")
    stamp(a, 3)
    issue_fn()
    stamp(a, 4)
    a(f"s_cmp_ge_u32 s59, 7"); a(f"s_cbranch_scc1 L_{tag}_skip")
    a("s_barrier")
    a.label(f"L_{tag}_skip")
    if extra_fn is not None:
        a(f"s_cmp_lg_u32 s59, {extra_pos}"); a(f"s_cbranch_scc1 L_{tag}_skip2")
        extra_fn()
        a.label(f"L_{tag}_skip2")
    a("s_barrier")
    a("s_add_u32 s59, s59, 1")
    a("s_cmp_le_u32 s59, 8"); a(f"s_cbranch_scc1 L_{tag}_loop")

def loader_k(a):
    SRD = 32; SO = 40
    kwait(a)
    srd(a, SRD, P_K, SZ_KV)
    a("v_lshrrev_b32 v1, 4, v0"); a("v_and_b32 v2, 15, v0"); a("v_xor_b32 v2, v2, v1")
    a("v_lshlrev_b32 v2, 4, v2"); a("v_lshl_add_u32 v4, v1, 8, v2")
    a("v_xor_b32 v5, 64, v4"); a("v_xor_b32 v6, 128, v4"); a("v_xor_b32 v7, 192, v4")
    wo_prep(a)
    a("v_and_b32 v8, 15, v0"); a("v_mul_u32_u24 v8, 1152, v8")
    a("v_lshrrev_b32 v9, 4, v0"); a("v_lshl_add_u32 v9, v9, 7, v8")
    kv_pos(a, 43, 'k')
    if OPT.get('wswarm', 1):
        srd_ws(a, 44); srd(a, 48, P_OUT, SZ_OUT)
        SPR = OPT.get('spread', 0)
        a(f"s_lshl_b32 s40, s{S_G}, 5"); a(f"s_add_u32 s40, s40, s{S_H}"); a(f"s_lshl_b32 s40, s40, {20 if SPR else 15}")
        a(f"s_lshl_b32 s41, s{S_G}, 2"); a(f"s_add_u32 s41, s41, s{S_J}"); a("s_lshl_b32 s41, s41, 2")
        if SPR:
            a("s_lshl_b32 s42, s41, 21"); a(f"s_add_u32 s42, s42, {(1<<20) + 0x20000}")
        else:
            a("s_mul_i32 s42, s41, 73728"); a(f"s_add_u32 s42, s42, {WS_D}")
        a(f"s_mul_i32 s45, s{S_X}, 1152") if False else None
        a(f"s_mul_i32 s58, s{S_X}, 1152"); a("s_add_u32 s42, s42, s58")
        if SPR:
            a("s_lshl_b32 s41, s41, 21"); a(f"s_add_u32 s41, s41, {0x50000}")
        else:
            a("s_lshl_b32 s41, s41, 8"); a(f"s_add_u32 s41, s41, {WS_F2}")
        a("v_mov_b32 v11, 0")
        a("s_mov_b64 exec, 1")
        a("buffer_load_dword v10, v11, s[44:47], s40 offen")
        a("buffer_load_dword v10, v11, s[44:47], s42 offen")
        a("buffer_load_dword v10, v11, s[44:47], s41 offen sc1")
        a(f"s_lshl_b32 s40, s{S_G}, 7"); a(f"s_lshl_b32 s41, s{S_X}, 1"); a("s_add_u32 s40, s40, s41"); a("s_mul_i32 s40, s40, 1152")
        a(f"s_mul_i32 s41, s{S_J}, 288"); a("s_add_u32 s40, s40, s41")
        a("buffer_load_dword v10, v11, s[48:51], s40 offen")
        a("s_mov_b64 exec, -1")
    if OPT.get('tlbwarm', 0):
        a(f"s_lshl_b32 s{SO}, s{S_G}, 7"); a(f"s_add_u32 s{SO}, s{SO}, s{S_H}"); a(f"s_lshl_b32 s{SO}, s{SO}, 13")
        a("v_lshlrev_b32 v11, 18, v0")
        a("s_mov_b64 exec, 15")
        a(f"buffer_load_dword v10, v11, s[{SRD}:{SRD+3}], s{SO} offen nt")
        a("s_mov_b64 exec, -1")
    a("s_barrier")
    stamp(a, 1)
    KE = OPT.get('kearly', 0)
    def issue(w0=None, w1=4):
        if w0 is None: w0 = KE
        a(f"s_lshl_b32 s{SO}, s{S_G}, 7"); a(f"s_add_u32 s{SO}, s{SO}, s{S_H}"); a(f"s_lshl_b32 s{SO}, s{SO}, 13")
        if w0: a(f"s_add_u32 s{SO}, s{SO}, {w0*32*8192}")
        for w in range(w0, w1):
            for hf in range(2):
                a(f"s_mov_b32 m0, {L_K + w*8192 + hf*4096}"); a("s_nop 0")
                for t4 in range(4):
                    t = hf * 4 + t4
                    dma(a, 4 + (t >> 1), SRD, SO, off=t4 * 1024, nt=bool(OPT['k_nt']), fl=FL('kvfl'))
                a(f"s_add_u32 s{SO}, s{SO}, {4096 if hf == 0 else 32*8192 - 4096}")
    if KE:
        issue(0, KE)
        a("s_barrier")
    def wotouch():
        a(f"s_lshl_b32 s{SO}, s{S_X}, 5"); a(f"s_add_u32 s{SO}, s{SO}, s{S_R}")
        a(f"s_mul_i32 s{SO}, s{SO}, {16*1152}")
        nt = " nt" if OPT.get('wot_nt', 0) else ""
        a(f"buffer_load_dword v10, v9, s[52:55], s{SO} offen{nt}")
        a(f"buffer_load_dword v10, v9, s[52:55], s{SO} offen offset:512{nt}")
        a("s_mov_b64 exec, 0xffff")
        a(f"buffer_load_dword v10, v8, s[52:55], s{SO} offen offset:1024{nt}")
        a("s_mov_b64 exec, -1")
    def wotouch0():
        a(f"s_lshl_b32 s{SO}, s{S_X}, 2"); a(f"s_add_u32 s{SO}, s{SO}, s{S_J}"); a(f"s_lshl_b32 s{SO}, s{SO}, 3")
        a(f"s_add_u32 s{SO}, s{SO}, s{S_G}"); a(f"s_mul_i32 s{SO}, s{SO}, {16*1152}")
        a(f"s_mul_i32 s{SO+1}, s{S_J}, 288"); a(f"s_and_b32 s{SO+1}, s{SO+1}, 0xffffff80"); a(f"s_add_u32 s{SO}, s{SO}, s{SO+1}")
        a("s_mov_b32 exec_lo, -1"); a("s_mov_b32 exec_hi, 0xffff")
        a(f"buffer_load_dword v10, v9, s[52:55], s{SO} offen" + (" nt" if OPT.get('wot_nt', 0) else ""))
        a("s_mov_b64 exec, -1")
    wm = OPT.get('wotmode', 3)
    if wm == 3:
        def both():
            wotouch0(); issue()
        kv_loop(a, "k", both, wotouch, OPT['wot_pos'])
        a("s_waitcnt vmcnt(3)")
    elif wm == 0:
        kv_loop(a, "k", issue, wotouch, OPT['wot_pos'])
        a("s_waitcnt vmcnt(3)")
    if wm in (1, 2):
        def both():
            if wm == 1: wotouch()
            issue()
            if wm == 2: wotouch()
        kv_loop(a, "k", both)
        a("s_waitcnt vmcnt(0)")
    stamp(a, 7)
    loader_tail(a, 2)

def loader_v(a):
    SRD = 32; SO = 40
    kwait(a)
    srd(a, SRD, P_V, SZ_KV)
    a("s_cmp_lg_u32 s2, 0"); a("s_cbranch_scc1 L_nononce")
    srd(a, 48, P_DBG, 256)
    a("s_memrealtime s[42:43]"); a("s_waitcnt lgkmcnt(0)")
    a("s_or_b32 s42, s42, 1")
    a("v_mov_b32 v8, s42"); a("v_mov_b32 v9, s43"); a("v_mov_b32 v1, 0")
    a("s_mov_b64 exec, 1")
    a("buffer_store_dwordx2 v[8:9], v1, s[48:51], 0 offen sc1")
    a("s_mov_b64 exec, -1")
    a.label("L_nononce")
    if OPT['fast']:
        srd(a, 48, P_DBG, 256)
        a("s_getreg_b32 s42, hwreg(HW_REG_XCC_ID)")
        a("s_and_b32 s42, s42, 15")
        a("s_cmp_ge_u32 s42, 8"); a("s_cbranch_scc1 L_noxcc")
        a("s_mul_i32 s43, s42, s42"); a("s_lshl_b32 s43, s43, 5"); a("s_add_u32 s42, s42, s43")
        a("s_add_u32 s42, s42, 0x2000")
        a(f"s_lshl_b32 s43, s{S_G}, 3"); a(f"s_add_u32 s43, s43, s{S_X}")
        a("s_and_b32 s41, s43, 1"); a("s_lshl_b32 s41, s41, 4"); a("s_lshl_b32 s42, s42, s41")
        a("s_lshr_b32 s43, s43, 1"); a("s_lshl_b32 s43, s43, 2"); a("s_add_u32 s43, s43, 128")
        a("v_mov_b32 v8, s42"); a("v_mov_b32 v1, 0")
        a("s_mov_b64 exec, 1")
        a("buffer_atomic_add v8, v1, s[48:51], s43 offen")
        a("s_mov_b64 exec, -1")
        a.label("L_noxcc")
    a("v_lshrrev_b32 v1, 4, v0"); a("v_and_b32 v2, 15, v0"); a("v_lshlrev_b32 v3, 1, v1")
    a("v_xor_b32 v2, v2, v3"); a("v_lshlrev_b32 v2, 4, v2"); a("v_lshl_add_u32 v4, v1, 8, v2")
    a("v_xor_b32 v5, 128, v4")
    wo_prep(a)
    kv_pos(a, 43, 'v')
    if OPT.get('tlbwarm', 0):
        a(f"s_lshl_b32 s{SO}, s{S_G}, 7"); a(f"s_add_u32 s{SO}, s{SO}, s{S_H}"); a(f"s_lshl_b32 s{SO}, s{SO}, 13")
        a("v_lshlrev_b32 v11, 18, v0")
        a("s_mov_b64 exec, 15")
        a(f"buffer_load_dword v10, v11, s[{SRD}:{SRD+3}], s{SO} offen nt")
        a("s_mov_b64 exec, -1")
    a("s_barrier")
    if OPT.get('kearly', 0): a("s_barrier")
    stamp(a, 1)
    def issue():
        a(f"s_lshl_b32 s{SO}, s{S_G}, 7"); a(f"s_add_u32 s{SO}, s{SO}, s{S_H}"); a(f"s_lshl_b32 s{SO}, s{SO}, 13")
        for w in range(4):
            for hf in range(2):
                a(f"s_mov_b32 m0, {L_V + w*8192 + hf*4096}"); a("s_nop 0")
                for t4 in range(4):
                    t = hf * 4 + t4
                    dma(a, 4 + ((t >> 1) & 1), SRD, SO, off=t4 * 1024, nt=bool(OPT['v_nt']), fl=FL('kvfl'))
                a(f"s_add_u32 s{SO}, s{SO}, {4096 if hf == 0 else 32*8192 - 4096}")
    kv_loop(a, "v", issue)
    if OPT.get('vearly', 0): a("s_waitcnt vmcnt(0)")
    stamp(a, 7)
    loader_tail(a, 3)

V_XA = [4, 8]; V_WA = [12, 248]
V_A = [16, 32]; V_B = [48, 52]; V_ACC = 64
V_QF = 128; V_KF = 160; V_S = 192; V_VF = 208; V_PF = 240; V_OF = 128
V_KA = 56; V_VA = 60; V_CLW = 61; V_NONCE = 62
SC_SCALE = 0.08838834764831845 * 1.4426950408889634

def gemm1_addrs(a):
    a("v_and_b32 v1, 31, v0"); a("v_lshrrev_b32 v2, 5, v0"); a("v_bfe_u32 v3, v0, 1, 3")
    a("v_xor_b32 v2, v2, v3"); a("v_lshlrev_b32 v2, 4, v2"); a("v_lshl_add_u32 v2, v1, 7, v2")
    a(f"s_lshl_b32 s40, s{S_WAVE}, 12"); a("s_add_u32 s40, s40, 16384")
    a("v_add_u32 v2, s40, v2")
    for ks in range(4):
        a(f"v_xor_b32 v{V_XA[0]+ks}, {32*ks}, v2"); a(f"v_add_u32 v{V_XA[1]+ks}, 65536, v{V_XA[0]+ks}")
    a("v_bfe_u32 v1, v0, 2, 2"); a("v_lshrrev_b32 v2, 5, v0"); a("v_lshl_add_u32 v2, v2, 3, v1")
    a("v_lshlrev_b32 v2, 8, v2"); a("v_and_b32 v3, 1, v0"); a("v_lshl_add_u32 v2, v3, 5, v2")
    a("v_bfe_u32 v3, v0, 4, 1"); a("v_lshl_add_u32 v2, v3, 4, v2")
    a("v_bfe_u32 v3, v0, 1, 1"); a("v_lshl_add_u32 v2, v3, 3, v2")
    a("v_lshl_add_u32 v2, v1, 6, v2")
    for dt in range(4):
        a(f"v_xor_b32 v{V_WA[0]+dt}, {64*dt}, v2"); a(f"v_add_u32 v{V_WA[1]+dt}, 65536, v{V_WA[0]+dt}")

def attn_addrs(a):
    a("v_and_b32 v1, 15, v0"); a("v_lshrrev_b32 v2, 4, v0"); a("v_xor_b32 v2, v2, v1")
    a("v_lshlrev_b32 v2, 4, v2"); a("v_lshrrev_b32 v3, 2, v1"); a("v_lshl_add_u32 v2, v3, 11, v2")
    a("v_and_b32 v3, 3, v1"); a("v_lshl_add_u32 v2, v3, 8, v2")
    a(f"s_lshl_b32 s40, s{S_WAVE}, 13"); a(f"s_add_u32 s40, s40, {L_K}")
    a("v_add_u32 v2, s40, v2")
    for st in range(4): a(f"v_xor_b32 v{V_KA+st}, {64*st}, v2")
    a("v_lshrrev_b32 v1, 4, v0"); a("v_bfe_u32 v3, v0, 2, 2"); a("v_lshl_add_u32 v2, v1, 3, v3")
    a("v_lshlrev_b32 v2, 8, v2"); a("v_and_b32 v1, 1, v1"); a("v_lshl_add_u32 v3, v1, 2, v3")
    a("v_lshl_add_u32 v2, v3, 5, v2"); a("v_and_b32 v3, 3, v0"); a("v_lshl_add_u32 v2, v3, 3, v2")
    a(f"s_lshl_b32 s40, s{S_WAVE}, 13"); a(f"s_add_u32 s40, s40, {L_V}")
    a(f"v_add_u32 v{V_VA}, s40, v2")

def g1_reads(n):
    i, ks = divmod(n, 4)
    slot = i % 3; st = n & 1; hs = 1 if slot == 2 else 0; so = (slot & 1) * 32768 if slot < 2 else 0
    r = [f"ds_read_b128 {vr(V_B[st],4)}, v{V_XA[hs]+ks} offset:{so}"]
    for dt in range(4):
        base = V_A[st] + 4 * dt
        off = so + ks * 4096
        r.append(f"ds_read_b64_tr_b16 {vr(base,2)}, v{V_WA[hs]+dt} offset:{off}")
        r.append(f"ds_read_b64_tr_b16 {vr(base+2,2)}, v{V_WA[hs]+dt} offset:{off+1024}")
    return r

def gemm1(a):
    NS = NCH * 4
    kv_pos(a, 43, 'k')
    a("s_barrier")
    if OPT.get('kearly', 0): a("s_barrier")
    bx(a, -1, "c")
    a("s_barrier")
    stamp(a, 1)
    for r in g1_reads(0): a(r)
    for n in range(NS):
        i, ks = divmod(n, 4); st = n & 1
        nxt = g1_reads(n + 1) if n + 1 < NS else []
        def mf(dt):
            c = "0" if n == 0 else vr(V_ACC + 16 * dt, 16)
            a(f"v_mfma_f32_32x32x16_bf16 {vr(V_ACC+16*dt,16)}, {vr(V_A[st]+4*dt,4)}, {vr(V_B[st],4)}, {c}")
        if ks == 3:
            for dt in range(4):
                a(f"s_waitcnt lgkmcnt({[6,4,2,0][dt]})")
                if dt == 3 and nxt:
                    bx(a, i, "c")
                    a("s_barrier")
                    for r in nxt[:5]: a(r)
                mf(dt)
            for r in nxt[5:]: a(r)
        else:
            first_after_boundary = (ks == 0 and n > 0)
            for dt in range(4):
                a(f"s_waitcnt lgkmcnt({[6,7,8,9][dt]})")
                mf(dt)
                if dt < 3:
                    for r in nxt[3*dt:3*dt+3]: a(r)
        if n == 33 and OPT.get('nonce_in', 1): get_nonce(a)
        if n == 24:
            a(f"buffer_load_dwordx2 {vr(V_NONCE,2)}, v1, s[36:39], 0 offen sc1")
            if OPT['fast']:
                a(f"buffer_load_dword v{V_CLW}, v1, s[36:39], s40 offen sc1")
                a(f"buffer_load_dword v2, v1, s[44:47], s42 offen sc1")

def attention(a):
    VE = OPT.get('vearly', 0)
    a("s_barrier")
    stamp(a, 3)
    for ai in range(2):
        for st in range(4):
            a(f"ds_read_b128 {vr(V_KF+(ai*4+st)*4,4)}, v{V_KA+st} offset:{ai*1024}")
    def vreads(T0, T1):
        for T in range(T0, T1):
            if T: a(f"v_xor_b32 v1, {32*T}, v{V_VA}")
            ad = "v1" if T else f"v{V_VA}"
            a(f"ds_read_b64_tr_b16 {vr(V_VF+4*T,2)}, {ad}")
            a(f"ds_read_b64_tr_b16 {vr(V_VF+4*T+2,2)}, {ad} offset:1024")
    for dt in range(4):
        for i in range(8):
            a(f"v_cvt_pk_bf16_f32 v{V_QF+8*dt+i}, v{V_ACC+16*dt+2*i}, v{V_ACC+16*dt+2*i+1}")
        if VE and dt == 1:
            a("s_waitcnt lgkmcnt(0)"); vreads(0, 4)
    a("s_nop 1")
    for dt in range(4):
        for i in range(4):
            a(f"v_permlane16_swap_b32 v{V_QF+8*dt+i}, v{V_QF+8*dt+4+i}")
    if VE:
        a("s_waitcnt lgkmcnt(4)"); vreads(4, 8)
    else:
        a("s_waitcnt lgkmcnt(0)")
    for st in range(4):
        for ai in range(2):
            for qt in range(2):
                d = vr(V_S + (ai*2+qt)*4, 4)
                c = "0" if st == 0 else d
                a(f"v_mfma_f32_16x16x32_bf16 {d}, {vr(V_KF+(ai*4+st)*4,4)}, {vr(V_QF+8*st+4*qt,4)}, {c}")
    if VE:
        a("s_waitcnt lgkmcnt(0)")
    def S(ai, qt, v): return V_S + (ai*2+qt)*4 + v
    M = [48, 49]; T_ = [50, 51]; SUM = [52, 53]
    a("s_nop 7")
    for qt in range(2): a(f"v_max3_f32 v{M[qt]}, v{S(0,qt,0)}, v{S(0,qt,1)}, v{S(0,qt,2)}")
    for qt in range(2): a(f"v_max3_f32 v{M[qt]}, v{M[qt]}, v{S(0,qt,3)}, v{S(1,qt,0)}")
    for qt in range(2): a(f"v_max3_f32 v{M[qt]}, v{M[qt]}, v{S(1,qt,1)}, v{S(1,qt,2)}")
    for qt in range(2): a(f"v_max_f32 v{M[qt]}, v{M[qt]}, v{S(1,qt,3)}")
    def xlane(regs, tmps, op):
        for sw in ("v_permlane16_swap_b32", "v_permlane32_swap_b32"):
            for qt in range(2): a(f"v_mov_b32 v{tmps[qt]}, v{regs[qt]}")
            a("s_nop 0")
            for qt in range(2): a(f"{sw} v{tmps[qt]}, v{regs[qt]}")
            a("s_nop 0")
            for qt in range(2): a(f"{op} v{regs[qt]}, v{regs[qt]}, v{tmps[qt]}")
    xlane(M, T_, "v_max_f32")
    a(f"s_mov_b32 s41, {f32hex(SC_SCALE)}")
    for qt in range(2): a(f"v_mul_f32 v{M[qt]}, s41, v{M[qt]}")
    for ai in range(2):
        for v in range(4):
            for qt in range(2): a(f"v_fma_f32 v{S(ai,qt,v)}, v{S(ai,qt,v)}, s41, -v{M[qt]}")
    for ai in range(2):
        for v in range(4):
            for qt in range(2): a(f"v_exp_f32 v{S(ai,qt,v)}, v{S(ai,qt,v)}")
    a("s_nop 0")
    for qt in range(2): a(f"v_add_f32 v{SUM[qt]}, v{S(0,qt,0)}, v{S(0,qt,1)}")
    for (ai, v) in [(0,2),(0,3),(1,0),(1,1),(1,2),(1,3)]:
        for qt in range(2): a(f"v_add_f32 v{SUM[qt]}, v{SUM[qt]}, v{S(ai,qt,v)}")
    xlane(SUM, T_, "v_add_f32")
    for qt in range(2): a(f"v_rcp_f32 v{SUM[qt]}, v{SUM[qt]}")
    a("s_nop 0")
    for ai in range(2):
        for v in range(4):
            for qt in range(2): a(f"v_mul_f32 v{S(ai,qt,v)}, v{S(ai,qt,v)}, v{SUM[qt]}")
    for qt in range(2):
        for ai in range(2):
            for h2 in range(2):
                a(f"v_cvt_pk_bf16_f32 v{V_PF+4*qt+2*ai+h2}, v{S(ai,qt,2*h2)}, v{S(ai,qt,2*h2+1)}")
    stamp(a, 4)
    if VE:
        a("s_nop 0")
    else:
        a("s_barrier")
        vreads(0, 6); a("s_waitcnt lgkmcnt(4)"); vreads(6, 8)
        a("s_waitcnt lgkmcnt(0)")
        a("s_barrier")
    def pv(T):
        for qt in range(2):
            a(f"v_mfma_f32_16x16x32_bf16 {vr(V_ACC+(T*2+qt)*4,4)}, {vr(V_VF+4*T,4)}, {vr(V_PF+4*qt,4)}, 0")
    def pack(p):
        for qt in range(2):
            for e in range(2):
                T = 2*p + e
                for h2 in range(2):
                    src = V_ACC + (T*2+qt)*4 + 2*h2
                    a(f"v_cvt_pk_bf16_f32 v{V_OF+(2*p+qt)*4+2*e+h2}, v{src}, v{src+1}")
    if OPT.get('ostin', 1):
        o_store(a)
        a("s_nop 0")
        for T in range(6): pv(T)
        pack(0); pv(6); a(OSTORES[0]); a(OSTORES[1]); pv(7)
        pack(1); a(OSTORES[2]); a(OSTORES[3])
        if not OPT.get('b12late', 1): a("s_barrier")
        else: a("s_nop 0")
        pack(2); a(OSTORES[4]); a(OSTORES[5])
        a("s_nop 1")
        pack(3); a(OSTORES[6]); a(OSTORES[7])
        if OPT.get('b12late', 1) and OPT.get('flagpos', 3) >= 0: a("s_barrier")
    else:
        for T in range(8): pv(T)
        if VE: a("s_barrier")
        a("s_nop 7")
        for p in range(4): pack(p)

V2_ACC = 16
V2_A = [88, 108]
V2_AD = [4, 5, 6, 12]
BUF = [160, 192, 224]

def p2_areads(slot, p, half, buf=None):
    r = []
    ad = V2_AD[slot]
    taus = range(0, 5) if half == 0 else range(5, 9)
    if buf is None: buf = half
    for k, tau in enumerate(taus):
        off = p * 32 * 288 + 32 * tau
        base = V2_A[buf] + 4 * k
        r.append(f"ds_read_b64_tr_b16 {vr(base,2)}, v{ad} offset:{off}")
        r.append(f"ds_read_b64_tr_b16 {vr(base+2,2)}, v{ad} offset:{off+16*288}")
    return r

def p2_bloads(a, slot, breg):
    for x in bload_list(slot, breg)[0]: a(x)
    for f in range(8):
        a(f"buffer_load_dwordx4 {vr(breg+4*f,4)}, v7, s[32:35], s{46 + f//4} offen offset:{(f%4)*1024} sc1")

S_NON = 52
S_FAST = 54

def get_nonce(a):
    a("s_waitcnt vmcnt(0)")
    a("v_mov_b32 v9, 0")
    a("s_mov_b32 s50, 0")
    a.label("L_nonce_chk")
    a(f"v_readfirstlane_b32 s{S_NON}, v{V_NONCE}"); a(f"v_readfirstlane_b32 s{S_NON+1}, v{V_NONCE+1}")
    a("s_nop 0")
    a(f"s_cmp_lg_u32 s{S_NON}, 0"); a("s_cbranch_scc1 L_nonce_ok")
    a(f"buffer_load_dwordx2 {vr(V_NONCE,2)}, v9, s[36:39], 0 offen sc1")
    a("s_add_u32 s50, s50, 1"); a("s_waitcnt vmcnt(0)")
    a(f"s_cmp_lt_u32 s50, {OPT['spin_max']}"); a("s_cbranch_scc1 L_nonce_chk")
    a.label("L_nonce_ok")
    a(f"s_mov_b32 s{S_FAST}, 0")
    if OPT['fast']:
        a(f"v_readfirstlane_b32 s55, v{V_CLW}")
        a(f"s_and_b32 s56, s{S_X}, 1"); a("s_lshl_b32 s56, s56, 4"); a("s_lshr_b32 s55, s55, s56")
        a("s_and_b32 s56, s55, 31")
        a("s_bfe_u32 s57, s55, 0x80005")
        a("s_bfe_u32 s55, s55, 0x3000d")
        a("s_mul_i32 s56, s56, s56"); a("s_lshl_b32 s57, s57, 2")
        a("s_cmp_eq_u32 s56, s57"); a(f"s_cselect_b32 s{S_FAST}, 1, 0")
        a("s_cmp_eq_u32 s55, 4"); a(f"s_cselect_b32 s{S_FAST}, s{S_FAST}, 0")
        if OPT['fast'] == 2: a(f"s_mov_b32 s{S_FAST}, 0")

def poll(a, tag, voff, soff, sleep=0):
    a("s_mov_b32 s50, 0")
    a.label(f"L_poll_{tag}")
    if sleep: a(f"s_sleep {sleep}")
    a(f"buffer_load_dwordx2 v[10:11], v{voff}, s[32:35], s{soff} offen sc1")
    a("s_add_u32 s50, s50, 1"); a("s_waitcnt vmcnt(0)")
    a(f"v_cmp_eq_u64 vcc, v[10:11], s[{S_NON}:{S_NON+1}]")
    a(f"s_cmp_ge_u32 s50, {OPT['spin_max']}"); a(f"s_cbranch_scc1 L_poll_{tag}_done")
    a("s_cmp_eq_u64 vcc, -1"); a(f"s_cbranch_scc0 L_poll_{tag}")
    a.label(f"L_poll_{tag}_done")

def flag_store(a, soff, mode):
    a(f"v_mov_b32 v10, s{S_NON}"); a(f"v_mov_b32 v11, s{S_NON+1}")
    a("s_mov_b64 exec, 1")
    if mode == 'dyn':
        a(f"s_cmp_eq_u32 s{S_FAST}, 0"); a("s_cbranch_scc1 L_flag_slow")
        a(f"buffer_store_dwordx2 v[10:11], v9, s[32:35], s{soff} offen")
        a("s_branch L_flag_join")
        a.label("L_flag_slow")
        a(f"buffer_store_dwordx2 v[10:11], v9, s[32:35], s{soff} offen sc1")
        a.label("L_flag_join")
    else:
        a(f"buffer_store_dwordx2 v[10:11], v9, s[32:35], s{soff} offen sc1")
    a("s_mov_b64 exec, -1")

def o_store(a):
    srd_ws(a, 32)
    a("v_lshlrev_b32 v7, 4, v0")
    if OPT.get('spread', 0):
        a(f"s_lshl_b32 s40, s{S_G}, 5"); a(f"s_add_u32 s40, s40, s{S_H}"); a("s_lshl_b32 s40, s40, 20")
        a(f"s_lshl_b32 s41, s{S_WAVE}, 13"); a("s_add_u32 s40, s40, s41"); a("s_add_u32 s41, s40, 4096")
    else:
        a(f"s_lshl_b32 s40, s{S_G}, 5"); a(f"s_add_u32 s40, s40, s{S_H}"); a("s_lshl_b32 s40, s40, 2")
        a(f"s_add_u32 s40, s40, s{S_WAVE}"); a("s_lshl_b32 s40, s40, 13"); a("s_add_u32 s41, s40, 4096")
    global OSTORES
    OSTORES = [f"buffer_store_dwordx4 {vr(V_OF+4*f,4)}, v7, s[32:35], s{40 + f//4} offen offset:{(f%4)*1024} sc1" for f in range(8)]
    a("v_lshrrev_b32 v2, 4, v0"); a("v_bfe_u32 v3, v0, 2, 2"); a("v_lshl_add_u32 v2, v2, 2, v3")
    a("v_mul_u32_u24 v2, 288, v2"); a("v_and_b32 v3, 3, v0")
    a(f"v_lshl_add_u32 v{V2_AD[0]}, v3, 3, v2")
    for sl in range(1, 4): a(f"v_add_u32 v{V2_AD[sl]}, {sl*W_SLOT}, v{V2_AD[0]}")
    a(f"s_lshl_b32 s44, s{S_G}, 5"); a(f"s_lshl_b32 s45, s{S_X}, 2"); a("s_add_u32 s44, s44, s45")
    a(f"s_lshl_b32 s48, s{S_G}, 3"); a(f"s_add_u32 s48, s48, s{S_X}"); a("s_lshl_b32 s48, s48, 2")
    if OPT.get('spread', 0):
        a(f"s_add_u32 s48, s48, s{S_WAVE}"); a("s_lshl_b32 s48, s48, 20"); a(f"s_add_u32 s48, s48, {0x40000}")
    else:
        a(f"s_add_u32 s48, s48, s{S_WAVE}"); a("s_lshl_b32 s48, s48, 7"); a(f"s_add_u32 s48, s48, {WS_F}")
    a(f"s_lshl_b32 s49, s{S_J}, 3"); a("s_add_u32 s49, s49, s48")
    a("v_and_b32 v8, 3, v0"); a("v_lshlrev_b32 v8, 3, v8")

def bload_list(slot, breg):
    if OPT.get('spread', 0):
        setup = [f"s_add_u32 s45, s{S_J}, {slot}", "s_and_b32 s45, s45, 3", "s_add_u32 s45, s45, s44",
                 "s_lshl_b32 s45, s45, 20", f"s_lshl_b32 s46, s{S_WAVE}, 13",
                 "s_add_u32 s46, s46, s45", "s_add_u32 s47, s46, 4096"]
    else:
        setup = [f"s_add_u32 s45, s{S_J}, {slot}", "s_and_b32 s45, s45, 3", "s_add_u32 s45, s45, s44",
                 "s_lshl_b32 s45, s45, 2", f"s_add_u32 s45, s45, s{S_WAVE}",
                 "s_lshl_b32 s46, s45, 13", "s_add_u32 s47, s46, 4096"]
    loads = [f"buffer_load_dwordx4 {vr(breg+4*f,4)}, v7, s[32:35], s{46 + f//4} offen offset:{(f%4)*1024} sc1" for f in range(8)]
    return setup, loads

def p2_run(a, hs, n0, n1, hooks_pre=None, hooks_mid=None, inject=None, spread=None):
    hooks_pre = hooks_pre or {}; hooks_mid = hooks_mid or {}; inject = inject or {}; spread = spread or {}
    for n in range(n0, n1):
        (s, p, hf) = hs[n]
        breg = V_OF if s == 0 else BUF[s - 1]
        nxt = p2_areads(*hs[n+1], buf=(n+1) & 1) if n + 1 < n1 else []
        taus = list(range(0, 5)) if hf == 0 else list(range(5, 9))
        nown = 2 * len(taus)
        nm = nown
        plan = [0] * nm
        for t in range(len(nxt)): plan[t % nm] += 1
        issued = 0; m = 0
        inj = list(inject.get(n, []))
        spr = list(spread.get(n, []))
        per = -(-len(spr) // nm) if spr else 0
        if n in hooks_pre: hooks_pre[n]()
        for k, tau in enumerate(taus):
            a(f"s_waitcnt lgkmcnt({nown - 2 * (k + 1) + issued})")
            for qt in range(2):
                d = vr(V2_ACC + (tau*2+qt)*4, 4)
                c = "0" if (s == 0 and p == 0) else d
                a(f"v_mfma_f32_16x16x32_bf16 {d}, {vr(V2_A[n & 1]+4*k,4)}, {vr(breg+(2*p+qt)*4,4)}, {c}")
                if m == 0 and n in hooks_mid: hooks_mid[n]()
                if nxt:
                    for r in nxt[issued:issued+plan[m]]: a(r)
                    issued = min(len(nxt), issued + plan[m])
                for _ in range(per):
                    if spr: a(spr.pop(0))
                m += 1
                if k >= len(taus) - 1 and inj: a(inj.pop(0))
        while inj: a(inj.pop(0))
        while spr: a(spr.pop(0))

def d_prep(a):
    a("v_bfe_u32 v13, v0, 1, 3"); a("v_mul_u32_u24 v13, 9216, v13")
    a("v_lshrrev_b32 v14, 4, v0"); a("v_lshlrev_b32 v14, 1, v14"); a("v_and_b32 v15, 1, v0")
    a("v_add_u32 v14, v14, v15"); a("v_lshl_add_u32 v13, v14, 4, v13")
    a(f"s_lshl_b32 s58, s{S_G}, 2"); a(f"s_add_u32 s58, s58, s{S_J}"); a("s_lshl_b32 s58, s58, 2")
    a(f"s_add_u32 s58, s58, s{S_WAVE}")
    if OPT.get('spread', 0):
        a("s_lshl_b32 s59, s58, 21"); a(f"s_add_u32 s59, s59, {(1<<20) + 0x20000}")
    else:
        a("s_mul_i32 s59, s58, 73728"); a(f"s_add_u32 s59, s59, {WS_D}")
    a(f"s_mul_i32 s40, s{S_X}, 1152"); a("s_add_u32 s40, s40, s59")

def d_pack_store(tau, G=160):
    r = []
    for qt in range(2):
        for h2 in range(2):
            src = V2_ACC + (tau*2+qt)*4 + 2*h2
            r.append(f"v_cvt_pk_bf16_f32 v{G+4*tau+2*qt+h2}, v{src}, v{src+1}")
    r.append(f"buffer_store_dwordx4 {vr(G+4*tau,4)}, v13, s[32:35], s40 offen offset:{128*tau} sc1")
    return r

def tail(a):
    hs = [(s, p, hf) for s in range(2) for p in range(4) for hf in range(2)]
    hs += [(2, p, 0) for p in range(4)] + [(3, p, 0) for p in range(4)]
    hs += [(2, p, 1) for p in range(4)] + [(3, p, 1) for p in range(4)]
    if not OPT.get('ostin', 1):
        o_store(a)
        for x in OSTORES: a(x)
    stamp(a, 6)
    if OPT.get('flagpos', 3) >= 0:
        for r in p2_areads(*hs[0], buf=0): a(r)
    def exch():
        a("s_waitcnt vmcnt(0)")
        flag_store(a, 49, 'dyn')
        stamp(a, 7)
        if OPT.get('poll1', 1):
            a(f"s_add_u32 s56, s{S_J}, 1"); a("s_and_b32 s56, s56, 3")
            a("s_mov_b32 s50, 0")
            a.label("L_poll_o1")
            if OPT.get('o_sleep', 0): a(f"s_sleep {OPT['o_sleep']}")
            a("buffer_load_dwordx2 v[10:11], v8, s[32:35], s48 offen sc1")
            a("s_add_u32 s50, s50, 1"); a("s_waitcnt vmcnt(0)")
            a(f"v_cmp_eq_u64 vcc, v[10:11], s[{S_NON}:{S_NON+1}]")
            a(f"s_cmp_ge_u32 s50, {OPT['spin_max']}"); a("s_cbranch_scc1 L_poll_o1_done")
            a("s_bitcmp1_b32 vcc_lo, s56"); a("s_cbranch_scc0 L_poll_o1")
            a.label("L_poll_o1_done")
            a("s_cmp_eq_u64 vcc, -1"); a("s_cselect_b32 s55, 1, 0")
        else:
            poll(a, "o", 8, 48, sleep=OPT.get('o_sleep', 0))
        stamp(a, 8)
        p2_bloads(a, 1, BUF[0])
        a("s_nop 3")
    if OPT.get('flagpos', 3) >= 0:
        p2_run(a, hs, 0, 8, hooks_pre={OPT.get('flagpos', 4): exch})
    else:
        exch()
        a("s_barrier")
        for r in p2_areads(*hs[0], buf=0): a(r)
        p2_run(a, hs, 0, 8)
    a("s_barrier")
    tstamp(a, 1)
    if OPT.get('poll1', 1):
        a("s_cmp_eq_u32 s55, 1"); a("s_cbranch_scc1 L_poll_o_skip")
        poll(a, "o", 8, 48, sleep=OPT.get('o_sleep', 0))
        a.label("L_poll_o_skip")
    for r in p2_areads(*hs[8], buf=0): a(r)
    su2, l2 = bload_list(2, BUF[1]); su3, l3 = bload_list(3, BUF[2])
    for x in su2: a(x)
    d_prep(a)
    inj = {}
    for t in range(4):
        inj[8 + t] = list(l2[2*t:2*t+2])
        inj[12 + t] = list(l3[2*t:2*t+2])
    inj[11] = inj[11] + su3
    spr = {25: d_pack_store(0) + d_pack_store(1), 26: d_pack_store(2) + d_pack_store(3), 27: d_pack_store(4)}
    W = lambda n: (lambda: a(f"s_waitcnt vmcnt({n})"))
    def WC(n, idx):
        def f():
            if OPT.get('cyc', 0): cstamp(a, idx)
            if n is not None: a(f"s_waitcnt vmcnt({n})")
        return f
    p2_run(a, hs, 8, 32,
           hooks_pre={8: WC(6, 3), 10: W(8), 12: W(10), 14: W(12), 16: WC(8, 4), 20: W(0), 24: WC(None, 13)},
           hooks_mid={15: lambda: a("s_barrier"), 19: lambda: a("s_barrier")},
           inject=inj, spread=spr)
    if OPT.get('cyc', 0): cstamp(a, 1)
    stamp(a, 9)
    reduce_inkernel(a)

def store_partials_f32(a):
    a("s_nop 7")
    a(f"s_lshl_b32 s45, s{S_X}, 3"); a(f"s_add_u32 s45, s45, s{S_G}"); a("s_lshl_b32 s45, s45, 2")
    a(f"s_add_u32 s45, s45, s{S_J}"); a("s_lshl_b32 s45, s45, 2"); a(f"s_add_u32 s45, s45, s{S_WAVE}")
    a(f"s_mul_i32 s45, s45, {18*1024}"); a(f"s_add_u32 s45, s45, {WS_P}")
    for u in range(18):
        if u and u % 4 == 0: a("s_add_u32 s45, s45, 4096")
        a(f"buffer_store_dwordx4 {vr(V2_ACC+4*u,4)}, v7, s[32:35], s45 offen offset:{(u%4)*1024}")

def store_partials_bf16(a):
    G = 160
    a(f"s_lshl_b32 s44, s{S_G}, 2"); a(f"s_add_u32 s44, s44, s{S_J}"); a("s_lshl_b32 s44, s44, 2")
    a(f"s_add_u32 s44, s44, s{S_WAVE}")
    a(f"s_lshl_b32 s45, s{S_X}, 7"); a("s_add_u32 s45, s45, s44"); a("s_mul_i32 s45, s45, 9216")
    a(f"s_add_u32 s45, s45, {WS_P}"); a("s_add_u32 s46, s45, 4096"); a("s_add_u32 s47, s45, 8192")
    sc = " sc1" if OPT.get('psc1', 1) else ""
    for tau in range(9):
        for qt in range(2):
            for h2 in range(2):
                src = V2_ACC + (tau*2+qt)*4 + 2*h2
                a(f"v_cvt_pk_bf16_f32 v{G+4*tau+2*qt+h2}, v{src}, v{src+1}")
        a(f"buffer_store_dwordx4 {vr(G+4*tau,4)}, v7, s[32:35], s{45 + tau//4} offen offset:{(tau%4)*1024}{sc}")

def kernel3b(a):
    name = "mha_p3_kernel"
    a(".p2align 8"); a(f".globl {name}"); a(f".type {name},@function"); a.label(name)
    a("s_cmp_ge_u32 s2, 288"); a(f"s_cbranch_scc1 L_end_{name}")
    a("s_load_dwordx2 s[26:27], s[0:1], 40"); a("s_load_dwordx2 s[30:31], s[0:1], 56")
    a("v_lshrrev_b32 v1, 6, v0"); a("v_and_b32 v0, 63, v0")
    a("s_lshl_b32 s5, s2, 2")
    a(f"v_readfirstlane_b32 s{S_WAVE}, v1")
    a("v_lshlrev_b32 v1, 4, v0")
    a(f"s_add_u32 s5, s5, s{S_WAVE}")
    a("s_mul_i32 s45, s5, 1024"); a(f"s_add_u32 s45, s45, {WS_P}")
    a("s_mul_hi_u32 s6, s5, 477218589")
    a("s_mul_i32 s7, s6, 9"); a("s_sub_u32 s7, s5, s7")
    a("s_waitcnt lgkmcnt(0)")
    srd_ws(a, 32); srd(a, 36, P_OUT, SZ_OUT)
    for x in range(8):
        a(f"buffer_load_dwordx4 {vr(8+4*x,4)}, v1, s[32:35], s45 offen")
        if x < 7: a(f"s_add_u32 s45, s45, {128*9216}")
    a("v_and_b32 v2, 15, v0"); a("v_mul_u32_u24 v2, 1152, v2"); a("v_lshrrev_b32 v3, 4, v0")
    a("v_lshl_add_u32 v2, v3, 3, v2")
    a("s_lshr_b32 s46, s6, 4"); a("s_lshl_b32 s46, s46, 2"); a("s_and_b32 s47, s6, 3"); a("s_add_u32 s46, s46, s47")
    a(f"s_mul_i32 s46, s46, {32*1152}")
    a("s_lshr_b32 s47, s6, 2"); a("s_and_b32 s47, s47, 3"); a("s_mul_i32 s47, s47, 288"); a("s_add_u32 s46, s46, s47")
    a("s_lshl_b32 s47, s7, 5"); a("s_add_u32 s46, s46, s47"); a(f"s_add_u32 s47, s46, {16*1152}")
    for x in range(8):
        a(f"s_waitcnt vmcnt({7-x})")
        for d in range(4):
            src = 8 + 4*x + d
            if x == 0:
                a(f"v_lshlrev_b32 v{40+2*d}, 16, v{src}"); a(f"v_and_b32 v{40+2*d+1}, 0xffff0000, v{src}")
            else:
                a(f"v_lshlrev_b32 v48, 16, v{src}"); a(f"v_and_b32 v49, 0xffff0000, v{src}")
                a(f"v_pk_add_f32 v[{40+2*d}:{40+2*d+1}], v[{40+2*d}:{40+2*d+1}], v[48:49]")
    for d in range(4): a(f"v_cvt_pk_bf16_f32 v{50+d}, v{40+2*d}, v{40+2*d+1}")
    a("buffer_store_dwordx2 v[50:51], v2, s[36:39], s46 offen")
    a("buffer_store_dwordx2 v[52:53], v2, s[36:39], s47 offen")
    a.label(f"L_end_{name}")
    a("s_endpgm")

def reduce_inkernel(a):
    RA = 196; RB = 88
    a("s_nop 7")
    for tau in range(5, 9):
        for x in d_pack_store(tau): a(x)
    if OPT.get('spread', 0):
        a("s_lshl_b32 s48, s58, 21"); a(f"s_add_u32 s48, s48, {0x50000}")
    else:
        a("s_lshl_b32 s48, s58, 8"); a(f"s_add_u32 s48, s48, {WS_F2}")
    a(f"s_lshl_b32 s49, s{S_X}, 3"); a("s_add_u32 s49, s49, s48")
    a("s_waitcnt vmcnt(4)")
    flag_store(a, 49, 'sc1')
    a("s_add_u32 s49, s49, 128")
    a("v_and_b32 v8, 7, v0"); a("v_lshlrev_b32 v8, 3, v8")
    a("v_and_b32 v14, 1, v0"); a("v_mul_u32_u24 v14, 1152, v14")
    a("v_bfe_u32 v15, v0, 1, 2"); a("v_lshl_add_u32 v14, v15, 3, v14")
    a("v_lshrrev_b32 v12, 3, v0"); a("v_lshl_add_u32 v14, v12, 5, v14")
    a("v_add_u32 v15, 160, v14")
    srd(a, 36, P_OUT, SZ_OUT)
    a(f"s_lshl_b32 s56, s{S_G}, 2"); a(f"s_add_u32 s56, s56, s{S_WAVE}"); a("s_lshl_b32 s56, s56, 5")
    a(f"s_lshl_b32 s57, s{S_X}, 1"); a("s_add_u32 s56, s56, s57"); a("s_mul_i32 s56, s56, 1152")
    a(f"s_mul_i32 s57, s{S_J}, 288"); a("s_add_u32 s56, s56, s57")
    a(f"s_add_u32 s57, s56, {16*1152}")
    a(f"s_mul_i32 s47, s{S_X}, 9216"); a("s_add_u32 s47, s47, s59")
    a("s_waitcnt vmcnt(1)")
    flag_store(a, 49, 'sc1')
    stamp(a, 10)
    poll(a, "da", 8, 48, sleep=OPT.get('d_sleep', 0))
    a("s_mov_b32 s46, s47")
    a("s_mov_b32 exec_hi, 0xff")
    for sx in range(8):
        a(f"buffer_load_dwordx4 {vr(RA+4*sx,4)}, v7, s[32:35], s46 offen sc1")
        if sx < 7: a("s_add_u32 s46, s46, 1152")
    a("s_mov_b64 exec, -1")
    a("s_add_u32 s48, s48, 128")
    poll(a, "db", 8, 48, sleep=OPT.get('d_sleep2', 1))
    stamp(a, 11)
    a("s_mov_b64 exec, 0xffffffff")
    for sx in range(8):
        a(f"buffer_load_dwordx4 {vr(RB+4*sx,4)}, v7, s[32:35], s47 offen offset:640 sc1")
        if sx < 7: a("s_add_u32 s47, s47, 1152")
    a("s_mov_b64 exec, -1")
    AA = 16; AB = 24; T = 32
    def summ(R, A, waits):
        for sx in range(8):
            if waits: a(f"s_waitcnt vmcnt({7 - sx})")
            for d in range(4):
                src = R + 4*sx + d
                if sx == 0:
                    a(f"v_lshlrev_b32 v{A+2*d}, 16, v{src}"); a(f"v_and_b32 v{A+2*d+1}, 0xffff0000, v{src}")
                else:
                    t = T + 2 * (d & 1)
                    a(f"v_lshlrev_b32 v{t}, 16, v{src}"); a(f"v_and_b32 v{t+1}, 0xffff0000, v{src}")
                    a(f"v_pk_add_f32 v[{A+2*d}:{A+2*d+1}], v[{A+2*d}:{A+2*d+1}], v[{t}:{t+1}]")
    fl = {0: "", 1: " sc1", 2: " nt", 3: " sc0 sc1"}[OPT.get('outfl', 0)]
    summ(RA, AA, False)
    for d in range(4): a(f"v_cvt_pk_bf16_f32 v{36+d}, v{AA+2*d}, v{AA+2*d+1}")
    summ(RB, AB, True)
    a("s_mov_b32 exec_hi, 0xff")
    a(f"buffer_store_dwordx2 v[36:37], v14, s[36:39], s56 offen{fl}")
    a(f"buffer_store_dwordx2 v[38:39], v14, s[36:39], s57 offen{fl}")
    a("s_mov_b64 exec, -1")
    for d in range(4): a(f"v_cvt_pk_bf16_f32 v{40+d}, v{AB+2*d}, v{AB+2*d+1}")
    a("s_mov_b64 exec, 0xffffffff")
    a(f"buffer_store_dwordx2 v[40:41], v15, s[36:39], s56 offen{fl}")
    a(f"buffer_store_dwordx2 v[42:43], v15, s[36:39], s57 offen{fl}")
    a("s_mov_b64 exec, -1")

def KNAME():
    return "standalone__mha_block_cached__near_ridge_kernel" if OPT['dk'] else "mha_a_kernel"

def kernelA(a):
    global KIDX
    KIDX = 0
    name = KNAME()
    prologue(a, name)
    stamp_init(a); stamp(a, 0); cstamp(a, 14)
    if OPT['stamps'] and OPT.get('entrystamp', 0): a("s_mov_b64 s[86:87], s[96:97]")
    a(f"s_cmp_lt_u32 s{S_WAVE}, 4"); a("s_cbranch_scc1 L_a_compute")
    a(f"s_cmp_eq_u32 s{S_WAVE}, 5"); a("s_cbranch_scc1 L_a_ldx")
    a(f"s_cmp_eq_u32 s{S_WAVE}, 6"); a("s_cbranch_scc1 L_a_ldk")
    a(f"s_cmp_eq_u32 s{S_WAVE}, 7"); a("s_cbranch_scc1 L_a_ldv")
    loader_ring(a, 'wq'); stamp_flush(a); a("s_endpgm")
    a.label("L_a_ldx"); loader_ring(a, 'x'); stamp_flush(a); a("s_endpgm")
    a.label("L_a_ldv"); loader_v(a); stamp_flush(a); a("s_endpgm")
    a.label("L_a_ldk"); loader_k(a); stamp_flush(a); a("s_endpgm")
    a.label("L_a_compute")
    CUR['compute'] = True
    gemm1_addrs(a); attn_addrs(a)
    if OPT.get('cprio', 0): a(f"s_setprio {OPT['cprio']}")
    kwait(a)
    srd(a, 36, P_DBG, 256)
    a("v_mov_b32 v1, 0")
    a(f"s_lshl_b32 s40, s{S_G}, 3"); a(f"s_add_u32 s40, s40, s{S_X}"); a("s_lshr_b32 s40, s40, 1")
    a("s_lshl_b32 s40, s40, 2"); a("s_add_u32 s40, s40, 128")
    srd_ws(a, 44)
    a(f"s_lshl_b32 s42, s{S_G}, 3"); a(f"s_add_u32 s42, s42, s{S_X}"); a("s_lshl_b32 s42, s42, 2")
    if OPT.get('spread', 0):
        a(f"s_add_u32 s42, s42, s{S_WAVE}"); a("s_lshl_b32 s42, s42, 20"); a(f"s_add_u32 s42, s42, {0x40000}")
    else:
        a(f"s_add_u32 s42, s42, s{S_WAVE}"); a("s_lshl_b32 s42, s42, 7"); a(f"s_add_u32 s42, s42, {WS_F}")
    gemm1(a)
    if not OPT.get('nonce_in', 1): get_nonce(a)
    stamp(a, 2)
    attention(a); stamp(a, 5)
    tail(a)
    if OPT['stamps']: a("s_waitcnt vmcnt(0)")
    stamp(a, 12); cstamp(a, 15); stamp_flush(a)
    if OPT.get('waitx', 0):
        a("s_waitcnt vmcnt(0)")
        a(f"s_add_u32 s62, s{S_NON}, {OPT['waitx']}")
        a("s_mov_b32 s63, 0")
        a.label("L_wx_spin")
        a("s_memrealtime s[64:65]"); a("s_waitcnt lgkmcnt(0)")
        a("s_add_u32 s63, s63, 1"); a("s_cmp_gt_u32 s63, 100000"); a("s_cbranch_scc1 L_wx_done")
        a("s_sub_u32 s66, s62, s64"); a("s_cmp_gt_i32 s66, 0"); a("s_cbranch_scc1 L_wx_spin")
        a.label("L_wx_done")
    if OPT.get('probe', -1) >= 0:
        a("s_waitcnt vmcnt(0)")
        a(f"s_sub_u32 s62, s60, s{S_NON}"); a(f"s_mul_i32 s62, s62, {OPT.get('probek', 8)}")
        a("s_memrealtime s[64:65]"); a("s_waitcnt lgkmcnt(0)")
        a("s_add_u32 s62, s62, s64")
        a("s_mov_b32 s63, 0")
        a.label("L_probe_spin")
        a("s_memrealtime s[64:65]"); a("s_waitcnt lgkmcnt(0)")
        a("s_add_u32 s63, s63, 1"); a("s_cmp_gt_u32 s63, 100000"); a("s_cbranch_scc1 L_probe_done")
        a("s_sub_u32 s66, s62, s64"); a("s_cmp_gt_i32 s66, 0"); a("s_cbranch_scc1 L_probe_spin")
        a.label("L_probe_done")
    a.label(f"L_end_{name}")
    a("s_endpgm")

def kernel3(a):
    global KIDX
    KIDX = 1
    name = "mha_p3_kernel"
    a(".p2align 8"); a(f".globl {name}"); a(f".type {name},@function"); a.label(name)
    a("s_cmp_ge_u32 s2, 256"); a(f"s_cbranch_scc1 L_end_{name}")
    a("s_load_dwordx16 s[16:31], s[0:1], 0")
    a("v_lshrrev_b32 v1, 6, v0"); a("v_and_b32 v0, 63, v0")
    a("s_lshr_b32 s5, s2, 1")
    a("s_and_b32 s6, s2, 1")
    a(f"v_readfirstlane_b32 s{S_WAVE}, v1")
    a("s_mul_i32 s6, s6, 9")
    a("s_waitcnt lgkmcnt(0)")
    stamp_init(a); stamp(a, 0); cstamp(a, 14)
    a(f"s_add_u32 s6, s6, s{S_WAVE}")
    srd_ws(a, 32); srd(a, 36, P_OUT, SZ_OUT)
    a("v_lshlrev_b32 v1, 4, v0")
    a("s_mul_i32 s45, s5, 18"); a("s_add_u32 s45, s45, s6"); a("s_lshl_b32 s45, s45, 10")
    a(f"s_add_u32 s45, s45, {WS_P}")
    for x in range(8):
        a(f"buffer_load_dwordx4 {vr(8+4*x,4)}, v1, s[32:35], s45 offen")
        if x < 7: a(f"s_add_u32 s45, s45, {128*18*1024}")
    a("v_and_b32 v2, 15, v0"); a("v_mul_u32_u24 v2, 1152, v2"); a("v_lshrrev_b32 v3, 4, v0")
    a("v_lshl_add_u32 v2, v3, 3, v2")
    a("s_lshr_b32 s46, s5, 4"); a("s_lshl_b32 s46, s46, 2"); a("s_and_b32 s47, s5, 3"); a("s_add_u32 s46, s46, s47")
    a(f"s_mul_i32 s46, s46, {32*1152}")
    a("s_lshr_b32 s47, s5, 2"); a("s_and_b32 s47, s47, 3"); a("s_mul_i32 s47, s47, 288"); a("s_add_u32 s46, s46, s47")
    a("s_and_b32 s47, s6, 1"); a(f"s_mul_i32 s47, s47, {16*1152}"); a("s_add_u32 s46, s46, s47")
    a("s_lshr_b32 s47, s6, 1"); a("s_lshl_b32 s47, s47, 5"); a("s_add_u32 s46, s46, s47")
    a("s_waitcnt vmcnt(0)")
    for v in range(4):
        for x in range(0, 8, 2): a(f"v_add_f32 v{8+4*x+v}, v{8+4*x+v}, v{12+4*x+v}")
    for v in range(4):
        a(f"v_add_f32 v{8+v}, v{8+v}, v{16+v}"); a(f"v_add_f32 v{24+v}, v{24+v}, v{32+v}")
    for v in range(4): a(f"v_add_f32 v{8+v}, v{8+v}, v{24+v}")
    a("v_cvt_pk_bf16_f32 v8, v8, v9"); a("v_cvt_pk_bf16_f32 v9, v10, v11")
    a("buffer_store_dwordx2 v[8:9], v2, s[36:39], s46 offen")
    if OPT['stamps']:
        a("s_waitcnt vmcnt(0)")
        stamp(a, 10); cstamp(a, 15)
        a(f"s_cmp_ge_u32 s{S_WAVE}, 8"); a("s_cbranch_scc1 L_end_mha_p3_kernel")
        stamp_flush(a, 44)
    a.label(f"L_end_{name}")
    a("s_endpgm")

def descriptor(a, name, vgpr, sgpr=102):
    a(f".amdhsa_kernel {name}")
    a(f".amdhsa_next_free_vgpr {vgpr}"); a(f".amdhsa_next_free_sgpr {sgpr}"); a(f".amdhsa_accum_offset {vgpr}")
    a(".amdhsa_group_segment_fixed_size 0"); a(".amdhsa_kernarg_size 64")
    a(".amdhsa_user_sgpr_count 2"); a(".amdhsa_user_sgpr_kernarg_segment_ptr 1")
    a(".amdhsa_system_sgpr_workgroup_id_x 1"); a(".end_amdhsa_kernel")

def main():
    out = sys.argv[1]
    for arg in sys.argv[2:]:
        if arg == "--stamps": OPT['stamps'] = True
        elif "=" in arg:
            k, v = arg.lstrip("-").split("="); OPT[k] = int(v)
    a = Asm()
    hdr = """; Fused MHA block for gfx950 (MI355X): out = softmax((x Wq) K^T / sqrt(128)) V  Wo
;
; Kernarg (8 pointers): x, k_cache, v_cache, wq, wo, out, debug, ws.
"""
    if OPT['dk']:
        hdr += "; @launch grid=(256,1,1) block=(512,1,1) lds=163840\n"
    else:
        hdr += "; @launch kernel=mha_a_kernel grid=(256,1,1) block=(512,1,1) lds=163840\n"
        if OPT.get('k3bf', 0): hdr += "; @launch kernel=mha_p3_kernel grid=(288,1,1) block=(256,1,1) lds=0\n"
        else: hdr += "; @launch kernel=mha_p3_kernel grid=(256,1,1) block=(576,1,1) lds=0\n"
    a('.amdgcn_target "amdgcn-amd-amdhsa--gfx950"'); a(".text")
    kernelA(a)
    if not OPT['dk']:
        if OPT.get('k3bf', 0): kernel3b(a)
        else: kernel3(a)
    a('.section .rodata,"a"'); a(".p2align 6"); descriptor(a, KNAME(), 256)
    if not OPT['dk']:
        a(".p2align 6"); descriptor(a, "mha_p3_kernel", 56)
    open(out, "w").write(hdr + a.text())

if __name__ == "__main__": main()
```

```python
import sys, struct

class Asm:
    def __init__(self): self.l = []
    def __call__(self, s=""):
        for x in s.split("\n"):
            x = x.strip()
            self.l.append(x if (x.endswith(":") or x.startswith(".")) else "  " + x)
    def label(self, s): self.l.append(s + ":")
    def text(self): return "\n".join(self.l) + "\n"

def vr(b, n=1): return f"v{b}" if n == 1 else f"v[{b}:{b+n-1}]"
def f32hex(x): return "0x%08x" % struct.unpack("<I", struct.pack("<f", x))[0]

P_X, P_K, P_V, P_WQ, P_WO, P_OUT, P_DBG, P_WS = 16, 18, 20, 22, 24, 26, 28, 30
SZ_X, SZ_KV, SZ_W, SZ_OUT = 1179648, 8388608, 4718592, 1179648
WS_O = 0
WS_P = 8 << 20
WS_F = 28 << 20
WS_F2 = (28 << 20) + (1 << 19)
WS_D = 8 << 20
WS_STAMP = 32 << 20
SZ_WS_USED = 64 << 20
S_WAVE, S_X, S_R, S_J, S_G, S_H = 3, 4, 5, 6, 9, 10

OPT = dict(stamps=False, fast=1, spin_max=2000000, kvmode=21, flagpos=3, wqt_nt=0, xonce=1, vearly=1, woearly=1, d_sleep=1, d_sleep2=0, o_sleep=0, k_nt=1, v_nt=1, wot_pos=8, dk=1)

def srd(a, base, ptr, size, add=0):
    if add:
        a(f"s_add_u32 s{base}, s{ptr}, {add}"); a(f"s_addc_u32 s{base+1}, s{ptr+1}, 0")
        a(f"s_and_b32 s{base+1}, s{base+1}, 0xffff")
    else:
        a(f"s_mov_b32 s{base}, s{ptr}"); a(f"s_and_b32 s{base+1}, s{ptr+1}, 0xffff")
    a(f"s_mov_b32 s{base+2}, {size}"); a(f"s_mov_b32 s{base+3}, 0x00020000")

def prologue(a, name, nwg=256):
    a(".p2align 8"); a(f".globl {name}"); a(f".type {name},@function"); a.label(name)
    a(f"s_cmp_ge_u32 s2, {nwg}"); a(f"s_cbranch_scc1 L_end_{name}")
    if OPT['stamps'] and OPT.get('entrystamp', 0): a("s_memrealtime s[96:97]")
    a("s_load_dwordx16 s[16:31], s[0:1], 0")
    a("v_lshrrev_b32 v1, 6, v0"); a("v_and_b32 v0, 63, v0")
    a(f"s_and_b32 s{S_X}, s2, 7"); a(f"s_lshr_b32 s{S_R}, s2, 3")
    a(f"v_readfirstlane_b32 s{S_WAVE}, v1")
    a(f"s_and_b32 s{S_J}, s{S_R}, 3"); a(f"s_lshr_b32 s{S_G}, s{S_R}, 2")
    a(f"s_lshl_b32 s{S_H}, s{S_X}, 2"); a(f"s_add_u32 s{S_H}, s{S_H}, s{S_J}")
    if OPT['stamps'] or not OPT.get('latewait', 1): a("s_waitcnt lgkmcnt(0)")

def kwait(a):
    if not OPT['stamps'] and OPT.get('latewait', 1): a("s_waitcnt lgkmcnt(0)")

KIDX = 0
CUR = {}
def tstamp(a, idx):
    if OPT.get('tailstamps', 0): stamp(a, idx, force=True)
def stamp(a, idx, force=False):
    if OPT.get('probe', -1) == idx and CUR.get('compute') and (force or not (OPT.get('tailstamps', 0) and idx in (1,2,3,4,13))):
        a("s_memrealtime s[60:61]"); a("s_waitcnt lgkmcnt(0)")
        return
    if not OPT['stamps']: return
    if OPT.get('tailstamps', 0) and not force and idx in (1,2,3,4,13) and CUR.get('compute'): return
    a(f"s_memrealtime s[{60+2*idx}:{61+2*idx}]"); a("s_waitcnt lgkmcnt(0)")
def cstamp(a, idx):
    if not OPT['stamps']: return
    a(f"s_memtime s[{60+2*idx}:{61+2*idx}]"); a("s_waitcnt lgkmcnt(0)")
def stamp_init(a):
    if not OPT['stamps']: return
    for i in range(16): a(f"s_mov_b64 s[{60+2*i}:{61+2*i}], 0")
def stamp_flush(a, vb=250):
    if not OPT['stamps']: return
    srd(a, 92, P_WS, 256*16*16*8, add=WS_STAMP + KIDX*256*8*16*8)
    a("s_lshl_b32 s96, s2, 3"); a(f"s_add_u32 s96, s96, s{S_WAVE}"); a("s_lshl_b32 s96, s96, 7")
    a(f"v_mov_b32 v{vb+2}, 0")
    for i in range(16):
        a(f"v_mov_b32 v{vb}, s{60+2*i}"); a(f"v_mov_b32 v{vb+1}, s{61+2*i}")
        a(f"buffer_store_dwordx2 v[{vb}:{vb+1}], v{vb+2}, s[92:95], s96 offen offset:{i*8}")
        a("s_nop 1")
    a("s_waitcnt vmcnt(0)")

L_K = 98304; L_V = 131072; NCH = 9
W_SLOT = 36864

def dma(a, voff, srdb, soff, off=0, nt=False, fl=""):
    a(f"buffer_load_dwordx4 v{voff}, s[{srdb}:{srdb+3}], s{soff} offen" + (f" offset:{off}" if off else "") + (" nt" if nt else "") + fl + " lds")
def FL(key):
    return {0: "", 1: " sc1", 2: " sc0", 3: " sc0 sc1"}[OPT.get(key, 0)]

V_WOV = 16
def wo_prep(a):
    srd(a, 52, P_WO, SZ_W)
    for t in range(9):
        a(f"v_add_u32 v1, {64*t}, v0")
        a("v_mul_u32_u24 v2, 3641, v1")
        a("v_lshrrev_b32 v2, 16, v2")
        a("v_mul_u32_u24 v3, 18, v2")
        a("v_sub_u32 v3, v1, v3")
        a("v_lshlrev_b32 v3, 4, v3")
        a("v_mul_u32_u24 v2, 1152, v2")
        a(f"v_add_u32 v{V_WOV+t}, v2, v3")
    a(f"s_mul_i32 s56, s{S_J}, 288")
def wo_issue(a, slot, q0, nq):
    a(f"s_add_u32 s57, s{S_J}, {slot}"); a("s_and_b32 s57, s57, 3")
    a(f"s_lshl_b32 s58, s{S_X}, 2"); a("s_add_u32 s57, s57, s58")
    a(f"s_mul_i32 s57, s57, {128*1152}"); a("s_add_u32 s57, s57, s56")
    if q0: a(f"s_add_u32 s57, s57, {q0*32*1152}")
    a(f"s_mov_b32 m0, {slot*W_SLOT + q0*32*288}"); a("s_nop 0")
    for blk in range(nq):
        for t in range(9):
            dma(a, V_WOV + t, 52, 57, nt=bool(OPT.get('wo_nt', 0)), fl=FL('wofl'))
            if not (blk == nq - 1 and t == 8):
                a("s_add_u32 m0, m0, 1024")
                if t == 8: a(f"s_add_u32 s57, s57, {32*1152}")
                else: a("s_nop 0")

def loader_tail(a, role):
    a("s_barrier")
    stamp(a, 8)
    if OPT.get('s1late', 0):
        if role < 2:
            wo_issue(a, 0, 2 * role, 2)
            a("s_waitcnt vmcnt(0)")
        stamp(a, 9)
        a("s_barrier")
        for sl in (1, 2, 3): wo_issue(a, sl, role, 1)
        stamp(a, 10)
        a("s_waitcnt vmcnt(18)")
        a("s_barrier")
    else:
        if role < 2:
            wo_issue(a, 0, 2 * role, 2); wo_issue(a, 1, 2 * role, 2)
        stamp(a, 9)
        if role < 2: a("s_waitcnt vmcnt(18)")
        a("s_barrier")
        wo_issue(a, 2, role, 1)
        wo_issue(a, 3, role, 1)
        stamp(a, 10)
        if role < 2: a("s_waitcnt vmcnt(18)")
        a("s_barrier")
    a("s_waitcnt vmcnt(9)")
    a("s_barrier")
    a("s_waitcnt vmcnt(0)")
    stamp(a, 11)
    a("s_barrier")

def loader_ring(a, which):
    SRD = 32; SO = 40
    if which == 'wq':
        a("v_lshrrev_b32 v1, 4, v0"); a("v_and_b32 v2, 15, v0")
        a("v_lshlrev_b32 v3, 2, v1"); a("v_xor_b32 v3, v3, v2"); a("v_lshlrev_b32 v3, 4, v3")
        a("v_lshlrev_b32 v4, 13, v1"); a("v_add_u32 v4, v4, v3")
        a(f"s_lshl_b32 s{SO}, s{S_H}, 8")
        def issue(kc):
            a(f"s_mov_b32 m0, {(kc%3)*32768}")
            for t in range(16):
                if t == 0: a("s_nop 0")
                dma(a, 4, SRD, SO, nt=bool(OPT.get('wq_nt', 0)), fl=FL('ringfl'))
                a(f"s_add_u32 s{SO}, s{SO}, 32768")
                if t < 15:
                    a("s_add_u32 m0, m0, 1024"); a("s_nop 0")
    else:
        a("v_lshrrev_b32 v1, 3, v0"); a("v_mul_u32_u24 v1, 1152, v1")
        a("v_and_b32 v2, 7, v0"); a("v_lshrrev_b32 v3, 4, v0"); a("v_xor_b32 v2, v2, v3")
        a("v_lshlrev_b32 v4, 4, v2"); a("v_add_u32 v4, v4, v1")
        a("v_xor_b32 v2, 4, v2"); a("v_lshlrev_b32 v5, 4, v2"); a("v_add_u32 v5, v5, v1")
        a(f"s_mul_i32 s{SO+1}, s{S_G}, 147456")
        def issue(kc):
            a(f"s_mov_b32 m0, {(kc%3)*32768 + 16384}")
            a(f"s_add_u32 s{SO}, s{SO+1}, {kc*128}")
            for T in range(16):
                dma(a, 4 + (T & 1), SRD, SO, nt=bool(OPT.get('x_nt', 0)), fl=FL('ringfl'))
                if T < 15:
                    a("s_add_u32 m0, m0, 1024"); a(f"s_add_u32 s{SO}, s{SO}, 9216")
    kv_pos(a, 43, 'k')
    if which == 'wq':
        a("v_lshrrev_b32 v8, 1, v0"); a("v_and_b32 v9, 1, v0")
        a("v_lshlrev_b32 v8, 13, v8"); a("v_lshl_add_u32 v8, v9, 7, v8")
        a(f"s_lshl_b32 s46, s{S_G}, {5+13}"); a(f"s_lshl_b32 s47, s{S_H}, 8"); a("s_add_u32 s46, s46, s47")
        def touch(part):
            nt = " nt" if OPT.get('wqt_nt', 0) else ""
            if part == 0:
                a(f"buffer_load_dword v10, v8, s[{SRD}:{SRD+3}], s46 offen{nt}")
            else:
                a(f"s_add_u32 s46, s46, {256*8192}")
                a(f"buffer_load_dword v10, v8, s[{SRD}:{SRD+3}], s46 offen{nt}")
                a(f"s_lshl_b32 s46, s{S_G}, {3+13}"); a("s_add_u32 s46, s46, s47"); a(f"s_add_u32 s46, s46, {512*8192}")
                a("s_mov_b64 exec, 0xffff")
                a(f"buffer_load_dword v10, v8, s[{SRD}:{SRD+3}], s46 offen{nt}")
                a("s_mov_b64 exec, -1")
        NT1 = 2
    else:
        if OPT.get('xonce', 0):
            a("v_mul_u32_u24 v8, 7282, v0"); a("v_lshrrev_b32 v8, 16, v8")
            a("v_mul_u32_u24 v9, 9, v8"); a("v_sub_u32 v9, v0, v9")
            a("v_mul_u32_u24 v8, 1152, v8"); a("v_lshl_add_u32 v8, v9, 7, v8")
            a(f"s_mul_i32 s46, s{S_G}, 147456"); a(f"s_mul_i32 s47, s{S_H}, {4*1152}"); a("s_add_u32 s46, s46, s47")
            def touch(part):
                if part == 0:
                    a("s_mov_b32 exec_lo, -1"); a("s_mov_b32 exec_hi, 15")
                    a(f"buffer_load_dword v10, v8, s[{SRD}:{SRD+3}], s46 offen")
                    a("s_mov_b64 exec, -1")
            NT1 = 0
        else:
            a("v_and_b32 v9, 31, v0"); a("v_mul_u32_u24 v9, 1152, v9")
            a("v_lshrrev_b32 v8, 5, v0"); a("v_lshl_add_u32 v8, v8, 7, v9")
            a(f"s_mul_i32 s46, s{S_G}, 147456"); a(f"s_mul_i32 s47, s{S_J}, {32*1152}"); a("s_add_u32 s46, s46, s47")
            def touch(part):
                if part == 0:
                    a(f"buffer_load_dword v10, v8, s[{SRD}:{SRD+3}], s46 offen")
                else:
                    for t in range(1, 4):
                        a(f"buffer_load_dword v10, v8, s[{SRD}:{SRD+3}], s46 offen offset:{256*t}")
                    a("s_mov_b64 exec, 0xffffffff")
                    a(f"buffer_load_dword v10, v9, s[{SRD}:{SRD+3}], s46 offen offset:1024")
                    a("s_mov_b64 exec, -1")
            NT1 = 4
    if OPT.get('lprio', 0): a(f"s_setprio {OPT['lprio']}")
    kwait(a)
    srd(a, SRD, P_WQ if which == 'wq' else P_X, SZ_W if which == 'wq' else SZ_X)
    if OPT.get('tall', 0):
        touch(0); touch(1); NT1 = 0
        issue(0); stamp(a, 1)
    else:
        touch(0)
        issue(0); stamp(a, 1)
        touch(1)
    a("s_barrier")
    if OPT.get('kearly', 0): a("s_barrier")
    bx(a, -1, "r" + which)
    issue(1)
    stamp(a, 2)
    a(f"s_waitcnt vmcnt({16 + NT1})")
    stamp(a, 3)
    a("s_barrier")
    bx(a, 0, "r" + which)
    issue(2)
    for i in range(1, NCH):
        last_issued = min(i + 1, NCH - 1)
        a(f"s_waitcnt vmcnt({(last_issued - i) * 16})")
        a("s_barrier")
        if which == 'wq' and i in (1,2,3,4): stamp(a, {1:4,2:5,3:6,4:12}[i])
        if which == 'x' and i in (5,6,7,8): stamp(a, {5:4,6:5,7:6,8:12}[i])
        if i < 8: bx(a, i, "r" + which)
        if i + 2 < NCH: issue(i + 2)
        if i == 7: wo_prep(a)
    stamp(a, 7)
    loader_tail(a, 0 if which == 'wq' else 1)

def kv_pos(a, sdst, which):
    m = OPT['kvmode']
    if m == 10:
        tab = [-1, 2, 4, 7]
    elif m == 11: tab = [7, 7, 7, 7]
    elif m == 12: tab = [-1, -1, -1, -1]
    elif m == 13: tab = [1, 1, 6, 6]
    elif m == 14: tab = [-1, 1, 4, 7]
    elif m == 15: tab = [0, 3, 5, 7]
    elif m == 16: tab = [2, 7, 2, 7]
    elif m == 17: tab = [3, 5, 7, 7]
    elif m == 20: tab = [-1, 1, 3, 5]
    elif m == 21: tab = [-1, 2, 4, 6]
    elif m == 22: tab = [-1, -1, 3, 3]
    elif m == 23: tab = [-1, 0, 2, 4]
    elif m == 24: tab = [0, 2, 4, 6]
    elif m == 25: tab = [-1, -1, -1, -1]
    packed = sum(((p + 1) & 15) << (4 * k) for k, p in enumerate(tab))
    a(f"s_and_b32 s{sdst}, s{S_G}, 3"); a(f"s_lshl_b32 s{sdst}, s{sdst}, 2")
    a(f"s_lshr_b32 s{sdst}, {packed}, s{sdst}"); a(f"s_and_b32 s{sdst}, s{sdst}, 15")

def bx(a, p, tag):
    if p >= 6: return
    a(f"s_cmp_lg_u32 s43, {p+1}"); a(f"s_cbranch_scc1 L_bx_{tag}_{p+1}")
    a("s_barrier")
    a.label(f"L_bx_{tag}_{p+1}")

def kv_loop(a, tag, issue_fn, extra_fn=None, extra_pos=None):
    a("s_mov_b32 s59, 0")
    a.label(f"L_{tag}_loop")
    a("s_cmp_lg_u32 s59, s43"); a(f"s_cbranch_scc1 L_{tag}_skip")
    stamp(a, 3)
    issue_fn()
    stamp(a, 4)
    a(f"s_cmp_ge_u32 s59, 7"); a(f"s_cbranch_scc1 L_{tag}_skip")
    a("s_barrier")
    a.label(f"L_{tag}_skip")
    if extra_fn is not None:
        a(f"s_cmp_lg_u32 s59, {extra_pos}"); a(f"s_cbranch_scc1 L_{tag}_skip2")
        extra_fn()
        a.label(f"L_{tag}_skip2")
    a("s_barrier")
    a("s_add_u32 s59, s59, 1")
    a("s_cmp_le_u32 s59, 8"); a(f"s_cbranch_scc1 L_{tag}_loop")

def loader_k(a):
    SRD = 32; SO = 40
    kwait(a)
    srd(a, SRD, P_K, SZ_KV)
    a("v_lshrrev_b32 v1, 4, v0"); a("v_and_b32 v2, 15, v0"); a("v_xor_b32 v2, v2, v1")
    a("v_lshlrev_b32 v2, 4, v2"); a("v_lshl_add_u32 v4, v1, 8, v2")
    a("v_xor_b32 v5, 64, v4"); a("v_xor_b32 v6, 128, v4"); a("v_xor_b32 v7, 192, v4")
    wo_prep(a)
    a("v_and_b32 v8, 15, v0"); a("v_mul_u32_u24 v8, 1152, v8")
    a("v_lshrrev_b32 v9, 4, v0"); a("v_lshl_add_u32 v9, v9, 7, v8")
    kv_pos(a, 43, 'k')
    if OPT.get('wswarm', 1):
        srd(a, 44, P_WS, SZ_WS_USED); srd(a, 48, P_OUT, SZ_OUT)
        a(f"s_lshl_b32 s40, s{S_G}, 5"); a(f"s_add_u32 s40, s40, s{S_H}"); a("s_lshl_b32 s40, s40, 15")
        a(f"s_lshl_b32 s41, s{S_G}, 2"); a(f"s_add_u32 s41, s41, s{S_J}"); a("s_lshl_b32 s41, s41, 2")
        a("s_mul_i32 s42, s41, 73728"); a(f"s_add_u32 s42, s42, {WS_D}")
        a(f"s_mul_i32 s45, s{S_X}, 1152") if False else None
        a(f"s_mul_i32 s58, s{S_X}, 1152"); a("s_add_u32 s42, s42, s58")
        a("s_lshl_b32 s41, s41, 8"); a(f"s_add_u32 s41, s41, {WS_F2}")
        a("v_mov_b32 v11, 0")
        a("s_mov_b64 exec, 1")
        a("buffer_load_dword v10, v11, s[44:47], s40 offen")
        a("buffer_load_dword v10, v11, s[44:47], s42 offen")
        a("buffer_load_dword v10, v11, s[44:47], s41 offen sc1")
        a(f"s_lshl_b32 s40, s{S_G}, 7"); a(f"s_lshl_b32 s41, s{S_X}, 1"); a("s_add_u32 s40, s40, s41"); a("s_mul_i32 s40, s40, 1152")
        a(f"s_mul_i32 s41, s{S_J}, 288"); a("s_add_u32 s40, s40, s41")
        a("buffer_load_dword v10, v11, s[48:51], s40 offen")
        a("s_mov_b64 exec, -1")
    if OPT.get('tlbwarm', 0):
        a(f"s_lshl_b32 s{SO}, s{S_G}, 7"); a(f"s_add_u32 s{SO}, s{SO}, s{S_H}"); a(f"s_lshl_b32 s{SO}, s{SO}, 13")
        a("v_lshlrev_b32 v11, 18, v0")
        a("s_mov_b64 exec, 15")
        a(f"buffer_load_dword v10, v11, s[{SRD}:{SRD+3}], s{SO} offen nt")
        a("s_mov_b64 exec, -1")
    a("s_barrier")
    stamp(a, 1)
    KE = OPT.get('kearly', 0)
    def issue(w0=None, w1=4):
        if w0 is None: w0 = KE
        a(f"s_lshl_b32 s{SO}, s{S_G}, 7"); a(f"s_add_u32 s{SO}, s{SO}, s{S_H}"); a(f"s_lshl_b32 s{SO}, s{SO}, 13")
        if w0: a(f"s_add_u32 s{SO}, s{SO}, {w0*32*8192}")
        for w in range(w0, w1):
            for hf in range(2):
                a(f"s_mov_b32 m0, {L_K + w*8192 + hf*4096}"); a("s_nop 0")
                for t4 in range(4):
                    t = hf * 4 + t4
                    dma(a, 4 + (t >> 1), SRD, SO, off=t4 * 1024, nt=bool(OPT['k_nt']), fl=FL('kvfl'))
                a(f"s_add_u32 s{SO}, s{SO}, {4096 if hf == 0 else 32*8192 - 4096}")
    if KE:
        issue(0, KE)
        a("s_barrier")
    def wotouch():
        a(f"s_lshl_b32 s{SO}, s{S_X}, 5"); a(f"s_add_u32 s{SO}, s{SO}, s{S_R}")
        a(f"s_mul_i32 s{SO}, s{SO}, {16*1152}")
        nt = " nt" if OPT.get('wot_nt', 0) else ""
        a(f"buffer_load_dword v10, v9, s[52:55], s{SO} offen{nt}")
        a(f"buffer_load_dword v10, v9, s[52:55], s{SO} offen offset:512{nt}")
        a("s_mov_b64 exec, 0xffff")
        a(f"buffer_load_dword v10, v8, s[52:55], s{SO} offen offset:1024{nt}")
        a("s_mov_b64 exec, -1")
    def wotouch0():
        a(f"s_lshl_b32 s{SO}, s{S_X}, 2"); a(f"s_add_u32 s{SO}, s{SO}, s{S_J}"); a(f"s_lshl_b32 s{SO}, s{SO}, 3")
        a(f"s_add_u32 s{SO}, s{SO}, s{S_G}"); a(f"s_mul_i32 s{SO}, s{SO}, {16*1152}")
        a(f"s_mul_i32 s{SO+1}, s{S_J}, 288"); a(f"s_and_b32 s{SO+1}, s{SO+1}, 0xffffff80"); a(f"s_add_u32 s{SO}, s{SO}, s{SO+1}")
        a("s_mov_b32 exec_lo, -1"); a("s_mov_b32 exec_hi, 0xffff")
        a(f"buffer_load_dword v10, v9, s[52:55], s{SO} offen" + (" nt" if OPT.get('wot_nt', 0) else ""))
        a("s_mov_b64 exec, -1")
    wm = OPT.get('wotmode', 3)
    if wm == 3:
        def both():
            wotouch0(); issue()
        kv_loop(a, "k", both, wotouch, OPT['wot_pos'])
        a("s_waitcnt vmcnt(3)")
    elif wm == 0:
        kv_loop(a, "k", issue, wotouch, OPT['wot_pos'])
        a("s_waitcnt vmcnt(3)")
    if wm in (1, 2):
        def both():
            if wm == 1: wotouch()
            issue()
            if wm == 2: wotouch()
        kv_loop(a, "k", both)
        a("s_waitcnt vmcnt(0)")
    stamp(a, 7)
    loader_tail(a, 2)

def loader_v(a):
    SRD = 32; SO = 40
    kwait(a)
    srd(a, SRD, P_V, SZ_KV)
    a("s_cmp_lg_u32 s2, 0"); a("s_cbranch_scc1 L_nononce")
    srd(a, 48, P_DBG, 256)
    a("s_memrealtime s[42:43]"); a("s_waitcnt lgkmcnt(0)")
    a("s_or_b32 s42, s42, 1")
    a("v_mov_b32 v8, s42"); a("v_mov_b32 v9, s43"); a("v_mov_b32 v1, 0")
    a("s_mov_b64 exec, 1")
    a("buffer_store_dwordx2 v[8:9], v1, s[48:51], 0 offen sc1")
    a("s_mov_b64 exec, -1")
    a.label("L_nononce")
    if OPT['fast']:
        srd(a, 48, P_DBG, 256)
        a("s_getreg_b32 s42, hwreg(HW_REG_XCC_ID)")
        a("s_and_b32 s42, s42, 15")
        a("s_cmp_ge_u32 s42, 8"); a("s_cbranch_scc1 L_noxcc")
        a("s_mul_i32 s43, s42, s42"); a("s_lshl_b32 s43, s43, 5"); a("s_add_u32 s42, s42, s43")
        a("s_add_u32 s42, s42, 0x2000")
        a(f"s_lshl_b32 s43, s{S_G}, 3"); a(f"s_add_u32 s43, s43, s{S_X}")
        a("s_and_b32 s41, s43, 1"); a("s_lshl_b32 s41, s41, 4"); a("s_lshl_b32 s42, s42, s41")
        a("s_lshr_b32 s43, s43, 1"); a("s_lshl_b32 s43, s43, 2"); a("s_add_u32 s43, s43, 128")
        a("v_mov_b32 v8, s42"); a("v_mov_b32 v1, 0")
        a("s_mov_b64 exec, 1")
        a("buffer_atomic_add v8, v1, s[48:51], s43 offen")
        a("s_mov_b64 exec, -1")
        a.label("L_noxcc")
    a("v_lshrrev_b32 v1, 4, v0"); a("v_and_b32 v2, 15, v0"); a("v_lshlrev_b32 v3, 1, v1")
    a("v_xor_b32 v2, v2, v3"); a("v_lshlrev_b32 v2, 4, v2"); a("v_lshl_add_u32 v4, v1, 8, v2")
    a("v_xor_b32 v5, 128, v4")
    wo_prep(a)
    kv_pos(a, 43, 'v')
    def otouch():
        srd(a, 44, P_WS, SZ_WS_USED)
        a(f"s_lshl_b32 s41, s{S_G}, 5"); a(f"s_add_u32 s41, s41, s{S_H}"); a("s_lshl_b32 s41, s41, 15")
        a("v_lshlrev_b32 v11, 7, v0")
        for t in range(4):
            a("buffer_load_dword v10, v11, s[44:47], s41 offen")
            if t < 3: a("s_add_u32 s41, s41, 8192")
    if OPT.get('oplain', 0) == 1: otouch()
    if OPT.get('tlbwarm', 0):
        a(f"s_lshl_b32 s{SO}, s{S_G}, 7"); a(f"s_add_u32 s{SO}, s{SO}, s{S_H}"); a(f"s_lshl_b32 s{SO}, s{SO}, 13")
        a("v_lshlrev_b32 v11, 18, v0")
        a("s_mov_b64 exec, 15")
        a(f"buffer_load_dword v10, v11, s[{SRD}:{SRD+3}], s{SO} offen nt")
        a("s_mov_b64 exec, -1")
    a("s_barrier")
    if OPT.get('kearly', 0): a("s_barrier")
    stamp(a, 1)
    def issue():
        a(f"s_lshl_b32 s{SO}, s{S_G}, 7"); a(f"s_add_u32 s{SO}, s{SO}, s{S_H}"); a(f"s_lshl_b32 s{SO}, s{SO}, 13")
        for w in range(4):
            for hf in range(2):
                a(f"s_mov_b32 m0, {L_V + w*8192 + hf*4096}"); a("s_nop 0")
                for t4 in range(4):
                    t = hf * 4 + t4
                    dma(a, 4 + ((t >> 1) & 1), SRD, SO, off=t4 * 1024, nt=bool(OPT['v_nt']), fl=FL('kvfl'))
                a(f"s_add_u32 s{SO}, s{SO}, {4096 if hf == 0 else 32*8192 - 4096}")
    if OPT.get('oplain', 0) == 2:
        def both():
            issue(); otouch()
        kv_loop(a, "v", both)
    elif OPT.get('oplain', 0) == 3:
        kv_loop(a, "v", issue, otouch, OPT.get('otpos', 1))
    else:
        kv_loop(a, "v", issue)
    if OPT.get('vearly', 0): a("s_waitcnt vmcnt(0)")
    stamp(a, 7)
    loader_tail(a, 3)

V_XA = [4, 8]; V_WA = [12, 248]
V_A = [16, 32]; V_B = [48, 52]; V_ACC = 64
V_QF = 128; V_KF = 160; V_S = 192; V_VF = 208; V_PF = 240; V_OF = 128
V_KA = 56; V_VA = 60; V_CLW = 61; V_NONCE = 62
SC_SCALE = 0.08838834764831845 * 1.4426950408889634

def gemm1_addrs(a):
    a("v_and_b32 v1, 31, v0"); a("v_lshrrev_b32 v2, 5, v0"); a("v_bfe_u32 v3, v0, 1, 3")
    a("v_xor_b32 v2, v2, v3"); a("v_lshlrev_b32 v2, 4, v2"); a("v_lshl_add_u32 v2, v1, 7, v2")
    a(f"s_lshl_b32 s40, s{S_WAVE}, 12"); a("s_add_u32 s40, s40, 16384")
    a("v_add_u32 v2, s40, v2")
    for ks in range(4):
        a(f"v_xor_b32 v{V_XA[0]+ks}, {32*ks}, v2"); a(f"v_add_u32 v{V_XA[1]+ks}, 65536, v{V_XA[0]+ks}")
    a("v_bfe_u32 v1, v0, 2, 2"); a("v_lshrrev_b32 v2, 5, v0"); a("v_lshl_add_u32 v2, v2, 3, v1")
    a("v_lshlrev_b32 v2, 8, v2"); a("v_and_b32 v3, 1, v0"); a("v_lshl_add_u32 v2, v3, 5, v2")
    a("v_bfe_u32 v3, v0, 4, 1"); a("v_lshl_add_u32 v2, v3, 4, v2")
    a("v_bfe_u32 v3, v0, 1, 1"); a("v_lshl_add_u32 v2, v3, 3, v2")
    a("v_lshl_add_u32 v2, v1, 6, v2")
    for dt in range(4):
        a(f"v_xor_b32 v{V_WA[0]+dt}, {64*dt}, v2"); a(f"v_add_u32 v{V_WA[1]+dt}, 65536, v{V_WA[0]+dt}")

def attn_addrs(a):
    a("v_and_b32 v1, 15, v0"); a("v_lshrrev_b32 v2, 4, v0"); a("v_xor_b32 v2, v2, v1")
    a("v_lshlrev_b32 v2, 4, v2"); a("v_lshrrev_b32 v3, 2, v1"); a("v_lshl_add_u32 v2, v3, 11, v2")
    a("v_and_b32 v3, 3, v1"); a("v_lshl_add_u32 v2, v3, 8, v2")
    a(f"s_lshl_b32 s40, s{S_WAVE}, 13"); a(f"s_add_u32 s40, s40, {L_K}")
    a("v_add_u32 v2, s40, v2")
    for st in range(4): a(f"v_xor_b32 v{V_KA+st}, {64*st}, v2")
    a("v_lshrrev_b32 v1, 4, v0"); a("v_bfe_u32 v3, v0, 2, 2"); a("v_lshl_add_u32 v2, v1, 3, v3")
    a("v_lshlrev_b32 v2, 8, v2"); a("v_and_b32 v1, 1, v1"); a("v_lshl_add_u32 v3, v1, 2, v3")
    a("v_lshl_add_u32 v2, v3, 5, v2"); a("v_and_b32 v3, 3, v0"); a("v_lshl_add_u32 v2, v3, 3, v2")
    a(f"s_lshl_b32 s40, s{S_WAVE}, 13"); a(f"s_add_u32 s40, s40, {L_V}")
    a(f"v_add_u32 v{V_VA}, s40, v2")

def g1_reads(n):
    i, ks = divmod(n, 4)
    slot = i % 3; st = n & 1; hs = 1 if slot == 2 else 0; so = (slot & 1) * 32768 if slot < 2 else 0
    r = [f"ds_read_b128 {vr(V_B[st],4)}, v{V_XA[hs]+ks} offset:{so}"]
    for dt in range(4):
        base = V_A[st] + 4 * dt
        off = so + ks * 4096
        r.append(f"ds_read_b64_tr_b16 {vr(base,2)}, v{V_WA[hs]+dt} offset:{off}")
        r.append(f"ds_read_b64_tr_b16 {vr(base+2,2)}, v{V_WA[hs]+dt} offset:{off+1024}")
    return r

def gemm1(a):
    NS = NCH * 4
    kv_pos(a, 43, 'k')
    a("s_barrier")
    if OPT.get('kearly', 0): a("s_barrier")
    bx(a, -1, "c")
    a("s_barrier")
    stamp(a, 1)
    for r in g1_reads(0): a(r)
    for n in range(NS):
        i, ks = divmod(n, 4); st = n & 1
        nxt = g1_reads(n + 1) if n + 1 < NS else []
        def mf(dt):
            c = "0" if n == 0 else vr(V_ACC + 16 * dt, 16)
            a(f"v_mfma_f32_32x32x16_bf16 {vr(V_ACC+16*dt,16)}, {vr(V_A[st]+4*dt,4)}, {vr(V_B[st],4)}, {c}")
        if ks == 3:
            for dt in range(4):
                a(f"s_waitcnt lgkmcnt({[6,4,2,0][dt]})")
                if dt == 3 and nxt:
                    bx(a, i, "c")
                    a("s_barrier")
                    for r in nxt[:5]: a(r)
                mf(dt)
            for r in nxt[5:]: a(r)
        else:
            first_after_boundary = (ks == 0 and n > 0)
            for dt in range(4):
                a(f"s_waitcnt lgkmcnt({[6,7,8,9][dt]})")
                mf(dt)
                if dt < 3:
                    for r in nxt[3*dt:3*dt+3]: a(r)
        if n == 33 and OPT.get('nonce_in', 1): get_nonce(a)
        if n == 24:
            a(f"buffer_load_dwordx2 {vr(V_NONCE,2)}, v1, s[36:39], 0 offen sc1")
            if OPT['fast']:
                a(f"buffer_load_dword v{V_CLW}, v1, s[36:39], s40 offen sc1")
                a(f"buffer_load_dword v2, v1, s[44:47], s42 offen sc1")

def attention(a):
    VE = OPT.get('vearly', 0)
    a("s_barrier")
    stamp(a, 3)
    for ai in range(2):
        for st in range(4):
            a(f"ds_read_b128 {vr(V_KF+(ai*4+st)*4,4)}, v{V_KA+st} offset:{ai*1024}")
    def vreads(T0, T1):
        for T in range(T0, T1):
            if T: a(f"v_xor_b32 v1, {32*T}, v{V_VA}")
            ad = "v1" if T else f"v{V_VA}"
            a(f"ds_read_b64_tr_b16 {vr(V_VF+4*T,2)}, {ad}")
            a(f"ds_read_b64_tr_b16 {vr(V_VF+4*T+2,2)}, {ad} offset:1024")
    for dt in range(4):
        for i in range(8):
            a(f"v_cvt_pk_bf16_f32 v{V_QF+8*dt+i}, v{V_ACC+16*dt+2*i}, v{V_ACC+16*dt+2*i+1}")
        if VE and dt == 1:
            a("s_waitcnt lgkmcnt(0)"); vreads(0, 4)
    a("s_nop 1")
    for dt in range(4):
        for i in range(4):
            a(f"v_permlane16_swap_b32 v{V_QF+8*dt+i}, v{V_QF+8*dt+4+i}")
    if VE:
        a("s_waitcnt lgkmcnt(4)"); vreads(4, 8)
    else:
        a("s_waitcnt lgkmcnt(0)")
    for st in range(4):
        for ai in range(2):
            for qt in range(2):
                d = vr(V_S + (ai*2+qt)*4, 4)
                c = "0" if st == 0 else d
                a(f"v_mfma_f32_16x16x32_bf16 {d}, {vr(V_KF+(ai*4+st)*4,4)}, {vr(V_QF+8*st+4*qt,4)}, {c}")
    if VE:
        a("s_waitcnt lgkmcnt(0)")
    def S(ai, qt, v): return V_S + (ai*2+qt)*4 + v
    M = [48, 49]; T_ = [50, 51]; SUM = [52, 53]
    a("s_nop 7")
    for qt in range(2): a(f"v_max3_f32 v{M[qt]}, v{S(0,qt,0)}, v{S(0,qt,1)}, v{S(0,qt,2)}")
    for qt in range(2): a(f"v_max3_f32 v{M[qt]}, v{M[qt]}, v{S(0,qt,3)}, v{S(1,qt,0)}")
    for qt in range(2): a(f"v_max3_f32 v{M[qt]}, v{M[qt]}, v{S(1,qt,1)}, v{S(1,qt,2)}")
    for qt in range(2): a(f"v_max_f32 v{M[qt]}, v{M[qt]}, v{S(1,qt,3)}")
    def xlane(regs, tmps, op):
        for sw in ("v_permlane16_swap_b32", "v_permlane32_swap_b32"):
            for qt in range(2): a(f"v_mov_b32 v{tmps[qt]}, v{regs[qt]}")
            a("s_nop 0")
            for qt in range(2): a(f"{sw} v{tmps[qt]}, v{regs[qt]}")
            a("s_nop 0")
            for qt in range(2): a(f"{op} v{regs[qt]}, v{regs[qt]}, v{tmps[qt]}")
    xlane(M, T_, "v_max_f32")
    a(f"s_mov_b32 s41, {f32hex(SC_SCALE)}")
    for qt in range(2): a(f"v_mul_f32 v{M[qt]}, s41, v{M[qt]}")
    for ai in range(2):
        for v in range(4):
            for qt in range(2): a(f"v_fma_f32 v{S(ai,qt,v)}, v{S(ai,qt,v)}, s41, -v{M[qt]}")
    for ai in range(2):
        for v in range(4):
            for qt in range(2): a(f"v_exp_f32 v{S(ai,qt,v)}, v{S(ai,qt,v)}")
    a("s_nop 0")
    for qt in range(2): a(f"v_add_f32 v{SUM[qt]}, v{S(0,qt,0)}, v{S(0,qt,1)}")
    for (ai, v) in [(0,2),(0,3),(1,0),(1,1),(1,2),(1,3)]:
        for qt in range(2): a(f"v_add_f32 v{SUM[qt]}, v{SUM[qt]}, v{S(ai,qt,v)}")
    xlane(SUM, T_, "v_add_f32")
    for qt in range(2): a(f"v_rcp_f32 v{SUM[qt]}, v{SUM[qt]}")
    a("s_nop 0")
    for ai in range(2):
        for v in range(4):
            for qt in range(2): a(f"v_mul_f32 v{S(ai,qt,v)}, v{S(ai,qt,v)}, v{SUM[qt]}")
    for qt in range(2):
        for ai in range(2):
            for h2 in range(2):
                a(f"v_cvt_pk_bf16_f32 v{V_PF+4*qt+2*ai+h2}, v{S(ai,qt,2*h2)}, v{S(ai,qt,2*h2+1)}")
    stamp(a, 4)
    if VE:
        a("s_nop 0")
    else:
        a("s_barrier")
        vreads(0, 6); a("s_waitcnt lgkmcnt(4)"); vreads(6, 8)
        a("s_waitcnt lgkmcnt(0)")
        a("s_barrier")
    def pv(T):
        for qt in range(2):
            a(f"v_mfma_f32_16x16x32_bf16 {vr(V_ACC+(T*2+qt)*4,4)}, {vr(V_VF+4*T,4)}, {vr(V_PF+4*qt,4)}, 0")
    def pack(p):
        for qt in range(2):
            for e in range(2):
                T = 2*p + e
                for h2 in range(2):
                    src = V_ACC + (T*2+qt)*4 + 2*h2
                    a(f"v_cvt_pk_bf16_f32 v{V_OF+(2*p+qt)*4+2*e+h2}, v{src}, v{src+1}")
    if OPT.get('ostin', 1):
        o_store(a)
        a("s_nop 0")
        cnt = [0]
        def ost(i0):
            if OPT.get('oplain', 0):
                cnt[0] += 1
                a(f"s_cmp_eq_u32 s{S_FAST}, 0"); a(f"s_cbranch_scc1 L_os_slow{cnt[0]}")
                a(OSTORES[i0].replace(" sc1", "")); a(OSTORES[i0+1].replace(" sc1", ""))
                a(f"s_branch L_os_join{cnt[0]}")
                a.label(f"L_os_slow{cnt[0]}")
                a(OSTORES[i0]); a(OSTORES[i0+1])
                a.label(f"L_os_join{cnt[0]}")
            else:
                a(OSTORES[i0]); a(OSTORES[i0+1])
        for T in range(6): pv(T)
        pack(0); pv(6); ost(0); pv(7)
        pack(1); ost(2)
        if not OPT.get('b12late', 1): a("s_barrier")
        else: a("s_nop 0")
        pack(2); ost(4)
        a("s_nop 1")
        pack(3); ost(6)
        if OPT.get('b12late', 1) and OPT.get('flagpos', 3) >= 0: a("s_barrier")
    else:
        for T in range(8): pv(T)
        if VE: a("s_barrier")
        a("s_nop 7")
        for p in range(4): pack(p)

V2_ACC = 16
V2_A = [88, 108]
V2_AD = [4, 5, 6, 12]
BUF = [160, 192, 224]

def p2_areads(slot, p, half, buf=None):
    r = []
    ad = V2_AD[slot]
    taus = range(0, 5) if half == 0 else range(5, 9)
    if buf is None: buf = half
    for k, tau in enumerate(taus):
        off = p * 32 * 288 + 32 * tau
        base = V2_A[buf] + 4 * k
        r.append(f"ds_read_b64_tr_b16 {vr(base,2)}, v{ad} offset:{off}")
        r.append(f"ds_read_b64_tr_b16 {vr(base+2,2)}, v{ad} offset:{off+16*288}")
    return r

def p2_bloads(a, slot, breg):
    a(f"s_add_u32 s45, s{S_J}, {slot}"); a("s_and_b32 s45, s45, 3"); a("s_add_u32 s45, s45, s44")
    a("s_lshl_b32 s45, s45, 2"); a(f"s_add_u32 s45, s45, s{S_WAVE}")
    a("s_lshl_b32 s46, s45, 13"); a("s_add_u32 s47, s46, 4096")
    for f in range(8):
        a(f"buffer_load_dwordx4 {vr(breg+4*f,4)}, v7, s[32:35], s{46 + f//4} offen offset:{(f%4)*1024} sc1")

S_NON = 52
S_FAST = 54

def get_nonce(a):
    a("s_waitcnt vmcnt(0)")
    a("v_mov_b32 v9, 0")
    a("s_mov_b32 s50, 0")
    a.label("L_nonce_chk")
    a(f"v_readfirstlane_b32 s{S_NON}, v{V_NONCE}"); a(f"v_readfirstlane_b32 s{S_NON+1}, v{V_NONCE+1}")
    a("s_nop 0")
    a(f"s_cmp_lg_u32 s{S_NON}, 0"); a("s_cbranch_scc1 L_nonce_ok")
    a(f"buffer_load_dwordx2 {vr(V_NONCE,2)}, v9, s[36:39], 0 offen sc1")
    a("s_add_u32 s50, s50, 1"); a("s_waitcnt vmcnt(0)")
    a(f"s_cmp_lt_u32 s50, {OPT['spin_max']}"); a("s_cbranch_scc1 L_nonce_chk")
    a.label("L_nonce_ok")
    a(f"s_mov_b32 s{S_FAST}, 0")
    if OPT['fast']:
        a(f"v_readfirstlane_b32 s55, v{V_CLW}")
        a(f"s_and_b32 s56, s{S_X}, 1"); a("s_lshl_b32 s56, s56, 4"); a("s_lshr_b32 s55, s55, s56")
        a("s_and_b32 s56, s55, 31")
        a("s_bfe_u32 s57, s55, 0x80005")
        a("s_bfe_u32 s55, s55, 0x3000d")
        a("s_mul_i32 s56, s56, s56"); a("s_lshl_b32 s57, s57, 2")
        a("s_cmp_eq_u32 s56, s57"); a(f"s_cselect_b32 s{S_FAST}, 1, 0")
        a("s_cmp_eq_u32 s55, 4"); a(f"s_cselect_b32 s{S_FAST}, s{S_FAST}, 0")
        if OPT['fast'] == 2: a(f"s_mov_b32 s{S_FAST}, 0")

def poll(a, tag, voff, soff, sleep=0):
    a("s_mov_b32 s50, 0")
    a.label(f"L_poll_{tag}")
    if sleep: a(f"s_sleep {sleep}")
    a(f"buffer_load_dwordx2 v[10:11], v{voff}, s[32:35], s{soff} offen sc1")
    a("s_add_u32 s50, s50, 1"); a("s_waitcnt vmcnt(0)")
    a(f"v_cmp_eq_u64 vcc, v[10:11], s[{S_NON}:{S_NON+1}]")
    a(f"s_cmp_ge_u32 s50, {OPT['spin_max']}"); a(f"s_cbranch_scc1 L_poll_{tag}_done")
    a("s_cmp_eq_u64 vcc, -1"); a(f"s_cbranch_scc0 L_poll_{tag}")
    a.label(f"L_poll_{tag}_done")

def flag_store(a, soff, mode):
    a(f"v_mov_b32 v10, s{S_NON}"); a(f"v_mov_b32 v11, s{S_NON+1}")
    a("s_mov_b64 exec, 1")
    if mode == 'dyn':
        a(f"s_cmp_eq_u32 s{S_FAST}, 0"); a("s_cbranch_scc1 L_flag_slow")
        a(f"buffer_store_dwordx2 v[10:11], v9, s[32:35], s{soff} offen")
        a("s_branch L_flag_join")
        a.label("L_flag_slow")
        a(f"buffer_store_dwordx2 v[10:11], v9, s[32:35], s{soff} offen sc1")
        a.label("L_flag_join")
    else:
        a(f"buffer_store_dwordx2 v[10:11], v9, s[32:35], s{soff} offen sc1")
    a("s_mov_b64 exec, -1")

def o_store(a):
    srd(a, 32, P_WS, SZ_WS_USED)
    a("v_lshlrev_b32 v7, 4, v0")
    a(f"s_lshl_b32 s40, s{S_G}, 5"); a(f"s_add_u32 s40, s40, s{S_H}"); a("s_lshl_b32 s40, s40, 2")
    a(f"s_add_u32 s40, s40, s{S_WAVE}"); a("s_lshl_b32 s40, s40, 13"); a("s_add_u32 s41, s40, 4096")
    global OSTORES
    OSTORES = [f"buffer_store_dwordx4 {vr(V_OF+4*f,4)}, v7, s[32:35], s{40 + f//4} offen offset:{(f%4)*1024} sc1" for f in range(8)]
    a("v_lshrrev_b32 v2, 4, v0"); a("v_bfe_u32 v3, v0, 2, 2"); a("v_lshl_add_u32 v2, v2, 2, v3")
    a("v_mul_u32_u24 v2, 288, v2"); a("v_and_b32 v3, 3, v0")
    a(f"v_lshl_add_u32 v{V2_AD[0]}, v3, 3, v2")
    for sl in range(1, 4): a(f"v_add_u32 v{V2_AD[sl]}, {sl*W_SLOT}, v{V2_AD[0]}")
    a(f"s_lshl_b32 s44, s{S_G}, 5"); a(f"s_lshl_b32 s45, s{S_X}, 2"); a("s_add_u32 s44, s44, s45")
    a(f"s_lshl_b32 s48, s{S_G}, 3"); a(f"s_add_u32 s48, s48, s{S_X}"); a("s_lshl_b32 s48, s48, 2")
    a(f"s_add_u32 s48, s48, s{S_WAVE}"); a("s_lshl_b32 s48, s48, 7"); a(f"s_add_u32 s48, s48, {WS_F}")
    a(f"s_lshl_b32 s49, s{S_J}, 3"); a("s_add_u32 s49, s49, s48")
    a("v_and_b32 v8, 3, v0"); a("v_lshlrev_b32 v8, 3, v8")

def bload_list(slot, breg):
    setup = [f"s_add_u32 s45, s{S_J}, {slot}", "s_and_b32 s45, s45, 3", "s_add_u32 s45, s45, s44",
             "s_lshl_b32 s45, s45, 2", f"s_add_u32 s45, s45, s{S_WAVE}",
             "s_lshl_b32 s46, s45, 13", "s_add_u32 s47, s46, 4096"]
    loads = [f"buffer_load_dwordx4 {vr(breg+4*f,4)}, v7, s[32:35], s{46 + f//4} offen offset:{(f%4)*1024} sc1" for f in range(8)]
    return setup, loads

def p2_run(a, hs, n0, n1, hooks_pre=None, hooks_mid=None, inject=None, spread=None):
    hooks_pre = hooks_pre or {}; hooks_mid = hooks_mid or {}; inject = inject or {}; spread = spread or {}
    for n in range(n0, n1):
        (s, p, hf) = hs[n]
        breg = V_OF if s == 0 else BUF[s - 1]
        nxt = p2_areads(*hs[n+1], buf=(n+1) & 1) if n + 1 < n1 else []
        taus = list(range(0, 5)) if hf == 0 else list(range(5, 9))
        nown = 2 * len(taus)
        nm = nown
        plan = [0] * nm
        for t in range(len(nxt)): plan[t % nm] += 1
        issued = 0; m = 0
        inj = list(inject.get(n, []))
        spr = list(spread.get(n, []))
        per = -(-len(spr) // nm) if spr else 0
        if n in hooks_pre: hooks_pre[n]()
        for k, tau in enumerate(taus):
            a(f"s_waitcnt lgkmcnt({nown - 2 * (k + 1) + issued})")
            for qt in range(2):
                d = vr(V2_ACC + (tau*2+qt)*4, 4)
                c = "0" if (s == 0 and p == 0) else d
                a(f"v_mfma_f32_16x16x32_bf16 {d}, {vr(V2_A[n & 1]+4*k,4)}, {vr(breg+(2*p+qt)*4,4)}, {c}")
                if m == 0 and n in hooks_mid: hooks_mid[n]()
                if nxt:
                    for r in nxt[issued:issued+plan[m]]: a(r)
                    issued = min(len(nxt), issued + plan[m])
                for _ in range(per):
                    if spr: a(spr.pop(0))
                m += 1
                if k >= len(taus) - 1 and inj: a(inj.pop(0))
        while inj: a(inj.pop(0))
        while spr: a(spr.pop(0))

def d_prep(a):
    a("v_bfe_u32 v13, v0, 1, 3"); a("v_mul_u32_u24 v13, 9216, v13")
    a("v_lshrrev_b32 v14, 4, v0"); a("v_lshlrev_b32 v14, 1, v14"); a("v_and_b32 v15, 1, v0")
    a("v_add_u32 v14, v14, v15"); a("v_lshl_add_u32 v13, v14, 4, v13")
    a(f"s_lshl_b32 s58, s{S_G}, 2"); a(f"s_add_u32 s58, s58, s{S_J}"); a("s_lshl_b32 s58, s58, 2")
    a(f"s_add_u32 s58, s58, s{S_WAVE}")
    a("s_mul_i32 s59, s58, 73728"); a(f"s_add_u32 s59, s59, {WS_D}")
    a(f"s_mul_i32 s40, s{S_X}, 1152"); a("s_add_u32 s40, s40, s59")

def d_pack_store(tau, G=160):
    r = []
    for qt in range(2):
        for h2 in range(2):
            src = V2_ACC + (tau*2+qt)*4 + 2*h2
            r.append(f"v_cvt_pk_bf16_f32 v{G+4*tau+2*qt+h2}, v{src}, v{src+1}")
    r.append(f"buffer_store_dwordx4 {vr(G+4*tau,4)}, v13, s[32:35], s40 offen offset:{128*tau} sc1")
    return r

def tail(a):
    hs = [(s, p, hf) for s in range(2) for p in range(4) for hf in range(2)]
    hs += [(2, p, 0) for p in range(4)] + [(3, p, 0) for p in range(4)]
    hs += [(2, p, 1) for p in range(4)] + [(3, p, 1) for p in range(4)]
    if not OPT.get('ostin', 1):
        o_store(a)
        for x in OSTORES: a(x)
    stamp(a, 6)
    if OPT.get('flagpos', 3) >= 0:
        for r in p2_areads(*hs[0], buf=0): a(r)
    def exch():
        a("s_waitcnt vmcnt(0)")
        flag_store(a, 49, 'dyn')
        stamp(a, 7)
        if OPT.get('poll1', 1):
            a(f"s_add_u32 s56, s{S_J}, 1"); a("s_and_b32 s56, s56, 3")
            a("s_mov_b32 s50, 0")
            a.label("L_poll_o1")
            if OPT.get('o_sleep', 0): a(f"s_sleep {OPT['o_sleep']}")
            a("buffer_load_dwordx2 v[10:11], v8, s[32:35], s48 offen sc1")
            a("s_add_u32 s50, s50, 1"); a("s_waitcnt vmcnt(0)")
            a(f"v_cmp_eq_u64 vcc, v[10:11], s[{S_NON}:{S_NON+1}]")
            a(f"s_cmp_ge_u32 s50, {OPT['spin_max']}"); a("s_cbranch_scc1 L_poll_o1_done")
            a("s_bitcmp1_b32 vcc_lo, s56"); a("s_cbranch_scc0 L_poll_o1")
            a.label("L_poll_o1_done")
            a("s_cmp_eq_u64 vcc, -1"); a("s_cselect_b32 s55, 1, 0")
        else:
            poll(a, "o", 8, 48, sleep=OPT.get('o_sleep', 0))
        stamp(a, 8)
        p2_bloads(a, 1, BUF[0])
        a("s_nop 3")
    if OPT.get('flagpos', 3) >= 0:
        p2_run(a, hs, 0, 8, hooks_pre={OPT.get('flagpos', 4): exch})
    else:
        exch()
        a("s_barrier")
        for r in p2_areads(*hs[0], buf=0): a(r)
        p2_run(a, hs, 0, 8)
    a("s_barrier")
    tstamp(a, 1)
    if OPT.get('poll1', 1):
        a("s_cmp_eq_u32 s55, 1"); a("s_cbranch_scc1 L_poll_o_skip")
        poll(a, "o", 8, 48, sleep=OPT.get('o_sleep', 0))
        a.label("L_poll_o_skip")
    for r in p2_areads(*hs[8], buf=0): a(r)
    su2, l2 = bload_list(2, BUF[1]); su3, l3 = bload_list(3, BUF[2])
    for x in su2: a(x)
    d_prep(a)
    inj = {}
    for t in range(4):
        inj[8 + t] = list(l2[2*t:2*t+2])
        inj[12 + t] = list(l3[2*t:2*t+2])
    inj[11] = inj[11] + su3
    spr = {25: d_pack_store(0) + d_pack_store(1), 26: d_pack_store(2) + d_pack_store(3), 27: d_pack_store(4)}
    W = lambda n: (lambda: a(f"s_waitcnt vmcnt({n})"))
    def WC(n, idx):
        def f():
            if OPT.get('cyc', 0): cstamp(a, idx)
            if n is not None: a(f"s_waitcnt vmcnt({n})")
        return f
    p2_run(a, hs, 8, 32,
           hooks_pre={8: WC(6, 3), 10: W(8), 12: W(10), 14: W(12), 16: WC(8, 4), 20: W(0), 24: WC(None, 13)},
           hooks_mid={15: lambda: a("s_barrier"), 19: lambda: a("s_barrier")},
           inject=inj, spread=spr)
    if OPT.get('cyc', 0): cstamp(a, 1)
    stamp(a, 9)
    reduce_inkernel(a)

def store_partials_f32(a):
    a("s_nop 7")
    a(f"s_lshl_b32 s45, s{S_X}, 3"); a(f"s_add_u32 s45, s45, s{S_G}"); a("s_lshl_b32 s45, s45, 2")
    a(f"s_add_u32 s45, s45, s{S_J}"); a("s_lshl_b32 s45, s45, 2"); a(f"s_add_u32 s45, s45, s{S_WAVE}")
    a(f"s_mul_i32 s45, s45, {18*1024}"); a(f"s_add_u32 s45, s45, {WS_P}")
    for u in range(18):
        if u and u % 4 == 0: a("s_add_u32 s45, s45, 4096")
        a(f"buffer_store_dwordx4 {vr(V2_ACC+4*u,4)}, v7, s[32:35], s45 offen offset:{(u%4)*1024}")

def store_partials_bf16(a):
    G = 160
    a(f"s_lshl_b32 s44, s{S_G}, 2"); a(f"s_add_u32 s44, s44, s{S_J}"); a("s_lshl_b32 s44, s44, 2")
    a(f"s_add_u32 s44, s44, s{S_WAVE}")
    a(f"s_lshl_b32 s45, s{S_X}, 7"); a("s_add_u32 s45, s45, s44"); a("s_mul_i32 s45, s45, 9216")
    a(f"s_add_u32 s45, s45, {WS_P}"); a("s_add_u32 s46, s45, 4096"); a("s_add_u32 s47, s45, 8192")
    sc = " sc1" if OPT.get('psc1', 1) else ""
    for tau in range(9):
        for qt in range(2):
            for h2 in range(2):
                src = V2_ACC + (tau*2+qt)*4 + 2*h2
                a(f"v_cvt_pk_bf16_f32 v{G+4*tau+2*qt+h2}, v{src}, v{src+1}")
        a(f"buffer_store_dwordx4 {vr(G+4*tau,4)}, v7, s[32:35], s{45 + tau//4} offen offset:{(tau%4)*1024}{sc}")

def kernel3b(a):
    name = "mha_p3_kernel"
    a(".p2align 8"); a(f".globl {name}"); a(f".type {name},@function"); a.label(name)
    a("s_cmp_ge_u32 s2, 288"); a(f"s_cbranch_scc1 L_end_{name}")
    a("s_load_dwordx2 s[26:27], s[0:1], 40"); a("s_load_dwordx2 s[30:31], s[0:1], 56")
    a("v_lshrrev_b32 v1, 6, v0"); a("v_and_b32 v0, 63, v0")
    a("s_lshl_b32 s5, s2, 2")
    a(f"v_readfirstlane_b32 s{S_WAVE}, v1")
    a("v_lshlrev_b32 v1, 4, v0")
    a(f"s_add_u32 s5, s5, s{S_WAVE}")
    a("s_mul_i32 s45, s5, 1024"); a(f"s_add_u32 s45, s45, {WS_P}")
    a("s_mul_hi_u32 s6, s5, 477218589")
    a("s_mul_i32 s7, s6, 9"); a("s_sub_u32 s7, s5, s7")
    a("s_waitcnt lgkmcnt(0)")
    srd(a, 32, P_WS, SZ_WS_USED); srd(a, 36, P_OUT, SZ_OUT)
    for x in range(8):
        a(f"buffer_load_dwordx4 {vr(8+4*x,4)}, v1, s[32:35], s45 offen")
        if x < 7: a(f"s_add_u32 s45, s45, {128*9216}")
    a("v_and_b32 v2, 15, v0"); a("v_mul_u32_u24 v2, 1152, v2"); a("v_lshrrev_b32 v3, 4, v0")
    a("v_lshl_add_u32 v2, v3, 3, v2")
    a("s_lshr_b32 s46, s6, 4"); a("s_lshl_b32 s46, s46, 2"); a("s_and_b32 s47, s6, 3"); a("s_add_u32 s46, s46, s47")
    a(f"s_mul_i32 s46, s46, {32*1152}")
    a("s_lshr_b32 s47, s6, 2"); a("s_and_b32 s47, s47, 3"); a("s_mul_i32 s47, s47, 288"); a("s_add_u32 s46, s46, s47")
    a("s_lshl_b32 s47, s7, 5"); a("s_add_u32 s46, s46, s47"); a(f"s_add_u32 s47, s46, {16*1152}")
    for x in range(8):
        a(f"s_waitcnt vmcnt({7-x})")
        for d in range(4):
            src = 8 + 4*x + d
            if x == 0:
                a(f"v_lshlrev_b32 v{40+2*d}, 16, v{src}"); a(f"v_and_b32 v{40+2*d+1}, 0xffff0000, v{src}")
            else:
                a(f"v_lshlrev_b32 v48, 16, v{src}"); a(f"v_and_b32 v49, 0xffff0000, v{src}")
                a(f"v_pk_add_f32 v[{40+2*d}:{40+2*d+1}], v[{40+2*d}:{40+2*d+1}], v[48:49]")
    for d in range(4): a(f"v_cvt_pk_bf16_f32 v{50+d}, v{40+2*d}, v{40+2*d+1}")
    a("buffer_store_dwordx2 v[50:51], v2, s[36:39], s46 offen")
    a("buffer_store_dwordx2 v[52:53], v2, s[36:39], s47 offen")
    a.label(f"L_end_{name}")
    a("s_endpgm")

def reduce_inkernel(a):
    RA = 196; RB = 88
    a("s_nop 7")
    for tau in range(5, 9):
        for x in d_pack_store(tau): a(x)
    a("s_lshl_b32 s48, s58, 8"); a(f"s_add_u32 s48, s48, {WS_F2}")
    a(f"s_lshl_b32 s49, s{S_X}, 3"); a("s_add_u32 s49, s49, s48")
    a("s_waitcnt vmcnt(4)")
    flag_store(a, 49, 'sc1')
    a("s_add_u32 s49, s49, 128")
    a("v_and_b32 v8, 7, v0"); a("v_lshlrev_b32 v8, 3, v8")
    a("v_and_b32 v14, 1, v0"); a("v_mul_u32_u24 v14, 1152, v14")
    a("v_bfe_u32 v15, v0, 1, 2"); a("v_lshl_add_u32 v14, v15, 3, v14")
    a("v_lshrrev_b32 v12, 3, v0"); a("v_lshl_add_u32 v14, v12, 5, v14")
    a("v_add_u32 v15, 160, v14")
    srd(a, 36, P_OUT, SZ_OUT)
    a(f"s_lshl_b32 s56, s{S_G}, 2"); a(f"s_add_u32 s56, s56, s{S_WAVE}"); a("s_lshl_b32 s56, s56, 5")
    a(f"s_lshl_b32 s57, s{S_X}, 1"); a("s_add_u32 s56, s56, s57"); a("s_mul_i32 s56, s56, 1152")
    a(f"s_mul_i32 s57, s{S_J}, 288"); a("s_add_u32 s56, s56, s57")
    a(f"s_add_u32 s57, s56, {16*1152}")
    a(f"s_mul_i32 s47, s{S_X}, 9216"); a("s_add_u32 s47, s47, s59")
    a("s_waitcnt vmcnt(1)")
    flag_store(a, 49, 'sc1')
    stamp(a, 10)
    poll(a, "da", 8, 48, sleep=OPT.get('d_sleep', 0))
    a("s_mov_b32 s46, s47")
    a("s_mov_b32 exec_hi, 0xff")
    for sx in range(8):
        a(f"buffer_load_dwordx4 {vr(RA+4*sx,4)}, v7, s[32:35], s46 offen sc1")
        if sx < 7: a("s_add_u32 s46, s46, 1152")
    a("s_mov_b64 exec, -1")
    a("s_add_u32 s48, s48, 128")
    poll(a, "db", 8, 48, sleep=OPT.get('d_sleep2', 1))
    stamp(a, 11)
    a("s_mov_b64 exec, 0xffffffff")
    for sx in range(8):
        a(f"buffer_load_dwordx4 {vr(RB+4*sx,4)}, v7, s[32:35], s47 offen offset:640 sc1")
        if sx < 7: a("s_add_u32 s47, s47, 1152")
    a("s_mov_b64 exec, -1")
    AA = 16; AB = 24; T = 32
    def summ(R, A, waits):
        for sx in range(8):
            if waits: a(f"s_waitcnt vmcnt({7 - sx})")
            for d in range(4):
                src = R + 4*sx + d
                if sx == 0:
                    a(f"v_lshlrev_b32 v{A+2*d}, 16, v{src}"); a(f"v_and_b32 v{A+2*d+1}, 0xffff0000, v{src}")
                else:
                    t = T + 2 * (d & 1)
                    a(f"v_lshlrev_b32 v{t}, 16, v{src}"); a(f"v_and_b32 v{t+1}, 0xffff0000, v{src}")
                    a(f"v_pk_add_f32 v[{A+2*d}:{A+2*d+1}], v[{A+2*d}:{A+2*d+1}], v[{t}:{t+1}]")
    fl = {0: "", 1: " sc1", 2: " nt", 3: " sc0 sc1"}[OPT.get('outfl', 0)]
    summ(RA, AA, False)
    for d in range(4): a(f"v_cvt_pk_bf16_f32 v{36+d}, v{AA+2*d}, v{AA+2*d+1}")
    summ(RB, AB, True)
    a("s_mov_b32 exec_hi, 0xff")
    a(f"buffer_store_dwordx2 v[36:37], v14, s[36:39], s56 offen{fl}")
    a(f"buffer_store_dwordx2 v[38:39], v14, s[36:39], s57 offen{fl}")
    a("s_mov_b64 exec, -1")
    for d in range(4): a(f"v_cvt_pk_bf16_f32 v{40+d}, v{AB+2*d}, v{AB+2*d+1}")
    a("s_mov_b64 exec, 0xffffffff")
    a(f"buffer_store_dwordx2 v[40:41], v15, s[36:39], s56 offen{fl}")
    a(f"buffer_store_dwordx2 v[42:43], v15, s[36:39], s57 offen{fl}")
    a("s_mov_b64 exec, -1")

def KNAME():
    return "standalone__mha_block_cached__near_ridge_kernel" if OPT['dk'] else "mha_a_kernel"

def kernelA(a):
    global KIDX
    KIDX = 0
    name = KNAME()
    prologue(a, name)
    stamp_init(a); stamp(a, 0); cstamp(a, 14)
    if OPT['stamps'] and OPT.get('entrystamp', 0): a("s_mov_b64 s[86:87], s[96:97]")
    a(f"s_cmp_lt_u32 s{S_WAVE}, 4"); a("s_cbranch_scc1 L_a_compute")
    a(f"s_cmp_eq_u32 s{S_WAVE}, 5"); a("s_cbranch_scc1 L_a_ldx")
    a(f"s_cmp_eq_u32 s{S_WAVE}, 6"); a("s_cbranch_scc1 L_a_ldk")
    a(f"s_cmp_eq_u32 s{S_WAVE}, 7"); a("s_cbranch_scc1 L_a_ldv")
    loader_ring(a, 'wq'); stamp_flush(a); a("s_endpgm")
    a.label("L_a_ldx"); loader_ring(a, 'x'); stamp_flush(a); a("s_endpgm")
    a.label("L_a_ldv"); loader_v(a); stamp_flush(a); a("s_endpgm")
    a.label("L_a_ldk"); loader_k(a); stamp_flush(a); a("s_endpgm")
    a.label("L_a_compute")
    CUR['compute'] = True
    gemm1_addrs(a); attn_addrs(a)
    if OPT.get('cprio', 0): a(f"s_setprio {OPT['cprio']}")
    kwait(a)
    srd(a, 36, P_DBG, 256)
    a("v_mov_b32 v1, 0")
    a(f"s_lshl_b32 s40, s{S_G}, 3"); a(f"s_add_u32 s40, s40, s{S_X}"); a("s_lshr_b32 s40, s40, 1")
    a("s_lshl_b32 s40, s40, 2"); a("s_add_u32 s40, s40, 128")
    srd(a, 44, P_WS, SZ_WS_USED)
    a(f"s_lshl_b32 s42, s{S_G}, 3"); a(f"s_add_u32 s42, s42, s{S_X}"); a("s_lshl_b32 s42, s42, 2")
    a(f"s_add_u32 s42, s42, s{S_WAVE}"); a("s_lshl_b32 s42, s42, 7"); a(f"s_add_u32 s42, s42, {WS_F}")
    gemm1(a)
    if not OPT.get('nonce_in', 1): get_nonce(a)
    stamp(a, 2)
    attention(a); stamp(a, 5)
    tail(a)
    if OPT['stamps']: a("s_waitcnt vmcnt(0)")
    stamp(a, 12); cstamp(a, 15); stamp_flush(a)
    if OPT.get('waitx', 0):
        a("s_waitcnt vmcnt(0)")
        a(f"s_add_u32 s62, s{S_NON}, {OPT['waitx']}")
        a("s_mov_b32 s63, 0")
        a.label("L_wx_spin")
        a("s_memrealtime s[64:65]"); a("s_waitcnt lgkmcnt(0)")
        a("s_add_u32 s63, s63, 1"); a("s_cmp_gt_u32 s63, 100000"); a("s_cbranch_scc1 L_wx_done")
        a("s_sub_u32 s66, s62, s64"); a("s_cmp_gt_i32 s66, 0"); a("s_cbranch_scc1 L_wx_spin")
        a.label("L_wx_done")
    if OPT.get('probe', -1) >= 0:
        a("s_waitcnt vmcnt(0)")
        a(f"s_sub_u32 s62, s60, s{S_NON}"); a(f"s_mul_i32 s62, s62, {OPT.get('probek', 8)}")
        a("s_memrealtime s[64:65]"); a("s_waitcnt lgkmcnt(0)")
        a("s_add_u32 s62, s62, s64")
        a("s_mov_b32 s63, 0")
        a.label("L_probe_spin")
        a("s_memrealtime s[64:65]"); a("s_waitcnt lgkmcnt(0)")
        a("s_add_u32 s63, s63, 1"); a("s_cmp_gt_u32 s63, 100000"); a("s_cbranch_scc1 L_probe_done")
        a("s_sub_u32 s66, s62, s64"); a("s_cmp_gt_i32 s66, 0"); a("s_cbranch_scc1 L_probe_spin")
        a.label("L_probe_done")
    a.label(f"L_end_{name}")
    a("s_endpgm")

def kernel3(a):
    global KIDX
    KIDX = 1
    name = "mha_p3_kernel"
    a(".p2align 8"); a(f".globl {name}"); a(f".type {name},@function"); a.label(name)
    a("s_cmp_ge_u32 s2, 256"); a(f"s_cbranch_scc1 L_end_{name}")
    a("s_load_dwordx16 s[16:31], s[0:1], 0")
    a("v_lshrrev_b32 v1, 6, v0"); a("v_and_b32 v0, 63, v0")
    a("s_lshr_b32 s5, s2, 1")
    a("s_and_b32 s6, s2, 1")
    a(f"v_readfirstlane_b32 s{S_WAVE}, v1")
    a("s_mul_i32 s6, s6, 9")
    a("s_waitcnt lgkmcnt(0)")
    stamp_init(a); stamp(a, 0); cstamp(a, 14)
    a(f"s_add_u32 s6, s6, s{S_WAVE}")
    srd(a, 32, P_WS, SZ_WS_USED); srd(a, 36, P_OUT, SZ_OUT)
    a("v_lshlrev_b32 v1, 4, v0")
    a("s_mul_i32 s45, s5, 18"); a("s_add_u32 s45, s45, s6"); a("s_lshl_b32 s45, s45, 10")
    a(f"s_add_u32 s45, s45, {WS_P}")
    for x in range(8):
        a(f"buffer_load_dwordx4 {vr(8+4*x,4)}, v1, s[32:35], s45 offen")
        if x < 7: a(f"s_add_u32 s45, s45, {128*18*1024}")
    a("v_and_b32 v2, 15, v0"); a("v_mul_u32_u24 v2, 1152, v2"); a("v_lshrrev_b32 v3, 4, v0")
    a("v_lshl_add_u32 v2, v3, 3, v2")
    a("s_lshr_b32 s46, s5, 4"); a("s_lshl_b32 s46, s46, 2"); a("s_and_b32 s47, s5, 3"); a("s_add_u32 s46, s46, s47")
    a(f"s_mul_i32 s46, s46, {32*1152}")
    a("s_lshr_b32 s47, s5, 2"); a("s_and_b32 s47, s47, 3"); a("s_mul_i32 s47, s47, 288"); a("s_add_u32 s46, s46, s47")
    a("s_and_b32 s47, s6, 1"); a(f"s_mul_i32 s47, s47, {16*1152}"); a("s_add_u32 s46, s46, s47")
    a("s_lshr_b32 s47, s6, 1"); a("s_lshl_b32 s47, s47, 5"); a("s_add_u32 s46, s46, s47")
    a("s_waitcnt vmcnt(0)")
    for v in range(4):
        for x in range(0, 8, 2): a(f"v_add_f32 v{8+4*x+v}, v{8+4*x+v}, v{12+4*x+v}")
    for v in range(4):
        a(f"v_add_f32 v{8+v}, v{8+v}, v{16+v}"); a(f"v_add_f32 v{24+v}, v{24+v}, v{32+v}")
    for v in range(4): a(f"v_add_f32 v{8+v}, v{8+v}, v{24+v}")
    a("v_cvt_pk_bf16_f32 v8, v8, v9"); a("v_cvt_pk_bf16_f32 v9, v10, v11")
    a("buffer_store_dwordx2 v[8:9], v2, s[36:39], s46 offen")
    if OPT['stamps']:
        a("s_waitcnt vmcnt(0)")
        stamp(a, 10); cstamp(a, 15)
        a(f"s_cmp_ge_u32 s{S_WAVE}, 8"); a("s_cbranch_scc1 L_end_mha_p3_kernel")
        stamp_flush(a, 44)
    a.label(f"L_end_{name}")
    a("s_endpgm")

def descriptor(a, name, vgpr, sgpr=102):
    a(f".amdhsa_kernel {name}")
    a(f".amdhsa_next_free_vgpr {vgpr}"); a(f".amdhsa_next_free_sgpr {sgpr}"); a(f".amdhsa_accum_offset {vgpr}")
    a(".amdhsa_group_segment_fixed_size 0"); a(".amdhsa_kernarg_size 64")
    a(".amdhsa_user_sgpr_count 2"); a(".amdhsa_user_sgpr_kernarg_segment_ptr 1")
    a(".amdhsa_system_sgpr_workgroup_id_x 1"); a(".end_amdhsa_kernel")

def main():
    out = sys.argv[1]
    for arg in sys.argv[2:]:
        if arg == "--stamps": OPT['stamps'] = True
        elif "=" in arg:
            k, v = arg.lstrip("-").split("="); OPT[k] = int(v)
    a = Asm()
    hdr = """; Fused MHA block for gfx950 (MI355X): out = softmax((x Wq) K^T / sqrt(128)) V  Wo
;
; Kernarg (8 pointers): x, k_cache, v_cache, wq, wo, out, debug, ws.
"""
    if OPT['dk']:
        hdr += "; @launch grid=(256,1,1) block=(512,1,1) lds=163840\n"
    else:
        hdr += "; @launch kernel=mha_a_kernel grid=(256,1,1) block=(512,1,1) lds=163840\n"
        if OPT.get('k3bf', 0): hdr += "; @launch kernel=mha_p3_kernel grid=(288,1,1) block=(256,1,1) lds=0\n"
        else: hdr += "; @launch kernel=mha_p3_kernel grid=(256,1,1) block=(576,1,1) lds=0\n"
    a('.amdgcn_target "amdgcn-amd-amdhsa--gfx950"'); a(".text")
    kernelA(a)
    if not OPT['dk']:
        if OPT.get('k3bf', 0): kernel3b(a)
        else: kernel3(a)
    a('.section .rodata,"a"'); a(".p2align 6"); descriptor(a, KNAME(), 256)
    if not OPT['dk']:
        a(".p2align 6"); descriptor(a, "mha_p3_kernel", 56)
    open(out, "w").write(hdr + a.text())

if __name__ == "__main__": main()
```

```python
import sys
sys.argv=[sys.argv[0]]
from gen17 import *
def build(out):
    a = Asm()
    name = "standalone__mha_block_cached__near_ridge_kernel"
    a('.amdgcn_target "amdgcn-amd-amdhsa--gfx950"'); a(".text")
    a(".p2align 8"); a(f".globl {name}"); a(f".type {name},@function"); a.label(name)
    a("s_cmp_ge_u32 s2, 1"); a("s_cbranch_scc1 L_end")
    a("s_load_dwordx16 s[16:31], s[0:1], 0"); a("s_waitcnt lgkmcnt(0)")
    srd(a, 32, P_WS, 1 << 28)
    a("v_mov_b32 v1, 0")
    for k, (stride, off) in enumerate(((4096, 64 << 20), (65536, 96 << 20), (2 << 20, 128 << 20), (256, 200 << 20))):
        a(f"s_mov_b32 s40, {off}")
        a("buffer_load_dword v2, v1, s[32:35], s40 offen sc1"); a("s_waitcnt vmcnt(0)")
        a("s_memtime s[42:43]"); a("s_waitcnt lgkmcnt(0)")
        for i in range(24):
            a(f"s_add_u32 s40, s40, {stride}")
            a("buffer_load_dword v2, v1, s[32:35], s40 offen sc1"); a("s_waitcnt vmcnt(0)")
        a("s_memtime s[44:45]"); a("s_waitcnt lgkmcnt(0)")
        a("s_sub_u32 s44, s44, s42")
        a(f"s_mov_b32 s{50+k}, s44")
    for k in range(4):
        a(f"v_mov_b32 v3, s{50+k}")
        a(f"buffer_store_dword v3, v1, s[32:35], 0 offen offset:{4*k}")
        a("s_nop 1")
    a("s_waitcnt vmcnt(0)")
    a.label("L_end"); a("s_endpgm")
    a('.section .rodata,"a"'); a(".p2align 6"); descriptor(a, name, 8)
    open(out, "w").write("; @launch grid=(1,1,1) block=(64,1,1) lds=0\n" + a.text())
build("tlb.s")
```
